```python
import torch

def _softmax(x, axis=-1):
    return torch.softmax(x, dim=axis)
def _gelu(x):
    return torch.nn.functional.gelu(x, approximate="tanh")
def _silu(x):
    return torch.nn.functional.silu(x)
def _sigmoid(x):
    return torch.sigmoid(x)
def _layernorm(x, axis=-1, eps=1e-5):
    m = x.mean(dim=axis, keepdim=True)
    v = x.var(dim=axis, keepdim=True, unbiased=False)
    return (x - m) / torch.sqrt(v + eps)
def _scatter_add(tgt, idx, src, axis=0):
    return tgt.clone().index_add_(axis, idx, src)
def _segment_sum(src, seg, n):
    out = torch.zeros((n,) + src.shape[1:], dtype=src.dtype)
    return out.index_add_(0, seg, src)
def _pad(x, pw):
    flat = tuple(v for pair in reversed(pw) for v in pair)
    return torch.nn.functional.pad(x, flat)

kernel_name = 'concat_heads__grouped_kv_mqa__linear_attn_block__prompt'

def setup_inputs():

    _w = (lambda a: (lambda t: t.to(torch.bfloat16) if t.is_floating_point() else t)(torch.as_tensor(a)))
    def _A_setup():
        B, S, D, H = 1, 2048, 640, 32
        Dh = D // H
        return {
            "x": _w((lambda *s: torch.randn(*s, dtype=torch.bfloat16) * 0.05)(B, S, D)),
            "wq": _w((lambda *s: torch.randn(*s, dtype=torch.bfloat16) * 0.8)(D, H * Dh)),
            "wk": _w((lambda *s: torch.randn(*s, dtype=torch.bfloat16) * 0.8)(D, Dh)),
            "wv": _w((lambda *s: torch.randn(*s, dtype=torch.bfloat16) * 0.05)(D, Dh)),
            "wo": _w((lambda *s: torch.randn(*s, dtype=torch.bfloat16) * 0.05)(H * Dh, D)),
        }
    _A_in = _A_setup()

    def _B_setup():
        B, S, D = 1, 2048, 640
        return {
            "x": _w((lambda *s: torch.randn(*s, dtype=torch.bfloat16) * 0.05)(B, S, D)),
            "wqkv": _w((lambda *s: torch.randn(*s, dtype=torch.bfloat16) * 0.4)(D, 3 * D)),
            "wo": _w((lambda *s: torch.randn(*s, dtype=torch.bfloat16) * 0.05)(D, D)),
        }
    _B_in = _B_setup()

    return {
        "A_x": _A_in["x"],
        "A_wq": _A_in["wq"],
        "A_wk": _A_in["wk"],
        "A_wv": _A_in["wv"],
        "A_wo": _A_in["wo"],
        "B_x": _B_in["x"],
        "B_wqkv": _B_in["wqkv"],
        "B_wo": _B_in["wo"],
    }

def reference(A_x, A_wq, A_wk, A_wv, A_wo, B_x, B_wqkv, B_wo):
    def _A_ref(x, wq, wk, wv, wo):
        B, S, D = x.shape
        H = 32
        Dh = D // H
        q = (lambda x, *d: x.permute(*d))((x @ wq).reshape(B, S, H, Dh), 0, 2, 1, 3)
        k = x @ wk
        v = x @ wv
        scores = torch.einsum("bhqd,bkd->bhqk", q, k) * (Dh ** -0.5)
        p = _softmax(scores, axis=-1)
        o = torch.einsum("bhqk,bkd->bhqd", p, v)
        return (lambda x, *d: x.permute(*d))(o, 0, 2, 1, 3).reshape(B, S, H * Dh) @ wo

    def _B_ref(x, wqkv, wo):
        B, S, D = x.shape
        H = 32; Dh = D // H
        qkv = (lambda x, *d: x.permute(*d))((x @ wqkv).reshape(B, S, 3, H, Dh), 2, 0, 3, 1, 4)
        q, k, v = qkv[0], qkv[1], qkv[2]
        phi = lambda t: torch.where(t > 0, t + 1, torch.exp(t)) + 1e-6
        pq, pk = phi(q), phi(k)
        kv = torch.einsum("bhsd,bhse->bhde", pk, v)
        z = torch.einsum("bhsd->bhd", pk)
        num = torch.einsum("bhqd,bhde->bhqe", pq, kv)
        den = torch.einsum("bhqd,bhd->bhq", pq, z)[..., None] + 1e-6
        o = num / den
        return (lambda x, *d: x.permute(*d))(o, 0, 2, 1, 3).reshape(B, S, D) @ wo

    a = _A_ref(A_x, A_wq, A_wk, A_wv, A_wo)
    b = _B_ref(B_x, B_wqkv, B_wo)
    return torch.concatenate([a, b], axis=-1)
```

```python
class Asm:
    def __init__(self):
        self.lines = []
        self.uid = 0
    def __call__(self, *ls):
        for l in ls:
            for x in l.split("\n"):
                x = x.strip()
                if x:
                    self.lines.append(x)
    def label(self, name):
        self.lines.append(name + ":")
    def newlabel(self, base="L"):
        self.uid += 1
        return f"{base}_{self.uid}"
    def comment(self, t):
        self.lines.append("; " + t)
    def text(self):
        out = []
        for l in self.lines:
            if l.endswith(":") or l.startswith(".") or l.startswith(";"):
                out.append(l)
            else:
                out.append("    " + l)
        return "\n".join(out) + "\n"

def v(i, n=1):
    return f"v{i}" if n == 1 else f"v[{i}:{i+n-1}]"
def s(i, n=1):
    return f"s{i}" if n == 1 else f"s[{i}:{i+n-1}]"

def kernel_begin(a, name):
    a(f".globl {name}")
    a(".p2align 8")
    a(f".type {name},@function")
    a.label(name)

def descriptor(name, vgpr, sgpr):
    acc = (vgpr + 3) // 4 * 4
    return f""".p2align 6
.amdhsa_kernel {name}
  .amdhsa_next_free_vgpr {vgpr}
  .amdhsa_next_free_sgpr {sgpr}
  .amdhsa_accum_offset {acc}
  .amdhsa_group_segment_fixed_size 0
  .amdhsa_kernarg_size 88
  .amdhsa_user_sgpr_count 2
  .amdhsa_user_sgpr_kernarg_segment_ptr 1
  .amdhsa_system_sgpr_workgroup_id_x 1
.end_amdhsa_kernel
"""

def srd(a, d, base, size):
    a(f"s_mov_b32 s{d}, s{base}")
    a(f"s_mov_b32 s{d+1}, s{base+1}")
    a(f"s_mov_b32 s{d+2}, {size}")
    a(f"s_mov_b32 s{d+3}, 0x20000")
```

```python
import sys, struct
from asmlib import *

NAME = "concat_heads__grouped_kv_mqa__linear_attn_block__prompt"
WS_Q, WS_PQ, WS_OA, WS_OB, WS_KV, WS_KVP = 0x0, 0x280000, 0x500000, 0x780000, 0xA00000, 0xA40000
WS_SIZE = 0xC00000
TILE = 2816
XBYTES = 2048 * 1280
SLOT = 38912
NSLOT = 4
IMG_W, IMG_KV = 8192, 18432
def f32(x): return "0x%08x" % struct.unpack("<I", struct.pack("<f", x))[0]
LOG2E = 1.4426950408889634
CSCALE = LOG2E / (20 ** 0.5)

ACC = [4, 20]
SETW = [36, 84]
SETX = [52, 100]
AW, AX = 132, 140
T = 144

def common_prologue(a, end):
    a(f"""
    s_cmp_ge_u32 s2, 256
    s_cbranch_scc1 {end}
    s_load_dwordx16 s[16:31], s[0:1], 0
    s_load_dwordx4 s[32:35], s[0:1], 64
    s_load_dwordx2 s[36:37], s[0:1], 80
    v_lshrrev_b32 v1, 6, v0
    v_and_b32 v0, 63, v0
    v_readfirstlane_b32 s3, v1
    s_and_b32 s6, s2, 7
    s_lshr_b32 s7, s2, 3
    s_and_b32 s5, s7, 7
    s_lshr_b32 s7, s7, 3
    s_lshl_b32 s4, s6, 2
    s_add_u32 s4, s4, s7
    """)

def rot_c0(a, dst, mod):
    a(f"""
    s_and_b32 s8, s7, 1
    s_mul_i32 s8, s8, 5
    s_and_b32 s9, s7, 2
    s_add_u32 s8, s8, s9
    s_add_u32 {dst}, s8, s5
    s_cmp_ge_u32 {dst}, {mod}
    s_cselect_b32 s8, {mod}, 0
    s_sub_u32 {dst}, {dst}, s8
    """)

def loader_xoff(a, dst):
    a(f"""
    s_lshl_b32 s8, s10, 2
    s_lshl_b32 s9, s10, 3
    v_lshrrev_b32 v20, 4, v0
    v_add_u32 v20, s8, v20
    v_xor_b32 v20, v20, v0
    v_and_b32 v20, 7, v20
    v_lshlrev_b32 v20, 4, v20
    v_lshrrev_b32 v21, 3, v0
    v_add_u32 v21, s9, v21
    v_mul_u32_u24 v21, 1280, v21
    v_add_u32 {dst}, v20, v21
    """)

def loader_woff(a, dsts, ld, kvdsts=None, dsts2=None, ld2=None):
    a(f"s_mov_b32 s8, {ld-160}")
    if dsts2: a(f"s_mov_b32 s9, {ld2-160}")
    for p in range(5):
        a(f"v_add_u32 v20, {64*p}, v0")
        a(f"v_mul_u32_u24 v21, 6554, v20")
        a(f"v_lshrrev_b32 v21, 16, v21")
        a(f"v_lshlrev_b32 v20, 4, v20")
        a(f"v_mad_u32_u24 v{dsts+p}, v21, s8, v20")
        if dsts2:
            a(f"v_mad_u32_u24 v{dsts2+p}, v21, s9, v20")
        if kvdsts:
            a(f"v_lshrrev_b32 v21, 1, v21")
            a(f"v_mul_u32_u24 v21, 1280, v21")
            a(f"v_add_u32 v{kvdsts+p}, v21, v{dsts+p}")

def dma(a, voff, srdi, soff):
    a(f"buffer_load_dwordx4 {voff}, s[{srdi}:{srdi+3}], {soff} offen lds")

def issue_x(a, srdi, voff, ldsoff):
    a(f"s_lshl_b32 s14, s11, 7")
    a(f"s_add_u32 s14, s14, s13")
    a(f"s_lshl_b32 s15, s10, 10")
    a(f"s_add_u32 s15, s15, s12")
    a(f"s_add_u32 m0, s15, {ldsoff}")
    a("s_nop 0")
    for jj in range(4):
        dma(a, voff, srdi, "s14")
        if jj < 3:
            a("s_add_u32 m0, m0, 2048")
            a("s_add_u32 s14, s14, 20480")

def issue_w(a, srdi, voffs, ld, sbase, ldsoff, periods=1, rows_per_period=32):
    a(f"s_mul_i32 s14, s11, {64*ld}")
    a(f"s_add_u32 s14, s14, {sbase}")
    a(f"s_mul_i32 s15, s10, {5120*periods}")
    a(f"s_add_u32 s15, s15, s12")
    a(f"s_add_u32 m0, s15, {ldsoff}")
    a("s_nop 0")
    for per in range(periods):
        for p in range(5):
            dma(a, f"v{voffs+p}", srdi, "s14")
            if not (per == periods - 1 and p == 4):
                a("s_add_u32 m0, m0, 1024")
                if p == 4:
                    a(f"s_add_u32 s14, s14, {rows_per_period*ld}")
                else:
                    a("s_nop 0")

def advance(a):
    a(f"""
    s_add_u32 s11, s11, 1
    s_cmp_eq_u32 s11, 10
    s_cselect_b32 s11, 0, s11
    s_add_u32 s12, s12, {SLOT}
    s_cmp_eq_u32 s12, {SLOT*NSLOT}
    s_cselect_b32 s12, 0, s12
    """)

def gemm_addr_setup(a):
    a(f"""
    v_lshrrev_b32 v{T}, 5, v0
    v_lshlrev_b32 v{T+1}, 3, v{T}
    v_bfe_u32 v{T+2}, v0, 2, 2
    v_add_u32 v{T+1}, v{T+1}, v{T+2}
    v_mul_u32_u24 v{T+1}, s61, v{T+1}
    v_bfe_u32 v{T+2}, v0, 4, 1
    v_mul_u32_u24 v{T+2}, s64, v{T+2}
    v_and_b32 v{T+3}, 3, v0
    v_lshlrev_b32 v{T+3}, 3, v{T+3}
    v_add3_u32 v{T+1}, v{T+1}, v{T+2}, v{T+3}
    v_add_u32 v{AW}, s60, v{T+1}
    s_lshl_b32 s66, s61, 2
    s_mul_i32 s67, s61, 12
    """)
    for j in range(1, 8):
        a(f"v_add_u32 v{AW+j}, {'s66' if j & 1 else 's67'}, v{AW+j-1}")
    a(f"""
    v_and_b32 v{T+1}, 31, v0
    v_bfe_u32 v{T+2}, v0, 1, 3
    v_xor_b32 v{T+2}, v{T+2}, v{T}
    v_lshlrev_b32 v{T+2}, 4, v{T+2}
    v_lshl_or_b32 v{T+1}, v{T+1}, 7, v{T+2}
    """)
    for st in range(4):
        a(f"v_xor_b32 v{AX+st}, {32*st}, v{T+1}")
    for st in range(4):
        a(f"v_add_u32 v{AX+st}, s65, v{AX+st}")
    for i in range(32):
        a(f"v_mov_b32 v{ACC[0]+i}, 0")

def gemm_sub(a, name, orient):
    def reads(st_):
        for stp in range(4):
            for hf in range(2):
                d = SETW[st_] + 4 * stp + 2 * hf
                a(f"ds_read_b64_tr_b16 v[{d}:{d+1}], v{AW+2*stp+hf}")
            for blk in range(2):
                d = SETX[st_] + 8 * stp + 4 * blk
                a(f"ds_read_b128 v[{d}:{d+3}], v{AX+stp} offset:{4096*blk}")
    def adv():
        a(f"""
        s_add_u32 s68, s68, 1
        s_and_b32 s68, s68, 3
        s_cselect_b32 s69, {SLOT}, {(-(NSLOT-1)*SLOT) & 0xffffffff}
        """) if False else None
        a("s_add_u32 s68, s68, 1")
        a("s_and_b32 s68, s68, 3")
        a(f"s_cselect_b32 s69, s70, s71")
        for j in range(12):
            a(f"v_add_u32 v{AW+j}, s69, v{AW+j}")
    def mfmas(st_):
        for stp in range(4):
            for blk in range(2):
                w = v(SETW[st_] + 4 * stp, 4)
                x = v(SETX[st_] + 8 * stp + 4 * blk, 4)
                ac = v(ACC[blk], 16)
                if orient == "R":
                    a(f"v_mfma_f32_32x32x16_bf16 {ac}, {w}, {x}, {ac}")
                else:
                    a(f"v_mfma_f32_32x32x16_bf16 {ac}, {x}, {w}, {ac}")
    a(".p2align 3")
    a.label(name)
    a(f"s_mov_b32 s70, {SLOT}")
    a(f"s_mov_b32 s71, {(-(NSLOT-1)*SLOT) & 0xffffffff}")
    a("s_mov_b32 s72, 0")
    lp, skip = name + "_loop", name + "_skip"
    a.label(lp)
    a("s_barrier")
    reads(0); adv()
    a("s_cmp_eq_u32 s72, 0")
    a(f"s_cbranch_scc1 {skip}")
    mfmas(1)
    a.label(skip)
    a("s_waitcnt lgkmcnt(0)")
    a("s_barrier")
    reads(1); adv()
    mfmas(0)
    a("s_waitcnt lgkmcnt(0)")
    a("s_add_u32 s72, s72, 1")
    a("s_cmp_lt_u32 s72, 5")
    a(f"s_cbranch_scc1 {lp}")
    mfmas(1)
    a("s_nop 15")
    a("s_setpc_b64 s[62:63]")

def xyz_params(a, widx, slotbase, img, ximg):
    a(f"""
    s_mov_b32 s73, 0
    s_mov_b32 s74, 128
    s_cmp_eq_u32 {widx}, 1
    s_cselect_b32 s73, 32, s73
    s_cselect_b32 s74, 64, s74
    s_cmp_eq_u32 {widx}, 2
    s_cselect_b32 s73, 96, s73
    s_cselect_b32 s74, 96, s74
    s_add_u32 s60, s73, {slotbase + img}
    s_mov_b32 s61, 160
    s_sub_u32 s64, s74, s73
    s_mov_b32 s65, {slotbase + ximg}
    """)

def phi(a, regs, tmp):
    for r in regs:
        a(f"v_min_f32 v{tmp}, 0, v{r}")
        a(f"v_mul_f32 v{tmp}, s75, v{tmp}")
        a(f"v_exp_f32 v{tmp}, v{tmp}")
        a(f"v_max_f32 v{r}, 0, v{r}")
        a(f"v_add_f32 v{r}, s76, v{r}")
        a(f"v_add_f32 v{r}, v{r}, v{tmp}")

def store_rows(a, srdi, widx, rowstride, sbase):
    a(f"""
    v_and_b32 v{T}, 31, v0
    v_mul_u32_u24 v{T}, {rowstride}, v{T}
    v_lshrrev_b32 v{T+1}, 5, v0
    v_lshl_add_u32 v{T}, v{T+1}, 3, v{T}
    """)
    for i in range(16):
        a(f"v_cvt_pk_bf16_f32 v{ACC[0]+i}, v{ACC[0]+2*i}, v{ACC[0]+2*i+1}")
    done = a.newlabel("Lst")
    for half in range(2):
        if half == 1:
            a(f"s_cmp_eq_u32 {widx}, 2")
            a(f"s_cbranch_scc1 {done}")
        a(f"s_add_u32 s77, {sbase}, s{73+half}")
        a(f"s_add_u32 s78, s77, {32*rowstride}")
        for blk in range(2):
            for q in range(2):
                d = ACC[0] + 8 * blk + 4 * half + 2 * q
                a(f"buffer_store_dwordx2 v[{d}:{d+1}], v{T}, s[{srdi}:{srdi+3}], s{77+blk} offen offset:{16*q}")
    a.label(done)

def gen_k1(a):
    kernel_begin(a, "proj_kernel")
    common_prologue(a, "k1_end")
    a("s_cmp_ge_u32 s3, 8")
    a("s_cbranch_scc1 k1_loader")
    a("s_waitcnt lgkmcnt(0)")
    srd(a, 40, 36, WS_SIZE)
    a(f"s_mov_b32 s75, {f32(LOG2E)}")
    a(f"s_mov_b32 s76, {f32(1e-6)}")
    a("s_mul_i32 s79, s4, 81920")
    a("s_mul_i32 s8, s5, 160")
    a("s_add_u32 s79, s79, s8")
    a("s_cmp_lt_u32 s3, 3")
    a("s_cbranch_scc1 k1_aq")
    a("s_cmp_gt_u32 s3, 3")
    a("s_cbranch_scc1 k1_aidle")
    a("s_cmp_ge_u32 s5, 2")
    a("s_cbranch_scc1 k1_aidle")
    a(f"s_mov_b32 s60, {IMG_KV}\ns_mov_b32 s61, 40\ns_mov_b32 s64, 32\ns_mov_b32 s65, 0\ns_mov_b32 s68, 0")
    gemm_addr_setup(a)
    a(f"s_mul_i32 s77, s4, {2*TILE}")
    a(f"s_add_u32 s77, s77, {WS_KV}")
    a(f"s_add_u32 s78, s77, {TILE}")
    a("s_cmp_eq_u32 s5, 1")
    a("s_cbranch_scc1 k1_av")
    a("s_call_b64 s[62:63], k1_gemmR")
    for i in range(16):
        a(f"v_cvt_pk_bf16_f32 v{ACC[0]+i}, v{ACC[0]+2*i}, v{ACC[0]+2*i+1}")
    a(f"""
    v_and_b32 v{T}, 31, v0
    v_lshrrev_b32 v{T+1}, 5, v0
    v_lshlrev_b32 v{T+2}, 4, v{T}
    v_lshl_add_u32 v{T+2}, v{T+1}, 3, v{T+2}
    v_lshlrev_b32 v{T+3}, 3, v{T}
    v_add_u32 v{T+3}, 1024, v{T+3}
    s_mov_b32 exec_lo, 0
    v_add_u32 v{T+3}, 1536, v{T+3}
    v_mov_b32 v{ACC[0]+4}, 0x3f803f80
    v_mov_b32 v{ACC[0]+5}, 0x3f803f80
    v_mov_b32 v{ACC[0]+12}, 0x3f803f80
    v_mov_b32 v{ACC[0]+13}, 0x3f803f80
    s_mov_b32 exec_lo, -1
    """)
    for blk in range(2):
        for q in range(2):
            d = ACC[0] + 8 * blk + 2 * q
            a(f"buffer_store_dwordx2 v[{d}:{d+1}], v{T+2}, s[40:43], s{77+blk} offen offset:{512*q}")
    a("s_mov_b32 exec_hi, 3")
    for blk in range(2):
        d = ACC[0] + 8 * blk + 4
        a(f"buffer_store_dwordx2 v[{d}:{d+1}], v{T+3}, s[40:43], s{77+blk} offen")
    a("s_mov_b32 exec_hi, -1")
    a("s_branch k1_b")
    a.label("k1_av")
    a("s_call_b64 s[62:63], k1_gemmC")
    for i in range(16):
        a(f"v_cvt_pk_bf16_f32 v{ACC[0]+i}, v{ACC[0]+2*i}, v{ACC[0]+2*i+1}")
    a(f"""
    v_and_b32 v{T}, 31, v0
    v_lshrrev_b32 v{T+1}, 2, v{T}
    v_add_u32 v{T+1}, 1, v{T+1}
    v_and_b32 v{T+1}, 2, v{T+1}
    v_mul_u32_u24 v{T+1}, 6, v{T+1}
    v_xor_b32 v{T}, v{T}, v{T+1}
    v_lshlrev_b32 v{T}, 4, v{T}
    v_lshrrev_b32 v{T+1}, 5, v0
    v_mul_u32_u24 v{T+1}, 320, v{T+1}
    v_add_u32 v{T}, v{T}, v{T+1}
    s_mov_b32 exec_lo, 0xfffff
    s_mov_b32 exec_hi, 0xfffff
    """)
    for blk in range(2):
        for t in range(2):
            d = ACC[0] + 8 * blk + 4 * t
            a(f"buffer_store_dwordx4 v[{d}:{d+3}], v{T}, s[40:43], s{77+blk} offen offset:{1280+640*t}")
    a("s_mov_b64 exec, -1")
    a("s_branch k1_b")
    a.label("k1_aidle")
    for i in range(10):
        a("s_barrier")
    a("s_branch k1_b")
    a.label("k1_aq")
    xyz_params(a, "s3", 0, IMG_W, 0)
    a("s_mov_b32 s68, 0")
    gemm_addr_setup(a)
    a("s_call_b64 s[62:63], k1_gemmR")
    a(f"s_mov_b32 s8, {f32(CSCALE)}")
    for i in range(32):
        a(f"v_mul_f32 v{ACC[0]+i}, s8, v{ACC[0]+i}")
    a(f"s_add_u32 s80, s79, {WS_Q}")
    store_rows(a, 40, "s3", 1280, "s80")
    a.label("k1_b")
    a("s_nop 1")
    a("s_mov_b32 s68, 2")
    a("s_cmp_ge_u32 s3, 3")
    a("s_cbranch_scc1 k1_bkv")
    xyz_params(a, "s3", 2 * SLOT, IMG_W, 0)
    gemm_addr_setup(a)
    a("s_call_b64 s[62:63], k1_gemmR")
    phi(a, range(ACC[0], ACC[0] + 32), T)
    a(f"s_add_u32 s80, s79, {WS_PQ}")
    store_rows(a, 40, "s3", 1280, "s80")
    a("s_branch k1_kvjobs")
    a.label("k1_bkv")
    a("s_sub_u32 s81, s3, 3")
    a("s_lshl_b32 s60, s81, 6")
    a(f"s_add_u32 s60, s60, {2*SLOT + IMG_KV}")
    a(f"s_mov_b32 s61, 320\ns_mov_b32 s64, 32\ns_mov_b32 s65, {2*SLOT}")
    gemm_addr_setup(a)
    a("s_call_b64 s[62:63], k1_gemmC")
    a("s_cmp_ge_u32 s81, 3")
    a("s_cbranch_scc1 k1_nophi")
    a("s_cmp_eq_u32 s81, 2")
    a("s_cselect_b32 s8, 0xffff, -1")
    a("s_mov_b32 exec_lo, s8\ns_mov_b32 exec_hi, s8")
    phi(a, range(ACC[0], ACC[0] + 32), T)
    a("s_mov_b64 exec, -1")
    a.label("k1_nophi")
    for i in range(16):
        a(f"v_cvt_pk_bf16_f32 v{ACC[0]+i}, v{ACC[0]+2*i}, v{ACC[0]+2*i+1}")
    a("s_lshl_b32 s8, s81, 12")
    a(f"v_lshlrev_b32 v{T}, 4, v0")
    a(f"v_add_u32 v{T}, s8, v{T}")
    for ks in range(4):
        d = ACC[0] + 4 * ks
        a(f"ds_write_b128 v{T}, v[{d}:{d+3}] offset:{1024*ks}")
    a.label("k1_kvjobs")
    a("s_waitcnt lgkmcnt(0)")
    a("s_barrier")
    a("""
    s_lshr_b32 s8, s3, 1
    s_add_u32 s9, s3, 1
    s_lshr_b32 s9, s9, 1
    s_add_u32 s9, s9, 2
    s_sub_u32 s10, s3, 5
    s_cmp_ge_u32 s3, 5
    s_cselect_b32 s8, s10, s8
    s_cselect_b32 s9, 0, s9
    s_lshl_b32 s10, s8, 12
    s_lshl_b32 s11, s9, 12
    """)
    a(f"v_lshlrev_b32 v{T}, 4, v0")
    a(f"v_add_u32 v{T+1}, s10, v{T}")
    a(f"v_add_u32 v{T+2}, s11, v{T}")
    for ks in range(4):
        a(f"ds_read_b128 v[{36+4*ks}:{39+4*ks}], v{T+1} offset:{1024*ks}")
        a(f"ds_read_b128 v[{52+4*ks}:{55+4*ks}], v{T+2} offset:{1024*ks}")
    a("s_waitcnt lgkmcnt(0)")
    a("s_cmp_lt_u32 s3, 5")
    a("s_cbranch_scc1 k1_noz")
    for i in range(16):
        a(f"v_mov_b32 v{52+i}, 0x3f803f80")
    a("s_nop 1")
    a.label("k1_noz")
    for ks in range(4):
        c = "0" if ks == 0 else "v[4:19]"
        a(f"v_mfma_f32_32x32x16_bf16 v[4:19], v[{36+4*ks}:{39+4*ks}], v[{52+4*ks}:{55+4*ks}], {c}")
    a(f"""
    s_lshl_b32 s10, s8, 5
    s_lshl_b32 s11, s9, 5
    s_sub_u32 s11, s11, 80
    v_lshrrev_b32 v{T}, 5, v0
    v_lshlrev_b32 v{T}, 2, v{T}
    v_add_u32 v{T}, s10, v{T}
    v_and_b32 v{T+1}, 31, v0
    v_add_u32 v{T+1}, s11, v{T+1}
    v_and_b32 v{T+2}, 0xffff, v{T+1}
    v_mul_u32_u24 v{T+2}, 3277, v{T+2}
    v_lshrrev_b32 v{T+2}, 16, v{T+2}
    v_mul_u32_u24 v{T+3}, 80, v{T+1}
    s_lshl_b32 s12, s5, 5
    s_add_u32 s12, s12, s4
    s_mul_i32 s12, s12, 6720
    s_add_u32 s12, s12, {WS_KVP}
    """)
    for q in range(4):
        a(f"v_add_u32 v{T+4}, {8*q}, v{T}")
        a(f"v_mul_u32_u24 v{T+5}, 3277, v{T+4}")
        a(f"v_lshrrev_b32 v{T+5}, 16, v{T+5}")
        lz, ld = a.newlabel("Lz"), a.newlabel("Ld")
        a("s_cmp_ge_u32 s3, 5")
        a(f"s_cbranch_scc1 {lz}")
        a(f"v_lshl_add_u32 v{T+6}, v{T+4}, 2, v{T+3}")
        a(f"v_cmp_eq_u32 vcc, v{T+5}, v{T+2}")
        a(f"s_branch {ld}")
        a.label(lz)
        a(f"v_add_u32 v{T+6}, 1, v{T+5}")
        a(f"v_mul_u32_u24 v{T+6}, 1600, v{T+6}")
        a(f"v_lshl_add_u32 v{T+6}, v{T+4}, 2, v{T+6}")
        a(f"v_cmp_gt_u32 vcc, 4, v{T+5}")
        a("s_and_b32 vcc_lo, vcc_lo, 1")
        a("s_and_b32 vcc_hi, vcc_hi, 1")
        a.label(ld)
        a("s_nop 4")
        a("s_mov_b64 exec, vcc")
        a(f"buffer_store_dwordx4 v[{4+4*q}:{7+4*q}], v{T+6}, s[40:43], s12 offen")
        a("s_mov_b64 exec, -1")
    a("s_endpgm")
    a.label("k1_loader")
    a("s_sub_u32 s10, s3, 8")
    rot_c0(a, "s11", 10)
    a("s_mov_b32 s12, 0")
    a("s_mul_i32 s13, s4, 81920")
    loader_xoff(a, "v2")
    a("s_waitcnt lgkmcnt(0)")
    srd(a, 40, 16, XBYTES)
    srd(a, 44, 18, 640 * 1280)
    a("s_cmp_eq_u32 s5, 1")
    a("s_cselect_b32 s48, s22, s20")
    a("s_cselect_b32 s49, s23, s21")
    a("s_cmp_lt_u32 s5, 2")
    a("s_cselect_b32 s50, 25600, 0")
    a("s_mov_b32 s51, 0x20000")
    srd(a, 52, 26, XBYTES)
    srd(a, 56, 28, 640 * 3840)
    loader_woff(a, 3, 1280, kvdsts=13, dsts2=8, ld2=3840)
    a("v_lshlrev_b32 v18, 4, v0")
    a("s_mul_i32 s64, s5, 160")
    a(f"s_mul_i32 s65, s10, {32*1280}")
    a("s_add_u32 s65, s65, s64")
    a(f"s_mul_i32 s66, s10, {32*3840}")
    a("s_add_u32 s66, s66, s64")
    a("s_add_u32 s67, s66, 1280")
    a("s_sub_u32 s68, 1, s10")
    a("s_lshl_b32 s68, s68, 10")
    for i in range(3):
        a("s_call_b64 s[62:63], k1_issueA")
    a("s_mov_b32 s70, 0")
    a.label("k1_l1")
    a("s_waitcnt vmcnt(22)\ns_barrier\ns_call_b64 s[62:63], k1_issueA")
    a("s_add_u32 s70, s70, 1\ns_cmp_lt_u32 s70, 7\ns_cbranch_scc1 k1_l1")
    a("s_waitcnt vmcnt(22)\ns_barrier\ns_call_b64 s[62:63], k1_issueB")
    a("s_waitcnt vmcnt(30)\ns_barrier\ns_call_b64 s[62:63], k1_issueB")
    a("s_mov_b32 s70, 0")
    a.label("k1_l2")
    a("s_waitcnt vmcnt(38)\ns_barrier\ns_call_b64 s[62:63], k1_issueB")
    a("s_add_u32 s70, s70, 1\ns_cmp_lt_u32 s70, 8\ns_cbranch_scc1 k1_l2")
    a("s_waitcnt vmcnt(38)\ns_barrier\ns_waitcnt vmcnt(19)\ns_barrier\ns_waitcnt vmcnt(0)\ns_barrier")
    a.label("k1_end")
    a("s_endpgm")
    a.label("k1_issueA")
    issue_x(a, 40, "v2", 0)
    issue_w(a, 44, 3, 1280, "s65", IMG_W)
    a("s_mul_i32 s14, s11, 2560")
    a("s_lshl_b32 s15, s10, 11")
    a("s_add_u32 s14, s14, s15")
    a("s_add_u32 s15, s15, s12")
    a(f"s_add_u32 m0, s15, {IMG_KV}")
    a("s_nop 0")
    dma(a, "v18", 48, "s14")
    a("s_add_u32 m0, m0, s68")
    a("s_add_u32 s14, s14, s68")
    dma(a, "v18", 48, "s14")
    advance(a)
    a("s_setpc_b64 s[62:63]")
    a.label("k1_issueB")
    issue_x(a, 52, "v2", 0)
    issue_w(a, 56, 8, 3840, "s66", IMG_W)
    issue_w(a, 56, 13, 3840, "s67", IMG_KV, periods=2, rows_per_period=16)
    advance(a)
    a("s_setpc_b64 s[62:63]")
    gemm_sub(a, "k1_gemmR", "R")
    gemm_sub(a, "k1_gemmC", "C")

CH = 4 * TILE
S0, S1, PP, OO, QA, QB, KA, KB, V0, V1 = 4, 20, 36, 44, 60, 64, 66, 70, 72, 76
aKA, aKB, aV0, aV1 = 80, 81, 82, 83
T2 = 84

def load_qfrag(a, wsoff):
    a(f"""
    s_and_b32 s8, s3, 1
    s_lshr_b32 s9, s3, 1
    s_mul_i32 s8, s8, {32*1280}
    s_mul_i32 s9, s9, 40
    s_add_u32 s8, s8, s9
    s_add_u32 s81, s8, s79
    s_add_u32 s8, s81, {wsoff}
    v_and_b32 v{T2}, 31, v0
    v_mul_u32_u24 v{T2}, 1280, v{T2}
    v_lshrrev_b32 v{T2+1}, 5, v0
    v_lshl_add_u32 v{T2+1}, v{T2+1}, 4, v{T2}
    buffer_load_dwordx4 v[{QA}:{QA+3}], v{T2+1}, s[40:43], s8 offen
    buffer_load_dwordx2 v[{QB}:{QB+1}], v{T2}, s[40:43], s8 offen offset:32
    """)

def o_epilogue(a, wsoff, eps):
    if eps:
        a(f"v_add_f32 v{OO+12}, {f32(1e-6)}, v{OO+12}")
    a(f"v_rcp_f32 v{OO+12}, v{OO+12}")
    a(f"s_add_u32 s8, s81, {wsoff}")
    for i in range(12):
        a(f"v_mul_f32 v{OO+i}, v{OO+i}, v{OO+12}")
    for i in range(6):
        a(f"v_cvt_pk_bf16_f32 v{OO+i}, v{OO+2*i}, v{OO+2*i+1}")
    a(f"buffer_store_dwordx4 v[{OO}:{OO+3}], v{T2+1}, s[40:43], s8 offen")
    a("s_mov_b32 exec_hi, 0")
    a(f"buffer_store_dwordx2 v[{OO+4}:{OO+5}], v{T2}, s[40:43], s8 offen offset:32")
    a("s_mov_b32 exec_hi, -1")

def rowmax(a, S, dst, tmp, first=True):
    regs = [f"v{S+i}" for i in range(16)]
    if first:
        a(f"v_max3_f32 v{dst}, {regs[0]}, {regs[1]}, {regs[2]}")
        rest = regs[3:]
    else:
        rest = regs
    while len(rest) >= 2:
        a(f"v_max3_f32 v{dst}, v{dst}, {rest[0]}, {rest[1]}")
        rest = rest[2:]
    if rest:
        a(f"v_max_f32 v{dst}, v{dst}, {rest[0]}")

def set_m(a, m, tmp):
    a(f"""
    v_mov_b32 v{tmp}, v{m}
    s_nop 1
    v_permlane32_swap_b32 v{m}, v{tmp}
    s_nop 1
    v_max_f32 v{m}, v{m}, v{tmp}
    s_mov_b32 exec_lo, 0
    v_sub_f32 v{m}, 0, v{m}
    v_and_b32 v{tmp}, 0xffff0000, v{m}
    v_sub_f32 v{m}, v{m}, v{tmp}
    v_lshrrev_b32 v{QB}, 16, v{tmp}
    v_and_b32 v{tmp}, 0xffff0000, v{m}
    v_sub_f32 v{m}, v{m}, v{tmp}
    v_or_b32 v{QB}, v{QB}, v{tmp}
    v_lshrrev_b32 v{QB+1}, 16, v{m}
    s_mov_b32 exec_lo, -1
    s_nop 1
    """)

def gen_k2(a):
    kernel_begin(a, "attn_kernel")
    common_prologue(a, "k2_end")
    a("s_waitcnt lgkmcnt(0)")
    srd(a, 40, 36, WS_SIZE)
    a("s_cmp_ge_u32 s3, 8")
    a("s_cbranch_scc1 k2_loader")
    a("s_mul_i32 s79, s4, 81920")
    a("s_mul_i32 s8, s5, 160")
    a("s_add_u32 s79, s79, s8")
    load_qfrag(a, WS_Q)
    a(f"""
    v_lshlrev_b32 v{aKA}, 4, v0
    v_and_b32 v{T2+2}, 31, v0
    v_lshrrev_b32 v{T2+3}, 5, v0
    v_lshlrev_b32 v{aKB}, 3, v{T2+2}
    v_add_u32 v{aKB}, 1024, v{aKB}
    v_mul_u32_u24 v{aV0}, 320, v{T2+3}
    v_lshl_add_u32 v{aV0}, v{T2+2}, 4, v{aV0}
    v_add_u32 v{aV0}, 1280, v{aV0}
    v_add_u32 v{aV1}, 640, v{aV0}
    s_mov_b32 exec_lo, 0xfff00000
    s_mov_b32 exec_hi, 0xfff00000
    v_mov_b32 v{aV0}, 2560
    v_mov_b32 v{aV1}, 2560
    s_mov_b32 exec_lo, 0
    s_mov_b32 exec_hi, -1
    v_mov_b32 v{aKB}, 2560
    s_mov_b64 exec, -1
    """)
    for i in range(16): a(f"v_mov_b32 v{OO+i}, 0")
    for i in range(4): a(f"v_mov_b32 v{PP+4+i}, 0")
    for i in range(4): a(f"v_mov_b32 v{V1+i}, 0")
    a("s_waitcnt vmcnt(0)")
    a("s_mov_b32 exec_lo, 0")
    a(f"v_mov_b32 v{QB}, 0\nv_mov_b32 v{QB+1}, 0")
    a("s_mov_b32 exec_lo, -1")
    a("s_barrier")
    def rdKA(t): a(f"ds_read_b128 v[{KA}:{KA+3}], v{aKA} offset:{(t%16)*TILE}")
    def rdKB(t): a(f"ds_read_b64 v[{KB}:{KB+1}], v{aKB} offset:{(t%16)*TILE}")
    def rdV0(t): a(f"ds_read_b128 v[{V0}:{V0+3}], v{aV0} offset:{(t%16)*TILE}")
    def rdV1(t): a(f"ds_read_b128 v[{V1}:{V1+3}], v{aV1} offset:{(t%16)*TILE}")
    def qka(S): a(f"v_mfma_f32_32x32x16_bf16 v[{S}:{S+15}], v[{KA}:{KA+3}], v[{QA}:{QA+3}], 0")
    def qkb(S): a(f"v_mfma_f32_32x32x8_bf16 v[{S}:{S+15}], v[{KB}:{KB+1}], v[{QB}:{QB+1}], v[{S}:{S+15}]")
    def pv0(): a(f"v_mfma_f32_32x32x16_bf16 v[{OO}:{OO+15}], v[{V0}:{V0+3}], v[{PP}:{PP+3}], v[{OO}:{OO+15}]")
    def pv1(): a(f"v_mfma_f32_32x32x16_bf16 v[{OO}:{OO+15}], v[{V1}:{V1+3}], v[{PP+4}:{PP+7}], v[{OO}:{OO+15}]")
    def E(S, g):
        for i in range(4): a(f"v_exp_f32 v{S+4*g+i}, v{S+4*g+i}")
    def C(S, g):
        for i in range(2): a(f"v_cvt_pk_bf16_f32 v{PP+2*g+i}, v{S+4*g+2*i}, v{S+4*g+2*i+1}")
    rdKA(0); rdKB(0); rdV0(0)
    a("s_waitcnt lgkmcnt(0)")
    qka(S0); qkb(S0)
    a("s_nop 15")
    rowmax(a, S0, T2 + 2, T2 + 3)
    set_m(a, T2 + 2, T2 + 3)
    qka(S0); qkb(S0)
    rdKA(1); rdKB(1)
    a("s_nop 10")
    a("s_waitcnt lgkmcnt(0)")
    a("s_mov_b32 s70, 0")
    a(".p2align 6")
    a.label("k2_loop")
    for n in range(16):
        Sc, Sn = (S0, S1) if n % 2 == 0 else (S1, S0)
        if n % 4 == 2:
            a("s_barrier")
            a("s_waitcnt lgkmcnt(3)")
        else:
            a("s_waitcnt lgkmcnt(3)")
            a("s_nop 0")
        qka(Sn); rdKA(n + 2)
        E(Sc, 0)
        a("s_waitcnt lgkmcnt(3)")
        a("s_nop 0")
        pv1(); rdV1(n)
        C(Sc, 0); E(Sc, 1)
        a("s_waitcnt lgkmcnt(3)")
        a("s_nop 0")
        qkb(Sn); rdKB(n + 2)
        C(Sc, 1); E(Sc, 2)
        a("s_waitcnt lgkmcnt(3)")
        a("s_nop 0")
        pv0(); rdV0(n + 1)
        C(Sc, 2); E(Sc, 3); C(Sc, 3)
    a("s_add_u32 s70, s70, 1\ns_cmp_lt_u32 s70, 4\ns_cbranch_scc1 k2_loop")
    a("s_waitcnt lgkmcnt(0)")
    pv1()
    a("s_nop 15")
    a(f"v_cmp_nge_f32 vcc, {f32(2.0**40)}, v{OO+12}")
    a("s_nop 4")
    a("s_cbranch_vccz k2_ok")
    a("s_mov_b32 exec_lo, 0")
    a(f"v_mov_b32 v{QB}, 0\nv_mov_b32 v{QB+1}, 0")
    a("s_mov_b32 exec_lo, -1")
    a(f"v_mov_b32 v{T2+2}, 0xff800000")
    a(f"s_mov_b32 s70, {WS_KV}")
    a.label("k2_fb1")
    a(f"buffer_load_dwordx4 v[{KA}:{KA+3}], v{aKA}, s[40:43], s70 offen")
    a(f"buffer_load_dwordx2 v[{KB}:{KB+1}], v{aKB}, s[40:43], s70 offen")
    a("s_waitcnt vmcnt(0)")
    qka(S0); qkb(S0)
    a("s_nop 15")
    rowmax(a, S0, T2 + 2, T2 + 3, first=False)
    a(f"s_add_u32 s70, s70, {TILE}\ns_cmp_lt_u32 s70, {WS_KV+64*TILE}\ns_cbranch_scc1 k2_fb1")
    set_m(a, T2 + 2, T2 + 3)
    for i in range(16): a(f"v_mov_b32 v{OO+i}, 0")
    a(f"s_mov_b32 s70, {WS_KV}")
    a.label("k2_fb2")
    a(f"buffer_load_dwordx4 v[{KA}:{KA+3}], v{aKA}, s[40:43], s70 offen")
    a(f"buffer_load_dwordx2 v[{KB}:{KB+1}], v{aKB}, s[40:43], s70 offen")
    a(f"buffer_load_dwordx4 v[{V0}:{V0+3}], v{aV0}, s[40:43], s70 offen")
    a(f"buffer_load_dwordx4 v[{V1}:{V1+3}], v{aV1}, s[40:43], s70 offen")
    a("s_waitcnt vmcnt(0)")
    qka(S0); qkb(S0)
    a("s_nop 15")
    for g in range(4): E(S0, g)
    a("s_nop 0")
    for g in range(4): C(S0, g)
    a("s_nop 1")
    pv0(); pv1()
    a(f"s_add_u32 s70, s70, {TILE}\ns_cmp_lt_u32 s70, {WS_KV+64*TILE}\ns_cbranch_scc1 k2_fb2")
    a("s_nop 15")
    a.label("k2_ok")
    o_epilogue(a, WS_OA, False)
    KVZ = 16 * TILE
    a(f"""
    s_lshl_b32 s8, s3, 6
    v_add_u32 v{T2+2}, s8, v0
    v_lshlrev_b32 v{T2+3}, 4, v{T2+2}
    v_cmp_gt_u32 vcc, 420, v{T2+2}
    s_mul_i32 s12, s5, {32*6720}
    s_add_u32 s12, s12, {WS_KVP}
    s_nop 2
    s_mov_b64 exec, vcc
    s_cbranch_execz k2_nored
    """)
    for i in range(4): a(f"v_mov_b32 v{T2+4+i}, 0")
    for half in range(2):
        for i in range(16):
            a(f"buffer_load_dwordx4 v[{4+4*i}:{7+4*i}], v{T2+3}, s[40:43], s12 offen")
            a("s_add_u32 s12, s12, 6720")
        for i in range(16):
            a(f"s_waitcnt vmcnt({15-i})")
            for j in range(4):
                a(f"v_add_f32 v{T2+4+j}, v{T2+4+j}, v{4+4*i+j}")
    a(f"v_cvt_pk_bf16_f32 v{T2+4}, v{T2+4}, v{T2+5}")
    a(f"v_cvt_pk_bf16_f32 v{T2+5}, v{T2+6}, v{T2+7}")
    a(f"v_lshlrev_b32 v{T2+2}, 3, v{T2+2}")
    a(f"ds_write_b64 v{T2+2}, v[{T2+4}:{T2+5}] offset:{KVZ}")
    a.label("k2_nored")
    a("s_mov_b64 exec, -1")
    load_qfrag(a, WS_PQ)
    a(f"""
    v_and_b32 v{T2+2}, 31, v0
    v_lshrrev_b32 v{T2+3}, 2, v{T2+2}
    v_add_u32 v{T2+3}, 1, v{T2+3}
    v_and_b32 v{T2+3}, 2, v{T2+3}
    v_mul_u32_u24 v{T2+3}, 6, v{T2+3}
    v_xor_b32 v{T2+3}, v{T2+2}, v{T2+3}
    s_mov_b32 exec_lo, 0xfff00000
    s_mov_b32 exec_hi, 0xfff00000
    v_mov_b32 v{T2+3}, 20
    s_mov_b64 exec, -1
    v_mul_u32_u24 v{T2+3}, 40, v{T2+3}
    s_lshr_b32 s9, s3, 1
    s_mul_i32 s9, s9, 840
    v_add_u32 v{T2+3}, s9, v{T2+3}
    v_lshrrev_b32 v{T2+4}, 5, v0
    v_lshl_add_u32 v{T2+4}, v{T2+4}, 4, v{T2+3}
    s_waitcnt lgkmcnt(0)
    s_barrier
    ds_read_b64 v[{KA}:{KA+1}], v{T2+4} offset:{KVZ}
    ds_read_b64 v[{KA+2}:{KA+3}], v{T2+4} offset:{KVZ+8}
    ds_read_b64 v[{KB}:{KB+1}], v{T2+3} offset:{KVZ+32}
    s_waitcnt vmcnt(0) lgkmcnt(0)
    s_mov_b32 exec_lo, 0
    v_mov_b32 v{QB}, 0
    v_mov_b32 v{QB+1}, 0
    s_mov_b32 exec_lo, -1
    s_nop 1
    """)
    qka(OO); qkb(OO)
    a("s_nop 15")
    o_epilogue(a, WS_OB, True)
    a("s_endpgm")
    a.label("k2_loader")
    a("v_lshlrev_b32 v2, 4, v0")
    a("s_lshr_b32 s11, s2, 3")
    a("s_and_b32 s11, s11, 15")
    a("s_mov_b32 s12, 0")
    for i in range(3):
        a("s_call_b64 s[62:63], k2_issue")
    a("s_waitcnt vmcnt(22)\ns_barrier")
    a("s_mov_b32 s70, 1")
    a.label("k2_l1")
    a("s_waitcnt vmcnt(11)\ns_barrier\ns_call_b64 s[62:63], k2_issue")
    a("s_add_u32 s70, s70, 1\ns_cmp_lt_u32 s70, 14\ns_cbranch_scc1 k2_l1")
    a("s_waitcnt vmcnt(11)\ns_barrier\ns_waitcnt vmcnt(0)\ns_barrier")
    a.label("k2_end")
    a("s_endpgm")
    a.label("k2_issue")
    a(f"s_mul_i32 s14, s11, {CH}")
    a(f"s_add_u32 s14, s14, {WS_KV}")
    a("s_mov_b32 m0, s12")
    a("s_nop 0")
    for i in range(11):
        if i % 4 == 0 and i > 0:
            a("s_add_u32 m0, m0, 4096")
            a("s_add_u32 s14, s14, 4096")
        a(f"buffer_load_dwordx4 v2, s[40:43], s14 offen offset:{1024*(i%4)} lds")
    a(f"""
    s_add_u32 s11, s11, 1
    s_and_b32 s11, s11, 15
    s_add_u32 s12, s12, {CH}
    s_cmp_eq_u32 s12, {4*CH}
    s_cselect_b32 s12, 0, s12
    s_setpc_b64 s[62:63]
    """)

def gen_k3(a):
    kernel_begin(a, "outp_kernel")
    common_prologue(a, "k3_end")
    a("s_cmp_ge_u32 s3, 6")
    a("s_cbranch_scc1 k3_loader")
    a("s_cmp_ge_u32 s3, 3")
    a("s_cselect_b32 s82, 1, 0")
    a("s_mul_i32 s8, s82, 3")
    a("s_sub_u32 s83, s3, s8")
    xyz_params(a, "s83", 0, IMG_W, 0)
    a("s_mul_i32 s8, s82, 18432")
    a("s_add_u32 s60, s60, s8")
    a("s_add_u32 s65, s65, s8")
    a("s_mov_b32 s68, 0")
    gemm_addr_setup(a)
    a("s_waitcnt lgkmcnt(0)")
    srd(a, 40, 32, 2048 * 2560)
    a("s_call_b64 s[62:63], k3_gemmR")
    a(f"s_mul_i32 s80, s4, {64*2560}")
    a("s_mul_i32 s8, s5, 160")
    a("s_add_u32 s80, s80, s8")
    a("s_mul_i32 s8, s82, 1280")
    a("s_add_u32 s80, s80, s8")
    store_rows(a, 40, "s83", 2560, "s80")
    a("s_endpgm")
    a.label("k3_loader")
    a("s_sub_u32 s10, s3, 6")
    rot_c0(a, "s11", 10)
    a("s_mov_b32 s12, 0")
    loader_xoff(a, "v2")
    loader_woff(a, 3, 1280)
    a("s_waitcnt lgkmcnt(0)")
    srd(a, 40, 36, WS_SIZE)
    srd(a, 44, 24, 640 * 1280)
    srd(a, 48, 30, 640 * 1280)
    a("s_mul_i32 s64, s5, 160")
    a(f"s_mul_i32 s65, s10, {32*1280}")
    a("s_add_u32 s65, s65, s64")
    a("s_mul_i32 s66, s4, 81920")
    for i in range(3):
        a("s_call_b64 s[62:63], k3_issue")
    a("s_mov_b32 s70, 0")
    a.label("k3_l1")
    a("s_waitcnt vmcnt(36)\ns_barrier\ns_call_b64 s[62:63], k3_issue")
    a("s_add_u32 s70, s70, 1\ns_cmp_lt_u32 s70, 7\ns_cbranch_scc1 k3_l1")
    a("s_waitcnt vmcnt(36)\ns_barrier\ns_waitcnt vmcnt(18)\ns_barrier\ns_waitcnt vmcnt(0)\ns_barrier")
    a.label("k3_end")
    a("s_endpgm")
    a.label("k3_issue")
    a(f"s_add_u32 s13, s66, {WS_OA}")
    issue_x(a, 40, "v2", 0)
    issue_w(a, 44, 3, 1280, "s65", IMG_W)
    a(f"s_add_u32 s13, s66, {WS_OB}")
    issue_x(a, 40, "v2", 18432)
    issue_w(a, 48, 3, 1280, "s65", 18432 + IMG_W)
    advance(a)
    a("s_setpc_b64 s[62:63]")
    gemm_sub(a, "k3_gemmR", "R")

def main(out):
    a = Asm()
    a.lines.append(f"; @launch kernel=proj_kernel grid=(256,1,1) block=(640,1,1) lds={SLOT*NSLOT}")
    a.lines.append(f"; @launch kernel=attn_kernel grid=(256,1,1) block=(576,1,1) lds={16*TILE+4096}")
    a.lines.append(f"; @launch kernel=outp_kernel grid=(256,1,1) block=(512,1,1) lds={SLOT*NSLOT}")
    a('.amdgcn_target "amdgcn-amd-amdhsa--gfx950"')
    a(".text")
    gen_k1(a); gen_k2(a); gen_k3(a)
    a('.section .rodata,"a"')
    txt = a.text()
    txt += descriptor("proj_kernel", 160, 96) + descriptor("attn_kernel", 96, 96) + descriptor("outp_kernel", 160, 96)
    open(out, "w").write(txt)

if __name__ == "__main__":
    main(sys.argv[1] if len(sys.argv) > 1 else f"cdna_kernels/{NAME}.s")
```

```python
import sys, struct, os
from asmlib import *

NAME = "concat_heads__grouped_kv_mqa__linear_attn_block__prompt"
STAMP = bool(os.environ.get("STAMP"))
WS_OA, WS_OB, WS_KV, WS_KVP, WS_KVZ = 0x0, 0x280000, 0x500000, 0x540000, 0x700000
FL_KV, FL_P, FL_R, FL_OB, FL_OA = 0x710000, 0x720000, 0x728000, 0x730000, 0x738000
WS_ST = 0x800000
WS_SIZE = 0x900000
TILE = 2816
CH = 4 * TILE
XBYTES = 2048 * 1280
SLOT = 38912
IMG_W, IMG_KV = 8192, 18432
LKV = 3 * SLOT
LMISC = LKV + 16 * TILE
LKVZ = 102400
LDS_TOTAL = 163840
SPIN_MAX = 1 << 17
def f32(x): return "0x%08x" % struct.unpack("<I", struct.pack("<f", x))[0]
LOG2E = 1.4426950408889634
CSCALE = LOG2E / (20 ** 0.5)

ACC = [4, 20]
FR = [36, 48, 60, 72]
AW, AX = 84, 92
T = 96
QA, QB, PQA, PQB = 108, 112, 114, 118
OAD0, OAD1 = 120, 121
S0, S1, PP, OO, KA, KB, V0, V1 = 4, 20, 36, 44, 60, 64, 68, 72
aKA, aKB, aV0, aV1 = 76, 77, 78, 79
T2 = 80
NV = 124

def tr(a):
    if not STAMP: return
    a("""
    s_memtime s[88:89]
    s_waitcnt lgkmcnt(0)
    s_sub_u32 s88, s88, s84
    s_mov_b32 s89, m0
    s_mov_b32 m0, s85
    s_nop 0
    v_writelane_b32 v40, s88, m0
    s_mov_b32 m0, s89
    s_add_u32 s85, s85, 1
    """)
def tr_init(a):
    if STAMP: a("s_mov_b32 s85, 0\nv_mov_b32 v40, 0")
def tr_dump(a):
    if not STAMP: return
    a(f"""
    s_lshl_b32 s8, s2, 1
    s_add_u32 s8, s8, s10
    s_lshl_b32 s8, s8, 8
    s_add_u32 s8, s8, {WS_ST + 0x40000}
    v_lshlrev_b32 v8, 2, v0
    buffer_store_dword v40, v8, s[40:43], s8 offen
    """)
def stamp_end(a):
    if not STAMP: return
    a(f"""
    s_waitcnt vmcnt(0)
    s_memtime s[88:89]
    s_memrealtime s[90:91]
    s_waitcnt lgkmcnt(0)
    s_mov_b64 exec, -1
    s_sub_u32 s88, s88, s84
    v_mov_b32 v4, s86
    v_mov_b32 v5, s90
    v_mov_b32 v6, s88
    v_mov_b32 v7, s3
    s_lshl_b32 s8, s2, 4
    s_add_u32 s8, s8, s3
    s_lshl_b32 s8, s8, 4
    s_add_u32 s8, s8, {WS_ST}
    v_mov_b32 v8, 0
    buffer_store_dwordx4 v[4:7], v8, s[40:43], s8 offen
    """)

def bar(a):
    a("s_barrier"); tr(a)

def dma(a, voff, srdi, soff, extra=""):
    a(f"buffer_load_dwordx4 {voff}, s[{srdi}:{srdi+3}], {soff} offen {extra} lds")

def issue_x(a, srdi, sbase, lds_sgpr, extra=""):
    a(f"s_lshl_b32 s14, s11, 7")
    a(f"s_add_u32 s14, s14, {sbase}")
    a(f"s_lshl_b32 s15, s10, 10")
    a(f"s_add_u32 m0, s15, {lds_sgpr}")
    a("s_nop 0")
    for jj in range(4):
        dma(a, "v2", srdi, "s14", extra)
        if jj < 3:
            a("s_add_u32 m0, m0, 2048")
            a("s_add_u32 s14, s14, 20480")

def issue_w(a, srdi, voffs, ld, sbase, lds_sgpr, ldsoff, kc="s11", periods=1, rows_per_period=32):
    a(f"s_mul_i32 s14, {kc}, {64*ld}")
    a(f"s_add_u32 s14, s14, {sbase}")
    a(f"s_mul_i32 s15, s10, {5120*periods}")
    a(f"s_add_u32 s15, s15, {lds_sgpr}")
    a(f"s_add_u32 m0, s15, {ldsoff}")
    a("s_nop 0")
    for per in range(periods):
        for p in range(5):
            dma(a, f"v{voffs+p}", srdi, "s14")
            if not (per == periods - 1 and p == 4):
                a("s_add_u32 m0, m0, 1024")
                a(f"s_add_u32 s14, s14, {rows_per_period*ld}" if p == 4 else "s_nop 0")

def wrap_inc(a, reg, step, limit, base=0):
    a(f"s_add_u32 {reg}, {reg}, {step}")
    a(f"s_cmp_eq_u32 {reg}, {limit}")
    a(f"s_cselect_b32 {reg}, {base}, {reg}")

def poll(a, soff, nlanes, tmp="v30", addr="v19"):
    lp, dn = a.newlabel("Lpoll"), a.newlabel("Lpd")
    if nlanes < 64:
        m = (1 << nlanes) - 1
        a(f"s_mov_b32 exec_lo, {m & 0xffffffff:#x}")
        a(f"s_mov_b32 exec_hi, {m >> 32:#x}")
    a("s_mov_b32 s9, 0")
    a.label(lp)
    a(f"buffer_load_dword {tmp}, {addr}, s[40:43], {soff} offen sc1")
    a("s_add_u32 s9, s9, 1")
    a("s_waitcnt vmcnt(0)")
    a(f"v_cmp_ne_u32 vcc, s96, {tmp}")
    a(f"s_cmp_gt_u32 s9, {SPIN_MAX}")
    a(f"s_cbranch_scc1 {dn}")
    a(f"s_cbranch_vccz {dn}")
    a("s_sleep 1")
    a(f"s_branch {lp}")
    a.label(dn)
    if nlanes < 64:
        a("s_mov_b64 exec, -1")

def publish(a, soff, tmp, zero):
    a(f"v_mov_b32 {tmp}, s96")
    a(f"v_mov_b32 {zero}, 0")
    a("s_mov_b64 exec, 1")
    a(f"buffer_store_dword {tmp}, {zero}, s[40:43], {soff} offen sc1")
    a("s_mov_b64 exec, -1")

def get_nonce(a, tmp, addr):
    a(f"v_mov_b32 {addr}, {LMISC}")
    a(f"ds_read_b32 {tmp}, {addr}")
    a("s_waitcnt lgkmcnt(0)")
    a(f"v_readfirstlane_b32 s96, {tmp}")

def gemm_addr_setup_sub(a):
    a.label("g_setup")
    a(f"""
    v_lshrrev_b32 v{T}, 5, v0
    v_lshlrev_b32 v{T+1}, 3, v{T}
    v_bfe_u32 v{T+2}, v0, 2, 2
    v_add_u32 v{T+1}, v{T+1}, v{T+2}
    v_mul_u32_u24 v{T+1}, s61, v{T+1}
    v_bfe_u32 v{T+2}, v0, 4, 1
    v_mul_u32_u24 v{T+2}, s64, v{T+2}
    v_and_b32 v{T+3}, 3, v0
    v_lshlrev_b32 v{T+3}, 3, v{T+3}
    v_add3_u32 v{T+1}, v{T+1}, v{T+2}, v{T+3}
    v_add_u32 v{AW}, s60, v{T+1}
    s_lshl_b32 s66, s61, 2
    s_mul_i32 s67, s61, 12
    """)
    for j in range(1, 8):
        a(f"v_add_u32 v{AW+j}, {'s66' if j & 1 else 's67'}, v{AW+j-1}")
    a(f"""
    v_and_b32 v{T+1}, 31, v0
    v_bfe_u32 v{T+2}, v0, 1, 3
    v_xor_b32 v{T+2}, v{T+2}, v{T}
    v_lshlrev_b32 v{T+2}, 4, v{T+2}
    v_lshl_or_b32 v{T+1}, v{T+1}, 7, v{T+2}
    v_add_u32 v{AX}, s65, v{T+1}
    """)
    for st in range(1, 4):
        a(f"v_xor_b32 v{AX+st}, {32*st}, v{AX}")
    for i in range(32):
        a(f"v_mov_b32 v{ACC[0]+i}, 0")
    a("s_setpc_b64 s[58:59]")

def gemm_sub(a, name, orient):
    def rd(st, i):
        f = FR[st]
        if i < 2: a(f"ds_read_b64_tr_b16 v[{f+2*i}:{f+2*i+1}], v{AW+2*st+i}")
        else: a(f"ds_read_b128 v[{f+4*(i-1)}:{f+4*(i-1)+3}], v{AX+st} offset:{4096*(i-2)}")
    def mf(st, blk):
        f = FR[st]
        w, x, ac = v(f, 4), v(f + 4 + 4 * blk, 4), v(ACC[blk], 16)
        a(f"v_mfma_f32_32x32x16_bf16 {ac}, {w}, {x}, {ac}" if orient == "R" else f"v_mfma_f32_32x32x16_bf16 {ac}, {x}, {w}, {ac}")
    a(".p2align 3")
    a.label(name)
    a("s_mov_b32 s56, 0")
    a("s_nop 0")
    for st in (0, 1):
        for i in range(4): rd(st, i)
    a(f"s_branch {name}_mid")
    a("s_nop 0")
    a.label(name + "_loop")
    a("s_waitcnt vmcnt(0) lgkmcnt(0)")
    a("s_barrier")
    for st in (0, 1):
        rd(st, 0); rd(st, 1); mf(st + 2, 0); rd(st, 2); rd(st, 3); mf(st + 2, 1)
    a.label(name + "_mid")
    a("""
    s_add_u32 s68, s68, 1
    s_mul_i32 s74, s69, s70
    s_sub_u32 s74, s70, s74
    s_cmp_eq_u32 s68, s69
    s_cselect_b32 s74, s74, s70
    s_cselect_b32 s68, 0, s68
    s_add_u32 s71, s71, 1
    s_mul_i32 s75, s72, s73
    s_sub_u32 s75, s73, s75
    s_cmp_eq_u32 s71, s72
    s_cselect_b32 s75, s75, s73
    s_cselect_b32 s71, 0, s71
    """)
    rd(2, 0); rd(2, 1); rd(2, 2); rd(2, 3)
    a("s_waitcnt lgkmcnt(8)")
    a("s_add_u32 s56, s56, 1")
    mf(0, 0); rd(3, 0); rd(3, 1); mf(0, 1); rd(3, 2); rd(3, 3)
    a("s_waitcnt lgkmcnt(8)")
    a("s_cmp_eq_u32 s56, s57")
    mf(1, 0)
    for j in range(6): a(f"v_add_u32 v{AW+j}, s74, v{AW+j}")
    mf(1, 1)
    for j in range(6, 8): a(f"v_add_u32 v{AW+j}, s74, v{AW+j}")
    for j in range(4): a(f"v_add_u32 v{AX+j}, s75, v{AX+j}")
    a(f"s_cbranch_scc1 {name}_hook")
    a.label(name + "_back")
    a("s_cmp_lt_u32 s56, 10")
    a(f"s_cbranch_scc1 {name}_loop")
    a("s_waitcnt lgkmcnt(0)")
    for st in (2, 3):
        mf(st, 0); mf(st, 1)
    a("s_nop 15")
    a("s_setpc_b64 s[62:63]")
    a.label(name + "_hook")
    publish(a, "s55", f"v{T}", f"v{T+1}")
    a(f"s_branch {name}_back")

def xyz_params(a, widx, wbase, xbase):
    a(f"""
    s_mov_b32 s76, 0
    s_mov_b32 s77, 128
    s_cmp_eq_u32 {widx}, 1
    s_cselect_b32 s76, 32, s76
    s_cselect_b32 s77, 64, s77
    s_cmp_eq_u32 {widx}, 2
    s_cselect_b32 s76, 96, s76
    s_cselect_b32 s77, 96, s77
    s_add_u32 s60, s76, {wbase}
    s_mov_b32 s61, 160
    s_sub_u32 s64, s77, s76
    s_mov_b32 s65, {xbase}
    """)

def ring_params(a, widx, wn, wst, xidx, xn, xst):
    a(f"s_mov_b32 s68, {widx}\ns_mov_b32 s69, {wn}\ns_mov_b32 s70, {wst}\ns_mov_b32 s71, {xidx}\ns_mov_b32 s72, {xn}\ns_mov_b32 s73, {xst}")

def phi_sub(a):
    a.label("g_phi")
    a(f"s_mov_b32 s8, {f32(LOG2E)}")
    a(f"s_mov_b32 s9, {f32(1e-6)}")
    for r0 in range(ACC[0], ACC[0] + 32, 4):
        for i in range(4): a(f"v_min_f32 v{T+i}, 0, v{r0+i}")
        for i in range(4): a(f"v_mul_f32 v{T+i}, s8, v{T+i}")
        for i in range(4): a(f"v_exp_f32 v{T+i}, v{T+i}")
        for i in range(4): a(f"v_max_f32 v{r0+i}, 0, v{r0+i}")
        for i in range(4): a(f"v_add_f32 v{T+i}, s9, v{T+i}")
        for i in range(4): a(f"v_add_f32 v{r0+i}, v{r0+i}, v{T+i}")
    a("s_setpc_b64 s[58:59]")

def pack_sub(a):
    a.label("g_pack")
    for i in range(16):
        a(f"v_cvt_pk_bf16_f32 v{ACC[0]+i}, v{ACC[0]+2*i}, v{ACC[0]+2*i+1}")
    a("s_setpc_b64 s[58:59]")

def tile_to_lds_sub(a):
    a.label("g_t2l")
    a(f"""
    v_and_b32 v{T}, 31, v0
    v_mul_u32_u24 v{T}, 160, v{T}
    v_lshrrev_b32 v{T+1}, 5, v0
    v_lshl_add_u32 v{T}, v{T+1}, 3, v{T}
    v_add_u32 v{T}, s78, v{T}
    v_add_u32 v{T+1}, s77, v{T}
    v_add_u32 v{T}, s76, v{T}
    """)
    for blk in range(2):
        for half in range(2):
            for q in range(2):
                d = ACC[0] + 8 * blk + 4 * half + 2 * q
                a(f"ds_write_b64 v{T+half}, v[{d}:{d+1}] offset:{5120*blk + 16*q}")
    a("s_setpc_b64 s[58:59]")

def read_qfrag(a, ldsbase, qa, qb):
    a(f"""
    s_and_b32 s8, s3, 1
    s_lshr_b32 s9, s3, 1
    s_mul_i32 s8, s8, 5120
    s_mul_i32 s9, s9, 40
    s_add_u32 s8, s8, s9
    s_add_u32 s8, s8, {ldsbase}
    v_and_b32 v{T+4}, 31, v0
    v_mul_u32_u24 v{T+4}, 160, v{T+4}
    v_add_u32 v{T+4}, s8, v{T+4}
    v_lshrrev_b32 v{T+5}, 5, v0
    v_lshl_add_u32 v{T+5}, v{T+5}, 4, v{T+4}
    ds_read2_b64 v[{qa}:{qa+3}], v{T+5} offset0:0 offset1:1
    ds_read_b64 v[{qb}:{qb+1}], v{T+4} offset:32
    """)

def o_epilogue(a, O, wsoff, eps):
    if eps:
        a(f"v_add_f32 v{O+12}, {f32(1e-6)}, v{O+12}")
    a(f"v_rcp_f32 v{O+12}, v{O+12}")
    a(f"s_add_u32 s8, s81, {wsoff}")
    for i in range(12):
        a(f"v_mul_f32 v{O+i}, v{O+i}, v{O+12}")
    for i in range(6):
        a(f"v_cvt_pk_bf16_f32 v{O+i}, v{O+2*i}, v{O+2*i+1}")
    a(f"buffer_store_dwordx4 v[{O}:{O+3}], v{OAD1}, s[40:43], s8 offen sc1")
    a("s_mov_b32 exec_hi, 0")
    a(f"buffer_store_dwordx2 v[{O+4}:{O+5}], v{OAD0}, s[40:43], s8 offen offset:32 sc1")
    a("s_mov_b32 exec_hi, -1")

def rowmax(a, S, dst, first=True):
    regs = [f"v{S+i}" for i in range(16)]
    if first:
        a(f"v_max3_f32 v{dst}, {regs[0]}, {regs[1]}, {regs[2]}")
        rest = regs[3:]
    else:
        rest = regs
    while len(rest) >= 2:
        a(f"v_max3_f32 v{dst}, v{dst}, {rest[0]}, {rest[1]}")
        rest = rest[2:]
    if rest:
        a(f"v_max_f32 v{dst}, v{dst}, {rest[0]}")

def set_m(a, m, tmp):
    a(f"""
    v_mov_b32 v{tmp}, v{m}
    s_nop 1
    v_permlane32_swap_b32 v{m}, v{tmp}
    s_nop 1
    v_max_f32 v{m}, v{m}, v{tmp}
    s_mov_b32 exec_lo, 0
    v_sub_f32 v{m}, 0, v{m}
    v_and_b32 v{tmp}, 0xffff0000, v{m}
    v_sub_f32 v{m}, v{m}, v{tmp}
    v_lshrrev_b32 v{QB}, 16, v{tmp}
    v_and_b32 v{tmp}, 0xffff0000, v{m}
    v_sub_f32 v{m}, v{m}, v{tmp}
    v_or_b32 v{QB}, v{QB}, v{tmp}
    v_lshrrev_b32 v{QB+1}, 16, v{m}
    s_mov_b32 exec_lo, -1
    s_nop 1
    """)

def call(a, lbl, link="s[58:59]"):
    a(f"s_call_b64 {link}, {lbl}")

def gen(a):
    K = NAME + "_kernel"
    kernel_begin(a, K)
    if STAMP:
        a("s_memtime s[84:85]\ns_memrealtime s[86:87]")
    a(f"""
    s_cmp_ge_u32 s2, 256
    s_cbranch_scc1 L_end
    s_load_dwordx16 s[16:31], s[0:1], 0
    s_load_dwordx4 s[32:35], s[0:1], 64
    s_load_dwordx2 s[36:37], s[0:1], 80
    v_lshrrev_b32 v1, 6, v0
    v_and_b32 v0, 63, v0
    v_readfirstlane_b32 s3, v1
    s_and_b32 s6, s2, 7
    s_lshr_b32 s7, s2, 3
    s_lshr_b32 s4, s6, 1
    s_lshl_b32 s4, s4, 3
    s_lshr_b32 s8, s7, 2
    s_add_u32 s4, s4, s8
    s_and_b32 s5, s6, 1
    s_lshl_b32 s5, s5, 2
    s_and_b32 s8, s7, 3
    s_add_u32 s5, s5, s8
    s_cmp_ge_u32 s3, 8
    s_cbranch_scc1 L_loader
    s_mov_b32 s57, -1
    s_mul_i32 s79, s4, 81920
    s_mul_i32 s8, s5, 160
    s_add_u32 s79, s79, s8
    """)
    ring_params(a, 0, 3, SLOT, 0, 3, SLOT)
    a("s_cmp_lt_u32 s3, 3")
    a("s_cbranch_scc1 A_q")
    a("s_waitcnt lgkmcnt(0)")
    srd(a, 40, 36, WS_SIZE)
    a("s_cmp_gt_u32 s3, 3")
    a("s_cbranch_scc1 A_idle")
    a("s_cmp_ge_u32 s5, 2")
    a("s_cbranch_scc1 A_idle")
    a(f"s_mov_b32 s60, {IMG_KV}\ns_mov_b32 s61, 40\ns_mov_b32 s64, 32\ns_mov_b32 s65, 0")
    call(a, "g_setup")
    a(f"s_mul_i32 s76, s4, {2*TILE}")
    a(f"s_add_u32 s76, s76, {WS_KV}")
    a(f"s_add_u32 s77, s76, {TILE}")
    a("s_barrier")
    a("s_cmp_eq_u32 s5, 1")
    a("s_cbranch_scc1 A_v")
    call(a, "gemmR", "s[62:63]")
    call(a, "g_pack")
    a(f"""
    v_and_b32 v{T}, 31, v0
    v_lshrrev_b32 v{T+1}, 5, v0
    v_lshlrev_b32 v{T+2}, 4, v{T}
    v_lshl_add_u32 v{T+2}, v{T+1}, 3, v{T+2}
    v_lshlrev_b32 v{T+3}, 3, v{T}
    v_add_u32 v{T+3}, 1024, v{T+3}
    s_mov_b32 exec_lo, 0
    v_add_u32 v{T+3}, 1536, v{T+3}
    v_mov_b32 v{ACC[0]+4}, 0x3f803f80
    v_mov_b32 v{ACC[0]+5}, 0x3f803f80
    v_mov_b32 v{ACC[0]+12}, 0x3f803f80
    v_mov_b32 v{ACC[0]+13}, 0x3f803f80
    s_mov_b32 exec_lo, -1
    """)
    for blk in range(2):
        for q in range(2):
            d = ACC[0] + 8 * blk + 2 * q
            a(f"buffer_store_dwordx2 v[{d}:{d+1}], v{T+2}, s[40:43], s{76+blk} offen offset:{512*q} sc1")
    a("s_mov_b32 exec_hi, 3")
    for blk in range(2):
        d = ACC[0] + 8 * blk + 4
        a(f"buffer_store_dwordx2 v[{d}:{d+1}], v{T+3}, s[40:43], s{76+blk} offen sc1")
    a("s_mov_b32 exec_hi, -1")
    a("s_branch A_kvdone")
    a.label("A_v")
    call(a, "gemmC", "s[62:63]")
    call(a, "g_pack")
    a(f"""
    v_and_b32 v{T}, 31, v0
    v_lshrrev_b32 v{T+1}, 2, v{T}
    v_add_u32 v{T+1}, 1, v{T+1}
    v_and_b32 v{T+1}, 2, v{T+1}
    v_mul_u32_u24 v{T+1}, 6, v{T+1}
    v_xor_b32 v{T}, v{T}, v{T+1}
    v_lshlrev_b32 v{T}, 4, v{T}
    v_lshrrev_b32 v{T+1}, 5, v0
    v_mul_u32_u24 v{T+1}, 320, v{T+1}
    v_add_u32 v{T}, v{T}, v{T+1}
    s_mov_b32 exec_lo, 0xfffff
    s_mov_b32 exec_hi, 0xfffff
    """)
    for blk in range(2):
        for t in range(2):
            d = ACC[0] + 8 * blk + 4 * t
            a(f"buffer_store_dwordx4 v[{d}:{d+3}], v{T}, s[40:43], s{76+blk} offen offset:{1280+640*t} sc1")
    a("s_mov_b64 exec, -1")
    a.label("A_kvdone")
    get_nonce(a, f"v{T}", f"v{T+1}")
    a("s_lshl_b32 s55, s4, 1\ns_add_u32 s55, s55, s5\ns_lshl_b32 s55, s55, 7")
    a(f"s_add_u32 s55, s55, {FL_KV}")
    a("s_mov_b32 s57, 2")
    a("s_branch B_start")
    a.label("A_idle")
    a("s_cmp_lg_u32 s3, 7")
    a("s_cbranch_scc1 A_pref")
    srd(a, 44, 34, 256)
    a("v_mov_b32 v6, 0")
    a("s_cmp_ge_u32 s2, 8")
    a("s_cbranch_scc1 A_npoll")
    a("s_memrealtime s[8:9]\ns_waitcnt lgkmcnt(0)\ns_or_b32 s8, s8, 1")
    a("v_mov_b32 v4, s8\nv_mov_b32 v5, 0\ns_mov_b64 exec, 1")
    a("buffer_atomic_cmpswap v[4:5], v6, s[44:47], 0 offen sc1")
    a("s_mov_b64 exec, -1")
    a.label("A_npoll")
    a("s_mov_b32 s9, 0")
    a.label("A_np")
    a("buffer_load_dword v4, v6, s[44:47], 0 offen sc1")
    a("s_add_u32 s9, s9, 1")
    a("s_waitcnt vmcnt(0)")
    a("v_cmp_eq_u32 vcc, 0, v4")
    a(f"s_cmp_gt_u32 s9, {SPIN_MAX}\ns_cbranch_scc1 A_nd\ns_cbranch_vccz A_nd\ns_sleep 1\ns_branch A_np")
    a.label("A_nd")
    a(f"v_mov_b32 v5, {LMISC}\nds_write_b32 v5, v4\ns_waitcnt lgkmcnt(0)")
    a("s_branch A_bars")
    a.label("A_pref")
    a("s_getpc_b64 s[44:45]")
    a.label("L_pc")
    a(f"s_sub_u32 s44, s44, L_pc-{K}\ns_subb_u32 s45, s45, 0")
    a(f"s_mov_b32 s46, L_codeend-{K}\ns_mov_b32 s47, 0x20000")
    a("v_lshlrev_b32 v4, 7, v0")
    a("s_sub_u32 s8, s3, 3\ns_lshl_b32 s8, s8, 13")
    a("s_cmp_eq_u32 s3, 3\ns_cselect_b32 s8, 0x2000, s8\ns_sub_u32 s8, s8, 0x2000")
    a("buffer_load_dword v5, v4, s[44:47], s8 offen")
    a.label("A_bars")
    for i in range(10): a("s_barrier")
    a("s_waitcnt vmcnt(0)")
    a("s_branch B_start")
    a.label("A_q")
    xyz_params(a, "s3", IMG_W, 0)
    call(a, "g_setup")
    a("s_waitcnt lgkmcnt(0)")
    srd(a, 40, 36, WS_SIZE)
    a("s_barrier")
    call(a, "gemmR", "s[62:63]")
    a(f"s_mov_b32 s8, {f32(CSCALE)}")
    for i in range(32):
        a(f"v_mul_f32 v{ACC[0]+i}, s8, v{ACC[0]+i}")
    call(a, "g_pack")
    a(f"s_mov_b32 s78, {LKV}")
    call(a, "g_t2l")
    a.label("B_start")
    ring_params(a, 1, 3, SLOT, 1, 3, SLOT)
    a("s_cmp_ge_u32 s3, 3")
    a("s_cbranch_scc1 B_kv")
    xyz_params(a, "s3", SLOT + IMG_W, SLOT)
    call(a, "g_setup")
    a("s_waitcnt lgkmcnt(0)\ns_barrier")
    read_qfrag(a, LKV, QA, QB)
    call(a, "gemmR", "s[62:63]")
    call(a, "g_phi")
    call(a, "g_pack")
    a(f"s_mov_b32 s78, {2*SLOT + 20480}")
    call(a, "g_t2l")
    a("s_branch B_jobs")
    a.label("B_kv")
    a("s_sub_u32 s82, s3, 3")
    a("s_lshl_b32 s60, s82, 6")
    a(f"s_add_u32 s60, s60, {SLOT + IMG_KV}")
    a(f"s_mov_b32 s61, 320\ns_mov_b32 s64, 32\ns_mov_b32 s65, {SLOT}")
    call(a, "g_setup")
    a("s_waitcnt lgkmcnt(0)\ns_barrier")
    read_qfrag(a, LKV, QA, QB)
    call(a, "gemmC", "s[62:63]")
    a("s_mov_b32 s57, -1")
    a("s_cmp_ge_u32 s82, 3")
    a("s_cbranch_scc1 B_nophi")
    a("s_cmp_eq_u32 s82, 2")
    a("s_cselect_b32 s8, 0xffff, -1")
    a("s_mov_b32 exec_lo, s8\ns_mov_b32 exec_hi, s8")
    call(a, "g_phi")
    a("s_mov_b64 exec, -1")
    a.label("B_nophi")
    call(a, "g_pack")
    a("s_lshl_b32 s8, s82, 12")
    a(f"s_add_u32 s8, s8, {2*SLOT}")
    a(f"v_lshlrev_b32 v{T}, 4, v0")
    a(f"v_add_u32 v{T}, s8, v{T}")
    for ks in range(4):
        d = ACC[0] + 4 * ks
        a(f"ds_write_b128 v{T}, v[{d}:{d+3}] offset:{1024*ks}")
    a.label("B_jobs")
    a(f"""
    s_lshr_b32 s8, s3, 1
    s_add_u32 s9, s3, 1
    s_lshr_b32 s9, s9, 1
    s_add_u32 s9, s9, 2
    s_sub_u32 s10, s3, 5
    s_cmp_ge_u32 s3, 5
    s_cselect_b32 s12, s10, s8
    s_cselect_b32 s13, 0, s9
    s_lshl_b32 s10, s12, 12
    s_lshl_b32 s11, s13, 12
    v_lshlrev_b32 v{T}, 4, v0
    v_add_u32 v{T}, {2*SLOT}, v{T}
    v_add_u32 v{T+1}, s10, v{T}
    v_add_u32 v{T+2}, s11, v{T}
    s_waitcnt lgkmcnt(0)
    s_barrier
    """)
    for ks in range(4):
        a(f"ds_read_b128 v[{36+4*ks}:{39+4*ks}], v{T+1} offset:{1024*ks}")
        a(f"ds_read_b128 v[{52+4*ks}:{55+4*ks}], v{T+2} offset:{1024*ks}")
    read_qfrag(a, 2 * SLOT + 20480, PQA, PQB)
    a(f"""
    s_lshl_b32 s10, s12, 5
    s_lshl_b32 s11, s13, 5
    s_sub_u32 s11, s11, 80
    v_lshrrev_b32 v{T}, 5, v0
    v_lshlrev_b32 v{T}, 2, v{T}
    v_add_u32 v{T}, s10, v{T}
    v_and_b32 v{T+1}, 31, v0
    v_add_u32 v{T+1}, s11, v{T+1}
    v_and_b32 v{T+2}, 0xffff, v{T+1}
    v_mul_u32_u24 v{T+2}, 3277, v{T+2}
    v_lshrrev_b32 v{T+2}, 16, v{T+2}
    v_mul_u32_u24 v{T+3}, 80, v{T+1}
    s_lshl_b32 s14, s5, 5
    s_add_u32 s14, s14, s4
    s_mul_i32 s14, s14, 6720
    s_add_u32 s14, s14, {WS_KVP}
    s_waitcnt lgkmcnt(0)
    s_cmp_lt_u32 s3, 5
    s_cbranch_scc1 B_noz
    """)
    for i in range(16):
        a(f"v_mov_b32 v{52+i}, 0x3f803f80")
    a("s_nop 1")
    a.label("B_noz")
    for ks in range(4):
        c = "0" if ks == 0 else "v[20:35]"
        a(f"v_mfma_f32_32x32x16_bf16 v[20:35], v[{36+4*ks}:{39+4*ks}], v[{52+4*ks}:{55+4*ks}], {c}")
    a(f"""
    s_and_b32 s8, s3, 1
    s_lshr_b32 s9, s3, 1
    s_mul_i32 s8, s8, {32*1280}
    s_mul_i32 s9, s9, 40
    s_add_u32 s8, s8, s9
    s_add_u32 s81, s8, s79
    v_and_b32 v{T2+2}, 31, v0
    v_lshrrev_b32 v{T2+3}, 5, v0
    v_mul_u32_u24 v{OAD0}, 1280, v{T2+2}
    v_lshl_add_u32 v{OAD1}, v{T2+3}, 4, v{OAD0}
    v_lshlrev_b32 v{aKA}, 4, v0
    v_lshlrev_b32 v{aKB}, 3, v{T2+2}
    v_add_u32 v{aKB}, 1024, v{aKB}
    v_mul_u32_u24 v{aV0}, 320, v{T2+3}
    v_lshl_add_u32 v{aV0}, v{T2+2}, 4, v{aV0}
    v_add_u32 v{aV0}, 1280, v{aV0}
    v_add_u32 v{aV1}, 640, v{aV0}
    s_mov_b32 exec_lo, 0xfff00000
    s_mov_b32 exec_hi, 0xfff00000
    v_mov_b32 v{aV0}, 2560
    v_mov_b32 v{aV1}, 2560
    s_mov_b32 exec_lo, 0
    s_mov_b32 exec_hi, -1
    v_mov_b32 v{aKB}, 2560
    v_mov_b32 v{QB}, 0
    v_mov_b32 v{QB+1}, 0
    v_mov_b32 v{PQB}, 0
    v_mov_b32 v{PQB+1}, 0
    s_mov_b64 exec, -1
    """)
    for r in (aKA, aKB, aV0, aV1):
        a(f"v_add_u32 v{r}, {LKV}, v{r}")
    def rdKA(t): a(f"ds_read_b128 v[{KA}:{KA+3}], v{aKA} offset:{(t%16)*TILE}")
    def rdKB(t): a(f"ds_read_b64 v[{KB}:{KB+1}], v{aKB} offset:{(t%16)*TILE}")
    def rdV0(t): a(f"ds_read_b128 v[{V0}:{V0+3}], v{aV0} offset:{(t%16)*TILE}")
    def rdV1(t): a(f"ds_read_b128 v[{V1}:{V1+3}], v{aV1} offset:{(t%16)*TILE}")
    def qka(S): a(f"v_mfma_f32_32x32x16_bf16 v[{S}:{S+15}], v[{KA}:{KA+3}], v[{QA}:{QA+3}], 0")
    def qkb(S): a(f"v_mfma_f32_32x32x8_bf16 v[{S}:{S+15}], v[{KB}:{KB+1}], v[{QB}:{QB+1}], v[{S}:{S+15}]")
    def pv0(): a(f"v_mfma_f32_32x32x16_bf16 v[{OO}:{OO+15}], v[{V0}:{V0+3}], v[{PP}:{PP+3}], v[{OO}:{OO+15}]")
    def pv1(): a(f"v_mfma_f32_32x32x16_bf16 v[{OO}:{OO+15}], v[{V1}:{V1+3}], v[{PP+4}:{PP+7}], v[{OO}:{OO+15}]")
    def E(S, g, lo=0, hi=4, e64=False):
        for i in range(lo, hi): a(f"v_exp_f32{'_e64' if e64 else ''} v{S+4*g+i}, v{S+4*g+i}")
    def C(S, g):
        for i in range(2): a(f"v_cvt_pk_bf16_f32 v{PP+2*g+i}, v{S+4*g+2*i}, v{S+4*g+2*i+1}")
    rdKA(0); rdKB(0); rdV0(0)
    for q in range(4):
        a(f"v_add_u32 v{T+4}, {8*q}, v{T}")
        a(f"v_mul_u32_u24 v{T+5}, 3277, v{T+4}")
        a(f"v_lshrrev_b32 v{T+5}, 16, v{T+5}")
        lz, ld = a.newlabel("Lz"), a.newlabel("Ld")
        a("s_cmp_ge_u32 s3, 5")
        a(f"s_cbranch_scc1 {lz}")
        a(f"v_lshl_add_u32 v{T+6+q}, v{T+4}, 2, v{T+3}")
        a(f"v_cmp_eq_u32 vcc, v{T+5}, v{T+2}")
        a(f"s_branch {ld}")
        a.label(lz)
        a(f"v_add_u32 v{T+6+q}, 1, v{T+5}")
        a(f"v_mul_u32_u24 v{T+6+q}, 1600, v{T+6+q}")
        a(f"v_lshl_add_u32 v{T+6+q}, v{T+4}, 2, v{T+6+q}")
        a(f"v_cmp_gt_u32 vcc, 4, v{T+5}")
        a("s_and_b32 vcc_lo, vcc_lo, 1")
        a("s_and_b32 vcc_hi, vcc_hi, 1")
        a.label(ld)
        a("s_mov_b64 exec, vcc")
        a(f"buffer_store_dwordx4 v[{20+4*q}:{23+4*q}], v{T+6+q}, s[40:43], s14 offen sc1")
        a("s_mov_b64 exec, -1")
    a("s_waitcnt lgkmcnt(0)")
    qka(S0); qkb(S0)
    for i in range(16): a(f"v_mov_b32 v{OO+i}, 0")
    for i in range(4): a(f"v_mov_b32 v{PP+4+i}, 0")
    for i in range(4): a(f"v_mov_b32 v{V1+i}, 0")
    rowmax(a, S0, T2 + 2)
    set_m(a, T2 + 2, T2 + 3)
    qka(S0); qkb(S0)
    rdKA(1); rdKB(1)
    a("s_nop 10")
    a("s_waitcnt lgkmcnt(0)")
    a("s_mov_b32 s70, 0")
    a(".p2align 6")
    a.label("AT_loop")
    for n in range(16):
        Sc, Sn = (S0, S1) if n % 2 == 0 else (S1, S0)
        if n % 4 == 2:
            a("s_waitcnt vmcnt(0)\ns_barrier")
        qka(Sn); rdKA(n + 2); E(Sc, 0, 0, 3); a("s_waitcnt lgkmcnt(3)"); E(Sc, 0, 3, 4, True)
        pv1(); rdV1(n); C(Sc, 0); E(Sc, 1, 0, 3); a("s_waitcnt lgkmcnt(3)"); E(Sc, 1, 3, 4, True)
        qkb(Sn); rdKB(n + 2); C(Sc, 1); E(Sc, 2, 0, 3); a("s_waitcnt lgkmcnt(3)"); E(Sc, 2, 3, 4, True)
        pv0(); rdV0(n + 1); C(Sc, 2); E(Sc, 3, 0, 3); a("s_waitcnt lgkmcnt(3)"); E(Sc, 3, 3, 4, True); C(Sc, 3)
    a("s_add_u32 s70, s70, 1\ns_cmp_eq_u32 s70, 3\ns_cbranch_scc1 AT_apply")
    a("s_cmp_lt_u32 s70, 4\ns_cbranch_scc1 AT_loop")
    a("s_waitcnt lgkmcnt(0)")
    pv1()
    a("s_nop 15")
    a(f"v_cmp_nge_f32 vcc, {f32(2.0**40)}, v{OO+12}")
    a("s_nop 4")
    a("s_cbranch_vccnz AT_fallback")
    a.label("AT_ok")
    o_epilogue(a, OO, WS_OA, False)
    a("s_cmp_ge_u32 s3, 3")
    a("s_cbranch_scc1 TL_idle")
    srd(a, 44, 32, 2048 * 2560)
    a(f"s_mul_i32 s80, s4, {64*2560}")
    a("s_mul_i32 s8, s5, 160")
    a("s_add_u32 s80, s80, s8")
    a("s_add_u32 s80, s80, 1280")
    a("s_mov_b32 s83, 0")
    a.label("TL_job")
    ring_params(a, 0, 10, 10240, 0, 5, 8192)
    xyz_params(a, "s3", 0, LKV)
    call(a, "g_setup")
    a("s_barrier")
    call(a, "gemmR", "s[62:63]")
    call(a, "g_pack")
    a(f"""
    v_and_b32 v{T}, 31, v0
    v_mul_u32_u24 v{T}, 2560, v{T}
    v_lshrrev_b32 v{T+1}, 5, v0
    v_lshl_add_u32 v{T}, v{T+1}, 4, v{T}
    """)
    for blk in range(2):
        for half in range(2):
            d = ACC[0] + 8 * blk + 4 * half
            a(f"v_permlane32_swap_b32 v{d}, v{d+2}")
            a(f"v_permlane32_swap_b32 v{d+1}, v{d+3}")
    for half in range(2):
        if half == 1:
            a("s_cmp_eq_u32 s3, 2\ns_cbranch_scc1 TL_st")
        a(f"s_add_u32 s8, s80, s{76+half}")
        a(f"s_add_u32 s9, s8, {32*2560}")
        for blk in range(2):
            d = ACC[0] + 8 * blk + 4 * half
            a(f"buffer_store_dwordx4 v[{d}:{d+3}], v{T}, s[44:47], s{8+blk} offen")
    a.label("TL_st")
    a("s_sub_u32 s80, s80, 1280")
    a("s_add_u32 s83, s83, 1\ns_cmp_lt_u32 s83, 2\ns_cbranch_scc1 TL_job")
    stamp_end(a)
    a("s_endpgm")
    a.label("TL_idle")
    a("s_barrier\ns_waitcnt vmcnt(0)\ns_barrier")
    stamp_end(a)
    a("s_endpgm")
    a.label("AT_apply")
    AP = 84
    a(f"""
    v_and_b32 v{T2}, 31, v0
    v_lshrrev_b32 v{T2+1}, 2, v{T2}
    v_add_u32 v{T2+1}, 1, v{T2+1}
    v_and_b32 v{T2+1}, 2, v{T2+1}
    v_mul_u32_u24 v{T2+1}, 6, v{T2+1}
    v_xor_b32 v{T2+1}, v{T2}, v{T2+1}
    s_mov_b32 exec_lo, 0xfff00000
    s_mov_b32 exec_hi, 0xfff00000
    v_mov_b32 v{T2+1}, 20
    s_mov_b64 exec, -1
    v_mul_u32_u24 v{T2+1}, 40, v{T2+1}
    s_lshr_b32 s9, s3, 1
    s_mul_i32 s9, s9, 840
    s_add_u32 s9, s9, {LKVZ}
    v_add_u32 v{T2+1}, s9, v{T2+1}
    v_lshrrev_b32 v{T2}, 5, v0
    v_lshl_add_u32 v{T2}, v{T2}, 4, v{T2+1}
    ds_read2_b64 v[100:103], v{T2} offset0:0 offset1:1
    ds_read_b64 v[104:105], v{T2+1} offset:32
    s_waitcnt lgkmcnt(0)
    v_mfma_f32_32x32x16_bf16 v[{AP}:{AP+15}], v[100:103], v[{PQA}:{PQA+3}], 0
    v_mfma_f32_32x32x8_bf16 v[{AP}:{AP+15}], v[104:105], v[{PQB}:{PQB+1}], v[{AP}:{AP+15}]
    s_nop 15
    """)
    o_epilogue(a, AP, WS_OB, True)
    a("s_branch AT_loop")
    a.label("AT_fallback")
    a("s_mov_b32 exec_lo, 0")
    a(f"v_mov_b32 v{QB}, 0\nv_mov_b32 v{QB+1}, 0")
    a("s_mov_b32 exec_lo, -1")
    a(f"v_mov_b32 v{T2+2}, 0xff800000")
    a(f"s_mov_b32 s70, {WS_KV - LKV}")
    a.label("AT_fb1")
    a(f"buffer_load_dwordx4 v[{KA}:{KA+3}], v{aKA}, s[40:43], s70 offen sc1")
    a(f"buffer_load_dwordx2 v[{KB}:{KB+1}], v{aKB}, s[40:43], s70 offen sc1")
    a("s_waitcnt vmcnt(0)")
    qka(S0); qkb(S0)
    a("s_nop 15")
    rowmax(a, S0, T2 + 2, first=False)
    a(f"s_add_u32 s70, s70, {TILE}\ns_cmp_lt_u32 s70, {WS_KV-LKV+64*TILE}\ns_cbranch_scc1 AT_fb1")
    set_m(a, T2 + 2, T2 + 3)
    for i in range(16): a(f"v_mov_b32 v{OO+i}, 0")
    a(f"s_mov_b32 s70, {WS_KV - LKV}")
    a.label("AT_fb2")
    a(f"buffer_load_dwordx4 v[{KA}:{KA+3}], v{aKA}, s[40:43], s70 offen sc1")
    a(f"buffer_load_dwordx2 v[{KB}:{KB+1}], v{aKB}, s[40:43], s70 offen sc1")
    a(f"buffer_load_dwordx4 v[{V0}:{V0+3}], v{aV0}, s[40:43], s70 offen sc1")
    a(f"buffer_load_dwordx4 v[{V1}:{V1+3}], v{aV1}, s[40:43], s70 offen sc1")
    a("s_waitcnt vmcnt(0)")
    qka(S0); qkb(S0)
    a("s_nop 15")
    for g in range(4): E(S0, g)
    a("s_nop 0")
    for g in range(4): C(S0, g)
    a("s_nop 1")
    pv0(); pv1()
    a(f"s_add_u32 s70, s70, {TILE}\ns_cmp_lt_u32 s70, {WS_KV-LKV+64*TILE}\ns_cbranch_scc1 AT_fb2")
    a("s_nop 15")
    a("s_branch AT_ok")

    a.label("L_loader")
    a("s_setprio 2")
    a("s_sub_u32 s10, s3, 8")
    a("""
    s_and_b32 s8, s5, 1
    s_mul_i32 s8, s8, 5
    s_and_b32 s9, s5, 2
    s_add_u32 s8, s8, s9
    s_and_b32 s9, s4, 7
    s_add_u32 s11, s8, s9
    s_cmp_ge_u32 s11, 10
    s_cselect_b32 s8, 10, 0
    s_sub_u32 s11, s11, s8
    s_mov_b32 s12, 0
    s_mul_i32 s13, s4, 81920
    s_lshl_b32 s8, s10, 2
    s_lshl_b32 s9, s10, 3
    v_lshrrev_b32 v20, 4, v0
    v_add_u32 v20, s8, v20
    v_xor_b32 v20, v20, v0
    v_and_b32 v20, 7, v20
    v_lshlrev_b32 v20, 4, v20
    v_lshrrev_b32 v21, 3, v0
    v_add_u32 v21, s9, v21
    v_mul_u32_u24 v21, 1280, v21
    v_add_u32 v2, v20, v21
    s_mov_b32 s8, 1120
    s_mov_b32 s9, 3680
    """)
    for p in range(5):
        a(f"v_add_u32 v20, {64*p}, v0")
        a(f"v_mul_u32_u24 v{22+p}, 6554, v20")
        a(f"v_lshrrev_b32 v{22+p}, 16, v{22+p}")
        a(f"v_lshlrev_b32 v20, 4, v20")
        a(f"v_mad_u32_u24 v{3+p}, v{22+p}, s8, v20")
    a("v_lshlrev_b32 v18, 4, v0")
    a("s_mul_i32 s64, s5, 160")
    a(f"s_mul_i32 s65, s10, {32*1280}")
    a("s_add_u32 s65, s65, s64")
    a("s_sub_u32 s68, 1, s10")
    a("s_lshl_b32 s68, s68, 10")
    a("s_waitcnt lgkmcnt(0)")
    srd(a, 44, 16, XBYTES)
    srd(a, 48, 18, 640 * 1280)
    a("s_cmp_eq_u32 s5, 1")
    a("s_cselect_b32 s52, s22, s20")
    a("s_cselect_b32 s53, s23, s21")
    a("s_cmp_lt_u32 s5, 2")
    a("s_cselect_b32 s54, 25600, 0")
    a("s_mov_b32 s55, 0x20000")
    tr_init(a); tr(a)
    call(a, "L_issueA", "s[62:63]")
    call(a, "L_issueA", "s[62:63]")
    srd(a, 40, 36, WS_SIZE)
    srd(a, 72, 26, XBYTES)
    srd(a, 76, 28, 640 * 3840)
    a("s_mov_b32 s8, 2560\ns_mov_b32 s9, 1280")
    for p in range(5):
        a(f"v_mad_u32_u24 v{8+p}, v{22+p}, s8, v{3+p}")
        a(f"v_lshrrev_b32 v{22+p}, 1, v{22+p}")
        a(f"v_mad_u32_u24 v{13+p}, v{22+p}, s9, v{3+p}")
    a("v_lshlrev_b32 v19, 7, v0")
    a(f"s_mul_i32 s66, s10, {32*3840}")
    a("s_add_u32 s66, s66, s64")
    a("s_add_u32 s67, s66, 1280")
    a("s_mov_b32 s70, 0")
    a.label("L_a")
    a("s_waitcnt vmcnt(11)"); bar(a); call(a, "L_issueA", "s[62:63]")
    a("s_add_u32 s70, s70, 1\ns_cmp_lt_u32 s70, 8\ns_cbranch_scc1 L_a")
    a("s_waitcnt vmcnt(11)"); bar(a); call(a, "L_issueB", "s[62:63]")
    a("s_mov_b32 s70, 0")
    a.label("L_b")
    a("s_waitcnt vmcnt(19)"); bar(a); call(a, "L_issueB", "s[62:63]")
    a("s_add_u32 s70, s70, 1\ns_cmp_lt_u32 s70, 9\ns_cbranch_scc1 L_b")
    a("s_waitcnt vmcnt(19)"); bar(a)
    get_nonce(a, "v30", "v31")
    a("s_cmp_eq_u32 s10, 1")
    a("s_cbranch_scc1 L1_path")
    a(f"s_mov_b32 s8, {FL_KV}")
    poll(a, "s8", 64)
    a("s_lshr_b32 s60, s2, 3\ns_and_b32 s60, s60, 15")
    a(f"s_mov_b32 s61, {LKV}")
    bar(a)
    for i in range(3): call(a, "L_issueKV", "s[62:63]")
    a("s_waitcnt vmcnt(22)"); bar(a)
    a("s_mov_b32 s70, 1")
    a.label("L0_kv")
    a("s_waitcnt vmcnt(11)"); bar(a); call(a, "L_issueKV", "s[62:63]")
    a("s_add_u32 s70, s70, 1\ns_cmp_lt_u32 s70, 14\ns_cbranch_scc1 L0_kv")
    a("s_lshl_b32 s56, s4, 3\ns_add_u32 s57, s56, s5\ns_lshl_b32 s57, s57, 7\ns_lshl_b32 s56, s56, 7")
    a(f"s_add_u32 s8, s57, {FL_OB}")
    publish(a, "s8", "v30", "v31")
    a("s_waitcnt vmcnt(12)"); bar(a)
    a("s_waitcnt vmcnt(0)"); bar(a)
    a("s_branch L_tail")
    a.label("L1_path")
    a("s_waitcnt vmcnt(0)"); bar(a)
    bar(a)
    srd(a, 72, 30, 640 * 1280)
    a("s_lshl_b32 s56, s5, 5\ns_add_u32 s57, s56, s4\ns_lshl_b32 s57, s57, 7\ns_lshl_b32 s56, s56, 7")
    bar(a)
    a(f"s_add_u32 s8, s57, {FL_P}")
    publish(a, "s8", "v30", "v31")
    def wo_pref(n):
        lp = a.newlabel("Lwo")
        a(f"s_mov_b32 s70, 0")
        a.label(lp)
        call(a, "L_issueWo", "s[62:63]")
        a(f"s_add_u32 s70, s70, 1\ns_cmp_lt_u32 s70, {n}\ns_cbranch_scc1 {lp}")
    a("s_mov_b32 s12, 0")
    wo_pref(3); bar(a)
    wo_pref(3); bar(a)
    bar(a)
    a(f"s_add_u32 s8, s56, {FL_P}")
    poll(a, "s8", 32)
    a(f"""
    v_lshrrev_b32 v30, 4, v0
    v_mul_u32_u24 v30, {8*6720}, v30
    v_and_b32 v31, 15, v0
    v_lshl_add_u32 v30, v31, 4, v30
    s_mul_i32 s8, s5, {32*6720}
    s_mul_i32 s9, s4, 224
    s_add_u32 s8, s8, s9
    s_add_u32 s8, s8, {WS_KVP}
    """)
    for i in range(8):
        a(f"buffer_load_dwordx4 v[{44+4*i}:{47+4*i}], v30, s[40:43], s8 offen sc1")
        a("s_add_u32 s8, s8, 6720")
    a("s_waitcnt vmcnt(0)")
    for half in (4, 2, 1):
        for i in range(half):
            for j in range(4):
                a(f"v_add_f32 v{44+4*i+j}, v{44+4*i+j}, v{44+4*(i+half)+j}")
    for op in ("v_permlane32_swap_b32", "v_permlane16_swap_b32"):
        for j in range(4): a(f"v_mov_b32 v{48+j}, v{44+j}")
        a("s_nop 1")
        for j in range(4): a(f"{op} v{44+j}, v{48+j}")
        a("s_nop 1")
        for j in range(4): a(f"v_add_f32 v{44+j}, v{44+j}, v{48+j}")
    a(f"""
    v_cvt_pk_bf16_f32 v44, v44, v45
    v_cvt_pk_bf16_f32 v45, v46, v47
    v_lshlrev_b32 v31, 3, v31
    s_lshl_b32 s8, s5, 12
    s_mul_i32 s9, s4, 112
    s_add_u32 s8, s8, s9
    s_add_u32 s8, s8, {WS_KVZ}
    s_cmp_lt_u32 s4, 30
    s_cselect_b32 exec_lo, 0x3fff, 0
    s_mov_b32 exec_hi, 0
    buffer_store_dwordx2 v[44:45], v31, s[40:43], s8 offen sc1
    s_mov_b64 exec, -1
    """)
    bar(a)
    a("s_waitcnt vmcnt(0)")
    a(f"s_add_u32 s8, s57, {FL_R}")
    publish(a, "s8", "v30", "v31")
    wo_pref(2); bar(a)
    wo_pref(2); bar(a)
    bar(a); bar(a)
    a(f"s_add_u32 s8, s56, {FL_R}")
    poll(a, "s8", 30)
    a(f"s_lshl_b32 s8, s5, 12\ns_add_u32 s8, s8, {WS_KVZ}\ns_mov_b32 m0, {LKVZ}\ns_nop 0")
    for i in range(4):
        a(f"buffer_load_dwordx4 v18, s[40:43], s8 offen offset:{1024*i} sc1 lds")
    bar(a)
    a("s_waitcnt vmcnt(0)")
    for i in range(5): bar(a)
    a("s_lshl_b32 s56, s4, 3\ns_add_u32 s57, s56, s5\ns_lshl_b32 s57, s57, 7\ns_lshl_b32 s56, s56, 7")
    a.label("L_tail")
    srd(a, 48, 24, 640 * 1280)
    a(f"s_add_u32 s8, s56, {FL_OB}")
    poll(a, "s8", 8)
    a(f"s_add_u32 s13, s13, {WS_OB}")
    a(f"s_mov_b32 s60, {LKV}")
    a("s_mov_b32 s12, 0")
    a("s_mov_b32 s61, s11")
    bar(a)
    for i in range(4): call(a, "L_issueX", "s[62:63]")
    a("s_waitcnt vmcnt(12)"); bar(a)
    call(a, "L_issueX", "s[62:63]")
    a("s_waitcnt vmcnt(12)"); bar(a)
    a("s_cmp_eq_u32 s10, 1\ns_cbranch_scc1 L_t1")
    a(f"s_add_u32 s8, s57, {FL_OA}")
    publish(a, "s8", "v30", "v31")
    a.label("L_t1")
    waits = {2: 4+4+9, 3: 4+9+9, 4: 9+9+9, 5: 5+9+9+9}
    for t in range(1, 6):
        call(a, "L_issueX", "s[62:63]"); call(a, "L_issueWA", "s[62:63]")
        nxt = t + 1
        w = {2: 17, 3: 22, 4: 27, 5: 32, 6: 32}[nxt]
        a(f"s_waitcnt vmcnt({w})"); bar(a)
    for t, w in ((6, 28), (7, 24), (8, 20)):
        call(a, "L_issueWA", "s[62:63]")
        a(f"s_waitcnt vmcnt({w})"); bar(a)
    call(a, "L_issueWA", "s[62:63]")
    a(f"s_add_u32 s8, s56, {FL_OA}")
    poll(a, "s8", 8)
    a(f"s_sub_u32 s13, s13, {WS_OB - WS_OA}")
    for i in range(4): call(a, "L_issueX", "s[62:63]")
    a("s_waitcnt vmcnt(12)"); bar(a)
    call(a, "L_issueX", "s[62:63]"); call(a, "L_issueWA", "s[62:63]")
    a("s_waitcnt vmcnt(17)"); bar(a)
    for t, w in ((11, 17), (12, 17), (13, 17), (14, 12), (15, 12)):
        call(a, "L_issueX", "s[62:63]")
        a(f"s_waitcnt vmcnt({w})"); bar(a)
    for w in (8, 4, 0):
        a(f"s_waitcnt vmcnt({w})"); bar(a)
    tr_dump(a)
    a.label("L_end")
    a("s_endpgm")
    a.label("L_issueA")
    issue_x(a, 44, "s13", "s12")
    issue_w(a, 48, 3, 1280, "s65", "s12", IMG_W)
    a("s_mul_i32 s14, s11, 2560")
    a("s_lshl_b32 s15, s10, 11")
    a("s_add_u32 s14, s14, s15")
    a("s_add_u32 s15, s15, s12")
    a(f"s_add_u32 m0, s15, {IMG_KV}")
    a("s_nop 0")
    dma(a, "v18", 52, "s14")
    a("s_add_u32 m0, m0, s68")
    a("s_add_u32 s14, s14, s68")
    dma(a, "v18", 52, "s14")
    wrap_inc(a, "s11", 1, 10); wrap_inc(a, "s12", SLOT, 3 * SLOT)
    a("s_setpc_b64 s[62:63]")
    a.label("L_issueB")
    issue_x(a, 72, "s13", "s12")
    issue_w(a, 76, 8, 3840, "s66", "s12", IMG_W)
    issue_w(a, 76, 13, 3840, "s67", "s12", IMG_KV, periods=2, rows_per_period=16)
    wrap_inc(a, "s11", 1, 10); wrap_inc(a, "s12", SLOT, 3 * SLOT)
    a("s_setpc_b64 s[62:63]")
    a.label("L_issueKV")
    a(f"s_mul_i32 s14, s60, {CH}")
    a(f"s_add_u32 s14, s14, {WS_KV}")
    a("s_mov_b32 m0, s61")
    a("s_nop 0")
    for i in range(11):
        if i % 4 == 0 and i > 0:
            a("s_add_u32 m0, m0, 4096")
            a("s_add_u32 s14, s14, 4096")
        a(f"buffer_load_dwordx4 v18, s[40:43], s14 offen offset:{1024*(i%4)} sc1 lds")
    a("s_add_u32 s60, s60, 1\ns_and_b32 s60, s60, 15")
    wrap_inc(a, "s61", CH, LKV + 4 * CH, LKV)
    a("s_setpc_b64 s[62:63]")
    a.label("L_issueWo")
    a(f"s_mul_i32 s14, s11, {64*1280}")
    a("s_add_u32 s14, s14, s64")
    a("s_mov_b32 m0, s12")
    a("s_nop 0")
    for per in range(2):
        for p in range(5):
            dma(a, f"v{3+p}", 72, "s14")
            if not (per == 1 and p == 4):
                a("s_add_u32 m0, m0, 1024")
                a(f"s_add_u32 s14, s14, {32*1280}" if p == 4 else "s_nop 0")
    wrap_inc(a, "s11", 1, 10)
    a("s_add_u32 s12, s12, 10240")
    a("s_setpc_b64 s[62:63]")
    a.label("L_issueX")
    issue_x(a, 40, "s13", "s60", "sc1")
    wrap_inc(a, "s11", 1, 10); wrap_inc(a, "s60", 8192, LKV + 5 * 8192, LKV)
    a("s_setpc_b64 s[62:63]")
    a.label("L_issueWA")
    issue_w(a, 48, 3, 1280, "s65", "s12", 0, kc="s61")
    wrap_inc(a, "s61", 1, 10)
    a("s_add_u32 s12, s12, 10240")
    a("s_setpc_b64 s[62:63]")
    gemm_addr_setup_sub(a); phi_sub(a); pack_sub(a); tile_to_lds_sub(a)
    gemm_sub(a, "gemmR", "R")
    gemm_sub(a, "gemmC", "C")
    a.label("L_codeend")

def main(out):
    a = Asm()
    a.lines.append(f"; @launch grid=(256,1,1) block=(640,1,1) lds={LDS_TOTAL}")
    a('.amdgcn_target "amdgcn-amd-amdhsa--gfx950"')
    a(".text")
    gen(a)
    a('.section .rodata,"a"')
    open(out, "w").write(a.text() + descriptor(NAME + "_kernel", NV, 98))

if __name__ == "__main__":
    main(sys.argv[1] if len(sys.argv) > 1 else f"cdna_kernels/{NAME}.s")
```

```python
import sys, struct, os
from asmlib import *

NAME = "concat_heads__grouped_kv_mqa__linear_attn_block__prompt"
STAMP = bool(os.environ.get("STAMP"))
OPT = dict(kv.split("=") for kv in os.environ.get("OPT", "").split(",") if kv)
PF = int(OPT.get("pf", 1))
PFNT = "nt" if int(OPT.get("pfnt", 0)) else ""
DNT = "nt" if int(OPT.get("dnt", 0)) else ""
ONT = OPT.get("ont", "")
WS_OA, WS_OB, WS_KV, WS_KVP, WS_KVZ = 0x0, 0x280000, 0x500000, 0x540000, 0x700000
FL_KV, FL_P, FL_R, FL_OB, FL_OA = 0x718000, 0x720000, 0x728000, 0x730000, 0x738000
WS_ST = 0x800000
WS_SIZE = 0x900000
TILE = 2816
CH = 4 * TILE
XBYTES = 2048 * 1280
SLOT = 38912
HS = SLOT // 2
IMG_W, IMG_KV = 8192, 18432
LKV = 3 * SLOT
LMISC = 163840 - 16
LKVZ = 112640
LMX = LKV
LWKV = LKV + 20480
LFR, LPQ, LPART = SLOT, SLOT + 20480, 0
LX = 102400
LDS_TOTAL = 163840
SPIN_MAX = 1 << 17
def f32(x): return "0x%08x" % struct.unpack("<I", struct.pack("<f", x))[0]
LOG2E = 1.4426950408889634
CSCALE = LOG2E / (20 ** 0.5)

ACC = [4, 20]
FR = [36, 48, 60, 72]
AW, AX = 84, 92
T = 96
QA, QB, PQA, PQB = 108, 112, 114, 118
OAD0, OAD1 = 120, 121
aKA, aKB, aV0, aV1 = 122, 123, 124, 125
PWR = 126
JA, JB = 130, 131
QF0, QF1 = 132, 133
AP0, AP1 = 134, 135
tW1, tW2, tX1, tX2, tO = 136, 137, 138, 139, 140
TL0, TL1 = 141, 142
NV = 160
LQ = 2 * SLOT
MASKS = [92, 94, 98, 100]
S0, S1, PP, OO, KA, KB, V0, V1 = 4, 20, 36, 144, 60, 64, 68, 72
T2 = 80
POS = [[0, 1, 3, 4, 2], [1, 2, 0, 3, 4], [2, 3, 4, 0, 1], [3, 4, 0, 2, 1]]
INV = [[POS[r].index(p) for p in range(5)] for r in range(4)]
def pack3(tab):
    x = 0
    for r in range(4):
        for j in range(5): x |= tab[r][j] << (3 * (5 * r + j))
    return x

def tr(a):
    if not STAMP: return
    a("""
    s_waitcnt lgkmcnt(0)
    s_sub_u32 s90, s88, s84
    s_memtime s[88:89]
    s_mov_b32 m0, s85
    s_add_u32 s85, s85, 1
    v_writelane_b32 v40, s90, m0
    """)
def tr_init(a):
    if STAMP: a("s_mov_b32 s85, 0\nv_mov_b32 v40, 0\ns_mov_b32 s88, s84")
def tr_dump(a):
    if not STAMP: return
    tr(a)
    a(f"""
    s_lshl_b32 s8, s2, 1
    s_add_u32 s8, s8, s10
    s_lshl_b32 s8, s8, 8
    s_add_u32 s8, s8, {WS_ST + 0x40000}
    v_lshlrev_b32 v8, 2, v0
    buffer_store_dword v40, v8, s[40:43], s8 offen
    """)
def stamp_end(a):
    if not STAMP: return
    a(f"""
    s_memtime s[12:13]
    s_waitcnt vmcnt(0)
    s_memtime s[88:89]
    s_memrealtime s[90:91]
    s_waitcnt lgkmcnt(0)
    s_mov_b64 exec, -1
    s_sub_u32 s88, s88, s84
    s_sub_u32 s12, s12, s84
    v_mov_b32 v4, s86
    v_mov_b32 v5, s90
    v_mov_b32 v6, s88
    v_mov_b32 v7, s12
    s_lshl_b32 s8, s2, 4
    s_add_u32 s8, s8, s3
    s_lshl_b32 s8, s8, 4
    s_add_u32 s8, s8, {WS_ST}
    v_mov_b32 v8, 0
    buffer_store_dwordx4 v[4:7], v8, s[40:43], s8 offen
    """)
def gs(a, idx, t0="v106", t1="v107"):
    if not STAMP: return
    a(f"""
    s_memrealtime s[14:15]
    s_waitcnt lgkmcnt(0)
    v_mov_b32 {t0}, s14
    s_lshl_b32 s14, s2, 6
    s_add_u32 s14, s14, {WS_ST + 0x80000 + 4*idx}
    v_mov_b32 {t1}, 0
    buffer_store_dword {t0}, {t1}, s[40:43], s14 offen
    """)
def bar(a):
    a("s_barrier"); tr(a)

def dma(a, voff, srdi, soff, extra=""):
    a(f"buffer_load_dwordx4 {voff}, s[{srdi}:{srdi+3}], {soff} offen {extra} lds")

def issue_x(a, srdi, sbase, lds_sgpr):
    a(f"s_lshl_b32 s14, s11, 7")
    a(f"s_add_u32 s14, s14, {sbase}")
    a(f"s_lshl_b32 s15, s10, 10")
    a(f"s_add_u32 m0, s15, {lds_sgpr}")
    a("s_nop 0")
    for jj in range(4):
        dma(a, "v2", srdi, "s14", DNT)
        if jj < 3:
            a("s_add_u32 m0, m0, 2048")
            a("s_add_u32 s14, s14, 20480")

def issue_w(a, srdi, voffs, ld, sbase, lds_sgpr, ldsoff, periods=1, rows_per_period=32):
    a(f"s_mul_i32 s14, s11, {64*ld}")
    a(f"s_add_u32 s14, s14, {sbase}")
    a(f"s_mul_i32 s15, s10, {5120*periods}")
    a(f"s_add_u32 s15, s15, {lds_sgpr}")
    a(f"s_add_u32 m0, s15, {ldsoff}")
    a("s_nop 0")
    for per in range(periods):
        for p in range(5):
            dma(a, f"v{voffs+p}", srdi, "s14", DNT)
            if not (per == periods - 1 and p == 4):
                a("s_add_u32 m0, m0, 1024")
                a(f"s_add_u32 s14, s14, {rows_per_period*ld}" if p == 4 else "s_nop 0")

def wrap_inc(a, reg, step, limit, base=0):
    a(f"s_add_u32 {reg}, {reg}, {step}")
    a(f"s_cmp_eq_u32 {reg}, {limit}")
    a(f"s_cselect_b32 {reg}, {base}, {reg}")

def poll(a, soff, nlanes, tmp="v30", addr="v19"):
    lp, dn = a.newlabel("Lpoll"), a.newlabel("Lpd")
    if nlanes < 64:
        m = (1 << nlanes) - 1
        a(f"s_mov_b32 exec_lo, {m & 0xffffffff:#x}")
        a(f"s_mov_b32 exec_hi, {m >> 32:#x}")
    a("s_mov_b32 s9, 0")
    a.label(lp)
    a(f"buffer_load_dword {tmp}, {addr}, s[40:43], {soff} offen sc1")
    a("s_add_u32 s9, s9, 1")
    a("s_waitcnt vmcnt(0)")
    a(f"v_cmp_ne_u32 vcc, s96, {tmp}")
    a(f"s_cmp_gt_u32 s9, {SPIN_MAX}")
    a(f"s_cbranch_scc1 {dn}")
    a(f"s_cbranch_vccz {dn}")
    a("s_sleep 1")
    a(f"s_branch {lp}")
    a.label(dn)
    if nlanes < 64:
        a("s_mov_b64 exec, -1")

def publish(a, soff, tmp, zero):
    a(f"v_mov_b32 {tmp}, s96")
    a(f"v_mov_b32 {zero}, 0")
    a("s_mov_b64 exec, 1")
    a(f"buffer_store_dword {tmp}, {zero}, s[40:43], {soff} offen sc1")
    a("s_mov_b64 exec, -1")

def get_nonce(a, tmp, addr):
    a(f"v_mov_b32 {addr}, {LMISC}")
    a(f"ds_read_b32 {tmp}, {addr}")
    a("s_waitcnt lgkmcnt(0)")
    a(f"v_readfirstlane_b32 s96, {tmp}")

def gemm_setup_sub(a):
    a.label("g_setupB")
    a(f"""
    s_lshl_b32 s8, s78, 6
    s_add_u32 s8, s8, {IMG_KV}
    s_add_u32 s9, s76, {IMG_W}
    s_sub_u32 s64, s77, s76
    s_cmp_lt_u32 s3, 3
    s_cselect_b32 s60, s9, s8
    s_cselect_b32 s64, s64, 32
    s_mov_b32 s61, 320
    s_cselect_b32 s61, 160, s61
    s_mov_b32 s65, 0
    """)
    a.label("g_setup")
    a(f"""
    v_lshrrev_b32 v{T}, 5, v0
    v_lshlrev_b32 v{T+1}, 3, v{T}
    v_bfe_u32 v{T+2}, v0, 2, 2
    v_add_u32 v{T+1}, v{T+1}, v{T+2}
    v_mul_u32_u24 v{T+1}, s61, v{T+1}
    v_bfe_u32 v{T+2}, v0, 4, 1
    v_mul_u32_u24 v{T+2}, s64, v{T+2}
    v_and_b32 v{T+3}, 3, v0
    v_lshlrev_b32 v{T+3}, 3, v{T+3}
    v_add3_u32 v{T+1}, v{T+1}, v{T+2}, v{T+3}
    v_add_u32 v{AW}, s60, v{T+1}
    s_lshl_b32 s66, s61, 2
    s_mul_i32 s67, s61, 12
    """)
    for j in range(1, 8):
        a(f"v_add_u32 v{AW+j}, {'s66' if j & 1 else 's67'}, v{AW+j-1}")
    a(f"""
    v_and_b32 v{T+1}, 31, v0
    v_bfe_u32 v{T+2}, v0, 1, 3
    v_xor_b32 v{T+2}, v{T+2}, v{T}
    v_lshlrev_b32 v{T+2}, 4, v{T+2}
    v_lshl_or_b32 v{T+1}, v{T+1}, 7, v{T+2}
    v_add_u32 v{AX}, s65, v{T+1}
    """)
    for st in range(1, 4):
        a(f"v_xor_b32 v{AX+st}, {32*st}, v{AX}")
    a("s_setpc_b64 s[58:59]")

def zero_acc(a):
    for i in range(0, 32, 2):
        a(f"v_pk_mov_b32 v[{ACC[0]+i}:{ACC[0]+i+1}], 0, 0") if False else None
    for i in range(32): a(f"v_mov_b32 v{ACC[0]+i}, 0")

def gemm_sub(a, name, orient):
    def rd(st, i):
        f = FR[st]
        if i < 2: a(f"ds_read_b64_tr_b16 v[{f+2*i}:{f+2*i+1}], v{AW+2*st+i}")
        else: a(f"ds_read_b128 v[{f+4*(i-1)}:{f+4*(i-1)+3}], v{AX+st} offset:{4096*(i-2)}")
    def mf(st, blk):
        f = FR[st]
        w, x, ac = v(f, 4), v(f + 4 + 4 * blk, 4), v(ACC[blk], 16)
        a(f"v_mfma_f32_32x32x16_bf16 {ac}, {w}, {x}, {ac}" if orient == "R" else f"v_mfma_f32_32x32x16_bf16 {ac}, {x}, {w}, {ac}")
    a(".p2align 3")
    a.label(name)
    for st in (0, 1, 2):
        for i in range(4): rd(st, i)
    a("s_mov_b32 s56, 0")
    a(f"s_branch {name}_mid")
    a.label(name + "_loop")
    a("s_waitcnt lgkmcnt(0)")
    a("s_barrier")
    seq = [(st, i) for st in (0, 1, 2) for i in range(4)]
    for n, (st, blk) in enumerate(((2, 0), (2, 1), (3, 0), (3, 1))):
        mf(st, blk)
        for x in seq[3 * n:3 * n + 3]: rd(*x)
    a.label(name + "_mid")
    a("s_add_u32 s68, s68, 1\ns_cmp_eq_u32 s68, s69\ns_cselect_b32 s8, s74, s70\ns_cselect_b32 s68, 0, s68")
    a("s_add_u32 s56, s56, 1")
    a("s_waitcnt lgkmcnt(8)")
    mf(0, 0); rd(3, 0); rd(3, 1)
    a("s_add_u32 s71, s71, 1\ns_cmp_eq_u32 s71, s72")
    mf(0, 1); rd(3, 2); rd(3, 3)
    a("s_cselect_b32 s9, s75, s73\ns_cselect_b32 s71, 0, s71")
    a("s_cmp_lt_u32 s56, 10")
    a("s_waitcnt lgkmcnt(8)")
    mf(1, 0)
    for j in range(6): a(f"v_add_u32 v{AW+j}, s8, v{AW+j}")
    mf(1, 1)
    for j in range(6, 8): a(f"v_add_u32 v{AW+j}, s8, v{AW+j}")
    for j in range(4): a(f"v_add_u32 v{AX+j}, s9, v{AX+j}")
    a(f"s_cbranch_scc1 {name}_loop")
    a("s_waitcnt lgkmcnt(4)")
    mf(2, 0); mf(2, 1)
    a("s_waitcnt lgkmcnt(0)")
    mf(3, 0); mf(3, 1)
    a("s_nop 10")
    a("s_setpc_b64 s[62:63]")

def ringW(a, idx, n, st): a(f"s_mov_b32 s68, {idx}\ns_mov_b32 s69, {n}\ns_mov_b32 s70, {st}\ns_mov_b32 s74, {st - n*st}")
def ringX(a, idx, n, st): a(f"s_mov_b32 s71, {idx}\ns_mov_b32 s72, {n}\ns_mov_b32 s73, {st}\ns_mov_b32 s75, {st - n*st}")

def phi_sub(a):
    a.label("g_phi")
    a(f"s_mov_b32 s8, {f32(LOG2E)}")
    a(f"s_mov_b32 s9, {f32(1e-6)}")
    for n, r0 in enumerate((4, 8, 20, 24, 12, 16, 28, 32)):
        if n == 4:
            a("s_cmp_eq_u32 s3, 2\ns_cbranch_scc1 g_pack")
        for i in (0, 2): a(f"v_pk_mul_f32 v[{T+i}:{T+i+1}], v[{r0+i}:{r0+i+1}], s[8:9] op_sel_hi:[1,0]")
        for i in range(4): a(f"v_exp_f32_e64 v{T+i}, v{T+i} clamp")
        for i in range(4): a(f"v_max_f32 v{r0+i}, s9, v{r0+i}")
        for i in (0, 2): a(f"v_pk_add_f32 v[{r0+i}:{r0+i+1}], v[{r0+i}:{r0+i+1}], v[{T+i}:{T+i+1}]")
    a.label("g_pack")
    a("s_mov_b64 exec, -1")
    for i in range(16):
        a(f"v_cvt_pk_bf16_f32 v{ACC[0]+i}, v{ACC[0]+2*i}, v{ACC[0]+2*i+1}")
    a("s_setpc_b64 s[58:59]")

def tile_to_lds_sub(a):
    a.label("g_t2l")
    for half in range(2):
        if half == 1:
            a("s_cmp_eq_u32 s3, 2\ns_cbranch_scc1 g_t2l_end")
        for blk in range(2):
            for q in range(2):
                d = ACC[0] + 8 * blk + 4 * half + 2 * q
                a(f"ds_write_b64 v{TL0+half}, v[{d}:{d+1}] offset:{5120*blk + 16*q}")
    a.label("g_t2l_end")
    a("s_setpc_b64 s[58:59]")

def read_qfrag(a, qa, qb):
    a(f"ds_read2_b64 v[{qa}:{qa+3}], v{QF1} offset0:0 offset1:1")
    a(f"ds_read_b64 v[{qb}:{qb+1}], v{QF0} offset:32")

def o_epilogue(a, O, wsoff, eps):
    if eps:
        a(f"v_add_f32 v{O+12}, {f32(1e-6)}, v{O+12}")
    a(f"v_rcp_f32 v{O+12}, v{O+12}")
    a(f"s_add_u32 s8, s81, {wsoff}")
    a(f"s_add_u32 s9, s82, {wsoff}")
    for i in range(0, 12, 2):
        a(f"v_pk_mul_f32 v[{O+i}:{O+i+1}], v[{O+i}:{O+i+1}], v[{O+12}:{O+13}] op_sel_hi:[1,0]")
    for i in range(6):
        a(f"v_cvt_pk_bf16_f32 v{O+i}, v{O+2*i}, v{O+2*i+1}")
    a(f"buffer_store_dwordx4 v[{O}:{O+3}], v{OAD1}, s[40:43], s8 offen sc1")
    a("s_mov_b32 exec_hi, 0")
    a(f"buffer_store_dwordx2 v[{O+4}:{O+5}], v{OAD0}, s[40:43], s9 offen sc1")
    a("s_mov_b32 exec_hi, -1")

def rowmax(a, S, dst, first=True):
    regs = [f"v{S+i}" for i in range(16)]
    if first:
        a(f"v_max3_f32 v{dst}, {regs[0]}, {regs[1]}, {regs[2]}")
        rest = regs[3:]
    else:
        rest = regs
    while len(rest) >= 2:
        a(f"v_max3_f32 v{dst}, v{dst}, {rest[0]}, {rest[1]}")
        rest = rest[2:]
    if rest:
        a(f"v_max_f32 v{dst}, v{dst}, {rest[0]}")

def set_m(a, m, tmp, keep=None):
    a(f"""
    v_mov_b32 v{tmp}, v{m}
    s_nop 1
    v_permlane32_swap_b32 v{m}, v{tmp}
    s_nop 1
    v_max_f32 v{keep if keep else m}, v{m}, v{tmp}
    s_mov_b32 exec_lo, 0
    v_sub_f32 v{m}, 0, v{keep if keep else m}
    v_and_b32 v{tmp}, 0xffff0000, v{m}
    v_sub_f32 v{m}, v{m}, v{tmp}
    v_lshrrev_b32 v{QB}, 16, v{tmp}
    v_and_b32 v{tmp}, 0xffff0000, v{m}
    v_sub_f32 v{m}, v{m}, v{tmp}
    v_or_b32 v{QB}, v{QB}, v{tmp}
    v_lshrrev_b32 v{QB+1}, 16, v{m}
    s_mov_b32 exec_lo, -1
    """)

def pf_rows(a, vd, ld, s0, s1):
    a(f"""
    v_mul_u32_u24 v{vd}, 52429, v0
    v_lshrrev_b32 v{vd}, 18, v{vd}
    v_mul_u32_u24 v{vd+1}, 5, v{vd}
    v_sub_u32 v{vd+1}, v0, v{vd+1}
    v_mul_u32_u24 v{vd}, {ld}, v{vd}
    v_lshl_add_u32 v{vd}, v{vd+1}, 7, v{vd}
    s_mul_i32 {s0}, s7, {20*ld}
    s_and_b32 s8, s6, 1
    s_mul_i32 s8, s8, 640
    s_add_u32 {s0}, {s0}, s8
    s_add_u32 {s1}, {s0}, {10*ld}
    """)
def pf_x(a, srdi, vaddr, vd):
    a(f"""
    s_lshr_b32 s8, s6, 1
    s_mul_i32 s8, s8, {512*1280}
    s_mul_i32 s9, s7, 20480
    s_add_u32 s8, s8, s9
    s_add_u32 s9, s8, 8192
    buffer_load_dword v{vd}, {vaddr}, s[{srdi}:{srdi+3}], s8 offen {PFNT}
    buffer_load_dword v{vd+1}, {vaddr}, s[{srdi}:{srdi+3}], s9 offen {PFNT}
    s_add_u32 s9, s8, 16384
    s_mov_b32 exec_hi, 0
    buffer_load_dword v{vd+2}, {vaddr}, s[{srdi}:{srdi+3}], s9 offen {PFNT}
    s_mov_b32 exec_hi, -1
    """)

def call(a, lbl, link="s[58:59]"):
    a(f"s_call_b64 {link}, {lbl}")

def precompute(a):
    a(f"""
    v_and_b32 v1, 31, v0
    v_lshrrev_b32 v2, 5, v0
    v_lshrrev_b32 v3, 2, v1
    v_add_u32 v3, 1, v3
    v_and_b32 v3, 2, v3
    v_mul_u32_u24 v3, 6, v3
    v_xor_b32 v3, v1, v3
    v_lshlrev_b32 v{OAD0}, 3, v0
    v_lshlrev_b32 v{OAD1}, 4, v0
    s_and_b32 s38, s3, 1
    s_lshr_b32 s39, s3, 1
    s_mov_b32 s76, 0
    s_mov_b32 s77, 128
    s_cmp_eq_u32 s3, 1
    s_cselect_b32 s76, 32, s76
    s_cselect_b32 s77, 64, s77
    s_cmp_eq_u32 s3, 2
    s_cselect_b32 s76, 96, s76
    s_cselect_b32 s77, 96, s77
    """)
    a("""
    s_sub_u32 s78, s3, 3
    s_lshl_b32 s78, s78, 2
    s_lshr_b32 s78, 0x20431, s78
    s_and_b32 s78, s78, 15
    """)
    call(a, "g_setupB")
    a(f"""
    v_add_u32 v{aKA}, {LKV}, v{OAD1}
    v_lshlrev_b32 v{aKB}, 3, v1
    v_add_u32 v{aKB}, {LKV+1024}, v{aKB}
    v_mul_u32_u24 v{aV0}, 320, v2
    v_lshl_add_u32 v{aV0}, v1, 4, v{aV0}
    v_add_u32 v{aV0}, {LKV+1280}, v{aV0}
    v_add_u32 v{aV1}, 640, v{aV0}
    v_mov_b32 v{AP0}, v3
    s_mov_b32 exec_lo, 0xfff00000
    s_mov_b32 exec_hi, 0xfff00000
    v_mov_b32 v{aV0}, {LKV+2560}
    v_mov_b32 v{aV1}, {LKV+2560}
    v_mov_b32 v{AP0}, 20
    s_mov_b32 exec_lo, 0
    s_mov_b32 exec_hi, -1
    v_mov_b32 v{aKB}, {LKV+2560}
    s_mov_b64 exec, -1
    s_mul_i32 s8, s39, 840
    s_add_u32 s8, s8, {LKVZ}
    v_mul_u32_u24 v{AP0}, 40, v{AP0}
    v_add_u32 v{AP0}, s8, v{AP0}
    v_lshl_add_u32 v{AP1}, v2, 4, v{AP0}
    s_lshl_b32 s10, s4, 3
    s_add_u32 s10, s10, s5
    s_lshl_b32 s10, s10, 1
    s_add_u32 s10, s10, s38
    s_mul_i32 s10, s10, 5120
    s_lshl_b32 s81, s39, 10
    s_add_u32 s81, s81, s10
    s_lshl_b32 s82, s39, 8
    s_add_u32 s82, s82, s10
    s_add_u32 s82, s82, 4096
    """)
    a(f"""
    s_mul_i32 s8, s38, 5120
    s_mul_i32 s9, s39, 40
    s_add_u32 s8, s8, s9
    s_add_u32 s8, s8, {LQ}
    v_mul_u32_u24 v{T}, 160, v1
    v_add_u32 v{QF0}, s8, v{T}
    v_lshl_add_u32 v{QF1}, v2, 4, v{QF0}
    v_lshl_add_u32 v{T}, v2, 3, v{T}
    v_add_u32 v{T}, {LQ}, v{T}
    v_add_u32 v{TL0}, s76, v{T}
    v_add_u32 v{TL1}, s77, v{T}
    """)
    a(f"""
    s_add_u32 s9, s3, 1
    s_lshr_b32 s9, s9, 1
    s_add_u32 s9, s9, 2
    s_sub_u32 s10, s3, 5
    s_cmp_ge_u32 s3, 5
    s_cselect_b32 s12, s10, s39
    s_cselect_b32 s13, 0, s9
    s_lshl_b32 s10, s12, 12
    s_lshl_b32 s9, s13, 12
    v_add_u32 v{JA}, s10, v{OAD1}
    v_add_u32 v{JB}, s9, v{OAD1}
    s_lshl_b32 s10, s12, 5
    s_lshl_b32 s9, s13, 5
    s_sub_u32 s9, s9, 80
    v_lshlrev_b32 v{T}, 2, v2
    v_add_u32 v{T}, s10, v{T}
    v_add_u32 v{T+1}, s9, v1
    v_and_b32 v{T+2}, 0xffff, v{T+1}
    v_mul_u32_u24 v{T+2}, 3277, v{T+2}
    v_lshrrev_b32 v{T+2}, 16, v{T+2}
    v_mul_u32_u24 v{T+3}, 80, v{T+1}
    s_cmp_ge_u32 s3, 5
    s_cbranch_scc1 PC_z
    """)
    for z in range(2):
        for q in range(4):
            m = MASKS[q]
            a(f"v_add_u32 v{T+4}, {8*q}, v{T}")
            a(f"v_mul_u32_u24 v{T+5}, 3277, v{T+4}")
            a(f"v_lshrrev_b32 v{T+5}, 16, v{T+5}")
            if z == 0:
                a(f"v_lshl_add_u32 v{PWR+q}, v{T+4}, 2, v{T+3}")
                a(f"v_cmp_eq_u32 s[{m}:{m+1}], v{T+5}, v{T+2}")
            else:
                a(f"v_add_u32 v{PWR+q}, 1, v{T+5}")
                a(f"v_mul_u32_u24 v{PWR+q}, 1600, v{PWR+q}")
                a(f"v_lshl_add_u32 v{PWR+q}, v{T+4}, 2, v{PWR+q}")
                a(f"v_cmp_gt_u32 s[{m}:{m+1}], 4, v{T+5}")
                a(f"s_and_b32 s{m}, s{m}, 1\ns_and_b32 s{m+1}, s{m+1}, 1")
        if z == 0:
            a("s_branch PC_zd")
            a.label("PC_z")
    a.label("PC_zd")
    pk = pack3(POS)
    a(f"""
    s_mul_i32 s80, s4, {64*2560}
    s_mul_i32 s8, s5, 160
    s_add_u32 s80, s80, s8
    s_add_u32 s80, s80, 1280
    v_bfe_u32 v{T}, v0, 2, 2
    v_and_b32 v{T+1}, 3, v0
    v_lshlrev_b32 v{T+1}, 3, v{T+1}
    v_mul_u32_u24 v{T+2}, 160, v{T}
    v_add_u32 v{T+1}, v{T+1}, v{T+2}
    v_bfe_u32 v{T+3}, v0, 4, 1
    s_lshl_b32 s8, s39, 1
    v_add_u32 v{T+2}, s8, v{T+3}
    s_cmp_ge_u32 s3, 4
    s_cbranch_scc0 PC_g
    v_mov_b32 v{T+2}, 4
    """)
    a.label("PC_g")
    a(f"""
    v_mad_u32_u24 v{T+2}, v{T}, 5, v{T+2}
    v_mul_u32_u24 v{T+2}, 3, v{T+2}
    s_mov_b32 s8, {pk & 0xffffffff:#x}
    s_mov_b32 s9, {pk >> 32:#x}
    v_lshrrev_b64 v[{T+4}:{T+5}], v{T+2}, s[8:9]
    v_and_b32 v{T+4}, 7, v{T+4}
    v_lshl_add_u32 v{T+1}, v{T+4}, 5, v{T+1}
    s_cbranch_scc1 PC_tz
    s_lshl_b32 s9, s39, 6
    s_add_u32 s80, s80, s9
    s_mul_i32 s10, s38, {32*2560}
    s_add_u32 s80, s80, s10
    s_mul_i32 s8, s38, 5120
    s_add_u32 s8, s8, {LX}
    v_mul_u32_u24 v{tW1}, 1280, v2
    v_add_u32 v{tW1}, v{tW1}, v{T+1}
    v_mul_u32_u24 v{tW2}, 3200, v2
    v_add_u32 v{tW2}, v{tW2}, v{T+1}
    v_add_u32 v{tW2}, 2560, v{tW2}
    v_add_u32 v{tX1}, s8, v{OAD1}
    v_add_u32 v{tX2}, s8, v{OAD0}
    v_mul_u32_u24 v{tO}, 2560, v1
    v_lshl_add_u32 v{tO}, v2, 4, v{tO}
    s_branch PC_td
    """)
    a.label("PC_tz")
    a(f"""
    s_sub_u32 s8, s3, 4
    s_mul_i32 s10, s8, {16*2560}
    s_add_u32 s80, s80, s10
    s_lshl_b32 s9, s38, 4
    s_lshr_b32 s8, s8, 1
    s_mul_i32 s8, s8, 5120
    s_add_u32 s8, s8, {LX}
    v_lshrrev_b32 v{T}, 4, v0
    v_mul_u32_u24 v{tW1}, 3200, v{T+3}
    v_mul_u32_u24 v{T+2}, 1280, v2
    v_add3_u32 v{tW1}, v{tW1}, v{T+2}, v{T+1}
    v_mul_u32_u24 v{tW2}, 3200, v{T}
    v_add_u32 v{tW2}, v{tW2}, v{T+1}
    v_add_u32 v{tW2}, 2560, v{tW2}
    v_and_b32 v{T+2}, 15, v0
    v_mul_u32_u24 v{tO}, 2560, v{T+2}
    v_lshl_add_u32 v{tO}, v{T}, 3, v{tO}
    v_add_u32 v{T+2}, s9, v{T+2}
    v_lshl_add_u32 v{T+4}, v{T}, 5, v{T+2}
    v_lshlrev_b32 v{tX2}, 3, v{T+4}
    v_add_u32 v{tX2}, s8, v{tX2}
    v_lshl_add_u32 v{T+4}, v2, 5, v{T+2}
    v_lshl_add_u32 v{T+4}, v{T+3}, 6, v{T+4}
    v_lshlrev_b32 v{tX1}, 4, v{T+4}
    v_add_u32 v{tX1}, s8, v{tX1}
    """)
    a.label("PC_td")

def gen(a):
    K = NAME + "_kernel"
    kernel_begin(a, K)
    if STAMP:
        a("s_memtime s[84:85]\ns_memrealtime s[86:87]")
    a(f"""
    s_cmp_ge_u32 s2, 256
    s_cbranch_scc1 L_end
    s_load_dwordx16 s[16:31], s[0:1], 0
    s_load_dwordx4 s[32:35], s[0:1], 64
    s_load_dwordx2 s[36:37], s[0:1], 80
    v_lshrrev_b32 v1, 6, v0
    v_and_b32 v0, 63, v0
    v_readfirstlane_b32 s3, v1
    s_and_b32 s6, s2, 7
    s_lshr_b32 s7, s2, 3
    s_lshr_b32 s4, s6, 1
    s_lshl_b32 s4, s4, 3
    s_lshr_b32 s8, s7, 2
    s_add_u32 s4, s4, s8
    s_and_b32 s5, s6, 1
    s_lshl_b32 s5, s5, 2
    s_and_b32 s8, s7, 3
    s_add_u32 s5, s5, s8
    s_and_b32 s8, s5, 1
    s_mul_i32 s8, s8, 5
    s_and_b32 s9, s5, 2
    s_add_u32 s8, s8, s9
    s_and_b32 s9, s4, 7
    s_add_u32 s11, s8, s9
    s_cmp_ge_u32 s11, 10
    s_cselect_b32 s8, 10, 0
    s_sub_u32 s11, s11, s8
    s_cmp_ge_u32 s3, 8
    s_cbranch_scc1 L_loader
    s_cmp_eq_u32 s3, 4
    s_cbranch_scc1 C_pf
    s_cmp_lg_u32 s3, 6
    s_cbranch_scc1 C_pre
    s_getpc_b64 s[44:45]
    """)
    a.label("L_pc")
    a(f"s_sub_u32 s44, s44, L_pc-{K}\ns_subb_u32 s45, s45, 0")
    a(f"s_mov_b32 s46, L_codeend-{K}\ns_mov_b32 s47, 0x20000")
    a("v_lshlrev_b32 v4, 7, v0\ns_mov_b32 s8, 0x2000\ns_mov_b32 s9, 0x4000")
    a("buffer_load_dword v5, v4, s[44:47], 0 offen\nbuffer_load_dword v6, v4, s[44:47], s8 offen\nbuffer_load_dword v7, v4, s[44:47], s9 offen")
    a("s_cmp_ge_u32 s2, 8\ns_cbranch_scc1 C_pre")
    a("s_memrealtime s[8:9]\ns_waitcnt lgkmcnt(0)\ns_or_b32 s8, s8, 1")
    srd(a, 44, 34, 256)
    a("v_mov_b32 v8, s8\nv_mov_b32 v9, 0\nv_mov_b32 v10, 0\ns_mov_b64 exec, 1")
    a("buffer_atomic_cmpswap v[8:9], v10, s[44:47], 0 offen sc1")
    a("s_mov_b64 exec, -1")
    a("s_branch C_pre")
    a.label("C_pf")
    if PF:
        pf_rows(a, 4, 1280, "s13", "s14")
        a("v_lshlrev_b32 v12, 7, v0")
        a("s_waitcnt lgkmcnt(0)")
        srd(a, 44, 16, XBYTES); srd(a, 48, 18, 640 * 1280)
        a(f"""
        s_mov_b32 exec_hi, 0x3ffff
        buffer_load_dword v6, v4, s[48:51], s13 offen {PFNT}
        buffer_load_dword v7, v4, s[48:51], s14 offen {PFNT}
        s_mov_b32 exec_hi, -1
        """)
        pf_x(a, 44, "v12", 8)
    a.label("C_pre")
    precompute(a)
    a("s_waitcnt lgkmcnt(0)")
    srd(a, 40, 36, WS_SIZE)
    ringW(a, 0, 6, HS); ringX(a, 0, 6, HS)
    a("s_cmp_lt_u32 s3, 3")
    a("s_cbranch_scc1 A_q")
    a("s_cmp_lg_u32 s3, 7")
    a("s_cbranch_scc1 A_bars")
    srd(a, 44, 34, 256)
    a("v_mov_b32 v10, 0")
    a(f"""
    v_and_b32 v20, 15, v0
    v_lshrrev_b32 v21, 4, v0
    v_xor_b32 v22, v20, v21
    v_lshlrev_b32 v22, 4, v22
    v_lshl_add_u32 v22, v20, 8, v22
    v_add_u32 v22, {LMX}, v22
    v_xor_b32 v23, 64, v22
    v_xor_b32 v24, 128, v22
    v_xor_b32 v25, 192, v22
    v_bfe_u32 v26, v0, 2, 2
    v_lshl_add_u32 v26, v21, 3, v26
    v_mul_u32_u24 v26, 40, v26
    v_and_b32 v27, 3, v0
    v_lshl_add_u32 v26, v27, 3, v26
    v_add_u32 v26, {LWKV}, v26
    s_lshl_b32 s12, s4, 1
    s_lshr_b32 s8, s5, 2
    s_add_u32 s12, s12, s8
    s_mul_i32 s12, s12, {TILE}
    s_add_u32 s12, s12, {WS_KV}
    s_bfe_u32 s13, s5, 0x10001
    s_lshl_b32 s55, s4, 5
    s_add_u32 s55, s55, s5
    s_lshl_b32 s55, s55, 2
    s_add_u32 s55, s55, {FL_KV}
    v_and_b32 v27, 1, v21
    s_mov_b32 s56, 0
    """)
    for i in list(range(12, 20)) + list(range(60, 84)): a(f"v_mov_b32 v{i}, 0")
    a("s_bitcmp1_b32 s5, 0")
    a("s_cbranch_scc1 M_v")
    def mini(lbl, orient):
        def mm(st):
            f = 36 + 12 * st
            for blk in range(2):
                x, w, ac = v(f, 4), v(f + 4 + 4 * blk, 4), v(12 + 4 * blk, 4)
                a(f"v_mfma_f32_16x16x32_bf16 {ac}, {w}, {x}, {ac}" if orient == "R" else f"v_mfma_f32_16x16x32_bf16 {ac}, {x}, {w}, {ac}")
        a("s_barrier")
        a("buffer_load_dword v11, v10, s[44:47], 0 offen sc1")
        a.label(lbl)
        for st in range(4):
            f = 36 + 12 * st
            a(f"ds_read_b128 v[{f}:{f+3}], v{22+st}")
            for blk in range(2):
                for hf in range(2):
                    d = f + 4 + 4 * blk + 2 * hf
                    a(f"ds_read_b64_tr_b16 v[{d}:{d+1}], v26 offset:{(32*st+4*hf)*40+32*blk}")
            a(f"v_add_u32 v{22+st}, 4096, v{22+st}")
            a("s_waitcnt lgkmcnt(10)")
            mm((st + 2) % 4)
        a("v_add_u32 v26, 5120, v26")
        a(f"s_add_u32 s56, s56, 1\ns_cmp_lt_u32 s56, 5\ns_cbranch_scc1 {lbl}")
        a("s_waitcnt lgkmcnt(5)"); mm(2)
        a("s_waitcnt lgkmcnt(0)"); mm(3)
        a("s_nop 7")
        for i in range(4): a(f"v_cvt_pk_bf16_f32 v{12+i}, v{12+2*i}, v{13+2*i}")
    a(f"""
    s_lshl_b32 s8, s13, 4
    v_add_u32 v20, s8, v20
    v_lshlrev_b32 v28, 4, v20
    v_lshl_add_u32 v28, v2, 9, v28
    v_lshl_add_u32 v28, v27, 3, v28
    v_lshlrev_b32 v29, 3, v20
    v_add_u32 v29, 1024, v29
    s_mov_b32 exec_lo, 0xffff0000
    v_lshlrev_b32 v29, 3, v1
    v_add_u32 v29, {2560-128}, v29
    s_mov_b32 exec_lo, -1
    """)
    mini("M_kl", "R")
    a("s_mov_b32 exec_lo, 0xffff0000")
    a("v_mov_b32 v14, 0x3f803f80\nv_mov_b32 v15, 0x3f803f80")
    a("s_mov_b32 exec_lo, -1")
    a("buffer_store_dwordx2 v[12:13], v28, s[40:43], s12 offen sc1")
    a("s_mov_b32 exec_hi, 0")
    a("buffer_store_dwordx2 v[14:15], v29, s[40:43], s12 offen sc1")
    a("s_branch M_done")
    a.label("M_v")
    a(f"""
    s_mul_i32 s8, s13, 640
    s_add_u32 s12, s12, s8
    v_lshrrev_b32 v28, 2, v20
    v_add_u32 v28, 1, v28
    v_and_b32 v28, 2, v28
    v_mul_u32_u24 v28, 6, v28
    v_xor_b32 v28, v20, v28
    v_mul_u32_u24 v29, 320, v27
    v_lshl_add_u32 v29, v2, 3, v29
    v_lshl_add_u32 v28, v28, 4, v29
    """)
    mini("M_vl", "C")
    a("buffer_store_dwordx2 v[12:13], v28, s[40:43], s12 offen offset:1280 sc1")
    a("s_mov_b32 exec_lo, 0x000f000f\ns_mov_b32 exec_hi, 0x000f000f")
    a("buffer_store_dwordx2 v[14:15], v28, s[40:43], s12 offen offset:1536 sc1")
    a.label("M_done")
    a("s_mov_b64 exec, -1")
    gs(a, 0)
    a("s_barrier\ns_barrier\ns_barrier")
    a("s_mov_b32 s9, 0")
    a.label("A_np")
    a("s_add_u32 s9, s9, 1")
    a("s_waitcnt vmcnt(0)")
    a("v_cmp_eq_u32 vcc, 0, v11")
    a(f"s_cmp_gt_u32 s9, {SPIN_MAX}\ns_cbranch_scc1 A_nd\ns_cbranch_vccz A_nd\ns_sleep 1")
    a("buffer_load_dword v11, v10, s[44:47], 0 offen sc1")
    a("s_branch A_np")
    a.label("A_nd")
    a("s_mov_b64 exec, 1")
    a("buffer_store_dword v11, v10, s[40:43], s55 offen sc1")
    a("s_mov_b64 exec, -1")
    a(f"v_mov_b32 v5, {LMISC}\nds_write_b32 v5, v11\ns_waitcnt lgkmcnt(0)")
    gs(a, 1)
    a("s_branch A_bars7")
    a.label("A_bars")
    for i in range(4): a("s_barrier")
    a.label("A_bars7")
    for i in range(7): a("s_barrier")
    a("s_waitcnt vmcnt(0)")
    a("s_branch A_done2")
    a.label("A_q")
    zero_acc(a)
    a("s_barrier\ns_barrier")
    call(a, "gemmR", "s[62:63]")
    a(f"s_mov_b32 s8, {f32(CSCALE)}")
    for i in range(0, 32, 2):
        a(f"v_pk_mul_f32 v[{ACC[0]+i}:{ACC[0]+i+1}], v[{ACC[0]+i}:{ACC[0]+i+1}], s[8:9] op_sel_hi:[1,0]")
    call(a, "g_pack")
    call(a, "g_t2l")
    a.label("A_done")
    call(a, "g_setupB")
    a.label("A_done2")
    def rdKA(t): a(f"ds_read_b128 v[{KA}:{KA+3}], v{aKA} offset:{(t%16)*TILE}")
    def rdKB(t): a(f"ds_read_b64 v[{KB}:{KB+1}], v{aKB} offset:{(t%16)*TILE}")
    def rdV0(t): a(f"ds_read_b128 v[{V0}:{V0+3}], v{aV0} offset:{(t%16)*TILE}")
    def rdV1(t): a(f"ds_read_b128 v[{V1}:{V1+3}], v{aV1} offset:{(t%16)*TILE}")
    def qka(S): a(f"v_mfma_f32_32x32x16_bf16 v[{S}:{S+15}], v[{KA}:{KA+3}], v[{QA}:{QA+3}], 0")
    def qkb(S): a(f"v_mfma_f32_32x32x8_bf16 v[{S}:{S+15}], v[{KB}:{KB+1}], v[{QB}:{QB+1}], v[{S}:{S+15}]")
    def pv0(): a(f"v_mfma_f32_32x32x16_bf16 v[{OO}:{OO+15}], v[{V0}:{V0+3}], v[{PP}:{PP+3}], v[{OO}:{OO+15}]")
    def pv1(): a(f"v_mfma_f32_32x32x16_bf16 v[{OO}:{OO+15}], v[{V1}:{V1+3}], v[{PP+4}:{PP+7}], v[{OO}:{OO+15}]")
    def E(S, g, lo=0, hi=4, e64=False):
        for i in range(lo, hi): a(f"v_exp_f32{'_e64' if e64 else ''} v{S+4*g+i}, v{S+4*g+i}")
    def C(S, g):
        for i in range(2): a(f"v_cvt_pk_bf16_f32 v{PP+2*g+i}, v{S+4*g+2*i}, v{S+4*g+2*i+1}")
    for i in range(16): a(f"v_mov_b32 v{OO+i}, 0")
    for i in range(4): a(f"v_mov_b32 v{PP+4+i}, 0")
    for i in range(4): a(f"v_mov_b32 v{V1+i}, 0")
    a("s_mov_b32 s57, 0")
    a("s_waitcnt lgkmcnt(0)\ns_barrier")
    read_qfrag(a, QA, QB)
    rdKA(0); rdKB(0); rdV0(0)
    a(f"s_mov_b32 s8, {LPQ - LQ}")
    for r in (QF0, QF1, TL0, TL1): a(f"v_add_u32 v{r}, s8, v{r}")
    a("s_mov_b32 exec_lo, 0")
    a("s_waitcnt lgkmcnt(1)")
    a(f"v_mov_b32 v{QB}, 0\nv_mov_b32 v{QB+1}, 0")
    a("s_mov_b32 exec_lo, -1")
    qka(S0); qkb(S0)
    rdKA(1); rdKB(1)
    a("s_nop 9")
    M0, M1, M2 = 36, 37, 38
    rowmax(a, S0, M0)
    set_m(a, M0, M1, keep=M2)
    for i in range(16): a(f"v_sub_f32 v{S0+i}, v{S0+i}, v{M2}")
    a("s_waitcnt lgkmcnt(0)")
    a("s_branch AT_loop")
    a.label("B_start")
    a("s_waitcnt lgkmcnt(0)")
    pv1()
    ringW(a, 0, 3, SLOT); ringX(a, 0, 3, SLOT)
    zero_acc(a)
    a("s_barrier")
    a("s_cmp_ge_u32 s3, 3")
    a("s_cbranch_scc1 B_kv")
    call(a, "gemmR", "s[62:63]")
    call(a, "g_phi")
    call(a, "g_t2l")
    a("s_branch B_jobs")
    a.label("B_kv")
    a("s_lshl_b32 s8, s78, 12")
    a(f"v_add_u32 v{TL0}, s8, v{OAD1}")
    call(a, "gemmC", "s[62:63]")
    a("s_cmp_ge_u32 s78, 3")
    a("s_cbranch_scc1 B_nophi")
    a("s_cmp_eq_u32 s78, 2")
    a("s_cselect_b32 s8, 0xffff, -1")
    a("s_mov_b32 exec_lo, s8\ns_mov_b32 exec_hi, s8")
    call(a, "g_phi")
    a("s_branch B_wr")
    a.label("B_nophi")
    call(a, "g_pack")
    a.label("B_wr")
    for ks in range(4):
        d = ACC[0] + 4 * ks
        a(f"ds_write_b128 v{TL0}, v[{d}:{d+3}] offset:{LFR+1024*ks}")
    a.label("B_jobs")
    rdKA(0); rdKB(0); rdV0(0)
    for i in range(4): a(f"v_mov_b32 v{PP+4+i}, 0")
    for i in range(4): a(f"v_mov_b32 v{V1+i}, 0")
    JAF, JBF = 76, 92
    a("s_cmp_lt_u32 s3, 5\ns_cbranch_scc1 B_noz")
    for i in range(16): a(f"v_mov_b32 v{JBF+i}, 0x3f803f80")
    a.label("B_noz")
    a("s_waitcnt lgkmcnt(0)")
    qka(S0); qkb(S0)
    rdKA(1); rdKB(1)
    a("s_barrier")
    for ks in range(4): a(f"ds_read_b128 v[{JAF+4*ks}:{JAF+4*ks+3}], v{JA} offset:{LFR+1024*ks}")
    a("s_cbranch_scc0 B_nob")
    for ks in range(4): a(f"ds_read_b128 v[{JBF+4*ks}:{JBF+4*ks+3}], v{JB} offset:{LFR+1024*ks}")
    a.label("B_nob")
    read_qfrag(a, PQA, PQB)
    a("s_waitcnt lgkmcnt(2)")
    for ks in range(4):
        c = "0" if ks == 0 else "v[20:35]"
        a(f"v_mfma_f32_32x32x16_bf16 v[20:35], v[{JAF+4*ks}:{JAF+4*ks+3}], v[{JBF+4*ks}:{JBF+4*ks+3}], {c}")
    a("s_mov_b32 exec_lo, 0")
    a("s_waitcnt lgkmcnt(0)")
    a(f"v_mov_b32 v{PQB}, 0\nv_mov_b32 v{PQB+1}, 0")
    a("s_nop 7")
    for q in range(4):
        a(f"s_mov_b64 exec, s[{MASKS[q]}:{MASKS[q]+1}]")
        a(f"ds_write_b128 v{PWR+q}, v[{20+4*q}:{23+4*q}] offset:{LPART}")
    a("s_mov_b64 exec, -1")
    a("s_waitcnt lgkmcnt(0)")
    a(".p2align 6")
    a.label("AT_loop")
    for n in range(16):
        Sc, Sn = (S0, S1) if n % 2 == 0 else (S1, S0)
        if n % 4 == 2:
            a("s_waitcnt vmcnt(0)\ns_barrier")
        qka(Sn); rdKA(n + 2); E(Sc, 0, 0, 3); a("s_waitcnt lgkmcnt(3)"); E(Sc, 0, 3, 4, True)
        pv1(); rdV1(n); C(Sc, 0); E(Sc, 1, 0, 3); a("s_waitcnt lgkmcnt(3)"); E(Sc, 1, 3, 4, True)
        qkb(Sn); rdKB(n + 2); C(Sc, 1); E(Sc, 2, 0, 3); a("s_waitcnt lgkmcnt(3)"); E(Sc, 2, 3, 4, True)
        pv0(); rdV0(n + 1); C(Sc, 2); E(Sc, 3, 0, 3); a("s_waitcnt lgkmcnt(3)"); E(Sc, 3, 3, 4, True); C(Sc, 3)
    a("s_add_u32 s57, s57, 1\ns_cmp_eq_u32 s57, 2\ns_cbranch_scc1 AT_loop")
    a("s_cmp_eq_u32 s57, 1\ns_cbranch_scc1 B_start")
    a("s_cmp_eq_u32 s57, 3\ns_cbranch_scc1 AT_apply")
    a("s_waitcnt lgkmcnt(0)")
    pv1()
    srd(a, 44, 32, 2048 * 2560)
    a("s_mov_b32 s83, 0\ns_mov_b32 s71, 0\ns_mov_b32 s72, 20480\ns_mov_b32 s73, -40960\ns_mov_b32 s74, 25600\ns_mov_b32 s75, -102400")
    a("s_nop 2")
    a(f"v_cmp_nge_f32 vcc, {f32(2.0**40)}, v{OO+12}")
    a("s_nop 1")
    a("s_cbranch_vccnz AT_fallback")
    a.label("AT_ok")
    o_epilogue(a, OO, WS_OA, False)
    a("s_cmp_ge_u32 s3, 4\ns_cbranch_scc1 TLz_job")
    F = [20 + 8 * i for i in range(10)]
    LA = 4
    def tl_head(pfx):
        a("s_cmp_lg_u32 s56, 2")
        a(f"s_cbranch_scc1 {pfx}_nv")
        a("s_waitcnt vmcnt(0)")
        a.label(pfx + "_nv")
        a("s_waitcnt lgkmcnt(0)")
        a("s_barrier")
    def tl_adv():
        a("s_add_u32 s71, s71, 1\ns_cmp_eq_u32 s71, 3\ns_cselect_b32 s8, s73, s72\ns_cselect_b32 s71, 0, s71")
        a(f"v_add_u32 v{tW1}, s74, v{tW1}\nv_add_u32 v{tW2}, s74, v{tW2}\nv_add_u32 v{tX1}, s8, v{tX1}\nv_add_u32 v{tX2}, s8, v{tX2}")
        a("s_add_u32 s56, s56, 1\ns_cmp_lt_u32 s56, 4")
    def mrd(st):
        f = F[st]; t, H = divmod(st, 5)
        if H < 4:
            for hf in range(2): a(f"ds_read_b64_tr_b16 v[{f+2*hf}:{f+2*hf+1}], v{tW1} offset:{(80*t+20*H+4*hf)*160}")
            a(f"ds_read_b128 v[{f+4}:{f+7}], v{tX1} offset:{t*10240+H*1024}")
        else:
            for hf in range(2): a(f"ds_read_b64_tr_b16 v[{f+2*hf}:{f+2*hf+1}], v{tW2} offset:{(80*t+40*hf)*160}")
            for hf in range(2): a(f"ds_read_b64 v[{f+4+2*hf}:{f+5+2*hf}], v{tX2} offset:{t*10240+4096+512*hf}")
    def mmf(st): a(f"v_mfma_f32_32x32x16_bf16 v[4:19], v[{F[st]}:{F[st]+3}], v[{F[st]+4}:{F[st]+7}], v[4:19]")
    nrd = lambda st: 4 if st % 5 == 4 else 3
    a.label("TLm_job")
    for i in range(4, 20): a(f"v_mov_b32 v{i}, 0")
    a("s_mov_b32 s56, 0")
    a("s_barrier")
    for st in range(LA): mrd(st)
    a("s_branch TLm_mid")
    a.label("TLm_loop")
    tl_head("TLm")
    for st in range(LA):
        mmf(10 - LA + st); mrd(st)
    a.label("TLm_mid")
    for st in range(LA, 10):
        mrd(st)
        a(f"s_waitcnt lgkmcnt({sum(nrd(x) for x in range(st-LA+1, st+1))})")
        mmf(st - LA)
    tl_adv()
    a("s_cbranch_scc1 TLm_loop")
    for st in range(10 - LA, 10):
        a(f"s_waitcnt lgkmcnt({sum(nrd(x) for x in range(st+1, 10))})")
        mmf(st)
    a(f"v_add_u32 v{tW1}, s75, v{tW1}\nv_add_u32 v{tW2}, s75, v{tW2}")
    a("s_nop 9")
    for i in range(8): a(f"v_cvt_pk_bf16_f32 v{100+i}, v{4+2*i}, v{5+2*i}")
    a("s_nop 1")
    for half in range(2):
        d = 100 + 4 * half
        a(f"v_permlane32_swap_b32 v{d}, v{d+2}\nv_permlane32_swap_b32 v{d+1}, v{d+3}")
    for half in range(2):
        d = 100 + 4 * half
        a(f"buffer_store_dwordx4 v[{d}:{d+3}], v{tO}, s[44:47], s80 offen offset:{32*half} {ONT}")
    a("s_sub_u32 s80, s80, 1280")
    a("s_add_u32 s83, s83, 1\ns_cmp_lt_u32 s83, 2\ns_cbranch_scc1 TLm_job")
    stamp_end(a)
    a("s_endpgm")
    a.label("TLz_job")
    for i in range(4, 8): a(f"v_mov_b32 v{i}, 0")
    a("s_mov_b32 s56, 0")
    a.label("TLz_loop")
    tl_head("TLz")
    for j in range(4):
        f = F[j]; t = j >> 1
        for hf in range(2): a(f"ds_read_b64_tr_b16 v[{f+2*hf}:{f+2*hf+1}], v{tW1} offset:{(80*t+40*(j&1)+4*hf)*160}")
        a(f"ds_read_b128 v[{f+4}:{f+7}], v{tX1} offset:{t*10240+(j&1)*2048}")
    def zmf(j): a(f"v_mfma_f32_16x16x32_bf16 v[4:7], v[{F[j]}:{F[j]+3}], v[{F[j]+4}:{F[j]+7}], v[4:7]")
    a("s_waitcnt lgkmcnt(9)"); zmf(0)
    f = F[4]
    for t in range(2): a(f"ds_read_b64_tr_b16 v[{f+2*t}:{f+2*t+1}], v{tW2} offset:{12800*t}")
    for t in range(2): a(f"ds_read_b64 v[{f+4+2*t}:{f+5+2*t}], v{tX2} offset:{4096+10240*t}")
    a("s_waitcnt lgkmcnt(10)"); zmf(1)
    a("s_waitcnt lgkmcnt(7)"); zmf(2)
    a("s_waitcnt lgkmcnt(4)"); zmf(3)
    a("s_waitcnt lgkmcnt(0)"); zmf(4)
    tl_adv()
    a("s_cbranch_scc1 TLz_loop")
    a(f"v_add_u32 v{tW1}, s75, v{tW1}\nv_add_u32 v{tW2}, s75, v{tW2}")
    a("v_cvt_pk_bf16_f32 v100, v4, v5\nv_cvt_pk_bf16_f32 v101, v6, v7")
    a(f"buffer_store_dwordx2 v[100:101], v{tO}, s[44:47], s80 offen offset:128 {ONT}")
    a("s_sub_u32 s80, s80, 1280")
    a("s_add_u32 s83, s83, 1\ns_cmp_lt_u32 s83, 2\ns_cbranch_scc1 TLz_job")
    stamp_end(a)
    a("s_endpgm")
    a.label("AT_apply")
    AP = 84
    a(f"""
    ds_read2_b64 v[100:103], v{AP1} offset0:0 offset1:1
    ds_read_b64 v[104:105], v{AP0} offset:32
    s_waitcnt lgkmcnt(0)
    v_mfma_f32_32x32x16_bf16 v[{AP}:{AP+15}], v[100:103], v[{PQA}:{PQA+3}], 0
    v_mfma_f32_32x32x8_bf16 v[{AP}:{AP+15}], v[104:105], v[{PQB}:{PQB+1}], v[{AP}:{AP+15}]
    s_nop 11
    """)
    o_epilogue(a, AP, WS_OB, True)
    a("s_branch AT_loop")
    a.label("AT_fallback")
    a("s_mov_b32 exec_lo, 0")
    a(f"v_mov_b32 v{QB}, 0\nv_mov_b32 v{QB+1}, 0")
    a("s_mov_b32 exec_lo, -1")
    a(f"v_mov_b32 v{T2+2}, 0xff800000")
    a(f"s_mov_b32 s70, {WS_KV - LKV}")
    a.label("AT_fb1")
    a(f"buffer_load_dwordx4 v[{KA}:{KA+3}], v{aKA}, s[40:43], s70 offen sc1")
    a(f"buffer_load_dwordx2 v[{KB}:{KB+1}], v{aKB}, s[40:43], s70 offen sc1")
    a("s_waitcnt vmcnt(0)")
    qka(S0); qkb(S0)
    a("s_nop 15")
    rowmax(a, S0, T2 + 2, first=False)
    a(f"s_add_u32 s70, s70, {TILE}\ns_cmp_lt_u32 s70, {WS_KV-LKV+64*TILE}\ns_cbranch_scc1 AT_fb1")
    set_m(a, T2 + 2, T2 + 3)
    for i in range(16): a(f"v_mov_b32 v{OO+i}, 0")
    a(f"s_mov_b32 s70, {WS_KV - LKV}")
    a.label("AT_fb2")
    a(f"buffer_load_dwordx4 v[{KA}:{KA+3}], v{aKA}, s[40:43], s70 offen sc1")
    a(f"buffer_load_dwordx2 v[{KB}:{KB+1}], v{aKB}, s[40:43], s70 offen sc1")
    a(f"buffer_load_dwordx4 v[{V0}:{V0+3}], v{aV0}, s[40:43], s70 offen sc1")
    a(f"buffer_load_dwordx4 v[{V1}:{V1+3}], v{aV1}, s[40:43], s70 offen sc1")
    a("s_waitcnt vmcnt(0)")
    qka(S0); qkb(S0)
    a("s_nop 15")
    for g in range(4): E(S0, g)
    a("s_nop 0")
    for g in range(4): C(S0, g)
    a("s_nop 1")
    pv0(); pv1()
    a(f"s_add_u32 s70, s70, {TILE}\ns_cmp_lt_u32 s70, {WS_KV-LKV+64*TILE}\ns_cbranch_scc1 AT_fb2")
    a("s_nop 15")
    a("s_branch AT_ok")

    LK = "s[62:63]"
    a.label("L_loader")
    a("s_setprio 2")
    a("s_sub_u32 s10, s3, 8")
    a("s_mul_i32 s13, s4, 81920")
    a("v_lshlrev_b32 v18, 4, v0")
    a("s_cmp_eq_u32 s10, 1\ns_cbranch_scc1 L_mw")
    a("""
    v_lshrrev_b32 v20, 4, v0
    v_xor_b32 v21, v20, v0
    v_and_b32 v21, 15, v21
    v_lshlrev_b32 v21, 4, v21
    v_mul_u32_u24 v20, 1280, v20
    """)
    for j in range(4):
        a(f"v_xor_b32 v{28+j}, {64*j}, v21")
        a(f"v_add_u32 v{28+j}, v{28+j}, v20")
        if j < 3: a("v_add_u32 v20, 5120, v20")
    a(f"""
    s_mov_b32 m0, {LMX}
    s_lshr_b32 s14, s5, 1
    s_mul_i32 s14, s14, 20480
    s_add_u32 s14, s14, s13
    s_mov_b32 s15, 0
    s_waitcnt lgkmcnt(0)
    """)
    srd(a, 44, 16, XBYTES)
    a.label("L_mx")
    for j in range(4):
        dma(a, f"v{28+j}", 44, "s14", DNT)
        a("s_add_u32 m0, m0, 1024")
        a("s_add_u32 s14, s14, 256" if j == 3 else "s_nop 0")
    a("s_add_u32 s15, s15, 1\ns_cmp_lt_u32 s15, 5\ns_cbranch_scc1 L_mx")
    a("s_branch L_md")
    a.label("L_mw")
    a(f"s_mov_b32 m0, {LWKV}\ns_mov_b32 s14, 0")
    a("s_waitcnt lgkmcnt(0)")
    a("s_bitcmp1_b32 s5, 0")
    a("s_cselect_b32 s52, s22, s20")
    a("s_cselect_b32 s53, s23, s21")
    a("s_mov_b32 s54, 25600\ns_mov_b32 s55, 0x20000")
    a.label("L_mwl")
    for i in range(4): a(f"buffer_load_dwordx4 v18, s[52:55], s14 offen offset:{1024*i} lds")
    a("s_add_u32 m0, m0, 4096\ns_add_u32 s14, s14, 4096\ns_cmp_lt_u32 s14, 24576\ns_cbranch_scc1 L_mwl")
    a("buffer_load_dwordx4 v18, s[52:55], s14 offen lds")
    srd(a, 44, 16, XBYTES)
    a.label("L_md")
    tr_init(a); tr(a)
    a("""
    s_mov_b32 s12, 0
    s_lshl_b32 s8, s10, 2
    s_lshl_b32 s9, s10, 3
    v_lshrrev_b32 v20, 4, v0
    v_add_u32 v20, s8, v20
    v_xor_b32 v20, v20, v0
    v_and_b32 v20, 7, v20
    v_lshlrev_b32 v20, 4, v20
    v_lshrrev_b32 v21, 3, v0
    v_add_u32 v21, s9, v21
    v_mul_u32_u24 v21, 1280, v21
    v_add_u32 v2, v20, v21
    s_mov_b32 s8, 1120
    """)
    for p in range(5):
        a(f"v_add_u32 v20, {64*p}, v0")
        a(f"v_mul_u32_u24 v{22+p}, 6554, v20")
        a(f"v_lshrrev_b32 v{22+p}, 16, v{22+p}")
        a(f"v_lshlrev_b32 v20, 4, v20")
        a(f"v_mad_u32_u24 v{3+p}, v{22+p}, s8, v20")
    a("s_mul_i32 s64, s5, 160")
    a(f"s_mul_i32 s65, s10, {32*1280}")
    a("s_add_u32 s65, s65, s64")
    srd(a, 48, 18, 640 * 1280)
    srd(a, 40, 36, WS_SIZE)
    srd(a, 72, 26, XBYTES)
    srd(a, 76, 28, 640 * 3840)
    a("s_mov_b32 s8, 2560\ns_mov_b32 s9, 1280")
    for p in range(5):
        a(f"v_mad_u32_u24 v{8+p}, v{22+p}, s8, v{3+p}")
        a(f"v_lshrrev_b32 v20, 1, v{22+p}")
        a(f"v_mad_u32_u24 v{13+p}, v20, s9, v{3+p}")
    a("v_lshlrev_b32 v19, 7, v0")
    pk = pack3(INV)
    a(f"s_mov_b32 s8, {pk & 0xffffffff:#x}\ns_mov_b32 s9, {pk >> 32:#x}\ns_mov_b32 s14, 1280")
    for p in range(5):
        a(f"""
        v_add_u32 v20, {64*p}, v0
        v_mul_u32_u24 v21, 10, v{22+p}
        v_sub_u32 v20, v20, v21
        v_lshrrev_b32 v21, 1, v20
        v_and_b32 v28, 3, v{22+p}
        v_mad_u32_u24 v21, v28, 5, v21
        v_mul_u32_u24 v21, 3, v21
        v_lshrrev_b64 v[28:29], v21, s[8:9]
        v_and_b32 v28, 7, v28
        v_and_b32 v20, 1, v20
        v_lshl_or_b32 v20, v28, 1, v20
        v_lshlrev_b32 v20, 4, v20
        v_mad_u32_u24 v{80+p}, v{22+p}, s14, v20
        """)
    a(f"s_mul_i32 s66, s10, {32*3840}")
    a("s_add_u32 s66, s66, s64")
    a("s_add_u32 s67, s66, 1280")
    A_, B_, KV_ = "L_issueA", "L_issueB", "L_issueKV"
    tr(a)
    call(a, A_, LK)
    sched = [(9, [A_, A_, A_]), (27, [A_, A_]), (36, [A_]), (36, [A_]), (36, [A_]), (36, [A_]), (36, []), (27, [])]
    for i, (w, iss) in enumerate(sched):
        a(f"s_waitcnt vmcnt({w})"); bar(a)
        for x in iss: call(a, x, LK)
    get_nonce(a, "v30", "v31")
    a("s_mov_b32 s12, 0")
    a("s_and_b32 s69, s5, 3")
    a("s_cmp_eq_u32 s10, 1")
    a("s_cbranch_scc1 L1_path")
    def b_phase(pfx):
        bar(a)
        a("s_mov_b32 s70, 0")
        a.label(pfx + "_b")
        a("s_waitcnt vmcnt(19)"); bar(a); call(a, B_, LK)
        a(f"s_add_u32 s70, s70, 1\ns_cmp_lt_u32 s70, 7\ns_cbranch_scc1 {pfx}_b")
        a("s_waitcnt vmcnt(19)"); bar(a)
        a("s_waitcnt vmcnt(0)"); bar(a)
    gs(a, 3)
    a("v_lshrrev_b32 v36, 1, v0\nv_lshlrev_b32 v36, 7, v36\nv_and_b32 v37, 1, v0\nv_lshl_add_u32 v36, v37, 4, v36")
    a(f"s_mov_b32 s8, {FL_KV}")
    a("buffer_load_dwordx4 v[32:35], v36, s[40:43], s8 offen sc1")
    a("s_waitcnt vmcnt(19)"); bar(a)
    a(f"s_mov_b32 s9, 0")
    a.label("L0_pk")
    a("s_add_u32 s9, s9, 1")
    a("s_waitcnt vmcnt(0)")
    for i in range(4): a(f"v_xor_b32 v{32+i}, s96, v{32+i}")
    a("v_or3_b32 v32, v32, v33, v34\nv_or_b32 v32, v32, v35\nv_cmp_ne_u32 vcc, 0, v32")
    a(f"s_cmp_gt_u32 s9, {SPIN_MAX}\ns_cbranch_scc1 L0_pd\ns_cbranch_vccz L0_pd\ns_sleep 2")
    a("buffer_load_dwordx4 v[32:35], v36, s[40:43], s8 offen sc1")
    a("s_branch L0_pk")
    a.label("L0_pd")
    gs(a, 4)
    if STAMP: a(f"v_mov_b32 v106, s9\ns_add_u32 s14, s14, 4\nbuffer_store_dword v106, v107, s[40:43], s14 offen")
    a("s_lshr_b32 s60, s2, 3\ns_and_b32 s60, s60, 15")
    a(f"s_mov_b32 s61, {LKV}")
    call(a, KV_, LK)
    bar(a)
    call(a, KV_, LK)
    bar(a)
    call(a, KV_, LK)
    a("s_waitcnt vmcnt(22)"); bar(a)
    a("s_waitcnt vmcnt(11)"); bar(a); call(a, KV_, LK)
    a("s_waitcnt vmcnt(11)"); bar(a); call(a, KV_, LK); call(a, B_, LK)
    a("s_waitcnt vmcnt(30)"); bar(a); call(a, KV_, LK); call(a, B_, LK)
    a("s_waitcnt vmcnt(30)"); bar(a); call(a, KV_, LK); call(a, B_, LK)
    b_phase("L0")
    bar(a)
    a("s_mov_b32 s70, 5")
    a.label("L0_kv")
    a("s_waitcnt vmcnt(11)"); bar(a); call(a, KV_, LK)
    a("s_add_u32 s70, s70, 1\ns_cmp_lt_u32 s70, 14\ns_cbranch_scc1 L0_kv")
    a("s_lshl_b32 s56, s4, 7\ns_lshl_b32 s57, s5, 2\ns_add_u32 s57, s57, s56")
    a("v_lshlrev_b32 v19, 2, v0")
    a(f"s_add_u32 s8, s57, {FL_OB}")
    publish(a, "s8", "v30", "v31")
    a("s_waitcnt vmcnt(12)"); bar(a)
    a("s_waitcnt vmcnt(0)"); bar(a)
    a(f"s_add_u32 s8, s56, {FL_OB}")
    poll(a, "s8", 8)
    a(f"s_add_u32 s13, s13, {WS_OB}")
    a(f"s_mov_b32 s61, {LX}")
    call(a, "L_issueP", LK)
    bar(a)
    call(a, "L_issueP", LK)
    a("s_waitcnt vmcnt(20)"); bar(a)
    call(a, "L_issueP", LK)
    a("s_waitcnt vmcnt(20)"); bar(a)
    call(a, "L_issueP", LK)
    a("s_waitcnt vmcnt(20)"); bar(a)
    a(f"s_add_u32 s8, s57, {FL_OA}")
    publish(a, "s8", "v30", "v31")
    gs(a, 6)
    a("s_waitcnt vmcnt(1)"); bar(a)
    a(f"s_add_u32 s8, s56, {FL_OA}")
    poll(a, "s8", 8)
    tr(a)
    gs(a, 7)
    a(f"s_sub_u32 s13, s13, {WS_OB - WS_OA}")
    call(a, "L_issueP", LK); call(a, "L_issueP", LK)
    a("s_waitcnt vmcnt(20)"); bar(a)
    call(a, "L_issueP", LK)
    a("s_waitcnt vmcnt(20)"); bar(a)
    call(a, "L_issueP", LK)
    a("s_waitcnt vmcnt(20)"); bar(a)
    a("s_waitcnt vmcnt(0)"); bar(a)
    tr_dump(a)
    a("s_endpgm")
    a.label("L1_path")
    for w in (18, 9, 0):
        a(f"s_waitcnt vmcnt({w})"); bar(a)
    pf_rows(a, 20, 3840, "s14", "s15")
    bar(a)
    pf_x(a, 72, "v19", 32)
    a("s_mov_b32 exec_hi, 0x3ffff")
    for i in range(3):
        for j, so in enumerate(("s14", "s15")):
            a(f"buffer_load_dword v{44+2*i+j}, v20, s[76:79], {so} offen offset:{1280*i} {PFNT}")
    a("s_mov_b32 exec_hi, -1")
    srd(a, 48, 30, 640 * 1280)
    srd(a, 52, 24, 640 * 1280)
    pf_rows(a, 20, 1280, "s60", "s61")
    a("s_lshl_b32 s56, s5, 5\ns_add_u32 s57, s56, s4")
    a(f"s_mul_i32 s68, s57, 6720\ns_add_u32 s68, s68, {WS_KVP}")
    a("s_lshl_b32 s56, s5, 9\ns_lshr_b32 s8, s4, 3\ns_lshl_b32 s8, s8, 7\ns_and_b32 s57, s4, 7\ns_lshl_b32 s57, s57, 2\ns_add_u32 s57, s57, s8\ns_add_u32 s57, s57, s56")
    a("v_lshrrev_b32 v19, 3, v0\nv_lshlrev_b32 v19, 7, v19\nv_and_b32 v21, 7, v0\nv_lshl_add_u32 v19, v21, 2, v19")
    bar(a)
    bar(a); call(a, B_, LK)
    bar(a); call(a, B_, LK)
    a("s_waitcnt vmcnt(19)"); bar(a); call(a, B_, LK)
    b_phase("L1")
    a("s_mov_b32 exec_hi, 0x3ffff")
    for i, (sr, so) in enumerate(((48, "s60"), (48, "s61"), (52, "s60"), (52, "s61"))):
        a(f"buffer_load_dword v{32+i}, v20, s[{sr}:{sr+3}], {so} offen {PFNT}")
    a("s_mov_b32 exec_hi, -1")
    bar(a)
    bar(a)
    for i in range(7):
        a(f"ds_read_b128 v[{44+4*i}:{47+4*i}], v18 offset:{LPART+1024*i}")
    a("s_add_u32 s8, s68, 4096")
    a("s_waitcnt lgkmcnt(0)")
    for i in range(6):
        a(f"buffer_store_dwordx4 v[{44+4*i}:{47+4*i}], v18, s[40:43], {'s68' if i < 4 else 's8'} offen offset:{1024*(i%4)} sc1")
    a("s_mov_b32 exec_hi, 15")
    a("buffer_store_dwordx4 v[68:71], v18, s[40:43], s8 offen offset:2048 sc1")
    a("s_mov_b32 exec_hi, -1")
    a("s_mov_b32 s12, 0")
    a("s_waitcnt vmcnt(0)")
    a(f"s_add_u32 s8, s57, {FL_P}")
    publish(a, "s8", "v30", "v31")
    bar(a)
    call(a, "L_issueWo", LK); bar(a)
    call(a, "L_issueWo", LK); bar(a)
    a(f"s_add_u32 s8, s56, {FL_P}")
    poll(a, "s8", 32)
    a(f"""
    v_lshrrev_b32 v30, 4, v0
    v_mul_u32_u24 v30, {8*6720}, v30
    v_and_b32 v31, 15, v0
    v_lshl_add_u32 v30, v31, 4, v30
    s_mul_i32 s8, s5, {32*6720}
    s_mul_i32 s9, s4, 224
    s_add_u32 s8, s8, s9
    s_add_u32 s8, s8, {WS_KVP}
    """)
    for i in range(8):
        a(f"buffer_load_dwordx4 v[{44+4*i}:{47+4*i}], v30, s[40:43], s8 offen sc1")
        a("s_add_u32 s8, s8, 6720")
    bar(a)
    a("s_waitcnt vmcnt(0)")
    for half in (4, 2, 1):
        for i in range(half):
            for j in (0, 2):
                a(f"v_pk_add_f32 v[{44+4*i+j}:{45+4*i+j}], v[{44+4*i+j}:{45+4*i+j}], v[{44+4*(i+half)+j}:{45+4*(i+half)+j}]")
    for op in ("v_permlane32_swap_b32", "v_permlane16_swap_b32"):
        for j in range(4): a(f"v_mov_b32 v{48+j}, v{44+j}")
        a("s_nop 1")
        for j in range(4): a(f"{op} v{44+j}, v{48+j}")
        a("s_nop 1")
        for j in range(4): a(f"v_add_f32 v{44+j}, v{44+j}, v{48+j}")
    a(f"""
    v_cvt_pk_bf16_f32 v44, v44, v45
    v_cvt_pk_bf16_f32 v45, v46, v47
    v_lshlrev_b32 v31, 3, v31
    s_lshl_b32 s8, s5, 12
    s_mul_i32 s9, s4, 112
    s_add_u32 s8, s8, s9
    s_add_u32 s8, s8, {WS_KVZ}
    s_cmp_lt_u32 s4, 30
    s_cselect_b32 exec_lo, 0x3fff, 0
    s_mov_b32 exec_hi, 0
    buffer_store_dwordx2 v[44:45], v31, s[40:43], s8 offen sc1
    s_mov_b64 exec, -1
    s_waitcnt vmcnt(0)
    """)
    a(f"s_add_u32 s8, s57, {FL_R}")
    publish(a, "s8", "v30", "v31")
    bar(a)
    call(a, "L_issueWo", LK); bar(a)
    a(f"s_add_u32 s8, s56, {FL_R}")
    poll(a, "s8", 30)
    a(f"s_lshl_b32 s8, s5, 12\ns_add_u32 s8, s8, {WS_KVZ}\ns_mov_b32 m0, {LKVZ}\ns_nop 0")
    for i in range(4):
        a(f"buffer_load_dwordx4 v18, s[40:43], s8 offen offset:{1024*i} sc1 lds")
    a("s_waitcnt vmcnt(0)")
    bar(a)
    call(a, "L_issueWo", LK); bar(a)
    srd(a, 48, 24, 640 * 1280)
    a("s_mov_b32 s12, 0")
    bar(a)
    a("s_waitcnt vmcnt(0)")
    bar(a); bar(a)
    bar(a); bar(a)
    call(a, "L_issueWo", LK); bar(a)
    call(a, "L_issueWo", LK); bar(a)
    a("s_waitcnt vmcnt(38)")
    call(a, "L_issueWo", LK)
    a("s_waitcnt vmcnt(38)"); bar(a)
    call(a, "L_issueWo", LK)
    a("s_waitcnt vmcnt(50)"); bar(a)
    a("s_waitcnt vmcnt(25)"); bar(a)
    a("s_waitcnt vmcnt(0)"); bar(a)
    tr_dump(a)
    a.label("L_end")
    a("s_endpgm")
    a.label("L_issueA")
    issue_x(a, 44, "s13", "s12")
    issue_w(a, 48, 3, 1280, "s65", "s12", IMG_W)
    wrap_inc(a, "s11", 1, 10); wrap_inc(a, "s12", HS, 6 * HS)
    a("s_setpc_b64 s[62:63]")
    a.label("L_issueB")
    issue_x(a, 72, "s13", "s12")
    issue_w(a, 76, 8, 3840, "s66", "s12", IMG_W)
    issue_w(a, 76, 13, 3840, "s67", "s12", IMG_KV, periods=2, rows_per_period=16)
    wrap_inc(a, "s11", 1, 10); wrap_inc(a, "s12", SLOT, 3 * SLOT)
    a("s_setpc_b64 s[62:63]")
    def lin(n):
        a("s_mov_b32 m0, s61")
        a("s_nop 0")
        for i in range(n):
            if i % 4 == 0 and i > 0:
                a("s_add_u32 m0, m0, 4096")
                a("s_add_u32 s14, s14, 4096")
            a(f"buffer_load_dwordx4 v18, s[40:43], s14 offen offset:{1024*(i%4)} sc1 lds")
    a.label("L_issueKV")
    a(f"s_mul_i32 s14, s60, {CH}")
    a(f"s_add_u32 s14, s14, {WS_KV}")
    lin(11)
    a("s_add_u32 s60, s60, 1\ns_and_b32 s60, s60, 15")
    wrap_inc(a, "s61", CH, LKV + 4 * CH, LKV)
    a("s_setpc_b64 s[62:63]")
    a.label("L_issueP")
    a("s_mul_i32 s14, s69, 20480")
    a("s_add_u32 s14, s14, s13")
    lin(20)
    a("s_add_u32 s69, s69, 1\ns_and_b32 s69, s69, 3")
    wrap_inc(a, "s61", 20480, LX + 3 * 20480, LX)
    a("s_setpc_b64 s[62:63]")
    a.label("L_issueWo")
    a(f"s_mul_i32 s14, s69, {160*1280}")
    a("s_add_u32 s14, s14, s64")
    a("s_mov_b32 m0, s12")
    a("s_mov_b32 s15, 0")
    a.label("L_wo_g")
    for p in range(5):
        dma(a, f"v{80+p}", 48, "s14")
        a("s_add_u32 m0, m0, 1024")
        if p < 4: a("s_nop 0")
    a(f"s_add_u32 s14, s14, {32*1280}")
    a("s_add_u32 s15, s15, 1\ns_cmp_lt_u32 s15, 5\ns_cbranch_scc1 L_wo_g")
    a("s_add_u32 s69, s69, 1\ns_and_b32 s69, s69, 3")
    a("s_add_u32 s12, s12, 25600")
    a("s_setpc_b64 s[62:63]")
    gemm_setup_sub(a); phi_sub(a); tile_to_lds_sub(a)
    gemm_sub(a, "gemmR", "R")
    gemm_sub(a, "gemmC", "C")
    a.label("L_codeend")

def main(out):
    a = Asm()
    a.lines.append(f"; @launch grid=(256,1,1) block=(640,1,1) lds={LDS_TOTAL}")
    a('.amdgcn_target "amdgcn-amd-amdhsa--gfx950"')
    a(".text")
    gen(a)
    a('.section .rodata,"a"')
    open(out, "w").write(a.text() + descriptor(NAME + "_kernel", NV, 102))

if __name__ == "__main__":
    main(sys.argv[1] if len(sys.argv) > 1 else f"cdna_kernels/{NAME}.s")
```

```python
import sys, struct, os
from asmlib import *

NAME = "concat_heads__grouped_kv_mqa__linear_attn_block__prompt"
STAMP = bool(os.environ.get("STAMP"))
OPT = dict(kv.split("=") for kv in os.environ.get("OPT", "").split(",") if kv)
PF = int(OPT.get("pf", 1))
PFNT = "nt" if int(OPT.get("pfnt", 0)) else ""
DNT = "nt" if int(OPT.get("dnt", 0)) else ""
ONT = OPT.get("ont", "")
WS_OA, WS_OB, WS_KV, WS_KVP, WS_KVZ = 0x0, 0x280000, 0x500000, 0x540000, 0x700000
FL_KV, FL_P, FL_R, FL_OB, FL_OA = 0x718000, 0x720000, 0x728000, 0x730000, 0x738000
WS_ST = 0x800000
WS_SIZE = 0x900000
TILE = 2816
CH = 4 * TILE
XBYTES = 2048 * 1280
SLOT = 38912
HS = SLOT // 2
IMG_W, IMG_KV = 8192, 18432
LKV = 3 * SLOT
LMISC = 163840 - 16
LKVZ = 112640
LMX = LKV
LWKV = LKV + 20480
LFR, LPQ, LPART = SLOT, SLOT + 20480, 0
LX = 102400
LDS_TOTAL = 163840
SPIN_MAX = 1 << 17
def f32(x): return "0x%08x" % struct.unpack("<I", struct.pack("<f", x))[0]
LOG2E = 1.4426950408889634
CSCALE = LOG2E / (20 ** 0.5)

ACC = [4, 20]
FR = [36, 48, 60, 72]
AW, AX = 84, 92
T = 96
QA, QB, PQA, PQB = 108, 112, 114, 118
OAD0, OAD1 = 120, 121
aKA, aKB, aV0, aV1 = 122, 123, 124, 125
PWR = 126
JA, JB = 130, 131
QF0, QF1 = 132, 133
AP0, AP1 = 134, 135
tW1, tW2, tX1, tX2, tO = 136, 137, 138, 139, 140
TL0, TL1 = 141, 142
NV = 160
LQ = 2 * SLOT
MASKS = [92, 94, 98, 100]
S0, S1, PP, OO, KA, KB, V0, V1 = 4, 20, 36, 144, 60, 64, 68, 72
T2 = 80
POS = [[0, 1, 3, 4, 2], [1, 2, 0, 3, 4], [2, 3, 4, 0, 1], [3, 4, 0, 2, 1]]
INV = [[POS[r].index(p) for p in range(5)] for r in range(4)]
def pack3(tab):
    x = 0
    for r in range(4):
        for j in range(5): x |= tab[r][j] << (3 * (5 * r + j))
    return x

def tr(a):
    if not STAMP: return
    a("""
    s_waitcnt lgkmcnt(0)
    s_sub_u32 s90, s88, s84
    s_memtime s[88:89]
    s_mov_b32 m0, s85
    s_add_u32 s85, s85, 1
    v_writelane_b32 v40, s90, m0
    """)
def tr_init(a):
    if STAMP: a("s_mov_b32 s85, 0\nv_mov_b32 v40, 0\ns_mov_b32 s88, s84")
def tr_dump(a):
    if not STAMP: return
    tr(a)
    a(f"""
    s_lshl_b32 s8, s2, 1
    s_add_u32 s8, s8, s10
    s_lshl_b32 s8, s8, 8
    s_add_u32 s8, s8, {WS_ST + 0x40000}
    v_lshlrev_b32 v8, 2, v0
    buffer_store_dword v40, v8, s[40:43], s8 offen
    """)
def stamp_end(a):
    if not STAMP: return
    a(f"""
    s_memtime s[12:13]
    s_waitcnt vmcnt(0)
    s_memtime s[88:89]
    s_memrealtime s[90:91]
    s_waitcnt lgkmcnt(0)
    s_mov_b64 exec, -1
    s_sub_u32 s88, s88, s84
    s_sub_u32 s12, s12, s84
    v_mov_b32 v4, s86
    v_mov_b32 v5, s90
    v_mov_b32 v6, s88
    v_mov_b32 v7, s12
    s_lshl_b32 s8, s2, 4
    s_add_u32 s8, s8, s3
    s_lshl_b32 s8, s8, 4
    s_add_u32 s8, s8, {WS_ST}
    v_mov_b32 v8, 0
    buffer_store_dwordx4 v[4:7], v8, s[40:43], s8 offen
    """)
def gs(a, idx, t0="v106", t1="v107"):
    if not STAMP: return
    a(f"""
    s_memrealtime s[14:15]
    s_waitcnt lgkmcnt(0)
    v_mov_b32 {t0}, s14
    s_lshl_b32 s14, s2, 6
    s_add_u32 s14, s14, {WS_ST + 0x80000 + 4*idx}
    v_mov_b32 {t1}, 0
    buffer_store_dword {t0}, {t1}, s[40:43], s14 offen
    """)
def bar(a):
    a("s_barrier"); tr(a)

def dma(a, voff, srdi, soff, extra=""):
    a(f"buffer_load_dwordx4 {voff}, s[{srdi}:{srdi+3}], {soff} offen {extra} lds")

def issue_x(a, srdi, sbase, lds_sgpr):
    a(f"s_lshl_b32 s14, s11, 7")
    a(f"s_add_u32 s14, s14, {sbase}")
    a(f"s_lshl_b32 s15, s10, 10")
    a(f"s_add_u32 m0, s15, {lds_sgpr}")
    a("s_nop 0")
    for jj in range(4):
        dma(a, "v2", srdi, "s14", DNT)
        if jj < 3:
            a("s_add_u32 m0, m0, 2048")
            a("s_add_u32 s14, s14, 20480")

def issue_w(a, srdi, voffs, ld, sbase, lds_sgpr, ldsoff, periods=1, rows_per_period=32):
    a(f"s_mul_i32 s14, s11, {64*ld}")
    a(f"s_add_u32 s14, s14, {sbase}")
    a(f"s_mul_i32 s15, s10, {5120*periods}")
    a(f"s_add_u32 s15, s15, {lds_sgpr}")
    a(f"s_add_u32 m0, s15, {ldsoff}")
    a("s_nop 0")
    for per in range(periods):
        for p in range(5):
            dma(a, f"v{voffs+p}", srdi, "s14", DNT)
            if not (per == periods - 1 and p == 4):
                a("s_add_u32 m0, m0, 1024")
                a(f"s_add_u32 s14, s14, {rows_per_period*ld}" if p == 4 else "s_nop 0")

def wrap_inc(a, reg, step, limit, base=0):
    a(f"s_add_u32 {reg}, {reg}, {step}")
    a(f"s_cmp_eq_u32 {reg}, {limit}")
    a(f"s_cselect_b32 {reg}, {base}, {reg}")

def poll(a, soff, nlanes, tmp="v30", addr="v19"):
    lp, dn = a.newlabel("Lpoll"), a.newlabel("Lpd")
    if nlanes < 64:
        m = (1 << nlanes) - 1
        a(f"s_mov_b32 exec_lo, {m & 0xffffffff:#x}")
        a(f"s_mov_b32 exec_hi, {m >> 32:#x}")
    a("s_mov_b32 s9, 0")
    a.label(lp)
    a(f"buffer_load_dword {tmp}, {addr}, s[40:43], {soff} offen sc1")
    a("s_add_u32 s9, s9, 1")
    a("s_waitcnt vmcnt(0)")
    a(f"v_cmp_ne_u32 vcc, s96, {tmp}")
    a(f"s_cmp_gt_u32 s9, {SPIN_MAX}")
    a(f"s_cbranch_scc1 {dn}")
    a(f"s_cbranch_vccz {dn}")
    a("s_sleep 1")
    a(f"s_branch {lp}")
    a.label(dn)
    if nlanes < 64:
        a("s_mov_b64 exec, -1")

def publish(a, soff, tmp, zero):
    a(f"v_mov_b32 {tmp}, s96")
    a(f"v_mov_b32 {zero}, 0")
    a("s_mov_b64 exec, 1")
    a(f"buffer_store_dword {tmp}, {zero}, s[40:43], {soff} offen sc1")
    a("s_mov_b64 exec, -1")

def get_nonce(a, tmp, addr):
    a(f"v_mov_b32 {addr}, {LMISC}")
    a(f"ds_read_b32 {tmp}, {addr}")
    a("s_waitcnt lgkmcnt(0)")
    a(f"v_readfirstlane_b32 s96, {tmp}")

def gemm_setup_sub(a):
    a.label("g_setupB")
    a(f"""
    s_lshl_b32 s8, s78, 6
    s_add_u32 s8, s8, {IMG_KV}
    s_add_u32 s9, s76, {IMG_W}
    s_sub_u32 s64, s77, s76
    s_cmp_lt_u32 s3, 3
    s_cselect_b32 s60, s9, s8
    s_cselect_b32 s64, s64, 32
    s_mov_b32 s61, 320
    s_cselect_b32 s61, 160, s61
    s_mov_b32 s65, 0
    """)
    a.label("g_setup")
    a(f"""
    v_lshrrev_b32 v{T}, 5, v0
    v_lshlrev_b32 v{T+1}, 3, v{T}
    v_bfe_u32 v{T+2}, v0, 2, 2
    v_add_u32 v{T+1}, v{T+1}, v{T+2}
    v_mul_u32_u24 v{T+1}, s61, v{T+1}
    v_bfe_u32 v{T+2}, v0, 4, 1
    v_mul_u32_u24 v{T+2}, s64, v{T+2}
    v_and_b32 v{T+3}, 3, v0
    v_lshlrev_b32 v{T+3}, 3, v{T+3}
    v_add3_u32 v{T+1}, v{T+1}, v{T+2}, v{T+3}
    v_add_u32 v{AW}, s60, v{T+1}
    s_lshl_b32 s66, s61, 2
    s_mul_i32 s67, s61, 12
    """)
    for j in range(1, 8):
        a(f"v_add_u32 v{AW+j}, {'s66' if j & 1 else 's67'}, v{AW+j-1}")
    a(f"""
    v_and_b32 v{T+1}, 31, v0
    v_bfe_u32 v{T+2}, v0, 1, 3
    v_xor_b32 v{T+2}, v{T+2}, v{T}
    v_lshlrev_b32 v{T+2}, 4, v{T+2}
    v_lshl_or_b32 v{T+1}, v{T+1}, 7, v{T+2}
    v_add_u32 v{AX}, s65, v{T+1}
    """)
    for st in range(1, 4):
        a(f"v_xor_b32 v{AX+st}, {32*st}, v{AX}")
    a("s_setpc_b64 s[58:59]")

def zero_acc(a):
    for i in range(0, 32, 2):
        a(f"v_pk_mov_b32 v[{ACC[0]+i}:{ACC[0]+i+1}], 0, 0") if False else None
    for i in range(32): a(f"v_mov_b32 v{ACC[0]+i}, 0")

def gemm_sub(a, name, orient):
    def rd(st, i):
        f = FR[st]
        if i < 2: a(f"ds_read_b64_tr_b16 v[{f+2*i}:{f+2*i+1}], v{AW+2*st+i}")
        else: a(f"ds_read_b128 v[{f+4*(i-1)}:{f+4*(i-1)+3}], v{AX+st} offset:{4096*(i-2)}")
    def mf(st, blk):
        f = FR[st]
        w, x, ac = v(f, 4), v(f + 4 + 4 * blk, 4), v(ACC[blk], 16)
        a(f"v_mfma_f32_32x32x16_bf16 {ac}, {w}, {x}, {ac}" if orient == "R" else f"v_mfma_f32_32x32x16_bf16 {ac}, {x}, {w}, {ac}")
    a(".p2align 3")
    a.label(name)
    for st in (0, 1, 2):
        for i in range(4): rd(st, i)
    a("s_mov_b32 s56, 0")
    a(f"s_branch {name}_mid")
    a.label(name + "_loop")
    a("s_waitcnt lgkmcnt(0)")
    a("s_barrier")
    seq = [(st, i) for st in (0, 1, 2) for i in range(4)]
    for n, (st, blk) in enumerate(((2, 0), (2, 1), (3, 0), (3, 1))):
        mf(st, blk)
        for x in seq[3 * n:3 * n + 3]: rd(*x)
    a.label(name + "_mid")
    a("s_add_u32 s68, s68, 1\ns_cmp_eq_u32 s68, s69\ns_cselect_b32 s8, s74, s70\ns_cselect_b32 s68, 0, s68")
    a("s_add_u32 s56, s56, 1")
    a("s_waitcnt lgkmcnt(8)")
    mf(0, 0); rd(3, 0); rd(3, 1)
    a("s_add_u32 s71, s71, 1\ns_cmp_eq_u32 s71, s72")
    mf(0, 1); rd(3, 2); rd(3, 3)
    a("s_cselect_b32 s9, s75, s73\ns_cselect_b32 s71, 0, s71")
    a("s_cmp_lt_u32 s56, 10")
    a("s_waitcnt lgkmcnt(8)")
    mf(1, 0)
    for j in range(6): a(f"v_add_u32 v{AW+j}, s8, v{AW+j}")
    mf(1, 1)
    for j in range(6, 8): a(f"v_add_u32 v{AW+j}, s8, v{AW+j}")
    for j in range(4): a(f"v_add_u32 v{AX+j}, s9, v{AX+j}")
    a(f"s_cbranch_scc1 {name}_loop")
    a("s_waitcnt lgkmcnt(4)")
    mf(2, 0); mf(2, 1)
    a("s_waitcnt lgkmcnt(0)")
    mf(3, 0); mf(3, 1)
    a("s_nop 10")
    a("s_setpc_b64 s[62:63]")

def ringW(a, idx, n, st): a(f"s_mov_b32 s68, {idx}\ns_mov_b32 s69, {n}\ns_mov_b32 s70, {st}\ns_mov_b32 s74, {st - n*st}")
def ringX(a, idx, n, st): a(f"s_mov_b32 s71, {idx}\ns_mov_b32 s72, {n}\ns_mov_b32 s73, {st}\ns_mov_b32 s75, {st - n*st}")

def phi_sub(a):
    a.label("g_phi")
    a(f"s_mov_b32 s8, {f32(LOG2E)}")
    a(f"s_mov_b32 s9, {f32(1e-6)}")
    for n, r0 in enumerate((4, 8, 20, 24, 12, 16, 28, 32)):
        if n == 4:
            a("s_cmp_eq_u32 s3, 2\ns_cbranch_scc1 g_pack")
        for i in (0, 2): a(f"v_pk_mul_f32 v[{T+i}:{T+i+1}], v[{r0+i}:{r0+i+1}], s[8:9] op_sel_hi:[1,0]")
        for i in range(4): a(f"v_exp_f32_e64 v{T+i}, v{T+i} clamp")
        for i in range(4): a(f"v_max_f32 v{r0+i}, s9, v{r0+i}")
        for i in (0, 2): a(f"v_pk_add_f32 v[{r0+i}:{r0+i+1}], v[{r0+i}:{r0+i+1}], v[{T+i}:{T+i+1}]")
    a.label("g_pack")
    a("s_mov_b64 exec, -1")
    for i in range(16):
        a(f"v_cvt_pk_bf16_f32 v{ACC[0]+i}, v{ACC[0]+2*i}, v{ACC[0]+2*i+1}")
    a("s_setpc_b64 s[58:59]")

def tile_to_lds_sub(a):
    a.label("g_t2l")
    for half in range(2):
        if half == 1:
            a("s_cmp_eq_u32 s3, 2\ns_cbranch_scc1 g_t2l_end")
        for blk in range(2):
            for q in range(2):
                d = ACC[0] + 8 * blk + 4 * half + 2 * q
                a(f"ds_write_b64 v{TL0+half}, v[{d}:{d+1}] offset:{5120*blk + 16*q}")
    a.label("g_t2l_end")
    a("s_setpc_b64 s[58:59]")

def read_qfrag(a, qa, qb):
    a(f"ds_read2_b64 v[{qa}:{qa+3}], v{QF1} offset0:0 offset1:1")
    a(f"ds_read_b64 v[{qb}:{qb+1}], v{QF0} offset:32")

def o_epilogue(a, O, wsoff, eps):
    if eps:
        a(f"v_add_f32 v{O+12}, {f32(1e-6)}, v{O+12}")
    a(f"v_rcp_f32 v{O+12}, v{O+12}")
    a(f"s_add_u32 s8, s81, {wsoff}")
    a(f"s_add_u32 s9, s82, {wsoff}")
    for i in range(0, 12, 2):
        a(f"v_pk_mul_f32 v[{O+i}:{O+i+1}], v[{O+i}:{O+i+1}], v[{O+12}:{O+13}] op_sel_hi:[1,0]")
    for i in range(6):
        a(f"v_cvt_pk_bf16_f32 v{O+i}, v{O+2*i}, v{O+2*i+1}")
    a(f"buffer_store_dwordx4 v[{O}:{O+3}], v{OAD1}, s[40:43], s8 offen sc1")
    a("s_mov_b32 exec_hi, 0")
    a(f"buffer_store_dwordx2 v[{O+4}:{O+5}], v{OAD0}, s[40:43], s9 offen sc1")
    a("s_mov_b32 exec_hi, -1")

def rowmax(a, S, dst, first=True):
    regs = [f"v{S+i}" for i in range(16)]
    if first:
        a(f"v_max3_f32 v{dst}, {regs[0]}, {regs[1]}, {regs[2]}")
        rest = regs[3:]
    else:
        rest = regs
    while len(rest) >= 2:
        a(f"v_max3_f32 v{dst}, v{dst}, {rest[0]}, {rest[1]}")
        rest = rest[2:]
    if rest:
        a(f"v_max_f32 v{dst}, v{dst}, {rest[0]}")

def set_m(a, m, tmp, keep=None):
    a(f"""
    v_mov_b32 v{tmp}, v{m}
    s_nop 1
    v_permlane32_swap_b32 v{m}, v{tmp}
    s_nop 1
    v_max_f32 v{keep if keep else m}, v{m}, v{tmp}
    s_mov_b32 exec_lo, 0
    v_sub_f32 v{m}, 0, v{keep if keep else m}
    v_and_b32 v{tmp}, 0xffff0000, v{m}
    v_sub_f32 v{m}, v{m}, v{tmp}
    v_lshrrev_b32 v{QB}, 16, v{tmp}
    v_and_b32 v{tmp}, 0xffff0000, v{m}
    v_sub_f32 v{m}, v{m}, v{tmp}
    v_or_b32 v{QB}, v{QB}, v{tmp}
    v_lshrrev_b32 v{QB+1}, 16, v{m}
    s_mov_b32 exec_lo, -1
    """)

def pf_rows(a, vd, ld, s0, s1):
    a(f"""
    v_mul_u32_u24 v{vd}, 52429, v0
    v_lshrrev_b32 v{vd}, 18, v{vd}
    v_mul_u32_u24 v{vd+1}, 5, v{vd}
    v_sub_u32 v{vd+1}, v0, v{vd+1}
    v_mul_u32_u24 v{vd}, {ld}, v{vd}
    v_lshl_add_u32 v{vd}, v{vd+1}, 7, v{vd}
    s_mul_i32 {s0}, s7, {20*ld}
    s_and_b32 s8, s6, 1
    s_mul_i32 s8, s8, 640
    s_add_u32 {s0}, {s0}, s8
    s_add_u32 {s1}, {s0}, {10*ld}
    """)
def pf_x(a, srdi, vaddr, vd):
    a(f"""
    s_lshr_b32 s8, s6, 1
    s_mul_i32 s8, s8, {512*1280}
    s_mul_i32 s9, s7, 20480
    s_add_u32 s8, s8, s9
    s_add_u32 s9, s8, 8192
    buffer_load_dword v{vd}, {vaddr}, s[{srdi}:{srdi+3}], s8 offen {PFNT}
    buffer_load_dword v{vd+1}, {vaddr}, s[{srdi}:{srdi+3}], s9 offen {PFNT}
    s_add_u32 s9, s8, 16384
    s_mov_b32 exec_hi, 0
    buffer_load_dword v{vd+2}, {vaddr}, s[{srdi}:{srdi+3}], s9 offen {PFNT}
    s_mov_b32 exec_hi, -1
    """)

def call(a, lbl, link="s[58:59]"):
    a(f"s_call_b64 {link}, {lbl}")

def precompute(a):
    a(f"""
    v_and_b32 v1, 31, v0
    v_lshrrev_b32 v2, 5, v0
    v_lshrrev_b32 v3, 2, v1
    v_add_u32 v3, 1, v3
    v_and_b32 v3, 2, v3
    v_mul_u32_u24 v3, 6, v3
    v_xor_b32 v3, v1, v3
    v_lshlrev_b32 v{OAD0}, 3, v0
    v_lshlrev_b32 v{OAD1}, 4, v0
    s_and_b32 s38, s3, 1
    s_lshr_b32 s39, s3, 1
    s_mov_b32 s76, 0
    s_mov_b32 s77, 128
    s_cmp_eq_u32 s3, 1
    s_cselect_b32 s76, 32, s76
    s_cselect_b32 s77, 64, s77
    s_cmp_eq_u32 s3, 2
    s_cselect_b32 s76, 96, s76
    s_cselect_b32 s77, 96, s77
    """)
    a("""
    s_sub_u32 s78, s3, 3
    s_lshl_b32 s78, s78, 2
    s_lshr_b32 s78, 0x20431, s78
    s_and_b32 s78, s78, 15
    """)
    call(a, "g_setupB")
    a(f"""
    v_add_u32 v{aKA}, {LKV}, v{OAD1}
    v_lshlrev_b32 v{aKB}, 3, v1
    v_add_u32 v{aKB}, {LKV+1024}, v{aKB}
    v_mul_u32_u24 v{aV0}, 320, v2
    v_lshl_add_u32 v{aV0}, v1, 4, v{aV0}
    v_add_u32 v{aV0}, {LKV+1280}, v{aV0}
    v_add_u32 v{aV1}, 640, v{aV0}
    v_mov_b32 v{AP0}, v3
    s_mov_b32 exec_lo, 0xfff00000
    s_mov_b32 exec_hi, 0xfff00000
    v_mov_b32 v{aV0}, {LKV+2560}
    v_mov_b32 v{aV1}, {LKV+2560}
    v_mov_b32 v{AP0}, 20
    s_mov_b32 exec_lo, 0
    s_mov_b32 exec_hi, -1
    v_mov_b32 v{aKB}, {LKV+2560}
    s_mov_b64 exec, -1
    s_mul_i32 s8, s39, 840
    s_add_u32 s8, s8, {LKVZ}
    v_mul_u32_u24 v{AP0}, 40, v{AP0}
    v_add_u32 v{AP0}, s8, v{AP0}
    v_lshl_add_u32 v{AP1}, v2, 4, v{AP0}
    s_lshl_b32 s10, s4, 3
    s_add_u32 s10, s10, s5
    s_lshl_b32 s10, s10, 1
    s_add_u32 s10, s10, s38
    s_mul_i32 s10, s10, 5120
    s_lshl_b32 s81, s39, 10
    s_add_u32 s81, s81, s10
    s_lshl_b32 s82, s39, 8
    s_add_u32 s82, s82, s10
    s_add_u32 s82, s82, 4096
    """)
    a(f"""
    s_mul_i32 s8, s38, 5120
    s_mul_i32 s9, s39, 40
    s_add_u32 s8, s8, s9
    s_add_u32 s8, s8, {LQ}
    v_mul_u32_u24 v{T}, 160, v1
    v_add_u32 v{QF0}, s8, v{T}
    v_lshl_add_u32 v{QF1}, v2, 4, v{QF0}
    v_lshl_add_u32 v{T}, v2, 3, v{T}
    v_add_u32 v{T}, {LQ}, v{T}
    v_add_u32 v{TL0}, s76, v{T}
    v_add_u32 v{TL1}, s77, v{T}
    """)
    a(f"""
    s_add_u32 s9, s3, 1
    s_lshr_b32 s9, s9, 1
    s_add_u32 s9, s9, 2
    s_sub_u32 s10, s3, 5
    s_cmp_ge_u32 s3, 5
    s_cselect_b32 s12, s10, s39
    s_cselect_b32 s13, 0, s9
    s_lshl_b32 s10, s12, 12
    s_lshl_b32 s9, s13, 12
    v_add_u32 v{JA}, s10, v{OAD1}
    v_add_u32 v{JB}, s9, v{OAD1}
    s_lshl_b32 s10, s12, 5
    s_lshl_b32 s9, s13, 5
    s_sub_u32 s9, s9, 80
    v_lshlrev_b32 v{T}, 2, v2
    v_add_u32 v{T}, s10, v{T}
    v_add_u32 v{T+1}, s9, v1
    v_and_b32 v{T+2}, 0xffff, v{T+1}
    v_mul_u32_u24 v{T+2}, 3277, v{T+2}
    v_lshrrev_b32 v{T+2}, 16, v{T+2}
    v_mul_u32_u24 v{T+3}, 80, v{T+1}
    s_cmp_ge_u32 s3, 5
    s_cbranch_scc1 PC_z
    """)
    for z in range(2):
        for q in range(4):
            m = MASKS[q]
            a(f"v_add_u32 v{T+4}, {8*q}, v{T}")
            a(f"v_mul_u32_u24 v{T+5}, 3277, v{T+4}")
            a(f"v_lshrrev_b32 v{T+5}, 16, v{T+5}")
            if z == 0:
                a(f"v_lshl_add_u32 v{PWR+q}, v{T+4}, 2, v{T+3}")
                a(f"v_cmp_eq_u32 s[{m}:{m+1}], v{T+5}, v{T+2}")
            else:
                a(f"v_add_u32 v{PWR+q}, 1, v{T+5}")
                a(f"v_mul_u32_u24 v{PWR+q}, 1600, v{PWR+q}")
                a(f"v_lshl_add_u32 v{PWR+q}, v{T+4}, 2, v{PWR+q}")
                a(f"v_cmp_gt_u32 s[{m}:{m+1}], 4, v{T+5}")
                a(f"s_and_b32 s{m}, s{m}, 1\ns_and_b32 s{m+1}, s{m+1}, 1")
        if z == 0:
            a("s_branch PC_zd")
            a.label("PC_z")
    a.label("PC_zd")
    pk = pack3(POS)
    a(f"""
    s_mul_i32 s80, s4, {64*2560}
    s_mul_i32 s8, s5, 160
    s_add_u32 s80, s80, s8
    s_add_u32 s80, s80, 1280
    v_bfe_u32 v{T}, v0, 2, 2
    v_and_b32 v{T+1}, 3, v0
    v_lshlrev_b32 v{T+1}, 3, v{T+1}
    v_mul_u32_u24 v{T+2}, 160, v{T}
    v_add_u32 v{T+1}, v{T+1}, v{T+2}
    v_bfe_u32 v{T+3}, v0, 4, 1
    s_lshl_b32 s8, s39, 1
    v_add_u32 v{T+2}, s8, v{T+3}
    s_cmp_ge_u32 s3, 4
    s_cbranch_scc0 PC_g
    v_mov_b32 v{T+2}, 4
    """)
    a.label("PC_g")
    a(f"""
    v_mad_u32_u24 v{T+2}, v{T}, 5, v{T+2}
    v_mul_u32_u24 v{T+2}, 3, v{T+2}
    s_mov_b32 s8, {pk & 0xffffffff:#x}
    s_mov_b32 s9, {pk >> 32:#x}
    v_lshrrev_b64 v[{T+4}:{T+5}], v{T+2}, s[8:9]
    v_and_b32 v{T+4}, 7, v{T+4}
    v_lshl_add_u32 v{T+1}, v{T+4}, 5, v{T+1}
    s_cbranch_scc1 PC_tz
    s_lshl_b32 s9, s39, 6
    s_add_u32 s80, s80, s9
    s_mul_i32 s10, s38, {32*2560}
    s_add_u32 s80, s80, s10
    s_mul_i32 s8, s38, 5120
    s_add_u32 s8, s8, {LX}
    v_mul_u32_u24 v{tW1}, 1280, v2
    v_add_u32 v{tW1}, v{tW1}, v{T+1}
    v_mul_u32_u24 v{tW2}, 3200, v2
    v_add_u32 v{tW2}, v{tW2}, v{T+1}
    v_add_u32 v{tW2}, 2560, v{tW2}
    v_add_u32 v{tX1}, s8, v{OAD1}
    v_add_u32 v{tX2}, s8, v{OAD0}
    v_mul_u32_u24 v{tO}, 2560, v1
    v_lshl_add_u32 v{tO}, v2, 4, v{tO}
    s_branch PC_td
    """)
    a.label("PC_tz")
    a(f"""
    s_sub_u32 s8, s3, 4
    s_mul_i32 s10, s8, {16*2560}
    s_add_u32 s80, s80, s10
    s_lshl_b32 s9, s38, 4
    s_lshr_b32 s8, s8, 1
    s_mul_i32 s8, s8, 5120
    s_add_u32 s8, s8, {LX}
    v_lshrrev_b32 v{T}, 4, v0
    v_mul_u32_u24 v{tW1}, 3200, v{T+3}
    v_mul_u32_u24 v{T+2}, 1280, v2
    v_add3_u32 v{tW1}, v{tW1}, v{T+2}, v{T+1}
    v_mul_u32_u24 v{tW2}, 3200, v{T}
    v_add_u32 v{tW2}, v{tW2}, v{T+1}
    v_add_u32 v{tW2}, 2560, v{tW2}
    v_and_b32 v{T+2}, 15, v0
    v_mul_u32_u24 v{tO}, 2560, v{T+2}
    v_lshl_add_u32 v{tO}, v{T}, 3, v{tO}
    v_add_u32 v{T+2}, s9, v{T+2}
    v_lshl_add_u32 v{T+4}, v{T}, 5, v{T+2}
    v_lshlrev_b32 v{tX2}, 3, v{T+4}
    v_add_u32 v{tX2}, s8, v{tX2}
    v_lshl_add_u32 v{T+4}, v2, 5, v{T+2}
    v_lshl_add_u32 v{T+4}, v{T+3}, 6, v{T+4}
    v_lshlrev_b32 v{tX1}, 4, v{T+4}
    v_add_u32 v{tX1}, s8, v{tX1}
    """)
    a.label("PC_td")

def gen(a):
    K = NAME + "_kernel"
    kernel_begin(a, K)
    if STAMP:
        a("s_memtime s[84:85]\ns_memrealtime s[86:87]")
    a(f"""
    s_cmp_ge_u32 s2, 256
    s_cbranch_scc1 L_end
    s_load_dwordx16 s[16:31], s[0:1], 0
    s_load_dwordx4 s[32:35], s[0:1], 64
    s_load_dwordx2 s[36:37], s[0:1], 80
    v_lshrrev_b32 v1, 6, v0
    v_and_b32 v0, 63, v0
    v_readfirstlane_b32 s3, v1
    {"s_lshr_b32 s6, s2, 5" if OPT.get("badmap") else "s_and_b32 s6, s2, 7"}
    {"s_and_b32 s7, s2, 31" if OPT.get("badmap") else "s_lshr_b32 s7, s2, 3"}
    s_lshr_b32 s4, s6, 1
    s_lshl_b32 s4, s4, 3
    s_lshr_b32 s8, s7, 2
    s_add_u32 s4, s4, s8
    s_and_b32 s5, s6, 1
    s_lshl_b32 s5, s5, 2
    s_and_b32 s8, s7, 3
    s_add_u32 s5, s5, s8
    s_and_b32 s8, s5, 1
    s_mul_i32 s8, s8, 5
    s_and_b32 s9, s5, 2
    s_add_u32 s8, s8, s9
    s_and_b32 s9, s4, 7
    s_add_u32 s11, s8, s9
    s_cmp_ge_u32 s11, 10
    s_cselect_b32 s8, 10, 0
    s_sub_u32 s11, s11, s8
    s_cmp_ge_u32 s3, 8
    s_cbranch_scc1 L_loader
    s_cmp_eq_u32 s3, 4
    s_cbranch_scc1 C_pf
    s_cmp_lg_u32 s3, 6
    s_cbranch_scc1 C_pre
    s_getpc_b64 s[44:45]
    """)
    a.label("L_pc")
    a(f"s_sub_u32 s44, s44, L_pc-{K}\ns_subb_u32 s45, s45, 0")
    a(f"s_mov_b32 s46, L_codeend-{K}\ns_mov_b32 s47, 0x20000")
    a("v_lshlrev_b32 v4, 7, v0\ns_mov_b32 s8, 0x2000\ns_mov_b32 s9, 0x4000")
    a("buffer_load_dword v5, v4, s[44:47], 0 offen\nbuffer_load_dword v6, v4, s[44:47], s8 offen\nbuffer_load_dword v7, v4, s[44:47], s9 offen")
    a("s_cmp_ge_u32 s2, 8\ns_cbranch_scc1 C_pre")
    a("s_memrealtime s[8:9]\ns_waitcnt lgkmcnt(0)\ns_or_b32 s8, s8, 1")
    srd(a, 44, 34, 256)
    a("v_mov_b32 v8, s8\nv_mov_b32 v9, 0\nv_mov_b32 v10, 0\ns_mov_b64 exec, 1")
    a("buffer_atomic_cmpswap v[8:9], v10, s[44:47], 0 offen sc1")
    a("s_mov_b64 exec, -1")
    a("s_branch C_pre")
    a.label("C_pf")
    if PF:
        pf_rows(a, 4, 1280, "s13", "s14")
        a("v_lshlrev_b32 v12, 7, v0")
        a("s_waitcnt lgkmcnt(0)")
        srd(a, 44, 16, XBYTES); srd(a, 48, 18, 640 * 1280)
        a(f"""
        s_mov_b32 exec_hi, 0x3ffff
        buffer_load_dword v6, v4, s[48:51], s13 offen {PFNT}
        buffer_load_dword v7, v4, s[48:51], s14 offen {PFNT}
        s_mov_b32 exec_hi, -1
        """)
        pf_x(a, 44, "v12", 8)
    a.label("C_pre")
    precompute(a)
    a("s_waitcnt lgkmcnt(0)")
    srd(a, 40, 36, WS_SIZE)
    ringW(a, 0, 6, HS); ringX(a, 0, 6, HS)
    a("s_cmp_lt_u32 s3, 3")
    a("s_cbranch_scc1 A_q")
    a("s_cmp_lg_u32 s3, 7")
    a("s_cbranch_scc1 A_bars")
    srd(a, 44, 34, 256)
    a("v_mov_b32 v10, 0")
    a(f"""
    v_and_b32 v20, 15, v0
    v_lshrrev_b32 v21, 4, v0
    v_xor_b32 v22, v20, v21
    v_lshlrev_b32 v22, 4, v22
    v_lshl_add_u32 v22, v20, 8, v22
    v_add_u32 v22, {LMX}, v22
    v_xor_b32 v23, 64, v22
    v_xor_b32 v24, 128, v22
    v_xor_b32 v25, 192, v22
    v_bfe_u32 v26, v0, 2, 2
    v_lshl_add_u32 v26, v21, 3, v26
    v_mul_u32_u24 v26, 40, v26
    v_and_b32 v27, 3, v0
    v_lshl_add_u32 v26, v27, 3, v26
    v_add_u32 v26, {LWKV}, v26
    s_lshl_b32 s12, s4, 1
    s_lshr_b32 s8, s5, 2
    s_add_u32 s12, s12, s8
    s_mul_i32 s12, s12, {TILE}
    s_add_u32 s12, s12, {WS_KV}
    s_bfe_u32 s13, s5, 0x10001
    s_lshl_b32 s55, s4, 5
    s_add_u32 s55, s55, s5
    s_lshl_b32 s55, s55, 2
    s_add_u32 s55, s55, {FL_KV}
    v_and_b32 v27, 1, v21
    s_mov_b32 s56, 0
    """)
    for i in list(range(12, 20)) + list(range(60, 84)): a(f"v_mov_b32 v{i}, 0")
    a("s_bitcmp1_b32 s5, 0")
    a("s_cbranch_scc1 M_v")
    def mini(lbl, orient):
        def mm(st):
            f = 36 + 12 * st
            for blk in range(2):
                x, w, ac = v(f, 4), v(f + 4 + 4 * blk, 4), v(12 + 4 * blk, 4)
                a(f"v_mfma_f32_16x16x32_bf16 {ac}, {w}, {x}, {ac}" if orient == "R" else f"v_mfma_f32_16x16x32_bf16 {ac}, {x}, {w}, {ac}")
        a("s_barrier")
        a("buffer_load_dword v11, v10, s[44:47], 0 offen sc1")
        a.label(lbl)
        for st in range(4):
            f = 36 + 12 * st
            a(f"ds_read_b128 v[{f}:{f+3}], v{22+st}")
            for blk in range(2):
                for hf in range(2):
                    d = f + 4 + 4 * blk + 2 * hf
                    a(f"ds_read_b64_tr_b16 v[{d}:{d+1}], v26 offset:{(32*st+4*hf)*40+32*blk}")
            a(f"v_add_u32 v{22+st}, 4096, v{22+st}")
            a("s_waitcnt lgkmcnt(10)")
            mm((st + 2) % 4)
        a("v_add_u32 v26, 5120, v26")
        a(f"s_add_u32 s56, s56, 1\ns_cmp_lt_u32 s56, 5\ns_cbranch_scc1 {lbl}")
        a("s_waitcnt lgkmcnt(5)"); mm(2)
        a("s_waitcnt lgkmcnt(0)"); mm(3)
        a("s_nop 7")
        for i in range(4): a(f"v_cvt_pk_bf16_f32 v{12+i}, v{12+2*i}, v{13+2*i}")
    a(f"""
    s_lshl_b32 s8, s13, 4
    v_add_u32 v20, s8, v20
    v_lshlrev_b32 v28, 4, v20
    v_lshl_add_u32 v28, v2, 9, v28
    v_lshl_add_u32 v28, v27, 3, v28
    v_lshlrev_b32 v29, 3, v20
    v_add_u32 v29, 1024, v29
    s_mov_b32 exec_lo, 0xffff0000
    v_lshlrev_b32 v29, 3, v1
    v_add_u32 v29, {2560-128}, v29
    s_mov_b32 exec_lo, -1
    """)
    mini("M_kl", "R")
    a("s_mov_b32 exec_lo, 0xffff0000")
    a("v_mov_b32 v14, 0x3f803f80\nv_mov_b32 v15, 0x3f803f80")
    a("s_mov_b32 exec_lo, -1")
    a("buffer_store_dwordx2 v[12:13], v28, s[40:43], s12 offen sc1")
    a("s_mov_b32 exec_hi, 0")
    a("buffer_store_dwordx2 v[14:15], v29, s[40:43], s12 offen sc1")
    a("s_branch M_done")
    a.label("M_v")
    a(f"""
    s_mul_i32 s8, s13, 640
    s_add_u32 s12, s12, s8
    v_lshrrev_b32 v28, 2, v20
    v_add_u32 v28, 1, v28
    v_and_b32 v28, 2, v28
    v_mul_u32_u24 v28, 6, v28
    v_xor_b32 v28, v20, v28
    v_mul_u32_u24 v29, 320, v27
    v_lshl_add_u32 v29, v2, 3, v29
    v_lshl_add_u32 v28, v28, 4, v29
    """)
    mini("M_vl", "C")
    a("buffer_store_dwordx2 v[12:13], v28, s[40:43], s12 offen offset:1280 sc1")
    a("s_mov_b32 exec_lo, 0x000f000f\ns_mov_b32 exec_hi, 0x000f000f")
    a("buffer_store_dwordx2 v[14:15], v28, s[40:43], s12 offen offset:1536 sc1")
    a.label("M_done")
    a("s_mov_b64 exec, -1")
    gs(a, 0)
    a("s_barrier\ns_barrier\ns_barrier")
    a("s_mov_b32 s9, 0")
    a.label("A_np")
    a("s_add_u32 s9, s9, 1")
    a("s_waitcnt vmcnt(0)")
    a("v_cmp_eq_u32 vcc, 0, v11")
    a(f"s_cmp_gt_u32 s9, {SPIN_MAX}\ns_cbranch_scc1 A_nd\ns_cbranch_vccz A_nd\ns_sleep 1")
    a("buffer_load_dword v11, v10, s[44:47], 0 offen sc1")
    a("s_branch A_np")
    a.label("A_nd")
    a("s_mov_b64 exec, 1")
    a("buffer_store_dword v11, v10, s[40:43], s55 offen sc1")
    a("s_mov_b64 exec, -1")
    a(f"v_mov_b32 v5, {LMISC}\nds_write_b32 v5, v11\ns_waitcnt lgkmcnt(0)")
    gs(a, 1)
    a("s_branch A_bars7")
    a.label("A_bars")
    for i in range(4): a("s_barrier")
    a.label("A_bars7")
    for i in range(7): a("s_barrier")
    a("s_waitcnt vmcnt(0)")
    a("s_branch A_done2")
    a.label("A_q")
    zero_acc(a)
    a("s_barrier\ns_barrier")
    call(a, "gemmR", "s[62:63]")
    a(f"s_mov_b32 s8, {f32(CSCALE)}")
    for i in range(0, 32, 2):
        a(f"v_pk_mul_f32 v[{ACC[0]+i}:{ACC[0]+i+1}], v[{ACC[0]+i}:{ACC[0]+i+1}], s[8:9] op_sel_hi:[1,0]")
    call(a, "g_pack")
    call(a, "g_t2l")
    a.label("A_done")
    call(a, "g_setupB")
    a.label("A_done2")
    def rdKA(t): a(f"ds_read_b128 v[{KA}:{KA+3}], v{aKA} offset:{(t%16)*TILE}")
    def rdKB(t): a(f"ds_read_b64 v[{KB}:{KB+1}], v{aKB} offset:{(t%16)*TILE}")
    def rdV0(t): a(f"ds_read_b128 v[{V0}:{V0+3}], v{aV0} offset:{(t%16)*TILE}")
    def rdV1(t): a(f"ds_read_b128 v[{V1}:{V1+3}], v{aV1} offset:{(t%16)*TILE}")
    def qka(S): a(f"v_mfma_f32_32x32x16_bf16 v[{S}:{S+15}], v[{KA}:{KA+3}], v[{QA}:{QA+3}], 0")
    def qkb(S): a(f"v_mfma_f32_32x32x8_bf16 v[{S}:{S+15}], v[{KB}:{KB+1}], v[{QB}:{QB+1}], v[{S}:{S+15}]")
    def pv0(): a(f"v_mfma_f32_32x32x16_bf16 v[{OO}:{OO+15}], v[{V0}:{V0+3}], v[{PP}:{PP+3}], v[{OO}:{OO+15}]")
    def pv1(): a(f"v_mfma_f32_32x32x16_bf16 v[{OO}:{OO+15}], v[{V1}:{V1+3}], v[{PP+4}:{PP+7}], v[{OO}:{OO+15}]")
    def E(S, g, lo=0, hi=4, e64=False):
        for i in range(lo, hi): a(f"v_exp_f32{'_e64' if e64 else ''} v{S+4*g+i}, v{S+4*g+i}")
    def C(S, g):
        for i in range(2): a(f"v_cvt_pk_bf16_f32 v{PP+2*g+i}, v{S+4*g+2*i}, v{S+4*g+2*i+1}")
    for i in range(16): a(f"v_mov_b32 v{OO+i}, 0")
    for i in range(4): a(f"v_mov_b32 v{PP+4+i}, 0")
    for i in range(4): a(f"v_mov_b32 v{V1+i}, 0")
    a("s_mov_b32 s57, 0")
    a("s_waitcnt lgkmcnt(0)\ns_barrier")
    read_qfrag(a, QA, QB)
    rdKA(0); rdKB(0); rdV0(0)
    a(f"s_mov_b32 s8, {LPQ - LQ}")
    for r in (QF0, QF1, TL0, TL1): a(f"v_add_u32 v{r}, s8, v{r}")
    a("s_mov_b32 exec_lo, 0")
    a("s_waitcnt lgkmcnt(1)")
    a(f"v_mov_b32 v{QB}, 0\nv_mov_b32 v{QB+1}, 0")
    a("s_mov_b32 exec_lo, -1")
    qka(S0); qkb(S0)
    rdKA(1); rdKB(1)
    a("s_nop 9")
    M0, M1, M2 = 36, 37, 38
    rowmax(a, S0, M0)
    set_m(a, M0, M1, keep=M2)
    for i in range(16): a(f"v_sub_f32 v{S0+i}, v{S0+i}, v{M2}")
    a("s_waitcnt lgkmcnt(0)")
    a("s_branch AT_loop")
    a.label("B_start")
    a("s_waitcnt lgkmcnt(0)")
    pv1()
    ringW(a, 0, 3, SLOT); ringX(a, 0, 3, SLOT)
    zero_acc(a)
    a("s_barrier")
    a("s_cmp_ge_u32 s3, 3")
    a("s_cbranch_scc1 B_kv")
    call(a, "gemmR", "s[62:63]")
    call(a, "g_phi")
    call(a, "g_t2l")
    a("s_branch B_jobs")
    a.label("B_kv")
    a("s_lshl_b32 s8, s78, 12")
    a(f"v_add_u32 v{TL0}, s8, v{OAD1}")
    call(a, "gemmC", "s[62:63]")
    a("s_cmp_ge_u32 s78, 3")
    a("s_cbranch_scc1 B_nophi")
    a("s_cmp_eq_u32 s78, 2")
    a("s_cselect_b32 s8, 0xffff, -1")
    a("s_mov_b32 exec_lo, s8\ns_mov_b32 exec_hi, s8")
    call(a, "g_phi")
    a("s_branch B_wr")
    a.label("B_nophi")
    call(a, "g_pack")
    a.label("B_wr")
    for ks in range(4):
        d = ACC[0] + 4 * ks
        a(f"ds_write_b128 v{TL0}, v[{d}:{d+3}] offset:{LFR+1024*ks}")
    a.label("B_jobs")
    rdKA(0); rdKB(0); rdV0(0)
    for i in range(4): a(f"v_mov_b32 v{PP+4+i}, 0")
    for i in range(4): a(f"v_mov_b32 v{V1+i}, 0")
    JAF, JBF = 76, 92
    a("s_cmp_lt_u32 s3, 5\ns_cbranch_scc1 B_noz")
    for i in range(16): a(f"v_mov_b32 v{JBF+i}, 0x3f803f80")
    a.label("B_noz")
    a("s_waitcnt lgkmcnt(0)")
    qka(S0); qkb(S0)
    rdKA(1); rdKB(1)
    a("s_barrier")
    for ks in range(4): a(f"ds_read_b128 v[{JAF+4*ks}:{JAF+4*ks+3}], v{JA} offset:{LFR+1024*ks}")
    a("s_cbranch_scc0 B_nob")
    for ks in range(4): a(f"ds_read_b128 v[{JBF+4*ks}:{JBF+4*ks+3}], v{JB} offset:{LFR+1024*ks}")
    a.label("B_nob")
    read_qfrag(a, PQA, PQB)
    a("s_waitcnt lgkmcnt(2)")
    for ks in range(4):
        c = "0" if ks == 0 else "v[20:35]"
        a(f"v_mfma_f32_32x32x16_bf16 v[20:35], v[{JAF+4*ks}:{JAF+4*ks+3}], v[{JBF+4*ks}:{JBF+4*ks+3}], {c}")
    a("s_mov_b32 exec_lo, 0")
    a("s_waitcnt lgkmcnt(0)")
    a(f"v_mov_b32 v{PQB}, 0\nv_mov_b32 v{PQB+1}, 0")
    a("s_nop 7")
    for q in range(4):
        a(f"s_mov_b64 exec, s[{MASKS[q]}:{MASKS[q]+1}]")
        a(f"ds_write_b128 v{PWR+q}, v[{20+4*q}:{23+4*q}] offset:{LPART}")
    a("s_mov_b64 exec, -1")
    a("s_waitcnt lgkmcnt(0)")
    a(".p2align 6")
    a.label("AT_loop")
    for n in range(16):
        Sc, Sn = (S0, S1) if n % 2 == 0 else (S1, S0)
        if n % 4 == 2:
            a("s_waitcnt vmcnt(0)\ns_barrier")
        qka(Sn); rdKA(n + 2); E(Sc, 0, 0, 3); a("s_waitcnt lgkmcnt(3)"); E(Sc, 0, 3, 4, True)
        pv1(); rdV1(n); C(Sc, 0); E(Sc, 1, 0, 3); a("s_waitcnt lgkmcnt(3)"); E(Sc, 1, 3, 4, True)
        qkb(Sn); rdKB(n + 2); C(Sc, 1); E(Sc, 2, 0, 3); a("s_waitcnt lgkmcnt(3)"); E(Sc, 2, 3, 4, True)
        pv0(); rdV0(n + 1); C(Sc, 2); E(Sc, 3, 0, 3); a("s_waitcnt lgkmcnt(3)"); E(Sc, 3, 3, 4, True); C(Sc, 3)
    a("s_add_u32 s57, s57, 1\ns_cmp_eq_u32 s57, 2\ns_cbranch_scc1 AT_loop")
    a("s_cmp_eq_u32 s57, 1\ns_cbranch_scc1 B_start")
    a("s_cmp_eq_u32 s57, 3\ns_cbranch_scc1 AT_apply")
    a("s_waitcnt lgkmcnt(0)")
    pv1()
    srd(a, 44, 32, 2048 * 2560)
    a("s_mov_b32 s83, 0\ns_mov_b32 s71, 0\ns_mov_b32 s72, 20480\ns_mov_b32 s73, -40960\ns_mov_b32 s74, 25600\ns_mov_b32 s75, -102400")
    a("s_nop 2")
    a(f"v_cmp_nge_f32 vcc, {f32(2.0**40)}, v{OO+12}")
    a("s_nop 1")
    a("s_cbranch_vccnz AT_fallback")
    a.label("AT_ok")
    o_epilogue(a, OO, WS_OA, False)
    a("s_cmp_ge_u32 s3, 4\ns_cbranch_scc1 TLz_job")
    F = [20 + 8 * i for i in range(10)]
    LA = 4
    def tl_head(pfx):
        a("s_cmp_lg_u32 s56, 2")
        a(f"s_cbranch_scc1 {pfx}_nv")
        a("s_waitcnt vmcnt(0)")
        a.label(pfx + "_nv")
        a("s_waitcnt lgkmcnt(0)")
        a("s_barrier")
    def tl_adv():
        a("s_add_u32 s71, s71, 1\ns_cmp_eq_u32 s71, 3\ns_cselect_b32 s8, s73, s72\ns_cselect_b32 s71, 0, s71")
        a(f"v_add_u32 v{tW1}, s74, v{tW1}\nv_add_u32 v{tW2}, s74, v{tW2}\nv_add_u32 v{tX1}, s8, v{tX1}\nv_add_u32 v{tX2}, s8, v{tX2}")
        a("s_add_u32 s56, s56, 1\ns_cmp_lt_u32 s56, 4")
    def mrd(st):
        f = F[st]; t, H = divmod(st, 5)
        if H < 4:
            for hf in range(2): a(f"ds_read_b64_tr_b16 v[{f+2*hf}:{f+2*hf+1}], v{tW1} offset:{(80*t+20*H+4*hf)*160}")
            a(f"ds_read_b128 v[{f+4}:{f+7}], v{tX1} offset:{t*10240+H*1024}")
        else:
            for hf in range(2): a(f"ds_read_b64_tr_b16 v[{f+2*hf}:{f+2*hf+1}], v{tW2} offset:{(80*t+40*hf)*160}")
            for hf in range(2): a(f"ds_read_b64 v[{f+4+2*hf}:{f+5+2*hf}], v{tX2} offset:{t*10240+4096+512*hf}")
    def mmf(st): a(f"v_mfma_f32_32x32x16_bf16 v[4:19], v[{F[st]}:{F[st]+3}], v[{F[st]+4}:{F[st]+7}], v[4:19]")
    nrd = lambda st: 4 if st % 5 == 4 else 3
    a.label("TLm_job")
    for i in range(4, 20): a(f"v_mov_b32 v{i}, 0")
    a("s_mov_b32 s56, 0")
    a("s_barrier")
    for st in range(LA): mrd(st)
    a("s_branch TLm_mid")
    a.label("TLm_loop")
    tl_head("TLm")
    for st in range(LA):
        mmf(10 - LA + st); mrd(st)
    a.label("TLm_mid")
    for st in range(LA, 10):
        mrd(st)
        a(f"s_waitcnt lgkmcnt({sum(nrd(x) for x in range(st-LA+1, st+1))})")
        mmf(st - LA)
    tl_adv()
    a("s_cbranch_scc1 TLm_loop")
    for st in range(10 - LA, 10):
        a(f"s_waitcnt lgkmcnt({sum(nrd(x) for x in range(st+1, 10))})")
        mmf(st)
    a(f"v_add_u32 v{tW1}, s75, v{tW1}\nv_add_u32 v{tW2}, s75, v{tW2}")
    a("s_nop 9")
    for i in range(8): a(f"v_cvt_pk_bf16_f32 v{100+i}, v{4+2*i}, v{5+2*i}")
    a("s_nop 1")
    for half in range(2):
        d = 100 + 4 * half
        a(f"v_permlane32_swap_b32 v{d}, v{d+2}\nv_permlane32_swap_b32 v{d+1}, v{d+3}")
    for half in range(2):
        d = 100 + 4 * half
        a(f"buffer_store_dwordx4 v[{d}:{d+3}], v{tO}, s[44:47], s80 offen offset:{32*half} {ONT}")
    a("s_sub_u32 s80, s80, 1280")
    a("s_add_u32 s83, s83, 1\ns_cmp_lt_u32 s83, 2\ns_cbranch_scc1 TLm_job")
    stamp_end(a)
    a("s_endpgm")
    a.label("TLz_job")
    for i in range(4, 8): a(f"v_mov_b32 v{i}, 0")
    a("s_mov_b32 s56, 0")
    a.label("TLz_loop")
    tl_head("TLz")
    for j in range(4):
        f = F[j]; t = j >> 1
        for hf in range(2): a(f"ds_read_b64_tr_b16 v[{f+2*hf}:{f+2*hf+1}], v{tW1} offset:{(80*t+40*(j&1)+4*hf)*160}")
        a(f"ds_read_b128 v[{f+4}:{f+7}], v{tX1} offset:{t*10240+(j&1)*2048}")
    def zmf(j): a(f"v_mfma_f32_16x16x32_bf16 v[4:7], v[{F[j]}:{F[j]+3}], v[{F[j]+4}:{F[j]+7}], v[4:7]")
    a("s_waitcnt lgkmcnt(9)"); zmf(0)
    f = F[4]
    for t in range(2): a(f"ds_read_b64_tr_b16 v[{f+2*t}:{f+2*t+1}], v{tW2} offset:{12800*t}")
    for t in range(2): a(f"ds_read_b64 v[{f+4+2*t}:{f+5+2*t}], v{tX2} offset:{4096+10240*t}")
    a("s_waitcnt lgkmcnt(10)"); zmf(1)
    a("s_waitcnt lgkmcnt(7)"); zmf(2)
    a("s_waitcnt lgkmcnt(4)"); zmf(3)
    a("s_waitcnt lgkmcnt(0)"); zmf(4)
    tl_adv()
    a("s_cbranch_scc1 TLz_loop")
    a(f"v_add_u32 v{tW1}, s75, v{tW1}\nv_add_u32 v{tW2}, s75, v{tW2}")
    a("v_cvt_pk_bf16_f32 v100, v4, v5\nv_cvt_pk_bf16_f32 v101, v6, v7")
    a(f"buffer_store_dwordx2 v[100:101], v{tO}, s[44:47], s80 offen offset:128 {ONT}")
    a("s_sub_u32 s80, s80, 1280")
    a("s_add_u32 s83, s83, 1\ns_cmp_lt_u32 s83, 2\ns_cbranch_scc1 TLz_job")
    stamp_end(a)
    a("s_endpgm")
    a.label("AT_apply")
    AP = 84
    a(f"""
    ds_read2_b64 v[100:103], v{AP1} offset0:0 offset1:1
    ds_read_b64 v[104:105], v{AP0} offset:32
    s_waitcnt lgkmcnt(0)
    v_mfma_f32_32x32x16_bf16 v[{AP}:{AP+15}], v[100:103], v[{PQA}:{PQA+3}], 0
    v_mfma_f32_32x32x8_bf16 v[{AP}:{AP+15}], v[104:105], v[{PQB}:{PQB+1}], v[{AP}:{AP+15}]
    s_nop 11
    """)
    o_epilogue(a, AP, WS_OB, True)
    a("s_branch AT_loop")
    a.label("AT_fallback")
    a("s_mov_b32 exec_lo, 0")
    a(f"v_mov_b32 v{QB}, 0\nv_mov_b32 v{QB+1}, 0")
    a("s_mov_b32 exec_lo, -1")
    a(f"v_mov_b32 v{T2+2}, 0xff800000")
    a(f"s_mov_b32 s70, {WS_KV - LKV}")
    a.label("AT_fb1")
    a(f"buffer_load_dwordx4 v[{KA}:{KA+3}], v{aKA}, s[40:43], s70 offen sc1")
    a(f"buffer_load_dwordx2 v[{KB}:{KB+1}], v{aKB}, s[40:43], s70 offen sc1")
    a("s_waitcnt vmcnt(0)")
    qka(S0); qkb(S0)
    a("s_nop 15")
    rowmax(a, S0, T2 + 2, first=False)
    a(f"s_add_u32 s70, s70, {TILE}\ns_cmp_lt_u32 s70, {WS_KV-LKV+64*TILE}\ns_cbranch_scc1 AT_fb1")
    set_m(a, T2 + 2, T2 + 3)
    for i in range(16): a(f"v_mov_b32 v{OO+i}, 0")
    a(f"s_mov_b32 s70, {WS_KV - LKV}")
    a.label("AT_fb2")
    a(f"buffer_load_dwordx4 v[{KA}:{KA+3}], v{aKA}, s[40:43], s70 offen sc1")
    a(f"buffer_load_dwordx2 v[{KB}:{KB+1}], v{aKB}, s[40:43], s70 offen sc1")
    a(f"buffer_load_dwordx4 v[{V0}:{V0+3}], v{aV0}, s[40:43], s70 offen sc1")
    a(f"buffer_load_dwordx4 v[{V1}:{V1+3}], v{aV1}, s[40:43], s70 offen sc1")
    a("s_waitcnt vmcnt(0)")
    qka(S0); qkb(S0)
    a("s_nop 15")
    for g in range(4): E(S0, g)
    a("s_nop 0")
    for g in range(4): C(S0, g)
    a("s_nop 1")
    pv0(); pv1()
    a(f"s_add_u32 s70, s70, {TILE}\ns_cmp_lt_u32 s70, {WS_KV-LKV+64*TILE}\ns_cbranch_scc1 AT_fb2")
    a("s_nop 15")
    a("s_branch AT_ok")

    LK = "s[62:63]"
    a.label("L_loader")
    a("s_setprio 2")
    a("s_sub_u32 s10, s3, 8")
    a("s_mul_i32 s13, s4, 81920")
    a("v_lshlrev_b32 v18, 4, v0")
    a("s_cmp_eq_u32 s10, 1\ns_cbranch_scc1 L_mw")
    a("""
    v_lshrrev_b32 v20, 4, v0
    v_xor_b32 v21, v20, v0
    v_and_b32 v21, 15, v21
    v_lshlrev_b32 v21, 4, v21
    v_mul_u32_u24 v20, 1280, v20
    """)
    for j in range(4):
        a(f"v_xor_b32 v{28+j}, {64*j}, v21")
        a(f"v_add_u32 v{28+j}, v{28+j}, v20")
        if j < 3: a("v_add_u32 v20, 5120, v20")
    a(f"""
    s_mov_b32 m0, {LMX}
    s_lshr_b32 s14, s5, 1
    s_mul_i32 s14, s14, 20480
    s_add_u32 s14, s14, s13
    s_mov_b32 s15, 0
    s_waitcnt lgkmcnt(0)
    """)
    srd(a, 44, 16, XBYTES)
    a.label("L_mx")
    for j in range(4):
        dma(a, f"v{28+j}", 44, "s14", DNT)
        a("s_add_u32 m0, m0, 1024")
        a("s_add_u32 s14, s14, 256" if j == 3 else "s_nop 0")
    a("s_add_u32 s15, s15, 1\ns_cmp_lt_u32 s15, 5\ns_cbranch_scc1 L_mx")
    a("s_branch L_md")
    a.label("L_mw")
    a(f"s_mov_b32 m0, {LWKV}\ns_mov_b32 s14, 0")
    a("s_waitcnt lgkmcnt(0)")
    a("s_bitcmp1_b32 s5, 0")
    a("s_cselect_b32 s52, s22, s20")
    a("s_cselect_b32 s53, s23, s21")
    a("s_mov_b32 s54, 25600\ns_mov_b32 s55, 0x20000")
    a.label("L_mwl")
    for i in range(4): a(f"buffer_load_dwordx4 v18, s[52:55], s14 offen offset:{1024*i} lds")
    a("s_add_u32 m0, m0, 4096\ns_add_u32 s14, s14, 4096\ns_cmp_lt_u32 s14, 24576\ns_cbranch_scc1 L_mwl")
    a("buffer_load_dwordx4 v18, s[52:55], s14 offen lds")
    srd(a, 44, 16, XBYTES)
    a.label("L_md")
    tr_init(a); tr(a)
    a("""
    s_mov_b32 s12, 0
    s_lshl_b32 s8, s10, 2
    s_lshl_b32 s9, s10, 3
    v_lshrrev_b32 v20, 4, v0
    v_add_u32 v20, s8, v20
    v_xor_b32 v20, v20, v0
    v_and_b32 v20, 7, v20
    v_lshlrev_b32 v20, 4, v20
    v_lshrrev_b32 v21, 3, v0
    v_add_u32 v21, s9, v21
    v_mul_u32_u24 v21, 1280, v21
    v_add_u32 v2, v20, v21
    s_mov_b32 s8, 1120
    """)
    for p in range(5):
        a(f"v_add_u32 v20, {64*p}, v0")
        a(f"v_mul_u32_u24 v{22+p}, 6554, v20")
        a(f"v_lshrrev_b32 v{22+p}, 16, v{22+p}")
        a(f"v_lshlrev_b32 v20, 4, v20")
        a(f"v_mad_u32_u24 v{3+p}, v{22+p}, s8, v20")
    a("s_mul_i32 s64, s5, 160")
    a(f"s_mul_i32 s65, s10, {32*1280}")
    a("s_add_u32 s65, s65, s64")
    srd(a, 48, 18, 640 * 1280)
    srd(a, 40, 36, WS_SIZE)
    srd(a, 72, 26, XBYTES)
    srd(a, 76, 28, 640 * 3840)
    a("s_mov_b32 s8, 2560\ns_mov_b32 s9, 1280")
    for p in range(5):
        a(f"v_mad_u32_u24 v{8+p}, v{22+p}, s8, v{3+p}")
        a(f"v_lshrrev_b32 v20, 1, v{22+p}")
        a(f"v_mad_u32_u24 v{13+p}, v20, s9, v{3+p}")
    a("v_lshlrev_b32 v19, 7, v0")
    pk = pack3(INV)
    a(f"s_mov_b32 s8, {pk & 0xffffffff:#x}\ns_mov_b32 s9, {pk >> 32:#x}\ns_mov_b32 s14, 1280")
    for p in range(5):
        a(f"""
        v_add_u32 v20, {64*p}, v0
        v_mul_u32_u24 v21, 10, v{22+p}
        v_sub_u32 v20, v20, v21
        v_lshrrev_b32 v21, 1, v20
        v_and_b32 v28, 3, v{22+p}
        v_mad_u32_u24 v21, v28, 5, v21
        v_mul_u32_u24 v21, 3, v21
        v_lshrrev_b64 v[28:29], v21, s[8:9]
        v_and_b32 v28, 7, v28
        v_and_b32 v20, 1, v20
        v_lshl_or_b32 v20, v28, 1, v20
        v_lshlrev_b32 v20, 4, v20
        v_mad_u32_u24 v{80+p}, v{22+p}, s14, v20
        """)
    a(f"s_mul_i32 s66, s10, {32*3840}")
    a("s_add_u32 s66, s66, s64")
    a("s_add_u32 s67, s66, 1280")
    A_, B_, KV_ = "L_issueA", "L_issueB", "L_issueKV"
    tr(a)
    call(a, A_, LK)
    sched = [(9, [A_, A_, A_]), (27, [A_, A_]), (36, [A_]), (36, [A_]), (36, [A_]), (36, [A_]), (36, []), (27, [])]
    for i, (w, iss) in enumerate(sched):
        a(f"s_waitcnt vmcnt({w})"); bar(a)
        for x in iss: call(a, x, LK)
    get_nonce(a, "v30", "v31")
    a("s_mov_b32 s12, 0")
    a("s_and_b32 s69, s5, 3")
    a("s_cmp_eq_u32 s10, 1")
    a("s_cbranch_scc1 L1_path")
    def b_phase(pfx):
        bar(a)
        a("s_mov_b32 s70, 0")
        a.label(pfx + "_b")
        a("s_waitcnt vmcnt(19)"); bar(a); call(a, B_, LK)
        a(f"s_add_u32 s70, s70, 1\ns_cmp_lt_u32 s70, 7\ns_cbranch_scc1 {pfx}_b")
        a("s_waitcnt vmcnt(19)"); bar(a)
        a("s_waitcnt vmcnt(0)"); bar(a)
    gs(a, 3)
    a("v_lshrrev_b32 v36, 1, v0\nv_lshlrev_b32 v36, 7, v36\nv_and_b32 v37, 1, v0\nv_lshl_add_u32 v36, v37, 4, v36")
    a(f"s_mov_b32 s8, {FL_KV}")
    a("buffer_load_dwordx4 v[32:35], v36, s[40:43], s8 offen sc1")
    a("s_waitcnt vmcnt(19)"); bar(a)
    a(f"s_mov_b32 s9, 0")
    a.label("L0_pk")
    a("s_add_u32 s9, s9, 1")
    a("s_waitcnt vmcnt(0)")
    for i in range(4): a(f"v_xor_b32 v{32+i}, s96, v{32+i}")
    a("v_or3_b32 v32, v32, v33, v34\nv_or_b32 v32, v32, v35\nv_cmp_ne_u32 vcc, 0, v32")
    a(f"s_cmp_gt_u32 s9, {SPIN_MAX}\ns_cbranch_scc1 L0_pd\ns_cbranch_vccz L0_pd\ns_sleep 2")
    a("buffer_load_dwordx4 v[32:35], v36, s[40:43], s8 offen sc1")
    a("s_branch L0_pk")
    a.label("L0_pd")
    gs(a, 4)
    if STAMP: a(f"v_mov_b32 v106, s9\ns_add_u32 s14, s14, 4\nbuffer_store_dword v106, v107, s[40:43], s14 offen")
    a("s_lshr_b32 s60, s2, 3\ns_and_b32 s60, s60, 15")
    a(f"s_mov_b32 s61, {LKV}")
    call(a, KV_, LK)
    bar(a)
    call(a, KV_, LK)
    bar(a)
    call(a, KV_, LK)
    a("s_waitcnt vmcnt(22)"); bar(a)
    a("s_waitcnt vmcnt(11)"); bar(a); call(a, KV_, LK)
    a("s_waitcnt vmcnt(11)"); bar(a); call(a, KV_, LK); call(a, B_, LK)
    a("s_waitcnt vmcnt(30)"); bar(a); call(a, KV_, LK); call(a, B_, LK)
    a("s_waitcnt vmcnt(30)"); bar(a); call(a, KV_, LK); call(a, B_, LK)
    b_phase("L0")
    bar(a)
    a("s_mov_b32 s70, 5")
    a.label("L0_kv")
    a("s_waitcnt vmcnt(11)"); bar(a); call(a, KV_, LK)
    a("s_add_u32 s70, s70, 1\ns_cmp_lt_u32 s70, 14\ns_cbranch_scc1 L0_kv")
    a("s_lshl_b32 s56, s4, 7\ns_lshl_b32 s57, s5, 2\ns_add_u32 s57, s57, s56")
    a("v_lshlrev_b32 v19, 2, v0")
    a(f"s_add_u32 s8, s57, {FL_OB}")
    publish(a, "s8", "v30", "v31")
    a("s_waitcnt vmcnt(12)"); bar(a)
    a("s_waitcnt vmcnt(0)"); bar(a)
    a(f"s_add_u32 s8, s56, {FL_OB}")
    poll(a, "s8", 8)
    a(f"s_add_u32 s13, s13, {WS_OB}")
    a(f"s_mov_b32 s61, {LX}")
    call(a, "L_issueP", LK)
    bar(a)
    call(a, "L_issueP", LK)
    a("s_waitcnt vmcnt(20)"); bar(a)
    call(a, "L_issueP", LK)
    a("s_waitcnt vmcnt(20)"); bar(a)
    call(a, "L_issueP", LK)
    a("s_waitcnt vmcnt(20)"); bar(a)
    a(f"s_add_u32 s8, s57, {FL_OA}")
    publish(a, "s8", "v30", "v31")
    gs(a, 6)
    a("s_waitcnt vmcnt(1)"); bar(a)
    a(f"s_add_u32 s8, s56, {FL_OA}")
    poll(a, "s8", 8)
    tr(a)
    gs(a, 7)
    a(f"s_sub_u32 s13, s13, {WS_OB - WS_OA}")
    call(a, "L_issueP", LK); call(a, "L_issueP", LK)
    a("s_waitcnt vmcnt(20)"); bar(a)
    call(a, "L_issueP", LK)
    a("s_waitcnt vmcnt(20)"); bar(a)
    call(a, "L_issueP", LK)
    a("s_waitcnt vmcnt(20)"); bar(a)
    a("s_waitcnt vmcnt(0)"); bar(a)
    tr_dump(a)
    a("s_endpgm")
    a.label("L1_path")
    for w in (18, 9, 0):
        a(f"s_waitcnt vmcnt({w})"); bar(a)
    pf_rows(a, 20, 3840, "s14", "s15")
    bar(a)
    if int(OPT.get("pfb", 1)): pf_x(a, 72, "v19", 32)
    a("s_mov_b32 exec_hi, 0x3ffff")
    for i in range(3 * int(OPT.get("pfb", 1))):
        for j, so in enumerate(("s14", "s15")):
            a(f"buffer_load_dword v{44+2*i+j}, v20, s[76:79], {so} offen offset:{1280*i} {PFNT}")
    a("s_mov_b32 exec_hi, -1")
    srd(a, 48, 30, 640 * 1280)
    srd(a, 52, 24, 640 * 1280)
    pf_rows(a, 20, 1280, "s60", "s61")
    a("s_lshl_b32 s56, s5, 5\ns_add_u32 s57, s56, s4")
    a(f"s_mul_i32 s68, s57, 6720\ns_add_u32 s68, s68, {WS_KVP}")
    a("s_lshl_b32 s56, s5, 9\ns_lshr_b32 s8, s4, 3\ns_lshl_b32 s8, s8, 7\ns_and_b32 s57, s4, 7\ns_lshl_b32 s57, s57, 2\ns_add_u32 s57, s57, s8\ns_add_u32 s57, s57, s56")
    a("v_lshrrev_b32 v19, 3, v0\nv_lshlrev_b32 v19, 7, v19\nv_and_b32 v21, 7, v0\nv_lshl_add_u32 v19, v21, 2, v19")
    bar(a)
    bar(a); call(a, B_, LK)
    bar(a); call(a, B_, LK)
    a("s_waitcnt vmcnt(19)"); bar(a); call(a, B_, LK)
    b_phase("L1")
    a("s_mov_b32 exec_hi, 0x3ffff")
    for i, (sr, so) in enumerate(((48, "s60"), (48, "s61"), (52, "s60"), (52, "s61"))):
        a(f"buffer_load_dword v{32+i}, v20, s[{sr}:{sr+3}], {so} offen {PFNT}")
    a("s_mov_b32 exec_hi, -1")
    bar(a)
    bar(a)
    for i in range(7):
        a(f"ds_read_b128 v[{44+4*i}:{47+4*i}], v18 offset:{LPART+1024*i}")
    a("s_add_u32 s8, s68, 4096")
    a("s_waitcnt lgkmcnt(0)")
    for i in range(6):
        a(f"buffer_store_dwordx4 v[{44+4*i}:{47+4*i}], v18, s[40:43], {'s68' if i < 4 else 's8'} offen offset:{1024*(i%4)} sc1")
    a("s_mov_b32 exec_hi, 15")
    a("buffer_store_dwordx4 v[68:71], v18, s[40:43], s8 offen offset:2048 sc1")
    a("s_mov_b32 exec_hi, -1")
    a("s_mov_b32 s12, 0")
    a("s_waitcnt vmcnt(0)")
    a(f"s_add_u32 s8, s57, {FL_P}")
    publish(a, "s8", "v30", "v31")
    bar(a)
    call(a, "L_issueWo", LK); bar(a)
    call(a, "L_issueWo", LK); bar(a)
    a(f"s_add_u32 s8, s56, {FL_P}")
    poll(a, "s8", 32)
    a(f"""
    v_lshrrev_b32 v30, 4, v0
    v_mul_u32_u24 v30, {8*6720}, v30
    v_and_b32 v31, 15, v0
    v_lshl_add_u32 v30, v31, 4, v30
    s_mul_i32 s8, s5, {32*6720}
    s_mul_i32 s9, s4, 224
    s_add_u32 s8, s8, s9
    s_add_u32 s8, s8, {WS_KVP}
    """)
    for i in range(8):
        a(f"buffer_load_dwordx4 v[{44+4*i}:{47+4*i}], v30, s[40:43], s8 offen sc1")
        a("s_add_u32 s8, s8, 6720")
    bar(a)
    a("s_waitcnt vmcnt(0)")
    for half in (4, 2, 1):
        for i in range(half):
            for j in (0, 2):
                a(f"v_pk_add_f32 v[{44+4*i+j}:{45+4*i+j}], v[{44+4*i+j}:{45+4*i+j}], v[{44+4*(i+half)+j}:{45+4*(i+half)+j}]")
    for op in ("v_permlane32_swap_b32", "v_permlane16_swap_b32"):
        for j in range(4): a(f"v_mov_b32 v{48+j}, v{44+j}")
        a("s_nop 1")
        for j in range(4): a(f"{op} v{44+j}, v{48+j}")
        a("s_nop 1")
        for j in range(4): a(f"v_add_f32 v{44+j}, v{44+j}, v{48+j}")
    a(f"""
    v_cvt_pk_bf16_f32 v44, v44, v45
    v_cvt_pk_bf16_f32 v45, v46, v47
    v_lshlrev_b32 v31, 3, v31
    s_lshl_b32 s8, s5, 12
    s_mul_i32 s9, s4, 112
    s_add_u32 s8, s8, s9
    s_add_u32 s8, s8, {WS_KVZ}
    s_cmp_lt_u32 s4, 30
    s_cselect_b32 exec_lo, 0x3fff, 0
    s_mov_b32 exec_hi, 0
    buffer_store_dwordx2 v[44:45], v31, s[40:43], s8 offen sc1
    s_mov_b64 exec, -1
    s_waitcnt vmcnt(0)
    """)
    a(f"s_add_u32 s8, s57, {FL_R}")
    publish(a, "s8", "v30", "v31")
    bar(a)
    call(a, "L_issueWo", LK); bar(a)
    a(f"s_add_u32 s8, s56, {FL_R}")
    poll(a, "s8", 30)
    a(f"s_lshl_b32 s8, s5, 12\ns_add_u32 s8, s8, {WS_KVZ}\ns_mov_b32 m0, {LKVZ}\ns_nop 0")
    for i in range(4):
        a(f"buffer_load_dwordx4 v18, s[40:43], s8 offen offset:{1024*i} sc1 lds")
    a("s_waitcnt vmcnt(0)")
    bar(a)
    call(a, "L_issueWo", LK); bar(a)
    srd(a, 48, 24, 640 * 1280)
    a("s_mov_b32 s12, 0")
    bar(a)
    a("s_waitcnt vmcnt(0)")
    bar(a); bar(a)
    bar(a); bar(a)
    call(a, "L_issueWo", LK); bar(a)
    call(a, "L_issueWo", LK); bar(a)
    a("s_waitcnt vmcnt(38)")
    call(a, "L_issueWo", LK)
    a("s_waitcnt vmcnt(38)"); bar(a)
    call(a, "L_issueWo", LK)
    a("s_waitcnt vmcnt(50)"); bar(a)
    a("s_waitcnt vmcnt(25)"); bar(a)
    a("s_waitcnt vmcnt(0)"); bar(a)
    tr_dump(a)
    a.label("L_end")
    a("s_endpgm")
    a.label("L_issueA")
    issue_x(a, 44, "s13", "s12")
    issue_w(a, 48, 3, 1280, "s65", "s12", IMG_W)
    wrap_inc(a, "s11", 1, 10); wrap_inc(a, "s12", HS, 6 * HS)
    a("s_setpc_b64 s[62:63]")
    a.label("L_issueB")
    issue_x(a, 72, "s13", "s12")
    issue_w(a, 76, 8, 3840, "s66", "s12", IMG_W)
    issue_w(a, 76, 13, 3840, "s67", "s12", IMG_KV, periods=2, rows_per_period=16)
    wrap_inc(a, "s11", 1, 10); wrap_inc(a, "s12", SLOT, 3 * SLOT)
    a("s_setpc_b64 s[62:63]")
    def lin(n):
        a("s_mov_b32 m0, s61")
        a("s_nop 0")
        for i in range(n):
            if i % 4 == 0 and i > 0:
                a("s_add_u32 m0, m0, 4096")
                a("s_add_u32 s14, s14, 4096")
            a(f"buffer_load_dwordx4 v18, s[40:43], s14 offen offset:{1024*(i%4)} sc1 lds")
    a.label("L_issueKV")
    a(f"s_mul_i32 s14, s60, {CH}")
    a(f"s_add_u32 s14, s14, {WS_KV}")
    lin(11)
    a("s_add_u32 s60, s60, 1\ns_and_b32 s60, s60, 15")
    wrap_inc(a, "s61", CH, LKV + 4 * CH, LKV)
    a("s_setpc_b64 s[62:63]")
    a.label("L_issueP")
    a("s_mul_i32 s14, s69, 20480")
    a("s_add_u32 s14, s14, s13")
    lin(20)
    a("s_add_u32 s69, s69, 1\ns_and_b32 s69, s69, 3")
    wrap_inc(a, "s61", 20480, LX + 3 * 20480, LX)
    a("s_setpc_b64 s[62:63]")
    a.label("L_issueWo")
    a(f"s_mul_i32 s14, s69, {160*1280}")
    a("s_add_u32 s14, s14, s64")
    a("s_mov_b32 m0, s12")
    a("s_mov_b32 s15, 0")
    a.label("L_wo_g")
    for p in range(5):
        dma(a, f"v{80+p}", 48, "s14")
        a("s_add_u32 m0, m0, 1024")
        if p < 4: a("s_nop 0")
    a(f"s_add_u32 s14, s14, {32*1280}")
    a("s_add_u32 s15, s15, 1\ns_cmp_lt_u32 s15, 5\ns_cbranch_scc1 L_wo_g")
    a("s_add_u32 s69, s69, 1\ns_and_b32 s69, s69, 3")
    a("s_add_u32 s12, s12, 25600")
    a("s_setpc_b64 s[62:63]")
    gemm_setup_sub(a); phi_sub(a); tile_to_lds_sub(a)
    gemm_sub(a, "gemmR", "R")
    gemm_sub(a, "gemmC", "C")
    a.label("L_codeend")

def main(out):
    a = Asm()
    a.lines.append(f"; @launch grid=(256,1,1) block=(640,1,1) lds={LDS_TOTAL}")
    a('.amdgcn_target "amdgcn-amd-amdhsa--gfx950"')
    a(".text")
    gen(a)
    a('.section .rodata,"a"')
    open(out, "w").write(a.text() + descriptor(NAME + "_kernel", NV, 102))

if __name__ == "__main__":
    main(sys.argv[1] if len(sys.argv) > 1 else f"cdna_kernels/{NAME}.s")
```

```python
import sys, struct, os
from asmlib import *

NAME = "concat_heads__grouped_kv_mqa__linear_attn_block__prompt"
STAMP = bool(os.environ.get("STAMP"))
OPT = dict(kv.split("=") for kv in os.environ.get("OPT", "").split(",") if kv)
PFB = int(OPT.get("pfb", 0))
ONT = OPT.get("ont", "nt")
WS_OA, WS_OB, WS_KV, WS_KVP, WS_KVZ = 0x0, 0x280000, 0x500000, 0x540000, 0x700000
FL_KV, FL_P, FL_R, FL_OB, FL_OA = 0x718000, 0x720000, 0x728000, 0x730000, 0x738000
WS_ST = 0x800000
WS_SIZE = 0x900000
TILE = 2816
CH = 4 * TILE
XBYTES = 2048 * 1280
SLOT = 38912
HS = SLOT // 2
IMG_W, IMG_KV = 8192, 18432
LKV = 3 * SLOT
LMISC = 163840 - 16
LKVZ = 112640
LMX = LKV
LWKV = LKV + 20480
LQ = 2 * SLOT
LFR, LPQ, LPART = SLOT, SLOT + 20480, 0
LX = 102400
LDS_TOTAL = 163840
SPIN_MAX = 1 << 17
def f32(x): return "0x%08x" % struct.unpack("<I", struct.pack("<f", x))[0]
LOG2E = 1.4426950408889634
CSCALE = LOG2E / (20 ** 0.5)

S0, S1, PP, KA, KB, QB, V0, V1, QA, OO, BACC, BFR = 4, 20, 36, 44, 48, 50, 52, 56, 60, 64, 80, 112
aKA, aKB, aV0, aV1, bW, bX = 136, 137, 138, 139, 140, 141
OAD0, OAD1 = 145, 146
PWR = 147
JA, JB, QF0, QF1, AP0, AP1 = 151, 152, 153, 154, 155, 156
tW1, tW2, tX1, tX2, tO, TL0, TL1 = 157, 158, 159, 160, 161, 162, 163
NV = 164
PQA, PQB = 128, 132
T = 4
AFR = [4, 16, 28, 40]
MASKS = [92, 94, 98, 100]
POS = [[0, 1, 3, 4, 2], [1, 2, 0, 3, 4], [2, 3, 4, 0, 1], [3, 4, 0, 2, 1]]
INV = [[POS[r].index(p) for p in range(5)] for r in range(4)]
def pack3(tab):
    x = 0
    for r in range(4):
        for j in range(5): x |= tab[r][j] << (3 * (5 * r + j))
    return x

def tr(a):
    if not STAMP: return
    a("""
    s_waitcnt lgkmcnt(0)
    s_sub_u32 s90, s88, s84
    s_memtime s[88:89]
    s_mov_b32 m0, s85
    s_add_u32 s85, s85, 1
    v_writelane_b32 v40, s90, m0
    """)
def tr_init(a):
    if STAMP: a("s_mov_b32 s85, 0\nv_mov_b32 v40, 0\ns_mov_b32 s88, s84")
def tr_dump(a):
    if not STAMP: return
    tr(a)
    a(f"""
    s_lshl_b32 s8, s2, 1
    s_add_u32 s8, s8, s10
    s_lshl_b32 s8, s8, 8
    s_add_u32 s8, s8, {WS_ST + 0x40000}
    v_lshlrev_b32 v8, 2, v0
    buffer_store_dword v40, v8, s[40:43], s8 offen
    """)
def stamp_end(a):
    if not STAMP: return
    a(f"""
    s_memtime s[12:13]
    s_waitcnt vmcnt(0)
    s_memtime s[88:89]
    s_memrealtime s[90:91]
    s_waitcnt lgkmcnt(0)
    s_mov_b64 exec, -1
    s_sub_u32 s88, s88, s84
    s_sub_u32 s12, s12, s84
    v_mov_b32 v4, s86
    v_mov_b32 v5, s90
    v_mov_b32 v6, s88
    v_mov_b32 v7, s12
    s_lshl_b32 s8, s2, 4
    s_add_u32 s8, s8, s3
    s_lshl_b32 s8, s8, 4
    s_add_u32 s8, s8, {WS_ST}
    v_mov_b32 v8, 0
    buffer_store_dwordx4 v[4:7], v8, s[40:43], s8 offen
    """)
def gs(a, idx, t0="v36", t1="v37"):
    if not STAMP: return
    a(f"""
    s_memrealtime s[14:15]
    s_waitcnt lgkmcnt(0)
    v_mov_b32 {t0}, s14
    s_lshl_b32 s14, s2, 6
    s_add_u32 s14, s14, {WS_ST + 0x80000 + 4*idx}
    v_mov_b32 {t1}, 0
    buffer_store_dword {t0}, {t1}, s[40:43], s14 offen
    """)
def bar(a):
    a("s_barrier"); tr(a)

def dma(a, voff, srdi, soff, extra=""):
    a(f"buffer_load_dwordx4 {voff}, s[{srdi}:{srdi+3}], {soff} offen {extra} lds")
def issue_x(a, srdi, sbase, lds_sgpr):
    a(f"s_lshl_b32 s15, s10, 10")
    a(f"s_add_u32 m0, s15, {lds_sgpr}")
    a(f"s_lshl_b32 s14, s11, 7")
    a(f"s_add_u32 s14, s14, {sbase}")
    for jj in range(4):
        dma(a, "v2", srdi, "s14")
        if jj < 3:
            a("s_add_u32 m0, m0, 2048")
            a("s_add_u32 s14, s14, 20480")
def issue_w(a, srdi, voffs, ld, sbase, lds_sgpr, ldsoff, periods=1, rows_per_period=32):
    a(f"s_mul_i32 s15, s10, {5120*periods}")
    a(f"s_add_u32 s15, s15, {lds_sgpr}")
    a(f"s_add_u32 m0, s15, {ldsoff}")
    a(f"s_mul_i32 s14, s11, {64*ld}")
    a(f"s_add_u32 s14, s14, {sbase}")
    for per in range(periods):
        for p in range(5):
            dma(a, f"v{voffs+p}", srdi, "s14")
            if not (per == periods - 1 and p == 4):
                a("s_add_u32 m0, m0, 1024")
                a(f"s_add_u32 s14, s14, {rows_per_period*ld}" if p == 4 else "s_nop 0")
def wrap_inc(a, reg, step, limit, base=0):
    a(f"s_add_u32 {reg}, {reg}, {step}")
    a(f"s_cmp_eq_u32 {reg}, {limit}")
    a(f"s_cselect_b32 {reg}, {base}, {reg}")
def set_exec(a, n):
    m = (1 << n) - 1
    a(f"s_mov_b32 exec_lo, {m & 0xffffffff:#x}\ns_mov_b32 exec_hi, {m >> 32:#x}")
def poll(a, soff, nlanes, tmp="v30", addr="v19"):
    lp, dn = a.newlabel("Lpoll"), a.newlabel("Lpd")
    set_exec(a, nlanes)
    a("s_mov_b32 s9, 0")
    a.label(lp)
    a(f"buffer_load_dword {tmp}, {addr}, s[40:43], {soff} offen sc1")
    a("s_add_u32 s9, s9, 1")
    a("s_waitcnt vmcnt(0)")
    a(f"v_cmp_ne_u32 vcc, s96, {tmp}")
    a(f"s_cmp_gt_u32 s9, {SPIN_MAX}")
    a(f"s_cbranch_scc1 {dn}")
    a(f"s_cbranch_vccz {dn}")
    a("s_sleep 1")
    a(f"s_branch {lp}")
    a.label(dn)
    a("s_mov_b64 exec, -1")
def publish(a, soff, tmp, zero):
    a(f"v_mov_b32 {tmp}, s96")
    a(f"v_mov_b32 {zero}, 0")
    a("s_mov_b64 exec, 1")
    a(f"buffer_store_dword {tmp}, {zero}, s[40:43], {soff} offen sc1")
    a("s_mov_b64 exec, -1")
def get_nonce(a, tmp, addr):
    a(f"v_mov_b32 {addr}, {LMISC}")
    a(f"ds_read_b32 {tmp}, {addr}")
    a("s_waitcnt lgkmcnt(0)")
    a(f"v_readfirstlane_b32 s96, {tmp}")
def call(a, lbl, link="s[58:59]"):
    a(f"s_call_b64 {link}, {lbl}")
def pf_rows(a, vd, ld, s0, s1):
    a(f"""
    v_mul_u32_u24 v{vd}, 52429, v0
    v_lshrrev_b32 v{vd}, 18, v{vd}
    v_mul_u32_u24 v{vd+1}, 5, v{vd}
    v_sub_u32 v{vd+1}, v0, v{vd+1}
    v_mul_u32_u24 v{vd}, {ld}, v{vd}
    v_lshl_add_u32 v{vd}, v{vd+1}, 7, v{vd}
    s_mul_i32 {s0}, s7, {20*ld}
    s_and_b32 s8, s6, 1
    s_mul_i32 s8, s8, 640
    s_add_u32 {s0}, {s0}, s8
    s_add_u32 {s1}, {s0}, {10*ld}
    """)
def pf_x(a, srdi, vaddr, vd):
    a(f"""
    s_lshr_b32 s8, s6, 1
    s_mul_i32 s8, s8, {512*1280}
    s_mul_i32 s9, s7, 20480
    s_add_u32 s8, s8, s9
    s_add_u32 s9, s8, 8192
    buffer_load_dword v{vd}, {vaddr}, s[{srdi}:{srdi+3}], s8 offen
    buffer_load_dword v{vd+1}, {vaddr}, s[{srdi}:{srdi+3}], s9 offen
    s_add_u32 s9, s8, 16384
    s_mov_b32 exec_hi, 0
    buffer_load_dword v{vd+2}, {vaddr}, s[{srdi}:{srdi+3}], s9 offen
    s_mov_b32 exec_hi, -1
    """)

def phi_sub(a):
    X = BFR
    a.label("g_phi")
    a(f"s_mov_b32 s8, {f32(LOG2E)}")
    a(f"s_mov_b32 s9, {f32(1e-6)}")
    for n, r0 in enumerate((0, 4, 16, 20, 8, 12, 24, 28)):
        r0 += BACC
        if n == 4:
            a("s_cmp_eq_u32 s3, 2\ns_cbranch_scc1 g_pack")
        for i in (0, 2): a(f"v_pk_mul_f32 v[{X+i}:{X+i+1}], v[{r0+i}:{r0+i+1}], s[8:9] op_sel_hi:[1,0]")
        for i in range(4): a(f"v_exp_f32_e64 v{X+i}, v{X+i} clamp")
        for i in range(4): a(f"v_max_f32 v{r0+i}, s9, v{r0+i}")
        for i in (0, 2): a(f"v_pk_add_f32 v[{r0+i}:{r0+i+1}], v[{r0+i}:{r0+i+1}], v[{X+i}:{X+i+1}]")
    a.label("g_pack")
    a("s_mov_b64 exec, -1")
    for i in range(16):
        a(f"v_cvt_pk_bf16_f32 v{BACC+i}, v{BACC+2*i}, v{BACC+2*i+1}")
    a("s_setpc_b64 s[58:59]")
def tile_to_lds_sub(a):
    a.label("g_t2l")
    for half in range(2):
        if half == 1:
            a("s_cmp_eq_u32 s3, 2\ns_cbranch_scc1 g_t2l_end")
        for blk in range(2):
            for q in range(2):
                d = BACC + 8 * blk + 4 * half + 2 * q
                a(f"ds_write_b64 v{TL0+half}, v[{d}:{d+1}] offset:{5120*blk + 16*q}")
    a.label("g_t2l_end")
    a("s_setpc_b64 s[58:59]")
def read_qfrag(a, qa, qb):
    a(f"ds_read2_b64 v[{qa}:{qa+3}], v{QF1} offset0:0 offset1:1")
    a(f"ds_read_b64 v[{qb}:{qb+1}], v{QF0} offset:32")
def o_epilogue(a, O, wsoff, eps):
    if eps:
        a(f"v_add_f32 v{O+12}, {f32(1e-6)}, v{O+12}")
    a(f"v_rcp_f32 v{O+12}, v{O+12}")
    a(f"s_add_u32 s8, s81, {wsoff}")
    a(f"s_add_u32 s9, s82, {wsoff}")
    for i in range(0, 12, 2):
        a(f"v_pk_mul_f32 v[{O+i}:{O+i+1}], v[{O+i}:{O+i+1}], v[{O+12}:{O+13}] op_sel_hi:[1,0]")
    for i in range(6):
        a(f"v_cvt_pk_bf16_f32 v{O+i}, v{O+2*i}, v{O+2*i+1}")
    a(f"buffer_store_dwordx4 v[{O}:{O+3}], v{OAD1}, s[40:43], s8 offen sc1")
    a("s_mov_b32 exec_hi, 0")
    a(f"buffer_store_dwordx2 v[{O+4}:{O+5}], v{OAD0}, s[40:43], s9 offen sc1")
    a("s_mov_b32 exec_hi, -1")
def rowmax(a, S, dst, first=True):
    regs = [f"v{S+i}" for i in range(16)]
    if first:
        a(f"v_max3_f32 v{dst}, {regs[0]}, {regs[1]}, {regs[2]}")
        rest = regs[3:]
    else:
        rest = regs
    while len(rest) >= 2:
        a(f"v_max3_f32 v{dst}, v{dst}, {rest[0]}, {rest[1]}")
        rest = rest[2:]
    if rest:
        a(f"v_max_f32 v{dst}, v{dst}, {rest[0]}")
def set_m(a, m, tmp, keep):
    a(f"""
    v_mov_b32 v{tmp}, v{m}
    s_nop 1
    v_permlane32_swap_b32 v{m}, v{tmp}
    s_nop 1
    v_max_f32 v{keep}, v{m}, v{tmp}
    s_mov_b32 exec_lo, 0
    v_sub_f32 v{m}, 0, v{keep}
    v_and_b32 v{tmp}, 0xffff0000, v{m}
    v_sub_f32 v{m}, v{m}, v{tmp}
    v_lshrrev_b32 v{QB}, 16, v{tmp}
    v_and_b32 v{tmp}, 0xffff0000, v{m}
    v_sub_f32 v{m}, v{m}, v{tmp}
    v_or_b32 v{QB}, v{QB}, v{tmp}
    v_lshrrev_b32 v{QB+1}, 16, v{m}
    s_mov_b32 exec_lo, -1
    """)

def precompute(a):
    t = 12
    a(f"""
    v_and_b32 v1, 31, v0
    v_lshrrev_b32 v2, 5, v0
    v_lshrrev_b32 v3, 2, v1
    v_add_u32 v3, 1, v3
    v_and_b32 v3, 2, v3
    v_mul_u32_u24 v3, 6, v3
    v_xor_b32 v3, v1, v3
    v_lshlrev_b32 v{OAD0}, 3, v0
    v_lshlrev_b32 v{OAD1}, 4, v0
    s_and_b32 s38, s3, 1
    s_lshr_b32 s39, s3, 1
    s_mov_b32 s76, 0
    s_mov_b32 s77, 128
    s_cmp_eq_u32 s3, 1
    s_cselect_b32 s76, 32, s76
    s_cselect_b32 s77, 64, s77
    s_cmp_eq_u32 s3, 2
    s_cselect_b32 s76, 96, s76
    s_cselect_b32 s77, 96, s77
    s_sub_u32 s78, s3, 3
    s_lshl_b32 s78, s78, 2
    s_lshr_b32 s78, 0x20431, s78
    s_and_b32 s78, s78, 15
    s_lshl_b32 s8, s78, 6
    s_add_u32 s8, s8, {IMG_KV}
    s_add_u32 s9, s76, {IMG_W}
    s_sub_u32 s64, s77, s76
    s_cmp_lt_u32 s3, 3
    s_cselect_b32 s60, s9, s8
    s_cselect_b32 s64, s64, 32
    s_mov_b32 s61, 320
    s_cselect_b32 s61, 160, s61
    v_bfe_u32 v{t}, v0, 2, 2
    v_lshl_add_u32 v{t+1}, v2, 3, v{t}
    v_mul_u32_u24 v{t+1}, s61, v{t+1}
    v_bfe_u32 v{t+3}, v0, 4, 1
    v_mul_u32_u24 v{t+2}, s64, v{t+3}
    v_and_b32 v{t+6}, 3, v0
    v_lshlrev_b32 v{t+6}, 3, v{t+6}
    v_add3_u32 v{t+1}, v{t+1}, v{t+2}, v{t+6}
    v_add_u32 v{bW}, s60, v{t+1}
    v_bfe_u32 v{t+2}, v0, 1, 3
    v_xor_b32 v{t+2}, v{t+2}, v2
    v_lshlrev_b32 v{t+2}, 4, v{t+2}
    v_lshl_or_b32 v{bX}, v1, 7, v{t+2}
    v_xor_b32 v{bX+1}, 32, v{bX}
    v_xor_b32 v{bX+2}, 64, v{bX}
    v_xor_b32 v{bX+3}, 96, v{bX}
    """)
    pk = pack3(POS)
    a(f"""
    s_mul_i32 s80, s4, {64*2560}
    s_mul_i32 s8, s5, 160
    s_add_u32 s80, s80, s8
    s_add_u32 s80, s80, 1280
    v_mul_u32_u24 v{t+1}, 160, v{t}
    v_add_u32 v{t+1}, v{t+1}, v{t+6}
    s_lshl_b32 s8, s39, 1
    v_add_u32 v{t+2}, s8, v{t+3}
    v_min_u32 v{t+2}, 4, v{t+2}
    v_mad_u32_u24 v{t+2}, v{t}, 5, v{t+2}
    v_mul_u32_u24 v{t+2}, 3, v{t+2}
    s_mov_b32 s8, {pk & 0xffffffff:#x}
    s_mov_b32 s9, {pk >> 32:#x}
    v_lshrrev_b64 v[{t+4}:{t+5}], v{t+2}, s[8:9]
    v_and_b32 v{t+4}, 7, v{t+4}
    v_lshl_add_u32 v{t+1}, v{t+4}, 5, v{t+1}
    s_cmp_ge_u32 s3, 4
    s_cbranch_scc1 PC_tz
    s_lshl_b32 s9, s39, 6
    s_add_u32 s80, s80, s9
    s_mul_i32 s10, s38, {32*2560}
    s_add_u32 s80, s80, s10
    s_mul_i32 s8, s38, 5120
    s_add_u32 s8, s8, {LX}
    v_mul_u32_u24 v{tW1}, 1280, v2
    v_add_u32 v{tW1}, v{tW1}, v{t+1}
    v_mul_u32_u24 v{tW2}, 3200, v2
    v_add_u32 v{tW2}, v{tW2}, v{t+1}
    v_add_u32 v{tW2}, 2560, v{tW2}
    v_add_u32 v{tX1}, s8, v{OAD1}
    v_add_u32 v{tX2}, s8, v{OAD0}
    v_mul_u32_u24 v{tO}, 2560, v1
    v_lshl_add_u32 v{tO}, v2, 4, v{tO}
    s_branch PC_td
    """)
    a.label("PC_tz")
    a(f"""
    s_sub_u32 s8, s3, 4
    s_mul_i32 s10, s8, {16*2560}
    s_add_u32 s80, s80, s10
    s_lshl_b32 s9, s38, 4
    s_lshr_b32 s8, s8, 1
    s_mul_i32 s8, s8, 5120
    s_add_u32 s8, s8, {LX}
    v_lshrrev_b32 v{t}, 4, v0
    v_mul_u32_u24 v{tW1}, 3200, v{t+3}
    v_mul_u32_u24 v{t+2}, 1280, v2
    v_add3_u32 v{tW1}, v{tW1}, v{t+2}, v{t+1}
    v_mul_u32_u24 v{tW2}, 3200, v{t}
    v_add_u32 v{tW2}, v{tW2}, v{t+1}
    v_add_u32 v{tW2}, 2560, v{tW2}
    v_and_b32 v{t+2}, 15, v0
    v_mul_u32_u24 v{tO}, 2560, v{t+2}
    v_lshl_add_u32 v{tO}, v{t}, 3, v{tO}
    v_add_u32 v{t+2}, s9, v{t+2}
    v_lshl_add_u32 v{t+4}, v{t}, 5, v{t+2}
    v_lshlrev_b32 v{tX2}, 3, v{t+4}
    v_add_u32 v{tX2}, s8, v{tX2}
    v_lshl_add_u32 v{t+4}, v2, 5, v{t+2}
    v_lshl_add_u32 v{t+4}, v{t+3}, 6, v{t+4}
    v_lshlrev_b32 v{tX1}, 4, v{t+4}
    v_add_u32 v{tX1}, s8, v{tX1}
    """)
    a.label("PC_td")
    a(f"""
    v_add_u32 v{aKA}, {LKV}, v{OAD1}
    v_lshlrev_b32 v{aKB}, 3, v1
    v_add_u32 v{aKB}, {LKV+1024}, v{aKB}
    v_mul_u32_u24 v{aV0}, 320, v2
    v_lshl_add_u32 v{aV0}, v1, 4, v{aV0}
    v_add_u32 v{aV0}, {LKV+1280}, v{aV0}
    v_add_u32 v{aV1}, 640, v{aV0}
    v_mov_b32 v{AP0}, v3
    s_mov_b32 exec_lo, 0xfff00000
    s_mov_b32 exec_hi, 0xfff00000
    v_mov_b32 v{aV0}, {LKV+2560}
    v_mov_b32 v{aV1}, {LKV+2560}
    v_mov_b32 v{AP0}, 20
    s_mov_b32 exec_lo, 0
    s_mov_b32 exec_hi, -1
    v_mov_b32 v{aKB}, {LKV+2560}
    s_mov_b64 exec, -1
    s_mul_i32 s8, s39, 840
    s_add_u32 s8, s8, {LKVZ}
    v_mul_u32_u24 v{AP0}, 40, v{AP0}
    v_add_u32 v{AP0}, s8, v{AP0}
    v_lshl_add_u32 v{AP1}, v2, 4, v{AP0}
    s_lshl_b32 s10, s4, 3
    s_add_u32 s10, s10, s5
    s_lshl_b32 s10, s10, 1
    s_add_u32 s10, s10, s38
    s_mul_i32 s10, s10, 5120
    s_lshl_b32 s81, s39, 10
    s_add_u32 s81, s81, s10
    s_lshl_b32 s82, s39, 8
    s_add_u32 s82, s82, s10
    s_add_u32 s82, s82, 4096
    s_mul_i32 s8, s38, 5120
    s_mul_i32 s9, s39, 40
    s_add_u32 s8, s8, s9
    s_add_u32 s8, s8, {LQ}
    v_mul_u32_u24 v{t}, 160, v1
    v_add_u32 v{QF0}, s8, v{t}
    v_lshl_add_u32 v{QF1}, v2, 4, v{QF0}
    v_lshl_add_u32 v{t}, v2, 3, v{t}
    v_add_u32 v{t}, {LQ}, v{t}
    v_add_u32 v{TL0}, s76, v{t}
    v_add_u32 v{TL1}, s77, v{t}
    s_add_u32 s9, s3, 1
    s_lshr_b32 s9, s9, 1
    s_add_u32 s9, s9, 2
    s_sub_u32 s10, s3, 5
    s_cmp_ge_u32 s3, 5
    s_cselect_b32 s12, s10, s39
    s_cselect_b32 s13, 0, s9
    s_lshl_b32 s10, s12, 12
    s_lshl_b32 s9, s13, 12
    v_add_u32 v{JA}, s10, v{OAD1}
    v_add_u32 v{JB}, s9, v{OAD1}
    s_lshl_b32 s10, s12, 5
    s_lshl_b32 s9, s13, 5
    s_sub_u32 s9, s9, 80
    v_lshlrev_b32 v{t}, 2, v2
    v_add_u32 v{t}, s10, v{t}
    v_add_u32 v{t+1}, s9, v1
    v_and_b32 v{t+2}, 0xffff, v{t+1}
    v_mul_u32_u24 v{t+2}, 3277, v{t+2}
    v_lshrrev_b32 v{t+2}, 16, v{t+2}
    v_mul_u32_u24 v{t+3}, 80, v{t+1}
    s_cmp_ge_u32 s3, 5
    s_cbranch_scc1 PC_z
    """)
    for z in range(2):
        for q in range(4):
            m = MASKS[q]
            a(f"v_add_u32 v{t+4}, {8*q}, v{t}")
            a(f"v_mul_u32_u24 v{t+5}, 3277, v{t+4}")
            a(f"v_lshrrev_b32 v{t+5}, 16, v{t+5}")
            if z == 0:
                a(f"v_lshl_add_u32 v{PWR+q}, v{t+4}, 2, v{t+3}")
                a(f"v_cmp_eq_u32 s[{m}:{m+1}], v{t+5}, v{t+2}")
            else:
                a(f"v_add_u32 v{PWR+q}, 1, v{t+5}")
                a(f"v_mul_u32_u24 v{PWR+q}, 1600, v{PWR+q}")
                a(f"v_lshl_add_u32 v{PWR+q}, v{t+4}, 2, v{PWR+q}")
                a(f"v_cmp_gt_u32 s[{m}:{m+1}], 4, v{t+5}")
                a(f"s_and_b32 s{m}, s{m}, 1\ns_and_b32 s{m+1}, s{m+1}, 1")
        if z == 0:
            a("s_branch PC_zd")
            a.label("PC_z")
    a.label("PC_zd")
    for i in list(range(V1, V1 + 4)) + list(range(OO, BFR + 24)): a(f"v_mov_b32 v{i}, 0")

def gen(a):
    K = NAME + "_kernel"
    kernel_begin(a, K)
    if STAMP:
        a("s_memtime s[84:85]\ns_memrealtime s[86:87]")
    a(f"""
    s_cmp_ge_u32 s2, 256
    s_cbranch_scc1 L_end
    s_load_dwordx16 s[16:31], s[0:1], 0
    s_load_dwordx4 s[32:35], s[0:1], 64
    s_load_dwordx2 s[36:37], s[0:1], 80
    v_lshrrev_b32 v1, 6, v0
    v_and_b32 v0, 63, v0
    v_readfirstlane_b32 s3, v1
    s_and_b32 s6, s2, 7
    s_lshr_b32 s7, s2, 3
    s_lshr_b32 s4, s6, 1
    s_lshl_b32 s4, s4, 3
    s_lshr_b32 s8, s7, 2
    s_add_u32 s4, s4, s8
    s_and_b32 s5, s6, 1
    s_lshl_b32 s5, s5, 2
    s_and_b32 s8, s7, 3
    s_add_u32 s5, s5, s8
    s_cmp_ge_u32 s3, 8
    s_cbranch_scc1 L_loader
    s_cmp_lg_u32 s3, 4
    s_cbranch_scc1 C_pre
    s_getpc_b64 s[44:45]
    """)
    a.label("L_pc")
    a(f"s_sub_u32 s44, s44, L_pc-{K}\ns_subb_u32 s45, s45, 0")
    a(f"s_mov_b32 s46, L_codeend-{K}\ns_mov_b32 s47, 0x20000")
    a("v_lshlrev_b32 v4, 7, v0\ns_mov_b32 s8, 0x2000\ns_mov_b32 s9, 0x4000")
    a("buffer_load_dword v5, v4, s[44:47], 0 offen\nbuffer_load_dword v6, v4, s[44:47], s8 offen\nbuffer_load_dword v7, v4, s[44:47], s9 offen")
    a("s_cmp_ge_u32 s2, 8\ns_cbranch_scc1 C_pre")
    a("s_memrealtime s[8:9]\ns_waitcnt lgkmcnt(0)\ns_or_b32 s8, s8, 1")
    srd(a, 44, 34, 256)
    a("v_mov_b32 v8, s8\nv_mov_b32 v9, 0\nv_mov_b32 v10, 0\ns_mov_b64 exec, 1")
    a("buffer_atomic_cmpswap v[8:9], v10, s[44:47], 0 offen sc1")
    a("s_mov_b64 exec, -1")
    a.label("C_pre")
    precompute(a)
    a("s_waitcnt lgkmcnt(0)")
    srd(a, 40, 36, WS_SIZE)
    a("s_cmp_lt_u32 s3, 3\ns_cbranch_scc1 A_q")
    a("s_cmp_eq_u32 s3, 5\ns_cbranch_scc1 A_kvpoll")
    a("s_cmp_lt_u32 s3, 6\ns_cbranch_scc1 A_bars")
    srd(a, 44, 34, 256)
    a(f"""
    v_mov_b32 v10, 0
    v_and_b32 v20, 15, v0
    v_lshrrev_b32 v21, 4, v0
    v_xor_b32 v22, v20, v21
    v_lshlrev_b32 v22, 4, v22
    v_lshl_add_u32 v22, v20, 8, v22
    v_add_u32 v22, {LMX}, v22
    v_xor_b32 v23, 64, v22
    v_xor_b32 v24, 128, v22
    v_xor_b32 v25, 192, v22
    v_bfe_u32 v26, v0, 2, 2
    v_lshl_add_u32 v26, v21, 3, v26
    v_mul_u32_u24 v26, 40, v26
    v_and_b32 v27, 3, v0
    v_lshl_add_u32 v26, v27, 3, v26
    s_lshl_b32 s8, s38, 5
    s_add_u32 s8, s8, {LWKV}
    v_add_u32 v26, s8, v26
    s_lshl_b32 s12, s4, 1
    s_lshr_b32 s8, s5, 2
    s_add_u32 s12, s12, s8
    s_mul_i32 s12, s12, {TILE}
    s_add_u32 s12, s12, {WS_KV}
    s_bfe_u32 s13, s5, 0x10001
    s_lshl_b32 s55, s4, 4
    s_add_u32 s55, s55, s5
    s_lshl_b32 s55, s55, 1
    s_add_u32 s55, s55, s38
    s_lshl_b32 s55, s55, 2
    s_add_u32 s55, s55, {FL_KV}
    v_and_b32 v27, 1, v21
    s_mov_b32 s56, 0
    s_mov_b64 s[48:49], -1
    """)
    for i in range(12, 16): a(f"v_mov_b32 v{i}, 0")
    MF = [BACC + 8 * i for i in range(4)]
    def mini(lbl, orient):
        def mm(st):
            x, w, ac = v(MF[st], 4), v(MF[st] + 4, 4), v(12, 4)
            a(f"v_mfma_f32_16x16x32_bf16 {ac}, {w}, {x}, {ac}" if orient == "R" else f"v_mfma_f32_16x16x32_bf16 {ac}, {x}, {w}, {ac}")
        a("s_barrier")
        a("buffer_load_dword v11, v10, s[44:47], 0 offen sc1")
        a.label(lbl)
        for st in range(4):
            f = MF[st]
            a(f"ds_read_b128 v[{f}:{f+3}], v{22+st}")
            for hf in range(2):
                a(f"ds_read_b64_tr_b16 v[{f+4+2*hf}:{f+5+2*hf}], v26 offset:{(32*st+4*hf)*40}")
            a(f"v_add_u32 v{22+st}, 4096, v{22+st}")
            a("s_waitcnt lgkmcnt(9)")
            mm((st + 1) % 4)
        a("v_add_u32 v26, 5120, v26")
        a(f"s_add_u32 s56, s56, 1\ns_cmp_lt_u32 s56, 5\ns_cbranch_scc1 {lbl}")
        for st, w in ((1, 6), (2, 3), (3, 0)):
            a(f"s_waitcnt lgkmcnt({w})"); mm(st)
    a("s_bitcmp1_b32 s5, 0")
    a("s_cbranch_scc1 M_v")
    a(f"""
    s_lshl_b32 s8, s13, 4
    v_add_u32 v20, s8, v20
    v_lshlrev_b32 v28, 4, v20
    v_lshl_add_u32 v28, v2, 9, v28
    v_lshl_add_u32 v28, v27, 3, v28
    s_cmp_eq_u32 s3, 6
    s_cbranch_scc1 M_k0
    v_lshlrev_b32 v28, 3, v20
    v_add_u32 v28, 1024, v28
    s_mov_b32 exec_lo, 0xffff0000
    v_lshlrev_b32 v28, 3, v1
    v_add_u32 v28, {2560-128}, v28
    s_mov_b32 exec_lo, -1
    s_mov_b32 s49, 0
    """)
    a.label("M_k0")
    mini("M_kl", "R")
    a("s_nop 7")
    a("v_cvt_pk_bf16_f32 v12, v12, v13\nv_cvt_pk_bf16_f32 v13, v14, v15")
    a("s_cmp_eq_u32 s3, 6\ns_cbranch_scc1 M_st")
    a("s_mov_b32 exec_lo, 0xffff0000")
    a("v_mov_b32 v12, 0x3f803f80\nv_mov_b32 v13, 0x3f803f80")
    a("s_branch M_st")
    a.label("M_v")
    a(f"""
    s_mul_i32 s8, s13, 640
    s_add_u32 s12, s12, s8
    s_lshl_b32 s8, s38, 8
    s_add_u32 s12, s12, s8
    s_add_u32 s12, s12, 1280
    v_lshrrev_b32 v28, 2, v20
    v_add_u32 v28, 1, v28
    v_and_b32 v28, 2, v28
    v_mul_u32_u24 v28, 6, v28
    v_xor_b32 v28, v20, v28
    v_mul_u32_u24 v29, 320, v27
    v_lshl_add_u32 v29, v2, 3, v29
    v_lshl_add_u32 v28, v28, 4, v29
    s_cmp_eq_u32 s3, 6
    s_cselect_b32 s48, -1, 0x000f000f
    s_mov_b32 s49, s48
    """)
    mini("M_vl", "C")
    a("s_nop 7")
    a("v_cvt_pk_bf16_f32 v12, v12, v13\nv_cvt_pk_bf16_f32 v13, v14, v15")
    a.label("M_st")
    a("s_mov_b64 exec, s[48:49]")
    a("buffer_store_dwordx2 v[12:13], v28, s[40:43], s12 offen sc1")
    a("s_mov_b64 exec, -1")
    gs(a, 0, "v30", "v31")
    a("s_barrier")
    for i in range(32): a(f"v_mov_b32 v{BACC+i}, 0")
    a("s_barrier")
    a("s_mov_b32 s9, 0")
    a.label("A_np")
    a("s_add_u32 s9, s9, 1")
    a("s_waitcnt vmcnt(0)")
    a("v_cmp_eq_u32 vcc, 0, v11")
    a(f"s_cmp_gt_u32 s9, {SPIN_MAX}\ns_cbranch_scc1 A_nd\ns_cbranch_vccz A_nd\ns_sleep 1")
    a("buffer_load_dword v11, v10, s[44:47], 0 offen sc1")
    a("s_branch A_np")
    a.label("A_nd")
    a("s_mov_b64 exec, 1")
    a("buffer_store_dword v11, v10, s[40:43], s55 offen sc1")
    a("s_mov_b64 exec, -1")
    a(f"v_mov_b32 v5, {LMISC}\nds_write_b32 v5, v11\ns_waitcnt lgkmcnt(0)")
    gs(a, 1, "v30", "v31")
    a("s_branch A_bars8")
    a.label("A_kvpoll")
    a("v_lshrrev_b32 v20, 1, v0\nv_lshlrev_b32 v20, 7, v20\nv_and_b32 v21, 1, v0\nv_lshl_add_u32 v20, v21, 4, v20")
    a(f"v_mov_b32 v18, v{OAD1}")
    a("s_and_b32 s60, s7, 15")
    a(f"s_mov_b32 s61, {LKV}\ns_mov_b32 s12, {FL_KV}\ns_mov_b32 s13, 2\ns_mov_b32 s9, 0")
    for i in range(9): a("s_barrier")
    get_nonce(a, "v22", "v23")
    a.label("A_kp")
    a("buffer_load_dwordx4 v[24:27], v20, s[40:43], s12 offen sc1")
    a("buffer_load_dwordx4 v[28:31], v20, s[40:43], s12 offen offset:32 sc1")
    a("s_cmp_eq_u32 s13, 0\ns_cbranch_scc1 A_kq")
    a("s_barrier\ns_barrier\ns_sub_u32 s13, s13, 2")
    a.label("A_kq")
    a("s_sleep 1")
    a("s_add_u32 s9, s9, 1")
    a("s_waitcnt vmcnt(0)")
    for i in range(8): a(f"v_xor_b32 v{24+i}, s96, v{24+i}")
    a("v_or3_b32 v24, v24, v25, v26\nv_or3_b32 v27, v27, v28, v29\nv_or3_b32 v24, v24, v30, v31\nv_or_b32 v24, v24, v27\nv_cmp_ne_u32 vcc, 0, v24")
    a(f"s_cmp_gt_u32 s9, {SPIN_MAX}\ns_cbranch_scc1 A_kd\ns_cbranch_vccnz A_kp")
    a.label("A_kd")
    gs(a, 4, "v30", "v31")
    for i in range(3): call(a, "L_issueKV", "s[62:63]")
    a.label("A_kr")
    a("s_cmp_eq_u32 s13, 0\ns_cbranch_scc1 A_ke\ns_barrier\ns_sub_u32 s13, s13, 1\ns_branch A_kr")
    a.label("A_ke")
    a("s_waitcnt vmcnt(22)")
    a("s_branch A_done")
    a.label("A_bars")
    for i in range(3): a("s_barrier")
    a.label("A_bars8")
    for i in range(8): a("s_barrier")
    a("s_waitcnt vmcnt(0)")
    a("s_branch A_done")
    a.label("A_q")
    def ard(st, i):
        f = AFR[st]
        if i < 2: a(f"ds_read_b64_tr_b16 v[{f+2*i}:{f+2*i+1}], v{bW} offset:{(16*st+4*i)*160}")
        else: a(f"ds_read_b128 v[{f+4*(i-1)}:{f+4*(i-1)+3}], v{bX+st} offset:{4096*(i-2)}")
    def amf(st, blk):
        f = AFR[st]; ac = v(BACC + 16 * blk, 16)
        a(f"v_mfma_f32_32x32x16_bf16 {ac}, v[{f}:{f+3}], v[{f+4+4*blk}:{f+7+4*blk}], {ac}")
    a(f"s_mov_b32 s56, 0\ns_mov_b32 s70, {HS}\ns_mov_b32 s74, {-5*HS}\ns_mov_b32 s75, {-3*HS}")
    a("s_barrier\ns_barrier")
    for st in (0, 1, 2):
        for i in range(4): ard(st, i)
    a("s_branch A_mid")
    a(".p2align 3")
    a.label("A_loop")
    a("s_waitcnt lgkmcnt(0)\ns_barrier")
    seq = [(st, i) for st in (0, 1, 2) for i in range(4)]
    for n, (st, blk) in enumerate(((2, 0), (2, 1), (3, 0), (3, 1))):
        amf(st, blk)
        for x in seq[3 * n:3 * n + 3]: ard(*x)
    a.label("A_mid")
    a("s_add_u32 s56, s56, 1\ns_cmp_eq_u32 s56, 6\ns_cselect_b32 s8, s74, s70")
    a("s_waitcnt lgkmcnt(8)")
    amf(0, 0); ard(3, 0); ard(3, 1)
    a("s_cmp_lt_u32 s56, 10\ns_cselect_b32 s8, s8, s75")
    amf(0, 1); ard(3, 2); ard(3, 3)
    a("s_waitcnt lgkmcnt(8)")
    a(f"v_add_u32 v{bW}, s8, v{bW}")
    amf(1, 0)
    for j in range(4): a(f"v_add_u32 v{bX+j}, s8, v{bX+j}")
    amf(1, 1)
    a("s_cbranch_scc1 A_loop")
    a("s_waitcnt lgkmcnt(4)")
    amf(2, 0); amf(2, 1)
    a("s_waitcnt lgkmcnt(0)")
    amf(3, 0); amf(3, 1)
    a(f"s_mov_b32 s8, {f32(CSCALE)}")
    a("s_nop 9")
    for i in range(0, 32, 2):
        a(f"v_pk_mul_f32 v[{BACC+i}:{BACC+i+1}], v[{BACC+i}:{BACC+i+1}], s[8:9] op_sel_hi:[1,0]")
    call(a, "g_pack")
    call(a, "g_t2l")
    for i in range(31, -1, -1): a(f"v_mov_b32 v{BACC+i}, 0")
    a.label("A_done")
    def rdKA(t): a(f"ds_read_b128 v[{KA}:{KA+3}], v{aKA} offset:{t*TILE}")
    def rdKB(t): a(f"ds_read_b64 v[{KB}:{KB+1}], v{aKB} offset:{t*TILE}")
    def rdV0(t): a(f"ds_read_b128 v[{V0}:{V0+3}], v{aV0} offset:{t*TILE}")
    def rdV1(t): a(f"ds_read_b128 v[{V1}:{V1+3}], v{aV1} offset:{t*TILE}")
    def qka(S): a(f"v_mfma_f32_32x32x16_bf16 v[{S}:{S+15}], v[{KA}:{KA+3}], v[{QA}:{QA+3}], 0")
    def qkb(S): a(f"v_mfma_f32_32x32x8_bf16 v[{S}:{S+15}], v[{KB}:{KB+1}], v[{QB}:{QB+1}], v[{S}:{S+15}]")
    def pv0(): a(f"v_mfma_f32_32x32x16_bf16 v[{OO}:{OO+15}], v[{V0}:{V0+3}], v[{PP}:{PP+3}], v[{OO}:{OO+15}]")
    def pv1(): a(f"v_mfma_f32_32x32x16_bf16 v[{OO}:{OO+15}], v[{V1}:{V1+3}], v[{PP+4}:{PP+7}], v[{OO}:{OO+15}]")
    def E(S, lo, hi, w=None):
        for i in range(lo, hi):
            if w is not None and i == hi - 1:
                a(w if isinstance(w, str) else f"s_waitcnt lgkmcnt({w})"); a(f"v_exp_f32_e64 v{S+i}, v{S+i}")
            else: a(f"v_exp_f32 v{S+i}, v{S+i}")
    def c1(k, S): a(f"v_cvt_pk_bf16_f32 v{PP+k}, v{S+2*k}, v{S+2*k+1}")
    def C(S, g): c1(2 * g, S); c1(2 * g + 1, S)
    for i in range(4): a(f"v_mov_b32 v{PP+4+i}, 0")
    a("s_mov_b32 s57, 0\ns_mov_b64 vcc, 0")
    a("s_waitcnt lgkmcnt(0)\ns_barrier")
    a(f"v_mov_b32 v{PP}, {LMISC}\nds_read_b32 v{PP+3}, v{PP}")
    read_qfrag(a, QA, QB)
    rdKA(0); rdKB(0); rdV0(0)
    a(f"s_mov_b32 s8, {LPQ - LQ}")
    for r in (QF0, QF1, TL0, TL1): a(f"v_add_u32 v{r}, s8, v{r}")
    a("s_mov_b32 exec_lo, 0")
    a("s_waitcnt lgkmcnt(1)")
    a(f"v_mov_b32 v{QB}, 0\nv_mov_b32 v{QB+1}, 0")
    a("s_mov_b32 exec_lo, -1")
    qka(S0); qkb(S0)
    rdKA(1); rdKB(1)
    a(f"v_readfirstlane_b32 s96, v{PP+3}")
    a(f"s_lshl_b32 s55, s4, 3\ns_add_u32 s55, s55, s5\ns_lshl_b32 s55, s55, 5\ns_add_u32 s55, s55, s3\ns_lshl_b32 s55, s55, 2\ns_add_u32 s55, s55, {FL_OA}")
    a("s_nop 2")
    rowmax(a, S0, PP)
    set_m(a, PP, PP + 1, PP + 2)
    for i in range(16): a(f"v_sub_f32 v{S0+i}, v{S0+i}, v{PP+2}")
    a("s_waitcnt lgkmcnt(0)")
    a("s_cmp_eq_u32 s57, 0")
    a(".p2align 6")
    a.label("AT_loop")
    for n in range(16):
        Sc, Sn = (S0, S1) if n % 2 == 0 else (S1, S0)
        if n % 4 == 2: a("s_waitcnt vmcnt(0)\ns_barrier")
        if n == 4:
            a("s_cbranch_vccnz AT_apply\ns_nop 0")
            a.label("AT_n4")
        if n == 12: a("s_cbranch_scc1 FU_start\ns_nop 0")
        qka(Sn); rdKA((n + 2) % 16); E(Sc, 0, 4, 3)
        pv1(); rdV1(n); C(Sc, 0); E(Sc, 4, 8, 3)
        qkb(Sn); rdKB((n + 2) % 16); C(Sc, 1); E(Sc, 8, 12, 3)
        pv0(); rdV0((n + 1) % 16); C(Sc, 2); E(Sc, 12, 16, 3); C(Sc, 3)
    a("s_mov_b64 vcc, -1")
    a("s_add_u32 s57, s57, 1\ns_cmp_ge_u32 s57, 2\ns_cbranch_scc0 AT_loop")
    a("s_waitcnt lgkmcnt(0)")
    pv1()
    srd(a, 44, 32, 2048 * 2560)
    a("s_mov_b32 s83, 0\ns_mov_b32 s71, 0\ns_mov_b32 s72, 20480\ns_mov_b32 s73, -40960\ns_mov_b32 s74, 25600\ns_mov_b32 s75, -102400")
    a("s_nop 2")
    a(f"v_cmp_nge_f32 vcc, {f32(2.0**40)}, v{OO+12}")
    a("s_nop 1")
    a("s_cbranch_vccnz AT_fallback")
    a.label("AT_ok")
    o_epilogue(a, OO, WS_OA, False)
    a("s_cmp_ge_u32 s3, 4\ns_cbranch_scc1 TLz_job")
    F = [20 + 8 * i for i in range(10)]
    LA = 4
    def tl_pub(pfx):
        a(f"s_cmp_eq_u32 s55, 0\ns_cbranch_scc1 {pfx}_np")
        a("s_waitcnt vmcnt(0)")
        publish(a, "s55", "v100", "v101")
        a("s_mov_b32 s55, 0")
        a.label(pfx + "_np")
    def tl_head():
        tl_pub("TLm"); a("s_waitcnt lgkmcnt(0)\ns_barrier")
    def tl_adv():
        a("s_add_u32 s71, s71, 1\ns_cmp_eq_u32 s71, 3\ns_cselect_b32 s8, s73, s72\ns_cselect_b32 s71, 0, s71")
        a(f"v_add_u32 v{tW1}, s74, v{tW1}\nv_add_u32 v{tW2}, s74, v{tW2}\nv_add_u32 v{tX1}, s8, v{tX1}\nv_add_u32 v{tX2}, s8, v{tX2}")
        a("s_add_u32 s56, s56, 1\ns_cmp_lt_u32 s56, 4")
    def mrd(st):
        f = F[st]; t, H = divmod(st, 5)
        if H < 4:
            for hf in range(2): a(f"ds_read_b64_tr_b16 v[{f+2*hf}:{f+2*hf+1}], v{tW1} offset:{(80*t+20*H+4*hf)*160}")
            a(f"ds_read_b128 v[{f+4}:{f+7}], v{tX1} offset:{t*10240+H*1024}")
        else:
            for hf in range(2): a(f"ds_read_b64_tr_b16 v[{f+2*hf}:{f+2*hf+1}], v{tW2} offset:{(80*t+40*hf)*160}")
            for hf in range(2): a(f"ds_read_b64 v[{f+4+2*hf}:{f+5+2*hf}], v{tX2} offset:{t*10240+4096+512*hf}")
    def mmf(st): a(f"v_mfma_f32_32x32x16_bf16 v[4:19], v[{F[st]}:{F[st]+3}], v[{F[st]+4}:{F[st]+7}], v[4:19]")
    nrd = lambda st: 4 if st % 5 == 4 else 3
    a.label("TLm_job")
    for i in range(4, 20): a(f"v_mov_b32 v{i}, 0")
    a("s_mov_b32 s56, 0")
    a("s_barrier")
    for st in range(LA): mrd(st)
    a("s_branch TLm_mid")
    a(".p2align 3")
    a.label("TLm_loop")
    tl_head()
    for st in range(LA):
        mmf(10 - LA + st); mrd(st)
    a.label("TLm_mid")
    for st in range(LA, 10):
        mrd(st)
        a(f"s_waitcnt lgkmcnt({sum(nrd(x) for x in range(st-LA+1, st+1))})")
        mmf(st - LA)
    tl_adv()
    a("s_cbranch_scc1 TLm_loop")
    for st in range(10 - LA, 10):
        a(f"s_waitcnt lgkmcnt({sum(nrd(x) for x in range(st+1, 10))})")
        mmf(st)
    a(f"v_add_u32 v{tW1}, s75, v{tW1}\nv_add_u32 v{tW2}, s75, v{tW2}")
    a("s_nop 9")
    for i in range(8): a(f"v_cvt_pk_bf16_f32 v{100+i}, v{4+2*i}, v{5+2*i}")
    a("s_nop 1")
    for half in range(2):
        d = 100 + 4 * half
        a(f"v_permlane32_swap_b32 v{d}, v{d+2}\nv_permlane32_swap_b32 v{d+1}, v{d+3}")
    for half in range(2):
        d = 100 + 4 * half
        a(f"buffer_store_dwordx4 v[{d}:{d+3}], v{tO}, s[44:47], s80 offen offset:{32*half} {ONT}")
    a("s_sub_u32 s80, s80, 1280")
    a("s_add_u32 s83, s83, 1\ns_cmp_lt_u32 s83, 2\ns_cbranch_scc1 TLm_job")
    stamp_end(a)
    a("s_endpgm")
    a.label("TLz_job")
    for i in range(4, 8): a(f"v_mov_b32 v{i}, 0")
    a("s_mov_b32 s56, 0")
    a("s_branch TLz_np")
    a.label("TLz_loop")
    tl_pub("TLz")
    a("s_barrier")
    for j in range(4):
        f = F[j]; t = j >> 1
        for hf in range(2): a(f"ds_read_b64_tr_b16 v[{f+2*hf}:{f+2*hf+1}], v{tW1} offset:{(80*t+40*(j&1)+4*hf)*160}")
        a(f"ds_read_b128 v[{f+4}:{f+7}], v{tX1} offset:{t*10240+(j&1)*2048}")
    def zmf(j): a(f"v_mfma_f32_16x16x32_bf16 v[4:7], v[{F[j]}:{F[j]+3}], v[{F[j]+4}:{F[j]+7}], v[4:7]")
    a("s_waitcnt lgkmcnt(9)"); zmf(0)
    f = F[4]
    for t in range(2): a(f"ds_read_b64_tr_b16 v[{f+2*t}:{f+2*t+1}], v{tW2} offset:{12800*t}")
    for t in range(2): a(f"ds_read_b64 v[{f+4+2*t}:{f+5+2*t}], v{tX2} offset:{4096+10240*t}")
    a("s_waitcnt lgkmcnt(10)"); zmf(1)
    a("s_waitcnt lgkmcnt(7)"); zmf(2)
    a("s_waitcnt lgkmcnt(4)"); zmf(3)
    a("s_waitcnt lgkmcnt(0)"); zmf(4)
    tl_adv()
    a("s_cbranch_scc1 TLz_loop")
    a(f"v_add_u32 v{tW1}, s75, v{tW1}\nv_add_u32 v{tW2}, s75, v{tW2}")
    a("v_cvt_pk_bf16_f32 v100, v4, v5\nv_cvt_pk_bf16_f32 v101, v6, v7")
    a(f"buffer_store_dwordx2 v[100:101], v{tO}, s[44:47], s80 offen offset:128 {ONT}")
    a("s_sub_u32 s80, s80, 1280")
    a("s_add_u32 s83, s83, 1\ns_cmp_lt_u32 s83, 2\ns_cbranch_scc1 TLz_job")
    stamp_end(a)
    a("s_endpgm")
    a.label("FU_start")
    a(f"s_mov_b32 s8, {3*CH}")
    for r in (aKA, aKB, aV0, aV1): a(f"v_add_u32 v{r}, s8, v{r}")
    a(f"s_mov_b32 s56, 0\ns_mov_b32 s68, 0\ns_mov_b32 s70, {SLOT}\ns_mov_b32 s74, {-2*SLOT}\ns_mov_b32 s72, {CH}\ns_mov_b32 s73, {-3*CH}")
    a("s_waitcnt lgkmcnt(0)")
    a("s_cmp_ge_u32 s3, 3\ns_cbranch_scc1 FU_C")
    def G(orient, s_, blk):
        f = BFR + 12 * s_; w, x, ac = v(f, 4), v(f + 4 + 4 * blk, 4), v(BACC + 16 * blk, 16)
        a(f"v_mfma_f32_32x32x16_bf16 {ac}, {w}, {x}, {ac}" if orient == "R" else f"v_mfma_f32_32x32x16_bf16 {ac}, {x}, {w}, {ac}")
    def GR(orient, s_, st):
        f = BFR + 12 * s_; stride = 160 if orient == "R" else 320
        for hf in range(2): a(f"ds_read_b64_tr_b16 v[{f+2*hf}:{f+2*hf+1}], v{bW} offset:{(16*st+4*hf)*stride}")
        for blk in range(2): a(f"ds_read_b128 v[{f+4+4*blk}:{f+7+4*blk}], v{bX+st} offset:{4096*blk}")
    for orient in ("R", "C"):
        a(".p2align 3")
        a.label("FU_" + orient)
        a("s_and_b32 s9, s56, 3\ns_cselect_b32 s9, s72, s73")
        for n in range(4):
            Sc, Sn = (S0, S1) if n % 2 == 0 else (S1, S0)
            def slot(i, w=None):
                c1((i - 1) % 8, Sn if i == 0 else Sc)
                E(Sc, 2 * i, 2 * i + 2, w)
            def va(*regs, sg):
                for r in regs: a(f"v_add_u32 v{r}, {sg}, v{r}")
            G(orient, 0, 0)
            if n == 2: va(aKA, aKB, sg="s9")
            slot(0, 11)
            qka(Sn); rdKA((n + 2) % 4); slot(1)
            if n % 2 == 0:
                a("s_waitcnt lgkmcnt(1)\ns_barrier")
                a("s_add_u32 s68, s68, 1\ns_cmp_eq_u32 s68, 3\ns_cselect_b32 s8, s74, s70\ns_cselect_b32 s68, 0, s68")
            G(orient, 0, 1); GR(orient, 0, (2 * n) % 4); slot(2, 11)
            pv1(); rdV1(n); slot(3, 11)
            qkb(Sn); rdKB((n + 2) % 4); slot(4, 7)
            G(orient, 1, 0)
            if n == 3: va(aV0, aV1, sg="s9")
            slot(5)
            pv0(); rdV0((n + 1) % 4); slot(6)
            G(orient, 1, 1); GR(orient, 1, (2 * n + 1) % 4)
            if n % 2 == 0: va(bX, bX + 1, sg="s8")
            else:
                va(bX + 2, bX + 3, bW, sg="s8"); a("s_nop 0")
            slot(7, 7)
        a(f"s_add_u32 s56, s56, 1\ns_cmp_lt_u32 s56, 5\ns_cbranch_scc1 FU_{orient}")
        c1(7, S1)
        G(orient, 0, 0); G(orient, 0, 1)
        a("s_waitcnt lgkmcnt(0)")
        G(orient, 1, 0); G(orient, 1, 1)
        if orient == "R":
            a("s_nop 8")
            call(a, "g_phi")
            call(a, "g_t2l")
            a("s_branch B_jobs")
    a("s_lshl_b32 s8, s78, 12")
    a(f"v_add_u32 v{TL0}, s8, v{OAD1}")
    a("s_nop 6")
    a("s_cmp_ge_u32 s78, 3")
    a("s_cbranch_scc1 B_nophi")
    a("s_cmp_eq_u32 s78, 2")
    a("s_cselect_b32 s8, 0xffff, -1")
    a("s_mov_b32 exec_lo, s8\ns_mov_b32 exec_hi, s8")
    call(a, "g_phi")
    a("s_branch B_wr")
    a.label("B_nophi")
    call(a, "g_pack")
    a.label("B_wr")
    for ks in range(4):
        d = BACC + 4 * ks
        a(f"ds_write_b128 v{TL0}, v[{d}:{d+3}] offset:{LFR+1024*ks}")
    a.label("B_jobs")
    JAF, JBF, JD = BACC, BACC + 16, BFR
    a("s_cmp_lt_u32 s3, 5\ns_cbranch_scc1 B_noz")
    for i in range(16): a(f"v_mov_b32 v{JBF+i}, 0x3f803f80")
    a.label("B_noz")
    a("s_waitcnt lgkmcnt(0)\ns_barrier")
    for ks in range(4): a(f"ds_read_b128 v[{JAF+4*ks}:{JAF+4*ks+3}], v{JA} offset:{LFR+1024*ks}")
    a("s_cbranch_scc0 B_nob")
    for ks in range(4): a(f"ds_read_b128 v[{JBF+4*ks}:{JBF+4*ks+3}], v{JB} offset:{LFR+1024*ks}")
    a.label("B_nob")
    read_qfrag(a, PQA, PQB)
    a("s_waitcnt lgkmcnt(2)")
    for ks in range(4):
        c = "0" if ks == 0 else v(JD, 16)
        a(f"v_mfma_f32_32x32x16_bf16 {v(JD,16)}, v[{JAF+4*ks}:{JAF+4*ks+3}], v[{JBF+4*ks}:{JBF+4*ks+3}], {c}")
    a("s_mov_b32 exec_lo, 0")
    a("s_waitcnt lgkmcnt(0)")
    a(f"v_mov_b32 v{PQB}, 0\nv_mov_b32 v{PQB+1}, 0")
    a("s_nop 7")
    for q in range(4):
        a(f"s_mov_b64 exec, s[{MASKS[q]}:{MASKS[q]+1}]")
        a(f"ds_write_b128 v{PWR+q}, v[{JD+4*q}:{JD+4*q+3}] offset:{LPART}")
    a("s_mov_b64 exec, -1")
    a("s_waitcnt lgkmcnt(0)\ns_barrier")
    a("s_cmp_lg_u32 s57, 0")
    a("s_branch AT_loop")
    a.label("AT_apply")
    AP = BACC
    a(f"""
    ds_read2_b64 v[100:103], v{AP1} offset0:0 offset1:1
    ds_read_b64 v[104:105], v{AP0} offset:32
    s_waitcnt lgkmcnt(0)
    v_mfma_f32_32x32x16_bf16 v[{AP}:{AP+15}], v[100:103], v[{PQA}:{PQA+3}], 0
    v_mfma_f32_32x32x8_bf16 v[{AP}:{AP+15}], v[104:105], v[{PQB}:{PQB+1}], v[{AP}:{AP+15}]
    s_nop 11
    """)
    o_epilogue(a, AP, WS_OB, True)
    a("s_cmp_eq_u32 s57, 0")
    a("s_branch AT_n4")
    a.label("AT_fallback")
    FM = BACC
    a("s_mov_b32 exec_lo, 0")
    a(f"v_mov_b32 v{QB}, 0\nv_mov_b32 v{QB+1}, 0")
    a("s_mov_b32 exec_lo, -1")
    a(f"v_mov_b32 v{FM}, 0xff800000")
    a(f"s_mov_b32 s70, {WS_KV - LKV}")
    a.label("AT_fb1")
    a(f"buffer_load_dwordx4 v[{KA}:{KA+3}], v{aKA}, s[40:43], s70 offen sc1")
    a(f"buffer_load_dwordx2 v[{KB}:{KB+1}], v{aKB}, s[40:43], s70 offen sc1")
    a("s_waitcnt vmcnt(0)")
    qka(S0); qkb(S0)
    a("s_nop 15")
    rowmax(a, S0, FM, first=False)
    a(f"s_add_u32 s70, s70, {TILE}\ns_cmp_lt_u32 s70, {WS_KV-LKV+64*TILE}\ns_cbranch_scc1 AT_fb1")
    set_m(a, FM, FM + 1, FM + 2)
    for i in range(16): a(f"v_mov_b32 v{OO+i}, 0")
    a(f"s_mov_b32 s70, {WS_KV - LKV}")
    a.label("AT_fb2")
    a(f"buffer_load_dwordx4 v[{KA}:{KA+3}], v{aKA}, s[40:43], s70 offen sc1")
    a(f"buffer_load_dwordx2 v[{KB}:{KB+1}], v{aKB}, s[40:43], s70 offen sc1")
    a(f"buffer_load_dwordx4 v[{V0}:{V0+3}], v{aV0}, s[40:43], s70 offen sc1")
    a(f"buffer_load_dwordx4 v[{V1}:{V1+3}], v{aV1}, s[40:43], s70 offen sc1")
    a("s_waitcnt vmcnt(0)")
    qka(S0); qkb(S0)
    a("s_nop 15")
    E(S0, 0, 16)
    a("s_nop 0")
    for g in range(4): C(S0, g)
    a("s_nop 1")
    pv0(); pv1()
    a(f"s_add_u32 s70, s70, {TILE}\ns_cmp_lt_u32 s70, {WS_KV-LKV+64*TILE}\ns_cbranch_scc1 AT_fb2")
    a("s_nop 15")
    a("s_branch AT_ok")

    LK = "s[62:63]"
    A_, B_, KV_, P_, WO_ = "L_issueA", "L_issueB", "L_issueKV", "L_issueP", "L_issueWo"
    a.label("L_loader")
    a("s_setprio 2")
    a("s_sub_u32 s10, s3, 8")
    a("s_mul_i32 s13, s4, 81920")
    a("v_lshlrev_b32 v18, 4, v0")
    a("s_cmp_eq_u32 s10, 1\ns_cbranch_scc1 L_mw")
    a("""
    v_lshrrev_b32 v20, 4, v0
    v_xor_b32 v21, v20, v0
    v_and_b32 v21, 15, v21
    v_lshlrev_b32 v21, 4, v21
    v_mul_u32_u24 v20, 1280, v20
    """)
    for j in range(4):
        a(f"v_xor_b32 v{28+j}, {64*j}, v21")
        a(f"v_add_u32 v{28+j}, v{28+j}, v20")
        if j < 3: a("v_add_u32 v20, 5120, v20")
    a(f"""
    s_mov_b32 m0, {LMX}
    s_lshr_b32 s14, s5, 1
    s_mul_i32 s14, s14, 20480
    s_add_u32 s14, s14, s13
    s_mov_b32 s15, 0
    s_waitcnt lgkmcnt(0)
    """)
    srd(a, 44, 16, XBYTES)
    a.label("L_mx")
    for j in range(4):
        dma(a, f"v{28+j}", 44, "s14")
        a("s_add_u32 m0, m0, 1024")
        a("s_add_u32 s14, s14, 256" if j == 3 else "s_nop 0")
    a("s_add_u32 s15, s15, 1\ns_cmp_lt_u32 s15, 5\ns_cbranch_scc1 L_mx")
    a("s_branch L_md")
    a.label("L_mw")
    a(f"s_mov_b32 m0, {LWKV}\ns_mov_b32 s14, 0")
    a("s_waitcnt lgkmcnt(0)")
    a("s_bitcmp1_b32 s5, 0")
    a("s_cselect_b32 s52, s22, s20")
    a("s_cselect_b32 s53, s23, s21")
    a("s_mov_b32 s54, 25600\ns_mov_b32 s55, 0x20000")
    a.label("L_mwl")
    for i in range(4): a(f"buffer_load_dwordx4 v18, s[52:55], s14 offen offset:{1024*i} lds")
    a("s_add_u32 m0, m0, 4096\ns_add_u32 s14, s14, 4096\ns_cmp_lt_u32 s14, 24576\ns_cbranch_scc1 L_mwl")
    a("buffer_load_dwordx4 v18, s[52:55], s14 offen lds")
    srd(a, 44, 16, XBYTES)
    a.label("L_md")
    tr_init(a); tr(a)
    a("""
    s_and_b32 s8, s5, 1
    s_mul_i32 s8, s8, 5
    s_and_b32 s9, s5, 2
    s_add_u32 s8, s8, s9
    s_and_b32 s9, s4, 7
    s_add_u32 s11, s8, s9
    s_cmp_ge_u32 s11, 10
    s_cselect_b32 s8, 10, 0
    s_sub_u32 s11, s11, s8
    s_mov_b32 s12, 0
    s_lshl_b32 s8, s10, 2
    s_lshl_b32 s9, s10, 3
    v_lshrrev_b32 v20, 4, v0
    v_add_u32 v20, s8, v20
    v_xor_b32 v20, v20, v0
    v_and_b32 v20, 7, v20
    v_lshlrev_b32 v20, 4, v20
    v_lshrrev_b32 v21, 3, v0
    v_add_u32 v21, s9, v21
    v_mul_u32_u24 v21, 1280, v21
    v_add_u32 v2, v20, v21
    s_mov_b32 s8, 1120
    """)
    for p in range(5):
        a(f"v_add_u32 v20, {64*p}, v0")
        a(f"v_mul_u32_u24 v{22+p}, 6554, v20")
        a(f"v_lshrrev_b32 v{22+p}, 16, v{22+p}")
        a(f"v_lshlrev_b32 v20, 4, v20")
        a(f"v_mad_u32_u24 v{3+p}, v{22+p}, s8, v20")
    a("s_mul_i32 s64, s5, 160")
    a(f"s_mul_i32 s65, s10, {32*1280}")
    a("s_add_u32 s65, s65, s64")
    srd(a, 48, 18, 640 * 1280)
    call(a, A_, LK)
    a("s_waitcnt vmcnt(9)"); bar(a)
    call(a, A_, LK); call(a, A_, LK)
    pk = pack3(INV)
    def swz(p):
        a(f"""
        v_add_u32 v20, {64*p}, v0
        v_mul_u32_u24 v21, 10, v{22+p}
        v_sub_u32 v20, v20, v21
        v_lshrrev_b32 v21, 1, v20
        v_and_b32 v28, 3, v{22+p}
        v_mad_u32_u24 v21, v28, 5, v21
        v_mul_u32_u24 v21, 3, v21
        v_lshrrev_b64 v[28:29], v21, s[70:71]
        v_and_b32 v28, 7, v28
        v_and_b32 v20, 1, v20
        v_lshl_or_b32 v20, v28, 1, v20
        v_lshlrev_b32 v20, 4, v20
        v_mad_u32_u24 v{41+p}, v{22+p}, s68, v20
        """)
    a("s_mov_b32 s70, 0")
    a.label("L_a")
    a("s_waitcnt vmcnt(18)"); bar(a); call(a, A_, LK)
    a("s_add_u32 s70, s70, 1\ns_cmp_lt_u32 s70, 7\ns_cbranch_scc1 L_a")
    srd(a, 40, 36, WS_SIZE)
    srd(a, 72, 26, XBYTES)
    srd(a, 76, 28, 640 * 3840)
    a("s_waitcnt vmcnt(18)"); bar(a)
    a("s_mov_b32 s8, 2560\ns_mov_b32 s9, 1280")
    for p in range(5):
        a(f"v_mad_u32_u24 v{8+p}, v{22+p}, s8, v{3+p}")
        a(f"v_lshrrev_b32 v20, 1, v{22+p}")
        a(f"v_mad_u32_u24 v{13+p}, v20, s9, v{3+p}")
    a(f"s_mul_i32 s66, s10, {32*3840}")
    a("s_add_u32 s66, s66, s64")
    a("s_add_u32 s67, s66, 1280")
    get_nonce(a, "v30", "v31")
    a("s_waitcnt vmcnt(9)"); bar(a)
    a(f"s_mov_b32 s70, {pk & 0xffffffff:#x}\ns_mov_b32 s71, {pk >> 32:#x}\ns_mov_b32 s68, 1280")
    swz(0); swz(1)
    a("s_waitcnt vmcnt(0)"); bar(a)
    swz(2); swz(3); swz(4)
    a("s_mov_b32 s12, 0")
    a("s_and_b32 s69, s5, 3")
    a("s_cmp_eq_u32 s10, 1")
    a("s_cbranch_scc1 L1_path")
    srd(a, 48, 30, 640 * 1280)
    srd(a, 52, 24, 640 * 1280)
    a("s_add_u32 s60, s7, 3\ns_and_b32 s60, s60, 15")
    a(f"s_mov_b32 s61, {LKV + 3*CH}")
    a("s_lshl_b32 s56, s4, 7\ns_lshl_b32 s57, s5, 2\ns_add_u32 s57, s57, s56")
    a("v_lshlrev_b32 v19, 2, v0")

    def stage_load():
        for g in range(5):
            for p in range(5):
                d = 60 + 4 * (5 * g + p)
                a(f"buffer_load_dwordx4 v[{d}:{d+3}], v{41+p}, s[52:55], s14 offen")
            if g < 4: a(f"s_add_u32 s14, s14, {32*1280}")
    def stage_store(base, lo, hi):
        for i in range(lo, hi):
            a(f"ds_write_b128 v18, v[{60+4*i}:{63+4*i}] offset:{base+1024*i}")
    bar(a); gs(a, 8); call(a, B_, LK)
    bar(a); call(a, KV_, LK)
    bar(a); call(a, KV_, LK); call(a, B_, LK)
    a("s_waitcnt vmcnt(30)"); bar(a); call(a, KV_, LK); call(a, B_, LK)
    a("s_waitcnt vmcnt(49)"); bar(a); call(a, KV_, LK)
    a("s_mov_b32 s70, 0")
    a.label("L0_f")
    a("s_waitcnt vmcnt(30)"); bar(a); call(a, B_, LK)
    a("s_waitcnt vmcnt(19)"); bar(a); call(a, B_, LK); call(a, KV_, LK)
    a("s_add_u32 s70, s70, 1\ns_cmp_lt_u32 s70, 3\ns_cbranch_scc1 L0_f")
    a("s_waitcnt vmcnt(30)"); bar(a); call(a, B_, LK)
    a("s_waitcnt vmcnt(19)"); bar(a); call(a, KV_, LK)
    a("s_waitcnt vmcnt(11)"); bar(a)
    a(f"s_add_u32 s14, s69, 1\ns_and_b32 s14, s14, 3\ns_mul_i32 s14, s14, {160*1280}\ns_add_u32 s14, s14, s64")
    stage_load()
    a(f"s_mov_b32 s12, 0\ns_mul_i32 s65, s69, {160*1280}")
    bar(a); bar(a)
    a("s_mov_b32 s70, 9")
    a.label("L0_kv")
    a("s_waitcnt vmcnt(31)"); bar(a); call(a, KV_, LK); call(a, "L_wo4", LK)
    a("s_add_u32 s70, s70, 1\ns_cmp_lt_u32 s70, 14\ns_cbranch_scc1 L0_kv")
    a("s_waitcnt vmcnt(31)"); bar(a)
    a(f"s_add_u32 s8, s57, {FL_OB}")
    publish(a, "s8", "v30", "v31")
    a(f"s_add_u32 s13, s13, {WS_OB}")
    a(f"s_mov_b32 s61, {LX}")
    a(f"s_add_u32 s8, s56, {FL_OB}")
    a("s_waitcnt vmcnt(1)"); bar(a)
    poll(a, "s8", 8)
    call(a, P_, LK)
    bar(a)
    gs(a, 9)
    call(a, P_, LK)
    a("v_lshrrev_b32 v19, 3, v0\nv_lshlrev_b32 v19, 7, v19\nv_and_b32 v28, 7, v0\nv_lshl_add_u32 v19, v28, 2, v19")
    a("s_waitcnt vmcnt(20)"); bar(a)
    call(a, P_, LK)
    a("s_waitcnt vmcnt(20)"); bar(a)
    call(a, P_, LK)
    a(f"s_sub_u32 s13, s13, {WS_OB - WS_OA}")
    a(f"s_lshl_b32 s8, s4, 10\ns_add_u32 s8, s8, {FL_OA}")
    a("s_waitcnt vmcnt(20)"); bar(a)
    a("buffer_load_dword v30, v19, s[40:43], s8 offen sc1")
    stage_store(25600, 0, 6)
    a("s_waitcnt vmcnt(0)\nv_cmp_ne_u32 vcc, s96, v30\ns_nop 1")
    a("s_cbranch_vccnz L0_late")
    call(a, P_, LK)
    bar(a)
    a("s_branch L0_join")
    a.label("L0_late")
    bar(a)
    poll(a, "s8", 64)
    call(a, P_, LK)
    a.label("L0_join")
    gs(a, 7)
    call(a, P_, LK)
    stage_store(25600, 6, 18)
    a("s_waitcnt vmcnt(20)"); bar(a)
    call(a, P_, LK)
    stage_store(25600, 18, 25)
    a("s_waitcnt vmcnt(20) lgkmcnt(0)"); bar(a)
    call(a, P_, LK)
    a("s_waitcnt vmcnt(20)"); bar(a)
    a("s_waitcnt vmcnt(0)"); bar(a)
    tr_dump(a)
    a("s_endpgm")
    a.label("L1_path")
    srd(a, 48, 24, 640 * 1280)
    srd(a, 52, 30, 640 * 1280)
    pf_rows(a, 46, 1280, "s60", "s61")
    a("s_lshl_b32 s56, s5, 5\ns_add_u32 s57, s56, s4")
    a(f"s_mul_i32 s68, s57, 6720\ns_add_u32 s68, s68, {WS_KVP}")
    a("s_lshl_b32 s56, s5, 9\ns_lshr_b32 s8, s4, 3\ns_lshl_b32 s8, s8, 7\ns_and_b32 s57, s4, 7\ns_lshl_b32 s57, s57, 2\ns_add_u32 s57, s57, s8\ns_add_u32 s57, s57, s56")
    a("v_lshrrev_b32 v19, 3, v0\nv_lshlrev_b32 v19, 7, v19\nv_and_b32 v28, 7, v0\nv_lshl_add_u32 v19, v28, 2, v19")
    a(f"""
    v_lshrrev_b32 v48, 4, v0
    v_mul_u32_u24 v48, {8*6720}, v48
    v_and_b32 v49, 15, v0
    v_lshl_add_u32 v48, v49, 4, v48
    v_lshlrev_b32 v49, 4, v49
    v_lshlrev_b32 v50, 3, v0
    """)
    bar(a); call(a, B_, LK)
    bar(a)
    bar(a); call(a, B_, LK)
    bar(a); call(a, B_, LK)
    a("s_waitcnt vmcnt(38)"); bar(a)
    a("s_mov_b32 s70, 0")
    a.label("L1_f")
    a("s_waitcnt vmcnt(19)"); bar(a); call(a, B_, LK)
    a("s_add_u32 s70, s70, 1\ns_cmp_lt_u32 s70, 7\ns_cbranch_scc1 L1_f")
    a("s_waitcnt vmcnt(19)"); bar(a)
    a("s_waitcnt vmcnt(0)"); bar(a)
    a("s_mov_b32 exec_hi, 0x3ffff")
    for i, (sr, so) in enumerate(((52, "s60"), (52, "s61"), (48, "s60"), (48, "s61"))):
        a(f"buffer_load_dword v{32+i}, v46, s[{sr}:{sr+3}], {so} offen")
    a("s_mov_b32 exec_hi, -1")
    bar(a); bar(a)
    R = 60
    for i in range(7):
        a(f"ds_read_b128 v[{R+4*i}:{R+3+4*i}], v18 offset:{LPART+1024*i}")
    a("s_add_u32 s8, s68, 4096")
    a("s_waitcnt lgkmcnt(0)")
    for i in range(6):
        a(f"buffer_store_dwordx4 v[{R+4*i}:{R+3+4*i}], v18, s[40:43], {'s68' if i < 4 else 's8'} offen offset:{1024*(i%4)} sc1")
    a("s_mov_b32 exec_hi, 15")
    a(f"buffer_store_dwordx4 v[{R+24}:{R+27}], v18, s[40:43], s8 offen offset:2048 sc1")
    a("s_mov_b32 exec_hi, -1")
    bar(a)
    a("s_waitcnt vmcnt(0)")
    a(f"s_add_u32 s8, s57, {FL_P}")
    publish(a, "s8", "v30", "v31")
    bar(a)
    a(f"s_add_u32 s8, s56, {FL_P}")
    poll(a, "s8", 32)
    a(f"s_mul_i32 s8, s5, {32*6720}\ns_mul_i32 s9, s4, 224\ns_add_u32 s8, s8, s9\ns_add_u32 s8, s8, {WS_KVP}")
    for i in range(8):
        a(f"buffer_load_dwordx4 v[{R+4*i}:{R+3+4*i}], v48, s[40:43], s8 offen sc1")
        a("s_add_u32 s8, s8, 6720")
    bar(a)
    a("s_waitcnt vmcnt(0)")
    for half in (4, 2, 1):
        for i in range(half):
            for j in (0, 2):
                a(f"v_pk_add_f32 v[{R+4*i+j}:{R+1+4*i+j}], v[{R+4*i+j}:{R+1+4*i+j}], v[{R+4*(i+half)+j}:{R+1+4*(i+half)+j}]")
    for op in ("v_permlane32_swap_b32", "v_permlane16_swap_b32"):
        for j in range(4): a(f"v_mov_b32 v{R+4+j}, v{R+j}")
        a("s_nop 1")
        for j in range(4): a(f"{op} v{R+j}, v{R+4+j}")
        a("s_nop 1")
        for j in range(4): a(f"v_add_f32 v{R+j}, v{R+j}, v{R+4+j}")
    a(f"""
    v_cvt_pk_bf16_f32 v{R}, v{R}, v{R+1}
    v_cvt_pk_bf16_f32 v{R+2}, v{R+2}, v{R+3}
    v_mov_b32 v{R+1}, s96
    v_mov_b32 v{R+3}, s96
    s_lshl_b32 s70, s5, 13
    s_add_u32 s70, s70, {WS_KVZ}
    s_add_u32 s71, s70, 4096
    s_mul_i32 s9, s4, 224
    s_add_u32 s8, s70, s9
    s_cmp_lt_u32 s4, 30
    s_cselect_b32 exec_lo, 0x3fff, 0
    s_mov_b32 exec_hi, 0
    buffer_store_dwordx4 v[{R}:{R+3}], v49, s[40:43], s8 offen sc1
    s_mov_b64 exec, -1
    """)
    bar(a)
    a(f"v_mov_b32 v{R+25}, s96\nv_mov_b32 v{R+27}, s96\ns_mov_b32 s9, 0")
    a.label("L1_g")
    for i in range(6):
        a(f"buffer_load_dwordx4 v[{R+4*i}:{R+3+4*i}], v18, s[40:43], {'s70' if i < 4 else 's71'} offen offset:{1024*(i%4)} sc1")
    a("s_mov_b32 exec_hi, 15")
    a(f"buffer_load_dwordx4 v[{R+24}:{R+27}], v18, s[40:43], s71 offen offset:2048 sc1")
    a("s_mov_b32 exec_hi, -1")
    a("s_add_u32 s9, s9, 1\ns_waitcnt vmcnt(0)")
    a(f"v_and_b32 v30, v{R+1}, v{R+3}\nv_or_b32 v31, v{R+1}, v{R+3}")
    for i in range(1, 7):
        a(f"v_bitop3_b32 v30, v30, v{R+4*i+1}, v{R+4*i+3} bitop3:0x80")
        a(f"v_or3_b32 v31, v31, v{R+4*i+1}, v{R+4*i+3}")
    a("v_xor_b32 v30, s96, v30\nv_xor_b32 v31, s96, v31\nv_or_b32 v30, v30, v31\nv_cmp_ne_u32 vcc, 0, v30")
    a(f"s_cmp_gt_u32 s9, {SPIN_MAX}\ns_cbranch_scc1 L1_gd\ns_cbranch_vccz L1_gd\ns_sleep 1\ns_branch L1_g")
    a.label("L1_gd")
    a(f"v_add_u32 v50, {LKVZ}, v50")
    for i in range(7):
        a(f"ds_write2_b32 v50, v{R+4*i}, v{R+4*i+2} offset0:{(128*i)%256} offset1:{(128*i)%256+1}")
        if i % 2 == 1: a("v_add_u32 v50, 1024, v50")
    srd(a, 52, 24, 640 * 1280)
    a("s_waitcnt lgkmcnt(0)")
    bar(a)
    bar(a)
    a(f"s_mul_i32 s14, s69, {160*1280}\ns_add_u32 s14, s14, s64")
    stage_load()
    a("s_add_u32 s69, s69, 2\ns_and_b32 s69, s69, 3\ns_mov_b32 s12, 51200")
    bar(a); bar(a)
    a("s_waitcnt vmcnt(0)")
    bar(a); bar(a)
    stage_store(0, 0, 8)
    bar(a)
    stage_store(0, 8, 16)
    bar(a)
    stage_store(0, 16, 25)
    call(a, WO_, LK)
    a("s_waitcnt lgkmcnt(0)")
    bar(a)
    call(a, WO_, LK)
    bar(a)
    a("s_waitcnt vmcnt(25)"); bar(a)
    a("s_waitcnt vmcnt(0)"); bar(a)
    tr_dump(a)
    a.label("L_end")
    a("s_endpgm")
    a.label("L_wo4")
    a("s_mov_b32 m0, s12\ns_add_u32 s12, s12, 20480\ns_mov_b32 s15, 0")
    a.label("L_wo4g")
    a("s_add_u32 s14, s65, s64")
    for p in range(5):
        dma(a, f"v{41+p}", 48, "s14")
        a("s_add_u32 m0, m0, 1024")
        if p < 4: a("s_nop 0")
    wrap_inc(a, "s65", 32 * 1280, 640 * 1280)
    a("s_add_u32 s15, s15, 1\ns_cmp_lt_u32 s15, 4\ns_cbranch_scc1 L_wo4g")
    a("s_setpc_b64 s[62:63]")
    a.label(A_)
    issue_x(a, 44, "s13", "s12")
    issue_w(a, 48, 3, 1280, "s65", "s12", IMG_W)
    wrap_inc(a, "s11", 1, 10); wrap_inc(a, "s12", HS, 6 * HS)
    a("s_setpc_b64 s[62:63]")
    a.label(B_)
    issue_x(a, 72, "s13", "s12")
    issue_w(a, 76, 8, 3840, "s66", "s12", IMG_W)
    issue_w(a, 76, 13, 3840, "s67", "s12", IMG_KV, periods=2, rows_per_period=16)
    wrap_inc(a, "s11", 1, 10); wrap_inc(a, "s12", SLOT, 3 * SLOT)
    a("s_setpc_b64 s[62:63]")
    def lin(n):
        for i in range(n):
            if i % 4 == 0 and i > 0:
                a("s_add_u32 m0, m0, 4096")
                a("s_add_u32 s14, s14, 4096")
            a(f"buffer_load_dwordx4 v18, s[40:43], s14 offen offset:{1024*(i%4)} sc1 lds")
    a.label(KV_)
    a("s_mov_b32 m0, s61")
    a(f"s_mul_i32 s14, s60, {CH}")
    a(f"s_add_u32 s14, s14, {WS_KV}")
    lin(11)
    a("s_add_u32 s60, s60, 1\ns_and_b32 s60, s60, 15")
    wrap_inc(a, "s61", CH, LKV + 4 * CH, LKV)
    a("s_setpc_b64 s[62:63]")
    a.label(P_)
    a("s_mov_b32 m0, s61")
    a("s_mul_i32 s14, s69, 20480")
    a("s_add_u32 s14, s14, s13")
    lin(20)
    a("s_add_u32 s69, s69, 1\ns_and_b32 s69, s69, 3")
    wrap_inc(a, "s61", 20480, LX + 3 * 20480, LX)
    a("s_setpc_b64 s[62:63]")
    a.label(WO_)
    a("s_mov_b32 m0, s12")
    a(f"s_mul_i32 s14, s69, {160*1280}")
    a("s_add_u32 s14, s14, s64")
    a("s_mov_b32 s15, 0")
    a.label("L_wo_g")
    for p in range(5):
        dma(a, f"v{41+p}", 48, "s14")
        a("s_add_u32 m0, m0, 1024")
        if p < 4: a("s_nop 0")
    a(f"s_add_u32 s14, s14, {32*1280}")
    a("s_add_u32 s15, s15, 1\ns_cmp_lt_u32 s15, 5\ns_cbranch_scc1 L_wo_g")
    a("s_add_u32 s69, s69, 1\ns_and_b32 s69, s69, 3")
    a("s_add_u32 s12, s12, 25600")
    a("s_setpc_b64 s[62:63]")
    phi_sub(a); tile_to_lds_sub(a)
    a.label("L_codeend")

def main(out):
    a = Asm()
    a.lines.append(f"; @launch grid=(256,1,1) block=(640,1,1) lds={LDS_TOTAL}")
    a('.amdgcn_target "amdgcn-amd-amdhsa--gfx950"')
    a(".text")
    gen(a)
    a('.section .rodata,"a"')
    open(out, "w").write(a.text() + descriptor(NAME + "_kernel", NV, 102))

if __name__ == "__main__":
    main(sys.argv[1] if len(sys.argv) > 1 else f"cdna_kernels/{NAME}.s")
```

```python
import sys, struct, os
from asmlib import *

NAME = "concat_heads__grouped_kv_mqa__linear_attn_block__prompt"
STAMP = bool(os.environ.get("STAMP"))
OPT = dict(kv.split("=") for kv in os.environ.get("OPT", "").split(",") if kv)
PFB = int(OPT.get("pfb", 0))
ONT = OPT.get("ont", "nt")
WS_OA, WS_OB, WS_KV, WS_KVP, WS_KVZ = 0x0, 0x280000, 0x500000, 0x540000, 0x700000
FL_KV, FL_P, FL_R, FL_OB, FL_OA = 0x718000, 0x720000, 0x728000, 0x730000, 0x738000
WS_ST = 0x800000
WS_SIZE = 0x900000
TILE = 2816
CH = 4 * TILE
XBYTES = 2048 * 1280
SLOT = 38912
HS = SLOT // 2
IMG_W, IMG_KV = 8192, 18432
LKV = 3 * SLOT
LMISC = 163840 - 16
LKVZ = 112640
LMX = LKV
LWKV = LKV + 20480
LQ = 2 * SLOT
LFR, LPQ, LPART = SLOT, SLOT + 20480, 0
LX = 102400
LDS_TOTAL = 163840
SPIN_MAX = 1 << 17
def f32(x): return "0x%08x" % struct.unpack("<I", struct.pack("<f", x))[0]
LOG2E = 1.4426950408889634
CSCALE = LOG2E / (20 ** 0.5)

S0, S1, PP, KA, KB, QB, V0, V1, QA, OO, BACC, BFR = 4, 20, 36, 44, 48, 50, 52, 56, 60, 64, 80, 112
aKA, aKB, aV0, aV1, bW, bX = 136, 137, 138, 139, 140, 141
OAD0, OAD1 = 145, 146
PWR = 147
JA, JB, QF0, QF1, AP0, AP1 = 151, 152, 153, 154, 155, 156
tW1, tW2, tX1, tX2, tO, TL0, TL1 = 157, 158, 159, 160, 161, 162, 163
NV = 164
PQA, PQB = 128, 132
T = 4
AFR = [4, 16, 28, 40]
MASKS = [92, 94, 98, 100]
POS = [[0, 1, 3, 4, 2], [1, 2, 0, 3, 4], [2, 3, 4, 0, 1], [3, 4, 0, 2, 1]]
INV = [[POS[r].index(p) for p in range(5)] for r in range(4)]
def pack3(tab):
    x = 0
    for r in range(4):
        for j in range(5): x |= tab[r][j] << (3 * (5 * r + j))
    return x

def tr(a):
    if not STAMP: return
    a("""
    s_waitcnt lgkmcnt(0)
    s_sub_u32 s90, s88, s84
    s_memtime s[88:89]
    s_mov_b32 m0, s85
    s_add_u32 s85, s85, 1
    v_writelane_b32 v40, s90, m0
    """)
def tr_init(a):
    if STAMP: a("s_mov_b32 s85, 0\nv_mov_b32 v40, 0\ns_mov_b32 s88, s84")
def tr_dump(a):
    if not STAMP: return
    tr(a)
    a(f"""
    s_lshl_b32 s8, s2, 1
    s_add_u32 s8, s8, s10
    s_lshl_b32 s8, s8, 8
    s_add_u32 s8, s8, {WS_ST + 0x40000}
    v_lshlrev_b32 v8, 2, v0
    buffer_store_dword v40, v8, s[40:43], s8 offen
    """)
def stamp_end(a):
    if not STAMP: return
    a(f"""
    s_memtime s[12:13]
    s_waitcnt vmcnt(0)
    s_memtime s[88:89]
    s_memrealtime s[90:91]
    s_waitcnt lgkmcnt(0)
    s_mov_b64 exec, -1
    s_sub_u32 s88, s88, s84
    s_sub_u32 s12, s12, s84
    v_mov_b32 v4, s86
    v_mov_b32 v5, s90
    v_mov_b32 v6, s88
    v_mov_b32 v7, s12
    s_lshl_b32 s8, s2, 4
    s_add_u32 s8, s8, s3
    s_lshl_b32 s8, s8, 4
    s_add_u32 s8, s8, {WS_ST}
    v_mov_b32 v8, 0
    buffer_store_dwordx4 v[4:7], v8, s[40:43], s8 offen
    """)
def gs(a, idx, t0="v36", t1="v37"):
    if not STAMP: return
    a(f"""
    s_memrealtime s[14:15]
    s_waitcnt lgkmcnt(0)
    v_mov_b32 {t0}, s14
    s_lshl_b32 s14, s2, 6
    s_add_u32 s14, s14, {WS_ST + 0x80000 + 4*idx}
    v_mov_b32 {t1}, 0
    buffer_store_dword {t0}, {t1}, s[40:43], s14 offen
    """)
def pad(a, where):
    p = OPT.get("pad", "")
    if not p.startswith(where + ":"): return
    l = a.newlabel("Lpad")
    a.label(l)
    a(f"s_memrealtime s[14:15]\ns_waitcnt lgkmcnt(0)\ns_sub_u32 s14, s14, s96\ns_cmp_lt_u32 s14, {p.split(':')[1]}\ns_cbranch_scc1 {l}")
def bar(a):
    a("s_barrier"); tr(a)

def dma(a, voff, srdi, soff, extra=""):
    a(f"buffer_load_dwordx4 {voff}, s[{srdi}:{srdi+3}], {soff} offen {extra} lds")
def issue_x(a, srdi, sbase, lds_sgpr):
    a(f"s_lshl_b32 s15, s10, 10")
    a(f"s_add_u32 m0, s15, {lds_sgpr}")
    a(f"s_lshl_b32 s14, s11, 7")
    a(f"s_add_u32 s14, s14, {sbase}")
    for jj in range(4):
        dma(a, "v2", srdi, "s14")
        if jj < 3:
            a("s_add_u32 m0, m0, 2048")
            a("s_add_u32 s14, s14, 20480")
def issue_w(a, srdi, voffs, ld, sbase, lds_sgpr, ldsoff, periods=1, rows_per_period=32):
    a(f"s_mul_i32 s15, s10, {5120*periods}")
    a(f"s_add_u32 s15, s15, {lds_sgpr}")
    a(f"s_add_u32 m0, s15, {ldsoff}")
    a(f"s_mul_i32 s14, s11, {64*ld}")
    a(f"s_add_u32 s14, s14, {sbase}")
    for per in range(periods):
        for p in range(5):
            dma(a, f"v{voffs+p}", srdi, "s14")
            if not (per == periods - 1 and p == 4):
                a("s_add_u32 m0, m0, 1024")
                a(f"s_add_u32 s14, s14, {rows_per_period*ld}" if p == 4 else "s_nop 0")
def wrap_inc(a, reg, step, limit, base=0):
    a(f"s_add_u32 {reg}, {reg}, {step}")
    a(f"s_cmp_eq_u32 {reg}, {limit}")
    a(f"s_cselect_b32 {reg}, {base}, {reg}")
def set_exec(a, n):
    m = (1 << n) - 1
    a(f"s_mov_b32 exec_lo, {m & 0xffffffff:#x}\ns_mov_b32 exec_hi, {m >> 32:#x}")
def poll(a, soff, nlanes, tmp="v30", addr="v19"):
    lp, dn = a.newlabel("Lpoll"), a.newlabel("Lpd")
    set_exec(a, nlanes)
    a("s_mov_b32 s9, 0")
    a.label(lp)
    a(f"buffer_load_dword {tmp}, {addr}, s[40:43], {soff} offen sc1")
    a("s_add_u32 s9, s9, 1")
    a("s_waitcnt vmcnt(0)")
    a(f"v_cmp_ne_u32 vcc, s96, {tmp}")
    a(f"s_cmp_gt_u32 s9, {SPIN_MAX}")
    a(f"s_cbranch_scc1 {dn}")
    a(f"s_cbranch_vccz {dn}")
    a("s_sleep 1")
    a(f"s_branch {lp}")
    a.label(dn)
    a("s_mov_b64 exec, -1")
def publish(a, soff, tmp, zero):
    a(f"v_mov_b32 {tmp}, s96")
    a(f"v_mov_b32 {zero}, 0")
    a("s_mov_b64 exec, 1")
    a(f"buffer_store_dword {tmp}, {zero}, s[40:43], {soff} offen sc1")
    a("s_mov_b64 exec, -1")
def get_nonce(a, tmp, addr):
    a(f"v_mov_b32 {addr}, {LMISC}")
    a(f"ds_read_b32 {tmp}, {addr}")
    a("s_waitcnt lgkmcnt(0)")
    a(f"v_readfirstlane_b32 s96, {tmp}")
def call(a, lbl, link="s[58:59]"):
    a(f"s_call_b64 {link}, {lbl}")
def pf_rows(a, vd, ld, s0, s1):
    a(f"""
    v_mul_u32_u24 v{vd}, 52429, v0
    v_lshrrev_b32 v{vd}, 18, v{vd}
    v_mul_u32_u24 v{vd+1}, 5, v{vd}
    v_sub_u32 v{vd+1}, v0, v{vd+1}
    v_mul_u32_u24 v{vd}, {ld}, v{vd}
    v_lshl_add_u32 v{vd}, v{vd+1}, 7, v{vd}
    s_mul_i32 {s0}, s7, {20*ld}
    s_and_b32 s8, s6, 1
    s_mul_i32 s8, s8, 640
    s_add_u32 {s0}, {s0}, s8
    s_add_u32 {s1}, {s0}, {10*ld}
    """)
def pf_x(a, srdi, vaddr, vd):
    a(f"""
    s_lshr_b32 s8, s6, 1
    s_mul_i32 s8, s8, {512*1280}
    s_mul_i32 s9, s7, 20480
    s_add_u32 s8, s8, s9
    s_add_u32 s9, s8, 8192
    buffer_load_dword v{vd}, {vaddr}, s[{srdi}:{srdi+3}], s8 offen
    buffer_load_dword v{vd+1}, {vaddr}, s[{srdi}:{srdi+3}], s9 offen
    s_add_u32 s9, s8, 16384
    s_mov_b32 exec_hi, 0
    buffer_load_dword v{vd+2}, {vaddr}, s[{srdi}:{srdi+3}], s9 offen
    s_mov_b32 exec_hi, -1
    """)

def phi_sub(a):
    X = BFR
    a.label("g_phi")
    a(f"s_mov_b32 s8, {f32(LOG2E)}")
    a(f"s_mov_b32 s9, {f32(1e-6)}")
    for n, r0 in enumerate((0, 4, 16, 20, 8, 12, 24, 28)):
        r0 += BACC
        if n == 4:
            a("s_cmp_eq_u32 s3, 2\ns_cbranch_scc1 g_pack")
        for i in (0, 2): a(f"v_pk_mul_f32 v[{X+i}:{X+i+1}], v[{r0+i}:{r0+i+1}], s[8:9] op_sel_hi:[1,0]")
        for i in range(4): a(f"v_exp_f32_e64 v{X+i}, v{X+i} clamp")
        for i in range(4): a(f"v_max_f32 v{r0+i}, s9, v{r0+i}")
        for i in (0, 2): a(f"v_pk_add_f32 v[{r0+i}:{r0+i+1}], v[{r0+i}:{r0+i+1}], v[{X+i}:{X+i+1}]")
    a.label("g_pack")
    a("s_mov_b64 exec, -1")
    for i in range(16):
        a(f"v_cvt_pk_bf16_f32 v{BACC+i}, v{BACC+2*i}, v{BACC+2*i+1}")
    a("s_setpc_b64 s[58:59]")
def tile_to_lds_sub(a):
    a.label("g_t2l")
    for half in range(2):
        if half == 1:
            a("s_cmp_eq_u32 s3, 2\ns_cbranch_scc1 g_t2l_end")
        for blk in range(2):
            for q in range(2):
                d = BACC + 8 * blk + 4 * half + 2 * q
                a(f"ds_write_b64 v{TL0+half}, v[{d}:{d+1}] offset:{5120*blk + 16*q}")
    a.label("g_t2l_end")
    a("s_setpc_b64 s[58:59]")
def read_qfrag(a, qa, qb):
    a(f"ds_read2_b64 v[{qa}:{qa+3}], v{QF1} offset0:0 offset1:1")
    a(f"ds_read_b64 v[{qb}:{qb+1}], v{QF0} offset:32")
def o_epilogue(a, O, wsoff, eps):
    if eps:
        a(f"v_add_f32 v{O+12}, {f32(1e-6)}, v{O+12}")
    a(f"v_rcp_f32 v{O+12}, v{O+12}")
    a(f"s_add_u32 s8, s81, {wsoff}")
    a(f"s_add_u32 s9, s82, {wsoff}")
    for i in range(0, 12, 2):
        a(f"v_pk_mul_f32 v[{O+i}:{O+i+1}], v[{O+i}:{O+i+1}], v[{O+12}:{O+13}] op_sel_hi:[1,0]")
    for i in range(6):
        a(f"v_cvt_pk_bf16_f32 v{O+i}, v{O+2*i}, v{O+2*i+1}")
    a(f"buffer_store_dwordx4 v[{O}:{O+3}], v{OAD1}, s[40:43], s8 offen sc1")
    a("s_mov_b32 exec_hi, 0")
    a(f"buffer_store_dwordx2 v[{O+4}:{O+5}], v{OAD0}, s[40:43], s9 offen sc1")
    a("s_mov_b32 exec_hi, -1")
def rowmax(a, S, dst, first=True):
    regs = [f"v{S+i}" for i in range(16)]
    if first:
        a(f"v_max3_f32 v{dst}, {regs[0]}, {regs[1]}, {regs[2]}")
        rest = regs[3:]
    else:
        rest = regs
    while len(rest) >= 2:
        a(f"v_max3_f32 v{dst}, v{dst}, {rest[0]}, {rest[1]}")
        rest = rest[2:]
    if rest:
        a(f"v_max_f32 v{dst}, v{dst}, {rest[0]}")
def set_m(a, m, tmp, keep):
    a(f"""
    v_mov_b32 v{tmp}, v{m}
    s_nop 1
    v_permlane32_swap_b32 v{m}, v{tmp}
    s_nop 1
    v_max_f32 v{keep}, v{m}, v{tmp}
    s_mov_b32 exec_lo, 0
    v_sub_f32 v{m}, 0, v{keep}
    v_and_b32 v{tmp}, 0xffff0000, v{m}
    v_sub_f32 v{m}, v{m}, v{tmp}
    v_lshrrev_b32 v{QB}, 16, v{tmp}
    v_and_b32 v{tmp}, 0xffff0000, v{m}
    v_sub_f32 v{m}, v{m}, v{tmp}
    v_or_b32 v{QB}, v{QB}, v{tmp}
    v_lshrrev_b32 v{QB+1}, 16, v{m}
    s_mov_b32 exec_lo, -1
    """)

def precompute(a):
    t = 12
    a(f"""
    v_and_b32 v1, 31, v0
    v_lshrrev_b32 v2, 5, v0
    v_lshrrev_b32 v3, 2, v1
    v_add_u32 v3, 1, v3
    v_and_b32 v3, 2, v3
    v_mul_u32_u24 v3, 6, v3
    v_xor_b32 v3, v1, v3
    v_lshlrev_b32 v{OAD0}, 3, v0
    v_lshlrev_b32 v{OAD1}, 4, v0
    s_and_b32 s38, s3, 1
    s_lshr_b32 s39, s3, 1
    s_mov_b32 s76, 0
    s_mov_b32 s77, 128
    s_cmp_eq_u32 s3, 1
    s_cselect_b32 s76, 32, s76
    s_cselect_b32 s77, 64, s77
    s_cmp_eq_u32 s3, 2
    s_cselect_b32 s76, 96, s76
    s_cselect_b32 s77, 96, s77
    s_sub_u32 s78, s3, 3
    s_lshl_b32 s78, s78, 2
    s_lshr_b32 s78, 0x20431, s78
    s_and_b32 s78, s78, 15
    s_lshl_b32 s8, s78, 6
    s_add_u32 s8, s8, {IMG_KV}
    s_add_u32 s9, s76, {IMG_W}
    s_sub_u32 s64, s77, s76
    s_cmp_lt_u32 s3, 3
    s_cselect_b32 s60, s9, s8
    s_cselect_b32 s64, s64, 32
    s_mov_b32 s61, 320
    s_cselect_b32 s61, 160, s61
    v_bfe_u32 v{t}, v0, 2, 2
    v_lshl_add_u32 v{t+1}, v2, 3, v{t}
    v_mul_u32_u24 v{t+1}, s61, v{t+1}
    v_bfe_u32 v{t+3}, v0, 4, 1
    v_mul_u32_u24 v{t+2}, s64, v{t+3}
    v_and_b32 v{t+6}, 3, v0
    v_lshlrev_b32 v{t+6}, 3, v{t+6}
    v_add3_u32 v{t+1}, v{t+1}, v{t+2}, v{t+6}
    v_add_u32 v{bW}, s60, v{t+1}
    v_bfe_u32 v{t+2}, v0, 1, 3
    v_xor_b32 v{t+2}, v{t+2}, v2
    v_lshlrev_b32 v{t+2}, 4, v{t+2}
    v_lshl_or_b32 v{bX}, v1, 7, v{t+2}
    v_xor_b32 v{bX+1}, 32, v{bX}
    v_xor_b32 v{bX+2}, 64, v{bX}
    v_xor_b32 v{bX+3}, 96, v{bX}
    """)
    pk = pack3(POS)
    a(f"""
    s_mul_i32 s80, s4, {64*2560}
    s_mul_i32 s8, s5, 160
    s_add_u32 s80, s80, s8
    s_add_u32 s80, s80, 1280
    v_mul_u32_u24 v{t+1}, 160, v{t}
    v_add_u32 v{t+1}, v{t+1}, v{t+6}
    s_lshl_b32 s8, s39, 1
    v_add_u32 v{t+2}, s8, v{t+3}
    v_min_u32 v{t+2}, 4, v{t+2}
    v_mad_u32_u24 v{t+2}, v{t}, 5, v{t+2}
    v_mul_u32_u24 v{t+2}, 3, v{t+2}
    s_mov_b32 s8, {pk & 0xffffffff:#x}
    s_mov_b32 s9, {pk >> 32:#x}
    v_lshrrev_b64 v[{t+4}:{t+5}], v{t+2}, s[8:9]
    v_and_b32 v{t+4}, 7, v{t+4}
    v_lshl_add_u32 v{t+1}, v{t+4}, 5, v{t+1}
    s_cmp_ge_u32 s3, 4
    s_cbranch_scc1 PC_tz
    s_lshl_b32 s9, s39, 6
    s_add_u32 s80, s80, s9
    s_mul_i32 s10, s38, {32*2560}
    s_add_u32 s80, s80, s10
    s_mul_i32 s8, s38, 5120
    s_add_u32 s8, s8, {LX}
    v_mul_u32_u24 v{tW1}, 1280, v2
    v_add_u32 v{tW1}, v{tW1}, v{t+1}
    v_mul_u32_u24 v{tW2}, 3200, v2
    v_add_u32 v{tW2}, v{tW2}, v{t+1}
    v_add_u32 v{tW2}, 2560, v{tW2}
    v_add_u32 v{tX1}, s8, v{OAD1}
    v_add_u32 v{tX2}, s8, v{OAD0}
    v_mul_u32_u24 v{tO}, 2560, v1
    v_lshl_add_u32 v{tO}, v2, 4, v{tO}
    s_branch PC_td
    """)
    a.label("PC_tz")
    a(f"""
    s_sub_u32 s8, s3, 4
    s_mul_i32 s10, s8, {16*2560}
    s_add_u32 s80, s80, s10
    s_lshl_b32 s9, s38, 4
    s_lshr_b32 s8, s8, 1
    s_mul_i32 s8, s8, 5120
    s_add_u32 s8, s8, {LX}
    v_lshrrev_b32 v{t}, 4, v0
    v_mul_u32_u24 v{tW1}, 3200, v{t+3}
    v_mul_u32_u24 v{t+2}, 1280, v2
    v_add3_u32 v{tW1}, v{tW1}, v{t+2}, v{t+1}
    v_mul_u32_u24 v{tW2}, 3200, v{t}
    v_add_u32 v{tW2}, v{tW2}, v{t+1}
    v_add_u32 v{tW2}, 2560, v{tW2}
    v_and_b32 v{t+2}, 15, v0
    v_mul_u32_u24 v{tO}, 2560, v{t+2}
    v_lshl_add_u32 v{tO}, v{t}, 3, v{tO}
    v_add_u32 v{t+2}, s9, v{t+2}
    v_lshl_add_u32 v{t+4}, v{t}, 5, v{t+2}
    v_lshlrev_b32 v{tX2}, 3, v{t+4}
    v_add_u32 v{tX2}, s8, v{tX2}
    v_lshl_add_u32 v{t+4}, v2, 5, v{t+2}
    v_lshl_add_u32 v{t+4}, v{t+3}, 6, v{t+4}
    v_lshlrev_b32 v{tX1}, 4, v{t+4}
    v_add_u32 v{tX1}, s8, v{tX1}
    """)
    a.label("PC_td")
    a(f"""
    v_add_u32 v{aKA}, {LKV}, v{OAD1}
    v_lshlrev_b32 v{aKB}, 3, v1
    v_add_u32 v{aKB}, {LKV+1024}, v{aKB}
    v_mul_u32_u24 v{aV0}, 320, v2
    v_lshl_add_u32 v{aV0}, v1, 4, v{aV0}
    v_add_u32 v{aV0}, {LKV+1280}, v{aV0}
    v_add_u32 v{aV1}, 640, v{aV0}
    v_mov_b32 v{AP0}, v3
    s_mov_b32 exec_lo, 0xfff00000
    s_mov_b32 exec_hi, 0xfff00000
    v_mov_b32 v{aV0}, {LKV+2560}
    v_mov_b32 v{aV1}, {LKV+2560}
    v_mov_b32 v{AP0}, 20
    s_mov_b32 exec_lo, 0
    s_mov_b32 exec_hi, -1
    v_mov_b32 v{aKB}, {LKV+2560}
    s_mov_b64 exec, -1
    s_mul_i32 s8, s39, 840
    s_add_u32 s8, s8, {LKVZ}
    v_mul_u32_u24 v{AP0}, 40, v{AP0}
    v_add_u32 v{AP0}, s8, v{AP0}
    v_lshl_add_u32 v{AP1}, v2, 4, v{AP0}
    s_lshl_b32 s10, s4, 3
    s_add_u32 s10, s10, s5
    s_lshl_b32 s10, s10, 1
    s_add_u32 s10, s10, s38
    s_mul_i32 s10, s10, 5120
    s_lshl_b32 s81, s39, 10
    s_add_u32 s81, s81, s10
    s_lshl_b32 s82, s39, 8
    s_add_u32 s82, s82, s10
    s_add_u32 s82, s82, 4096
    s_mul_i32 s8, s38, 5120
    s_mul_i32 s9, s39, 40
    s_add_u32 s8, s8, s9
    s_add_u32 s8, s8, {LQ}
    v_mul_u32_u24 v{t}, 160, v1
    v_add_u32 v{QF0}, s8, v{t}
    v_lshl_add_u32 v{QF1}, v2, 4, v{QF0}
    v_lshl_add_u32 v{t}, v2, 3, v{t}
    v_add_u32 v{t}, {LQ}, v{t}
    v_add_u32 v{TL0}, s76, v{t}
    v_add_u32 v{TL1}, s77, v{t}
    s_add_u32 s9, s3, 1
    s_lshr_b32 s9, s9, 1
    s_add_u32 s9, s9, 2
    s_sub_u32 s10, s3, 5
    s_cmp_ge_u32 s3, 5
    s_cselect_b32 s12, s10, s39
    s_cselect_b32 s13, 0, s9
    s_lshl_b32 s10, s12, 12
    s_lshl_b32 s9, s13, 12
    v_add_u32 v{JA}, s10, v{OAD1}
    v_add_u32 v{JB}, s9, v{OAD1}
    s_lshl_b32 s10, s12, 5
    s_lshl_b32 s9, s13, 5
    s_sub_u32 s9, s9, 80
    v_lshlrev_b32 v{t}, 2, v2
    v_add_u32 v{t}, s10, v{t}
    v_add_u32 v{t+1}, s9, v1
    v_and_b32 v{t+2}, 0xffff, v{t+1}
    v_mul_u32_u24 v{t+2}, 3277, v{t+2}
    v_lshrrev_b32 v{t+2}, 16, v{t+2}
    v_mul_u32_u24 v{t+3}, 80, v{t+1}
    s_cmp_ge_u32 s3, 5
    s_cbranch_scc1 PC_z
    """)
    for z in range(2):
        for q in range(4):
            m = MASKS[q]
            a(f"v_add_u32 v{t+4}, {8*q}, v{t}")
            a(f"v_mul_u32_u24 v{t+5}, 3277, v{t+4}")
            a(f"v_lshrrev_b32 v{t+5}, 16, v{t+5}")
            if z == 0:
                a(f"v_lshl_add_u32 v{PWR+q}, v{t+4}, 2, v{t+3}")
                a(f"v_cmp_eq_u32 s[{m}:{m+1}], v{t+5}, v{t+2}")
            else:
                a(f"v_add_u32 v{PWR+q}, 1, v{t+5}")
                a(f"v_mul_u32_u24 v{PWR+q}, 1600, v{PWR+q}")
                a(f"v_lshl_add_u32 v{PWR+q}, v{t+4}, 2, v{PWR+q}")
                a(f"v_cmp_gt_u32 s[{m}:{m+1}], 4, v{t+5}")
                a(f"s_and_b32 s{m}, s{m}, 1\ns_and_b32 s{m+1}, s{m+1}, 1")
        if z == 0:
            a("s_branch PC_zd")
            a.label("PC_z")
    a.label("PC_zd")
    for i in list(range(V1, V1 + 4)) + list(range(OO, BFR + 24)): a(f"v_mov_b32 v{i}, 0")

def gen(a):
    K = NAME + "_kernel"
    kernel_begin(a, K)
    if STAMP:
        a("s_memtime s[84:85]\ns_memrealtime s[86:87]")
    a(f"""
    s_cmp_ge_u32 s2, 256
    s_cbranch_scc1 L_end
    s_load_dwordx16 s[16:31], s[0:1], 0
    s_load_dwordx4 s[32:35], s[0:1], 64
    s_load_dwordx2 s[36:37], s[0:1], 80
    v_lshrrev_b32 v1, 6, v0
    v_and_b32 v0, 63, v0
    v_readfirstlane_b32 s3, v1
    s_and_b32 s6, s2, 7
    s_lshr_b32 s7, s2, 3
    s_lshr_b32 s4, s6, 1
    s_lshl_b32 s4, s4, 3
    s_lshr_b32 s8, s7, 2
    s_add_u32 s4, s4, s8
    s_and_b32 s5, s6, 1
    s_lshl_b32 s5, s5, 2
    s_and_b32 s8, s7, 3
    s_add_u32 s5, s5, s8
    s_cmp_ge_u32 s3, 8
    s_cbranch_scc1 L_loader
    s_cmp_lg_u32 s3, 4
    s_cbranch_scc1 C_pre
    s_getpc_b64 s[44:45]
    """)
    a.label("L_pc")
    a(f"s_sub_u32 s44, s44, L_pc-{K}\ns_subb_u32 s45, s45, 0")
    a(f"s_mov_b32 s46, L_codeend-{K}\ns_mov_b32 s47, 0x20000")
    a("v_lshlrev_b32 v4, 7, v0\ns_mov_b32 s8, 0x2000\ns_mov_b32 s9, 0x4000")
    a("buffer_load_dword v5, v4, s[44:47], 0 offen\nbuffer_load_dword v6, v4, s[44:47], s8 offen\nbuffer_load_dword v7, v4, s[44:47], s9 offen")
    a("s_cmp_ge_u32 s2, 8\ns_cbranch_scc1 C_pre")
    a("s_memrealtime s[8:9]\ns_waitcnt lgkmcnt(0)\ns_or_b32 s8, s8, 1")
    srd(a, 44, 34, 256)
    a("v_mov_b32 v8, s8\nv_mov_b32 v9, 0\nv_mov_b32 v10, 0\ns_mov_b64 exec, 1")
    a("buffer_atomic_cmpswap v[8:9], v10, s[44:47], 0 offen sc1")
    a("s_mov_b64 exec, -1")
    a.label("C_pre")
    precompute(a)
    a("s_waitcnt lgkmcnt(0)")
    srd(a, 40, 36, WS_SIZE)
    a("s_cmp_lt_u32 s3, 3\ns_cbranch_scc1 A_q")
    a("s_cmp_eq_u32 s3, 5\ns_cbranch_scc1 A_kvpoll")
    a("s_cmp_lt_u32 s3, 6\ns_cbranch_scc1 A_bars")
    srd(a, 44, 34, 256)
    a(f"""
    v_mov_b32 v10, 0
    v_and_b32 v20, 15, v0
    v_lshrrev_b32 v21, 4, v0
    v_xor_b32 v22, v20, v21
    v_lshlrev_b32 v22, 4, v22
    v_lshl_add_u32 v22, v20, 8, v22
    v_add_u32 v22, {LMX}, v22
    v_xor_b32 v23, 64, v22
    v_xor_b32 v24, 128, v22
    v_xor_b32 v25, 192, v22
    v_bfe_u32 v26, v0, 2, 2
    v_lshl_add_u32 v26, v21, 3, v26
    v_mul_u32_u24 v26, 40, v26
    v_and_b32 v27, 3, v0
    v_lshl_add_u32 v26, v27, 3, v26
    s_lshl_b32 s8, s38, 5
    s_add_u32 s8, s8, {LWKV}
    v_add_u32 v26, s8, v26
    s_lshl_b32 s12, s4, 1
    s_lshr_b32 s8, s5, 2
    s_add_u32 s12, s12, s8
    s_mul_i32 s12, s12, {TILE}
    s_add_u32 s12, s12, {WS_KV}
    s_bfe_u32 s13, s5, 0x10001
    s_lshl_b32 s55, s4, 4
    s_add_u32 s55, s55, s5
    s_lshl_b32 s55, s55, 1
    s_add_u32 s55, s55, s38
    s_lshl_b32 s55, s55, 2
    s_add_u32 s55, s55, {FL_KV}
    v_and_b32 v27, 1, v21
    s_mov_b32 s56, 0
    s_mov_b64 s[48:49], -1
    """)
    for i in range(12, 16): a(f"v_mov_b32 v{i}, 0")
    MF = [BACC + 8 * i for i in range(4)]
    def mini(lbl, orient):
        def mm(st):
            x, w, ac = v(MF[st], 4), v(MF[st] + 4, 4), v(12, 4)
            a(f"v_mfma_f32_16x16x32_bf16 {ac}, {w}, {x}, {ac}" if orient == "R" else f"v_mfma_f32_16x16x32_bf16 {ac}, {x}, {w}, {ac}")
        a("s_barrier")
        a("buffer_load_dword v11, v10, s[44:47], 0 offen sc1")
        a.label(lbl)
        for st in range(4):
            f = MF[st]
            a(f"ds_read_b128 v[{f}:{f+3}], v{22+st}")
            for hf in range(2):
                a(f"ds_read_b64_tr_b16 v[{f+4+2*hf}:{f+5+2*hf}], v26 offset:{(32*st+4*hf)*40}")
            a(f"v_add_u32 v{22+st}, 4096, v{22+st}")
            a("s_waitcnt lgkmcnt(9)")
            mm((st + 1) % 4)
        a("v_add_u32 v26, 5120, v26")
        a(f"s_add_u32 s56, s56, 1\ns_cmp_lt_u32 s56, 5\ns_cbranch_scc1 {lbl}")
        for st, w in ((1, 6), (2, 3), (3, 0)):
            a(f"s_waitcnt lgkmcnt({w})"); mm(st)
    a("s_bitcmp1_b32 s5, 0")
    a("s_cbranch_scc1 M_v")
    a(f"""
    s_lshl_b32 s8, s13, 4
    v_add_u32 v20, s8, v20
    v_lshlrev_b32 v28, 4, v20
    v_lshl_add_u32 v28, v2, 9, v28
    v_lshl_add_u32 v28, v27, 3, v28
    s_cmp_eq_u32 s3, 6
    s_cbranch_scc1 M_k0
    v_lshlrev_b32 v28, 3, v20
    v_add_u32 v28, 1024, v28
    s_mov_b32 exec_lo, 0xffff0000
    v_lshlrev_b32 v28, 3, v1
    v_add_u32 v28, {2560-128}, v28
    s_mov_b32 exec_lo, -1
    s_mov_b32 s49, 0
    """)
    a.label("M_k0")
    mini("M_kl", "R")
    a("s_nop 7")
    a("v_cvt_pk_bf16_f32 v12, v12, v13\nv_cvt_pk_bf16_f32 v13, v14, v15")
    a("s_cmp_eq_u32 s3, 6\ns_cbranch_scc1 M_st")
    a("s_mov_b32 exec_lo, 0xffff0000")
    a("v_mov_b32 v12, 0x3f803f80\nv_mov_b32 v13, 0x3f803f80")
    a("s_branch M_st")
    a.label("M_v")
    a(f"""
    s_mul_i32 s8, s13, 640
    s_add_u32 s12, s12, s8
    s_lshl_b32 s8, s38, 8
    s_add_u32 s12, s12, s8
    s_add_u32 s12, s12, 1280
    v_lshrrev_b32 v28, 2, v20
    v_add_u32 v28, 1, v28
    v_and_b32 v28, 2, v28
    v_mul_u32_u24 v28, 6, v28
    v_xor_b32 v28, v20, v28
    v_mul_u32_u24 v29, 320, v27
    v_lshl_add_u32 v29, v2, 3, v29
    v_lshl_add_u32 v28, v28, 4, v29
    s_cmp_eq_u32 s3, 6
    s_cselect_b32 s48, -1, 0x000f000f
    s_mov_b32 s49, s48
    """)
    mini("M_vl", "C")
    a("s_nop 7")
    a("v_cvt_pk_bf16_f32 v12, v12, v13\nv_cvt_pk_bf16_f32 v13, v14, v15")
    a.label("M_st")
    a("s_mov_b64 exec, s[48:49]")
    a("buffer_store_dwordx2 v[12:13], v28, s[40:43], s12 offen sc1")
    a("s_mov_b64 exec, -1")
    gs(a, 0, "v30", "v31")
    a("s_barrier")
    for i in range(32): a(f"v_mov_b32 v{BACC+i}, 0")
    a("s_barrier")
    a("s_mov_b32 s9, 0")
    a.label("A_np")
    a("s_add_u32 s9, s9, 1")
    a("s_waitcnt vmcnt(0)")
    a("v_cmp_eq_u32 vcc, 0, v11")
    a(f"s_cmp_gt_u32 s9, {SPIN_MAX}\ns_cbranch_scc1 A_nd\ns_cbranch_vccz A_nd\ns_sleep 1")
    a("buffer_load_dword v11, v10, s[44:47], 0 offen sc1")
    a("s_branch A_np")
    a.label("A_nd")
    a("s_mov_b64 exec, 1")
    a("buffer_store_dword v11, v10, s[40:43], s55 offen sc1")
    a("s_mov_b64 exec, -1")
    a(f"v_mov_b32 v5, {LMISC}\nds_write_b32 v5, v11\ns_waitcnt lgkmcnt(0)")
    gs(a, 1, "v30", "v31")
    a("s_branch A_bars8")
    a.label("A_kvpoll")
    a("v_lshrrev_b32 v20, 1, v0\nv_lshlrev_b32 v20, 7, v20\nv_and_b32 v21, 1, v0\nv_lshl_add_u32 v20, v21, 4, v20")
    a(f"v_mov_b32 v18, v{OAD1}")
    a("s_and_b32 s60, s7, 15")
    a(f"s_mov_b32 s61, {LKV}\ns_mov_b32 s12, {FL_KV}\ns_mov_b32 s13, 2\ns_mov_b32 s9, 0")
    for i in range(9): a("s_barrier")
    get_nonce(a, "v22", "v23")
    a.label("A_kp")
    a("buffer_load_dwordx4 v[24:27], v20, s[40:43], s12 offen sc1")
    a("buffer_load_dwordx4 v[28:31], v20, s[40:43], s12 offen offset:32 sc1")
    a("s_cmp_eq_u32 s13, 0\ns_cbranch_scc1 A_kq")
    a("s_barrier\ns_barrier\ns_sub_u32 s13, s13, 2")
    a.label("A_kq")
    a("s_sleep 1")
    a("s_add_u32 s9, s9, 1")
    a("s_waitcnt vmcnt(0)")
    for i in range(8): a(f"v_xor_b32 v{24+i}, s96, v{24+i}")
    a("v_or3_b32 v24, v24, v25, v26\nv_or3_b32 v27, v27, v28, v29\nv_or3_b32 v24, v24, v30, v31\nv_or_b32 v24, v24, v27\nv_cmp_ne_u32 vcc, 0, v24")
    a(f"s_cmp_gt_u32 s9, {SPIN_MAX}\ns_cbranch_scc1 A_kd\ns_cbranch_vccnz A_kp")
    a.label("A_kd")
    gs(a, 4, "v30", "v31")
    for i in range(3): call(a, "L_issueKV", "s[62:63]")
    a.label("A_kr")
    a("s_cmp_eq_u32 s13, 0\ns_cbranch_scc1 A_ke\ns_barrier\ns_sub_u32 s13, s13, 1\ns_branch A_kr")
    a.label("A_ke")
    a("s_waitcnt vmcnt(22)")
    a("s_branch A_done")
    a.label("A_bars")
    for i in range(3): a("s_barrier")
    a.label("A_bars8")
    for i in range(8): a("s_barrier")
    a("s_waitcnt vmcnt(0)")
    a("s_branch A_done")
    a.label("A_q")
    def ard(st, i):
        f = AFR[st]
        if i < 2: a(f"ds_read_b64_tr_b16 v[{f+2*i}:{f+2*i+1}], v{bW} offset:{(16*st+4*i)*160}")
        else: a(f"ds_read_b128 v[{f+4*(i-1)}:{f+4*(i-1)+3}], v{bX+st} offset:{4096*(i-2)}")
    def amf(st, blk):
        f = AFR[st]; ac = v(BACC + 16 * blk, 16)
        a(f"v_mfma_f32_32x32x16_bf16 {ac}, v[{f}:{f+3}], v[{f+4+4*blk}:{f+7+4*blk}], {ac}")
    a(f"s_mov_b32 s56, 0\ns_mov_b32 s70, {HS}\ns_mov_b32 s74, {-5*HS}\ns_mov_b32 s75, {-3*HS}")
    a("s_barrier\ns_barrier")
    for st in (0, 1, 2):
        for i in range(4): ard(st, i)
    a("s_branch A_mid")
    a(".p2align 3")
    a.label("A_loop")
    a("s_waitcnt lgkmcnt(0)\ns_barrier")
    seq = [(st, i) for st in (0, 1, 2) for i in range(4)]
    for n, (st, blk) in enumerate(((2, 0), (2, 1), (3, 0), (3, 1))):
        amf(st, blk)
        for x in seq[3 * n:3 * n + 3]: ard(*x)
    a.label("A_mid")
    a("s_add_u32 s56, s56, 1\ns_cmp_eq_u32 s56, 6\ns_cselect_b32 s8, s74, s70")
    a("s_waitcnt lgkmcnt(8)")
    amf(0, 0); ard(3, 0); ard(3, 1)
    a("s_cmp_lt_u32 s56, 10\ns_cselect_b32 s8, s8, s75")
    amf(0, 1); ard(3, 2); ard(3, 3)
    a("s_waitcnt lgkmcnt(8)")
    a(f"v_add_u32 v{bW}, s8, v{bW}")
    amf(1, 0)
    for j in range(4): a(f"v_add_u32 v{bX+j}, s8, v{bX+j}")
    amf(1, 1)
    a("s_cbranch_scc1 A_loop")
    a("s_waitcnt lgkmcnt(4)")
    amf(2, 0); amf(2, 1)
    a("s_waitcnt lgkmcnt(0)")
    amf(3, 0); amf(3, 1)
    a(f"s_mov_b32 s8, {f32(CSCALE)}")
    a("s_nop 9")
    for i in range(0, 32, 2):
        a(f"v_pk_mul_f32 v[{BACC+i}:{BACC+i+1}], v[{BACC+i}:{BACC+i+1}], s[8:9] op_sel_hi:[1,0]")
    call(a, "g_pack")
    call(a, "g_t2l")
    for i in range(31, -1, -1): a(f"v_mov_b32 v{BACC+i}, 0")
    a.label("A_done")
    def rdKA(t): a(f"ds_read_b128 v[{KA}:{KA+3}], v{aKA} offset:{t*TILE}")
    def rdKB(t): a(f"ds_read_b64 v[{KB}:{KB+1}], v{aKB} offset:{t*TILE}")
    def rdV0(t): a(f"ds_read_b128 v[{V0}:{V0+3}], v{aV0} offset:{t*TILE}")
    def rdV1(t): a(f"ds_read_b128 v[{V1}:{V1+3}], v{aV1} offset:{t*TILE}")
    def qka(S): a(f"v_mfma_f32_32x32x16_bf16 v[{S}:{S+15}], v[{KA}:{KA+3}], v[{QA}:{QA+3}], 0")
    def qkb(S): a(f"v_mfma_f32_32x32x8_bf16 v[{S}:{S+15}], v[{KB}:{KB+1}], v[{QB}:{QB+1}], v[{S}:{S+15}]")
    def pv0(): a(f"v_mfma_f32_32x32x16_bf16 v[{OO}:{OO+15}], v[{V0}:{V0+3}], v[{PP}:{PP+3}], v[{OO}:{OO+15}]")
    def pv1(): a(f"v_mfma_f32_32x32x16_bf16 v[{OO}:{OO+15}], v[{V1}:{V1+3}], v[{PP+4}:{PP+7}], v[{OO}:{OO+15}]")
    def E(S, lo, hi, w=None):
        for i in range(lo, hi):
            if w is not None and i == hi - 1:
                a(w if isinstance(w, str) else f"s_waitcnt lgkmcnt({w})"); a(f"v_exp_f32_e64 v{S+i}, v{S+i}")
            else: a(f"v_exp_f32 v{S+i}, v{S+i}")
    def c1(k, S): a(f"v_cvt_pk_bf16_f32 v{PP+k}, v{S+2*k}, v{S+2*k+1}")
    def C(S, g): c1(2 * g, S); c1(2 * g + 1, S)
    for i in range(4): a(f"v_mov_b32 v{PP+4+i}, 0")
    a("s_mov_b32 s57, 0\ns_mov_b64 vcc, 0")
    a("s_waitcnt lgkmcnt(0)\ns_barrier")
    a(f"v_mov_b32 v{PP}, {LMISC}\nds_read_b32 v{PP+3}, v{PP}")
    read_qfrag(a, QA, QB)
    rdKA(0); rdKB(0); rdV0(0)
    a(f"s_mov_b32 s8, {LPQ - LQ}")
    for r in (QF0, QF1, TL0, TL1): a(f"v_add_u32 v{r}, s8, v{r}")
    a("s_mov_b32 exec_lo, 0")
    a("s_waitcnt lgkmcnt(1)")
    a(f"v_mov_b32 v{QB}, 0\nv_mov_b32 v{QB+1}, 0")
    a("s_mov_b32 exec_lo, -1")
    qka(S0); qkb(S0)
    rdKA(1); rdKB(1)
    a(f"v_readfirstlane_b32 s96, v{PP+3}")
    a(f"s_lshl_b32 s55, s4, 3\ns_add_u32 s55, s55, s5\ns_lshl_b32 s55, s55, 5\ns_add_u32 s55, s55, s3\ns_lshl_b32 s55, s55, 2\ns_add_u32 s55, s55, {FL_OA}")
    a("s_nop 2")
    rowmax(a, S0, PP)
    set_m(a, PP, PP + 1, PP + 2)
    for i in range(16): a(f"v_sub_f32 v{S0+i}, v{S0+i}, v{PP+2}")
    a("s_waitcnt lgkmcnt(0)")
    a("s_cmp_eq_u32 s57, 0")
    a(".p2align 6")
    a.label("AT_loop")
    for n in range(16):
        Sc, Sn = (S0, S1) if n % 2 == 0 else (S1, S0)
        if n % 4 == 2: a("s_waitcnt vmcnt(0)\ns_barrier")
        if n == 4:
            a("s_cbranch_vccnz AT_apply\ns_nop 0")
            a.label("AT_n4")
        if n == 12: a("s_cbranch_scc1 FU_start\ns_nop 0")
        qka(Sn); rdKA((n + 2) % 16); E(Sc, 0, 4, 3)
        pv1(); rdV1(n); C(Sc, 0); E(Sc, 4, 8, 3)
        qkb(Sn); rdKB((n + 2) % 16); C(Sc, 1); E(Sc, 8, 12, 3)
        pv0(); rdV0((n + 1) % 16); C(Sc, 2); E(Sc, 12, 16, 3); C(Sc, 3)
    a("s_mov_b64 vcc, -1")
    a("s_add_u32 s57, s57, 1\ns_cmp_ge_u32 s57, 2\ns_cbranch_scc0 AT_loop")
    a("s_waitcnt lgkmcnt(0)")
    pv1()
    srd(a, 44, 32, 2048 * 2560)
    a("s_mov_b32 s83, 0\ns_mov_b32 s71, 0\ns_mov_b32 s72, 20480\ns_mov_b32 s73, -40960\ns_mov_b32 s74, 25600\ns_mov_b32 s75, -102400")
    a("s_nop 2")
    a(f"v_cmp_nge_f32 vcc, {f32(2.0**40)}, v{OO+12}")
    a("s_nop 1")
    a("s_cbranch_vccnz AT_fallback")
    a.label("AT_ok")
    o_epilogue(a, OO, WS_OA, False)
    a("s_cmp_ge_u32 s3, 4\ns_cbranch_scc1 TLz_job")
    F = [20 + 8 * i for i in range(10)]
    LA = 4
    def tl_pub(pfx):
        a(f"s_cmp_eq_u32 s55, 0\ns_cbranch_scc1 {pfx}_np")
        a("s_waitcnt vmcnt(0)")
        publish(a, "s55", "v100", "v101")
        a("s_mov_b32 s55, 0")
        a.label(pfx + "_np")
    def tl_head():
        tl_pub("TLm"); a("s_waitcnt lgkmcnt(0)\ns_barrier")
    def tl_adv():
        a("s_add_u32 s71, s71, 1\ns_cmp_eq_u32 s71, 3\ns_cselect_b32 s8, s73, s72\ns_cselect_b32 s71, 0, s71")
        a(f"v_add_u32 v{tW1}, s74, v{tW1}\nv_add_u32 v{tW2}, s74, v{tW2}\nv_add_u32 v{tX1}, s8, v{tX1}\nv_add_u32 v{tX2}, s8, v{tX2}")
        a("s_add_u32 s56, s56, 1\ns_cmp_lt_u32 s56, 4")
    def mrd(st):
        f = F[st]; t, H = divmod(st, 5)
        if H < 4:
            for hf in range(2): a(f"ds_read_b64_tr_b16 v[{f+2*hf}:{f+2*hf+1}], v{tW1} offset:{(80*t+20*H+4*hf)*160}")
            a(f"ds_read_b128 v[{f+4}:{f+7}], v{tX1} offset:{t*10240+H*1024}")
        else:
            for hf in range(2): a(f"ds_read_b64_tr_b16 v[{f+2*hf}:{f+2*hf+1}], v{tW2} offset:{(80*t+40*hf)*160}")
            for hf in range(2): a(f"ds_read_b64 v[{f+4+2*hf}:{f+5+2*hf}], v{tX2} offset:{t*10240+4096+512*hf}")
    def mmf(st): a(f"v_mfma_f32_32x32x16_bf16 v[4:19], v[{F[st]}:{F[st]+3}], v[{F[st]+4}:{F[st]+7}], v[4:19]")
    nrd = lambda st: 4 if st % 5 == 4 else 3
    a.label("TLm_job")
    for i in range(4, 20): a(f"v_mov_b32 v{i}, 0")
    a("s_mov_b32 s56, 0")
    a("s_barrier")
    for st in range(LA): mrd(st)
    a("s_branch TLm_mid")
    a(".p2align 3")
    a.label("TLm_loop")
    tl_head()
    for st in range(LA):
        mmf(10 - LA + st); mrd(st)
    a.label("TLm_mid")
    for st in range(LA, 10):
        mrd(st)
        a(f"s_waitcnt lgkmcnt({sum(nrd(x) for x in range(st-LA+1, st+1))})")
        mmf(st - LA)
    tl_adv()
    a("s_cbranch_scc1 TLm_loop")
    for st in range(10 - LA, 10):
        a(f"s_waitcnt lgkmcnt({sum(nrd(x) for x in range(st+1, 10))})")
        mmf(st)
    a(f"v_add_u32 v{tW1}, s75, v{tW1}\nv_add_u32 v{tW2}, s75, v{tW2}")
    a("s_nop 9")
    for i in range(8): a(f"v_cvt_pk_bf16_f32 v{100+i}, v{4+2*i}, v{5+2*i}")
    a("s_nop 1")
    for half in range(2):
        d = 100 + 4 * half
        a(f"v_permlane32_swap_b32 v{d}, v{d+2}\nv_permlane32_swap_b32 v{d+1}, v{d+3}")
    for half in range(2):
        d = 100 + 4 * half
        a(f"buffer_store_dwordx4 v[{d}:{d+3}], v{tO}, s[44:47], s80 offen offset:{32*half} {ONT}")
    a("s_sub_u32 s80, s80, 1280")
    a("s_add_u32 s83, s83, 1\ns_cmp_lt_u32 s83, 2\ns_cbranch_scc1 TLm_job")
    stamp_end(a)
    a("s_endpgm")
    a.label("TLz_job")
    for i in range(4, 8): a(f"v_mov_b32 v{i}, 0")
    a("s_mov_b32 s56, 0")
    a("s_branch TLz_np")
    a.label("TLz_loop")
    tl_pub("TLz")
    a("s_barrier")
    for j in range(4):
        f = F[j]; t = j >> 1
        for hf in range(2): a(f"ds_read_b64_tr_b16 v[{f+2*hf}:{f+2*hf+1}], v{tW1} offset:{(80*t+40*(j&1)+4*hf)*160}")
        a(f"ds_read_b128 v[{f+4}:{f+7}], v{tX1} offset:{t*10240+(j&1)*2048}")
    def zmf(j): a(f"v_mfma_f32_16x16x32_bf16 v[4:7], v[{F[j]}:{F[j]+3}], v[{F[j]+4}:{F[j]+7}], v[4:7]")
    a("s_waitcnt lgkmcnt(9)"); zmf(0)
    f = F[4]
    for t in range(2): a(f"ds_read_b64_tr_b16 v[{f+2*t}:{f+2*t+1}], v{tW2} offset:{12800*t}")
    for t in range(2): a(f"ds_read_b64 v[{f+4+2*t}:{f+5+2*t}], v{tX2} offset:{4096+10240*t}")
    a("s_waitcnt lgkmcnt(10)"); zmf(1)
    a("s_waitcnt lgkmcnt(7)"); zmf(2)
    a("s_waitcnt lgkmcnt(4)"); zmf(3)
    a("s_waitcnt lgkmcnt(0)"); zmf(4)
    tl_adv()
    a("s_cbranch_scc1 TLz_loop")
    a(f"v_add_u32 v{tW1}, s75, v{tW1}\nv_add_u32 v{tW2}, s75, v{tW2}")
    a("v_cvt_pk_bf16_f32 v100, v4, v5\nv_cvt_pk_bf16_f32 v101, v6, v7")
    a(f"buffer_store_dwordx2 v[100:101], v{tO}, s[44:47], s80 offen offset:128 {ONT}")
    a("s_sub_u32 s80, s80, 1280")
    a("s_add_u32 s83, s83, 1\ns_cmp_lt_u32 s83, 2\ns_cbranch_scc1 TLz_job")
    stamp_end(a)
    a("s_endpgm")
    a.label("FU_start")
    a(f"s_mov_b32 s8, {3*CH}")
    for r in (aKA, aKB, aV0, aV1): a(f"v_add_u32 v{r}, s8, v{r}")
    a(f"s_mov_b32 s56, 0\ns_mov_b32 s68, 0\ns_mov_b32 s70, {SLOT}\ns_mov_b32 s74, {-2*SLOT}\ns_mov_b32 s72, {CH}\ns_mov_b32 s73, {-3*CH}")
    a("s_waitcnt lgkmcnt(0)")
    a("s_cmp_ge_u32 s3, 3\ns_cbranch_scc1 FU_C")
    def G(orient, s_, blk):
        f = BFR + 12 * s_; w, x, ac = v(f, 4), v(f + 4 + 4 * blk, 4), v(BACC + 16 * blk, 16)
        a(f"v_mfma_f32_32x32x16_bf16 {ac}, {w}, {x}, {ac}" if orient == "R" else f"v_mfma_f32_32x32x16_bf16 {ac}, {x}, {w}, {ac}")
    def GR(orient, s_, st):
        f = BFR + 12 * s_; stride = 160 if orient == "R" else 320
        for hf in range(2): a(f"ds_read_b64_tr_b16 v[{f+2*hf}:{f+2*hf+1}], v{bW} offset:{(16*st+4*hf)*stride}")
        for blk in range(2): a(f"ds_read_b128 v[{f+4+4*blk}:{f+7+4*blk}], v{bX+st} offset:{4096*blk}")
    for orient in ("R", "C"):
        a(".p2align 3")
        a.label("FU_" + orient)
        a("s_and_b32 s9, s56, 3\ns_cselect_b32 s9, s72, s73")
        for n in range(4):
            Sc, Sn = (S0, S1) if n % 2 == 0 else (S1, S0)
            def slot(i, w=None):
                c1((i - 1) % 8, Sn if i == 0 else Sc)
                E(Sc, 2 * i, 2 * i + 2, w)
            def va(*regs, sg):
                for r in regs: a(f"v_add_u32 v{r}, {sg}, v{r}")
            G(orient, 0, 0)
            if n == 2: va(aKA, aKB, sg="s9")
            slot(0, 11)
            qka(Sn); rdKA((n + 2) % 4); slot(1)
            if n % 2 == 0:
                a("s_waitcnt lgkmcnt(1)\ns_barrier")
                a("s_add_u32 s68, s68, 1\ns_cmp_eq_u32 s68, 3\ns_cselect_b32 s8, s74, s70\ns_cselect_b32 s68, 0, s68")
            G(orient, 0, 1); GR(orient, 0, (2 * n) % 4); slot(2, 11)
            pv1(); rdV1(n); slot(3, 11)
            qkb(Sn); rdKB((n + 2) % 4); slot(4, 7)
            G(orient, 1, 0)
            if n == 3: va(aV0, aV1, sg="s9")
            slot(5)
            pv0(); rdV0((n + 1) % 4); slot(6)
            G(orient, 1, 1); GR(orient, 1, (2 * n + 1) % 4)
            if n % 2 == 0: va(bX, bX + 1, sg="s8")
            else:
                va(bX + 2, bX + 3, bW, sg="s8"); a("s_nop 0")
            slot(7, 7)
        a(f"s_add_u32 s56, s56, 1\ns_cmp_lt_u32 s56, 5\ns_cbranch_scc1 FU_{orient}")
        c1(7, S1)
        G(orient, 0, 0); G(orient, 0, 1)
        a("s_waitcnt lgkmcnt(0)")
        G(orient, 1, 0); G(orient, 1, 1)
        if orient == "R":
            a("s_nop 8")
            call(a, "g_phi")
            call(a, "g_t2l")
            a("s_branch B_jobs")
    a("s_lshl_b32 s8, s78, 12")
    a(f"v_add_u32 v{TL0}, s8, v{OAD1}")
    a("s_nop 6")
    a("s_cmp_ge_u32 s78, 3")
    a("s_cbranch_scc1 B_nophi")
    a("s_cmp_eq_u32 s78, 2")
    a("s_cselect_b32 s8, 0xffff, -1")
    a("s_mov_b32 exec_lo, s8\ns_mov_b32 exec_hi, s8")
    call(a, "g_phi")
    a("s_branch B_wr")
    a.label("B_nophi")
    call(a, "g_pack")
    a.label("B_wr")
    for ks in range(4):
        d = BACC + 4 * ks
        a(f"ds_write_b128 v{TL0}, v[{d}:{d+3}] offset:{LFR+1024*ks}")
    a.label("B_jobs")
    JAF, JBF, JD = BACC, BACC + 16, BFR
    a("s_cmp_lt_u32 s3, 5\ns_cbranch_scc1 B_noz")
    for i in range(16): a(f"v_mov_b32 v{JBF+i}, 0x3f803f80")
    a.label("B_noz")
    a("s_waitcnt lgkmcnt(0)\ns_barrier")
    for ks in range(4): a(f"ds_read_b128 v[{JAF+4*ks}:{JAF+4*ks+3}], v{JA} offset:{LFR+1024*ks}")
    a("s_cbranch_scc0 B_nob")
    for ks in range(4): a(f"ds_read_b128 v[{JBF+4*ks}:{JBF+4*ks+3}], v{JB} offset:{LFR+1024*ks}")
    a.label("B_nob")
    read_qfrag(a, PQA, PQB)
    a("s_waitcnt lgkmcnt(2)")
    for ks in range(4):
        c = "0" if ks == 0 else v(JD, 16)
        a(f"v_mfma_f32_32x32x16_bf16 {v(JD,16)}, v[{JAF+4*ks}:{JAF+4*ks+3}], v[{JBF+4*ks}:{JBF+4*ks+3}], {c}")
    a("s_mov_b32 exec_lo, 0")
    a("s_waitcnt lgkmcnt(0)")
    a(f"v_mov_b32 v{PQB}, 0\nv_mov_b32 v{PQB+1}, 0")
    a("s_nop 7")
    for q in range(4):
        a(f"s_mov_b64 exec, s[{MASKS[q]}:{MASKS[q]+1}]")
        a(f"ds_write_b128 v{PWR+q}, v[{JD+4*q}:{JD+4*q+3}] offset:{LPART}")
    a("s_mov_b64 exec, -1")
    a("s_waitcnt lgkmcnt(0)\ns_barrier")
    a("s_cmp_lg_u32 s57, 0")
    a("s_branch AT_loop")
    a.label("AT_apply")
    AP = BACC
    a(f"""
    ds_read2_b64 v[100:103], v{AP1} offset0:0 offset1:1
    ds_read_b64 v[104:105], v{AP0} offset:32
    s_waitcnt lgkmcnt(0)
    v_mfma_f32_32x32x16_bf16 v[{AP}:{AP+15}], v[100:103], v[{PQA}:{PQA+3}], 0
    v_mfma_f32_32x32x8_bf16 v[{AP}:{AP+15}], v[104:105], v[{PQB}:{PQB+1}], v[{AP}:{AP+15}]
    s_nop 11
    """)
    o_epilogue(a, AP, WS_OB, True)
    a("s_cmp_eq_u32 s57, 0")
    a("s_branch AT_n4")
    a.label("AT_fallback")
    FM = BACC
    a("s_mov_b32 exec_lo, 0")
    a(f"v_mov_b32 v{QB}, 0\nv_mov_b32 v{QB+1}, 0")
    a("s_mov_b32 exec_lo, -1")
    a(f"v_mov_b32 v{FM}, 0xff800000")
    a(f"s_mov_b32 s70, {WS_KV - LKV}")
    a.label("AT_fb1")
    a(f"buffer_load_dwordx4 v[{KA}:{KA+3}], v{aKA}, s[40:43], s70 offen sc1")
    a(f"buffer_load_dwordx2 v[{KB}:{KB+1}], v{aKB}, s[40:43], s70 offen sc1")
    a("s_waitcnt vmcnt(0)")
    qka(S0); qkb(S0)
    a("s_nop 15")
    rowmax(a, S0, FM, first=False)
    a(f"s_add_u32 s70, s70, {TILE}\ns_cmp_lt_u32 s70, {WS_KV-LKV+64*TILE}\ns_cbranch_scc1 AT_fb1")
    set_m(a, FM, FM + 1, FM + 2)
    for i in range(16): a(f"v_mov_b32 v{OO+i}, 0")
    a(f"s_mov_b32 s70, {WS_KV - LKV}")
    a.label("AT_fb2")
    a(f"buffer_load_dwordx4 v[{KA}:{KA+3}], v{aKA}, s[40:43], s70 offen sc1")
    a(f"buffer_load_dwordx2 v[{KB}:{KB+1}], v{aKB}, s[40:43], s70 offen sc1")
    a(f"buffer_load_dwordx4 v[{V0}:{V0+3}], v{aV0}, s[40:43], s70 offen sc1")
    a(f"buffer_load_dwordx4 v[{V1}:{V1+3}], v{aV1}, s[40:43], s70 offen sc1")
    a("s_waitcnt vmcnt(0)")
    qka(S0); qkb(S0)
    a("s_nop 15")
    E(S0, 0, 16)
    a("s_nop 0")
    for g in range(4): C(S0, g)
    a("s_nop 1")
    pv0(); pv1()
    a(f"s_add_u32 s70, s70, {TILE}\ns_cmp_lt_u32 s70, {WS_KV-LKV+64*TILE}\ns_cbranch_scc1 AT_fb2")
    a("s_nop 15")
    a("s_branch AT_ok")

    LK = "s[62:63]"
    A_, B_, KV_, P_, WO_ = "L_issueA", "L_issueB", "L_issueKV", "L_issueP", "L_issueWo"
    a.label("L_loader")
    a("s_setprio 2")
    a("s_sub_u32 s10, s3, 8")
    a("s_mul_i32 s13, s4, 81920")
    a("v_lshlrev_b32 v18, 4, v0")
    a("s_cmp_eq_u32 s10, 1\ns_cbranch_scc1 L_mw")
    a("""
    v_lshrrev_b32 v20, 4, v0
    v_xor_b32 v21, v20, v0
    v_and_b32 v21, 15, v21
    v_lshlrev_b32 v21, 4, v21
    v_mul_u32_u24 v20, 1280, v20
    """)
    for j in range(4):
        a(f"v_xor_b32 v{28+j}, {64*j}, v21")
        a(f"v_add_u32 v{28+j}, v{28+j}, v20")
        if j < 3: a("v_add_u32 v20, 5120, v20")
    a(f"""
    s_mov_b32 m0, {LMX}
    s_lshr_b32 s14, s5, 1
    s_mul_i32 s14, s14, 20480
    s_add_u32 s14, s14, s13
    s_mov_b32 s15, 0
    s_waitcnt lgkmcnt(0)
    """)
    srd(a, 44, 16, XBYTES)
    a.label("L_mx")
    for j in range(4):
        dma(a, f"v{28+j}", 44, "s14")
        a("s_add_u32 m0, m0, 1024")
        a("s_add_u32 s14, s14, 256" if j == 3 else "s_nop 0")
    a("s_add_u32 s15, s15, 1\ns_cmp_lt_u32 s15, 5\ns_cbranch_scc1 L_mx")
    a("s_branch L_md")
    a.label("L_mw")
    a(f"s_mov_b32 m0, {LWKV}\ns_mov_b32 s14, 0")
    a("s_waitcnt lgkmcnt(0)")
    a("s_bitcmp1_b32 s5, 0")
    a("s_cselect_b32 s52, s22, s20")
    a("s_cselect_b32 s53, s23, s21")
    a("s_mov_b32 s54, 25600\ns_mov_b32 s55, 0x20000")
    a.label("L_mwl")
    for i in range(4): a(f"buffer_load_dwordx4 v18, s[52:55], s14 offen offset:{1024*i} lds")
    a("s_add_u32 m0, m0, 4096\ns_add_u32 s14, s14, 4096\ns_cmp_lt_u32 s14, 24576\ns_cbranch_scc1 L_mwl")
    a("buffer_load_dwordx4 v18, s[52:55], s14 offen lds")
    srd(a, 44, 16, XBYTES)
    a.label("L_md")
    tr_init(a); tr(a)
    a("""
    s_and_b32 s8, s5, 1
    s_mul_i32 s8, s8, 5
    s_and_b32 s9, s5, 2
    s_add_u32 s8, s8, s9
    s_and_b32 s9, s4, 7
    s_add_u32 s11, s8, s9
    s_cmp_ge_u32 s11, 10
    s_cselect_b32 s8, 10, 0
    s_sub_u32 s11, s11, s8
    s_mov_b32 s12, 0
    s_lshl_b32 s8, s10, 2
    s_lshl_b32 s9, s10, 3
    v_lshrrev_b32 v20, 4, v0
    v_add_u32 v20, s8, v20
    v_xor_b32 v20, v20, v0
    v_and_b32 v20, 7, v20
    v_lshlrev_b32 v20, 4, v20
    v_lshrrev_b32 v21, 3, v0
    v_add_u32 v21, s9, v21
    v_mul_u32_u24 v21, 1280, v21
    v_add_u32 v2, v20, v21
    s_mov_b32 s8, 1120
    """)
    for p in range(5):
        a(f"v_add_u32 v20, {64*p}, v0")
        a(f"v_mul_u32_u24 v{22+p}, 6554, v20")
        a(f"v_lshrrev_b32 v{22+p}, 16, v{22+p}")
        a(f"v_lshlrev_b32 v20, 4, v20")
        a(f"v_mad_u32_u24 v{3+p}, v{22+p}, s8, v20")
    a("s_mul_i32 s64, s5, 160")
    a(f"s_mul_i32 s65, s10, {32*1280}")
    a("s_add_u32 s65, s65, s64")
    srd(a, 48, 18, 640 * 1280)
    call(a, A_, LK)
    a("s_waitcnt vmcnt(9)"); bar(a)
    call(a, A_, LK); call(a, A_, LK)
    pk = pack3(INV)
    def swz(p):
        a(f"""
        v_add_u32 v20, {64*p}, v0
        v_mul_u32_u24 v21, 10, v{22+p}
        v_sub_u32 v20, v20, v21
        v_lshrrev_b32 v21, 1, v20
        v_and_b32 v28, 3, v{22+p}
        v_mad_u32_u24 v21, v28, 5, v21
        v_mul_u32_u24 v21, 3, v21
        v_lshrrev_b64 v[28:29], v21, s[70:71]
        v_and_b32 v28, 7, v28
        v_and_b32 v20, 1, v20
        v_lshl_or_b32 v20, v28, 1, v20
        v_lshlrev_b32 v20, 4, v20
        v_mad_u32_u24 v{41+p}, v{22+p}, s68, v20
        """)
    a("s_mov_b32 s70, 0")
    a.label("L_a")
    a("s_waitcnt vmcnt(18)"); bar(a); call(a, A_, LK)
    a("s_add_u32 s70, s70, 1\ns_cmp_lt_u32 s70, 7\ns_cbranch_scc1 L_a")
    srd(a, 40, 36, WS_SIZE)
    srd(a, 72, 26, XBYTES)
    srd(a, 76, 28, 640 * 3840)
    a("s_waitcnt vmcnt(18)"); bar(a)
    a("s_mov_b32 s8, 2560\ns_mov_b32 s9, 1280")
    for p in range(5):
        a(f"v_mad_u32_u24 v{8+p}, v{22+p}, s8, v{3+p}")
        a(f"v_lshrrev_b32 v20, 1, v{22+p}")
        a(f"v_mad_u32_u24 v{13+p}, v20, s9, v{3+p}")
    a(f"s_mul_i32 s66, s10, {32*3840}")
    a("s_add_u32 s66, s66, s64")
    a("s_add_u32 s67, s66, 1280")
    get_nonce(a, "v30", "v31")
    a("s_waitcnt vmcnt(9)"); bar(a)
    a(f"s_mov_b32 s70, {pk & 0xffffffff:#x}\ns_mov_b32 s71, {pk >> 32:#x}\ns_mov_b32 s68, 1280")
    swz(0); swz(1)
    a("s_waitcnt vmcnt(0)"); bar(a)
    swz(2); swz(3); swz(4)
    a("s_mov_b32 s12, 0")
    a("s_and_b32 s69, s5, 3")
    a("s_cmp_eq_u32 s10, 1")
    a("s_cbranch_scc1 L1_path")
    srd(a, 48, 30, 640 * 1280)
    srd(a, 52, 24, 640 * 1280)
    a("s_add_u32 s60, s7, 3\ns_and_b32 s60, s60, 15")
    a(f"s_mov_b32 s61, {LKV + 3*CH}")
    a("s_lshl_b32 s56, s4, 7\ns_lshl_b32 s57, s5, 2\ns_add_u32 s57, s57, s56")
    a("v_lshlrev_b32 v19, 2, v0")

    def stage_load():
        for g in range(5):
            for p in range(5):
                d = 60 + 4 * (5 * g + p)
                a(f"buffer_load_dwordx4 v[{d}:{d+3}], v{41+p}, s[52:55], s14 offen")
            if g < 4: a(f"s_add_u32 s14, s14, {32*1280}")
    def stage_store(base, lo, hi):
        for i in range(lo, hi):
            a(f"ds_write_b128 v18, v[{60+4*i}:{63+4*i}] offset:{base+1024*i}")
    pad(a, "b0")
    bar(a); gs(a, 8); call(a, B_, LK)
    bar(a); call(a, KV_, LK)
    bar(a); call(a, KV_, LK); call(a, B_, LK)
    a("s_waitcnt vmcnt(30)"); bar(a); call(a, KV_, LK); call(a, B_, LK)
    a("s_waitcnt vmcnt(49)"); bar(a); call(a, KV_, LK)
    a("s_mov_b32 s70, 0")
    a.label("L0_f")
    a("s_waitcnt vmcnt(30)"); bar(a); call(a, B_, LK)
    a("s_waitcnt vmcnt(19)"); bar(a); call(a, B_, LK); call(a, KV_, LK)
    a("s_add_u32 s70, s70, 1\ns_cmp_lt_u32 s70, 3\ns_cbranch_scc1 L0_f")
    a("s_waitcnt vmcnt(30)"); bar(a); call(a, B_, LK)
    a("s_waitcnt vmcnt(19)"); bar(a); call(a, KV_, LK)
    a("s_waitcnt vmcnt(11)"); bar(a)
    a(f"s_add_u32 s14, s69, 1\ns_and_b32 s14, s14, 3\ns_mul_i32 s14, s14, {160*1280}\ns_add_u32 s14, s14, s64")
    stage_load()
    a(f"s_mov_b32 s12, 0\ns_mul_i32 s65, s69, {160*1280}")
    bar(a); bar(a)
    a("s_mov_b32 s70, 9")
    a.label("L0_kv")
    a("s_waitcnt vmcnt(31)"); bar(a); call(a, KV_, LK); call(a, "L_wo4", LK)
    a("s_add_u32 s70, s70, 1\ns_cmp_lt_u32 s70, 14\ns_cbranch_scc1 L0_kv")
    a("s_waitcnt vmcnt(31)"); bar(a)
    a(f"s_add_u32 s8, s57, {FL_OB}")
    publish(a, "s8", "v30", "v31")
    a(f"s_add_u32 s13, s13, {WS_OB}")
    a(f"s_mov_b32 s61, {LX}")
    a(f"s_add_u32 s8, s56, {FL_OB}")
    a("s_waitcnt vmcnt(1)"); bar(a)
    poll(a, "s8", 8)
    call(a, P_, LK)
    pad(a, "b16")
    bar(a)
    gs(a, 9)
    call(a, P_, LK)
    a("v_lshrrev_b32 v19, 3, v0\nv_lshlrev_b32 v19, 7, v19\nv_and_b32 v28, 7, v0\nv_lshl_add_u32 v19, v28, 2, v19")
    a("s_waitcnt vmcnt(20)"); bar(a)
    call(a, P_, LK)
    a("s_waitcnt vmcnt(20)"); bar(a)
    call(a, P_, LK)
    a(f"s_sub_u32 s13, s13, {WS_OB - WS_OA}")
    a(f"s_lshl_b32 s8, s4, 10\ns_add_u32 s8, s8, {FL_OA}")
    a("s_waitcnt vmcnt(20)"); bar(a)
    a("buffer_load_dword v30, v19, s[40:43], s8 offen sc1")
    stage_store(25600, 0, 6)
    a("s_waitcnt vmcnt(0)\nv_cmp_ne_u32 vcc, s96, v30\ns_nop 1")
    a("s_cbranch_vccnz L0_late")
    call(a, P_, LK)
    bar(a)
    a("s_branch L0_join")
    a.label("L0_late")
    bar(a)
    poll(a, "s8", 64)
    call(a, P_, LK)
    a.label("L0_join")
    gs(a, 7)
    call(a, P_, LK)
    stage_store(25600, 6, 18)
    a("s_waitcnt vmcnt(20)"); bar(a)
    call(a, P_, LK)
    stage_store(25600, 18, 25)
    a("s_waitcnt vmcnt(20) lgkmcnt(0)"); bar(a)
    call(a, P_, LK)
    a("s_waitcnt vmcnt(20)"); bar(a)
    a("s_waitcnt vmcnt(0)"); bar(a)
    pad(a, "end")
    tr_dump(a)
    a("s_endpgm")
    a.label("L1_path")
    srd(a, 48, 24, 640 * 1280)
    srd(a, 52, 30, 640 * 1280)
    pf_rows(a, 46, 1280, "s60", "s61")
    a("s_lshl_b32 s56, s5, 5\ns_add_u32 s57, s56, s4")
    a(f"s_mul_i32 s68, s57, 6720\ns_add_u32 s68, s68, {WS_KVP}")
    a("s_lshl_b32 s56, s5, 9\ns_lshr_b32 s8, s4, 3\ns_lshl_b32 s8, s8, 7\ns_and_b32 s57, s4, 7\ns_lshl_b32 s57, s57, 2\ns_add_u32 s57, s57, s8\ns_add_u32 s57, s57, s56")
    a("v_lshrrev_b32 v19, 3, v0\nv_lshlrev_b32 v19, 7, v19\nv_and_b32 v28, 7, v0\nv_lshl_add_u32 v19, v28, 2, v19")
    a(f"""
    v_lshrrev_b32 v48, 4, v0
    v_mul_u32_u24 v48, {8*6720}, v48
    v_and_b32 v49, 15, v0
    v_lshl_add_u32 v48, v49, 4, v48
    v_lshlrev_b32 v49, 4, v49
    v_lshlrev_b32 v50, 3, v0
    """)
    bar(a); call(a, B_, LK)
    bar(a)
    bar(a); call(a, B_, LK)
    bar(a); call(a, B_, LK)
    a("s_waitcnt vmcnt(38)"); bar(a)
    a("s_mov_b32 s70, 0")
    a.label("L1_f")
    a("s_waitcnt vmcnt(19)"); bar(a); call(a, B_, LK)
    a("s_add_u32 s70, s70, 1\ns_cmp_lt_u32 s70, 7\ns_cbranch_scc1 L1_f")
    a("s_waitcnt vmcnt(19)"); bar(a)
    a("s_waitcnt vmcnt(0)"); bar(a)
    a("s_mov_b32 exec_hi, 0x3ffff")
    for i, (sr, so) in enumerate(((52, "s60"), (52, "s61"), (48, "s60"), (48, "s61"))):
        a(f"buffer_load_dword v{32+i}, v46, s[{sr}:{sr+3}], {so} offen")
    a("s_mov_b32 exec_hi, -1")
    bar(a); bar(a)
    R = 60
    for i in range(7):
        a(f"ds_read_b128 v[{R+4*i}:{R+3+4*i}], v18 offset:{LPART+1024*i}")
    a("s_add_u32 s8, s68, 4096")
    a("s_waitcnt lgkmcnt(0)")
    for i in range(6):
        a(f"buffer_store_dwordx4 v[{R+4*i}:{R+3+4*i}], v18, s[40:43], {'s68' if i < 4 else 's8'} offen offset:{1024*(i%4)} sc1")
    a("s_mov_b32 exec_hi, 15")
    a(f"buffer_store_dwordx4 v[{R+24}:{R+27}], v18, s[40:43], s8 offen offset:2048 sc1")
    a("s_mov_b32 exec_hi, -1")
    bar(a)
    a("s_waitcnt vmcnt(0)")
    a(f"s_add_u32 s8, s57, {FL_P}")
    publish(a, "s8", "v30", "v31")
    bar(a)
    a(f"s_add_u32 s8, s56, {FL_P}")
    poll(a, "s8", 32)
    a(f"s_mul_i32 s8, s5, {32*6720}\ns_mul_i32 s9, s4, 224\ns_add_u32 s8, s8, s9\ns_add_u32 s8, s8, {WS_KVP}")
    for i in range(8):
        a(f"buffer_load_dwordx4 v[{R+4*i}:{R+3+4*i}], v48, s[40:43], s8 offen sc1")
        a("s_add_u32 s8, s8, 6720")
    bar(a)
    a("s_waitcnt vmcnt(0)")
    for half in (4, 2, 1):
        for i in range(half):
            for j in (0, 2):
                a(f"v_pk_add_f32 v[{R+4*i+j}:{R+1+4*i+j}], v[{R+4*i+j}:{R+1+4*i+j}], v[{R+4*(i+half)+j}:{R+1+4*(i+half)+j}]")
    for op in ("v_permlane32_swap_b32", "v_permlane16_swap_b32"):
        for j in range(4): a(f"v_mov_b32 v{R+4+j}, v{R+j}")
        a("s_nop 1")
        for j in range(4): a(f"{op} v{R+j}, v{R+4+j}")
        a("s_nop 1")
        for j in range(4): a(f"v_add_f32 v{R+j}, v{R+j}, v{R+4+j}")
    a(f"""
    v_cvt_pk_bf16_f32 v{R}, v{R}, v{R+1}
    v_cvt_pk_bf16_f32 v{R+2}, v{R+2}, v{R+3}
    v_mov_b32 v{R+1}, s96
    v_mov_b32 v{R+3}, s96
    s_lshl_b32 s70, s5, 13
    s_add_u32 s70, s70, {WS_KVZ}
    s_add_u32 s71, s70, 4096
    s_mul_i32 s9, s4, 224
    s_add_u32 s8, s70, s9
    s_cmp_lt_u32 s4, 30
    s_cselect_b32 exec_lo, 0x3fff, 0
    s_mov_b32 exec_hi, 0
    buffer_store_dwordx4 v[{R}:{R+3}], v49, s[40:43], s8 offen sc1
    s_mov_b64 exec, -1
    """)
    bar(a)
    a(f"v_mov_b32 v{R+25}, s96\nv_mov_b32 v{R+27}, s96\ns_mov_b32 s9, 0")
    a.label("L1_g")
    for i in range(6):
        a(f"buffer_load_dwordx4 v[{R+4*i}:{R+3+4*i}], v18, s[40:43], {'s70' if i < 4 else 's71'} offen offset:{1024*(i%4)} sc1")
    a("s_mov_b32 exec_hi, 15")
    a(f"buffer_load_dwordx4 v[{R+24}:{R+27}], v18, s[40:43], s71 offen offset:2048 sc1")
    a("s_mov_b32 exec_hi, -1")
    a("s_add_u32 s9, s9, 1\ns_waitcnt vmcnt(0)")
    a(f"v_and_b32 v30, v{R+1}, v{R+3}\nv_or_b32 v31, v{R+1}, v{R+3}")
    for i in range(1, 7):
        a(f"v_bitop3_b32 v30, v30, v{R+4*i+1}, v{R+4*i+3} bitop3:0x80")
        a(f"v_or3_b32 v31, v31, v{R+4*i+1}, v{R+4*i+3}")
    a("v_xor_b32 v30, s96, v30\nv_xor_b32 v31, s96, v31\nv_or_b32 v30, v30, v31\nv_cmp_ne_u32 vcc, 0, v30")
    a(f"s_cmp_gt_u32 s9, {SPIN_MAX}\ns_cbranch_scc1 L1_gd\ns_cbranch_vccz L1_gd\ns_sleep 1\ns_branch L1_g")
    a.label("L1_gd")
    a(f"v_add_u32 v50, {LKVZ}, v50")
    for i in range(7):
        a(f"ds_write2_b32 v50, v{R+4*i}, v{R+4*i+2} offset0:{(128*i)%256} offset1:{(128*i)%256+1}")
        if i % 2 == 1: a("v_add_u32 v50, 1024, v50")
    srd(a, 52, 24, 640 * 1280)
    a("s_waitcnt lgkmcnt(0)")
    bar(a)
    bar(a)
    a(f"s_mul_i32 s14, s69, {160*1280}\ns_add_u32 s14, s14, s64")
    stage_load()
    a("s_add_u32 s69, s69, 2\ns_and_b32 s69, s69, 3\ns_mov_b32 s12, 51200")
    bar(a); bar(a)
    a("s_waitcnt vmcnt(0)")
    bar(a); bar(a)
    stage_store(0, 0, 8)
    bar(a)
    stage_store(0, 8, 16)
    bar(a)
    stage_store(0, 16, 25)
    call(a, WO_, LK)
    a("s_waitcnt lgkmcnt(0)")
    bar(a)
    call(a, WO_, LK)
    bar(a)
    a("s_waitcnt vmcnt(25)"); bar(a)
    a("s_waitcnt vmcnt(0)"); bar(a)
    tr_dump(a)
    a.label("L_end")
    a("s_endpgm")
    a.label("L_wo4")
    a("s_mov_b32 m0, s12\ns_add_u32 s12, s12, 20480\ns_mov_b32 s15, 0")
    a.label("L_wo4g")
    a("s_add_u32 s14, s65, s64")
    for p in range(5):
        dma(a, f"v{41+p}", 48, "s14")
        a("s_add_u32 m0, m0, 1024")
        if p < 4: a("s_nop 0")
    wrap_inc(a, "s65", 32 * 1280, 640 * 1280)
    a("s_add_u32 s15, s15, 1\ns_cmp_lt_u32 s15, 4\ns_cbranch_scc1 L_wo4g")
    a("s_setpc_b64 s[62:63]")
    a.label(A_)
    issue_x(a, 44, "s13", "s12")
    issue_w(a, 48, 3, 1280, "s65", "s12", IMG_W)
    wrap_inc(a, "s11", 1, 10); wrap_inc(a, "s12", HS, 6 * HS)
    a("s_setpc_b64 s[62:63]")
    a.label(B_)
    issue_x(a, 72, "s13", "s12")
    issue_w(a, 76, 8, 3840, "s66", "s12", IMG_W)
    issue_w(a, 76, 13, 3840, "s67", "s12", IMG_KV, periods=2, rows_per_period=16)
    wrap_inc(a, "s11", 1, 10); wrap_inc(a, "s12", SLOT, 3 * SLOT)
    a("s_setpc_b64 s[62:63]")
    def lin(n):
        for i in range(n):
            if i % 4 == 0 and i > 0:
                a("s_add_u32 m0, m0, 4096")
                a("s_add_u32 s14, s14, 4096")
            a(f"buffer_load_dwordx4 v18, s[40:43], s14 offen offset:{1024*(i%4)} sc1 lds")
    a.label(KV_)
    a("s_mov_b32 m0, s61")
    a(f"s_mul_i32 s14, s60, {CH}")
    a(f"s_add_u32 s14, s14, {WS_KV}")
    lin(11)
    a("s_add_u32 s60, s60, 1\ns_and_b32 s60, s60, 15")
    wrap_inc(a, "s61", CH, LKV + 4 * CH, LKV)
    a("s_setpc_b64 s[62:63]")
    a.label(P_)
    a("s_mov_b32 m0, s61")
    a("s_mul_i32 s14, s69, 20480")
    a("s_add_u32 s14, s14, s13")
    lin(20)
    a("s_add_u32 s69, s69, 1\ns_and_b32 s69, s69, 3")
    wrap_inc(a, "s61", 20480, LX + 3 * 20480, LX)
    a("s_setpc_b64 s[62:63]")
    a.label(WO_)
    a("s_mov_b32 m0, s12")
    a(f"s_mul_i32 s14, s69, {160*1280}")
    a("s_add_u32 s14, s14, s64")
    a("s_mov_b32 s15, 0")
    a.label("L_wo_g")
    for p in range(5):
        dma(a, f"v{41+p}", 48, "s14")
        a("s_add_u32 m0, m0, 1024")
        if p < 4: a("s_nop 0")
    a(f"s_add_u32 s14, s14, {32*1280}")
    a("s_add_u32 s15, s15, 1\ns_cmp_lt_u32 s15, 5\ns_cbranch_scc1 L_wo_g")
    a("s_add_u32 s69, s69, 1\ns_and_b32 s69, s69, 3")
    a("s_add_u32 s12, s12, 25600")
    a("s_setpc_b64 s[62:63]")
    phi_sub(a); tile_to_lds_sub(a)
    a.label("L_codeend")

def main(out):
    a = Asm()
    a.lines.append(f"; @launch grid=(256,1,1) block=(640,1,1) lds={LDS_TOTAL}")
    a('.amdgcn_target "amdgcn-amd-amdhsa--gfx950"')
    a(".text")
    gen(a)
    a('.section .rodata,"a"')
    open(out, "w").write(a.text() + descriptor(NAME + "_kernel", NV, 102))

if __name__ == "__main__":
    main(sys.argv[1] if len(sys.argv) > 1 else f"cdna_kernels/{NAME}.s")
```

```python
import sys, struct, os
from asmlib import *

NAME = "concat_heads__grouped_kv_mqa__linear_attn_block__prompt"
STAMP = bool(os.environ.get("STAMP"))
OPT = dict(kv.split("=") for kv in os.environ.get("OPT", "").split(",") if kv)
PFB = int(OPT.get("pfb", 0))
ONT = OPT.get("ont", "nt")
ONT3 = OPT.get("ont3", ONT)
WS_OA, WS_OB, WS_KV, WS_KVP, WS_KVZ = 0x0, 0x280000, 0x500000, 0x540000, 0x700000
FL_KV, FL_P, FL_R, FL_OB, FL_OA = 0x718000, 0x720000, 0x728000, 0x730000, 0x738000
WS_ST = 0x800000
WS_SIZE = 0x900000
TILE = 2816
CH = 4 * TILE
XBYTES = 2048 * 1280
SLOT = 38912
HS = SLOT // 2
IMG_W, IMG_KV = 8192, 18432
LKV = 3 * SLOT
LMISC = 163840 - 16
LKVZ = 112640
LMX = LKV
LWKV = LKV + 20480
LQ = 2 * SLOT
LFR, LPQ, LPART = SLOT, SLOT + 20480, 0
LX = 102400
LDS_TOTAL = 163840
SPIN_MAX = 1 << 17
def f32(x): return "0x%08x" % struct.unpack("<I", struct.pack("<f", x))[0]
LOG2E = 1.4426950408889634
CSCALE = LOG2E / (20 ** 0.5)

S0, S1, PP, KA, KB, QB, V0, V1, QA, OO, BACC, BFR = 4, 20, 36, 44, 48, 50, 52, 56, 60, 64, 80, 112
aKA, aKB, aV0, aV1, bW, bX = 136, 137, 138, 139, 140, 141
OAD0, OAD1 = 145, 146
PWR = 147
JA, JB, QF0, QF1, AP0, AP1 = 151, 152, 153, 154, 155, 156
tW1, tW2, tX1, tX2, tO, TL0, TL1 = 157, 158, 159, 160, 161, 162, 163
NV = 164
PQA, PQB = 128, 132
T = 4
AFR = [4, 16, 28, 40]
MASKS = [92, 94, 98, 100]
POS = [[0, 1, 3, 4, 2], [1, 2, 0, 3, 4], [2, 3, 4, 0, 1], [3, 4, 0, 2, 1]]
INV = [[POS[r].index(p) for p in range(5)] for r in range(4)]
def pack3(tab):
    x = 0
    for r in range(4):
        for j in range(5): x |= tab[r][j] << (3 * (5 * r + j))
    return x

def tr(a):
    if not STAMP: return
    a("""
    s_waitcnt lgkmcnt(0)
    s_sub_u32 s90, s88, s84
    s_memtime s[88:89]
    s_mov_b32 m0, s85
    s_add_u32 s85, s85, 1
    v_writelane_b32 v40, s90, m0
    """)
def tr_init(a):
    if STAMP: a("s_mov_b32 s85, 0\nv_mov_b32 v40, 0\ns_mov_b32 s88, s84")
def tr_dump(a):
    if not STAMP: return
    tr(a)
    a(f"""
    s_lshl_b32 s8, s2, 1
    s_add_u32 s8, s8, s10
    s_lshl_b32 s8, s8, 8
    s_add_u32 s8, s8, {WS_ST + 0x40000}
    v_lshlrev_b32 v8, 2, v0
    buffer_store_dword v40, v8, s[40:43], s8 offen
    """)
def stamp_end(a):
    if not STAMP: return
    a(f"""
    s_memtime s[12:13]
    s_waitcnt vmcnt(0)
    s_memtime s[88:89]
    s_memrealtime s[90:91]
    s_waitcnt lgkmcnt(0)
    s_mov_b64 exec, -1
    s_sub_u32 s88, s88, s84
    s_sub_u32 s12, s12, s84
    v_mov_b32 v4, s86
    v_mov_b32 v5, s90
    v_mov_b32 v6, s88
    v_mov_b32 v7, s12
    s_lshl_b32 s8, s2, 4
    s_add_u32 s8, s8, s3
    s_lshl_b32 s8, s8, 4
    s_add_u32 s8, s8, {WS_ST}
    v_mov_b32 v8, 0
    buffer_store_dwordx4 v[4:7], v8, s[40:43], s8 offen
    """)
def gs(a, idx, t0="v36", t1="v37"):
    if not STAMP: return
    a(f"""
    s_memrealtime s[14:15]
    s_waitcnt lgkmcnt(0)
    v_mov_b32 {t0}, s14
    s_lshl_b32 s14, s2, 6
    s_add_u32 s14, s14, {WS_ST + 0x80000 + 4*idx}
    v_mov_b32 {t1}, 0
    buffer_store_dword {t0}, {t1}, s[40:43], s14 offen
    """)
def pad(a, where):
    p = OPT.get("pad", "")
    if not p.startswith(where + ":"): return
    l = a.newlabel("Lpad")
    a.label(l)
    a(f"s_memrealtime s[14:15]\ns_waitcnt lgkmcnt(0)\ns_sub_u32 s14, s14, s96\ns_cmp_lt_u32 s14, {p.split(':')[1]}\ns_cbranch_scc1 {l}")
def bar(a):
    a("s_barrier"); tr(a)

def dma(a, voff, srdi, soff, extra=""):
    a(f"buffer_load_dwordx4 {voff}, s[{srdi}:{srdi+3}], {soff} offen {extra} lds")
def issue_x(a, srdi, sbase, lds_sgpr):
    a(f"s_lshl_b32 s15, s10, 10")
    a(f"s_add_u32 m0, s15, {lds_sgpr}")
    a(f"s_lshl_b32 s14, s11, 7")
    a(f"s_add_u32 s14, s14, {sbase}")
    for jj in range(4):
        dma(a, "v2", srdi, "s14")
        if jj < 3:
            a("s_add_u32 m0, m0, 2048")
            a("s_add_u32 s14, s14, 20480")
def issue_w(a, srdi, voffs, ld, sbase, lds_sgpr, ldsoff, periods=1, rows_per_period=32):
    a(f"s_mul_i32 s15, s10, {5120*periods}")
    a(f"s_add_u32 s15, s15, {lds_sgpr}")
    a(f"s_add_u32 m0, s15, {ldsoff}")
    a(f"s_mul_i32 s14, s11, {64*ld}")
    a(f"s_add_u32 s14, s14, {sbase}")
    for per in range(periods):
        for p in range(5):
            dma(a, f"v{voffs+p}", srdi, "s14")
            if not (per == periods - 1 and p == 4):
                a("s_add_u32 m0, m0, 1024")
                a(f"s_add_u32 s14, s14, {rows_per_period*ld}" if p == 4 else "s_nop 0")
def wrap_inc(a, reg, step, limit, base=0):
    a(f"s_add_u32 {reg}, {reg}, {step}")
    a(f"s_cmp_eq_u32 {reg}, {limit}")
    a(f"s_cselect_b32 {reg}, {base}, {reg}")
def set_exec(a, n):
    m = (1 << n) - 1
    a(f"s_mov_b32 exec_lo, {m & 0xffffffff:#x}\ns_mov_b32 exec_hi, {m >> 32:#x}")
def poll(a, soff, nlanes, tmp="v30", addr="v19"):
    lp, dn = a.newlabel("Lpoll"), a.newlabel("Lpd")
    set_exec(a, nlanes)
    a("s_mov_b32 s9, 0")
    a.label(lp)
    a(f"buffer_load_dword {tmp}, {addr}, s[40:43], {soff} offen sc1")
    a("s_add_u32 s9, s9, 1")
    a("s_waitcnt vmcnt(0)")
    a(f"v_cmp_ne_u32 vcc, s96, {tmp}")
    a(f"s_cmp_gt_u32 s9, {SPIN_MAX}")
    a(f"s_cbranch_scc1 {dn}")
    a(f"s_cbranch_vccz {dn}")
    a("s_sleep 1")
    a(f"s_branch {lp}")
    a.label(dn)
    a("s_mov_b64 exec, -1")
def publish(a, soff, tmp, zero):
    a(f"v_mov_b32 {tmp}, s96")
    a(f"v_mov_b32 {zero}, 0")
    a("s_mov_b64 exec, 1")
    a(f"buffer_store_dword {tmp}, {zero}, s[40:43], {soff} offen sc1")
    a("s_mov_b64 exec, -1")
def get_nonce(a, tmp, addr):
    a(f"v_mov_b32 {addr}, {LMISC}")
    a(f"ds_read_b32 {tmp}, {addr}")
    a("s_waitcnt lgkmcnt(0)")
    a(f"v_readfirstlane_b32 s96, {tmp}")
def call(a, lbl, link="s[58:59]"):
    a(f"s_call_b64 {link}, {lbl}")
def pf_rows(a, vd, ld, s0, s1):
    a(f"""
    v_mul_u32_u24 v{vd}, 52429, v0
    v_lshrrev_b32 v{vd}, 18, v{vd}
    v_mul_u32_u24 v{vd+1}, 5, v{vd}
    v_sub_u32 v{vd+1}, v0, v{vd+1}
    v_mul_u32_u24 v{vd}, {ld}, v{vd}
    v_lshl_add_u32 v{vd}, v{vd+1}, 7, v{vd}
    s_mul_i32 {s0}, s7, {20*ld}
    s_and_b32 s8, s6, 1
    s_mul_i32 s8, s8, 640
    s_add_u32 {s0}, {s0}, s8
    s_add_u32 {s1}, {s0}, {10*ld}
    """)
def pf_x(a, srdi, vaddr, vd):
    a(f"""
    s_lshr_b32 s8, s6, 1
    s_mul_i32 s8, s8, {512*1280}
    s_mul_i32 s9, s7, 20480
    s_add_u32 s8, s8, s9
    s_add_u32 s9, s8, 8192
    buffer_load_dword v{vd}, {vaddr}, s[{srdi}:{srdi+3}], s8 offen
    buffer_load_dword v{vd+1}, {vaddr}, s[{srdi}:{srdi+3}], s9 offen
    s_add_u32 s9, s8, 16384
    s_mov_b32 exec_hi, 0
    buffer_load_dword v{vd+2}, {vaddr}, s[{srdi}:{srdi+3}], s9 offen
    s_mov_b32 exec_hi, -1
    """)

def phi_sub(a):
    X = BFR
    a.label("g_phi")
    a(f"s_mov_b32 s8, {f32(LOG2E)}")
    a(f"s_mov_b32 s9, {f32(1e-6)}")
    for n, r0 in enumerate((0, 4, 16, 20, 8, 12, 24, 28)):
        r0 += BACC
        if n == 4:
            a("s_cmp_eq_u32 s3, 2\ns_cbranch_scc1 g_pack")
        for i in (0, 2): a(f"v_pk_mul_f32 v[{X+i}:{X+i+1}], v[{r0+i}:{r0+i+1}], s[8:9] op_sel_hi:[1,0]")
        for i in range(4): a(f"v_exp_f32_e64 v{X+i}, v{X+i} clamp")
        for i in range(4): a(f"v_max_f32 v{r0+i}, s9, v{r0+i}")
        for i in (0, 2): a(f"v_pk_add_f32 v[{r0+i}:{r0+i+1}], v[{r0+i}:{r0+i+1}], v[{X+i}:{X+i+1}]")
    a.label("g_pack")
    a("s_mov_b64 exec, -1")
    for i in range(16):
        a(f"v_cvt_pk_bf16_f32 v{BACC+i}, v{BACC+2*i}, v{BACC+2*i+1}")
    a("s_setpc_b64 s[58:59]")
def tile_to_lds_sub(a):
    a.label("g_t2l")
    for half in range(2):
        if half == 1:
            a("s_cmp_eq_u32 s3, 2\ns_cbranch_scc1 g_t2l_end")
        for blk in range(2):
            for q in range(2):
                d = BACC + 8 * blk + 4 * half + 2 * q
                a(f"ds_write_b64 v{TL0+half}, v[{d}:{d+1}] offset:{5120*blk + 16*q}")
    a.label("g_t2l_end")
    a("s_setpc_b64 s[58:59]")
def read_qfrag(a, qa, qb):
    a(f"ds_read2_b64 v[{qa}:{qa+3}], v{QF1} offset0:0 offset1:1")
    a(f"ds_read_b64 v[{qb}:{qb+1}], v{QF0} offset:32")
def o_epilogue(a, O, wsoff, eps):
    if eps:
        a(f"v_add_f32 v{O+12}, {f32(1e-6)}, v{O+12}")
    a(f"v_rcp_f32 v{O+12}, v{O+12}")
    a(f"s_add_u32 s8, s81, {wsoff}")
    a(f"s_add_u32 s9, s82, {wsoff}")
    for i in range(0, 12, 2):
        a(f"v_pk_mul_f32 v[{O+i}:{O+i+1}], v[{O+i}:{O+i+1}], v[{O+12}:{O+13}] op_sel_hi:[1,0]")
    for i in range(6):
        a(f"v_cvt_pk_bf16_f32 v{O+i}, v{O+2*i}, v{O+2*i+1}")
    a(f"buffer_store_dwordx4 v[{O}:{O+3}], v{OAD1}, s[40:43], s8 offen sc1")
    a("s_mov_b32 exec_hi, 0")
    a(f"buffer_store_dwordx2 v[{O+4}:{O+5}], v{OAD0}, s[40:43], s9 offen sc1")
    a("s_mov_b32 exec_hi, -1")
def rowmax(a, S, dst, first=True):
    regs = [f"v{S+i}" for i in range(16)]
    if first:
        a(f"v_max3_f32 v{dst}, {regs[0]}, {regs[1]}, {regs[2]}")
        rest = regs[3:]
    else:
        rest = regs
    while len(rest) >= 2:
        a(f"v_max3_f32 v{dst}, v{dst}, {rest[0]}, {rest[1]}")
        rest = rest[2:]
    if rest:
        a(f"v_max_f32 v{dst}, v{dst}, {rest[0]}")
def set_m(a, m, tmp, keep):
    a(f"""
    v_mov_b32 v{tmp}, v{m}
    s_nop 1
    v_permlane32_swap_b32 v{m}, v{tmp}
    s_nop 1
    v_max_f32 v{keep}, v{m}, v{tmp}
    s_mov_b32 exec_lo, 0
    v_sub_f32 v{m}, 0, v{keep}
    v_and_b32 v{tmp}, 0xffff0000, v{m}
    v_sub_f32 v{m}, v{m}, v{tmp}
    v_lshrrev_b32 v{QB}, 16, v{tmp}
    v_and_b32 v{tmp}, 0xffff0000, v{m}
    v_sub_f32 v{m}, v{m}, v{tmp}
    v_or_b32 v{QB}, v{QB}, v{tmp}
    v_lshrrev_b32 v{QB+1}, 16, v{m}
    s_mov_b32 exec_lo, -1
    """)

def precompute(a):
    t = 12
    a(f"""
    v_and_b32 v1, 31, v0
    v_lshrrev_b32 v2, 5, v0
    v_lshrrev_b32 v3, 2, v1
    v_add_u32 v3, 1, v3
    v_and_b32 v3, 2, v3
    v_mul_u32_u24 v3, 6, v3
    v_xor_b32 v3, v1, v3
    v_lshlrev_b32 v{OAD0}, 3, v0
    v_lshlrev_b32 v{OAD1}, 4, v0
    s_and_b32 s38, s3, 1
    s_lshr_b32 s39, s3, 1
    s_mov_b32 s76, 0
    s_mov_b32 s77, 128
    s_cmp_eq_u32 s3, 1
    s_cselect_b32 s76, 32, s76
    s_cselect_b32 s77, 64, s77
    s_cmp_eq_u32 s3, 2
    s_cselect_b32 s76, 96, s76
    s_cselect_b32 s77, 96, s77
    s_sub_u32 s78, s3, 3
    s_lshl_b32 s78, s78, 2
    s_lshr_b32 s78, 0x20431, s78
    s_and_b32 s78, s78, 15
    s_lshl_b32 s8, s78, 6
    s_add_u32 s8, s8, {IMG_KV}
    s_add_u32 s9, s76, {IMG_W}
    s_sub_u32 s64, s77, s76
    s_cmp_lt_u32 s3, 3
    s_cselect_b32 s60, s9, s8
    s_cselect_b32 s64, s64, 32
    s_mov_b32 s61, 320
    s_cselect_b32 s61, 160, s61
    v_bfe_u32 v{t}, v0, 2, 2
    v_lshl_add_u32 v{t+1}, v2, 3, v{t}
    v_mul_u32_u24 v{t+1}, s61, v{t+1}
    v_bfe_u32 v{t+3}, v0, 4, 1
    v_mul_u32_u24 v{t+2}, s64, v{t+3}
    v_and_b32 v{t+6}, 3, v0
    v_lshlrev_b32 v{t+6}, 3, v{t+6}
    v_add3_u32 v{t+1}, v{t+1}, v{t+2}, v{t+6}
    v_add_u32 v{bW}, s60, v{t+1}
    v_bfe_u32 v{t+2}, v0, 1, 3
    v_xor_b32 v{t+2}, v{t+2}, v2
    v_lshlrev_b32 v{t+2}, 4, v{t+2}
    v_lshl_or_b32 v{bX}, v1, 7, v{t+2}
    v_xor_b32 v{bX+1}, 32, v{bX}
    v_xor_b32 v{bX+2}, 64, v{bX}
    v_xor_b32 v{bX+3}, 96, v{bX}
    """)
    pk = pack3(POS)
    a(f"""
    s_mul_i32 s80, s4, {64*2560}
    s_mul_i32 s8, s5, 160
    s_add_u32 s80, s80, s8
    s_add_u32 s80, s80, 1280
    v_mul_u32_u24 v{t+1}, 160, v{t}
    v_add_u32 v{t+1}, v{t+1}, v{t+6}
    s_lshl_b32 s8, s39, 1
    v_add_u32 v{t+2}, s8, v{t+3}
    v_min_u32 v{t+2}, 4, v{t+2}
    v_mad_u32_u24 v{t+2}, v{t}, 5, v{t+2}
    v_mul_u32_u24 v{t+2}, 3, v{t+2}
    s_mov_b32 s8, {pk & 0xffffffff:#x}
    s_mov_b32 s9, {pk >> 32:#x}
    v_lshrrev_b64 v[{t+4}:{t+5}], v{t+2}, s[8:9]
    v_and_b32 v{t+4}, 7, v{t+4}
    v_lshl_add_u32 v{t+1}, v{t+4}, 5, v{t+1}
    s_cmp_ge_u32 s3, 4
    s_cbranch_scc1 PC_tz
    s_lshl_b32 s9, s39, 6
    s_add_u32 s80, s80, s9
    s_mul_i32 s10, s38, {32*2560}
    s_add_u32 s80, s80, s10
    s_mul_i32 s8, s38, 5120
    s_add_u32 s8, s8, {LX}
    v_mul_u32_u24 v{tW1}, 1280, v2
    v_add_u32 v{tW1}, v{tW1}, v{t+1}
    v_mul_u32_u24 v{tW2}, 3200, v2
    v_add_u32 v{tW2}, v{tW2}, v{t+1}
    v_add_u32 v{tW2}, 2560, v{tW2}
    v_add_u32 v{tX1}, s8, v{OAD1}
    v_add_u32 v{tX2}, s8, v{OAD0}
    v_mul_u32_u24 v{tO}, 2560, v1
    v_lshl_add_u32 v{tO}, v2, 4, v{tO}
    s_branch PC_td
    """)
    a.label("PC_tz")
    a(f"""
    s_sub_u32 s8, s3, 4
    s_mul_i32 s10, s8, {16*2560}
    s_add_u32 s80, s80, s10
    s_lshl_b32 s9, s38, 4
    s_lshr_b32 s8, s8, 1
    s_mul_i32 s8, s8, 5120
    s_add_u32 s8, s8, {LX}
    v_lshrrev_b32 v{t}, 4, v0
    v_mul_u32_u24 v{tW1}, 3200, v{t+3}
    v_mul_u32_u24 v{t+2}, 1280, v2
    v_add3_u32 v{tW1}, v{tW1}, v{t+2}, v{t+1}
    v_mul_u32_u24 v{tW2}, 3200, v{t}
    v_add_u32 v{tW2}, v{tW2}, v{t+1}
    v_add_u32 v{tW2}, 2560, v{tW2}
    v_and_b32 v{t+2}, 15, v0
    v_mul_u32_u24 v{tO}, 2560, v{t+2}
    v_lshl_add_u32 v{tO}, v{t}, 3, v{tO}
    v_add_u32 v{t+2}, s9, v{t+2}
    v_lshl_add_u32 v{t+4}, v{t}, 5, v{t+2}
    v_lshlrev_b32 v{tX2}, 3, v{t+4}
    v_add_u32 v{tX2}, s8, v{tX2}
    v_lshl_add_u32 v{t+4}, v2, 5, v{t+2}
    v_lshl_add_u32 v{t+4}, v{t+3}, 6, v{t+4}
    v_lshlrev_b32 v{tX1}, 4, v{t+4}
    v_add_u32 v{tX1}, s8, v{tX1}
    """)
    a.label("PC_td")
    a(f"""
    v_add_u32 v{aKA}, {LKV}, v{OAD1}
    v_lshlrev_b32 v{aKB}, 3, v1
    v_add_u32 v{aKB}, {LKV+1024}, v{aKB}
    v_mul_u32_u24 v{aV0}, 320, v2
    v_lshl_add_u32 v{aV0}, v1, 4, v{aV0}
    v_add_u32 v{aV0}, {LKV+1280}, v{aV0}
    v_add_u32 v{aV1}, 640, v{aV0}
    v_mov_b32 v{AP0}, v3
    s_mov_b32 exec_lo, 0xfff00000
    s_mov_b32 exec_hi, 0xfff00000
    v_mov_b32 v{aV0}, {LKV+2560}
    v_mov_b32 v{aV1}, {LKV+2560}
    v_mov_b32 v{AP0}, 20
    s_mov_b32 exec_lo, 0
    s_mov_b32 exec_hi, -1
    v_mov_b32 v{aKB}, {LKV+2560}
    s_mov_b64 exec, -1
    s_mul_i32 s8, s39, 840
    s_add_u32 s8, s8, {LKVZ}
    v_mul_u32_u24 v{AP0}, 40, v{AP0}
    v_add_u32 v{AP0}, s8, v{AP0}
    v_lshl_add_u32 v{AP1}, v2, 4, v{AP0}
    s_lshl_b32 s10, s4, 3
    s_add_u32 s10, s10, s5
    s_lshl_b32 s10, s10, 1
    s_add_u32 s10, s10, s38
    s_mul_i32 s10, s10, 5120
    s_lshl_b32 s81, s39, 10
    s_add_u32 s81, s81, s10
    s_lshl_b32 s82, s39, 8
    s_add_u32 s82, s82, s10
    s_add_u32 s82, s82, 4096
    s_mul_i32 s8, s38, 5120
    s_mul_i32 s9, s39, 40
    s_add_u32 s8, s8, s9
    s_add_u32 s8, s8, {LQ}
    v_mul_u32_u24 v{t}, 160, v1
    v_add_u32 v{QF0}, s8, v{t}
    v_lshl_add_u32 v{QF1}, v2, 4, v{QF0}
    v_lshl_add_u32 v{t}, v2, 3, v{t}
    v_add_u32 v{t}, {LQ}, v{t}
    v_add_u32 v{TL0}, s76, v{t}
    v_add_u32 v{TL1}, s77, v{t}
    s_add_u32 s9, s3, 1
    s_lshr_b32 s9, s9, 1
    s_add_u32 s9, s9, 2
    s_sub_u32 s10, s3, 5
    s_cmp_ge_u32 s3, 5
    s_cselect_b32 s12, s10, s39
    s_cselect_b32 s13, 0, s9
    s_lshl_b32 s10, s12, 12
    s_lshl_b32 s9, s13, 12
    v_add_u32 v{JA}, s10, v{OAD1}
    v_add_u32 v{JB}, s9, v{OAD1}
    s_lshl_b32 s10, s12, 5
    s_lshl_b32 s9, s13, 5
    s_sub_u32 s9, s9, 80
    v_lshlrev_b32 v{t}, 2, v2
    v_add_u32 v{t}, s10, v{t}
    v_add_u32 v{t+1}, s9, v1
    v_and_b32 v{t+2}, 0xffff, v{t+1}
    v_mul_u32_u24 v{t+2}, 3277, v{t+2}
    v_lshrrev_b32 v{t+2}, 16, v{t+2}
    v_mul_u32_u24 v{t+3}, 80, v{t+1}
    s_cmp_ge_u32 s3, 5
    s_cbranch_scc1 PC_z
    """)
    for z in range(2):
        for q in range(4):
            m = MASKS[q]
            a(f"v_add_u32 v{t+4}, {8*q}, v{t}")
            a(f"v_mul_u32_u24 v{t+5}, 3277, v{t+4}")
            a(f"v_lshrrev_b32 v{t+5}, 16, v{t+5}")
            if z == 0:
                a(f"v_lshl_add_u32 v{PWR+q}, v{t+4}, 2, v{t+3}")
                a(f"v_cmp_eq_u32 s[{m}:{m+1}], v{t+5}, v{t+2}")
            else:
                a(f"v_add_u32 v{PWR+q}, 1, v{t+5}")
                a(f"v_mul_u32_u24 v{PWR+q}, 1600, v{PWR+q}")
                a(f"v_lshl_add_u32 v{PWR+q}, v{t+4}, 2, v{PWR+q}")
                a(f"v_cmp_gt_u32 s[{m}:{m+1}], 4, v{t+5}")
                a(f"s_and_b32 s{m}, s{m}, 1\ns_and_b32 s{m+1}, s{m+1}, 1")
        if z == 0:
            a("s_branch PC_zd")
            a.label("PC_z")
    a.label("PC_zd")
    for i in list(range(V1, V1 + 4)) + list(range(OO, BFR + 24)): a(f"v_mov_b32 v{i}, 0")

def gen(a):
    K = NAME + "_kernel"
    kernel_begin(a, K)
    if STAMP:
        a("s_memtime s[84:85]\ns_memrealtime s[86:87]")
    a(f"""
    s_cmp_ge_u32 s2, 256
    s_cbranch_scc1 L_end
    s_load_dwordx16 s[16:31], s[0:1], 0
    s_load_dwordx4 s[32:35], s[0:1], 64
    s_load_dwordx2 s[36:37], s[0:1], 80
    v_lshrrev_b32 v1, 6, v0
    v_and_b32 v0, 63, v0
    v_readfirstlane_b32 s3, v1
    s_and_b32 s6, s2, 7
    s_lshr_b32 s7, s2, 3
    s_lshr_b32 s4, s6, 1
    s_lshl_b32 s4, s4, 3
    s_lshr_b32 s8, s7, 2
    s_add_u32 s4, s4, s8
    s_and_b32 s5, s6, 1
    s_lshl_b32 s5, s5, 2
    s_and_b32 s8, s7, 3
    s_add_u32 s5, s5, s8
    s_cmp_ge_u32 s3, 8
    s_cbranch_scc1 L_loader
    s_cmp_lg_u32 s3, 4
    s_cbranch_scc1 C_pre
    s_getpc_b64 s[44:45]
    """)
    a.label("L_pc")
    a(f"s_sub_u32 s44, s44, L_pc-{K}\ns_subb_u32 s45, s45, 0")
    a(f"s_mov_b32 s46, L_codeend-{K}\ns_mov_b32 s47, 0x20000")
    a("v_lshlrev_b32 v4, 7, v0\ns_mov_b32 s8, 0x2000\ns_mov_b32 s9, 0x4000")
    a("buffer_load_dword v5, v4, s[44:47], 0 offen\nbuffer_load_dword v6, v4, s[44:47], s8 offen\nbuffer_load_dword v7, v4, s[44:47], s9 offen")
    a("s_cmp_ge_u32 s2, 8\ns_cbranch_scc1 C_pre")
    a("s_memrealtime s[8:9]\ns_waitcnt lgkmcnt(0)\ns_or_b32 s8, s8, 1")
    srd(a, 44, 34, 256)
    a("v_mov_b32 v8, s8\nv_mov_b32 v9, 0\nv_mov_b32 v10, 0\ns_mov_b64 exec, 1")
    a("buffer_atomic_cmpswap v[8:9], v10, s[44:47], 0 offen sc1")
    a("s_mov_b64 exec, -1")
    a.label("C_pre")
    precompute(a)
    a("s_waitcnt lgkmcnt(0)")
    srd(a, 40, 36, WS_SIZE)
    a("s_cmp_lt_u32 s3, 3\ns_cbranch_scc1 A_q")
    a("s_cmp_eq_u32 s3, 5\ns_cbranch_scc1 A_kvpoll")
    a("s_cmp_lt_u32 s3, 6\ns_cbranch_scc1 A_bars")
    srd(a, 44, 34, 256)
    a(f"""
    v_mov_b32 v10, 0
    v_and_b32 v20, 15, v0
    v_lshrrev_b32 v21, 4, v0
    v_xor_b32 v22, v20, v21
    v_lshlrev_b32 v22, 4, v22
    v_lshl_add_u32 v22, v20, 8, v22
    v_add_u32 v22, {LMX}, v22
    v_xor_b32 v23, 64, v22
    v_xor_b32 v24, 128, v22
    v_xor_b32 v25, 192, v22
    v_bfe_u32 v26, v0, 2, 2
    v_lshl_add_u32 v26, v21, 3, v26
    v_mul_u32_u24 v26, 40, v26
    v_and_b32 v27, 3, v0
    v_lshl_add_u32 v26, v27, 3, v26
    s_lshl_b32 s8, s38, 5
    s_add_u32 s8, s8, {LWKV}
    v_add_u32 v26, s8, v26
    s_lshl_b32 s12, s4, 1
    s_lshr_b32 s8, s5, 2
    s_add_u32 s12, s12, s8
    s_mul_i32 s12, s12, {TILE}
    s_add_u32 s12, s12, {WS_KV}
    s_bfe_u32 s13, s5, 0x10001
    s_lshl_b32 s55, s4, 4
    s_add_u32 s55, s55, s5
    s_lshl_b32 s55, s55, 1
    s_add_u32 s55, s55, s38
    s_lshl_b32 s55, s55, 2
    s_add_u32 s55, s55, {FL_KV}
    v_and_b32 v27, 1, v21
    s_mov_b32 s56, 0
    s_mov_b64 s[48:49], -1
    """)
    for i in range(12, 16): a(f"v_mov_b32 v{i}, 0")
    MF = [BACC + 8 * i for i in range(4)]
    def mini(lbl, orient):
        def mm(st):
            x, w, ac = v(MF[st], 4), v(MF[st] + 4, 4), v(12, 4)
            a(f"v_mfma_f32_16x16x32_bf16 {ac}, {w}, {x}, {ac}" if orient == "R" else f"v_mfma_f32_16x16x32_bf16 {ac}, {x}, {w}, {ac}")
        a("s_barrier")
        a("buffer_load_dword v11, v10, s[44:47], 0 offen sc1")
        a.label(lbl)
        for st in range(4):
            f = MF[st]
            a(f"ds_read_b128 v[{f}:{f+3}], v{22+st}")
            for hf in range(2):
                a(f"ds_read_b64_tr_b16 v[{f+4+2*hf}:{f+5+2*hf}], v26 offset:{(32*st+4*hf)*40}")
            a(f"v_add_u32 v{22+st}, 4096, v{22+st}")
            a("s_waitcnt lgkmcnt(9)")
            mm((st + 1) % 4)
        a("v_add_u32 v26, 5120, v26")
        a(f"s_add_u32 s56, s56, 1\ns_cmp_lt_u32 s56, 5\ns_cbranch_scc1 {lbl}")
        for st, w in ((1, 6), (2, 3), (3, 0)):
            a(f"s_waitcnt lgkmcnt({w})"); mm(st)
    a("s_bitcmp1_b32 s5, 0")
    a("s_cbranch_scc1 M_v")
    a(f"""
    s_lshl_b32 s8, s13, 4
    v_add_u32 v20, s8, v20
    v_lshlrev_b32 v28, 4, v20
    v_lshl_add_u32 v28, v2, 9, v28
    v_lshl_add_u32 v28, v27, 3, v28
    s_cmp_eq_u32 s3, 6
    s_cbranch_scc1 M_k0
    v_lshlrev_b32 v28, 3, v20
    v_add_u32 v28, 1024, v28
    s_mov_b32 exec_lo, 0xffff0000
    v_lshlrev_b32 v28, 3, v1
    v_add_u32 v28, {2560-128}, v28
    s_mov_b32 exec_lo, -1
    s_mov_b32 s49, 0
    """)
    a.label("M_k0")
    mini("M_kl", "R")
    a("s_nop 7")
    a("v_cvt_pk_bf16_f32 v12, v12, v13\nv_cvt_pk_bf16_f32 v13, v14, v15")
    a("s_cmp_eq_u32 s3, 6\ns_cbranch_scc1 M_st")
    a("s_mov_b32 exec_lo, 0xffff0000")
    a("v_mov_b32 v12, 0x3f803f80\nv_mov_b32 v13, 0x3f803f80")
    a("s_branch M_st")
    a.label("M_v")
    a(f"""
    s_mul_i32 s8, s13, 640
    s_add_u32 s12, s12, s8
    s_lshl_b32 s8, s38, 8
    s_add_u32 s12, s12, s8
    s_add_u32 s12, s12, 1280
    v_lshrrev_b32 v28, 2, v20
    v_add_u32 v28, 1, v28
    v_and_b32 v28, 2, v28
    v_mul_u32_u24 v28, 6, v28
    v_xor_b32 v28, v20, v28
    v_mul_u32_u24 v29, 320, v27
    v_lshl_add_u32 v29, v2, 3, v29
    v_lshl_add_u32 v28, v28, 4, v29
    s_cmp_eq_u32 s3, 6
    s_cselect_b32 s48, -1, 0x000f000f
    s_mov_b32 s49, s48
    """)
    mini("M_vl", "C")
    a("s_nop 7")
    a("v_cvt_pk_bf16_f32 v12, v12, v13\nv_cvt_pk_bf16_f32 v13, v14, v15")
    a.label("M_st")
    a("s_mov_b64 exec, s[48:49]")
    a("buffer_store_dwordx2 v[12:13], v28, s[40:43], s12 offen sc1")
    a("s_mov_b64 exec, -1")
    gs(a, 0, "v30", "v31")
    a("s_barrier")
    for i in range(32): a(f"v_mov_b32 v{BACC+i}, 0")
    a("s_barrier")
    a("s_mov_b32 s9, 0")
    a.label("A_np")
    a("s_add_u32 s9, s9, 1")
    a("s_waitcnt vmcnt(0)")
    a("v_cmp_eq_u32 vcc, 0, v11")
    a(f"s_cmp_gt_u32 s9, {SPIN_MAX}\ns_cbranch_scc1 A_nd\ns_cbranch_vccz A_nd\ns_sleep 1")
    a("buffer_load_dword v11, v10, s[44:47], 0 offen sc1")
    a("s_branch A_np")
    a.label("A_nd")
    a("s_mov_b64 exec, 1")
    a("buffer_store_dword v11, v10, s[40:43], s55 offen sc1")
    a("s_mov_b64 exec, -1")
    a(f"v_mov_b32 v5, {LMISC}\nds_write_b32 v5, v11\ns_waitcnt lgkmcnt(0)")
    gs(a, 1, "v30", "v31")
    a("s_branch A_bars8")
    a.label("A_kvpoll")
    a("v_lshrrev_b32 v20, 1, v0\nv_lshlrev_b32 v20, 7, v20\nv_and_b32 v21, 1, v0\nv_lshl_add_u32 v20, v21, 4, v20")
    a(f"v_mov_b32 v18, v{OAD1}")
    a("s_and_b32 s60, s7, 15")
    a(f"s_mov_b32 s61, {LKV}\ns_mov_b32 s12, {FL_KV}\ns_mov_b32 s13, 2\ns_mov_b32 s9, 0")
    for i in range(9): a("s_barrier")
    get_nonce(a, "v22", "v23")
    a.label("A_kp")
    a("buffer_load_dwordx4 v[24:27], v20, s[40:43], s12 offen sc1")
    a("buffer_load_dwordx4 v[28:31], v20, s[40:43], s12 offen offset:32 sc1")
    a("s_cmp_eq_u32 s13, 0\ns_cbranch_scc1 A_kq")
    a("s_barrier\ns_barrier\ns_sub_u32 s13, s13, 2")
    a.label("A_kq")
    a("s_sleep 1")
    a("s_add_u32 s9, s9, 1")
    a("s_waitcnt vmcnt(0)")
    for i in range(8): a(f"v_xor_b32 v{24+i}, s96, v{24+i}")
    a("v_or3_b32 v24, v24, v25, v26\nv_or3_b32 v27, v27, v28, v29\nv_or3_b32 v24, v24, v30, v31\nv_or_b32 v24, v24, v27\nv_cmp_ne_u32 vcc, 0, v24")
    a(f"s_cmp_gt_u32 s9, {SPIN_MAX}\ns_cbranch_scc1 A_kd\ns_cbranch_vccnz A_kp")
    a.label("A_kd")
    gs(a, 4, "v30", "v31")
    for i in range(3): call(a, "L_issueKV", "s[62:63]")
    a.label("A_kr")
    a("s_cmp_eq_u32 s13, 0\ns_cbranch_scc1 A_ke\ns_barrier\ns_sub_u32 s13, s13, 1\ns_branch A_kr")
    a.label("A_ke")
    a("s_waitcnt vmcnt(22)")
    a("s_branch A_done")
    a.label("A_bars")
    for i in range(3): a("s_barrier")
    a.label("A_bars8")
    for i in range(8): a("s_barrier")
    a("s_waitcnt vmcnt(0)")
    a("s_branch A_done")
    a.label("A_q")
    def ard(st, i):
        f = AFR[st]
        if i < 2: a(f"ds_read_b64_tr_b16 v[{f+2*i}:{f+2*i+1}], v{bW} offset:{(16*st+4*i)*160}")
        else: a(f"ds_read_b128 v[{f+4*(i-1)}:{f+4*(i-1)+3}], v{bX+st} offset:{4096*(i-2)}")
    def amf(st, blk):
        f = AFR[st]; ac = v(BACC + 16 * blk, 16)
        a(f"v_mfma_f32_32x32x16_bf16 {ac}, v[{f}:{f+3}], v[{f+4+4*blk}:{f+7+4*blk}], {ac}")
    a(f"s_mov_b32 s56, 0\ns_mov_b32 s70, {HS}\ns_mov_b32 s74, {-5*HS}\ns_mov_b32 s75, {-3*HS}")
    a("s_barrier\ns_barrier")
    for st in (0, 1, 2):
        for i in range(4): ard(st, i)
    a("s_branch A_mid")
    a(".p2align 3")
    a.label("A_loop")
    a("s_waitcnt lgkmcnt(0)\ns_barrier")
    seq = [(st, i) for st in (0, 1, 2) for i in range(4)]
    for n, (st, blk) in enumerate(((2, 0), (2, 1), (3, 0), (3, 1))):
        amf(st, blk)
        for x in seq[3 * n:3 * n + 3]: ard(*x)
    a.label("A_mid")
    a("s_add_u32 s56, s56, 1\ns_cmp_eq_u32 s56, 6\ns_cselect_b32 s8, s74, s70")
    a("s_waitcnt lgkmcnt(8)")
    amf(0, 0); ard(3, 0); ard(3, 1)
    a("s_cmp_lt_u32 s56, 10\ns_cselect_b32 s8, s8, s75")
    amf(0, 1); ard(3, 2); ard(3, 3)
    a("s_waitcnt lgkmcnt(8)")
    a(f"v_add_u32 v{bW}, s8, v{bW}")
    amf(1, 0)
    for j in range(4): a(f"v_add_u32 v{bX+j}, s8, v{bX+j}")
    amf(1, 1)
    a("s_cbranch_scc1 A_loop")
    a("s_waitcnt lgkmcnt(4)")
    amf(2, 0); amf(2, 1)
    a("s_waitcnt lgkmcnt(0)")
    amf(3, 0); amf(3, 1)
    a(f"s_mov_b32 s8, {f32(CSCALE)}")
    a("s_nop 9")
    for i in range(0, 32, 2):
        a(f"v_pk_mul_f32 v[{BACC+i}:{BACC+i+1}], v[{BACC+i}:{BACC+i+1}], s[8:9] op_sel_hi:[1,0]")
    call(a, "g_pack")
    call(a, "g_t2l")
    for i in range(31, -1, -1): a(f"v_mov_b32 v{BACC+i}, 0")
    a.label("A_done")
    def rdKA(t): a(f"ds_read_b128 v[{KA}:{KA+3}], v{aKA} offset:{t*TILE}")
    def rdKB(t): a(f"ds_read_b64 v[{KB}:{KB+1}], v{aKB} offset:{t*TILE}")
    def rdV0(t): a(f"ds_read_b128 v[{V0}:{V0+3}], v{aV0} offset:{t*TILE}")
    def rdV1(t): a(f"ds_read_b128 v[{V1}:{V1+3}], v{aV1} offset:{t*TILE}")
    def qka(S): a(f"v_mfma_f32_32x32x16_bf16 v[{S}:{S+15}], v[{KA}:{KA+3}], v[{QA}:{QA+3}], 0")
    def qkb(S): a(f"v_mfma_f32_32x32x8_bf16 v[{S}:{S+15}], v[{KB}:{KB+1}], v[{QB}:{QB+1}], v[{S}:{S+15}]")
    def pv0(): a(f"v_mfma_f32_32x32x16_bf16 v[{OO}:{OO+15}], v[{V0}:{V0+3}], v[{PP}:{PP+3}], v[{OO}:{OO+15}]")
    def pv1(): a(f"v_mfma_f32_32x32x16_bf16 v[{OO}:{OO+15}], v[{V1}:{V1+3}], v[{PP+4}:{PP+7}], v[{OO}:{OO+15}]")
    def E(S, lo, hi, w=None):
        for i in range(lo, hi):
            if w is not None and i == hi - 1:
                a(w if isinstance(w, str) else f"s_waitcnt lgkmcnt({w})"); a(f"v_exp_f32_e64 v{S+i}, v{S+i}")
            else: a(f"v_exp_f32 v{S+i}, v{S+i}")
    def c1(k, S): a(f"v_cvt_pk_bf16_f32 v{PP+k}, v{S+2*k}, v{S+2*k+1}")
    def C(S, g): c1(2 * g, S); c1(2 * g + 1, S)
    for i in range(4): a(f"v_mov_b32 v{PP+4+i}, 0")
    a("s_mov_b32 s57, 0\ns_mov_b64 vcc, 0")
    a("s_waitcnt lgkmcnt(0)\ns_barrier")
    a(f"v_mov_b32 v{PP}, {LMISC}\nds_read_b32 v{PP+3}, v{PP}")
    read_qfrag(a, QA, QB)
    rdKA(0); rdKB(0); rdV0(0)
    a(f"s_mov_b32 s8, {LPQ - LQ}")
    for r in (QF0, QF1, TL0, TL1): a(f"v_add_u32 v{r}, s8, v{r}")
    a("s_mov_b32 exec_lo, 0")
    a("s_waitcnt lgkmcnt(1)")
    a(f"v_mov_b32 v{QB}, 0\nv_mov_b32 v{QB+1}, 0")
    a("s_mov_b32 exec_lo, -1")
    qka(S0); qkb(S0)
    rdKA(1); rdKB(1)
    a(f"v_readfirstlane_b32 s96, v{PP+3}")
    a(f"s_lshl_b32 s55, s4, 3\ns_add_u32 s55, s55, s5\ns_lshl_b32 s55, s55, 5\ns_add_u32 s55, s55, s3\ns_lshl_b32 s55, s55, 2\ns_add_u32 s55, s55, {FL_OA}")
    a("s_nop 2")
    rowmax(a, S0, PP)
    set_m(a, PP, PP + 1, PP + 2)
    for i in range(16): a(f"v_sub_f32 v{S0+i}, v{S0+i}, v{PP+2}")
    a("s_waitcnt lgkmcnt(0)")
    a("s_cmp_eq_u32 s57, 0")
    a(".p2align 6")
    a.label("AT_loop")
    for n in range(16):
        Sc, Sn = (S0, S1) if n % 2 == 0 else (S1, S0)
        if n % 4 == 2: a("s_waitcnt vmcnt(0)\ns_barrier")
        if n == 4:
            a("s_cbranch_vccnz AT_apply\ns_nop 0")
            a.label("AT_n4")
        if n == 12: a("s_cbranch_scc1 FU_start\ns_nop 0")
        qka(Sn); rdKA((n + 2) % 16); E(Sc, 0, 4, 3)
        pv1(); rdV1(n); C(Sc, 0); E(Sc, 4, 8, 3)
        qkb(Sn); rdKB((n + 2) % 16); C(Sc, 1); E(Sc, 8, 12, 3)
        pv0(); rdV0((n + 1) % 16); C(Sc, 2); E(Sc, 12, 16, 3); C(Sc, 3)
    a("s_mov_b64 vcc, -1")
    a("s_add_u32 s57, s57, 1\ns_cmp_ge_u32 s57, 2\ns_cbranch_scc0 AT_loop")
    a("s_waitcnt lgkmcnt(0)")
    pv1()
    srd(a, 44, 32, 2048 * 2560)
    a("s_mov_b32 s83, 0\ns_mov_b32 s71, 0\ns_mov_b32 s72, 20480\ns_mov_b32 s73, -40960\ns_mov_b32 s74, 25600\ns_mov_b32 s75, -102400")
    a("s_nop 2")
    a(f"v_cmp_nge_f32 vcc, {f32(2.0**40)}, v{OO+12}")
    a("s_nop 1")
    a("s_cbranch_vccnz AT_fallback")
    a.label("AT_ok")
    o_epilogue(a, OO, WS_OA, False)
    a("s_cmp_ge_u32 s3, 4\ns_cbranch_scc1 TLz_job")
    F = [20 + 8 * i for i in range(10)]
    LA = 4
    def tl_pub(pfx):
        a(f"s_cmp_eq_u32 s55, 0\ns_cbranch_scc1 {pfx}_np")
        a("s_waitcnt vmcnt(0)")
        publish(a, "s55", "v100", "v101")
        a("s_mov_b32 s55, 0")
        a.label(pfx + "_np")
    def tl_head():
        tl_pub("TLm"); a("s_waitcnt lgkmcnt(0)\ns_barrier")
    def tl_adv():
        a("s_add_u32 s71, s71, 1\ns_cmp_eq_u32 s71, 3\ns_cselect_b32 s8, s73, s72\ns_cselect_b32 s71, 0, s71")
        a(f"v_add_u32 v{tW1}, s74, v{tW1}\nv_add_u32 v{tW2}, s74, v{tW2}\nv_add_u32 v{tX1}, s8, v{tX1}\nv_add_u32 v{tX2}, s8, v{tX2}")
        a("s_add_u32 s56, s56, 1\ns_cmp_lt_u32 s56, 4")
    def mrd(st):
        f = F[st]; t, H = divmod(st, 5)
        if H < 4:
            for hf in range(2): a(f"ds_read_b64_tr_b16 v[{f+2*hf}:{f+2*hf+1}], v{tW1} offset:{(80*t+20*H+4*hf)*160}")
            a(f"ds_read_b128 v[{f+4}:{f+7}], v{tX1} offset:{t*10240+H*1024}")
        else:
            for hf in range(2): a(f"ds_read_b64_tr_b16 v[{f+2*hf}:{f+2*hf+1}], v{tW2} offset:{(80*t+40*hf)*160}")
            for hf in range(2): a(f"ds_read_b64 v[{f+4+2*hf}:{f+5+2*hf}], v{tX2} offset:{t*10240+4096+512*hf}")
    def mmf(st): a(f"v_mfma_f32_32x32x16_bf16 v[4:19], v[{F[st]}:{F[st]+3}], v[{F[st]+4}:{F[st]+7}], v[4:19]")
    nrd = lambda st: 4 if st % 5 == 4 else 3
    a.label("TLm_job")
    for i in range(4, 20): a(f"v_mov_b32 v{i}, 0")
    a("s_mov_b32 s56, 0")
    a("s_barrier")
    for st in range(LA): mrd(st)
    a("s_branch TLm_mid")
    a(".p2align 3")
    a.label("TLm_loop")
    tl_head()
    for st in range(LA):
        mmf(10 - LA + st); mrd(st)
    a.label("TLm_mid")
    for st in range(LA, 10):
        mrd(st)
        a(f"s_waitcnt lgkmcnt({sum(nrd(x) for x in range(st-LA+1, st+1))})")
        mmf(st - LA)
    tl_adv()
    a("s_cbranch_scc1 TLm_loop")
    for st in range(10 - LA, 10):
        a(f"s_waitcnt lgkmcnt({sum(nrd(x) for x in range(st+1, 10))})")
        mmf(st)
    a(f"v_add_u32 v{tW1}, s75, v{tW1}\nv_add_u32 v{tW2}, s75, v{tW2}")
    a("s_nop 9")
    for i in range(8): a(f"v_cvt_pk_bf16_f32 v{100+i}, v{4+2*i}, v{5+2*i}")
    a("s_nop 1")
    for half in range(2):
        d = 100 + 4 * half
        a(f"v_permlane32_swap_b32 v{d}, v{d+2}\nv_permlane32_swap_b32 v{d+1}, v{d+3}")
    a("s_cmp_eq_u32 s83, 1\ns_cbranch_scc1 TLm_last")
    for half in range(2):
        d = 100 + 4 * half
        a(f"buffer_store_dwordx4 v[{d}:{d+3}], v{tO}, s[44:47], s80 offen offset:{32*half} {ONT3}")
    a("s_sub_u32 s80, s80, 1280\ns_mov_b32 s83, 1\ns_branch TLm_job")
    a.label("TLm_last")
    for half in range(2):
        d = 100 + 4 * half
        a(f"buffer_store_dwordx4 v[{d}:{d+3}], v{tO}, s[44:47], s80 offen offset:{32*half} {ONT}")
    stamp_end(a)
    a("s_endpgm")
    a.label("TLz_job")
    for i in range(4, 8): a(f"v_mov_b32 v{i}, 0")
    a("s_mov_b32 s56, 0")
    a("s_branch TLz_np")
    a.label("TLz_loop")
    tl_pub("TLz")
    a("s_barrier")
    for j in range(4):
        f = F[j]; t = j >> 1
        for hf in range(2): a(f"ds_read_b64_tr_b16 v[{f+2*hf}:{f+2*hf+1}], v{tW1} offset:{(80*t+40*(j&1)+4*hf)*160}")
        a(f"ds_read_b128 v[{f+4}:{f+7}], v{tX1} offset:{t*10240+(j&1)*2048}")
    def zmf(j): a(f"v_mfma_f32_16x16x32_bf16 v[4:7], v[{F[j]}:{F[j]+3}], v[{F[j]+4}:{F[j]+7}], v[4:7]")
    a("s_waitcnt lgkmcnt(9)"); zmf(0)
    f = F[4]
    for t in range(2): a(f"ds_read_b64_tr_b16 v[{f+2*t}:{f+2*t+1}], v{tW2} offset:{12800*t}")
    for t in range(2): a(f"ds_read_b64 v[{f+4+2*t}:{f+5+2*t}], v{tX2} offset:{4096+10240*t}")
    a("s_waitcnt lgkmcnt(10)"); zmf(1)
    a("s_waitcnt lgkmcnt(7)"); zmf(2)
    a("s_waitcnt lgkmcnt(4)"); zmf(3)
    a("s_waitcnt lgkmcnt(0)"); zmf(4)
    tl_adv()
    a("s_cbranch_scc1 TLz_loop")
    a(f"v_add_u32 v{tW1}, s75, v{tW1}\nv_add_u32 v{tW2}, s75, v{tW2}")
    a("v_cvt_pk_bf16_f32 v100, v4, v5\nv_cvt_pk_bf16_f32 v101, v6, v7")
    a("s_cmp_eq_u32 s83, 1\ns_cbranch_scc1 TLz_last")
    a(f"buffer_store_dwordx2 v[100:101], v{tO}, s[44:47], s80 offen offset:128 {ONT3}")
    a("s_sub_u32 s80, s80, 1280\ns_mov_b32 s83, 1\ns_branch TLz_job")
    a.label("TLz_last")
    a(f"buffer_store_dwordx2 v[100:101], v{tO}, s[44:47], s80 offen offset:128 {ONT}")
    stamp_end(a)
    a("s_endpgm")
    a.label("FU_start")
    a(f"s_mov_b32 s8, {3*CH}")
    for r in (aKA, aKB, aV0, aV1): a(f"v_add_u32 v{r}, s8, v{r}")
    a(f"s_mov_b32 s56, 0\ns_mov_b32 s68, 0\ns_mov_b32 s70, {SLOT}\ns_mov_b32 s74, {-2*SLOT}\ns_mov_b32 s72, {CH}\ns_mov_b32 s73, {-3*CH}")
    a("s_waitcnt lgkmcnt(0)")
    a("s_cmp_ge_u32 s3, 3\ns_cbranch_scc1 FU_C")
    def G(orient, s_, blk):
        f = BFR + 12 * s_; w, x, ac = v(f, 4), v(f + 4 + 4 * blk, 4), v(BACC + 16 * blk, 16)
        a(f"v_mfma_f32_32x32x16_bf16 {ac}, {w}, {x}, {ac}" if orient == "R" else f"v_mfma_f32_32x32x16_bf16 {ac}, {x}, {w}, {ac}")
    def GR(orient, s_, st):
        f = BFR + 12 * s_; stride = 160 if orient == "R" else 320
        for hf in range(2): a(f"ds_read_b64_tr_b16 v[{f+2*hf}:{f+2*hf+1}], v{bW} offset:{(16*st+4*hf)*stride}")
        for blk in range(2): a(f"ds_read_b128 v[{f+4+4*blk}:{f+7+4*blk}], v{bX+st} offset:{4096*blk}")
    for orient in ("R", "C"):
        a(".p2align 3")
        a.label("FU_" + orient)
        a("s_and_b32 s9, s56, 3\ns_cselect_b32 s9, s72, s73")
        for n in range(4):
            Sc, Sn = (S0, S1) if n % 2 == 0 else (S1, S0)
            def slot(i, w=None):
                c1((i - 1) % 8, Sn if i == 0 else Sc)
                E(Sc, 2 * i, 2 * i + 2, w)
            def va(*regs, sg):
                for r in regs: a(f"v_add_u32 v{r}, {sg}, v{r}")
            G(orient, 0, 0)
            if n == 2: va(aKA, aKB, sg="s9")
            slot(0, 11)
            qka(Sn); rdKA((n + 2) % 4); slot(1)
            if n % 2 == 0:
                a("s_waitcnt lgkmcnt(1)\ns_barrier")
                a("s_add_u32 s68, s68, 1\ns_cmp_eq_u32 s68, 3\ns_cselect_b32 s8, s74, s70\ns_cselect_b32 s68, 0, s68")
            G(orient, 0, 1); GR(orient, 0, (2 * n) % 4); slot(2, 11)
            pv1(); rdV1(n); slot(3, 11)
            qkb(Sn); rdKB((n + 2) % 4); slot(4, 7)
            G(orient, 1, 0)
            if n == 3: va(aV0, aV1, sg="s9")
            slot(5)
            pv0(); rdV0((n + 1) % 4); slot(6)
            G(orient, 1, 1); GR(orient, 1, (2 * n + 1) % 4)
            if n % 2 == 0: va(bX, bX + 1, sg="s8")
            else:
                va(bX + 2, bX + 3, bW, sg="s8"); a("s_nop 0")
            slot(7, 7)
        a(f"s_add_u32 s56, s56, 1\ns_cmp_lt_u32 s56, 5\ns_cbranch_scc1 FU_{orient}")
        c1(7, S1)
        G(orient, 0, 0); G(orient, 0, 1)
        a("s_waitcnt lgkmcnt(0)")
        G(orient, 1, 0); G(orient, 1, 1)
        if orient == "R":
            a("s_nop 8")
            call(a, "g_phi")
            call(a, "g_t2l")
            a("s_branch B_jobs")
    a("s_lshl_b32 s8, s78, 12")
    a(f"v_add_u32 v{TL0}, s8, v{OAD1}")
    a("s_nop 6")
    a("s_cmp_ge_u32 s78, 3")
    a("s_cbranch_scc1 B_nophi")
    a("s_cmp_eq_u32 s78, 2")
    a("s_cselect_b32 s8, 0xffff, -1")
    a("s_mov_b32 exec_lo, s8\ns_mov_b32 exec_hi, s8")
    call(a, "g_phi")
    a("s_branch B_wr")
    a.label("B_nophi")
    call(a, "g_pack")
    a.label("B_wr")
    for ks in range(4):
        d = BACC + 4 * ks
        a(f"ds_write_b128 v{TL0}, v[{d}:{d+3}] offset:{LFR+1024*ks}")
    a.label("B_jobs")
    JAF, JBF, JD = BACC, BACC + 16, BFR
    a("s_cmp_lt_u32 s3, 5\ns_cbranch_scc1 B_noz")
    for i in range(16): a(f"v_mov_b32 v{JBF+i}, 0x3f803f80")
    a.label("B_noz")
    a("s_waitcnt lgkmcnt(0)\ns_barrier")
    for ks in range(4): a(f"ds_read_b128 v[{JAF+4*ks}:{JAF+4*ks+3}], v{JA} offset:{LFR+1024*ks}")
    a("s_cbranch_scc0 B_nob")
    for ks in range(4): a(f"ds_read_b128 v[{JBF+4*ks}:{JBF+4*ks+3}], v{JB} offset:{LFR+1024*ks}")
    a.label("B_nob")
    read_qfrag(a, PQA, PQB)
    a("s_waitcnt lgkmcnt(2)")
    for ks in range(4):
        c = "0" if ks == 0 else v(JD, 16)
        a(f"v_mfma_f32_32x32x16_bf16 {v(JD,16)}, v[{JAF+4*ks}:{JAF+4*ks+3}], v[{JBF+4*ks}:{JBF+4*ks+3}], {c}")
    a("s_mov_b32 exec_lo, 0")
    a("s_waitcnt lgkmcnt(0)")
    a(f"v_mov_b32 v{PQB}, 0\nv_mov_b32 v{PQB+1}, 0")
    a("s_nop 7")
    for q in range(4):
        a(f"s_mov_b64 exec, s[{MASKS[q]}:{MASKS[q]+1}]")
        a(f"ds_write_b128 v{PWR+q}, v[{JD+4*q}:{JD+4*q+3}] offset:{LPART}")
    a("s_mov_b64 exec, -1")
    a("s_waitcnt lgkmcnt(0)\ns_barrier")
    a("s_cmp_lg_u32 s57, 0")
    a("s_branch AT_loop")
    a.label("AT_apply")
    AP = BACC
    a(f"""
    ds_read2_b64 v[100:103], v{AP1} offset0:0 offset1:1
    ds_read_b64 v[104:105], v{AP0} offset:32
    s_waitcnt lgkmcnt(0)
    v_mfma_f32_32x32x16_bf16 v[{AP}:{AP+15}], v[100:103], v[{PQA}:{PQA+3}], 0
    v_mfma_f32_32x32x8_bf16 v[{AP}:{AP+15}], v[104:105], v[{PQB}:{PQB+1}], v[{AP}:{AP+15}]
    s_nop 11
    """)
    o_epilogue(a, AP, WS_OB, True)
    a("s_cmp_eq_u32 s57, 0")
    a("s_branch AT_n4")
    a.label("AT_fallback")
    FM = BACC
    a("s_mov_b32 exec_lo, 0")
    a(f"v_mov_b32 v{QB}, 0\nv_mov_b32 v{QB+1}, 0")
    a("s_mov_b32 exec_lo, -1")
    a(f"v_mov_b32 v{FM}, 0xff800000")
    a(f"s_mov_b32 s70, {WS_KV - LKV}")
    a.label("AT_fb1")
    a(f"buffer_load_dwordx4 v[{KA}:{KA+3}], v{aKA}, s[40:43], s70 offen sc1")
    a(f"buffer_load_dwordx2 v[{KB}:{KB+1}], v{aKB}, s[40:43], s70 offen sc1")
    a("s_waitcnt vmcnt(0)")
    qka(S0); qkb(S0)
    a("s_nop 15")
    rowmax(a, S0, FM, first=False)
    a(f"s_add_u32 s70, s70, {TILE}\ns_cmp_lt_u32 s70, {WS_KV-LKV+64*TILE}\ns_cbranch_scc1 AT_fb1")
    set_m(a, FM, FM + 1, FM + 2)
    for i in range(16): a(f"v_mov_b32 v{OO+i}, 0")
    a(f"s_mov_b32 s70, {WS_KV - LKV}")
    a.label("AT_fb2")
    a(f"buffer_load_dwordx4 v[{KA}:{KA+3}], v{aKA}, s[40:43], s70 offen sc1")
    a(f"buffer_load_dwordx2 v[{KB}:{KB+1}], v{aKB}, s[40:43], s70 offen sc1")
    a(f"buffer_load_dwordx4 v[{V0}:{V0+3}], v{aV0}, s[40:43], s70 offen sc1")
    a(f"buffer_load_dwordx4 v[{V1}:{V1+3}], v{aV1}, s[40:43], s70 offen sc1")
    a("s_waitcnt vmcnt(0)")
    qka(S0); qkb(S0)
    a("s_nop 15")
    E(S0, 0, 16)
    a("s_nop 0")
    for g in range(4): C(S0, g)
    a("s_nop 1")
    pv0(); pv1()
    a(f"s_add_u32 s70, s70, {TILE}\ns_cmp_lt_u32 s70, {WS_KV-LKV+64*TILE}\ns_cbranch_scc1 AT_fb2")
    a("s_nop 15")
    a("s_branch AT_ok")

    LK = "s[62:63]"
    A_, B_, KV_, P_, WO_ = "L_issueA", "L_issueB", "L_issueKV", "L_issueP", "L_issueWo"
    a.label("L_loader")
    a("s_setprio 2")
    a("s_sub_u32 s10, s3, 8")
    a("s_mul_i32 s13, s4, 81920")
    a("v_lshlrev_b32 v18, 4, v0")
    a("s_cmp_eq_u32 s10, 1\ns_cbranch_scc1 L_mw")
    a("""
    v_lshrrev_b32 v20, 4, v0
    v_xor_b32 v21, v20, v0
    v_and_b32 v21, 15, v21
    v_lshlrev_b32 v21, 4, v21
    v_mul_u32_u24 v20, 1280, v20
    """)
    for j in range(4):
        a(f"v_xor_b32 v{28+j}, {64*j}, v21")
        a(f"v_add_u32 v{28+j}, v{28+j}, v20")
        if j < 3: a("v_add_u32 v20, 5120, v20")
    a(f"""
    s_mov_b32 m0, {LMX}
    s_lshr_b32 s14, s5, 1
    s_mul_i32 s14, s14, 20480
    s_add_u32 s14, s14, s13
    s_mov_b32 s15, 0
    s_waitcnt lgkmcnt(0)
    """)
    srd(a, 44, 16, XBYTES)
    a.label("L_mx")
    for j in range(4):
        dma(a, f"v{28+j}", 44, "s14")
        a("s_add_u32 m0, m0, 1024")
        a("s_add_u32 s14, s14, 256" if j == 3 else "s_nop 0")
    a("s_add_u32 s15, s15, 1\ns_cmp_lt_u32 s15, 5\ns_cbranch_scc1 L_mx")
    a("s_branch L_md")
    a.label("L_mw")
    a(f"s_mov_b32 m0, {LWKV}\ns_mov_b32 s14, 0")
    a("s_waitcnt lgkmcnt(0)")
    a("s_bitcmp1_b32 s5, 0")
    a("s_cselect_b32 s52, s22, s20")
    a("s_cselect_b32 s53, s23, s21")
    a("s_mov_b32 s54, 25600\ns_mov_b32 s55, 0x20000")
    a.label("L_mwl")
    for i in range(4): a(f"buffer_load_dwordx4 v18, s[52:55], s14 offen offset:{1024*i} lds")
    a("s_add_u32 m0, m0, 4096\ns_add_u32 s14, s14, 4096\ns_cmp_lt_u32 s14, 24576\ns_cbranch_scc1 L_mwl")
    a("buffer_load_dwordx4 v18, s[52:55], s14 offen lds")
    srd(a, 44, 16, XBYTES)
    a.label("L_md")
    tr_init(a); tr(a)
    a("""
    s_and_b32 s8, s5, 1
    s_mul_i32 s8, s8, 5
    s_and_b32 s9, s5, 2
    s_add_u32 s8, s8, s9
    s_and_b32 s9, s4, 7
    s_add_u32 s11, s8, s9
    s_cmp_ge_u32 s11, 10
    s_cselect_b32 s8, 10, 0
    s_sub_u32 s11, s11, s8
    s_mov_b32 s12, 0
    s_lshl_b32 s8, s10, 2
    s_lshl_b32 s9, s10, 3
    v_lshrrev_b32 v20, 4, v0
    v_add_u32 v20, s8, v20
    v_xor_b32 v20, v20, v0
    v_and_b32 v20, 7, v20
    v_lshlrev_b32 v20, 4, v20
    v_lshrrev_b32 v21, 3, v0
    v_add_u32 v21, s9, v21
    v_mul_u32_u24 v21, 1280, v21
    v_add_u32 v2, v20, v21
    s_mov_b32 s8, 1120
    """)
    for p in range(5):
        a(f"v_add_u32 v20, {64*p}, v0")
        a(f"v_mul_u32_u24 v{22+p}, 6554, v20")
        a(f"v_lshrrev_b32 v{22+p}, 16, v{22+p}")
        a(f"v_lshlrev_b32 v20, 4, v20")
        a(f"v_mad_u32_u24 v{3+p}, v{22+p}, s8, v20")
    a("s_mul_i32 s64, s5, 160")
    a(f"s_mul_i32 s65, s10, {32*1280}")
    a("s_add_u32 s65, s65, s64")
    srd(a, 48, 18, 640 * 1280)
    call(a, A_, LK)
    a("s_waitcnt vmcnt(9)"); bar(a)
    call(a, A_, LK); call(a, A_, LK)
    pk = pack3(INV)
    def swz(p):
        a(f"""
        v_add_u32 v20, {64*p}, v0
        v_mul_u32_u24 v21, 10, v{22+p}
        v_sub_u32 v20, v20, v21
        v_lshrrev_b32 v21, 1, v20
        v_and_b32 v28, 3, v{22+p}
        v_mad_u32_u24 v21, v28, 5, v21
        v_mul_u32_u24 v21, 3, v21
        v_lshrrev_b64 v[28:29], v21, s[70:71]
        v_and_b32 v28, 7, v28
        v_and_b32 v20, 1, v20
        v_lshl_or_b32 v20, v28, 1, v20
        v_lshlrev_b32 v20, 4, v20
        v_mad_u32_u24 v{41+p}, v{22+p}, s68, v20
        """)
    a("s_mov_b32 s70, 0")
    a.label("L_a")
    a("s_waitcnt vmcnt(18)"); bar(a); call(a, A_, LK)
    a("s_add_u32 s70, s70, 1\ns_cmp_lt_u32 s70, 7\ns_cbranch_scc1 L_a")
    srd(a, 40, 36, WS_SIZE)
    srd(a, 72, 26, XBYTES)
    srd(a, 76, 28, 640 * 3840)
    a("s_waitcnt vmcnt(18)"); bar(a)
    a("s_mov_b32 s8, 2560\ns_mov_b32 s9, 1280")
    for p in range(5):
        a(f"v_mad_u32_u24 v{8+p}, v{22+p}, s8, v{3+p}")
        a(f"v_lshrrev_b32 v20, 1, v{22+p}")
        a(f"v_mad_u32_u24 v{13+p}, v20, s9, v{3+p}")
    a(f"s_mul_i32 s66, s10, {32*3840}")
    a("s_add_u32 s66, s66, s64")
    a("s_add_u32 s67, s66, 1280")
    get_nonce(a, "v30", "v31")
    a("s_waitcnt vmcnt(9)"); bar(a)
    a(f"s_mov_b32 s70, {pk & 0xffffffff:#x}\ns_mov_b32 s71, {pk >> 32:#x}\ns_mov_b32 s68, 1280")
    swz(0); swz(1)
    a("s_waitcnt vmcnt(0)"); bar(a)
    swz(2); swz(3); swz(4)
    a("s_mov_b32 s12, 0")
    a("s_and_b32 s69, s5, 3")
    a("s_cmp_eq_u32 s10, 1")
    a("s_cbranch_scc1 L1_path")
    srd(a, 48, 30, 640 * 1280)
    srd(a, 52, 24, 640 * 1280)
    a("s_add_u32 s60, s7, 3\ns_and_b32 s60, s60, 15")
    a(f"s_mov_b32 s61, {LKV + 3*CH}")
    a("s_lshl_b32 s56, s4, 7\ns_lshl_b32 s57, s5, 2\ns_add_u32 s57, s57, s56")
    a("v_lshlrev_b32 v19, 2, v0")

    def stage_load():
        for g in range(5):
            for p in range(5):
                d = 60 + 4 * (5 * g + p)
                a(f"buffer_load_dwordx4 v[{d}:{d+3}], v{41+p}, s[52:55], s14 offen")
            if g < 4: a(f"s_add_u32 s14, s14, {32*1280}")
    def stage_store(base, lo, hi):
        for i in range(lo, hi):
            a(f"ds_write_b128 v18, v[{60+4*i}:{63+4*i}] offset:{base+1024*i}")
    pad(a, "b0")
    bar(a); gs(a, 8); call(a, B_, LK)
    bar(a); call(a, KV_, LK)
    bar(a); call(a, KV_, LK); call(a, B_, LK)
    a("s_waitcnt vmcnt(30)"); bar(a); call(a, KV_, LK); call(a, B_, LK)
    a("s_waitcnt vmcnt(49)"); bar(a); call(a, KV_, LK)
    a("s_mov_b32 s70, 0")
    a.label("L0_f")
    a("s_waitcnt vmcnt(30)"); bar(a); call(a, B_, LK)
    a("s_waitcnt vmcnt(19)"); bar(a); call(a, B_, LK); call(a, KV_, LK)
    a("s_add_u32 s70, s70, 1\ns_cmp_lt_u32 s70, 3\ns_cbranch_scc1 L0_f")
    a("s_waitcnt vmcnt(30)"); bar(a); call(a, B_, LK)
    a("s_waitcnt vmcnt(19)"); bar(a); call(a, KV_, LK)
    a("s_waitcnt vmcnt(11)"); bar(a)
    a(f"s_add_u32 s14, s69, 1\ns_and_b32 s14, s14, 3\ns_mul_i32 s14, s14, {160*1280}\ns_add_u32 s14, s14, s64")
    stage_load()
    a(f"s_mov_b32 s12, 0\ns_mul_i32 s65, s69, {160*1280}")
    bar(a); bar(a)
    a("s_mov_b32 s70, 9")
    a.label("L0_kv")
    a("s_waitcnt vmcnt(31)"); bar(a); call(a, KV_, LK); call(a, "L_wo4", LK)
    a("s_add_u32 s70, s70, 1\ns_cmp_lt_u32 s70, 14\ns_cbranch_scc1 L0_kv")
    a("s_waitcnt vmcnt(31)"); bar(a)
    a(f"s_add_u32 s8, s57, {FL_OB}")
    publish(a, "s8", "v30", "v31")
    a(f"s_add_u32 s13, s13, {WS_OB}")
    a(f"s_mov_b32 s61, {LX}")
    a(f"s_add_u32 s8, s56, {FL_OB}")
    a("s_waitcnt vmcnt(1)"); bar(a)
    poll(a, "s8", 8)
    call(a, P_, LK)
    pad(a, "b16")
    bar(a)
    gs(a, 9)
    call(a, P_, LK)
    a("v_lshrrev_b32 v19, 3, v0\nv_lshlrev_b32 v19, 7, v19\nv_and_b32 v28, 7, v0\nv_lshl_add_u32 v19, v28, 2, v19")
    pad(a, "t0")
    a("s_waitcnt vmcnt(20)"); bar(a)
    call(a, P_, LK)
    a("s_waitcnt vmcnt(20)"); bar(a)
    call(a, P_, LK)
    a(f"s_sub_u32 s13, s13, {WS_OB - WS_OA}")
    a(f"s_lshl_b32 s8, s4, 10\ns_add_u32 s8, s8, {FL_OA}")
    a("s_waitcnt vmcnt(20)"); bar(a)
    a("buffer_load_dword v30, v19, s[40:43], s8 offen sc1")
    stage_store(25600, 0, 6)
    a("s_waitcnt vmcnt(0)\nv_cmp_ne_u32 vcc, s96, v30\ns_nop 1")
    a("s_cbranch_vccnz L0_late")
    call(a, P_, LK)
    bar(a)
    a("s_branch L0_join")
    a.label("L0_late")
    bar(a)
    poll(a, "s8", 64)
    call(a, P_, LK)
    a.label("L0_join")
    gs(a, 7)
    call(a, P_, LK)
    stage_store(25600, 6, 18)
    pad(a, "t4")
    a("s_waitcnt vmcnt(20)"); bar(a)
    call(a, P_, LK)
    stage_store(25600, 18, 25)
    a("s_waitcnt vmcnt(20) lgkmcnt(0)"); bar(a)
    call(a, P_, LK)
    a("s_waitcnt vmcnt(20)"); bar(a)
    pad(a, "t7")
    a("s_waitcnt vmcnt(0)"); bar(a)
    pad(a, "end")
    tr_dump(a)
    a("s_endpgm")
    a.label("L1_path")
    srd(a, 48, 24, 640 * 1280)
    srd(a, 52, 30, 640 * 1280)
    pf_rows(a, 46, 1280, "s60", "s61")
    a("s_lshl_b32 s56, s5, 5\ns_add_u32 s57, s56, s4")
    a(f"s_mul_i32 s68, s57, 6720\ns_add_u32 s68, s68, {WS_KVP}")
    a("s_lshl_b32 s56, s5, 9\ns_lshr_b32 s8, s4, 3\ns_lshl_b32 s8, s8, 7\ns_and_b32 s57, s4, 7\ns_lshl_b32 s57, s57, 2\ns_add_u32 s57, s57, s8\ns_add_u32 s57, s57, s56")
    a("v_lshrrev_b32 v19, 3, v0\nv_lshlrev_b32 v19, 7, v19\nv_and_b32 v28, 7, v0\nv_lshl_add_u32 v19, v28, 2, v19")
    a(f"""
    v_lshrrev_b32 v48, 4, v0
    v_mul_u32_u24 v48, {8*6720}, v48
    v_and_b32 v49, 15, v0
    v_lshl_add_u32 v48, v49, 4, v48
    v_lshlrev_b32 v49, 4, v49
    v_lshlrev_b32 v50, 3, v0
    """)
    bar(a); call(a, B_, LK)
    bar(a)
    bar(a); call(a, B_, LK)
    bar(a); call(a, B_, LK)
    a("s_waitcnt vmcnt(38)"); bar(a)
    a("s_mov_b32 s70, 0")
    a.label("L1_f")
    a("s_waitcnt vmcnt(19)"); bar(a); call(a, B_, LK)
    a("s_add_u32 s70, s70, 1\ns_cmp_lt_u32 s70, 7\ns_cbranch_scc1 L1_f")
    a("s_waitcnt vmcnt(19)"); bar(a)
    a("s_waitcnt vmcnt(0)"); bar(a)
    a("s_mov_b32 exec_hi, 0x3ffff")
    for i, (sr, so) in enumerate(((52, "s60"), (52, "s61"), (48, "s60"), (48, "s61"))):
        a(f"buffer_load_dword v{32+i}, v46, s[{sr}:{sr+3}], {so} offen")
    a("s_mov_b32 exec_hi, -1")
    bar(a); bar(a)
    R = 60
    for i in range(7):
        a(f"ds_read_b128 v[{R+4*i}:{R+3+4*i}], v18 offset:{LPART+1024*i}")
    a("s_add_u32 s8, s68, 4096")
    a("s_waitcnt lgkmcnt(0)")
    for i in range(6):
        a(f"buffer_store_dwordx4 v[{R+4*i}:{R+3+4*i}], v18, s[40:43], {'s68' if i < 4 else 's8'} offen offset:{1024*(i%4)} sc1")
    a("s_mov_b32 exec_hi, 15")
    a(f"buffer_store_dwordx4 v[{R+24}:{R+27}], v18, s[40:43], s8 offen offset:2048 sc1")
    a("s_mov_b32 exec_hi, -1")
    bar(a)
    a("s_waitcnt vmcnt(0)")
    a(f"s_add_u32 s8, s57, {FL_P}")
    publish(a, "s8", "v30", "v31")
    bar(a)
    a(f"s_add_u32 s8, s56, {FL_P}")
    poll(a, "s8", 32)
    a(f"s_mul_i32 s8, s5, {32*6720}\ns_mul_i32 s9, s4, 224\ns_add_u32 s8, s8, s9\ns_add_u32 s8, s8, {WS_KVP}")
    for i in range(8):
        a(f"buffer_load_dwordx4 v[{R+4*i}:{R+3+4*i}], v48, s[40:43], s8 offen sc1")
        a("s_add_u32 s8, s8, 6720")
    bar(a)
    a("s_waitcnt vmcnt(0)")
    for half in (4, 2, 1):
        for i in range(half):
            for j in (0, 2):
                a(f"v_pk_add_f32 v[{R+4*i+j}:{R+1+4*i+j}], v[{R+4*i+j}:{R+1+4*i+j}], v[{R+4*(i+half)+j}:{R+1+4*(i+half)+j}]")
    for op in ("v_permlane32_swap_b32", "v_permlane16_swap_b32"):
        for j in range(4): a(f"v_mov_b32 v{R+4+j}, v{R+j}")
        a("s_nop 1")
        for j in range(4): a(f"{op} v{R+j}, v{R+4+j}")
        a("s_nop 1")
        for j in range(4): a(f"v_add_f32 v{R+j}, v{R+j}, v{R+4+j}")
    a(f"""
    v_cvt_pk_bf16_f32 v{R}, v{R}, v{R+1}
    v_cvt_pk_bf16_f32 v{R+2}, v{R+2}, v{R+3}
    v_mov_b32 v{R+1}, s96
    v_mov_b32 v{R+3}, s96
    s_lshl_b32 s70, s5, 13
    s_add_u32 s70, s70, {WS_KVZ}
    s_add_u32 s71, s70, 4096
    s_mul_i32 s9, s4, 224
    s_add_u32 s8, s70, s9
    s_cmp_lt_u32 s4, 30
    s_cselect_b32 exec_lo, 0x3fff, 0
    s_mov_b32 exec_hi, 0
    buffer_store_dwordx4 v[{R}:{R+3}], v49, s[40:43], s8 offen sc1
    s_mov_b64 exec, -1
    """)
    bar(a)
    a(f"v_mov_b32 v{R+25}, s96\nv_mov_b32 v{R+27}, s96\ns_mov_b32 s9, 0")
    a.label("L1_g")
    for i in range(6):
        a(f"buffer_load_dwordx4 v[{R+4*i}:{R+3+4*i}], v18, s[40:43], {'s70' if i < 4 else 's71'} offen offset:{1024*(i%4)} sc1")
    a("s_mov_b32 exec_hi, 15")
    a(f"buffer_load_dwordx4 v[{R+24}:{R+27}], v18, s[40:43], s71 offen offset:2048 sc1")
    a("s_mov_b32 exec_hi, -1")
    a("s_add_u32 s9, s9, 1\ns_waitcnt vmcnt(0)")
    a(f"v_and_b32 v30, v{R+1}, v{R+3}\nv_or_b32 v31, v{R+1}, v{R+3}")
    for i in range(1, 7):
        a(f"v_bitop3_b32 v30, v30, v{R+4*i+1}, v{R+4*i+3} bitop3:0x80")
        a(f"v_or3_b32 v31, v31, v{R+4*i+1}, v{R+4*i+3}")
    a("v_xor_b32 v30, s96, v30\nv_xor_b32 v31, s96, v31\nv_or_b32 v30, v30, v31\nv_cmp_ne_u32 vcc, 0, v30")
    a(f"s_cmp_gt_u32 s9, {SPIN_MAX}\ns_cbranch_scc1 L1_gd\ns_cbranch_vccz L1_gd\ns_sleep 1\ns_branch L1_g")
    a.label("L1_gd")
    a(f"v_add_u32 v50, {LKVZ}, v50")
    for i in range(7):
        a(f"ds_write2_b32 v50, v{R+4*i}, v{R+4*i+2} offset0:{(128*i)%256} offset1:{(128*i)%256+1}")
        if i % 2 == 1: a("v_add_u32 v50, 1024, v50")
    srd(a, 52, 24, 640 * 1280)
    a("s_waitcnt lgkmcnt(0)")
    bar(a)
    bar(a)
    a(f"s_mul_i32 s14, s69, {160*1280}\ns_add_u32 s14, s14, s64")
    stage_load()
    a("s_add_u32 s69, s69, 2\ns_and_b32 s69, s69, 3\ns_mov_b32 s12, 51200")
    bar(a); bar(a)
    a("s_waitcnt vmcnt(0)")
    bar(a); bar(a)
    stage_store(0, 0, 8)
    bar(a)
    stage_store(0, 8, 16)
    bar(a)
    stage_store(0, 16, 25)
    call(a, WO_, LK)
    a("s_waitcnt lgkmcnt(0)")
    bar(a)
    call(a, WO_, LK)
    bar(a)
    a("s_waitcnt vmcnt(25)"); bar(a)
    a("s_waitcnt vmcnt(0)"); bar(a)
    tr_dump(a)
    a.label("L_end")
    a("s_endpgm")
    a.label("L_wo4")
    a("s_mov_b32 m0, s12\ns_add_u32 s12, s12, 20480\ns_mov_b32 s15, 0")
    a.label("L_wo4g")
    a("s_add_u32 s14, s65, s64")
    for p in range(5):
        dma(a, f"v{41+p}", 48, "s14")
        a("s_add_u32 m0, m0, 1024")
        if p < 4: a("s_nop 0")
    wrap_inc(a, "s65", 32 * 1280, 640 * 1280)
    a("s_add_u32 s15, s15, 1\ns_cmp_lt_u32 s15, 4\ns_cbranch_scc1 L_wo4g")
    a("s_setpc_b64 s[62:63]")
    a.label(A_)
    issue_x(a, 44, "s13", "s12")
    issue_w(a, 48, 3, 1280, "s65", "s12", IMG_W)
    wrap_inc(a, "s11", 1, 10); wrap_inc(a, "s12", HS, 6 * HS)
    a("s_setpc_b64 s[62:63]")
    a.label(B_)
    issue_x(a, 72, "s13", "s12")
    issue_w(a, 76, 8, 3840, "s66", "s12", IMG_W)
    issue_w(a, 76, 13, 3840, "s67", "s12", IMG_KV, periods=2, rows_per_period=16)
    wrap_inc(a, "s11", 1, 10); wrap_inc(a, "s12", SLOT, 3 * SLOT)
    a("s_setpc_b64 s[62:63]")
    def lin(n):
        for i in range(n):
            if i % 4 == 0 and i > 0:
                a("s_add_u32 m0, m0, 4096")
                a("s_add_u32 s14, s14, 4096")
            a(f"buffer_load_dwordx4 v18, s[40:43], s14 offen offset:{1024*(i%4)} sc1 lds")
    a.label(KV_)
    a("s_mov_b32 m0, s61")
    a(f"s_mul_i32 s14, s60, {CH}")
    a(f"s_add_u32 s14, s14, {WS_KV}")
    lin(11)
    a("s_add_u32 s60, s60, 1\ns_and_b32 s60, s60, 15")
    wrap_inc(a, "s61", CH, LKV + 4 * CH, LKV)
    a("s_setpc_b64 s[62:63]")
    a.label(P_)
    a("s_mov_b32 m0, s61")
    a("s_mul_i32 s14, s69, 20480")
    a("s_add_u32 s14, s14, s13")
    lin(20)
    a("s_add_u32 s69, s69, 1\ns_and_b32 s69, s69, 3")
    wrap_inc(a, "s61", 20480, LX + 3 * 20480, LX)
    a("s_setpc_b64 s[62:63]")
    a.label(WO_)
    a("s_mov_b32 m0, s12")
    a(f"s_mul_i32 s14, s69, {160*1280}")
    a("s_add_u32 s14, s14, s64")
    a("s_mov_b32 s15, 0")
    a.label("L_wo_g")
    for p in range(5):
        dma(a, f"v{41+p}", 48, "s14")
        a("s_add_u32 m0, m0, 1024")
        if p < 4: a("s_nop 0")
    a(f"s_add_u32 s14, s14, {32*1280}")
    a("s_add_u32 s15, s15, 1\ns_cmp_lt_u32 s15, 5\ns_cbranch_scc1 L_wo_g")
    a("s_add_u32 s69, s69, 1\ns_and_b32 s69, s69, 3")
    a("s_add_u32 s12, s12, 25600")
    a("s_setpc_b64 s[62:63]")
    phi_sub(a); tile_to_lds_sub(a)
    a.label("L_codeend")

def main(out):
    a = Asm()
    a.lines.append(f"; @launch grid=(256,1,1) block=(640,1,1) lds={LDS_TOTAL}")
    a('.amdgcn_target "amdgcn-amd-amdhsa--gfx950"')
    a(".text")
    gen(a)
    a('.section .rodata,"a"')
    open(out, "w").write(a.text() + descriptor(NAME + "_kernel", NV, 102))

if __name__ == "__main__":
    main(sys.argv[1] if len(sys.argv) > 1 else f"cdna_kernels/{NAME}.s")
```

```python
import sys, struct, os
from asmlib import *

NAME = "concat_heads__grouped_kv_mqa__linear_attn_block__prompt"
STAMP = bool(os.environ.get("STAMP"))
OPT = dict(kv.split("=") for kv in os.environ.get("OPT", "").split(",") if kv)
PFB = int(OPT.get("pfb", 0))
ONT = OPT.get("ont", "nt")
MAP48 = int(OPT.get("map48", 0))
WS_OA, WS_OB, WS_KV, WS_KVP, WS_KVZ = 0x0, 0x280000, 0x500000, 0x540000, 0x700000
FL_KV, FL_P, FL_H, FL_OB, FL_OA = 0x718000, 0x720000, 0x728000, 0x730000, 0x738000
HINT = OPT.get('hint', 't0')
FORCE_REDO = int(OPT.get('redo', 0))
WS_ST = 0x800000
WS_SIZE = 0x900000
TILE = 2816
CH = 4 * TILE
XBYTES = 2048 * 1280
SLOT = 38912
HS = SLOT // 2
IMG_W, IMG_KV = 8192, 18432
LKV = 3 * SLOT
LMISC = 163840 - 16
LKVZ = 112640
LMX = LKV
LWKV = LKV + 20480
LQ = 2 * SLOT
LFR, LPQ, LPART = SLOT, SLOT + 20480, 0
LX = 102400
LDS_TOTAL = 163840
SPIN_MAX = 1 << 17
def f32(x): return "0x%08x" % struct.unpack("<I", struct.pack("<f", x))[0]
LOG2E = 1.4426950408889634
CSCALE = LOG2E / (20 ** 0.5)

S0, S1, PP, KA, KB, QB, V0, V1, QA, OO, BACC, BFR = 4, 20, 36, 44, 48, 50, 52, 56, 60, 64, 80, 112
aKA, aKB, aV0, aV1, bW, bX = 136, 137, 138, 139, 140, 141
OAD0, OAD1 = 145, 146
PWR = 147
JA, JB, QF0, QF1, AP0, AP1 = 151, 152, 153, 154, 155, 156
tW1, tW2, tX1, tX2, tO, TL0, TL1 = 157, 158, 159, 160, 161, 162, 163
NV = 164
PQA, PQB = 128, 132
T = 4
AFR = [4, 16, 28, 40]
MASKS = [92, 94, 98, 100]
POS = [[0, 1, 3, 4, 2], [1, 2, 0, 3, 4], [2, 3, 4, 0, 1], [3, 4, 0, 2, 1]]
INV = [[POS[r].index(p) for p in range(5)] for r in range(4)]
def pack3(tab):
    x = 0
    for r in range(4):
        for j in range(5): x |= tab[r][j] << (3 * (5 * r + j))
    return x

def tr(a):
    if not STAMP: return
    a("""
    s_waitcnt lgkmcnt(0)
    s_sub_u32 s90, s88, s84
    s_memtime s[88:89]
    s_mov_b32 m0, s85
    s_add_u32 s85, s85, 1
    v_writelane_b32 v40, s90, m0
    """)
def tr_init(a):
    if STAMP: a("s_mov_b32 s85, 0\nv_mov_b32 v40, 0\ns_mov_b32 s88, s84")
def tr_dump(a):
    if not STAMP: return
    tr(a)
    a(f"""
    s_lshl_b32 s8, s2, 1
    s_add_u32 s8, s8, s10
    s_lshl_b32 s8, s8, 8
    s_add_u32 s8, s8, {WS_ST + 0x40000}
    v_lshlrev_b32 v8, 2, v0
    buffer_store_dword v40, v8, s[40:43], s8 offen
    """)
def stamp_end(a):
    if not STAMP: return
    a(f"""
    s_memtime s[12:13]
    s_waitcnt vmcnt(0)
    s_memtime s[88:89]
    s_memrealtime s[90:91]
    s_waitcnt lgkmcnt(0)
    s_mov_b64 exec, -1
    s_sub_u32 s88, s88, s84
    s_sub_u32 s12, s12, s84
    v_mov_b32 v4, s86
    v_mov_b32 v5, s90
    v_mov_b32 v6, s88
    v_mov_b32 v7, s12
    s_lshl_b32 s8, s2, 4
    s_add_u32 s8, s8, s3
    s_lshl_b32 s8, s8, 4
    s_add_u32 s8, s8, {WS_ST}
    v_mov_b32 v8, 0
    buffer_store_dwordx4 v[4:7], v8, s[40:43], s8 offen
    """)
def gs(a, idx, t0="v36", t1="v37"):
    if not STAMP: return
    a(f"""
    s_memrealtime s[14:15]
    s_waitcnt lgkmcnt(0)
    v_mov_b32 {t0}, s14
    s_lshl_b32 s14, s2, 6
    s_add_u32 s14, s14, {WS_ST + 0x80000 + 4*idx}
    v_mov_b32 {t1}, 0
    buffer_store_dword {t0}, {t1}, s[40:43], s14 offen
    """)
def pad(a, where):
    p = OPT.get("pad", "")
    if not p.startswith(where + ":"): return
    l = a.newlabel("Lpad")
    a.label(l)
    a(f"s_memrealtime s[14:15]\ns_waitcnt lgkmcnt(0)\ns_sub_u32 s14, s14, s96\ns_cmp_lt_u32 s14, {p.split(':')[1]}\ns_cbranch_scc1 {l}")
def bar(a):
    a("s_barrier"); tr(a)

def dma(a, voff, srdi, soff, extra=""):
    a(f"buffer_load_dwordx4 {voff}, s[{srdi}:{srdi+3}], {soff} offen {extra} lds")
def issue_x(a, srdi, sbase, lds_sgpr):
    a(f"s_lshl_b32 s15, s10, 10")
    a(f"s_add_u32 m0, s15, {lds_sgpr}")
    a(f"s_lshl_b32 s14, s11, 7")
    a(f"s_add_u32 s14, s14, {sbase}")
    for jj in range(4):
        dma(a, "v2", srdi, "s14")
        if jj < 3:
            a("s_add_u32 m0, m0, 2048")
            a("s_add_u32 s14, s14, 20480")
def issue_w(a, srdi, voffs, ld, sbase, lds_sgpr, ldsoff, periods=1, rows_per_period=32):
    a(f"s_mul_i32 s15, s10, {5120*periods}")
    a(f"s_add_u32 s15, s15, {lds_sgpr}")
    a(f"s_add_u32 m0, s15, {ldsoff}")
    a(f"s_mul_i32 s14, s11, {64*ld}")
    a(f"s_add_u32 s14, s14, {sbase}")
    for per in range(periods):
        for p in range(5):
            dma(a, f"v{voffs+p}", srdi, "s14")
            if not (per == periods - 1 and p == 4):
                a("s_add_u32 m0, m0, 1024")
                a(f"s_add_u32 s14, s14, {rows_per_period*ld}" if p == 4 else "s_nop 0")
def wrap_inc(a, reg, step, limit, base=0):
    a(f"s_add_u32 {reg}, {reg}, {step}")
    a(f"s_cmp_eq_u32 {reg}, {limit}")
    a(f"s_cselect_b32 {reg}, {base}, {reg}")
def set_exec(a, n):
    m = (1 << n) - 1
    a(f"s_mov_b32 exec_lo, {m & 0xffffffff:#x}\ns_mov_b32 exec_hi, {m >> 32:#x}")
def poll(a, soff, nlanes, tmp="v30", addr="v19"):
    lp, dn = a.newlabel("Lpoll"), a.newlabel("Lpd")
    set_exec(a, nlanes)
    a("s_mov_b32 s9, 0")
    a.label(lp)
    a(f"buffer_load_dword {tmp}, {addr}, s[40:43], {soff} offen sc1")
    a("s_add_u32 s9, s9, 1")
    a("s_waitcnt vmcnt(0)")
    a(f"v_cmp_ne_u32 vcc, s96, {tmp}")
    a(f"s_cmp_gt_u32 s9, {SPIN_MAX}")
    a(f"s_cbranch_scc1 {dn}")
    a(f"s_cbranch_vccz {dn}")
    a("s_sleep 1")
    a(f"s_branch {lp}")
    a.label(dn)
    a("s_mov_b64 exec, -1")
def publish(a, soff, tmp, zero):
    a(f"v_mov_b32 {tmp}, s96")
    a(f"v_mov_b32 {zero}, 0")
    a("s_mov_b64 exec, 1")
    a(f"buffer_store_dword {tmp}, {zero}, s[40:43], {soff} offen sc1")
    a("s_mov_b64 exec, -1")
def get_nonce(a, tmp, addr):
    a(f"v_mov_b32 {addr}, {LMISC}")
    a(f"ds_read_b32 {tmp}, {addr}")
    a("s_waitcnt lgkmcnt(0)")
    a(f"v_readfirstlane_b32 s96, {tmp}")
def call(a, lbl, link="s[58:59]"):
    a(f"s_call_b64 {link}, {lbl}")
def pf_rows(a, vd, ld, s0, s1):
    a(f"""
    v_mul_u32_u24 v{vd}, 52429, v0
    v_lshrrev_b32 v{vd}, 18, v{vd}
    v_mul_u32_u24 v{vd+1}, 5, v{vd}
    v_sub_u32 v{vd+1}, v0, v{vd+1}
    v_mul_u32_u24 v{vd}, {ld}, v{vd}
    v_lshl_add_u32 v{vd}, v{vd+1}, 7, v{vd}
    s_mul_i32 {s0}, s7, {20*ld}
    s_and_b32 s8, s6, 1
    s_mul_i32 s8, s8, 640
    s_add_u32 {s0}, {s0}, s8
    s_add_u32 {s1}, {s0}, {10*ld}
    """)
def pf_x(a, srdi, vaddr, vd):
    a(f"""
    s_lshr_b32 s8, s6, 1
    s_mul_i32 s8, s8, {512*1280}
    s_mul_i32 s9, s7, 20480
    s_add_u32 s8, s8, s9
    s_add_u32 s9, s8, 8192
    buffer_load_dword v{vd}, {vaddr}, s[{srdi}:{srdi+3}], s8 offen
    buffer_load_dword v{vd+1}, {vaddr}, s[{srdi}:{srdi+3}], s9 offen
    s_add_u32 s9, s8, 16384
    s_mov_b32 exec_hi, 0
    buffer_load_dword v{vd+2}, {vaddr}, s[{srdi}:{srdi+3}], s9 offen
    s_mov_b32 exec_hi, -1
    """)

def phi_sub(a):
    X = BFR
    a.label("g_phi")
    a(f"s_mov_b32 s8, {f32(LOG2E)}")
    a(f"s_mov_b32 s9, {f32(1e-6)}")
    for n, r0 in enumerate((0, 4, 16, 20, 8, 12, 24, 28)):
        r0 += BACC
        if n == 4:
            a("s_cmp_eq_u32 s3, 2\ns_cbranch_scc1 g_pack")
        for i in (0, 2): a(f"v_pk_mul_f32 v[{X+i}:{X+i+1}], v[{r0+i}:{r0+i+1}], s[8:9] op_sel_hi:[1,0]")
        for i in range(4): a(f"v_exp_f32_e64 v{X+i}, v{X+i} clamp")
        for i in range(4): a(f"v_max_f32 v{r0+i}, s9, v{r0+i}")
        for i in (0, 2): a(f"v_pk_add_f32 v[{r0+i}:{r0+i+1}], v[{r0+i}:{r0+i+1}], v[{X+i}:{X+i+1}]")
    a.label("g_pack")
    a("s_mov_b64 exec, -1")
    for i in range(16):
        a(f"v_cvt_pk_bf16_f32 v{BACC+i}, v{BACC+2*i}, v{BACC+2*i+1}")
    a("s_setpc_b64 s[58:59]")
def tile_to_lds_sub(a):
    a.label("g_t2l")
    for half in range(2):
        if half == 1:
            a("s_cmp_eq_u32 s3, 2\ns_cbranch_scc1 g_t2l_end")
        for blk in range(2):
            for q in range(2):
                d = BACC + 8 * blk + 4 * half + 2 * q
                a(f"ds_write_b64 v{TL0+half}, v[{d}:{d+1}] offset:{5120*blk + 16*q}")
    a.label("g_t2l_end")
    a("s_setpc_b64 s[58:59]")
def read_qfrag(a, qa, qb):
    a(f"ds_read2_b64 v[{qa}:{qa+3}], v{QF1} offset0:0 offset1:1")
    a(f"ds_read_b64 v[{qb}:{qb+1}], v{QF0} offset:32")
def o_epilogue(a, O, wsoff, eps):
    if eps:
        a(f"v_add_f32 v{O+12}, {f32(1e-6)}, v{O+12}")
    a(f"v_rcp_f32 v{O+12}, v{O+12}")
    a(f"s_add_u32 s8, s81, {wsoff}")
    a(f"s_add_u32 s9, s82, {wsoff}")
    for i in range(0, 12, 2):
        a(f"v_pk_mul_f32 v[{O+i}:{O+i+1}], v[{O+i}:{O+i+1}], v[{O+12}:{O+13}] op_sel_hi:[1,0]")
    for i in range(6):
        a(f"v_cvt_pk_bf16_f32 v{O+i}, v{O+2*i}, v{O+2*i+1}")
    a(f"buffer_store_dwordx4 v[{O}:{O+3}], v{OAD1}, s[40:43], s8 offen sc1")
    a("s_mov_b32 exec_hi, 0")
    a(f"buffer_store_dwordx2 v[{O+4}:{O+5}], v{OAD0}, s[40:43], s9 offen sc1")
    a("s_mov_b32 exec_hi, -1")
def rowmax(a, S, dst, first=True):
    regs = [f"v{S+i}" for i in range(16)]
    if first:
        a(f"v_max3_f32 v{dst}, {regs[0]}, {regs[1]}, {regs[2]}")
        rest = regs[3:]
    else:
        rest = regs
    while len(rest) >= 2:
        a(f"v_max3_f32 v{dst}, v{dst}, {rest[0]}, {rest[1]}")
        rest = rest[2:]
    if rest:
        a(f"v_max_f32 v{dst}, v{dst}, {rest[0]}")
def set_m(a, m, tmp, keep):
    a(f"""
    v_mov_b32 v{tmp}, v{m}
    s_nop 1
    v_permlane32_swap_b32 v{m}, v{tmp}
    s_nop 1
    v_max_f32 v{keep}, v{m}, v{tmp}
    s_mov_b32 exec_lo, 0
    v_sub_f32 v{m}, 0, v{keep}
    v_and_b32 v{tmp}, 0xffff0000, v{m}
    v_sub_f32 v{m}, v{m}, v{tmp}
    v_lshrrev_b32 v{QB}, 16, v{tmp}
    v_and_b32 v{tmp}, 0xffff0000, v{m}
    v_sub_f32 v{m}, v{m}, v{tmp}
    v_or_b32 v{QB}, v{QB}, v{tmp}
    v_lshrrev_b32 v{QB+1}, 16, v{m}
    s_mov_b32 exec_lo, -1
    """)

def precompute(a):
    t = 12
    a(f"""
    v_and_b32 v1, 31, v0
    v_lshrrev_b32 v2, 5, v0
    v_lshrrev_b32 v3, 2, v1
    v_add_u32 v3, 1, v3
    v_and_b32 v3, 2, v3
    v_mul_u32_u24 v3, 6, v3
    v_xor_b32 v3, v1, v3
    v_lshlrev_b32 v{OAD0}, 3, v0
    v_lshlrev_b32 v{OAD1}, 4, v0
    s_and_b32 s38, s3, 1
    s_lshr_b32 s39, s3, 1
    s_mov_b32 s76, 0
    s_mov_b32 s77, 128
    s_cmp_eq_u32 s3, 1
    s_cselect_b32 s76, 32, s76
    s_cselect_b32 s77, 64, s77
    s_cmp_eq_u32 s3, 2
    s_cselect_b32 s76, 96, s76
    s_cselect_b32 s77, 96, s77
    s_sub_u32 s78, s3, 3
    s_lshl_b32 s78, s78, 2
    s_lshr_b32 s78, 0x20431, s78
    s_and_b32 s78, s78, 15
    s_lshl_b32 s8, s78, 6
    s_add_u32 s8, s8, {IMG_KV}
    s_add_u32 s9, s76, {IMG_W}
    s_sub_u32 s64, s77, s76
    s_cmp_lt_u32 s3, 3
    s_cselect_b32 s60, s9, s8
    s_cselect_b32 s64, s64, 32
    s_mov_b32 s61, 320
    s_cselect_b32 s61, 160, s61
    v_bfe_u32 v{t}, v0, 2, 2
    v_lshl_add_u32 v{t+1}, v2, 3, v{t}
    v_mul_u32_u24 v{t+1}, s61, v{t+1}
    v_bfe_u32 v{t+3}, v0, 4, 1
    v_mul_u32_u24 v{t+2}, s64, v{t+3}
    v_and_b32 v{t+6}, 3, v0
    v_lshlrev_b32 v{t+6}, 3, v{t+6}
    v_add3_u32 v{t+1}, v{t+1}, v{t+2}, v{t+6}
    v_add_u32 v{bW}, s60, v{t+1}
    v_bfe_u32 v{t+2}, v0, 1, 3
    v_xor_b32 v{t+2}, v{t+2}, v2
    v_lshlrev_b32 v{t+2}, 4, v{t+2}
    v_lshl_or_b32 v{bX}, v1, 7, v{t+2}
    v_xor_b32 v{bX+1}, 32, v{bX}
    v_xor_b32 v{bX+2}, 64, v{bX}
    v_xor_b32 v{bX+3}, 96, v{bX}
    """)
    pk = pack3(POS)
    a(f"""
    s_mul_i32 s80, s4, {64*2560}
    s_mul_i32 s8, s5, 160
    s_add_u32 s80, s80, s8
    s_add_u32 s80, s80, 1280
    v_mul_u32_u24 v{t+1}, 160, v{t}
    v_add_u32 v{t+1}, v{t+1}, v{t+6}
    s_lshl_b32 s8, s39, 1
    v_add_u32 v{t+2}, s8, v{t+3}
    v_min_u32 v{t+2}, 4, v{t+2}
    v_mad_u32_u24 v{t+2}, v{t}, 5, v{t+2}
    v_mul_u32_u24 v{t+2}, 3, v{t+2}
    s_mov_b32 s8, {pk & 0xffffffff:#x}
    s_mov_b32 s9, {pk >> 32:#x}
    v_lshrrev_b64 v[{t+4}:{t+5}], v{t+2}, s[8:9]
    v_and_b32 v{t+4}, 7, v{t+4}
    v_lshl_add_u32 v{t+1}, v{t+4}, 5, v{t+1}
    s_cmp_ge_u32 s3, 4
    s_cbranch_scc1 PC_tz
    s_lshl_b32 s9, s39, 6
    s_add_u32 s80, s80, s9
    s_mul_i32 s10, s38, {32*2560}
    s_add_u32 s80, s80, s10
    s_mul_i32 s8, s38, 5120
    s_add_u32 s8, s8, {LX}
    v_mul_u32_u24 v{tW1}, 1280, v2
    v_add_u32 v{tW1}, v{tW1}, v{t+1}
    v_mul_u32_u24 v{tW2}, 3200, v2
    v_add_u32 v{tW2}, v{tW2}, v{t+1}
    v_add_u32 v{tW2}, 2560, v{tW2}
    v_add_u32 v{tX1}, s8, v{OAD1}
    v_add_u32 v{tX2}, s8, v{OAD0}
    v_mul_u32_u24 v{tO}, 2560, v1
    v_lshl_add_u32 v{tO}, v2, 4, v{tO}
    s_branch PC_td
    """)
    a.label("PC_tz")
    a(f"""
    s_sub_u32 s8, s3, 4
    s_mul_i32 s10, s8, {16*2560}
    s_add_u32 s80, s80, s10
    s_lshl_b32 s9, s38, 4
    s_lshr_b32 s8, s8, 1
    s_mul_i32 s8, s8, 5120
    s_add_u32 s8, s8, {LX}
    v_lshrrev_b32 v{t}, 4, v0
    v_mul_u32_u24 v{tW1}, 3200, v{t+3}
    v_mul_u32_u24 v{t+2}, 1280, v2
    v_add3_u32 v{tW1}, v{tW1}, v{t+2}, v{t+1}
    v_mul_u32_u24 v{tW2}, 3200, v{t}
    v_add_u32 v{tW2}, v{tW2}, v{t+1}
    v_add_u32 v{tW2}, 2560, v{tW2}
    v_and_b32 v{t+2}, 15, v0
    v_mul_u32_u24 v{tO}, 2560, v{t+2}
    v_lshl_add_u32 v{tO}, v{t}, 3, v{tO}
    v_add_u32 v{t+2}, s9, v{t+2}
    v_lshl_add_u32 v{t+4}, v{t}, 5, v{t+2}
    v_lshlrev_b32 v{tX2}, 3, v{t+4}
    v_add_u32 v{tX2}, s8, v{tX2}
    v_lshl_add_u32 v{t+4}, v2, 5, v{t+2}
    v_lshl_add_u32 v{t+4}, v{t+3}, 6, v{t+4}
    v_lshlrev_b32 v{tX1}, 4, v{t+4}
    v_add_u32 v{tX1}, s8, v{tX1}
    """)
    a.label("PC_td")
    a(f"""
    v_add_u32 v{aKA}, {LKV}, v{OAD1}
    v_lshlrev_b32 v{aKB}, 3, v1
    v_add_u32 v{aKB}, {LKV+1024}, v{aKB}
    v_mul_u32_u24 v{aV0}, 320, v2
    v_lshl_add_u32 v{aV0}, v1, 4, v{aV0}
    v_add_u32 v{aV0}, {LKV+1280}, v{aV0}
    v_add_u32 v{aV1}, 640, v{aV0}
    v_mov_b32 v{AP0}, v3
    s_mov_b32 exec_lo, 0xfff00000
    s_mov_b32 exec_hi, 0xfff00000
    v_mov_b32 v{aV0}, {LKV+2560}
    v_mov_b32 v{aV1}, {LKV+2560}
    v_mov_b32 v{AP0}, 20
    s_mov_b32 exec_lo, 0
    s_mov_b32 exec_hi, -1
    v_mov_b32 v{aKB}, {LKV+2560}
    s_mov_b64 exec, -1
    s_mul_i32 s8, s39, 840
    s_add_u32 s8, s8, {LKVZ}
    v_mul_u32_u24 v{AP0}, 40, v{AP0}
    v_add_u32 v{AP0}, s8, v{AP0}
    v_lshl_add_u32 v{AP1}, v2, 4, v{AP0}
    s_lshl_b32 s10, s4, 3
    s_add_u32 s10, s10, s5
    s_lshl_b32 s10, s10, 1
    s_add_u32 s10, s10, s38
    s_mul_i32 s10, s10, 5120
    s_lshl_b32 s81, s39, 10
    s_add_u32 s81, s81, s10
    s_lshl_b32 s82, s39, 8
    s_add_u32 s82, s82, s10
    s_add_u32 s82, s82, 4096
    s_mul_i32 s8, s38, 5120
    s_mul_i32 s9, s39, 40
    s_add_u32 s8, s8, s9
    s_add_u32 s8, s8, {LQ}
    v_mul_u32_u24 v{t}, 160, v1
    v_add_u32 v{QF0}, s8, v{t}
    v_lshl_add_u32 v{QF1}, v2, 4, v{QF0}
    v_lshl_add_u32 v{t}, v2, 3, v{t}
    v_add_u32 v{t}, {LQ}, v{t}
    v_add_u32 v{TL0}, s76, v{t}
    v_add_u32 v{TL1}, s77, v{t}
    s_add_u32 s9, s3, 1
    s_lshr_b32 s9, s9, 1
    s_add_u32 s9, s9, 2
    s_sub_u32 s10, s3, 5
    s_cmp_ge_u32 s3, 5
    s_cselect_b32 s12, s10, s39
    s_cselect_b32 s13, 0, s9
    s_lshl_b32 s10, s12, 12
    s_lshl_b32 s9, s13, 12
    v_add_u32 v{JA}, s10, v{OAD1}
    v_add_u32 v{JB}, s9, v{OAD1}
    s_lshl_b32 s10, s12, 5
    s_lshl_b32 s9, s13, 5
    s_sub_u32 s9, s9, 80
    v_lshlrev_b32 v{t}, 2, v2
    v_add_u32 v{t}, s10, v{t}
    v_add_u32 v{t+1}, s9, v1
    v_and_b32 v{t+2}, 0xffff, v{t+1}
    v_mul_u32_u24 v{t+2}, 3277, v{t+2}
    v_lshrrev_b32 v{t+2}, 16, v{t+2}
    v_mul_u32_u24 v{t+3}, 80, v{t+1}
    s_cmp_ge_u32 s3, 5
    s_cbranch_scc1 PC_z
    """)
    for z in range(2):
        for q in range(4):
            m = MASKS[q]
            a(f"v_add_u32 v{t+4}, {8*q}, v{t}")
            a(f"v_mul_u32_u24 v{t+5}, 3277, v{t+4}")
            a(f"v_lshrrev_b32 v{t+5}, 16, v{t+5}")
            if z == 0:
                a(f"v_lshl_add_u32 v{PWR+q}, v{t+4}, 2, v{t+3}")
                a(f"v_cmp_eq_u32 s[{m}:{m+1}], v{t+5}, v{t+2}")
            else:
                a(f"v_add_u32 v{PWR+q}, 1, v{t+5}")
                a(f"v_mul_u32_u24 v{PWR+q}, 1600, v{PWR+q}")
                a(f"v_lshl_add_u32 v{PWR+q}, v{t+4}, 2, v{PWR+q}")
                a(f"v_cmp_gt_u32 s[{m}:{m+1}], 4, v{t+5}")
                a(f"s_and_b32 s{m}, s{m}, 1\ns_and_b32 s{m+1}, s{m+1}, 1")
        if z == 0:
            a("s_branch PC_zd")
            a.label("PC_z")
    a.label("PC_zd")
    for i in list(range(V1, V1 + 4)) + list(range(OO, BFR + 24)): a(f"v_mov_b32 v{i}, 0")

def gen(a):
    K = NAME + "_kernel"
    kernel_begin(a, K)
    if STAMP:
        a("s_memtime s[84:85]\ns_memrealtime s[86:87]")
    a(f"""
    s_cmp_ge_u32 s2, 256
    s_cbranch_scc1 L_end
    s_load_dwordx16 s[16:31], s[0:1], 0
    s_load_dwordx4 s[32:35], s[0:1], 64
    s_load_dwordx2 s[36:37], s[0:1], 80
    v_lshrrev_b32 v1, 6, v0
    v_and_b32 v0, 63, v0
    v_readfirstlane_b32 s3, v1
    s_and_b32 s6, s2, 7
    s_lshr_b32 s7, s2, 3
    """)
    if MAP48:
        a("s_lshl_b32 s4, s6, 2\ns_lshr_b32 s8, s7, 3\ns_add_u32 s4, s4, s8\ns_and_b32 s5, s7, 7")
    else:
        a("s_lshr_b32 s4, s6, 1\ns_lshl_b32 s4, s4, 3\ns_lshr_b32 s8, s7, 2\ns_add_u32 s4, s4, s8\ns_and_b32 s5, s6, 1\ns_lshl_b32 s5, s5, 2\ns_and_b32 s8, s7, 3\ns_add_u32 s5, s5, s8")
    a(f"""
    s_cmp_ge_u32 s3, 8
    s_cbranch_scc1 L_loader
    s_cmp_lg_u32 s3, 4
    s_cbranch_scc1 C_pre
    s_getpc_b64 s[44:45]
    """)
    a.label("L_pc")
    a(f"s_sub_u32 s44, s44, L_pc-{K}\ns_subb_u32 s45, s45, 0")
    a(f"s_mov_b32 s46, L_codeend-{K}\ns_mov_b32 s47, 0x20000")
    a("v_lshlrev_b32 v4, 7, v0\ns_mov_b32 s8, 0x2000\ns_mov_b32 s9, 0x4000")
    a("buffer_load_dword v5, v4, s[44:47], 0 offen\nbuffer_load_dword v6, v4, s[44:47], s8 offen\nbuffer_load_dword v7, v4, s[44:47], s9 offen")
    a("s_cmp_ge_u32 s2, 8\ns_cbranch_scc1 C_pre")
    a("s_memrealtime s[8:9]\ns_waitcnt lgkmcnt(0)\ns_or_b32 s8, s8, 1")
    srd(a, 44, 34, 256)
    a("v_mov_b32 v8, s8\nv_mov_b32 v9, 0\nv_mov_b32 v10, 0\ns_mov_b64 exec, 1")
    a("buffer_atomic_cmpswap v[8:9], v10, s[44:47], 0 offen sc1")
    a("s_mov_b64 exec, -1")
    a.label("C_pre")
    precompute(a)
    a("s_waitcnt lgkmcnt(0)")
    srd(a, 40, 36, WS_SIZE)
    a("s_cmp_lt_u32 s3, 3\ns_cbranch_scc1 A_q")
    a("s_cmp_eq_u32 s3, 5\ns_cbranch_scc1 A_kvpoll")
    a("s_cmp_lt_u32 s3, 6\ns_cbranch_scc1 A_bars")
    srd(a, 44, 34, 256)
    a(f"""
    v_mov_b32 v10, 0
    v_and_b32 v20, 15, v0
    v_lshrrev_b32 v21, 4, v0
    v_xor_b32 v22, v20, v21
    v_lshlrev_b32 v22, 4, v22
    v_lshl_add_u32 v22, v20, 8, v22
    v_add_u32 v22, {LMX}, v22
    v_xor_b32 v23, 64, v22
    v_xor_b32 v24, 128, v22
    v_xor_b32 v25, 192, v22
    v_bfe_u32 v26, v0, 2, 2
    v_lshl_add_u32 v26, v21, 3, v26
    v_mul_u32_u24 v26, 40, v26
    v_and_b32 v27, 3, v0
    v_lshl_add_u32 v26, v27, 3, v26
    s_lshl_b32 s8, s38, 5
    s_add_u32 s8, s8, {LWKV}
    v_add_u32 v26, s8, v26
    s_lshl_b32 s12, s4, 1
    s_lshr_b32 s8, s5, 2
    s_add_u32 s12, s12, s8
    s_mul_i32 s12, s12, {TILE}
    s_add_u32 s12, s12, {WS_KV}
    s_bfe_u32 s13, s5, 0x10001
    s_lshl_b32 s55, s4, 4
    s_add_u32 s55, s55, s5
    s_lshl_b32 s55, s55, 1
    s_add_u32 s55, s55, s38
    s_lshl_b32 s55, s55, 2
    s_add_u32 s55, s55, {FL_KV}
    v_and_b32 v27, 1, v21
    s_mov_b32 s56, 0
    s_mov_b64 s[48:49], -1
    """)
    for i in range(12, 16): a(f"v_mov_b32 v{i}, 0")
    MF = [BACC + 8 * i for i in range(4)]
    def mini(lbl, orient):
        def mm(st):
            x, w, ac = v(MF[st], 4), v(MF[st] + 4, 4), v(12, 4)
            a(f"v_mfma_f32_16x16x32_bf16 {ac}, {w}, {x}, {ac}" if orient == "R" else f"v_mfma_f32_16x16x32_bf16 {ac}, {x}, {w}, {ac}")
        a("s_barrier")
        a("buffer_load_dword v11, v10, s[44:47], 0 offen sc1")
        a.label(lbl)
        for st in range(4):
            f = MF[st]
            a(f"ds_read_b128 v[{f}:{f+3}], v{22+st}")
            for hf in range(2):
                a(f"ds_read_b64_tr_b16 v[{f+4+2*hf}:{f+5+2*hf}], v26 offset:{(32*st+4*hf)*40}")
            a(f"v_add_u32 v{22+st}, 4096, v{22+st}")
            a("s_waitcnt lgkmcnt(9)")
            mm((st + 1) % 4)
        a("v_add_u32 v26, 5120, v26")
        a(f"s_add_u32 s56, s56, 1\ns_cmp_lt_u32 s56, 5\ns_cbranch_scc1 {lbl}")
        for st, w in ((1, 6), (2, 3), (3, 0)):
            a(f"s_waitcnt lgkmcnt({w})"); mm(st)
    a("s_bitcmp1_b32 s5, 0")
    a("s_cbranch_scc1 M_v")
    a(f"""
    s_lshl_b32 s8, s13, 4
    v_add_u32 v20, s8, v20
    v_lshlrev_b32 v28, 4, v20
    v_lshl_add_u32 v28, v2, 9, v28
    v_lshl_add_u32 v28, v27, 3, v28
    s_cmp_eq_u32 s3, 6
    s_cbranch_scc1 M_k0
    v_lshlrev_b32 v28, 3, v20
    v_add_u32 v28, 1024, v28
    s_mov_b32 exec_lo, 0xffff0000
    v_lshlrev_b32 v28, 3, v1
    v_add_u32 v28, {2560-128}, v28
    s_mov_b32 exec_lo, -1
    s_mov_b32 s49, 0
    """)
    a.label("M_k0")
    mini("M_kl", "R")
    a("s_nop 7")
    a("v_cvt_pk_bf16_f32 v12, v12, v13\nv_cvt_pk_bf16_f32 v13, v14, v15")
    a("s_cmp_eq_u32 s3, 6\ns_cbranch_scc1 M_st")
    a("s_mov_b32 exec_lo, 0xffff0000")
    a("v_mov_b32 v12, 0x3f803f80\nv_mov_b32 v13, 0x3f803f80")
    a("s_branch M_st")
    a.label("M_v")
    a(f"""
    s_mul_i32 s8, s13, 640
    s_add_u32 s12, s12, s8
    s_lshl_b32 s8, s38, 8
    s_add_u32 s12, s12, s8
    s_add_u32 s12, s12, 1280
    v_lshrrev_b32 v28, 2, v20
    v_add_u32 v28, 1, v28
    v_and_b32 v28, 2, v28
    v_mul_u32_u24 v28, 6, v28
    v_xor_b32 v28, v20, v28
    v_mul_u32_u24 v29, 320, v27
    v_lshl_add_u32 v29, v2, 3, v29
    v_lshl_add_u32 v28, v28, 4, v29
    s_cmp_eq_u32 s3, 6
    s_cselect_b32 s48, -1, 0x000f000f
    s_mov_b32 s49, s48
    """)
    mini("M_vl", "C")
    a("s_nop 7")
    a("v_cvt_pk_bf16_f32 v12, v12, v13\nv_cvt_pk_bf16_f32 v13, v14, v15")
    a.label("M_st")
    a("s_mov_b64 exec, s[48:49]")
    a("buffer_store_dwordx2 v[12:13], v28, s[40:43], s12 offen sc1")
    a("s_mov_b64 exec, -1")
    gs(a, 0, "v30", "v31")
    a("s_barrier")
    for i in range(32): a(f"v_mov_b32 v{BACC+i}, 0")
    a("s_barrier")
    a("s_mov_b32 s9, 0")
    a.label("A_np")
    a("s_add_u32 s9, s9, 1")
    a("s_waitcnt vmcnt(0)")
    a("v_cmp_eq_u32 vcc, 0, v11")
    a(f"s_cmp_gt_u32 s9, {SPIN_MAX}\ns_cbranch_scc1 A_nd\ns_cbranch_vccz A_nd\ns_sleep 1")
    a("buffer_load_dword v11, v10, s[44:47], 0 offen sc1")
    a("s_branch A_np")
    a.label("A_nd")
    a("s_mov_b64 exec, 1")
    a("buffer_store_dword v11, v10, s[40:43], s55 offen sc1")
    a("s_mov_b64 exec, -1")
    a(f"v_mov_b32 v5, {LMISC}\nds_write_b32 v5, v11\ns_waitcnt lgkmcnt(0)")
    gs(a, 1, "v30", "v31")
    a("s_branch A_bars8")
    a.label("A_kvpoll")
    a("v_lshrrev_b32 v20, 1, v0\nv_lshlrev_b32 v20, 7, v20\nv_and_b32 v21, 1, v0\nv_lshl_add_u32 v20, v21, 4, v20")
    a(f"v_mov_b32 v18, v{OAD1}")
    a("s_and_b32 s60, s7, 15")
    a(f"s_mov_b32 s61, {LKV}\ns_mov_b32 s12, {FL_KV}\ns_mov_b32 s13, 2\ns_mov_b32 s9, 0")
    for i in range(9): a("s_barrier")
    get_nonce(a, "v22", "v23")
    a.label("A_kp")
    a("buffer_load_dwordx4 v[24:27], v20, s[40:43], s12 offen sc1")
    a("buffer_load_dwordx4 v[28:31], v20, s[40:43], s12 offen offset:32 sc1")
    a("s_cmp_eq_u32 s13, 0\ns_cbranch_scc1 A_kq")
    a("s_barrier\ns_barrier\ns_sub_u32 s13, s13, 2")
    a.label("A_kq")
    a("s_sleep 1")
    a("s_add_u32 s9, s9, 1")
    a("s_waitcnt vmcnt(0)")
    for i in range(8): a(f"v_xor_b32 v{24+i}, s96, v{24+i}")
    a("v_or3_b32 v24, v24, v25, v26\nv_or3_b32 v27, v27, v28, v29\nv_or3_b32 v24, v24, v30, v31\nv_or_b32 v24, v24, v27\nv_cmp_ne_u32 vcc, 0, v24")
    a(f"s_cmp_gt_u32 s9, {SPIN_MAX}\ns_cbranch_scc1 A_kd\ns_cbranch_vccnz A_kp")
    a.label("A_kd")
    gs(a, 4, "v30", "v31")
    for i in range(3): call(a, "L_issueKV", "s[62:63]")
    a.label("A_kr")
    a("s_cmp_eq_u32 s13, 0\ns_cbranch_scc1 A_ke\ns_barrier\ns_sub_u32 s13, s13, 1\ns_branch A_kr")
    a.label("A_ke")
    a("s_waitcnt vmcnt(22)")
    a("s_branch A_done")
    a.label("A_bars")
    for i in range(3): a("s_barrier")
    a.label("A_bars8")
    for i in range(8): a("s_barrier")
    a("s_waitcnt vmcnt(0)")
    a("s_branch A_done")
    a.label("A_q")
    def ard(st, i):
        f = AFR[st]
        if i < 2: a(f"ds_read_b64_tr_b16 v[{f+2*i}:{f+2*i+1}], v{bW} offset:{(16*st+4*i)*160}")
        else: a(f"ds_read_b128 v[{f+4*(i-1)}:{f+4*(i-1)+3}], v{bX+st} offset:{4096*(i-2)}")
    def amf(st, blk):
        f = AFR[st]; ac = v(BACC + 16 * blk, 16)
        a(f"v_mfma_f32_32x32x16_bf16 {ac}, v[{f}:{f+3}], v[{f+4+4*blk}:{f+7+4*blk}], {ac}")
    a(f"s_mov_b32 s56, 0\ns_mov_b32 s70, {HS}\ns_mov_b32 s74, {-5*HS}\ns_mov_b32 s75, {-3*HS}")
    a("s_barrier\ns_barrier")
    for st in (0, 1, 2):
        for i in range(4): ard(st, i)
    a("s_branch A_mid")
    a(".p2align 3")
    a.label("A_loop")
    a("s_waitcnt lgkmcnt(0)\ns_barrier")
    seq = [(st, i) for st in (0, 1, 2) for i in range(4)]
    for n, (st, blk) in enumerate(((2, 0), (2, 1), (3, 0), (3, 1))):
        amf(st, blk)
        for x in seq[3 * n:3 * n + 3]: ard(*x)
    a.label("A_mid")
    a("s_add_u32 s56, s56, 1\ns_cmp_eq_u32 s56, 6\ns_cselect_b32 s8, s74, s70")
    a("s_waitcnt lgkmcnt(8)")
    amf(0, 0); ard(3, 0); ard(3, 1)
    a("s_cmp_lt_u32 s56, 10\ns_cselect_b32 s8, s8, s75")
    amf(0, 1); ard(3, 2); ard(3, 3)
    a("s_waitcnt lgkmcnt(8)")
    a(f"v_add_u32 v{bW}, s8, v{bW}")
    amf(1, 0)
    for j in range(4): a(f"v_add_u32 v{bX+j}, s8, v{bX+j}")
    amf(1, 1)
    a("s_cbranch_scc1 A_loop")
    a("s_waitcnt lgkmcnt(4)")
    amf(2, 0); amf(2, 1)
    a("s_waitcnt lgkmcnt(0)")
    amf(3, 0); amf(3, 1)
    a(f"s_mov_b32 s8, {f32(CSCALE)}")
    a("s_nop 9")
    for i in range(0, 32, 2):
        a(f"v_pk_mul_f32 v[{BACC+i}:{BACC+i+1}], v[{BACC+i}:{BACC+i+1}], s[8:9] op_sel_hi:[1,0]")
    call(a, "g_pack")
    call(a, "g_t2l")
    for i in range(31, -1, -1): a(f"v_mov_b32 v{BACC+i}, 0")
    a.label("A_done")
    def rdKA(t): a(f"ds_read_b128 v[{KA}:{KA+3}], v{aKA} offset:{t*TILE}")
    def rdKB(t): a(f"ds_read_b64 v[{KB}:{KB+1}], v{aKB} offset:{t*TILE}")
    def rdV0(t): a(f"ds_read_b128 v[{V0}:{V0+3}], v{aV0} offset:{t*TILE}")
    def rdV1(t): a(f"ds_read_b128 v[{V1}:{V1+3}], v{aV1} offset:{t*TILE}")
    def qka(S): a(f"v_mfma_f32_32x32x16_bf16 v[{S}:{S+15}], v[{KA}:{KA+3}], v[{QA}:{QA+3}], 0")
    def qkb(S): a(f"v_mfma_f32_32x32x8_bf16 v[{S}:{S+15}], v[{KB}:{KB+1}], v[{QB}:{QB+1}], v[{S}:{S+15}]")
    def pv0(): a(f"v_mfma_f32_32x32x16_bf16 v[{OO}:{OO+15}], v[{V0}:{V0+3}], v[{PP}:{PP+3}], v[{OO}:{OO+15}]")
    def pv1(): a(f"v_mfma_f32_32x32x16_bf16 v[{OO}:{OO+15}], v[{V1}:{V1+3}], v[{PP+4}:{PP+7}], v[{OO}:{OO+15}]")
    def E(S, lo, hi, w=None):
        for i in range(lo, hi):
            if w is not None and i == hi - 1:
                a(w if isinstance(w, str) else f"s_waitcnt lgkmcnt({w})"); a(f"v_exp_f32_e64 v{S+i}, v{S+i}")
            else: a(f"v_exp_f32 v{S+i}, v{S+i}")
    def c1(k, S): a(f"v_cvt_pk_bf16_f32 v{PP+k}, v{S+2*k}, v{S+2*k+1}")
    def C(S, g): c1(2 * g, S); c1(2 * g + 1, S)
    for i in range(4): a(f"v_mov_b32 v{PP+4+i}, 0")
    a("s_mov_b32 s57, 0\ns_mov_b64 vcc, 0")
    a("s_waitcnt lgkmcnt(0)\ns_barrier")
    a(f"v_mov_b32 v{PP}, {LMISC}\nds_read_b32 v{PP+3}, v{PP}")
    read_qfrag(a, QA, QB)
    rdKA(0); rdKB(0); rdV0(0)

    a(f"s_mov_b32 s8, {LPQ - LQ}")
    for r in (QF0, QF1, TL0, TL1): a(f"v_add_u32 v{r}, s8, v{r}")
    a("s_mov_b32 exec_lo, 0")
    a("s_waitcnt lgkmcnt(1)")
    a(f"v_mov_b32 v{QB}, 0\nv_mov_b32 v{QB+1}, 0")
    a("s_mov_b32 exec_lo, -1")
    qka(S0); qkb(S0)
    rdKA(1); rdKB(1)
    a(f"v_readfirstlane_b32 s96, v{PP+3}")
    a("s_nop 8")
    rowmax(a, S0, PP)
    set_m(a, PP, PP + 1, PP + 2)
    for i in range(16): a(f"v_sub_f32 v{S0+i}, v{S0+i}, v{PP+2}")
    a("s_waitcnt lgkmcnt(0)")
    a("s_cmp_eq_u32 s57, 0")
    a(".p2align 6")
    a.label("AT_loop")
    for n in range(16):
        Sc, Sn = (S0, S1) if n % 2 == 0 else (S1, S0)
        if n % 4 == 2: a("s_waitcnt vmcnt(0)\ns_barrier")
        if n == 4:
            a("s_cbranch_vccnz AT_apply\ns_nop 0")
            a.label("AT_n4")
        if n == 12: a("s_cbranch_scc1 FU_start\ns_nop 0")
        qka(Sn); rdKA((n + 2) % 16); E(Sc, 0, 4, 3)
        pv1(); rdV1(n); C(Sc, 0); E(Sc, 4, 8, 3)
        qkb(Sn); rdKB((n + 2) % 16); C(Sc, 1); E(Sc, 8, 12, 3)
        pv0(); rdV0((n + 1) % 16); C(Sc, 2); E(Sc, 12, 16, 3); C(Sc, 3)
    a("s_mov_b64 vcc, -1")
    a("s_add_u32 s57, s57, 1\ns_cmp_ge_u32 s57, 2\ns_cbranch_scc0 AT_loop")
    a("s_waitcnt lgkmcnt(0)")
    pv1()
    srd(a, 44, 32, 2048 * 2560)
    a("s_mov_b32 s83, 0\ns_mov_b32 s71, 0\ns_mov_b32 s72, 20480\ns_mov_b32 s73, -40960\ns_mov_b32 s74, 25600\ns_mov_b32 s75, -102400")
    a("s_nop 2")
    a(f"v_cmp_nge_f32 vcc, {f32(2.0**40)}, v{OO+12}")
    a("s_nop 1")
    a("s_cbranch_vccnz AT_fallback")
    a.label("AT_ok")
    o_epilogue(a, OO, WS_OA, False)
    a("s_mov_b32 s56, 0")
    a("s_cmp_ge_u32 s3, 4\ns_cbranch_scc1 TLz_job")
    F = [20 + 8 * i for i in range(10)]
    LA = 4
    def tl_vm(pfx):
        a(f"s_cmp_lg_u32 s56, 2\ns_cbranch_scc1 {pfx}_nv\ns_waitcnt vmcnt(0)")
        a.label(pfx + "_nv")
    def tl_adv():
        a("s_add_u32 s56, s56, 1\ns_cmp_eq_u32 s56, 3\ns_cselect_b32 s8, s73, s72")
        a(f"v_add_u32 v{tW1}, s74, v{tW1}\nv_add_u32 v{tW2}, s74, v{tW2}\nv_add_u32 v{tX1}, s8, v{tX1}\nv_add_u32 v{tX2}, s8, v{tX2}")
        a("s_cmp_lt_u32 s56, 4")
    def wrd(d, st, off=0):
        t, H = divmod(st, 5)
        for hf in range(2):
            if H < 4: a(f"ds_read_b64_tr_b16 v[{d+2*hf}:{d+2*hf+1}], v{tW1} offset:{off+(80*t+20*H+4*hf)*160}")
            else: a(f"ds_read_b64_tr_b16 v[{d+2*hf}:{d+2*hf+1}], v{tW2} offset:{off+(80*t+40*hf)*160}")
    def xrd(d, st):
        t, H = divmod(st, 5)
        if H < 4: a(f"ds_read_b128 v[{d}:{d+3}], v{tX1} offset:{t*10240+H*1024}")
        else:
            for hf in range(2): a(f"ds_read_b64 v[{d+2*hf}:{d+2*hf+1}], v{tX2} offset:{t*10240+4096+512*hf}")
    def mrd(st): wrd(F[st], st); xrd(F[st] + 4, st)
    def mmf(st): a(f"v_mfma_f32_32x32x16_bf16 v[4:19], v[{F[st]}:{F[st]+3}], v[{F[st]+4}:{F[st]+7}], v[4:19]")
    nrd = lambda st: 4 if st % 5 == 4 else 3
    OUT = 124
    def m_out():
        for i in range(8): a(f"v_cvt_pk_bf16_f32 v{OUT+i}, v{4+2*i}, v{5+2*i}")
        a("s_nop 1")
        for half in range(2):
            d = OUT + 4 * half
            a(f"v_permlane32_swap_b32 v{d}, v{d+2}\nv_permlane32_swap_b32 v{d+1}, v{d+3}")
        for half in range(2):
            d = OUT + 4 * half
            a(f"buffer_store_dwordx4 v[{d}:{d+3}], v{tO}, s[44:47], s80 offen offset:{32*half} {ONT}")
    XSTEP = [20480, -40960, 20480]
    for i in range(4, 20): a(f"v_mov_b32 v{i}, 0")
    a("s_barrier")
    for st in range(LA): mrd(st)
    a("s_branch TLm_mid")
    a(".p2align 3")
    a.label("TLm_loop")
    tl_vm("TLm")
    a("s_waitcnt lgkmcnt(0)\ns_barrier")
    for st in range(LA):
        mmf(10 - LA + st); mrd(st)
    a.label("TLm_mid")
    for st in range(LA, 10):
        mrd(st)
        a(f"s_waitcnt lgkmcnt({sum(nrd(x) for x in range(st-LA+1, st+1))})")
        mmf(st - LA)
    tl_adv()
    a("s_cbranch_scc1 TLm_loop")
    for st in range(10 - LA, 10):
        a(f"s_waitcnt lgkmcnt({sum(nrd(x) for x in range(st+1, 10))})")
        mmf(st)
    a(f"v_add_u32 v{tW1}, s75, v{tW1}\nv_add_u32 v{tW2}, s75, v{tW2}")
    a("s_nop 9")
    m_out()
    a("s_sub_u32 s80, s80, 1280")
    a("s_barrier")
    WR = lambda g: 20 + 4 * (g % 20)
    XR = lambda g: 100 + 4 * (g % 6)
    for g in range(20): wrd(WR(g), g)
    a(f"s_mov_b32 s8, 51200\nv_add_u32 v{tW1}, s8, v{tW1}\nv_add_u32 v{tW2}, s8, v{tW2}")
    XL = 4
    pend = []
    def m4(g):
        c = "0" if g == 0 else "v[4:19]"
        if ("x", g) in pend:
            last = max(i for i, p in enumerate(pend) if p == ("x", g))
            a(f"s_waitcnt lgkmcnt({min(15, len(pend) - 1 - last)})")
        a(f"v_mfma_f32_32x32x16_bf16 v[4:19], v[{WR(g)}:{WR(g)+3}], v[{XR(g)}:{XR(g)+3}], {c}")
    wq = []
    for k in range(4):
        a("s_waitcnt lgkmcnt(0)\ns_barrier")
        pend.clear()
        for st in range(10):
            g = 10 * k + st
            xrd(XR(g), st); pend += [("x", g)] * (2 if st % 5 == 4 else 1)
            if g - XL >= 0:
                m4(g - XL)
                if g - XL < 20: wq.append(g - XL + 20)
            n = 0
            while wq and wq[0] // 10 <= k + 2 and n < 2:
                w = wq.pop(0); wrd(WR(w), w - 20); pend += [("w", w)] * 2; n += 1
        if k < 3:
            a(f"s_mov_b32 s8, {XSTEP[k]}\nv_add_u32 v{tX1}, s8, v{tX1}\nv_add_u32 v{tX2}, s8, v{tX2}")
    assert not wq
    for g in range(40 - XL, 40): m4(g)
    a("s_nop 11")
    a("v_cmp_u_f32 vcc, v4, v4" if not FORCE_REDO else "v_cmp_o_f32 vcc, v4, v4")
    m_out()
    a("s_cbranch_vccnz TLm_redo")
    stamp_end(a)
    a("s_endpgm")
    def redo_head():
        a(f"v_lshlrev_b32 v100, 2, v0\ns_lshl_b32 s8, s4, 7\ns_add_u32 s8, s8, {FL_OA}")
        poll(a, "s8", 8, "v101", "v100")
        a(f"s_mov_b32 s8, -51200\nv_add_u32 v{tW1}, s8, v{tW1}\nv_add_u32 v{tW2}, s8, v{tW2}")
        a(f"s_mov_b32 s8, {-(LX + 20480)}\nv_add_u32 v{tX1}, s8, v{tX1}\nv_add_u32 v{tX2}, s8, v{tX2}")
        a("s_add_u32 s69, s5, s4\ns_and_b32 s69, s69, 3\ns_mul_i32 s13, s4, 81920\ns_mov_b32 s56, 0")
    def redo_pair():
        a(f"s_mul_i32 s8, s69, 20480\ns_add_u32 s8, s8, s13\ns_add_u32 s9, s8, 4096\ns_add_u32 s10, s8, 10240\ns_add_u32 s11, s8, {10240+4096}")
    def redo_tail(lbl):
        a(f"v_add_u32 v{tW1}, s74, v{tW1}\nv_add_u32 v{tW2}, s74, v{tW2}")
        a(f"s_add_u32 s69, s69, 1\ns_and_b32 s69, s69, 3\ns_add_u32 s56, s56, 1\ns_cmp_lt_u32 s56, 4\ns_cbranch_scc1 {lbl}")
        a("s_nop 11")
    a.label("TLm_redo")
    redo_head()
    for i in range(4, 20): a(f"v_mov_b32 v{i}, 0")
    a.label("TLm_rl")
    redo_pair()
    for st in range(10):
        t, H = divmod(st, 5); d = F[st] + 4
        if H < 4: a(f"buffer_load_dwordx4 v[{d}:{d+3}], v{tX1}, s[40:43], s{8+2*t} offen offset:{1024*H} sc1")
        else:
            for hf in range(2): a(f"buffer_load_dwordx2 v[{d+2*hf}:{d+2*hf+1}], v{tX2}, s[40:43], s{9+2*t} offen offset:{512*hf} sc1")
        wrd(F[st], st)
    a("s_waitcnt vmcnt(0) lgkmcnt(0)")
    for st in range(10): mmf(st)
    redo_tail("TLm_rl")
    m_out()
    stamp_end(a)
    a("s_endpgm")
    def zw(d, j, off=0):
        if j < 4:
            for hf in range(2): a(f"ds_read_b64_tr_b16 v[{d+2*hf}:{d+2*hf+1}], v{tW1} offset:{off+(80*(j>>1)+40*(j&1)+4*hf)*160}")
        else:
            for t in range(2): a(f"ds_read_b64_tr_b16 v[{d+2*t}:{d+2*t+1}], v{tW2} offset:{off+12800*t}")
    def zx(d, j):
        if j < 4: a(f"ds_read_b128 v[{d}:{d+3}], v{tX1} offset:{(j>>1)*10240+(j&1)*2048}")
        else:
            for t in range(2): a(f"ds_read_b64 v[{d+2*t}:{d+2*t+1}], v{tX2} offset:{4096+10240*t}")
    def z_out():
        a(f"v_cvt_pk_bf16_f32 v{OUT}, v4, v5\nv_cvt_pk_bf16_f32 v{OUT+1}, v6, v7")
        a(f"buffer_store_dwordx2 v[{OUT}:{OUT+1}], v{tO}, s[44:47], s80 offen offset:128 {ONT}")
    a.label("TLz_job")
    for i in range(4, 8): a(f"v_mov_b32 v{i}, 0")
    a.label("TLz_loop")
    tl_vm("TLz")
    a("s_barrier")
    for j in range(4): zw(F[j], j); zx(F[j] + 4, j)
    def zmf(j): a(f"v_mfma_f32_16x16x32_bf16 v[4:7], v[{F[j]}:{F[j]+3}], v[{F[j]+4}:{F[j]+7}], v[4:7]")
    a("s_waitcnt lgkmcnt(9)"); zmf(0)
    zw(F[4], 4); zx(F[4] + 4, 4)
    a("s_waitcnt lgkmcnt(10)"); zmf(1)
    a("s_waitcnt lgkmcnt(7)"); zmf(2)
    a("s_waitcnt lgkmcnt(4)"); zmf(3)
    a("s_waitcnt lgkmcnt(0)"); zmf(4)
    tl_adv()
    a("s_cbranch_scc1 TLz_loop")
    a(f"v_add_u32 v{tW1}, s75, v{tW1}\nv_add_u32 v{tW2}, s75, v{tW2}")
    z_out()
    a("s_sub_u32 s80, s80, 1280")
    a("s_barrier")
    ZW = lambda g: 20 + 4 * g
    for g in range(10): zw(ZW(g), g % 5, 25600 * (g // 5))
    a(f"s_mov_b32 s8, 51200\nv_add_u32 v{tW1}, s8, v{tW1}\nv_add_u32 v{tW2}, s8, v{tW2}")
    for k in range(4):
        a("s_waitcnt lgkmcnt(0)\ns_barrier")
        for j in range(5): zx(100 + 4 * j, j)
        extra = 0
        if k < 2:
            for j in range(4): zw(ZW(10 + 5 * k + j), j, 25600 * k)
            extra = 8
        for j in range(5):
            a(f"s_waitcnt lgkmcnt({extra + (5 - j if j < 4 else 0)})")
            c = "0" if (k == 0 and j == 0) else "v[4:7]"
            a(f"v_mfma_f32_16x16x32_bf16 v[4:7], v[{ZW(5*k+j)}:{ZW(5*k+j)+3}], v[{100+4*j}:{103+4*j}], {c}")
        if k < 2: zw(ZW(14 + 5 * k), 4, 25600 * k)
        if k < 3:
            a(f"s_mov_b32 s8, {XSTEP[k]}\nv_add_u32 v{tX1}, s8, v{tX1}\nv_add_u32 v{tX2}, s8, v{tX2}")
    a("s_nop 7")
    a("v_cmp_u_f32 vcc, v4, v4" if not FORCE_REDO else "v_cmp_o_f32 vcc, v4, v4")
    z_out()
    a("s_cbranch_vccnz TLz_redo")
    stamp_end(a)
    a("s_endpgm")
    a.label("TLz_redo")
    redo_head()
    for i in range(4, 8): a(f"v_mov_b32 v{i}, 0")
    a.label("TLz_rl")
    redo_pair()
    for j in range(5):
        d = F[j] + 4
        if j < 4: a(f"buffer_load_dwordx4 v[{d}:{d+3}], v{tX1}, s[40:43], s{8+2*(j>>1)} offen offset:{2048*(j&1)} sc1")
        else:
            for t in range(2): a(f"buffer_load_dwordx2 v[{d+2*t}:{d+2*t+1}], v{tX2}, s[40:43], s{9+2*t} offen sc1")
        zw(F[j], j)
    a("s_waitcnt vmcnt(0) lgkmcnt(0)")
    for j in range(5): zmf(j)
    redo_tail("TLz_rl")
    z_out()
    stamp_end(a)
    a("s_endpgm")
    a.label("FU_start")
    a(f"s_mov_b32 s8, {3*CH}")
    for r in (aKA, aKB, aV0, aV1): a(f"v_add_u32 v{r}, s8, v{r}")
    a(f"s_mov_b32 s56, 0\ns_mov_b32 s68, 0\ns_mov_b32 s70, {SLOT}\ns_mov_b32 s74, {-2*SLOT}\ns_mov_b32 s72, {CH}\ns_mov_b32 s73, {-3*CH}")
    a("s_waitcnt lgkmcnt(0)")
    a("s_cmp_ge_u32 s3, 3\ns_cbranch_scc1 FU_C")
    def G(orient, s_, blk):
        f = BFR + 12 * s_; w, x, ac = v(f, 4), v(f + 4 + 4 * blk, 4), v(BACC + 16 * blk, 16)
        a(f"v_mfma_f32_32x32x16_bf16 {ac}, {w}, {x}, {ac}" if orient == "R" else f"v_mfma_f32_32x32x16_bf16 {ac}, {x}, {w}, {ac}")
    def GR(orient, s_, st):
        f = BFR + 12 * s_; stride = 160 if orient == "R" else 320
        for hf in range(2): a(f"ds_read_b64_tr_b16 v[{f+2*hf}:{f+2*hf+1}], v{bW} offset:{(16*st+4*hf)*stride}")
        for blk in range(2): a(f"ds_read_b128 v[{f+4+4*blk}:{f+7+4*blk}], v{bX+st} offset:{4096*blk}")
    for orient in ("R", "C"):
        a(".p2align 3")
        a.label("FU_" + orient)
        a("s_and_b32 s9, s56, 3\ns_cselect_b32 s9, s72, s73")
        for n in range(4):
            Sc, Sn = (S0, S1) if n % 2 == 0 else (S1, S0)
            def slot(i, w=None):
                c1((i - 1) % 8, Sn if i == 0 else Sc)
                E(Sc, 2 * i, 2 * i + 2, w)
            def va(*regs, sg):
                for r in regs: a(f"v_add_u32 v{r}, {sg}, v{r}")
            G(orient, 0, 0)
            if n == 2: va(aKA, aKB, sg="s9")
            slot(0, 11)
            qka(Sn); rdKA((n + 2) % 4); slot(1)
            if n % 2 == 0:
                a("s_waitcnt lgkmcnt(1)\ns_barrier")
                a("s_add_u32 s68, s68, 1\ns_cmp_eq_u32 s68, 3\ns_cselect_b32 s8, s74, s70\ns_cselect_b32 s68, 0, s68")
            G(orient, 0, 1); GR(orient, 0, (2 * n) % 4); slot(2, 11)
            pv1(); rdV1(n); slot(3, 11)
            qkb(Sn); rdKB((n + 2) % 4); slot(4, 7)
            G(orient, 1, 0)
            if n == 3: va(aV0, aV1, sg="s9")
            slot(5)
            pv0(); rdV0((n + 1) % 4); slot(6)
            G(orient, 1, 1); GR(orient, 1, (2 * n + 1) % 4)
            if n % 2 == 0: va(bX, bX + 1, sg="s8")
            else:
                va(bX + 2, bX + 3, bW, sg="s8"); a("s_nop 0")
            slot(7, 7)
        a(f"s_add_u32 s56, s56, 1\ns_cmp_lt_u32 s56, 5\ns_cbranch_scc1 FU_{orient}")
        c1(7, S1)
        G(orient, 0, 0); G(orient, 0, 1)
        a("s_waitcnt lgkmcnt(0)")
        G(orient, 1, 0); G(orient, 1, 1)
        if orient == "R":
            a("s_nop 8")
            call(a, "g_phi")
            call(a, "g_t2l")
            a("s_branch B_jobs")
    a("s_lshl_b32 s8, s78, 12")
    a(f"v_add_u32 v{TL0}, s8, v{OAD1}")
    a("s_nop 6")
    a("s_cmp_ge_u32 s78, 3")
    a("s_cbranch_scc1 B_nophi")
    a("s_cmp_eq_u32 s78, 2")
    a("s_cselect_b32 s8, 0xffff, -1")
    a("s_mov_b32 exec_lo, s8\ns_mov_b32 exec_hi, s8")
    call(a, "g_phi")
    a("s_branch B_wr")
    a.label("B_nophi")
    call(a, "g_pack")
    a.label("B_wr")
    for ks in range(4):
        d = BACC + 4 * ks
        a(f"ds_write_b128 v{TL0}, v[{d}:{d+3}] offset:{LFR+1024*ks}")
    a.label("B_jobs")
    JAF, JBF, JD = BACC, BACC + 16, BFR
    a("s_cmp_lt_u32 s3, 5\ns_cbranch_scc1 B_noz")
    for i in range(16): a(f"v_mov_b32 v{JBF+i}, 0x3f803f80")
    a.label("B_noz")
    a("s_waitcnt lgkmcnt(0)\ns_barrier")
    for ks in range(4): a(f"ds_read_b128 v[{JAF+4*ks}:{JAF+4*ks+3}], v{JA} offset:{LFR+1024*ks}")
    a("s_cbranch_scc0 B_nob")
    for ks in range(4): a(f"ds_read_b128 v[{JBF+4*ks}:{JBF+4*ks+3}], v{JB} offset:{LFR+1024*ks}")
    a.label("B_nob")
    read_qfrag(a, PQA, PQB)
    a("s_waitcnt lgkmcnt(2)")
    for ks in range(4):
        c = "0" if ks == 0 else v(JD, 16)
        a(f"v_mfma_f32_32x32x16_bf16 {v(JD,16)}, v[{JAF+4*ks}:{JAF+4*ks+3}], v[{JBF+4*ks}:{JBF+4*ks+3}], {c}")
    a("s_mov_b32 exec_lo, 0")
    a("s_waitcnt lgkmcnt(0)")
    a(f"v_mov_b32 v{PQB}, 0\nv_mov_b32 v{PQB+1}, 0")
    a("s_nop 7")
    for q in range(4):
        a(f"s_mov_b64 exec, s[{MASKS[q]}:{MASKS[q]+1}]")
        a(f"ds_write_b128 v{PWR+q}, v[{JD+4*q}:{JD+4*q+3}] offset:{LPART}")
    a("s_mov_b64 exec, -1")
    a("s_waitcnt lgkmcnt(0)\ns_barrier")
    a("s_cmp_lg_u32 s57, 0")
    a("s_branch AT_loop")
    a.label("AT_apply")
    AP = BACC
    a(f"""
    ds_read2_b64 v[100:103], v{AP1} offset0:0 offset1:1
    ds_read_b64 v[104:105], v{AP0} offset:32
    s_waitcnt lgkmcnt(0)
    v_mfma_f32_32x32x16_bf16 v[{AP}:{AP+15}], v[100:103], v[{PQA}:{PQA+3}], 0
    v_mfma_f32_32x32x8_bf16 v[{AP}:{AP+15}], v[104:105], v[{PQB}:{PQB+1}], v[{AP}:{AP+15}]
    s_nop 11
    """)
    o_epilogue(a, AP, WS_OB, True)
    a("s_cmp_eq_u32 s57, 0")
    a("s_branch AT_n4")
    a.label("AT_fallback")
    FM = BACC
    a("s_mov_b32 exec_lo, 0")
    a(f"v_mov_b32 v{QB}, 0\nv_mov_b32 v{QB+1}, 0")
    a("s_mov_b32 exec_lo, -1")
    a(f"v_mov_b32 v{FM}, 0xff800000")
    a(f"s_mov_b32 s70, {WS_KV - LKV}")
    a.label("AT_fb1")
    a(f"buffer_load_dwordx4 v[{KA}:{KA+3}], v{aKA}, s[40:43], s70 offen sc1")
    a(f"buffer_load_dwordx2 v[{KB}:{KB+1}], v{aKB}, s[40:43], s70 offen sc1")
    a("s_waitcnt vmcnt(0)")
    qka(S0); qkb(S0)
    a("s_nop 15")
    rowmax(a, S0, FM, first=False)
    a(f"s_add_u32 s70, s70, {TILE}\ns_cmp_lt_u32 s70, {WS_KV-LKV+64*TILE}\ns_cbranch_scc1 AT_fb1")
    set_m(a, FM, FM + 1, FM + 2)
    for i in range(16): a(f"v_mov_b32 v{OO+i}, 0")
    a(f"s_mov_b32 s70, {WS_KV - LKV}")
    a.label("AT_fb2")
    a(f"buffer_load_dwordx4 v[{KA}:{KA+3}], v{aKA}, s[40:43], s70 offen sc1")
    a(f"buffer_load_dwordx2 v[{KB}:{KB+1}], v{aKB}, s[40:43], s70 offen sc1")
    a(f"buffer_load_dwordx4 v[{V0}:{V0+3}], v{aV0}, s[40:43], s70 offen sc1")
    a(f"buffer_load_dwordx4 v[{V1}:{V1+3}], v{aV1}, s[40:43], s70 offen sc1")
    a("s_waitcnt vmcnt(0)")
    qka(S0); qkb(S0)
    a("s_nop 15")
    E(S0, 0, 16)
    a("s_nop 0")
    for g in range(4): C(S0, g)
    a("s_nop 1")
    pv0(); pv1()
    a(f"s_add_u32 s70, s70, {TILE}\ns_cmp_lt_u32 s70, {WS_KV-LKV+64*TILE}\ns_cbranch_scc1 AT_fb2")
    a("s_nop 15")
    a("s_branch AT_ok")

    LK = "s[62:63]"
    A_, B_, KV_, P_, WO_ = "L_issueA", "L_issueB", "L_issueKV", "L_issueP", "L_issueWo"
    a.label("L_loader")
    a("s_setprio 2")
    a("s_sub_u32 s10, s3, 8")
    a("s_mul_i32 s13, s4, 81920")
    a("v_lshlrev_b32 v18, 4, v0")
    a("s_cmp_eq_u32 s10, 1\ns_cbranch_scc1 L_mw")
    a("""
    v_lshrrev_b32 v20, 4, v0
    v_xor_b32 v21, v20, v0
    v_and_b32 v21, 15, v21
    v_lshlrev_b32 v21, 4, v21
    v_mul_u32_u24 v20, 1280, v20
    """)
    for j in range(4):
        a(f"v_xor_b32 v{28+j}, {64*j}, v21")
        a(f"v_add_u32 v{28+j}, v{28+j}, v20")
        if j < 3: a("v_add_u32 v20, 5120, v20")
    a(f"""
    s_mov_b32 m0, {LMX}
    s_lshr_b32 s14, s5, 1
    s_mul_i32 s14, s14, 20480
    s_add_u32 s14, s14, s13
    s_mov_b32 s15, 0
    s_waitcnt lgkmcnt(0)
    """)
    srd(a, 44, 16, XBYTES)
    a.label("L_mx")
    for j in range(4):
        dma(a, f"v{28+j}", 44, "s14")
        a("s_add_u32 m0, m0, 1024")
        a("s_add_u32 s14, s14, 256" if j == 3 else "s_nop 0")
    a("s_add_u32 s15, s15, 1\ns_cmp_lt_u32 s15, 5\ns_cbranch_scc1 L_mx")
    a("s_branch L_md")
    a.label("L_mw")
    a(f"s_mov_b32 m0, {LWKV}\ns_mov_b32 s14, 0")
    a("s_waitcnt lgkmcnt(0)")
    a("s_bitcmp1_b32 s5, 0")
    a("s_cselect_b32 s52, s22, s20")
    a("s_cselect_b32 s53, s23, s21")
    a("s_mov_b32 s54, 25600\ns_mov_b32 s55, 0x20000")
    a.label("L_mwl")
    for i in range(4): a(f"buffer_load_dwordx4 v18, s[52:55], s14 offen offset:{1024*i} lds")
    a("s_add_u32 m0, m0, 4096\ns_add_u32 s14, s14, 4096\ns_cmp_lt_u32 s14, 24576\ns_cbranch_scc1 L_mwl")
    a("buffer_load_dwordx4 v18, s[52:55], s14 offen lds")
    srd(a, 44, 16, XBYTES)
    a.label("L_md")
    tr_init(a); tr(a)
    p4, p8 = ("s4", "s5") if MAP48 else ("s5", "s4")
    a(f"""
    s_and_b32 s8, {p4}, 1
    s_mul_i32 s8, s8, 5
    s_and_b32 s9, {p4}, 2
    s_add_u32 s8, s8, s9
    s_and_b32 s9, {p8}, 7
    s_add_u32 s11, s8, s9
    s_cmp_ge_u32 s11, 10
    s_cselect_b32 s8, 10, 0
    s_sub_u32 s11, s11, s8
    s_mov_b32 s12, 0
    s_lshl_b32 s8, s10, 2
    s_lshl_b32 s9, s10, 3
    v_lshrrev_b32 v20, 4, v0
    v_add_u32 v20, s8, v20
    v_xor_b32 v20, v20, v0
    v_and_b32 v20, 7, v20
    v_lshlrev_b32 v20, 4, v20
    v_lshrrev_b32 v21, 3, v0
    v_add_u32 v21, s9, v21
    v_mul_u32_u24 v21, 1280, v21
    v_add_u32 v2, v20, v21
    s_mov_b32 s8, 1120
    """)
    for p in range(5):
        a(f"v_add_u32 v20, {64*p}, v0")
        a(f"v_mul_u32_u24 v{22+p}, 6554, v20")
        a(f"v_lshrrev_b32 v{22+p}, 16, v{22+p}")
        a(f"v_lshlrev_b32 v20, 4, v20")
        a(f"v_mad_u32_u24 v{3+p}, v{22+p}, s8, v20")
    a("s_mul_i32 s64, s5, 160")
    a(f"s_mul_i32 s65, s10, {32*1280}")
    a("s_add_u32 s65, s65, s64")
    srd(a, 48, 18, 640 * 1280)
    call(a, A_, LK)
    a("s_waitcnt vmcnt(9)"); bar(a)
    call(a, A_, LK); call(a, A_, LK)
    pk = pack3(INV)
    def swz(p):
        a(f"""
        v_add_u32 v20, {64*p}, v0
        v_mul_u32_u24 v21, 10, v{22+p}
        v_sub_u32 v20, v20, v21
        v_lshrrev_b32 v21, 1, v20
        v_and_b32 v28, 3, v{22+p}
        v_mad_u32_u24 v21, v28, 5, v21
        v_mul_u32_u24 v21, 3, v21
        v_lshrrev_b64 v[28:29], v21, s[70:71]
        v_and_b32 v28, 7, v28
        v_and_b32 v20, 1, v20
        v_lshl_or_b32 v20, v28, 1, v20
        v_lshlrev_b32 v20, 4, v20
        v_mad_u32_u24 v{41+p}, v{22+p}, s68, v20
        """)
    a("s_mov_b32 s70, 0")
    a.label("L_a")
    a("s_waitcnt vmcnt(18)"); bar(a); call(a, A_, LK)
    a("s_add_u32 s70, s70, 1\ns_cmp_lt_u32 s70, 7\ns_cbranch_scc1 L_a")
    srd(a, 40, 36, WS_SIZE)
    srd(a, 72, 26, XBYTES)
    srd(a, 76, 28, 640 * 3840)
    a("s_waitcnt vmcnt(18)"); bar(a)
    a("s_mov_b32 s8, 2560\ns_mov_b32 s9, 1280")
    for p in range(5):
        a(f"v_mad_u32_u24 v{8+p}, v{22+p}, s8, v{3+p}")
        a(f"v_lshrrev_b32 v20, 1, v{22+p}")
        a(f"v_mad_u32_u24 v{13+p}, v20, s9, v{3+p}")
    a(f"s_mul_i32 s66, s10, {32*3840}")
    a("s_add_u32 s66, s66, s64")
    a("s_add_u32 s67, s66, 1280")
    get_nonce(a, "v30", "v31")
    a("s_waitcnt vmcnt(9)"); bar(a)
    a(f"s_mov_b32 s70, {pk & 0xffffffff:#x}\ns_mov_b32 s71, {pk >> 32:#x}\ns_mov_b32 s68, 1280")
    swz(0); swz(1)
    a("s_waitcnt vmcnt(0)"); bar(a)
    swz(2); swz(3); swz(4)
    a("s_mov_b32 s12, 0")
    a("s_add_u32 s69, s5, s4\ns_and_b32 s69, s69, 3")
    a("s_cmp_eq_u32 s10, 1")
    a("s_cbranch_scc1 L1_path")
    srd(a, 48, 30, 640 * 1280)
    srd(a, 52, 24, 640 * 1280)
    a("s_add_u32 s60, s7, 3\ns_and_b32 s60, s60, 15")
    a(f"s_mov_b32 s61, {LKV + 3*CH}")
    a("s_lshl_b32 s56, s4, 7\ns_lshl_b32 s57, s5, 2\ns_add_u32 s57, s57, s56")
    a("v_lshlrev_b32 v19, 2, v0")

    def stage_load():
        for g in range(5):
            for p in range(5):
                d = 60 + 4 * (5 * g + p)
                a(f"buffer_load_dwordx4 v[{d}:{d+3}], v{41+p}, s[52:55], s14 offen")
            if g < 4: a(f"s_add_u32 s14, s14, {32*1280}")
    def stage_store(base, lo, hi):
        for i in range(lo, hi):
            a(f"ds_write_b128 v18, v[{60+4*i}:{63+4*i}] offset:{base+1024*i}")
    pad(a, "b0")
    bar(a); gs(a, 8); call(a, B_, LK)
    bar(a); call(a, KV_, LK)
    bar(a); call(a, KV_, LK); call(a, B_, LK)
    a("s_waitcnt vmcnt(30)"); bar(a); call(a, KV_, LK); call(a, B_, LK)
    a("s_waitcnt vmcnt(49)"); bar(a); call(a, KV_, LK)
    a("s_mov_b32 s70, 0")
    a.label("L0_f")
    a("s_waitcnt vmcnt(30)"); bar(a); call(a, B_, LK)
    a("s_waitcnt vmcnt(19)"); bar(a); call(a, B_, LK); call(a, KV_, LK)
    a("s_add_u32 s70, s70, 1\ns_cmp_lt_u32 s70, 3\ns_cbranch_scc1 L0_f")
    a("s_waitcnt vmcnt(30)"); bar(a); call(a, B_, LK)
    a("s_waitcnt vmcnt(19)"); bar(a); call(a, KV_, LK)
    a("s_waitcnt vmcnt(11)"); bar(a)
    a(f"s_mov_b32 s12, 0\ns_mul_i32 s65, s69, {160*1280}")
    bar(a); bar(a)
    a("s_mov_b32 s70, 9")
    a.label("L0_kv")
    a("s_waitcnt vmcnt(31)"); bar(a); call(a, KV_, LK); call(a, "L_wo4", LK)
    a("s_add_u32 s70, s70, 1\ns_cmp_lt_u32 s70, 14\ns_cbranch_scc1 L0_kv")
    a("s_waitcnt vmcnt(31)"); bar(a)
    a(f"s_add_u32 s8, s57, {FL_OB}")
    publish(a, "s8", "v30", "v31")
    a(f"s_add_u32 s13, s13, {WS_OB}")
    a(f"s_mov_b32 s61, {LX}")
    a(f"s_add_u32 s8, s56, {FL_OB}")
    a("s_waitcnt vmcnt(1)"); bar(a)
    poll(a, "s8", 8)
    call(a, P_, LK)
    pad(a, "b16")
    bar(a)
    gs(a, 9)
    call(a, P_, LK)
    a(f"s_add_u32 s70, s57, {FL_H}\ns_add_u32 s71, s56, {FL_H}")
    pad(a, "t0")
    a("s_waitcnt vmcnt(20)"); bar(a)
    if HINT == "t0": publish(a, "s70", "v30", "v31")
    call(a, P_, LK)
    a("s_waitcnt vmcnt(20)"); bar(a)
    if HINT == "t1": publish(a, "s70", "v30", "v31")
    call(a, P_, LK)
    a(f"s_sub_u32 s13, s13, {WS_OB - WS_OA}")
    a(f"s_add_u32 s8, s57, {FL_OA}")
    a("s_waitcnt vmcnt(20)"); bar(a)
    set_exec(a, 8)
    a("buffer_load_dword v32, v19, s[40:43], s71 offen sc1")
    publish(a, "s8", "v30", "v31")
    set_exec(a, 8)
    a("s_waitcnt vmcnt(1)\nv_cmp_ne_u32 vcc, s96, v32\ns_mov_b64 exec, -1")
    a("s_cbranch_vccnz L0_late")
    call(a, P_, LK)
    bar(a)
    a("s_branch L0_join")
    a.label("L0_late")
    bar(a)
    poll(a, "s71", 8)
    call(a, P_, LK)
    a.label("L0_join")
    gs(a, 7)
    call(a, P_, LK)
    bar(a)
    call(a, P_, LK)
    pad(a, "t4")
    a("s_waitcnt vmcnt(40)"); bar(a)
    a("s_waitcnt vmcnt(20)"); bar(a)
    call(a, P_, LK)
    a("s_waitcnt vmcnt(20)"); bar(a)
    pad(a, "t7")
    a("s_waitcnt vmcnt(0)"); bar(a)
    pad(a, "end")
    tr_dump(a)
    a("s_endpgm")
    a.label("L1_path")
    srd(a, 48, 24, 640 * 1280)
    srd(a, 52, 30, 640 * 1280)
    pf_rows(a, 46, 1280, "s60", "s61")
    a("s_lshl_b32 s56, s5, 5\ns_add_u32 s57, s56, s4")
    a(f"s_mul_i32 s68, s57, 6720\ns_add_u32 s68, s68, {WS_KVP}")
    a("s_lshl_b32 s56, s5, 9\ns_lshr_b32 s8, s4, 3\ns_lshl_b32 s8, s8, 7\ns_and_b32 s57, s4, 7\ns_lshl_b32 s57, s57, 2\ns_add_u32 s57, s57, s8\ns_add_u32 s57, s57, s56")
    a("v_lshrrev_b32 v19, 3, v0\nv_lshlrev_b32 v19, 7, v19\nv_and_b32 v28, 7, v0\nv_lshl_add_u32 v19, v28, 2, v19")
    a(f"""
    v_lshrrev_b32 v48, 4, v0
    v_mul_u32_u24 v48, {8*6720}, v48
    v_and_b32 v49, 15, v0
    v_lshl_add_u32 v48, v49, 4, v48
    v_lshlrev_b32 v49, 4, v49
    v_lshlrev_b32 v50, 3, v0
    """)
    bar(a); call(a, B_, LK)
    bar(a)
    bar(a); call(a, B_, LK)
    bar(a); call(a, B_, LK)
    a("s_waitcnt vmcnt(38)"); bar(a)
    a("s_mov_b32 s70, 0")
    a.label("L1_f")
    a("s_waitcnt vmcnt(19)"); bar(a); call(a, B_, LK)
    a("s_add_u32 s70, s70, 1\ns_cmp_lt_u32 s70, 7\ns_cbranch_scc1 L1_f")
    a("s_waitcnt vmcnt(19)"); bar(a)
    a("s_waitcnt vmcnt(0)"); bar(a)
    for i in range(4): a(f"v_mov_b32 v{52+i}, -1")
    a(f"s_mul_i32 s8, s5, 10240\ns_add_u32 s8, s8, s13")
    for i in range(10):
        if i in (4, 8): a("s_add_u32 s8, s8, 4096")
        a(f"buffer_store_dwordx4 v[52:55], v18, s[40:43], s8 offen offset:{1024*(i%4)} sc1")
    if not MAP48:
        a("s_mov_b32 exec_hi, 0x3ffff")
        for i, (sr, so) in enumerate(((52, "s60"), (52, "s61"), (48, "s60"), (48, "s61"))):
            a(f"buffer_load_dword v{32+i}, v46, s[{sr}:{sr+3}], {so} offen")
        a("s_mov_b32 exec_hi, -1")
    bar(a); bar(a)
    R = 60
    for i in range(7):
        a(f"ds_read_b128 v[{R+4*i}:{R+3+4*i}], v18 offset:{LPART+1024*i}")
    a("s_add_u32 s8, s68, 4096")
    a("s_waitcnt lgkmcnt(0)")
    for i in range(6):
        a(f"buffer_store_dwordx4 v[{R+4*i}:{R+3+4*i}], v18, s[40:43], {'s68' if i < 4 else 's8'} offen offset:{1024*(i%4)} sc1")
    a("s_mov_b32 exec_hi, 15")
    a(f"buffer_store_dwordx4 v[{R+24}:{R+27}], v18, s[40:43], s8 offen offset:2048 sc1")
    a("s_mov_b32 exec_hi, -1")
    bar(a)
    a("s_waitcnt vmcnt(0)")
    a(f"s_add_u32 s8, s57, {FL_P}")
    publish(a, "s8", "v30", "v31")
    bar(a)
    a(f"s_add_u32 s8, s56, {FL_P}")
    poll(a, "s8", 32)
    a(f"s_mul_i32 s8, s5, {32*6720}\ns_mul_i32 s9, s4, 224\ns_add_u32 s8, s8, s9\ns_add_u32 s8, s8, {WS_KVP}")
    for i in range(8):
        a(f"buffer_load_dwordx4 v[{R+4*i}:{R+3+4*i}], v48, s[40:43], s8 offen sc1")
        a("s_add_u32 s8, s8, 6720")
    bar(a)
    a("s_waitcnt vmcnt(0)")
    for half in (4, 2, 1):
        for i in range(half):
            for j in (0, 2):
                a(f"v_pk_add_f32 v[{R+4*i+j}:{R+1+4*i+j}], v[{R+4*i+j}:{R+1+4*i+j}], v[{R+4*(i+half)+j}:{R+1+4*(i+half)+j}]")
    for op in ("v_permlane32_swap_b32", "v_permlane16_swap_b32"):
        for j in range(4): a(f"v_mov_b32 v{R+4+j}, v{R+j}")
        a("s_nop 1")
        for j in range(4): a(f"{op} v{R+j}, v{R+4+j}")
        a("s_nop 1")
        for j in range(4): a(f"v_add_f32 v{R+j}, v{R+j}, v{R+4+j}")
    a(f"""
    v_cvt_pk_bf16_f32 v{R}, v{R}, v{R+1}
    v_cvt_pk_bf16_f32 v{R+2}, v{R+2}, v{R+3}
    v_mov_b32 v{R+1}, s96
    v_mov_b32 v{R+3}, s96
    s_lshl_b32 s70, s5, 13
    s_add_u32 s70, s70, {WS_KVZ}
    s_add_u32 s71, s70, 4096
    s_mul_i32 s9, s4, 224
    s_add_u32 s8, s70, s9
    s_cmp_lt_u32 s4, 30
    s_cselect_b32 exec_lo, 0x3fff, 0
    s_mov_b32 exec_hi, 0
    buffer_store_dwordx4 v[{R}:{R+3}], v49, s[40:43], s8 offen sc1
    s_mov_b64 exec, -1
    """)
    bar(a)
    a(f"v_mov_b32 v{R+25}, s96\nv_mov_b32 v{R+27}, s96\ns_mov_b32 s9, 0")
    a.label("L1_g")
    for i in range(6):
        a(f"buffer_load_dwordx4 v[{R+4*i}:{R+3+4*i}], v18, s[40:43], {'s70' if i < 4 else 's71'} offen offset:{1024*(i%4)} sc1")
    a("s_mov_b32 exec_hi, 15")
    a(f"buffer_load_dwordx4 v[{R+24}:{R+27}], v18, s[40:43], s71 offen offset:2048 sc1")
    a("s_mov_b32 exec_hi, -1")
    a("s_add_u32 s9, s9, 1\ns_waitcnt vmcnt(0)")
    a(f"v_and_b32 v30, v{R+1}, v{R+3}\nv_or_b32 v31, v{R+1}, v{R+3}")
    for i in range(1, 7):
        a(f"v_bitop3_b32 v30, v30, v{R+4*i+1}, v{R+4*i+3} bitop3:0x80")
        a(f"v_or3_b32 v31, v31, v{R+4*i+1}, v{R+4*i+3}")
    a("v_xor_b32 v30, s96, v30\nv_xor_b32 v31, s96, v31\nv_or_b32 v30, v30, v31\nv_cmp_ne_u32 vcc, 0, v30")
    a(f"s_cmp_gt_u32 s9, {SPIN_MAX}\ns_cbranch_scc1 L1_gd\ns_cbranch_vccz L1_gd\ns_sleep 1\ns_branch L1_g")
    a.label("L1_gd")
    a(f"v_add_u32 v50, {LKVZ}, v50")
    for i in range(7):
        a(f"ds_write2_b32 v50, v{R+4*i}, v{R+4*i+2} offset0:{(128*i)%256} offset1:{(128*i)%256+1}")
        if i % 2 == 1: a("v_add_u32 v50, 1024, v50")
    srd(a, 52, 24, 640 * 1280)
    a("s_waitcnt lgkmcnt(0)")
    bar(a)
    bar(a)
    STG = int(OPT.get("stg", 0))
    a("s_mov_b32 s12, 0")
    if STG:
        a(f"s_mul_i32 s14, s69, {160*1280}\ns_add_u32 s14, s14, s64")
        stage_load()
        a("s_add_u32 s69, s69, 1\ns_and_b32 s69, s69, 3\ns_mov_b32 s12, 25600")
    bar(a); bar(a)
    a("s_waitcnt vmcnt(0)")
    bar(a); bar(a)
    if STG: stage_store(0, 0, 10)
    else: call(a, WO_, LK)
    bar(a)
    call(a, WO_, LK)
    if STG: stage_store(0, 10, 17)
    bar(a)
    a("s_waitcnt vmcnt(38)")
    call(a, WO_, LK)
    if STG: stage_store(0, 17, 25)
    a("s_waitcnt vmcnt(25) lgkmcnt(0)")
    bar(a)
    call(a, WO_, LK)
    a("s_waitcnt vmcnt(25)")
    bar(a)
    a("s_waitcnt vmcnt(0)"); bar(a)
    bar(a); bar(a)
    tr_dump(a)
    a.label("L_end")
    a("s_endpgm")
    a.label("L_wo4")
    a("s_mov_b32 m0, s12\ns_add_u32 s12, s12, 20480\ns_mov_b32 s15, 0")
    a.label("L_wo4g")
    a("s_add_u32 s14, s65, s64")
    for p in range(5):
        dma(a, f"v{41+p}", 48, "s14")
        a("s_add_u32 m0, m0, 1024")
        if p < 4: a("s_nop 0")
    wrap_inc(a, "s65", 32 * 1280, 640 * 1280)
    a("s_add_u32 s15, s15, 1\ns_cmp_lt_u32 s15, 4\ns_cbranch_scc1 L_wo4g")
    a("s_setpc_b64 s[62:63]")
    a.label(A_)
    issue_x(a, 44, "s13", "s12")
    issue_w(a, 48, 3, 1280, "s65", "s12", IMG_W)
    wrap_inc(a, "s11", 1, 10); wrap_inc(a, "s12", HS, 6 * HS)
    a("s_setpc_b64 s[62:63]")
    a.label(B_)
    issue_x(a, 72, "s13", "s12")
    issue_w(a, 76, 8, 3840, "s66", "s12", IMG_W)
    issue_w(a, 76, 13, 3840, "s67", "s12", IMG_KV, periods=2, rows_per_period=16)
    wrap_inc(a, "s11", 1, 10); wrap_inc(a, "s12", SLOT, 3 * SLOT)
    a("s_setpc_b64 s[62:63]")
    def lin(n):
        for i in range(n):
            if i % 4 == 0 and i > 0:
                a("s_add_u32 m0, m0, 4096")
                a("s_add_u32 s14, s14, 4096")
            a(f"buffer_load_dwordx4 v18, s[40:43], s14 offen offset:{1024*(i%4)} sc1 lds")
    a.label(KV_)
    a("s_mov_b32 m0, s61")
    a(f"s_mul_i32 s14, s60, {CH}")
    a(f"s_add_u32 s14, s14, {WS_KV}")
    lin(11)
    a("s_add_u32 s60, s60, 1\ns_and_b32 s60, s60, 15")
    wrap_inc(a, "s61", CH, LKV + 4 * CH, LKV)
    a("s_setpc_b64 s[62:63]")
    a.label(P_)
    a("s_mov_b32 m0, s61")
    a("s_mul_i32 s14, s69, 20480")
    a("s_add_u32 s14, s14, s13")
    lin(20)
    a("s_add_u32 s69, s69, 1\ns_and_b32 s69, s69, 3")
    wrap_inc(a, "s61", 20480, LX + 3 * 20480, LX)
    a("s_setpc_b64 s[62:63]")
    a.label(WO_)
    a("s_mov_b32 m0, s12")
    a(f"s_mul_i32 s14, s69, {160*1280}")
    a("s_add_u32 s14, s14, s64")
    a("s_mov_b32 s15, 0")
    a.label("L_wo_g")
    for p in range(5):
        dma(a, f"v{41+p}", 48, "s14")
        a("s_add_u32 m0, m0, 1024")
        if p < 4: a("s_nop 0")
    a(f"s_add_u32 s14, s14, {32*1280}")
    a("s_add_u32 s15, s15, 1\ns_cmp_lt_u32 s15, 5\ns_cbranch_scc1 L_wo_g")
    a("s_add_u32 s69, s69, 1\ns_and_b32 s69, s69, 3")
    a("s_add_u32 s12, s12, 25600")
    a("s_setpc_b64 s[62:63]")
    phi_sub(a); tile_to_lds_sub(a)
    a.label("L_codeend")

def main(out):
    a = Asm()
    a.lines.append(f"; @launch grid=(256,1,1) block=(640,1,1) lds={LDS_TOTAL}")
    a('.amdgcn_target "amdgcn-amd-amdhsa--gfx950"')
    a(".text")
    gen(a)
    a('.section .rodata,"a"')
    open(out, "w").write(a.text() + descriptor(NAME + "_kernel", NV, 102))

if __name__ == "__main__":
    main(sys.argv[1] if len(sys.argv) > 1 else f"cdna_kernels/{NAME}.s")
```

```python
import sys, struct, os
from asmlib import *

NAME = "concat_heads__grouped_kv_mqa__linear_attn_block__prompt"
STAMP = bool(os.environ.get("STAMP"))
OPT = dict(kv.split("=") for kv in os.environ.get("OPT", "").split(",") if kv)
PFB = int(OPT.get("pfb", 0))
ONT = OPT.get("ont", "nt")
MAP48 = int(OPT.get("map48", 0))
WS_OA, WS_OB, WS_KV, WS_KVP, WS_KVZ = 0x0, 0x280000, 0x500000, 0xA00000, 0x700000
PST = 6784
FL_KV, FL_P, FL_H, FL_OB, FL_OA = 0x718000, 0x720000, 0x728000, 0x730000, 0x738000
FL_HB = 0x72C000
LCNT = LMISC_ = 163840 - 8
FORCE_REDO = int(OPT.get('redo', 0))
WS_WPB, WS_WPA = 0x740000, 0x740000 + 8 * 102400
WS_ST = 0x900000
WS_SIZE = 0xE00000
TILE = 2816
CH = 4 * TILE
XBYTES = 2048 * 1280
SLOT = 38912
HS = SLOT // 2
IMG_W, IMG_KV = 8192, 18432
LKV = 3 * SLOT
LMISC = 163840 - 16
LKVZ = 112640
LMX = LKV
LWKV = LKV + 20480
LQ = 2 * SLOT
LFR, LPQ, LPART = SLOT, SLOT + 20480, 0
LX = 102400
LRP = 2 * SLOT + 12288
LDS_TOTAL = 163840
SPIN_MAX = 1 << 17
def f32(x): return "0x%08x" % struct.unpack("<I", struct.pack("<f", x))[0]
LOG2E = 1.4426950408889634
CSCALE = LOG2E / (20 ** 0.5)

S0, S1, PP, KA, KB, QB, V0, V1, QA, OO, BACC, BFR = 4, 20, 36, 44, 48, 50, 52, 56, 60, 64, 80, 112
aKA, aKB, aV0, aV1, bW, bX = 136, 137, 138, 139, 140, 141
OAD0, OAD1 = 145, 146
PWR = 147
JA, JB, QF0, QF1, AP0, AP1 = 151, 152, 153, 154, 155, 156
tW1, tW2, tX1, tX2, tO, TL0, TL1 = 157, 158, 159, 160, 161, 162, 163
NV = 165
CPF4 = int(OPT.get('cpf4', 1))
PQA, PQB = 128, 132
T = 4
AFR = [4, 16, 28, 40]
MASKS = [92, 94, 98, 100]
POS = [[0, 1, 3, 4, 2], [1, 2, 0, 3, 4], [2, 3, 4, 0, 1], [3, 4, 0, 2, 1]]
INV = [[POS[r].index(p) for p in range(5)] for r in range(4)]
def pack3(tab):
    x = 0
    for r in range(4):
        for j in range(5): x |= tab[r][j] << (3 * (5 * r + j))
    return x

def tr(a):
    if not STAMP: return
    a("""
    s_waitcnt lgkmcnt(0)
    s_sub_u32 s90, s88, s84
    s_memtime s[88:89]
    s_mov_b32 m0, s85
    s_add_u32 s85, s85, 1
    v_writelane_b32 v40, s90, m0
    """)
def tr_init(a):
    if STAMP: a("s_mov_b32 s85, 0\nv_mov_b32 v40, 0\ns_mov_b32 s88, s84")
def tr_dump(a):
    if not STAMP: return
    tr(a)
    a(f"""
    s_lshl_b32 s8, s2, 1
    s_add_u32 s8, s8, s10
    s_lshl_b32 s8, s8, 8
    s_add_u32 s8, s8, {WS_ST + 0x40000}
    v_lshlrev_b32 v8, 2, v0
    buffer_store_dword v40, v8, s[40:43], s8 offen
    """)
def stamp_end(a):
    if not STAMP: return
    a(f"""
    s_memtime s[12:13]
    s_waitcnt vmcnt(0)
    s_memtime s[88:89]
    s_memrealtime s[90:91]
    s_waitcnt lgkmcnt(0)
    s_mov_b64 exec, -1
    s_sub_u32 s88, s88, s84
    s_sub_u32 s12, s12, s84
    v_mov_b32 v4, s86
    v_mov_b32 v5, s90
    v_mov_b32 v6, s88
    v_mov_b32 v7, s12
    s_lshl_b32 s8, s2, 4
    s_add_u32 s8, s8, s3
    s_lshl_b32 s8, s8, 4
    s_add_u32 s8, s8, {WS_ST}
    v_mov_b32 v8, 0
    buffer_store_dwordx4 v[4:7], v8, s[40:43], s8 offen
    """)
    for i in range(8): a(f"s_sub_u32 s{16+2*i}, s{16+2*i}, s84\nv_mov_b32 v{12+i}, s{16+2*i}")
    a(f"s_sub_u32 s8, s8, {WS_ST}\ns_lshl_b32 s8, s8, 1\ns_add_u32 s8, s8, {WS_ST + 0xC0000}")
    a("buffer_store_dwordx4 v[12:15], v8, s[40:43], s8 offen\nbuffer_store_dwordx4 v[16:19], v8, s[40:43], s8 offen offset:16")
CTP = OPT.get("ct", "").split("+")
def ct(a, name):
    if STAMP and name in CTP:
        i = CTP.index(name)
        a(f"s_memtime s[{16+2*i}:{17+2*i}]")
def gs(a, idx, t0="v36", t1="v37"):
    if not STAMP: return
    a(f"""
    s_memrealtime s[14:15]
    s_waitcnt lgkmcnt(0)
    v_mov_b32 {t0}, s14
    s_lshl_b32 s14, s2, 6
    s_add_u32 s14, s14, {WS_ST + 0x80000 + 4*idx}
    v_mov_b32 {t1}, 0
    buffer_store_dword {t0}, {t1}, s[40:43], s14 offen
    """)
def pad(a, where):
    p = OPT.get("pad", "")
    if not p.startswith(where + ":"): return
    l = a.newlabel("Lpad")
    a.label(l)
    a(f"s_memrealtime s[14:15]\ns_waitcnt lgkmcnt(0)\ns_sub_u32 s14, s14, s96\ns_cmp_lt_u32 s14, {p.split(':')[1]}\ns_cbranch_scc1 {l}")
def bar(a):
    a("s_barrier"); tr(a)

def dma(a, voff, srdi, soff, extra=""):
    a(f"buffer_load_dwordx4 {voff}, s[{srdi}:{srdi+3}], {soff} offen {extra} lds")
def issue_x(a, srdi, sbase, lds_sgpr):
    a(f"s_lshl_b32 s15, s10, 10")
    a(f"s_add_u32 m0, s15, {lds_sgpr}")
    a(f"s_lshl_b32 s14, s11, 7")
    a(f"s_add_u32 s14, s14, {sbase}")
    for jj in range(4):
        dma(a, "v2", srdi, "s14")
        if jj < 3:
            a("s_add_u32 m0, m0, 2048")
            a("s_add_u32 s14, s14, 20480")
def issue_w(a, srdi, voffs, ld, sbase, lds_sgpr, ldsoff, periods=1, rows_per_period=32):
    a(f"s_mul_i32 s15, s10, {5120*periods}")
    a(f"s_add_u32 s15, s15, {lds_sgpr}")
    a(f"s_add_u32 m0, s15, {ldsoff}")
    a(f"s_mul_i32 s14, s11, {64*ld}")
    a(f"s_add_u32 s14, s14, {sbase}")
    for per in range(periods):
        for p in range(5):
            dma(a, f"v{voffs+p}", srdi, "s14")
            if not (per == periods - 1 and p == 4):
                a("s_add_u32 m0, m0, 1024")
                a(f"s_add_u32 s14, s14, {rows_per_period*ld}" if p == 4 else "s_nop 0")
def wrap_inc(a, reg, step, limit, base=0):
    a(f"s_add_u32 {reg}, {reg}, {step}")
    a(f"s_cmp_eq_u32 {reg}, {limit}")
    a(f"s_cselect_b32 {reg}, {base}, {reg}")
def set_exec(a, n):
    m = (1 << n) - 1
    a(f"s_mov_b32 exec_lo, {m & 0xffffffff:#x}\ns_mov_b32 exec_hi, {m >> 32:#x}")
def poll(a, soff, nlanes, tmp="v30", addr="v19"):
    lp, dn = a.newlabel("Lpoll"), a.newlabel("Lpd")
    set_exec(a, nlanes)
    a("s_mov_b32 s9, 0")
    a.label(lp)
    a(f"buffer_load_dword {tmp}, {addr}, s[40:43], {soff} offen sc1")
    a("s_add_u32 s9, s9, 1")
    a("s_waitcnt vmcnt(0)")
    a(f"v_cmp_ne_u32 vcc, s96, {tmp}")
    a(f"s_cmp_gt_u32 s9, {SPIN_MAX}")
    a(f"s_cbranch_scc1 {dn}")
    a(f"s_cbranch_vccz {dn}")
    a("s_sleep 1")
    a(f"s_branch {lp}")
    a.label(dn)
    a("s_mov_b64 exec, -1")
def publish(a, soff, tmp, zero):
    a(f"v_mov_b32 {tmp}, s96")
    a(f"v_mov_b32 {zero}, 0")
    a("s_mov_b64 exec, 1")
    a(f"buffer_store_dword {tmp}, {zero}, s[40:43], {soff} offen sc1")
    a("s_mov_b64 exec, -1")
def get_nonce(a, tmp, addr):
    a(f"v_mov_b32 {addr}, {LMISC}")
    a(f"ds_read_b32 {tmp}, {addr}")
    a("s_waitcnt lgkmcnt(0)")
    a(f"v_readfirstlane_b32 s96, {tmp}")
def call(a, lbl, link="s[58:59]"):
    a(f"s_call_b64 {link}, {lbl}")
def pf_rows(a, vd, ld, s0, s1):
    a(f"""
    v_mul_u32_u24 v{vd}, 52429, v0
    v_lshrrev_b32 v{vd}, 18, v{vd}
    v_mul_u32_u24 v{vd+1}, 5, v{vd}
    v_sub_u32 v{vd+1}, v0, v{vd+1}
    v_mul_u32_u24 v{vd}, {ld}, v{vd}
    v_lshl_add_u32 v{vd}, v{vd+1}, 7, v{vd}
    s_mul_i32 {s0}, s7, {20*ld}
    s_and_b32 s8, s6, 1
    s_mul_i32 s8, s8, 640
    s_add_u32 {s0}, {s0}, s8
    s_add_u32 {s1}, {s0}, {10*ld}
    """)
def pf_x(a, srdi, vaddr, vd):
    a(f"""
    s_lshr_b32 s8, s6, 1
    s_mul_i32 s8, s8, {512*1280}
    s_mul_i32 s9, s7, 20480
    s_add_u32 s8, s8, s9
    s_add_u32 s9, s8, 8192
    buffer_load_dword v{vd}, {vaddr}, s[{srdi}:{srdi+3}], s8 offen
    buffer_load_dword v{vd+1}, {vaddr}, s[{srdi}:{srdi+3}], s9 offen
    s_add_u32 s9, s8, 16384
    s_mov_b32 exec_hi, 0
    buffer_load_dword v{vd+2}, {vaddr}, s[{srdi}:{srdi+3}], s9 offen
    s_mov_b32 exec_hi, -1
    """)

def phi_sub(a):
    a.label("g_pack")
    a("s_mov_b64 exec, -1")
    for i in range(16):
        a(f"v_cvt_pk_bf16_f32 v{BACC+i}, v{BACC+2*i}, v{BACC+2*i+1}")
    a("s_setpc_b64 s[58:59]")
def tile_to_lds_sub(a):
    a.label("g_t2l")
    for half in range(2):
        if half == 1:
            a("s_cmp_eq_u32 s3, 2\ns_cbranch_scc1 g_t2l_end")
        for blk in range(2):
            for q in range(2):
                d = BACC + 8 * blk + 4 * half + 2 * q
                a(f"ds_write_b64 v{TL0+half}, v[{d}:{d+1}] offset:{5120*blk + 16*q}")
    a.label("g_t2l_end")
    a("s_setpc_b64 s[58:59]")
def read_qfrag(a, qa, qb):
    a(f"ds_read2_b64 v[{qa}:{qa+3}], v{QF1} offset0:0 offset1:1")
    a(f"ds_read_b64 v[{qb}:{qb+1}], v{QF0} offset:32")
def o_epilogue(a, O, wsoff, eps):
    if eps:
        a(f"v_add_f32 v{O+12}, {f32(1e-6)}, v{O+12}")
    a(f"v_rcp_f32 v{O+12}, v{O+12}")
    a(f"s_add_u32 s8, s81, {wsoff}")
    a(f"s_add_u32 s9, s82, {wsoff}")
    for i in range(0, 12, 2):
        a(f"v_pk_mul_f32 v[{O+i}:{O+i+1}], v[{O+i}:{O+i+1}], v[{O+12}:{O+13}] op_sel_hi:[1,0]")
    for i in range(6):
        a(f"v_cvt_pk_bf16_f32 v{O+i}, v{O+2*i}, v{O+2*i+1}")
    a(f"buffer_store_dwordx4 v[{O}:{O+3}], v{OAD1}, s[40:43], s8 offen sc1")
    a("s_mov_b32 exec_hi, 0")
    a(f"buffer_store_dwordx2 v[{O+4}:{O+5}], v{OAD0}, s[40:43], s9 offen sc1")
    a("s_mov_b32 exec_hi, -1")
def rowmax(a, S, dst, first=True):
    regs = [f"v{S+i}" for i in range(16)]
    if first:
        a(f"v_max3_f32 v{dst}, {regs[0]}, {regs[1]}, {regs[2]}")
        rest = regs[3:]
    else:
        rest = regs
    while len(rest) >= 2:
        a(f"v_max3_f32 v{dst}, v{dst}, {rest[0]}, {rest[1]}")
        rest = rest[2:]
    if rest:
        a(f"v_max_f32 v{dst}, v{dst}, {rest[0]}")
def set_m(a, m, tmp, keep):
    a(f"""
    v_mov_b32 v{tmp}, v{m}
    s_nop 1
    v_permlane32_swap_b32 v{m}, v{tmp}
    s_nop 1
    v_max_f32 v{keep}, v{m}, v{tmp}
    s_mov_b32 exec_lo, 0
    v_sub_f32 v{m}, 0, v{keep}
    v_and_b32 v{tmp}, 0xffff0000, v{m}
    v_sub_f32 v{m}, v{m}, v{tmp}
    v_lshrrev_b32 v{QB}, 16, v{tmp}
    v_and_b32 v{tmp}, 0xffff0000, v{m}
    v_sub_f32 v{m}, v{m}, v{tmp}
    v_or_b32 v{QB}, v{QB}, v{tmp}
    v_lshrrev_b32 v{QB+1}, 16, v{m}
    s_mov_b32 exec_lo, -1
    """)

def precompute(a):
    t = 12
    a(f"""
    v_and_b32 v1, 31, v0
    v_lshrrev_b32 v2, 5, v0
    v_lshrrev_b32 v3, 2, v1
    v_add_u32 v3, 1, v3
    v_and_b32 v3, 2, v3
    v_mul_u32_u24 v3, 6, v3
    v_xor_b32 v3, v1, v3
    v_lshlrev_b32 v{OAD0}, 3, v0
    v_lshlrev_b32 v{OAD1}, 4, v0
    s_and_b32 s38, s3, 1
    s_lshr_b32 s39, s3, 1
    s_mov_b32 s76, 0
    s_mov_b32 s77, 128
    s_cmp_eq_u32 s3, 1
    s_cselect_b32 s76, 32, s76
    s_cselect_b32 s77, 64, s77
    s_cmp_eq_u32 s3, 2
    s_cselect_b32 s76, 96, s76
    s_cselect_b32 s77, 96, s77
    s_sub_u32 s78, s3, 3
    s_lshl_b32 s78, s78, 2
    s_lshr_b32 s78, 0x20431, s78
    s_and_b32 s78, s78, 15
    s_lshl_b32 s8, s78, 6
    s_add_u32 s8, s8, {IMG_KV}
    s_add_u32 s9, s76, {IMG_W}
    s_sub_u32 s64, s77, s76
    s_cmp_lt_u32 s3, 3
    s_cselect_b32 s60, s9, s8
    s_cselect_b32 s64, s64, 32
    s_mov_b32 s61, 320
    s_cselect_b32 s61, 160, s61
    v_bfe_u32 v{t}, v0, 2, 2
    v_lshl_add_u32 v{t+1}, v2, 3, v{t}
    v_mul_u32_u24 v{t+1}, s61, v{t+1}
    v_bfe_u32 v{t+3}, v0, 4, 1
    v_mul_u32_u24 v{t+2}, s64, v{t+3}
    v_and_b32 v{t+6}, 3, v0
    v_lshlrev_b32 v{t+6}, 3, v{t+6}
    v_add3_u32 v{t+1}, v{t+1}, v{t+2}, v{t+6}
    v_add_u32 v{bW}, s60, v{t+1}
    v_bfe_u32 v{t+2}, v0, 1, 3
    v_xor_b32 v{t+2}, v{t+2}, v2
    v_lshlrev_b32 v{t+2}, 4, v{t+2}
    v_lshl_or_b32 v{bX}, v1, 7, v{t+2}
    v_xor_b32 v{bX+1}, 32, v{bX}
    v_xor_b32 v{bX+2}, 64, v{bX}
    v_xor_b32 v{bX+3}, 96, v{bX}
    """)
    a(f"""
    s_mul_i32 s80, s4, {64*2560}
    s_mul_i32 s8, s5, 160
    s_add_u32 s80, s80, s8
    s_cmp_ge_u32 s3, 4
    s_cbranch_scc1 PC_tz
    s_lshl_b32 s9, s39, 6
    s_add_u32 s80, s80, s9
    s_mul_i32 s10, s38, {32*2560}
    s_add_u32 s80, s80, s10
    s_mul_i32 s8, s38, 5120
    s_add_u32 s8, s8, {LX}
    s_lshl_b32 s9, s39, 10
    v_add_u32 v{tW1}, s9, v{OAD1}
    s_lshl_b32 s9, s39, 8
    s_add_u32 s9, s9, 2560
    v_mul_u32_u24 v{tW2}, 3200, v2
    v_lshl_add_u32 v{tW2}, v1, 3, v{tW2}
    v_add_u32 v{tW2}, s9, v{tW2}
    v_add_u32 v{tX1}, s8, v{OAD1}
    v_add_u32 v{tX2}, s8, v{OAD0}
    s_branch PC_td
    """)
    a.label("PC_tz")
    a(f"""
    s_sub_u32 s8, s3, 4
    s_mul_i32 s10, s8, {16*2560}
    s_add_u32 s80, s80, s10
    s_lshl_b32 s9, s38, 4
    s_lshr_b32 s8, s8, 1
    s_mul_i32 s8, s8, 5120
    s_add_u32 s8, s8, {LX}
    v_lshrrev_b32 v{t}, 4, v0
    v_and_b32 v{t+2}, 15, v0
    v_mul_u32_u24 v{tW1}, 3200, v2
    v_lshl_add_u32 v{tW1}, v1, 4, v{tW1}
    v_add_u32 v{tW1}, 2048, v{tW1}
    v_mul_u32_u24 v{tW2}, 3200, v{t}
    v_lshl_add_u32 v{tW2}, v{t+2}, 3, v{tW2}
    v_add_u32 v{tW2}, {2560+512}, v{tW2}
    v_add_u32 v{t+2}, s9, v{t+2}
    v_lshl_add_u32 v{t+4}, v{t}, 5, v{t+2}
    v_lshlrev_b32 v{tX2}, 3, v{t+4}
    v_add_u32 v{tX2}, s8, v{tX2}
    v_lshlrev_b32 v{tX1}, 4, v{t+4}
    v_add_u32 v{tX1}, s8, v{tX1}
    """)
    a.label("PC_td")
    a(f"v_mov_b32 v{tO}, 0")
    a(f"""
    v_add_u32 v{aKA}, {LKV}, v{OAD1}
    v_lshlrev_b32 v{aKB}, 3, v1
    v_add_u32 v{aKB}, {LKV+1024}, v{aKB}
    v_mul_u32_u24 v{aV0}, 320, v2
    v_lshl_add_u32 v{aV0}, v1, 4, v{aV0}
    v_add_u32 v{aV0}, {LKV+1280}, v{aV0}
    v_add_u32 v{aV1}, 640, v{aV0}
    v_mov_b32 v{AP0}, v3
    s_mov_b32 exec_lo, 0x0ff00000
    s_mov_b32 exec_hi, 0
    v_mov_b32 v{aV0}, {LKV+2560+16*4}
    v_mov_b32 v{aV1}, {LKV+2560+16*12}
    s_mov_b32 exec_lo, 0xf0000000
    v_mov_b32 v{aV0}, {LKV+2560+16*12}
    v_mov_b32 v{aV1}, {LKV+2560+16*4}
    s_mov_b32 exec_lo, 0
    s_mov_b32 exec_hi, 0x0ff00000
    v_mov_b32 v{aV0}, {LKV+2560+16*8}
    v_mov_b32 v{aV1}, {LKV+2560}
    s_mov_b32 exec_hi, 0xf0000000
    v_mov_b32 v{aV0}, {LKV+2560}
    v_mov_b32 v{aV1}, {LKV+2560+16*8}
    s_mov_b32 exec_lo, 0xeef00000
    s_mov_b32 exec_hi, 0xeef00000
    v_add_u32 v{aV0}, 16, v{aV0}
    v_add_u32 v{aV1}, 16, v{aV1}
    s_mov_b32 exec_lo, 0xfff00000
    s_mov_b32 exec_hi, 0xfff00000
    v_mov_b32 v{AP0}, 20
    s_mov_b32 exec_lo, 0
    s_mov_b32 exec_hi, -1
    v_mov_b32 v{aKB}, {LKV+2560}
    s_mov_b64 exec, -1
    s_mul_i32 s8, s39, 840
    s_add_u32 s8, s8, {LKVZ}
    v_mul_u32_u24 v{AP0}, 40, v{AP0}
    v_add_u32 v{AP0}, s8, v{AP0}
    v_lshl_add_u32 v{AP1}, v2, 4, v{AP0}
    s_lshl_b32 s10, s4, 3
    s_add_u32 s10, s10, s5
    s_lshl_b32 s10, s10, 1
    s_add_u32 s10, s10, s38
    s_mul_i32 s10, s10, 5120
    s_lshl_b32 s81, s39, 10
    s_add_u32 s81, s81, s10
    s_lshl_b32 s82, s39, 8
    s_add_u32 s82, s82, s10
    s_add_u32 s82, s82, 4096
    s_mul_i32 s8, s38, 5120
    s_mul_i32 s9, s39, 40
    s_add_u32 s8, s8, s9
    s_add_u32 s8, s8, {LQ}
    v_mul_u32_u24 v{t}, 160, v1
    v_add_u32 v{QF0}, s8, v{t}
    v_lshl_add_u32 v{QF1}, v2, 4, v{QF0}
    v_lshl_add_u32 v{t}, v2, 3, v{t}
    v_add_u32 v{t}, {LQ}, v{t}
    v_add_u32 v{TL0}, s76, v{t}
    v_add_u32 v{TL1}, s77, v{t}
    s_add_u32 s9, s3, 1
    s_lshr_b32 s9, s9, 1
    s_add_u32 s9, s9, 2
    s_sub_u32 s10, s3, 5
    s_cmp_ge_u32 s3, 5
    s_cselect_b32 s12, s10, s39
    s_cselect_b32 s13, 0, s9
    s_lshl_b32 s10, s12, 12
    s_lshl_b32 s9, s13, 12
    v_add_u32 v{JA}, s10, v{OAD1}
    v_add_u32 v{JB}, s9, v{OAD1}
    s_lshl_b32 s10, s12, 5
    s_lshl_b32 s9, s13, 5
    s_sub_u32 s9, s9, 80
    v_lshlrev_b32 v{t}, 2, v2
    v_add_u32 v{t}, s10, v{t}
    v_add_u32 v{t+1}, s9, v1
    v_and_b32 v{t+2}, 0xffff, v{t+1}
    v_mul_u32_u24 v{t+2}, 3277, v{t+2}
    v_lshrrev_b32 v{t+2}, 16, v{t+2}
    v_mul_u32_u24 v{t+3}, 80, v{t+1}
    s_cmp_ge_u32 s3, 5
    s_cbranch_scc1 PC_z
    """)
    for z in range(2):
        for q in range(4):
            m = MASKS[q]
            a(f"v_add_u32 v{t+4}, {8*q}, v{t}")
            a(f"v_mul_u32_u24 v{t+5}, 3277, v{t+4}")
            a(f"v_lshrrev_b32 v{t+5}, 16, v{t+5}")
            if z == 0:
                a(f"v_lshl_add_u32 v{PWR+q}, v{t+4}, 2, v{t+3}")
                a(f"v_cmp_eq_u32 s[{m}:{m+1}], v{t+5}, v{t+2}")
            else:
                a(f"v_add_u32 v{PWR+q}, 1, v{t+5}")
                a(f"v_mul_u32_u24 v{PWR+q}, 1600, v{PWR+q}")
                a(f"v_lshl_add_u32 v{PWR+q}, v{t+4}, 2, v{PWR+q}")
                a(f"v_cmp_gt_u32 s[{m}:{m+1}], 4, v{t+5}")
                a(f"s_and_b32 s{m}, s{m}, 1\ns_and_b32 s{m+1}, s{m+1}, 1")
        if z == 0:
            a("s_branch PC_zd")
            a.label("PC_z")
    a.label("PC_zd")
    for i in list(range(V1, V1 + 4)) + list(range(OO, BFR + 24)): a(f"v_mov_b32 v{i}, 0")

def gen(a):
    K = NAME + "_kernel"
    kernel_begin(a, K)
    if STAMP:
        a("s_memtime s[84:85]\ns_memrealtime s[86:87]")
    a("s_getpc_b64 s[44:45]")
    a.label("L_pc")
    a(f"""
    s_mov_b32 s46, L_codeend-L_pc
    s_mov_b32 s47, 0x20000
    v_lshlrev_b32 v4, {9 if CPF4 else 7}, v0
    s_lshl_b32 s8, s2, 4
    s_and_b32 s8, s8, {0x180 if CPF4 else 0}
    buffer_load_dword v164, v4, s[44:47], s8 offen
    s_cmp_ge_u32 s2, 256
    s_cbranch_scc1 L_end
    s_load_dwordx16 s[16:31], s[0:1], 0
    s_load_dwordx4 s[32:35], s[0:1], 64
    s_load_dwordx2 s[36:37], s[0:1], 80
    v_lshrrev_b32 v1, 6, v0
    v_and_b32 v0, 63, v0
    v_readfirstlane_b32 s3, v1
    s_and_b32 s6, s2, 7
    s_lshr_b32 s7, s2, 3
    """)
    if MAP48:
        a("s_lshl_b32 s4, s6, 2\ns_lshr_b32 s8, s7, 3\ns_add_u32 s4, s4, s8\ns_and_b32 s5, s7, 7")
    else:
        a("s_lshr_b32 s4, s6, 1\ns_lshl_b32 s4, s4, 3\ns_lshr_b32 s8, s7, 2\ns_add_u32 s4, s4, s8\ns_and_b32 s5, s6, 1\ns_lshl_b32 s5, s5, 2\ns_and_b32 s8, s7, 3\ns_add_u32 s5, s5, s8")
    a(f"""
    s_cmp_lt_u32 s3, 8
    s_cbranch_scc1 C_start
    """)
    a("s_setprio 2")
    a("s_sub_u32 s10, s3, 8")
    a("s_mul_i32 s13, s4, 81920")
    a("v_lshlrev_b32 v18, 4, v0")
    a("s_cmp_eq_u32 s10, 1\ns_cbranch_scc1 L_mw")
    a("""
    v_lshrrev_b32 v20, 4, v0
    v_xor_b32 v21, v20, v0
    v_and_b32 v21, 15, v21
    v_lshlrev_b32 v21, 4, v21
    v_mul_u32_u24 v20, 1280, v20
    """)
    for j in range(4):
        a(f"v_xor_b32 v{28+j}, {64*j}, v21")
        a(f"v_add_u32 v{28+j}, v{28+j}, v20")
        if j < 3: a("v_add_u32 v20, 5120, v20")
    a(f"""
    s_mov_b32 m0, {LMX}
    s_lshr_b32 s14, s5, 1
    s_mul_i32 s14, s14, 20480
    s_add_u32 s14, s14, s13
    s_mov_b32 s15, 0
    s_waitcnt lgkmcnt(0)
    """)
    srd(a, 44, 16, XBYTES)
    a.label("L_mx")
    for j in range(4):
        dma(a, f"v{28+j}", 44, "s14")
        a("s_add_u32 m0, m0, 1024")
        a("s_add_u32 s14, s14, 256" if j == 3 else "s_nop 0")
    a("s_add_u32 s15, s15, 1\ns_cmp_lt_u32 s15, 5\ns_cbranch_scc1 L_mx")
    a("s_branch L_md")
    a.label("L_mw")
    a(f"s_mov_b32 m0, {LWKV}\ns_mov_b32 s14, 0")
    a("s_waitcnt lgkmcnt(0)")
    a("s_bitcmp1_b32 s5, 0")
    a("s_cselect_b32 s52, s22, s20")
    a("s_cselect_b32 s53, s23, s21")
    a("s_mov_b32 s54, 25600\ns_mov_b32 s55, 0x20000")
    a.label("L_mwl")
    for i in range(4): a(f"buffer_load_dwordx4 v18, s[52:55], s14 offen offset:{1024*i} lds")
    a("s_add_u32 m0, m0, 4096\ns_add_u32 s14, s14, 4096\ns_cmp_lt_u32 s14, 24576\ns_cbranch_scc1 L_mwl")
    a("buffer_load_dwordx4 v18, s[52:55], s14 offen lds")
    srd(a, 44, 16, XBYTES)
    a("s_branch L_md")
    a.label("C_start")
    a("s_cmp_lg_u32 s3, 4\ns_cbranch_scc1 C_pre")
    a("s_cmp_ge_u32 s2, 8\ns_cbranch_scc1 C_pre")
    a("s_memrealtime s[8:9]\ns_waitcnt lgkmcnt(0)\ns_or_b32 s8, s8, 1")
    srd(a, 44, 34, 256)
    a("v_mov_b32 v8, s8\nv_mov_b32 v9, 0\nv_mov_b32 v10, 0\ns_mov_b64 exec, 1")
    a("buffer_atomic_cmpswap v[8:9], v10, s[44:47], 0 offen sc1")
    a("s_mov_b64 exec, -1")
    a.label("C_pre")
    precompute(a)
    a("s_waitcnt lgkmcnt(0)")
    srd(a, 40, 36, WS_SIZE)
    a("s_cmp_lt_u32 s3, 3\ns_cbranch_scc1 A_q")
    a("s_cmp_eq_u32 s3, 5\ns_cbranch_scc1 A_kvpoll")
    a("s_cmp_lt_u32 s3, 6\ns_cbranch_scc1 A_bars")
    srd(a, 44, 34, 256)
    a(f"""
    v_mov_b32 v10, 0
    v_and_b32 v20, 15, v0
    v_lshrrev_b32 v21, 4, v0
    v_xor_b32 v22, v20, v21
    v_lshlrev_b32 v22, 4, v22
    v_lshl_add_u32 v22, v20, 8, v22
    v_add_u32 v22, {LMX}, v22
    v_xor_b32 v23, 64, v22
    v_xor_b32 v24, 128, v22
    v_xor_b32 v25, 192, v22
    v_bfe_u32 v26, v0, 2, 2
    v_lshl_add_u32 v26, v21, 3, v26
    v_mul_u32_u24 v26, 40, v26
    v_and_b32 v27, 3, v0
    v_lshl_add_u32 v26, v27, 3, v26
    s_lshl_b32 s8, s38, 5
    s_add_u32 s8, s8, {LWKV}
    v_add_u32 v26, s8, v26
    s_lshl_b32 s12, s4, 1
    s_lshr_b32 s8, s5, 2
    s_add_u32 s12, s12, s8
    s_mul_i32 s12, s12, {TILE}
    s_add_u32 s12, s12, {WS_KV}
    s_bfe_u32 s13, s5, 0x10001
    s_lshl_b32 s55, s4, 4
    s_add_u32 s55, s55, s5
    s_lshl_b32 s55, s55, 1
    s_add_u32 s55, s55, s38
    s_lshl_b32 s55, s55, 2
    s_add_u32 s55, s55, {FL_KV}
    v_and_b32 v27, 1, v21
    s_mov_b32 s56, 0
    s_mov_b64 s[48:49], -1
    """)
    for i in range(12, 16): a(f"v_mov_b32 v{i}, 0")
    MF = [BACC + 8 * i for i in range(4)]
    def mini(lbl, orient):
        def mm(st):
            x, w, ac = v(MF[st], 4), v(MF[st] + 4, 4), v(12, 4)
            a(f"v_mfma_f32_16x16x32_bf16 {ac}, {w}, {x}, {ac}" if orient == "R" else f"v_mfma_f32_16x16x32_bf16 {ac}, {x}, {w}, {ac}")
        a("s_barrier")
        a("buffer_load_dword v11, v10, s[44:47], 0 offen sc1")
        a.label(lbl)
        for st in range(4):
            f = MF[st]
            a(f"ds_read_b128 v[{f}:{f+3}], v{22+st}")
            for hf in range(2):
                a(f"ds_read_b64_tr_b16 v[{f+4+2*hf}:{f+5+2*hf}], v26 offset:{(32*st+4*hf)*40}")
            a(f"v_add_u32 v{22+st}, 4096, v{22+st}")
            a("s_waitcnt lgkmcnt(9)")
            mm((st + 1) % 4)
        a("v_add_u32 v26, 5120, v26")
        a(f"s_add_u32 s56, s56, 1\ns_cmp_lt_u32 s56, 5\ns_cbranch_scc1 {lbl}")
        for st, w in ((1, 6), (2, 3), (3, 0)):
            a(f"s_waitcnt lgkmcnt({w})"); mm(st)
    a("s_bitcmp1_b32 s5, 0")
    a("s_cbranch_scc1 M_v")
    a(f"""
    s_lshl_b32 s8, s13, 4
    v_add_u32 v20, s8, v20
    v_lshlrev_b32 v28, 4, v20
    v_lshl_add_u32 v28, v2, 9, v28
    v_lshl_add_u32 v28, v27, 3, v28
    s_cmp_eq_u32 s3, 6
    s_cbranch_scc1 M_k0
    v_lshlrev_b32 v28, 3, v20
    v_add_u32 v28, 1024, v28
    s_mov_b32 exec_lo, 0xffff0000
    v_lshlrev_b32 v28, 3, v20
    v_add_u32 v28, 2560, v28
    s_mov_b32 exec_lo, -1
    s_mov_b32 s49, 0
    """)
    a.label("M_k0")
    mini("M_kl", "R")
    a("s_nop 7")
    a("v_cvt_pk_bf16_f32 v12, v12, v13\nv_cvt_pk_bf16_f32 v13, v14, v15")
    a("s_cmp_eq_u32 s3, 6\ns_cbranch_scc1 M_st")
    a("s_mov_b32 exec_lo, 0xffff0000")
    a("v_mov_b32 v12, 0x3f803f80\nv_mov_b32 v13, 0x3f803f80")
    a("s_mov_b32 exec_lo, 0xcccc0000\nv_mov_b32 v12, 0\nv_mov_b32 v13, 0")
    a("s_branch M_st")
    a.label("M_v")
    a(f"""
    s_mul_i32 s8, s13, 640
    s_add_u32 s12, s12, s8
    s_lshl_b32 s8, s38, 8
    s_add_u32 s12, s12, s8
    s_add_u32 s12, s12, 1280
    v_lshrrev_b32 v28, 2, v20
    v_add_u32 v28, 1, v28
    v_and_b32 v28, 2, v28
    v_mul_u32_u24 v28, 6, v28
    v_xor_b32 v28, v20, v28
    v_mul_u32_u24 v29, 320, v27
    v_lshl_add_u32 v29, v2, 3, v29
    v_lshl_add_u32 v28, v28, 4, v29
    s_cmp_eq_u32 s3, 6
    s_cselect_b32 s48, -1, 0x000f000f
    s_mov_b32 s49, s48
    """)
    mini("M_vl", "C")
    a("s_nop 7")
    a("v_cvt_pk_bf16_f32 v12, v12, v13\nv_cvt_pk_bf16_f32 v13, v14, v15")
    a.label("M_st")
    a("s_mov_b64 exec, s[48:49]")
    a("buffer_store_dwordx2 v[12:13], v28, s[40:43], s12 offen sc1")
    a("s_mov_b64 exec, -1")
    gs(a, 0, "v30", "v31")
    a("s_barrier")
    for i in range(32): a(f"v_mov_b32 v{BACC+i}, 0")
    a("s_barrier")
    a("s_mov_b32 s9, 0")
    a.label("A_np")
    a("s_add_u32 s9, s9, 1")
    a("s_waitcnt vmcnt(0)")
    a("v_cmp_eq_u32 vcc, 0, v11")
    a(f"s_cmp_gt_u32 s9, {SPIN_MAX}\ns_cbranch_scc1 A_nd\ns_cbranch_vccz A_nd\ns_sleep 1")
    a("buffer_load_dword v11, v10, s[44:47], 0 offen sc1")
    a("s_branch A_np")
    a.label("A_nd")
    a("s_mov_b64 exec, 1")
    a("buffer_store_dword v11, v10, s[40:43], s55 offen sc1")
    a("s_mov_b64 exec, -1")
    a(f"v_mov_b32 v5, {LMISC}\nds_write_b32 v5, v11\nds_write_b32 v5, v10 offset:8\ns_waitcnt lgkmcnt(0)")
    gs(a, 1, "v30", "v31")
    a("s_branch A_bars8")
    a.label("A_kvpoll")
    a("v_lshrrev_b32 v20, 1, v0\nv_lshlrev_b32 v20, 7, v20\nv_and_b32 v21, 1, v0\nv_lshl_add_u32 v20, v21, 4, v20")
    a(f"v_mov_b32 v18, v{OAD1}")
    a("s_and_b32 s60, s7, 15")
    a(f"s_mov_b32 s61, {LKV}\ns_mov_b32 s12, {FL_KV}\ns_mov_b32 s9, 0")
    for i in range(7): a("s_barrier")
    get_nonce(a, "v22", "v23")
    a("s_barrier\ns_sleep 3")
    def kvl():
        a("buffer_load_dwordx4 v[24:27], v20, s[40:43], s12 offen sc1")
        a("buffer_load_dwordx4 v[28:31], v20, s[40:43], s12 offen offset:32 sc1")
    kvl()
    a("s_barrier\ns_barrier\ns_barrier")
    a.label("A_kq")
    a("s_add_u32 s9, s9, 1")
    a("s_waitcnt vmcnt(0)")
    for i in range(8): a(f"v_xor_b32 v{24+i}, s96, v{24+i}")
    a("v_or3_b32 v24, v24, v25, v26\nv_or3_b32 v27, v27, v28, v29\nv_or3_b32 v24, v24, v30, v31\nv_or_b32 v24, v24, v27\nv_cmp_ne_u32 vcc, 0, v24")
    a(f"s_cmp_gt_u32 s9, {SPIN_MAX}\ns_cbranch_scc1 A_kd\ns_cbranch_vccz A_kd\ns_sleep 1")
    kvl()
    a("s_branch A_kq")
    a.label("A_kd")
    gs(a, 4, "v30", "v31")
    for i in range(3): call(a, "L_issueKV", "s[62:63]")
    a("s_waitcnt vmcnt(22)")
    a("s_branch A_done")
    a.label("A_bars")
    for i in range(3): a("s_barrier")
    a.label("A_bars8")
    for i in range(8): a("s_barrier")
    a("s_waitcnt vmcnt(0)")
    a("s_branch A_done")
    a.label("A_q")
    def ard(st, i):
        f = AFR[st]
        if i < 2: a(f"ds_read_b64_tr_b16 v[{f+2*i}:{f+2*i+1}], v{bW} offset:{(16*st+4*i)*160}")
        else: a(f"ds_read_b128 v[{f+4*(i-1)}:{f+4*(i-1)+3}], v{bX+st} offset:{4096*(i-2)}")
    def amf(st, blk):
        f = AFR[st]; ac = v(BACC + 16 * blk, 16)
        a(f"v_mfma_f32_32x32x16_bf16 {ac}, v[{f}:{f+3}], v[{f+4+4*blk}:{f+7+4*blk}], {ac}")
    a(f"s_mov_b32 s56, 0\ns_mov_b32 s70, {HS}\ns_mov_b32 s74, {-5*HS}\ns_mov_b32 s75, {-3*HS}")
    a("s_barrier\ns_barrier")
    for st in (0, 1, 2):
        for i in range(4): ard(st, i)
    a("s_branch A_mid")
    a(".p2align 3")
    a.label("A_loop")
    a("s_waitcnt lgkmcnt(0)\ns_barrier")
    seq = [(st, i) for st in (0, 1, 2) for i in range(4)]
    for n, (st, blk) in enumerate(((2, 0), (2, 1), (3, 0), (3, 1))):
        amf(st, blk)
        for x in seq[3 * n:3 * n + 3]: ard(*x)
    a.label("A_mid")
    a("s_add_u32 s56, s56, 1\ns_cmp_eq_u32 s56, 6\ns_cselect_b32 s8, s74, s70")
    a("s_waitcnt lgkmcnt(8)")
    amf(0, 0); ard(3, 0); ard(3, 1)
    a("s_cmp_lt_u32 s56, 10\ns_cselect_b32 s8, s8, s75")
    amf(0, 1); ard(3, 2); ard(3, 3)
    a("s_waitcnt lgkmcnt(8)")
    a(f"v_add_u32 v{bW}, s8, v{bW}")
    amf(1, 0)
    for j in range(4): a(f"v_add_u32 v{bX+j}, s8, v{bX+j}")
    amf(1, 1)
    a("s_cbranch_scc1 A_loop")
    a("s_waitcnt lgkmcnt(4)")
    amf(2, 0); amf(2, 1)
    a("s_waitcnt lgkmcnt(0)")
    amf(3, 0); amf(3, 1)
    a(f"s_mov_b32 s8, {f32(CSCALE)}")
    a("s_nop 9")
    for i in range(0, 32, 2):
        a(f"v_pk_mul_f32 v[{BACC+i}:{BACC+i+1}], v[{BACC+i}:{BACC+i+1}], s[8:9] op_sel_hi:[1,0]")
    call(a, "g_pack")
    call(a, "g_t2l")
    for i in range(31, -1, -1): a(f"v_mov_b32 v{BACC+i}, 0")
    a.label("A_done")
    def rdKA(t): a(f"ds_read_b128 v[{KA}:{KA+3}], v{aKA} offset:{t*TILE}")
    def rdKB(t): a(f"ds_read_b64 v[{KB}:{KB+1}], v{aKB} offset:{t*TILE}")
    def rdV0(t): a(f"ds_read_b128 v[{V0}:{V0+3}], v{aV0} offset:{t*TILE}")
    def rdV1(t): a(f"ds_read_b128 v[{V1}:{V1+3}], v{aV1} offset:{t*TILE}")
    def qka(S): a(f"v_mfma_f32_32x32x16_bf16 v[{S}:{S+15}], v[{KA}:{KA+3}], v[{QA}:{QA+3}], 0")
    def qkb(S): a(f"v_mfma_f32_32x32x8_bf16 v[{S}:{S+15}], v[{KB}:{KB+1}], v[{QB}:{QB+1}], v[{S}:{S+15}]")
    def pv0(): a(f"v_mfma_f32_32x32x16_bf16 v[{OO}:{OO+15}], v[{V0}:{V0+3}], v[{PP}:{PP+3}], v[{OO}:{OO+15}]")
    def pv1(): a(f"v_mfma_f32_32x32x16_bf16 v[{OO}:{OO+15}], v[{V1}:{V1+3}], v[{PP+4}:{PP+7}], v[{OO}:{OO+15}]")
    def E(S, lo, hi, w=None):
        for i in range(lo, hi):
            if w is not None and i == hi - 1:
                a(w if isinstance(w, str) else f"s_waitcnt lgkmcnt({w})"); a(f"v_exp_f32_e64 v{S+i}, v{S+i}")
            else: a(f"v_exp_f32 v{S+i}, v{S+i}")
    def c1(k, S): a(f"v_cvt_pk_bf16_f32 v{PP+k}, v{S+2*k}, v{S+2*k+1}")
    def C(S, g): c1(2 * g, S); c1(2 * g + 1, S)
    for i in range(4): a(f"v_mov_b32 v{PP+4+i}, 0")
    a("s_mov_b32 s57, 0\ns_mov_b64 vcc, 0")
    a("s_waitcnt lgkmcnt(0)\ns_barrier")
    a(f"v_mov_b32 v{PP}, {LMISC}\nds_read_b32 v{PP+3}, v{PP}")
    read_qfrag(a, QA, QB)
    rdKA(0); rdKB(0); rdV0(0)

    a(f"s_mov_b32 s8, {LPQ - LQ}")
    for r in (QF0, QF1, TL0, TL1): a(f"v_add_u32 v{r}, s8, v{r}")
    a("s_mov_b32 exec_lo, 0")
    a("s_waitcnt lgkmcnt(1)")
    a(f"v_mov_b32 v{QB}, 0\nv_mov_b32 v{QB+1}, 0")
    a("s_mov_b32 exec_lo, -1")
    qka(S0); qkb(S0)
    rdKA(1); rdKB(1)
    a(f"v_readfirstlane_b32 s96, v{PP+3}")
    a("s_nop 8")
    rowmax(a, S0, PP)
    set_m(a, PP, PP + 1, PP + 2)
    for i in range(16): a(f"v_sub_f32 v{S0+i}, v{S0+i}, v{PP+2}")
    a("s_waitcnt lgkmcnt(0)")
    a("s_cmp_eq_u32 s57, 0")
    def plain(n):
        Sc, Sn = (S0, S1) if n % 2 == 0 else (S1, S0)
        qka(Sn); rdKA((n + 2) % 16); E(Sc, 0, 4, 3)
        pv1(); rdV1(n); C(Sc, 0); E(Sc, 4, 8, 3)
        qkb(Sn); rdKB((n + 2) % 16); C(Sc, 1); E(Sc, 8, 12, 3)
        pv0(); rdV0((n + 1) % 16); C(Sc, 2); E(Sc, 12, 16, 3); C(Sc, 3)
    a(".p2align 6")
    a.label("AT_loop")
    for n in range(16):
        Sc, Sn = (S0, S1) if n % 2 == 0 else (S1, S0)
        if n == 2: a("s_waitcnt vmcnt(0)\ns_barrier")
        elif n == 6: a("s_barrier\ns_cbranch_vccnz AT_ap2")
        elif n % 4 == 2: a("s_barrier\ns_nop 0")
        if n == 4: a.label("AT_n4")
        if n == 8: a.label("AT_n8")
        if n == 12: a("s_cbranch_scc1 FU_start\ns_nop 0")
        plain(n)
    a("s_mov_b64 vcc, -1")
    a("s_add_u32 s57, s57, 1\ns_cmp_ge_u32 s57, 2\ns_cbranch_scc0 AT_loop")
    a("s_waitcnt lgkmcnt(0)")
    pv1()
    srd(a, 44, 32, 2048 * 2560)
    a("s_mov_b32 s56, 0\ns_mov_b32 s71, 0\ns_mov_b32 s72, 20480\ns_mov_b32 s73, -40960\ns_mov_b32 s74, 25600\ns_mov_b32 s75, -102400")
    a("s_nop 2")
    a(f"v_cmp_nge_f32 vcc, {f32(2.0**40)}, v{OO+12}")
    a("s_nop 1")
    a("s_cbranch_vccnz AT_fallback")
    a.label("AT_ok")
    F = [20 + 8 * i for i in range(10)]
    NANCHK = "v_cmp_u_f32 {}, v4, v4" if not FORCE_REDO else "v_cmp_o_f32 {}, v4, v4"
    OUT = 132
    SW, SR = TL0, TL1
    a("s_cmp_ge_u32 s3, 4\ns_cbranch_scc1 TLz_start")
    def tl_vm(pfx):
        a(f"s_cmp_lg_u32 s56, 2\ns_cbranch_scc1 {pfx}_nv\ns_waitcnt vmcnt(0)")
        a.label(pfx + "_nv")
    def tl_adv():
        a("s_add_u32 s71, s71, 1\ns_cmp_eq_u32 s71, 3\ns_cselect_b32 s8, s73, s72\ns_cselect_b32 s71, 0, s71")
        a(f"v_add_u32 v{tW1}, s74, v{tW1}\nv_add_u32 v{tW2}, s74, v{tW2}\nv_add_u32 v{tX1}, s8, v{tX1}\nv_add_u32 v{tX2}, s8, v{tX2}")
        a("s_add_u32 s56, s56, 1\ns_and_b32 s8, s56, 3")
    def wrd(d, st):
        t, H = divmod(st, 5)
        if H < 4: a(f"ds_read_b128 v[{d}:{d+3}], v{tW1} offset:{12800*t+3200*H}")
        else:
            for hf in range(2): a(f"ds_read_b64 v[{d+2*hf}:{d+2*hf+1}], v{tW2} offset:{12800*t+6400*hf}")
    def xrd(d, st):
        t, H = divmod(st, 5)
        if H < 4: a(f"ds_read_b128 v[{d}:{d+3}], v{tX1} offset:{t*10240+H*1024}")
        else:
            for hf in range(2): a(f"ds_read_b64 v[{d+2*hf}:{d+2*hf+1}], v{tX2} offset:{t*10240+4096+512*hf}")
    def mrd(st): wrd(F[st], st); xrd(F[st] + 4, st)
    def mmf(st): a(f"v_mfma_f32_32x32x16_bf16 v[4:19], v[{F[st]}:{F[st]+3}], v[{F[st]+4}:{F[st]+7}], v[4:19]")
    nrd = lambda st: 4 if st % 5 == 4 else 2
    def m_pack(O):
        for i in range(8): a(f"v_cvt_pk_bf16_f32 v{O+i}, v{4+2*i}, v{5+2*i}")
    def m_turn(O):
        for q in range(4): a(f"ds_write_b64 v{SW}, v[{O+2*q}:{O+2*q+1}] offset:{16*q}")
        for i in range(2): a(f"ds_read_b128 v[{O+4*i}:{O+4*i+3}], v{SR} offset:{1280*i}")
    def m_store(O, off):
        for i in range(2): a(f"buffer_store_dwordx4 v[{O+4*i}:{O+4*i+3}], v{tO}, s[44:47], s{80+i} offen offset:{off} {ONT}")
    WS_ = lambda h, st: 20 + 40 * h + 4 * st
    XS_ = lambda st: 100 + 4 * st
    n1 = lambda st: 2 if st % 5 == 4 else 1
    def mm2(h, st): a(f"v_mfma_f32_32x32x16_bf16 v[4:19], v[{WS_(h,st)}:{WS_(h,st)+3}], v[{XS_(st)}:{XS_(st)+3}], v[4:19]")
    def body(h, mid=None):
        pend = []
        def X(st): xrd(XS_(st), st); pend.extend([("x", st)] * n1(st))
        X(0); X(1); mm2(1 - h, 6); X(2); X(3); mm2(1 - h, 7); X(4); X(5); mm2(1 - h, 8); X(6); X(7); mm2(1 - h, 9)
        if mid: a.label(mid)
        X(8); X(9)
        nw = [(0, 1), (2, 3), (4,), (5, 6), (7, 8), (9,)]
        for st in range(6):
            last = max(i for i, p in enumerate(pend) if p == ("x", st))
            a(f"s_waitcnt lgkmcnt({min(15, len(pend) - 1 - last)})")
            mm2(h, st)
            for w in nw[st]:
                wrd(WS_(1 - h, w), 10 + w); pend.extend([("w", w)] * n1(w))
        tl_adv()
    for st in range(10): wrd(WS_(0, st), st)
    o_epilogue(a, OO, WS_OA, False)
    a.label("TLm_job")
    for i in range(4, 20): a(f"v_mov_b32 v{i}, 0")
    a("s_barrier")
    for st in range(8): xrd(XS_(st), st)
    a("s_branch TLm_mid")
    a(".p2align 3")
    a.label("TLm_loop")
    a("s_waitcnt vmcnt(0) lgkmcnt(12)\ns_barrier")
    body(0, "TLm_mid")
    a("s_waitcnt lgkmcnt(12)\ns_barrier")
    body(1)
    a("s_cbranch_scc1 TLm_loop")
    a("s_cmp_eq_u32 s56, 8\ns_cbranch_scc1 TLm_fin")
    a("s_waitcnt lgkmcnt(12)\ns_barrier")
    a(f"v_add_u32 v{tW1}, s75, v{tW1}\nv_add_u32 v{tW2}, s75, v{tW2}")
    for st in range(6, 10):
        mm2(1, st)
        for w in ((0, 1, 2), (3, 4), (5, 6, 7), (8, 9))[st - 6]: wrd(WS_(0, w), w)
    a(f"""
    v_lshrrev_b32 v{tO}, 2, v0
    v_and_b32 v3, 3, v0
    s_mul_i32 s8, s3, 2560
    s_add_u32 s8, s8, {LX + 40960}
    v_mul_u32_u24 v{SW}, 80, v1
    v_lshl_add_u32 v{SW}, v2, 3, v{SW}
    v_add_u32 v{SW}, s8, v{SW}
    v_lshlrev_b32 v3, 4, v3
    v_mul_u32_u24 v{SR}, 80, v{tO}
    v_add3_u32 v{SR}, v{SR}, v3, s8
    v_mul_u32_u24 v{tO}, 2560, v{tO}
    v_add_u32 v{tO}, v{tO}, v3
    s_add_u32 s81, s80, {16*2560}
    """)

    a(NANCHK.format("s[48:49]"))
    m_pack(OUT + 8)
    a("s_branch TLm_job")
    a.label("TLm_fin")
    a("s_waitcnt lgkmcnt(12)")
    mm2(1, 6)
    m_turn(OUT + 8)
    for st in range(7, 10): mm2(1, st)
    a("s_waitcnt lgkmcnt(0)")
    m_store(OUT + 8, 1280)
    a("s_nop 8")
    a(NANCHK.format("s[50:51]"))
    def m_out():
        m_pack(OUT); m_turn(OUT); a("s_waitcnt lgkmcnt(0)"); m_store(OUT, 0)
    m_out()
    a("s_or_b64 vcc, s[48:49], s[50:51]\ns_cbranch_scc1 TLm_redo")
    a.label("TLm_end")
    stamp_end(a)
    a("s_endpgm")
    def redo(pfx, nacc, loads, mfmas, out):
        a.label(pfx + "_redo")
        a(f"v_add_u32 v{tW1}, s75, v{tW1}\nv_add_u32 v{tW2}, s75, v{tW2}")
        a(f"s_mov_b32 s8, {-(LX + 40960)}\nv_add_u32 v{tX1}, s8, v{tX1}\nv_add_u32 v{tX2}, s8, v{tX2}")
        a(f"v_lshlrev_b32 v100, 2, v0\ns_lshl_b32 s52, s4, 7\ns_add_u32 s52, s52, {FL_OA}")
        a(f"s_mul_i32 s13, s4, 81920\ns_mul_i32 s53, s5, 102400\ns_add_u32 s53, s53, {WS_WPA}\ns_mov_b32 s54, 0")
        a.label(pfx + "_rj")
        poll(a, "s52", 8, "v101", "v100")
        for i in range(4, 4 + nacc): a(f"v_mov_b32 v{i}, 0")
        a("s_add_u32 s69, s5, s4\ns_mov_b32 s56, 0")
        a.label(pfx + "_rl")
        a(f"s_and_b32 s69, s69, 3\ns_mul_i32 s8, s69, 20480\ns_add_u32 s8, s8, s13\ns_add_u32 s9, s8, 4096\ns_add_u32 s10, s8, 10240\ns_add_u32 s11, s8, {10240+4096}")
        a("s_mul_i32 s12, s69, 25600\ns_add_u32 s12, s12, s53")
        loads()
        a("s_waitcnt vmcnt(0)")
        mfmas()
        a(f"s_add_u32 s69, s69, 1\ns_add_u32 s56, s56, 1\ns_cmp_lt_u32 s56, 4\ns_cbranch_scc1 {pfx}_rl")
        a("s_nop 11")
        out()
        a(f"s_add_u32 s80, s80, 1280\ns_add_u32 s81, s81, 1280\ns_add_u32 s13, s13, {WS_OB - WS_OA}")
        a(f"s_sub_u32 s52, s52, {FL_OA - FL_OB}\ns_sub_u32 s53, s53, {WS_WPA - WS_WPB}")
        a(f"s_add_u32 s54, s54, 1\ns_cmp_lt_u32 s54, 2\ns_cbranch_scc1 {pfx}_rj\ns_branch {pfx}_end")
    def gw(d, n, addr, off):
        a(f"s_add_u32 s14, s12, {off}")
        a(f"buffer_load_dwordx{n} v[{d}:{d+n-1}], v{addr}, s[40:43], s14 offen sc1")
    def m_loads():
        for st in range(10):
            t, H = divmod(st, 5); d = F[st] + 4
            if H < 4:
                a(f"buffer_load_dwordx4 v[{d}:{d+3}], v{tX1}, s[40:43], s{8+2*t} offen offset:{1024*H} sc1")
                gw(F[st], 4, tW1, 12800 * t + 3200 * H)
            else:
                for hf in range(2):
                    a(f"buffer_load_dwordx2 v[{d+2*hf}:{d+2*hf+1}], v{tX2}, s[40:43], s{9+2*t} offen offset:{512*hf} sc1")
                    gw(F[st] + 2 * hf, 2, tW2, 12800 * t + 6400 * hf)
    redo("TLm", 16, m_loads, lambda: [mmf(st) for st in range(10)], m_out)
    def zw(d, j):
        if j < 4: a(f"ds_read_b128 v[{d}:{d+3}], v{tW1} offset:{6400*j}")
        else:
            for t in range(2): a(f"ds_read_b64 v[{d+2*t}:{d+2*t+1}], v{tW2} offset:{12800*t}")
    def zx(d, j):
        if j < 4: a(f"ds_read_b128 v[{d}:{d+3}], v{tX1} offset:{(j>>1)*10240+(j&1)*2048}")
        else:
            for t in range(2): a(f"ds_read_b64 v[{d+2*t}:{d+2*t+1}], v{tX2} offset:{4096+10240*t}")
    def zmf(j): a(f"v_mfma_f32_16x16x32_bf16 v[4:7], v[{F[j]}:{F[j]+3}], v[{F[j]+4}:{F[j]+7}], v[4:7]")
    def z_pack(O):
        a(f"v_cvt_pk_bf16_f32 v{O}, v4, v5\nv_cvt_pk_bf16_f32 v{O+1}, v6, v7")
        a(f"ds_bpermute_b32 v{O}, v{SR}, v{O}\nds_bpermute_b32 v{O+1}, v{SR}, v{O+1}")
    def z_out():
        z_pack(OUT)
        a("s_waitcnt lgkmcnt(0)")
        a(f"buffer_store_dwordx2 v[{OUT}:{OUT+1}], v{tO}, s[44:47], s80 offen offset:128 {ONT}")
    a.label("TLz_start")
    o_epilogue(a, OO, WS_OA, False)
    a(f"""
    v_lshrrev_b32 v{tO}, 2, v0
    v_and_b32 v3, 3, v0
    v_lshl_add_u32 v{SR}, v3, 4, v{tO}
    v_lshlrev_b32 v{SR}, 2, v{SR}
    v_mul_u32_u24 v{tO}, 2560, v{tO}
    v_lshl_add_u32 v{tO}, v3, 3, v{tO}
    """)
    a.label("TLz_job")
    for j in range(5): zw(F[j], j)
    for i in range(4, 8): a(f"v_mov_b32 v{i}, 0")
    a.label("TLz_loop")
    tl_vm("TLz")
    a("s_barrier")
    for j in range(5): zx(F[j] + 4, j)
    tl_adv()
    for j in range(5):
        a(f"s_waitcnt lgkmcnt({5 if j < 4 else 4})"); zmf(j); zw(F[j], j)
    a("s_cbranch_scc1 TLz_loop")
    a("s_nop 4")
    a("s_cmp_eq_u32 s56, 8\ns_cbranch_scc1 TLz_fin")
    a("s_waitcnt lgkmcnt(0)\ns_barrier")
    a(f"v_add_u32 v{tW1}, s75, v{tW1}\nv_add_u32 v{tW2}, s75, v{tW2}")
    a(NANCHK.format("s[48:49]"))
    z_pack(OUT + 8)
    a("s_branch TLz_job")
    a.label("TLz_fin")
    a(f"buffer_store_dwordx2 v[{OUT+8}:{OUT+9}], v{tO}, s[44:47], s80 offen offset:{1280+128} {ONT}")
    a(NANCHK.format("s[50:51]"))
    z_out()
    a("s_or_b64 vcc, s[48:49], s[50:51]\ns_cbranch_scc1 TLz_redo")
    a.label("TLz_end")
    stamp_end(a)
    a("s_endpgm")
    def z_loads():
        for j in range(5):
            d = F[j] + 4
            if j < 4:
                a(f"buffer_load_dwordx4 v[{d}:{d+3}], v{tX1}, s[40:43], s{8+2*(j>>1)} offen offset:{2048*(j&1)} sc1")
                gw(F[j], 4, tW1, 6400 * j)
            else:
                for t in range(2):
                    a(f"buffer_load_dwordx2 v[{d+2*t}:{d+2*t+1}], v{tX2}, s[40:43], s{9+2*t} offen sc1")
                    gw(F[j] + 2 * t, 2, tW2, 12800 * t)
    redo("TLz", 4, z_loads, lambda: [zmf(j) for j in range(5)], z_out)
    a.label("FU_start")
    a(f"s_mov_b32 s8, {3*CH}")
    for r in (aKA, aKB, aV0, aV1): a(f"v_add_u32 v{r}, s8, v{r}")
    a(f"s_mov_b32 s56, 0\ns_mov_b32 s68, 0\ns_mov_b32 s70, {SLOT}\ns_mov_b32 s74, {-2*SLOT}\ns_mov_b32 s72, {CH}\ns_mov_b32 s73, {-3*CH}")
    a("s_waitcnt lgkmcnt(0)")
    a("s_cmp_ge_u32 s3, 3\ns_cbranch_scc1 FU_C")
    def G(orient, s_, blk):
        f = BFR + 12 * s_; w, x, ac = v(f, 4), v(f + 4 + 4 * blk, 4), v(BACC + 16 * blk, 16)
        a(f"v_mfma_f32_32x32x16_bf16 {ac}, {w}, {x}, {ac}" if orient == "R" else f"v_mfma_f32_32x32x16_bf16 {ac}, {x}, {w}, {ac}")
    def GR(orient, s_, st):
        f = BFR + 12 * s_; stride = 160 if orient == "R" else 320
        for hf in range(2): a(f"ds_read_b64_tr_b16 v[{f+2*hf}:{f+2*hf+1}], v{bW} offset:{(16*st+4*hf)*stride}")
        for blk in range(2): a(f"ds_read_b128 v[{f+4+4*blk}:{f+7+4*blk}], v{bX+st} offset:{4096*blk}")
    for orient in ("R", "C"):
        a(".p2align 3")
        a.label("FU_" + orient)
        a("s_and_b32 s9, s56, 3\ns_cselect_b32 s9, s72, s73")
        for n in range(4):
            Sc, Sn = (S0, S1) if n % 2 == 0 else (S1, S0)
            def slot(i, w=None):
                c1((i - 1) % 8, Sn if i == 0 else Sc)
                E(Sc, 2 * i, 2 * i + 2, w)
            def va(*regs, sg):
                for r in regs: a(f"v_add_u32 v{r}, {sg}, v{r}")
            G(orient, 0, 0)
            if n == 2: va(aKA, aKB, sg="s9")
            slot(0, 11)
            qka(Sn); rdKA((n + 2) % 4); slot(1)
            if n % 2 == 0:
                a("s_waitcnt lgkmcnt(1)\ns_barrier")
                a("s_add_u32 s68, s68, 1\ns_cmp_eq_u32 s68, 3\ns_cselect_b32 s8, s74, s70\ns_cselect_b32 s68, 0, s68")
            G(orient, 0, 1); GR(orient, 0, (2 * n) % 4); slot(2, 11)
            pv1(); rdV1(n); slot(3, 11)
            qkb(Sn); rdKB((n + 2) % 4); slot(4, 7)
            G(orient, 1, 0)
            if n == 3: va(aV0, aV1, sg="s9")
            slot(5)
            pv0(); rdV0((n + 1) % 4); slot(6)
            G(orient, 1, 1); GR(orient, 1, (2 * n + 1) % 4)
            if n % 2 == 0: va(bX, bX + 1, sg="s8")
            else:
                va(bX + 2, bX + 3, bW, sg="s8"); a("s_nop 0")
            slot(7, 7)
        a(f"s_add_u32 s56, s56, 1\ns_cmp_lt_u32 s56, 5\ns_cbranch_scc1 FU_{orient}")
        ct(a, "fe")
        c1(7, S1)
        G(orient, 0, 0)
        a("s_waitcnt lgkmcnt(0)")
        G(orient, 1, 0); G(orient, 0, 1); G(orient, 1, 1)
        a(f"s_mov_b32 s8, {f32(LOG2E)}\ns_mov_b32 s9, {f32(1e-6)}")
        def phi4(r0, X):
            for i in (0, 2): a(f"v_pk_mul_f32 v[{X+i}:{X+i+1}], v[{r0+i}:{r0+i+1}], s[8:9] op_sel_hi:[1,0]")
            for i in range(4): a(f"v_exp_f32_e64 v{X+i}, v{X+i} clamp")
            for i in range(4): a(f"v_max_f32 v{r0+i}, s9, v{r0+i}")
            for i in (0, 2): a(f"v_pk_add_f32 v[{r0+i}:{r0+i+1}], v[{r0+i}:{r0+i+1}], v[{X+i}:{X+i+1}]")
        if orient == "R":
            a("s_nop 7")
            for half in range(2):
                if half == 1: a("s_cmp_eq_u32 s3, 2\ns_cbranch_scc1 B_jobs")
                for blk in range(2):
                    for q in range(2):
                        r0 = BACC + 16 * blk + 8 * half + 4 * q
                        phi4(r0, BFR)
                        a(f"v_cvt_pk_bf16_f32 v{r0}, v{r0}, v{r0+1}\nv_cvt_pk_bf16_f32 v{r0+1}, v{r0+2}, v{r0+3}")
                        a(f"ds_write_b64 v{TL0+half}, v[{r0}:{r0+1}] offset:{5120*blk + 16*q}")
            a("s_branch B_jobs")
    a("s_lshl_b32 s10, s78, 12")
    a(f"v_add_u32 v{TL0}, s10, v{OAD1}")
    a("s_cmp_eq_u32 s78, 2\ns_cselect_b32 s10, 0xffff, -1\ns_mov_b32 s11, s10")
    a("s_cmp_ge_u32 s78, 3")
    a("s_nop 1")
    for ks in range(4):
        r0 = BACC + 8 * ks
        l = a.newlabel("B_np")
        a(f"s_cbranch_scc1 {l}")
        a("s_mov_b64 exec, s[10:11]")
        phi4(r0, BFR); phi4(r0 + 4, BFR + 4)
        a("s_mov_b64 exec, -1")
        a.label(l)
        for i in range(4): a(f"v_cvt_pk_bf16_f32 v{r0+i}, v{r0+2*i}, v{r0+2*i+1}")
        a(f"ds_write_b128 v{TL0}, v[{r0}:{r0+3}] offset:{LFR+1024*ks}")
    a(".p2align 3")
    a.label("B_jobs")
    JAF, JBF, JD = BACC, BACC + 16, BFR
    ct(a, "ep")
    plain(0); plain(1)
    a("s_cmp_lt_u32 s3, 5")
    a("s_barrier")
    ct(a, "c10")
    qka(S1); rdKA(4)
    for ks in range(4): a(f"ds_read_b128 v[{JAF+4*ks}:{JAF+4*ks+3}], v{JA} offset:{LFR+1024*ks}")
    a("s_cbranch_scc0 B_z")
    for ks in range(4): a(f"ds_read_b128 v[{JBF+4*ks}:{JBF+4*ks+3}], v{JB} offset:{LFR+1024*ks}")
    a("s_branch B_nob")
    a.label("B_z")
    for i in range(16): a(f"v_mov_b32 v{JBF+i}, 0x3f803f80")
    a(".p2align 3")
    a.label("B_nob")
    read_qfrag(a, PQA, PQB)
    def J(ks):
        c = "0" if ks == 0 else v(JD, 16)
        a(f"v_mfma_f32_32x32x16_bf16 {v(JD,16)}, v[{JAF+4*ks}:{JAF+4*ks+3}], v[{JBF+4*ks}:{JBF+4*ks+3}], {c}")
    E(S0, 0, 4, 7)
    pv1(); rdV1(2); C(S0, 0); E(S0, 4, 8)
    qkb(S1); rdKB(4); C(S0, 1); E(S0, 8, 10, 4)
    J(0); E(S0, 10, 12)
    J(1); C(S0, 2)
    pv0(); rdV0(3); E(S0, 12, 14)
    J(2); E(S0, 14, 16)
    J(3); C(S0, 3)
    a("s_mov_b32 exec_lo, 0")
    a("s_waitcnt lgkmcnt(3)")
    a(f"v_mov_b32 v{PQB}, 0\nv_mov_b32 v{PQB+1}, 0")
    a("s_mov_b32 exec_lo, -1\ns_nop 0")
    def PW(q):
        a(f"s_mov_b64 exec, s[{MASKS[q]}:{MASKS[q]+1}]\ns_nop 0")
        a(f"ds_write_b128 v{PWR+q}, v[{JD+4*q}:{JD+4*q+3}] offset:{LPART}")
        a("s_mov_b64 exec, -1\ns_nop 0")
    qka(S0); rdKA(5); E(S1, 0, 4, 3)
    pv1(); rdV1(3); PW(0); C(S1, 0); E(S1, 4, 8, 4)
    qkb(S0); rdKB(5); PW(1); C(S1, 1); E(S1, 8, 12, 5)
    pv0(); rdV0(4); PW(2); C(S1, 2); E(S1, 12, 16, 6); C(S1, 3); PW(3)
    ct(a, "jw")
    a("s_cmp_lg_u32 s57, 0")
    a("s_branch AT_n4")
    AP = BACC
    a(".p2align 3")
    a.label("AT_ap2")
    a(f"ds_read2_b64 v[100:103], v{AP1} offset0:0 offset1:1\nds_read_b64 v[104:105], v{AP0} offset:32")
    qka(S1); rdKA(8); E(S0, 0, 4, 5)
    pv1(); rdV1(6); C(S0, 0); E(S0, 4, 8, 2)
    qkb(S1); rdKB(8); C(S0, 1)
    a(f"v_mfma_f32_32x32x16_bf16 v[{AP}:{AP+15}], v[100:103], v[{PQA}:{PQA+3}], 0")
    E(S0, 8, 12)
    pv0(); rdV0(7); C(S0, 2)
    a(f"v_mfma_f32_32x32x8_bf16 v[{AP}:{AP+15}], v[104:105], v[{PQB}:{PQB+1}], v[{AP}:{AP+15}]")
    E(S0, 12, 16, 3); C(S0, 3)
    qka(S0); rdKA(9); E(S1, 0, 4, 3)
    pv1(); rdV1(7)
    o_epilogue(a, AP, WS_OB, True)
    a(f"v_mov_b32 v100, {LCNT}\nv_mov_b32 v101, 1\ns_mov_b64 exec, 1\nds_add_rtn_u32 v102, v100, v101\ns_mov_b64 exec, -1")
    a(".p2align 3")
    C(S1, 0); E(S1, 4, 8, 4)
    qkb(S0); rdKB(9); C(S1, 1); E(S1, 8, 12, 4)
    pv0(); rdV0(8); C(S1, 2); E(S1, 12, 16, 2); C(S1, 3)
    a(f"v_readfirstlane_b32 s9, v102\ns_lshl_b32 s8, s4, 5\ns_add_u32 s8, s8, s5\ns_lshl_b32 s8, s8, 2\ns_add_u32 s8, s8, {FL_HB}")
    a("s_cmp_eq_u32 s9, 7\ns_cbranch_scc0 AT_n8")
    publish(a, "s8", "v100", "v101")
    a("s_cmp_eq_u32 s57, 0\ns_branch AT_n8")
    a.label("AT_fallback")
    FM = BACC
    a("s_mov_b32 exec_lo, 0")
    a(f"v_mov_b32 v{QB}, 0\nv_mov_b32 v{QB+1}, 0")
    a("s_mov_b32 exec_lo, -1")
    a(f"v_mov_b32 v{FM}, 0xff800000")
    a(f"s_mov_b32 s70, {WS_KV - LKV}")
    a.label("AT_fb1")
    a(f"buffer_load_dwordx4 v[{KA}:{KA+3}], v{aKA}, s[40:43], s70 offen sc1")
    a(f"buffer_load_dwordx2 v[{KB}:{KB+1}], v{aKB}, s[40:43], s70 offen sc1")
    a("s_waitcnt vmcnt(0)")
    qka(S0); qkb(S0)
    a("s_nop 15")
    rowmax(a, S0, FM, first=False)
    a(f"s_add_u32 s70, s70, {TILE}\ns_cmp_lt_u32 s70, {WS_KV-LKV+64*TILE}\ns_cbranch_scc1 AT_fb1")
    set_m(a, FM, FM + 1, FM + 2)
    for i in range(16): a(f"v_mov_b32 v{OO+i}, 0")
    a(f"s_mov_b32 s70, {WS_KV - LKV}")
    a.label("AT_fb2")
    a(f"buffer_load_dwordx4 v[{KA}:{KA+3}], v{aKA}, s[40:43], s70 offen sc1")
    a(f"buffer_load_dwordx2 v[{KB}:{KB+1}], v{aKB}, s[40:43], s70 offen sc1")
    a(f"buffer_load_dwordx4 v[{V0}:{V0+3}], v{aV0}, s[40:43], s70 offen sc1")
    a(f"buffer_load_dwordx4 v[{V1}:{V1+3}], v{aV1}, s[40:43], s70 offen sc1")
    a("s_waitcnt vmcnt(0)")
    qka(S0); qkb(S0)
    a("s_nop 15")
    E(S0, 0, 16)
    a("s_nop 0")
    for g in range(4): C(S0, g)
    a("s_nop 1")
    pv0(); pv1()
    a(f"s_add_u32 s70, s70, {TILE}\ns_cmp_lt_u32 s70, {WS_KV-LKV+64*TILE}\ns_cbranch_scc1 AT_fb2")
    a("s_nop 15")
    a("s_branch AT_ok")

    LK = "s[62:63]"
    A_, B_, KV_, P_, WO_ = "L_issueA", "L_issueB", "L_issueKV", "L_issueP", "L_issueWo"
    a.label("L_md")
    tr_init(a); tr(a)
    p4, p8 = ("s4", "s5") if MAP48 else ("s5", "s4")
    a(f"""
    s_and_b32 s8, {p4}, 1
    s_mul_i32 s8, s8, 5
    s_and_b32 s9, {p4}, 2
    s_add_u32 s8, s8, s9
    s_and_b32 s9, {p8}, 7
    s_add_u32 s11, s8, s9
    s_cmp_ge_u32 s11, 10
    s_cselect_b32 s8, 10, 0
    s_sub_u32 s11, s11, s8
    s_mov_b32 s12, 0
    s_lshl_b32 s8, s10, 2
    s_lshl_b32 s9, s10, 3
    v_lshrrev_b32 v20, 4, v0
    v_add_u32 v20, s8, v20
    v_xor_b32 v20, v20, v0
    v_and_b32 v20, 7, v20
    v_lshlrev_b32 v20, 4, v20
    v_lshrrev_b32 v21, 3, v0
    v_add_u32 v21, s9, v21
    v_mul_u32_u24 v21, 1280, v21
    v_add_u32 v2, v20, v21
    s_mov_b32 s8, 1120
    """)
    for p in range(5):
        a(f"v_add_u32 v20, {64*p}, v0")
        a(f"v_mul_u32_u24 v{22+p}, 6554, v20")
        a(f"v_lshrrev_b32 v{22+p}, 16, v{22+p}")
        a(f"v_lshlrev_b32 v20, 4, v20")
        a(f"v_mad_u32_u24 v{3+p}, v{22+p}, s8, v20")
    a("s_mul_i32 s64, s5, 160")
    a(f"s_mul_i32 s65, s10, {32*1280}")
    a("s_add_u32 s65, s65, s64")
    srd(a, 48, 18, 640 * 1280)
    call(a, A_, LK)
    a("s_waitcnt vmcnt(9)"); bar(a)
    call(a, A_, LK); call(a, A_, LK)
    a("s_mov_b32 s70, 0")
    a.label("L_a")
    a("s_waitcnt vmcnt(18)"); bar(a); call(a, A_, LK)
    a("s_add_u32 s70, s70, 1\ns_cmp_lt_u32 s70, 7\ns_cbranch_scc1 L_a")
    srd(a, 40, 36, WS_SIZE)
    srd(a, 72, 26, XBYTES)
    srd(a, 76, 28, 640 * 3840)
    a("s_waitcnt vmcnt(18)"); bar(a)
    a("s_mov_b32 s8, 2560\ns_mov_b32 s9, 1280")
    for p in range(5):
        a(f"v_mad_u32_u24 v{8+p}, v{22+p}, s8, v{3+p}")
        a(f"v_lshrrev_b32 v20, 1, v{22+p}")
        a(f"v_mad_u32_u24 v{13+p}, v20, s9, v{3+p}")
    a(f"s_mul_i32 s66, s10, {32*3840}")
    a("s_add_u32 s66, s66, s64")
    a("s_add_u32 s67, s66, 1280")
    get_nonce(a, "v30", "v31")
    a("s_waitcnt vmcnt(9)"); bar(a)
    a("s_waitcnt vmcnt(0)"); bar(a)
    a("s_mov_b32 s12, 0")
    a("s_add_u32 s69, s5, s4\ns_and_b32 s69, s69, 3")
    a("s_cmp_eq_u32 s10, 1")
    a("s_cbranch_scc1 L1_path")
    a("s_add_u32 s60, s7, 3\ns_and_b32 s60, s60, 15")
    a(f"s_mov_b32 s61, {LKV + 3*CH}")
    a("s_lshl_b32 s56, s4, 7\ns_lshl_b32 s57, s5, 2\ns_add_u32 s57, s57, s56")
    a("v_lshlrev_b32 v19, 2, v0")

    pad(a, "b0")
    bar(a); gs(a, 8); call(a, B_, LK)
    bar(a); call(a, KV_, LK)
    bar(a); call(a, KV_, LK); call(a, B_, LK)
    a("s_waitcnt vmcnt(30)"); bar(a); call(a, KV_, LK); call(a, B_, LK)
    a("s_waitcnt vmcnt(49)"); bar(a); call(a, KV_, LK)
    a("s_mov_b32 s70, 0")
    a.label("L0_f")
    a("s_waitcnt vmcnt(30)"); bar(a); call(a, B_, LK)
    a("s_waitcnt vmcnt(19)"); bar(a); call(a, B_, LK); call(a, KV_, LK)
    a("s_add_u32 s70, s70, 1\ns_cmp_lt_u32 s70, 3\ns_cbranch_scc1 L0_f")
    a("s_waitcnt vmcnt(30)"); bar(a); call(a, B_, LK)
    a("s_waitcnt vmcnt(19)"); bar(a); call(a, KV_, LK)
    a("s_waitcnt vmcnt(11)"); bar(a)
    a(f"s_mov_b32 s12, 0\ns_mul_i32 s64, s5, 102400\ns_add_u32 s64, s64, {WS_WPB}")
    bar(a); call(a, KV_, LK)
    a("s_waitcnt vmcnt(11)"); bar(a); call(a, KV_, LK)
    a("s_waitcnt vmcnt(11)"); bar(a); call(a, KV_, LK); call(a, WO_, LK)
    a("s_waitcnt vmcnt(0)"); bar(a); call(a, KV_, LK); call(a, WO_, LK); call(a, WO_, LK)
    a("s_waitcnt vmcnt(50)"); bar(a); call(a, KV_, LK)
    a("s_waitcnt vmcnt(11)"); bar(a); call(a, WO_, LK)
    a("s_waitcnt vmcnt(25)"); bar(a)
    a(f"s_add_u32 s13, s13, {WS_OB}")
    a(f"s_mov_b32 s61, {LX}")
    a(f"s_add_u32 s8, s56, {FL_HB}")
    poll(a, "s8", 8)
    call(a, P_, LK)
    pad(a, "b16")
    bar(a)
    gs(a, 9)
    call(a, P_, LK)
    a(f"s_add_u32 s70, s57, {FL_H}\ns_add_u32 s71, s56, {FL_H}")
    pad(a, "t0")
    a("s_waitcnt vmcnt(20)"); bar(a)
    publish(a, "s70", "v30", "v31")
    call(a, P_, LK)
    a("s_waitcnt vmcnt(21)"); bar(a)
    call(a, P_, LK)
    a(f"s_sub_u32 s13, s13, {WS_OB - WS_OA}")
    a(f"s_add_u32 s8, s57, {FL_OA}")
    a("s_waitcnt vmcnt(20)"); bar(a)
    set_exec(a, 8)
    a("buffer_load_dword v32, v19, s[40:43], s71 offen sc1")
    publish(a, "s8", "v30", "v31")
    a(f"s_add_u32 s8, s57, {FL_OB}")
    publish(a, "s8", "v30", "v31")
    set_exec(a, 8)
    a("s_waitcnt vmcnt(2)\nv_cmp_ne_u32 vcc, s96, v32\ns_mov_b64 exec, -1")
    a("s_cbranch_vccnz L0_late")
    call(a, P_, LK)
    bar(a)
    a("s_branch L0_join")
    a.label("L0_late")
    bar(a)
    poll(a, "s71", 8)
    call(a, P_, LK)
    a.label("L0_join")
    gs(a, 7)
    bar(a)
    call(a, P_, LK)
    pad(a, "t4")
    a("s_waitcnt vmcnt(20)"); bar(a)
    call(a, P_, LK)
    a("s_waitcnt vmcnt(20)"); bar(a)
    call(a, P_, LK)
    a("s_waitcnt vmcnt(20)"); bar(a)
    pad(a, "t7")
    a("s_waitcnt vmcnt(0)"); bar(a)
    pad(a, "end")
    tr_dump(a)
    a("s_endpgm")
    a.label("L1_path")
    srd(a, 48, 24, 640 * 1280)
    srd(a, 52, 30, 640 * 1280)
    a("s_lshl_b32 s56, s5, 5\ns_add_u32 s57, s56, s4")
    a(f"s_mul_i32 s68, s57, {PST}\ns_add_u32 s68, s68, {WS_KVP}")
    a("s_lshl_b32 s56, s5, 9\ns_lshr_b32 s8, s4, 3\ns_lshl_b32 s8, s8, 7\ns_and_b32 s57, s4, 7\ns_lshl_b32 s57, s57, 2\ns_add_u32 s57, s57, s8\ns_add_u32 s57, s57, s56")
    a("v_lshrrev_b32 v19, 3, v0\nv_lshlrev_b32 v19, 7, v19\nv_and_b32 v28, 7, v0\nv_lshl_add_u32 v19, v28, 2, v19")
    a(f"""
    v_lshrrev_b32 v48, 4, v0
    v_mul_u32_u24 v48, {8*PST}, v48
    v_and_b32 v49, 15, v0
    v_min_u32 v47, 13, v49
    v_lshl_add_u32 v48, v47, 4, v48
    v_lshlrev_b32 v49, 3, v49
    v_lshlrev_b32 v46, 7, v0
    """)
    for i in range(4): a(f"v_mov_b32 v{52+i}, -1")
    a(f"""
    v_bfe_u32 v20, v0, 2, 2
    v_mul_u32_u24 v20, 160, v20
    v_and_b32 v21, 3, v0
    v_lshl_add_u32 v20, v21, 3, v20
    v_add_u32 v20, {LRP}, v20
    v_lshrrev_b32 v21, 5, v0
    v_bfe_u32 v28, v0, 4, 1
    v_mul_u32_u24 v41, 1280, v21
    v_lshl_add_u32 v41, v28, 5, v41
    v_add_u32 v41, v41, v20
    v_mul_u32_u24 v42, 1280, v28
    v_add_u32 v42, v42, v20
    v_lshrrev_b32 v21, 4, v0
    v_lshl_add_u32 v43, v21, 5, v20
    v_lshlrev_b32 v44, 3, v0
    """)
    bar(a); call(a, B_, LK)
    bar(a)
    a(f"s_mov_b32 m0, {LRP}\ns_mul_i32 s8, s4, {20*1280}\ns_add_u32 s8, s8, s64")
    for sr in (52, 48):
        for p in range(4):
            dma(a, f"v{3+p}", sr, "s8")
            a("s_add_u32 m0, m0, 1024\ns_nop 0")
    bar(a); call(a, B_, LK)
    a("s_waitcnt vmcnt(19)")
    for m in range(2):
        d, o = 100 + 16 * m, 4096 * m
        for blk in range(2):
            for hf in range(2): a(f"ds_read_b64_tr_b16 v[{d+4*blk+2*hf}:{d+4*blk+2*hf+1}], v41 offset:{o+64*blk+640*hf}")
        for hf in range(2): a(f"ds_read_b64_tr_b16 v[{d+8+2*hf}:{d+9+2*hf}], v42 offset:{o+128+640*hf}")
        a(f"ds_read_b64_tr_b16 v[{d+12}:{d+13}], v43 offset:{o+2560}")
        a(f"ds_read_b64_tr_b16 v[{d+14}:{d+15}], v43 offset:{o+2560+128}")
    a("s_waitcnt lgkmcnt(0)"); bar(a); call(a, B_, LK)
    a("s_waitcnt vmcnt(38)"); bar(a)
    a(f"s_mul_i32 s64, s5, 102400\ns_mul_i32 s8, s4, 3200\ns_add_u32 s8, s8, s64\ns_add_u32 s9, s8, {WS_WPA}\ns_add_u32 s8, s8, {WS_WPB}\ns_add_u32 s64, s64, {WS_WPA}")
    for m in range(2):
        d = 100 + 16 * m
        a(f"buffer_store_dwordx4 v[{d}:{d+3}], v18, s[40:43], s{8+m} offen sc1")
        a(f"buffer_store_dwordx4 v[{d+4}:{d+7}], v18, s[40:43], s{8+m} offen offset:1024 sc1")
        a(f"buffer_store_dwordx2 v[{d+12}:{d+13}], v44, s[40:43], s{8+m} offen offset:2560 sc1")
    set_exec(a, 32)
    for m in range(2): a(f"buffer_store_dwordx4 v[{108+16*m}:{111+16*m}], v18, s[40:43], s{8+m} offen offset:2048 sc1")
    set_exec(a, 16)
    for m in range(2): a(f"buffer_store_dwordx2 v[{114+16*m}:{115+16*m}], v44, s[40:43], s{8+m} offen offset:3072 sc1")
    a("s_mov_b64 exec, -1")
    a("s_waitcnt vmcnt(29)"); bar(a); call(a, B_, LK)
    a("s_waitcnt vmcnt(29)"); bar(a)
    a(f"s_lshl_b32 s60, s5, 12\ns_add_u32 s60, s60, {WS_KVZ}\ns_mul_i32 s61, s4, 112\ns_add_u32 s61, s61, s60")
    set_exec(a, 14)
    a("buffer_store_dwordx2 v[52:53], v49, s[40:43], s61 offen sc1")
    a("s_add_u32 s65, s68, 4096")
    set_exec(a, 40)
    a("buffer_store_dwordx4 v[52:55], v18, s[40:43], s65 offen offset:2048 sc1")
    a("s_mov_b64 exec, -1")
    for i in range(6):
        a(f"buffer_store_dwordx4 v[52:55], v18, s[40:43], {'s68' if i < 4 else 's65'} offen offset:{1024*(i%4)} sc1")
    call(a, B_, LK)
    a("s_waitcnt vmcnt(27)"); bar(a); call(a, B_, LK)
    a("s_waitcnt vmcnt(19)"); bar(a)
    a(f"s_add_u32 s8, s57, {FL_P}")
    publish(a, "s8", "v30", "v31")
    call(a, B_, LK)
    a("s_waitcnt vmcnt(20)"); bar(a); call(a, B_, LK)
    a("s_waitcnt vmcnt(19)"); bar(a); call(a, B_, LK)
    a("s_waitcnt vmcnt(19)"); bar(a); call(a, B_, LK)
    a("s_waitcnt vmcnt(19)"); bar(a)
    a("s_waitcnt vmcnt(0)"); bar(a)
    def nanfill():
        a(f"s_mul_i32 s8, s5, 10240\ns_add_u32 s8, s8, s13\ns_add_u32 s9, s8, {WS_OB}")
        for i in range(10):
            if i in (4, 8): a("s_add_u32 s8, s8, 4096\ns_add_u32 s9, s9, 4096")
            for r in ("s8", "s9"): a(f"buffer_store_dwordx4 v[52:55], v18, s[40:43], {r} offen offset:{1024*(i%4)} sc1")
    a(f"s_add_u32 s8, s56, {FL_P}")
    poll(a, "s8", 32)
    a("s_and_b32 s8, s4, 7\ns_mul_i32 s8, s8, 12800\ns_add_u32 s8, s8, s64\ns_mov_b32 exec_hi, 0x3ffff")
    for i, o in enumerate((0, 6400, WS_WPB - WS_WPA - 6400, 6400)):
        a(f"s_add_u32 s8, s8, {o}\nbuffer_load_dword v{32+i}, v46, s[40:43], s8 offen sc1")
    a("s_mov_b32 exec_hi, -1")
    nanfill()
    R = 60
    a(f"s_min_u32 s9, s4, 29\ns_mul_i32 s9, s9, 224\ns_mul_i32 s70, s5, {32*PST}\ns_add_u32 s70, s70, s9\ns_add_u32 s70, s70, {WS_KVP}")
    bar(a); bar(a)
    for i in range(7):
        a(f"ds_read_b128 v[{R+4*i}:{R+3+4*i}], v18 offset:{LPART+1024*i}")
    for i in range(7):
        a(f"s_waitcnt lgkmcnt({6-i})")
        if i == 6: a("s_mov_b32 exec_hi, 15")
        a(f"buffer_store_dwordx4 v[{R+4*i}:{R+3+4*i}], v18, s[40:43], {'s68' if i < 4 else 's65'} offen offset:{1024*(i%4)} sc1")
    a("s_mov_b32 exec_hi, -1")
    bar(a)
    a("s_sleep 8")
    a("s_mov_b32 s9, 0")
    Q = 100
    a.label("L1_p")
    a("s_mov_b32 s8, s70")
    for i in range(8):
        a(f"buffer_load_dwordx4 v[{Q+4*i}:{Q+3+4*i}], v48, s[40:43], s8 offen sc1")
        a(f"s_add_u32 s8, s8, {PST}")
    a("s_cmp_lg_u32 s9, 0\ns_cbranch_scc1 L1_p2")
    bar(a)
    a.label("L1_p2")
    a("s_add_u32 s9, s9, 1\ns_waitcnt vmcnt(0)")
    for i in range(4):
        for j in (0, 2): a(f"v_pk_add_f32 v[{R+4*i+j}:{R+1+4*i+j}], v[{Q+4*i+j}:{Q+1+4*i+j}], v[{Q+16+4*i+j}:{Q+17+4*i+j}]")
    for half in (2, 1):
        for i in range(half):
            for j in (0, 2): a(f"v_pk_add_f32 v[{R+4*i+j}:{R+1+4*i+j}], v[{R+4*i+j}:{R+1+4*i+j}], v[{R+4*(i+half)+j}:{R+1+4*(i+half)+j}]")
    a(f"v_pk_add_f32 v[30:31], v[{R}:{R+1}], v[{R+2}:{R+3}]\nv_cmp_u_f32 vcc, v30, v31\ns_nop 1\ns_cbranch_vccz L1_pd")
    a(f"v_max_u32 v30, v{Q}, v{Q+1}")
    for i in range(1, 16): a(f"v_max3_u32 v30, v30, v{Q+2*i}, v{Q+2*i+1}")
    a("v_cmp_eq_u32 vcc, -1, v30")
    a(f"s_cmp_gt_u32 s9, {SPIN_MAX}\ns_cbranch_scc1 L1_pd\ns_cbranch_vccz L1_pd\ns_sleep 1\ns_branch L1_p")
    a.label("L1_pd")
    for op in ("v_permlane32_swap_b32", "v_permlane16_swap_b32"):
        for j in range(4): a(f"v_mov_b32 v{R+4+j}, v{R+j}")
        a("s_nop 1")
        for j in range(4): a(f"{op} v{R+j}, v{R+4+j}")
        a("s_nop 1")
        for j in range(4): a(f"v_add_f32 v{R+j}, v{R+j}, v{R+4+j}")
    a(f"""
    v_cvt_pk_bf16_f32 v{R}, v{R}, v{R+1}
    v_cvt_pk_bf16_f32 v{R+1}, v{R+2}, v{R+3}
    v_min_u32 v{R}, -2, v{R}
    v_min_u32 v{R+1}, -2, v{R+1}
    s_mov_b32 exec_lo, 0x3fff
    s_mov_b32 exec_hi, 0
    buffer_store_dwordx2 v[{R}:{R+1}], v49, s[40:43], s61 offen sc1
    s_mov_b64 exec, -1
    """)
    for i in range(4): a(f"v_mov_b32 v{Q+12+i}, 0")
    a(f"v_add_u32 v50, {LKVZ}, v18")
    bar(a)
    a("s_mov_b32 s9, 0")
    a.label("L1_g")
    for i in range(4):
        if i == 3: set_exec(a, 18)
        a(f"buffer_load_dwordx4 v[{Q+4*i}:{Q+3+4*i}], v18, s[40:43], s60 offen offset:{1024*i} sc1")
    a("s_mov_b64 exec, -1")
    a("s_add_u32 s9, s9, 1\ns_waitcnt vmcnt(0)")
    a(f"v_max_u32 v30, v{Q}, v{Q+1}")
    for i in range(1, 8): a(f"v_max3_u32 v30, v30, v{Q+2*i}, v{Q+2*i+1}")
    a("v_cmp_eq_u32 vcc, -1, v30")
    a(f"s_cmp_gt_u32 s9, {SPIN_MAX}\ns_cbranch_scc1 L1_gd\ns_cbranch_vccz L1_gd\ns_sleep 1\ns_branch L1_g")
    a.label("L1_gd")
    for i in range(4): a(f"ds_write_b128 v50, v[{Q+4*i}:{Q+3+4*i}] offset:{1024*i}")
    a("s_waitcnt lgkmcnt(0)")
    bar(a)
    a("s_mov_b32 s12, 0")
    bar(a); bar(a)
    bar(a); bar(a)
    call(a, WO_, LK)
    bar(a)
    call(a, WO_, LK)
    bar(a)
    a("s_waitcnt vmcnt(25)")
    bar(a)
    call(a, WO_, LK)
    a("s_waitcnt vmcnt(25)"); bar(a)
    call(a, WO_, LK)
    a("s_waitcnt vmcnt(25)"); bar(a)
    a("s_waitcnt vmcnt(0)"); bar(a)
    bar(a)
    tr_dump(a)
    a.label("L_end")
    a("s_endpgm")
    a.label(A_)
    issue_x(a, 44, "s13", "s12")
    issue_w(a, 48, 3, 1280, "s65", "s12", IMG_W)
    wrap_inc(a, "s11", 1, 10); wrap_inc(a, "s12", HS, 6 * HS)
    a("s_setpc_b64 s[62:63]")
    a.label(B_)
    issue_x(a, 72, "s13", "s12")
    issue_w(a, 76, 8, 3840, "s66", "s12", IMG_W)
    issue_w(a, 76, 13, 3840, "s67", "s12", IMG_KV, periods=2, rows_per_period=16)
    wrap_inc(a, "s11", 1, 10); wrap_inc(a, "s12", SLOT, 3 * SLOT)
    a("s_setpc_b64 s[62:63]")
    def lin(n):
        for i in range(n):
            if i % 4 == 0 and i > 0:
                a("s_add_u32 m0, m0, 4096")
                a("s_add_u32 s14, s14, 4096")
            a(f"buffer_load_dwordx4 v18, s[40:43], s14 offen offset:{1024*(i%4)} sc1 lds")
    a.label(KV_)
    a("s_mov_b32 m0, s61")
    a(f"s_mul_i32 s14, s60, {CH}")
    a(f"s_add_u32 s14, s14, {WS_KV}")
    lin(11)
    a("s_add_u32 s60, s60, 1\ns_and_b32 s60, s60, 15")
    wrap_inc(a, "s61", CH, LKV + 4 * CH, LKV)
    a("s_setpc_b64 s[62:63]")
    a.label(P_)
    a("s_mov_b32 m0, s61")
    a("s_mul_i32 s14, s69, 20480")
    a("s_add_u32 s14, s14, s13")
    lin(20)
    a("s_add_u32 s69, s69, 1\ns_and_b32 s69, s69, 3")
    wrap_inc(a, "s61", 20480, LX + 3 * 20480, LX)
    a("s_setpc_b64 s[62:63]")
    a.label(WO_)
    a("s_mov_b32 m0, s12")
    a("s_mul_i32 s14, s69, 25600")
    a("s_add_u32 s14, s14, s64")
    lin(25)
    a("s_add_u32 s69, s69, 1\ns_and_b32 s69, s69, 3")
    a("s_add_u32 s12, s12, 25600")
    a("s_setpc_b64 s[62:63]")
    phi_sub(a); tile_to_lds_sub(a)
    a.label("L_codeend")

def main(out):
    a = Asm()
    a.lines.append(f"; @launch grid=(256,1,1) block=(640,1,1) lds={LDS_TOTAL}")
    a('.amdgcn_target "amdgcn-amd-amdhsa--gfx950"')
    a(".text")
    gen(a)
    a('.section .rodata,"a"')
    open(out, "w").write(a.text() + descriptor(NAME + "_kernel", NV, 102))

if __name__ == "__main__":
    main(sys.argv[1] if len(sys.argv) > 1 else f"cdna_kernels/{NAME}.s")
```

```python
import sys, struct, os
from asmlib import *

NAME = "concat_heads__grouped_kv_mqa__linear_attn_block__prompt"
STAMP = bool(os.environ.get("STAMP"))
OPT = dict(kv.split("=") for kv in os.environ.get("OPT", "").split(",") if kv)
PFB = int(OPT.get("pfb", 0))
ONT = OPT.get("ont", "nt")
MAP48 = int(OPT.get("map48", 0))
BS = 3
WS_OA, WS_OB, WS_KV, WS_KVP, WS_KVZ = 0x0, 0x280000, 0x500000, 0xA00000, 0x700000
PST = 6784
FL_KV, FL_P, FL_H, FL_OB, FL_OA = 0x718000, 0x720000, 0x728000, 0x730000, 0x738000
FL_HB = 0x72C000
LCNT = LMISC_ = 163840 - 8
FORCE_REDO = int(OPT.get('redo', 0))
WS_WPB, WS_WPA = 0x740000, 0x740000 + 8 * 102400
WS_ST = 0x900000
WS_SIZE = 0xE00000
TILE = 2816
CH = 4 * TILE
XBYTES = 2048 * 1280
SLOT = 38912
HS = SLOT // 2
IMG_W, IMG_KV = 8192, 18432
LKV = 3 * SLOT
LMISC = 163840 - 16
LKVZ = 112640
LMX = LKV
LWKV = LKV + 20480
LQ = 2 * SLOT
LFR, LPQ, LPART = SLOT, SLOT + 20480, 0
LX = 102400
LRP = 2 * SLOT + 28672
LDS_TOTAL = 163840
SPIN_MAX = 1 << 17
def f32(x): return "0x%08x" % struct.unpack("<I", struct.pack("<f", x))[0]
LOG2E = 1.4426950408889634
CSCALE = LOG2E / (20 ** 0.5)

S0, S1, PP, KA, KB, QB, V0, V1, QA, OO, BACC, BFR = 4, 20, 36, 44, 48, 50, 52, 56, 60, 64, 80, 112
aKA, aKB, aV0, aV1, bW, bX = 136, 137, 138, 139, 140, 141
OAD0, OAD1 = 145, 146
PWR = 147
JA, JB, QF0, QF1, AP0, AP1 = 151, 152, 153, 154, 155, 156
tW1, tW2, tX1, tX2, tO, TL0, TL1 = 157, 158, 159, 160, 161, 162, 163
TLQ = [162, 163, 165, 166]
NV = 167
CPF4 = int(OPT.get('cpf4', 1))
PQA, PQB = 128, 132
T = 4
AFR = [BFR, BFR + 12, 36, 48]
AACC = 4
MASKS = [92, 94, 98, 100]
POS = [[0, 1, 3, 4, 2], [1, 2, 0, 3, 4], [2, 3, 4, 0, 1], [3, 4, 0, 2, 1]]
INV = [[POS[r].index(p) for p in range(5)] for r in range(4)]
def pack3(tab):
    x = 0
    for r in range(4):
        for j in range(5): x |= tab[r][j] << (3 * (5 * r + j))
    return x

def tr(a):
    if not STAMP: return
    a("""
    s_waitcnt lgkmcnt(0)
    s_sub_u32 s90, s88, s84
    s_memtime s[88:89]
    s_mov_b32 m0, s85
    s_add_u32 s85, s85, 1
    v_writelane_b32 v40, s90, m0
    """)
def tr_init(a):
    if STAMP: a("s_mov_b32 s85, 0\nv_mov_b32 v40, 0\ns_mov_b32 s88, s84")
def tr_dump(a):
    if not STAMP: return
    tr(a)
    a(f"""
    s_lshl_b32 s8, s2, 1
    s_add_u32 s8, s8, s10
    s_lshl_b32 s8, s8, 8
    s_add_u32 s8, s8, {WS_ST + 0x40000}
    v_lshlrev_b32 v8, 2, v0
    buffer_store_dword v40, v8, s[40:43], s8 offen
    """)
def stamp_end(a):
    if not STAMP: return
    a(f"""
    s_memtime s[12:13]
    s_waitcnt vmcnt(0)
    s_memtime s[88:89]
    s_memrealtime s[90:91]
    s_waitcnt lgkmcnt(0)
    s_mov_b64 exec, -1
    s_sub_u32 s88, s88, s84
    s_sub_u32 s12, s12, s84
    v_mov_b32 v4, s86
    v_mov_b32 v5, s90
    v_mov_b32 v6, s88
    v_mov_b32 v7, s12
    s_lshl_b32 s8, s2, 4
    s_add_u32 s8, s8, s3
    s_lshl_b32 s8, s8, 4
    s_add_u32 s8, s8, {WS_ST}
    v_mov_b32 v8, 0
    buffer_store_dwordx4 v[4:7], v8, s[40:43], s8 offen
    """)
    for i in range(8): a(f"s_sub_u32 s{16+2*i}, s{16+2*i}, s84\nv_mov_b32 v{12+i}, s{16+2*i}")
    a(f"s_sub_u32 s8, s8, {WS_ST}\ns_lshl_b32 s8, s8, 1\ns_add_u32 s8, s8, {WS_ST + 0xC0000}")
    a("buffer_store_dwordx4 v[12:15], v8, s[40:43], s8 offen\nbuffer_store_dwordx4 v[16:19], v8, s[40:43], s8 offen offset:16")
CTP = OPT.get("ct", "").split("+")
def ct(a, name):
    if STAMP and name in CTP:
        i = CTP.index(name)
        a(f"s_memtime s[{16+2*i}:{17+2*i}]")
def gs(a, idx, t0="v36", t1="v37"):
    if not STAMP: return
    a(f"""
    s_memrealtime s[14:15]
    s_waitcnt lgkmcnt(0)
    v_mov_b32 {t0}, s14
    s_lshl_b32 s14, s2, 6
    s_add_u32 s14, s14, {WS_ST + 0x80000 + 4*idx}
    v_mov_b32 {t1}, 0
    buffer_store_dword {t0}, {t1}, s[40:43], s14 offen
    """)
def pad(a, where):
    p = OPT.get("pad", "")
    if not p.startswith(where + ":"): return
    l = a.newlabel("Lpad")
    a.label(l)
    a(f"s_memrealtime s[14:15]\ns_waitcnt lgkmcnt(0)\ns_sub_u32 s14, s14, s96\ns_cmp_lt_u32 s14, {p.split(':')[1]}\ns_cbranch_scc1 {l}")
def bar(a):
    a("s_barrier"); tr(a)

def dma(a, voff, srdi, soff, extra=""):
    a(f"buffer_load_dwordx4 {voff}, s[{srdi}:{srdi+3}], {soff} offen {extra} lds")
def issue_x(a, srdi, sbase, lds_sgpr):
    a(f"s_lshl_b32 s15, s10, 10")
    a(f"s_add_u32 m0, s15, {lds_sgpr}")
    a(f"s_lshl_b32 s14, s11, 7")
    a(f"s_add_u32 s14, s14, {sbase}")
    for jj in range(4):
        dma(a, "v2", srdi, "s14")
        if jj < 3:
            a("s_add_u32 m0, m0, 2048")
            a("s_add_u32 s14, s14, 20480")
def issue_w(a, srdi, voffs, ld, sbase, lds_sgpr, ldsoff, periods=1, rows_per_period=32):
    a(f"s_mul_i32 s15, s10, {5120*periods}")
    a(f"s_add_u32 s15, s15, {lds_sgpr}")
    a(f"s_add_u32 m0, s15, {ldsoff}")
    a(f"s_mul_i32 s14, s11, {64*ld}")
    a(f"s_add_u32 s14, s14, {sbase}")
    for per in range(periods):
        for p in range(5):
            dma(a, f"v{voffs+p}", srdi, "s14")
            if not (per == periods - 1 and p == 4):
                a("s_add_u32 m0, m0, 1024")
                a(f"s_add_u32 s14, s14, {rows_per_period*ld}" if p == 4 else "s_nop 0")
def wrap_inc(a, reg, step, limit, base=0):
    a(f"s_add_u32 {reg}, {reg}, {step}")
    a(f"s_cmp_eq_u32 {reg}, {limit}")
    a(f"s_cselect_b32 {reg}, {base}, {reg}")
def set_exec(a, n):
    m = (1 << n) - 1
    a(f"s_mov_b32 exec_lo, {m & 0xffffffff:#x}\ns_mov_b32 exec_hi, {m >> 32:#x}")
def poll(a, soff, nlanes, tmp="v30", addr="v19"):
    lp, dn = a.newlabel("Lpoll"), a.newlabel("Lpd")
    set_exec(a, nlanes)
    a("s_mov_b32 s9, 0")
    a.label(lp)
    a(f"buffer_load_dword {tmp}, {addr}, s[40:43], {soff} offen sc1")
    a("s_add_u32 s9, s9, 1")
    a("s_waitcnt vmcnt(0)")
    a(f"v_cmp_ne_u32 vcc, s96, {tmp}")
    a(f"s_cmp_gt_u32 s9, {SPIN_MAX}")
    a(f"s_cbranch_scc1 {dn}")
    a(f"s_cbranch_vccz {dn}")
    a("s_sleep 1")
    a(f"s_branch {lp}")
    a.label(dn)
    a("s_mov_b64 exec, -1")
def publish(a, soff, tmp, zero):
    a(f"v_mov_b32 {tmp}, s96")
    a(f"v_mov_b32 {zero}, 0")
    a("s_mov_b64 exec, 1")
    a(f"buffer_store_dword {tmp}, {zero}, s[40:43], {soff} offen sc1")
    a("s_mov_b64 exec, -1")
def get_nonce(a, tmp, addr):
    a(f"v_mov_b32 {addr}, {LMISC}")
    a(f"ds_read_b32 {tmp}, {addr}")
    a("s_waitcnt lgkmcnt(0)")
    a(f"v_readfirstlane_b32 s96, {tmp}")
def call(a, lbl, link="s[58:59]"):
    a(f"s_call_b64 {link}, {lbl}")
def pf_rows(a, vd, ld, s0, s1):
    a(f"""
    v_mul_u32_u24 v{vd}, 52429, v0
    v_lshrrev_b32 v{vd}, 18, v{vd}
    v_mul_u32_u24 v{vd+1}, 5, v{vd}
    v_sub_u32 v{vd+1}, v0, v{vd+1}
    v_mul_u32_u24 v{vd}, {ld}, v{vd}
    v_lshl_add_u32 v{vd}, v{vd+1}, 7, v{vd}
    s_mul_i32 {s0}, s7, {20*ld}
    s_and_b32 s8, s6, 1
    s_mul_i32 s8, s8, 640
    s_add_u32 {s0}, {s0}, s8
    s_add_u32 {s1}, {s0}, {10*ld}
    """)
def pf_x(a, srdi, vaddr, vd):
    a(f"""
    s_lshr_b32 s8, s6, 1
    s_mul_i32 s8, s8, {512*1280}
    s_mul_i32 s9, s7, 20480
    s_add_u32 s8, s8, s9
    s_add_u32 s9, s8, 8192
    buffer_load_dword v{vd}, {vaddr}, s[{srdi}:{srdi+3}], s8 offen
    buffer_load_dword v{vd+1}, {vaddr}, s[{srdi}:{srdi+3}], s9 offen
    s_add_u32 s9, s8, 16384
    s_mov_b32 exec_hi, 0
    buffer_load_dword v{vd+2}, {vaddr}, s[{srdi}:{srdi+3}], s9 offen
    s_mov_b32 exec_hi, -1
    """)

def phi_sub(a):
    a.label("g_pack")
    a("s_mov_b64 exec, -1")
    for i in range(16):
        a(f"v_cvt_pk_bf16_f32 v{BACC+i}, v{BACC+2*i}, v{BACC+2*i+1}")
    a("s_setpc_b64 s[58:59]")
def read_qfrag(a, qa, qb):
    a(f"ds_read_b128 v[{qa}:{qa+3}], v{QF1}")
    a(f"ds_read_b64 v[{qb}:{qb+1}], v{QF0}")
def o_epilogue(a, O, wsoff, eps):
    if eps:
        a(f"v_add_f32 v{O+12}, {f32(1e-6)}, v{O+12}")
    a(f"v_rcp_f32 v{O+12}, v{O+12}")
    a(f"s_add_u32 s8, s81, {wsoff}")
    a(f"s_add_u32 s9, s82, {wsoff}")
    for i in range(0, 12, 2):
        a(f"v_pk_mul_f32 v[{O+i}:{O+i+1}], v[{O+i}:{O+i+1}], v[{O+12}:{O+13}] op_sel_hi:[1,0]")
    for i in range(6):
        a(f"v_cvt_pk_bf16_f32 v{O+i}, v{O+2*i}, v{O+2*i+1}")
    a(f"buffer_store_dwordx4 v[{O}:{O+3}], v{OAD1}, s[40:43], s8 offen sc1")
    a("s_mov_b32 exec_hi, 0")
    a(f"buffer_store_dwordx2 v[{O+4}:{O+5}], v{OAD0}, s[40:43], s9 offen sc1")
    a("s_mov_b32 exec_hi, -1")
def rowmax(a, S, dst, first=True):
    regs = [f"v{S+i}" for i in range(16)]
    if first:
        a(f"v_max3_f32 v{dst}, {regs[0]}, {regs[1]}, {regs[2]}")
        rest = regs[3:]
    else:
        rest = regs
    while len(rest) >= 2:
        a(f"v_max3_f32 v{dst}, v{dst}, {rest[0]}, {rest[1]}")
        rest = rest[2:]
    if rest:
        a(f"v_max_f32 v{dst}, v{dst}, {rest[0]}")
def set_m(a, m, tmp, keep):
    a(f"""
    v_mov_b32 v{tmp}, v{m}
    s_nop 1
    v_permlane32_swap_b32 v{m}, v{tmp}
    s_nop 1
    v_max_f32 v{keep}, v{m}, v{tmp}
    s_mov_b32 exec_lo, 0
    v_sub_f32 v{m}, 0, v{keep}
    v_and_b32 v{tmp}, 0xffff0000, v{m}
    v_sub_f32 v{m}, v{m}, v{tmp}
    v_lshrrev_b32 v{QB}, 16, v{tmp}
    v_and_b32 v{tmp}, 0xffff0000, v{m}
    v_sub_f32 v{m}, v{m}, v{tmp}
    v_or_b32 v{QB}, v{QB}, v{tmp}
    v_lshrrev_b32 v{QB+1}, 16, v{m}
    s_mov_b32 exec_lo, -1
    """)

def precompute(a):
    t = 12
    a(f"""
    v_and_b32 v1, 31, v0
    v_lshrrev_b32 v2, 5, v0
    v_lshrrev_b32 v3, 2, v1
    v_add_u32 v3, 1, v3
    v_and_b32 v3, 2, v3
    v_mul_u32_u24 v3, 6, v3
    v_xor_b32 v3, v1, v3
    v_lshlrev_b32 v{OAD0}, 3, v0
    v_lshlrev_b32 v{OAD1}, 4, v0
    s_and_b32 s38, s3, 1
    s_lshr_b32 s39, s3, 1
    s_mov_b32 s76, 0
    s_mov_b32 s77, 128
    s_cmp_eq_u32 s3, 1
    s_cselect_b32 s76, 32, s76
    s_cselect_b32 s77, 64, s77
    s_cmp_eq_u32 s3, 2
    s_cselect_b32 s76, 96, s76
    s_cselect_b32 s77, 96, s77
    s_sub_u32 s78, s3, 3
    s_lshl_b32 s78, s78, 2
    s_lshr_b32 s78, 0x20431, s78
    s_and_b32 s78, s78, 15
    s_lshl_b32 s8, s78, 6
    s_add_u32 s8, s8, {IMG_KV}
    s_add_u32 s9, s76, {IMG_W}
    s_sub_u32 s64, s77, s76
    s_cmp_lt_u32 s3, 3
    s_cselect_b32 s60, s9, s8
    s_cselect_b32 s64, s64, 32
    s_mov_b32 s61, 320
    s_cselect_b32 s61, 160, s61
    v_bfe_u32 v{t}, v0, 2, 2
    v_lshl_add_u32 v{t+1}, v2, 3, v{t}
    v_mul_u32_u24 v{t+1}, s61, v{t+1}
    v_bfe_u32 v{t+3}, v0, 4, 1
    v_mul_u32_u24 v{t+2}, s64, v{t+3}
    v_and_b32 v{t+6}, 3, v0
    v_lshlrev_b32 v{t+6}, 3, v{t+6}
    v_add3_u32 v{t+1}, v{t+1}, v{t+2}, v{t+6}
    v_add_u32 v{bW}, s60, v{t+1}
    v_bfe_u32 v{t+2}, v0, 1, 3
    v_xor_b32 v{t+2}, v{t+2}, v2
    v_lshlrev_b32 v{t+2}, 4, v{t+2}
    v_lshl_or_b32 v{bX}, v1, 7, v{t+2}
    v_xor_b32 v{bX+1}, 32, v{bX}
    v_xor_b32 v{bX+2}, 64, v{bX}
    v_xor_b32 v{bX+3}, 96, v{bX}
    """)
    a(f"""
    s_mul_i32 s80, s4, {64*2560}
    s_mul_i32 s8, s5, 160
    s_add_u32 s80, s80, s8
    s_cmp_ge_u32 s3, 4
    s_cbranch_scc1 PC_tz
    s_lshl_b32 s9, s39, 6
    s_add_u32 s80, s80, s9
    s_mul_i32 s10, s38, {32*2560}
    s_add_u32 s80, s80, s10
    s_mul_i32 s8, s38, 5120
    s_add_u32 s8, s8, {LX}
    s_lshl_b32 s9, s39, 10
    v_add_u32 v{tW1}, s9, v{OAD1}
    s_lshl_b32 s9, s39, 8
    s_add_u32 s9, s9, 2560
    v_mul_u32_u24 v{tW2}, 3200, v2
    v_lshl_add_u32 v{tW2}, v1, 3, v{tW2}
    v_add_u32 v{tW2}, s9, v{tW2}
    v_add_u32 v{tX1}, s8, v{OAD1}
    v_add_u32 v{tX2}, s8, v{OAD0}
    s_branch PC_td
    """)
    a.label("PC_tz")
    a(f"""
    s_sub_u32 s8, s3, 4
    s_mul_i32 s10, s8, {16*2560}
    s_add_u32 s80, s80, s10
    s_lshl_b32 s9, s38, 4
    s_lshr_b32 s8, s8, 1
    s_mul_i32 s8, s8, 5120
    s_add_u32 s8, s8, {LX}
    v_lshrrev_b32 v{t}, 4, v0
    v_and_b32 v{t+2}, 15, v0
    v_mul_u32_u24 v{tW1}, 3200, v2
    v_lshl_add_u32 v{tW1}, v1, 4, v{tW1}
    v_add_u32 v{tW1}, 2048, v{tW1}
    v_mul_u32_u24 v{tW2}, 3200, v{t}
    v_lshl_add_u32 v{tW2}, v{t+2}, 3, v{tW2}
    v_add_u32 v{tW2}, {2560+512}, v{tW2}
    v_add_u32 v{t+2}, s9, v{t+2}
    v_lshl_add_u32 v{t+4}, v{t}, 5, v{t+2}
    v_lshlrev_b32 v{tX2}, 3, v{t+4}
    v_add_u32 v{tX2}, s8, v{tX2}
    v_lshlrev_b32 v{tX1}, 4, v{t+4}
    v_add_u32 v{tX1}, s8, v{tX1}
    """)
    a.label("PC_td")
    a(f"v_mov_b32 v{tO}, 0")
    a(f"""
    v_add_u32 v{aKA}, {LKV}, v{OAD1}
    v_lshlrev_b32 v{aKB}, 3, v1
    v_add_u32 v{aKB}, {LKV+1024}, v{aKB}
    v_mul_u32_u24 v{aV0}, 320, v2
    v_lshl_add_u32 v{aV0}, v1, 4, v{aV0}
    v_add_u32 v{aV0}, {LKV+1280}, v{aV0}
    v_add_u32 v{aV1}, 640, v{aV0}
    v_mov_b32 v{AP0}, v3
    s_mov_b32 exec_lo, 0x0ff00000
    s_mov_b32 exec_hi, 0
    v_mov_b32 v{aV0}, {LKV+2560+16*4}
    v_mov_b32 v{aV1}, {LKV+2560+16*12}
    s_mov_b32 exec_lo, 0xf0000000
    v_mov_b32 v{aV0}, {LKV+2560+16*12}
    v_mov_b32 v{aV1}, {LKV+2560+16*4}
    s_mov_b32 exec_lo, 0
    s_mov_b32 exec_hi, 0x0ff00000
    v_mov_b32 v{aV0}, {LKV+2560+16*8}
    v_mov_b32 v{aV1}, {LKV+2560}
    s_mov_b32 exec_hi, 0xf0000000
    v_mov_b32 v{aV0}, {LKV+2560}
    v_mov_b32 v{aV1}, {LKV+2560+16*8}
    s_mov_b32 exec_lo, 0xeef00000
    s_mov_b32 exec_hi, 0xeef00000
    v_add_u32 v{aV0}, 16, v{aV0}
    v_add_u32 v{aV1}, 16, v{aV1}
    s_mov_b32 exec_lo, 0xfff00000
    s_mov_b32 exec_hi, 0xfff00000
    v_mov_b32 v{AP0}, 20
    s_mov_b32 exec_lo, 0
    s_mov_b32 exec_hi, -1
    v_mov_b32 v{aKB}, {LKV+2560}
    s_mov_b64 exec, -1
    s_mul_i32 s8, s39, 840
    s_add_u32 s8, s8, {LKVZ}
    v_mul_u32_u24 v{AP0}, 40, v{AP0}
    v_add_u32 v{AP0}, s8, v{AP0}
    v_lshl_add_u32 v{AP1}, v2, 4, v{AP0}
    s_lshl_b32 s10, s4, 3
    s_add_u32 s10, s10, s5
    s_lshl_b32 s10, s10, 1
    s_add_u32 s10, s10, s38
    s_mul_i32 s10, s10, 5120
    s_lshl_b32 s81, s39, 10
    s_add_u32 s81, s81, s10
    s_lshl_b32 s82, s39, 8
    s_add_u32 s82, s82, s10
    s_add_u32 s82, s82, 4096
    s_mul_i32 s8, s38, 5120
    s_add_u32 s8, s8, {LQ}
    s_lshl_b32 s9, s39, 10
    s_add_u32 s9, s9, s8
    v_add_u32 v{QF1}, s9, v{OAD1}
    s_lshl_b32 s9, s39, 8
    s_add_u32 s9, s9, s8
    s_add_u32 s9, s9, 4096
    v_lshlrev_b32 v{QF0}, 3, v1
    v_add_u32 v{QF0}, s9, v{QF0}
    """)
    for qq in range(4):
        a(f"""
        s_lshr_b32 s8, s{76 + (qq >> 1)}, 3
        s_add_u32 s8, s8, {2 * (qq & 1)}
        v_add_u32 v{t}, s8, v2
        v_mul_u32_u24 v{t+1}, 52, v{t}
        v_lshrrev_b32 v{t+1}, 8, v{t+1}
        v_mul_u32_u24 v{t+2}, 5, v{t+1}
        v_sub_u32 v{t+2}, v{t}, v{t+2}
        v_lshlrev_b32 v{TLQ[qq]}, 10, v{t+1}
        v_lshl_add_u32 v{TLQ[qq]}, v1, 4, v{TLQ[qq]}
        v_lshrrev_b32 v{t+3}, 1, v{t+2}
        v_lshl_add_u32 v{TLQ[qq]}, v{t+3}, 9, v{TLQ[qq]}
        v_and_b32 v{t+3}, 1, v{t+2}
        v_lshl_add_u32 v{TLQ[qq]}, v{t+3}, 3, v{TLQ[qq]}
        v_cmp_eq_u32 vcc, 4, v{t+2}
        s_mov_b64 exec, vcc
        v_lshlrev_b32 v{TLQ[qq]}, 8, v{t+1}
        v_lshl_add_u32 v{TLQ[qq]}, v1, 3, v{TLQ[qq]}
        v_add_u32 v{TLQ[qq]}, 4096, v{TLQ[qq]}
        s_mov_b64 exec, -1
        v_add_u32 v{TLQ[qq]}, {LQ}, v{TLQ[qq]}
        """)
    a(f"""
    s_add_u32 s9, s3, 1
    s_lshr_b32 s9, s9, 1
    s_add_u32 s9, s9, 2
    s_sub_u32 s10, s3, 5
    s_cmp_ge_u32 s3, 5
    s_cselect_b32 s12, s10, s39
    s_cselect_b32 s13, 0, s9
    s_lshl_b32 s10, s12, 12
    s_lshl_b32 s9, s13, 12
    v_add_u32 v{JA}, s10, v{OAD1}
    v_add_u32 v{JB}, s9, v{OAD1}
    s_lshl_b32 s10, s12, 5
    s_lshl_b32 s9, s13, 5
    s_sub_u32 s9, s9, 80
    v_lshlrev_b32 v{t}, 2, v2
    v_add_u32 v{t}, s10, v{t}
    v_add_u32 v{t+1}, s9, v1
    v_and_b32 v{t+2}, 0xffff, v{t+1}
    v_mul_u32_u24 v{t+2}, 3277, v{t+2}
    v_lshrrev_b32 v{t+2}, 16, v{t+2}
    v_mul_u32_u24 v{t+3}, 80, v{t+1}
    s_cmp_ge_u32 s3, 5
    s_cbranch_scc1 PC_z
    """)
    for z in range(2):
        for q in range(4):
            m = MASKS[q]
            a(f"v_add_u32 v{t+4}, {8*q}, v{t}")
            a(f"v_mul_u32_u24 v{t+5}, 3277, v{t+4}")
            a(f"v_lshrrev_b32 v{t+5}, 16, v{t+5}")
            if z == 0:
                a(f"v_lshl_add_u32 v{PWR+q}, v{t+4}, 2, v{t+3}")
                a(f"v_cmp_eq_u32 s[{m}:{m+1}], v{t+5}, v{t+2}")
            else:
                a(f"v_add_u32 v{PWR+q}, 1, v{t+5}")
                a(f"v_mul_u32_u24 v{PWR+q}, 1600, v{PWR+q}")
                a(f"v_lshl_add_u32 v{PWR+q}, v{t+4}, 2, v{PWR+q}")
                a(f"v_cmp_gt_u32 s[{m}:{m+1}], 4, v{t+5}")
                a(f"s_and_b32 s{m}, s{m}, 1\ns_and_b32 s{m+1}, s{m+1}, 1")
        if z == 0:
            a("s_branch PC_zd")
            a.label("PC_z")
    a.label("PC_zd")
    for i in range(BACC, BFR + 24): a(f"v_mov_b32 v{i}, 0")

def gen(a):
    K = NAME + "_kernel"
    kernel_begin(a, K)
    if STAMP:
        a("s_memtime s[84:85]\ns_memrealtime s[86:87]")
    a("s_getpc_b64 s[44:45]")
    a.label("L_pc")
    a(f"""
    s_mov_b32 s46, L_codeend-L_pc
    s_mov_b32 s47, 0x20000
    v_lshlrev_b32 v4, {9 if CPF4 else 7}, v0
    s_lshl_b32 s8, s2, 4
    s_and_b32 s8, s8, {0x180 if CPF4 else 0}
    buffer_load_dword v164, v4, s[44:47], s8 offen
    s_cmp_ge_u32 s2, 256
    s_cbranch_scc1 L_end
    s_load_dwordx16 s[16:31], s[0:1], 0
    s_load_dwordx4 s[32:35], s[0:1], 64
    s_load_dwordx2 s[36:37], s[0:1], 80
    v_lshrrev_b32 v1, 6, v0
    v_and_b32 v0, 63, v0
    v_readfirstlane_b32 s3, v1
    s_and_b32 s6, s2, 7
    s_lshr_b32 s7, s2, 3
    """)
    if MAP48:
        a("s_lshl_b32 s4, s6, 2\ns_lshr_b32 s8, s7, 3\ns_add_u32 s4, s4, s8\ns_and_b32 s5, s7, 7")
    else:
        a("s_lshr_b32 s4, s6, 1\ns_lshl_b32 s4, s4, 3\ns_lshr_b32 s8, s7, 2\ns_add_u32 s4, s4, s8\ns_and_b32 s5, s6, 1\ns_lshl_b32 s5, s5, 2\ns_and_b32 s8, s7, 3\ns_add_u32 s5, s5, s8")
    a(f"""
    s_cmp_lt_u32 s3, 8
    s_cbranch_scc1 C_start
    """)
    a("s_setprio 2")
    a("s_sub_u32 s10, s3, 8")
    a("s_mul_i32 s13, s4, 81920")
    a("v_lshlrev_b32 v18, 4, v0")
    a("s_cmp_eq_u32 s10, 1\ns_cbranch_scc1 L_mw")
    a("""
    v_lshrrev_b32 v20, 4, v0
    v_xor_b32 v21, v20, v0
    v_and_b32 v21, 15, v21
    v_lshlrev_b32 v21, 4, v21
    v_mul_u32_u24 v20, 1280, v20
    """)
    for j in range(4):
        a(f"v_xor_b32 v{28+j}, {64*j}, v21")
        a(f"v_add_u32 v{28+j}, v{28+j}, v20")
        if j < 3: a("v_add_u32 v20, 5120, v20")
    a(f"""
    s_mov_b32 m0, {LMX}
    s_lshr_b32 s14, s5, 1
    s_mul_i32 s14, s14, 20480
    s_add_u32 s14, s14, s13
    s_mov_b32 s15, 0
    s_waitcnt lgkmcnt(0)
    """)
    srd(a, 44, 16, XBYTES)
    a.label("L_mx")
    for j in range(4):
        dma(a, f"v{28+j}", 44, "s14")
        a("s_add_u32 m0, m0, 1024")
        a("s_add_u32 s14, s14, 256" if j == 3 else "s_nop 0")
    a("s_add_u32 s15, s15, 1\ns_cmp_lt_u32 s15, 5\ns_cbranch_scc1 L_mx")
    a("s_branch L_md")
    a.label("L_mw")
    a(f"s_mov_b32 m0, {LWKV}\ns_mov_b32 s14, 0")
    a("s_waitcnt lgkmcnt(0)")
    a("s_bitcmp1_b32 s5, 0")
    a("s_cselect_b32 s52, s22, s20")
    a("s_cselect_b32 s53, s23, s21")
    a("s_mov_b32 s54, 25600\ns_mov_b32 s55, 0x20000")
    a.label("L_mwl")
    for i in range(4): a(f"buffer_load_dwordx4 v18, s[52:55], s14 offen offset:{1024*i} lds")
    a("s_add_u32 m0, m0, 4096\ns_add_u32 s14, s14, 4096\ns_cmp_lt_u32 s14, 24576\ns_cbranch_scc1 L_mwl")
    a("buffer_load_dwordx4 v18, s[52:55], s14 offen lds")
    srd(a, 44, 16, XBYTES)
    a("s_branch L_md")
    a.label("C_start")
    a("s_cmp_lg_u32 s3, 4\ns_cbranch_scc1 C_pre")
    a("s_cmp_ge_u32 s2, 8\ns_cbranch_scc1 C_pre")
    a("s_memrealtime s[8:9]\ns_waitcnt lgkmcnt(0)\ns_or_b32 s8, s8, 1")
    srd(a, 44, 34, 256)
    a("v_mov_b32 v8, s8\nv_mov_b32 v9, 0\nv_mov_b32 v10, 0\ns_mov_b64 exec, 1")
    a("buffer_atomic_cmpswap v[8:9], v10, s[44:47], 0 offen sc1")
    a("s_mov_b64 exec, -1")
    a.label("C_pre")
    precompute(a)
    a("s_waitcnt lgkmcnt(0)")
    srd(a, 40, 36, WS_SIZE)
    a("s_cmp_lt_u32 s3, 3\ns_cbranch_scc1 A_q")
    a("s_cmp_eq_u32 s3, 5\ns_cbranch_scc1 A_kvpoll")
    a("s_cmp_lt_u32 s3, 6\ns_cbranch_scc1 A_bars")
    srd(a, 44, 34, 256)
    a(f"""
    v_mov_b32 v10, 0
    v_and_b32 v20, 15, v0
    v_lshrrev_b32 v21, 4, v0
    v_xor_b32 v22, v20, v21
    v_lshlrev_b32 v22, 4, v22
    v_lshl_add_u32 v22, v20, 8, v22
    v_add_u32 v22, {LMX}, v22
    v_xor_b32 v23, 64, v22
    v_xor_b32 v24, 128, v22
    v_xor_b32 v25, 192, v22
    v_bfe_u32 v26, v0, 2, 2
    v_lshl_add_u32 v26, v21, 3, v26
    v_mul_u32_u24 v26, 40, v26
    v_and_b32 v27, 3, v0
    v_lshl_add_u32 v26, v27, 3, v26
    s_lshl_b32 s8, s38, 5
    s_add_u32 s8, s8, {LWKV}
    v_add_u32 v26, s8, v26
    s_lshl_b32 s12, s4, 1
    s_lshr_b32 s8, s5, 2
    s_add_u32 s12, s12, s8
    s_mul_i32 s12, s12, {TILE}
    s_add_u32 s12, s12, {WS_KV}
    s_bfe_u32 s13, s5, 0x10001
    s_lshl_b32 s55, s4, 4
    s_add_u32 s55, s55, s5
    s_lshl_b32 s55, s55, 1
    s_add_u32 s55, s55, s38
    s_lshl_b32 s55, s55, 2
    s_add_u32 s55, s55, {FL_KV}
    v_and_b32 v27, 1, v21
    s_mov_b32 s56, 0
    s_mov_b64 s[48:49], -1
    """)
    for i in range(12, 16): a(f"v_mov_b32 v{i}, 0")
    MF = [BACC + 8 * i for i in range(4)]
    def mini(lbl, orient):
        def mm(st):
            x, w, ac = v(MF[st], 4), v(MF[st] + 4, 4), v(12, 4)
            a(f"v_mfma_f32_16x16x32_bf16 {ac}, {w}, {x}, {ac}" if orient == "R" else f"v_mfma_f32_16x16x32_bf16 {ac}, {x}, {w}, {ac}")
        a("s_barrier")
        a("buffer_load_dword v11, v10, s[44:47], 0 offen sc1")
        a.label(lbl)
        for st in range(4):
            f = MF[st]
            a(f"ds_read_b128 v[{f}:{f+3}], v{22+st}")
            for hf in range(2):
                a(f"ds_read_b64_tr_b16 v[{f+4+2*hf}:{f+5+2*hf}], v26 offset:{(32*st+4*hf)*40}")
            a(f"v_add_u32 v{22+st}, 4096, v{22+st}")
            a("s_waitcnt lgkmcnt(9)")
            mm((st + 1) % 4)
        a("v_add_u32 v26, 5120, v26")
        a(f"s_add_u32 s56, s56, 1\ns_cmp_lt_u32 s56, 5\ns_cbranch_scc1 {lbl}")
        for st, w in ((1, 6), (2, 3), (3, 0)):
            a(f"s_waitcnt lgkmcnt({w})"); mm(st)
    a("s_bitcmp1_b32 s5, 0")
    a("s_cbranch_scc1 M_v")
    a(f"""
    s_lshl_b32 s8, s13, 4
    v_add_u32 v20, s8, v20
    v_lshlrev_b32 v28, 4, v20
    v_lshl_add_u32 v28, v2, 9, v28
    v_lshl_add_u32 v28, v27, 3, v28
    s_cmp_eq_u32 s3, 6
    s_cbranch_scc1 M_k0
    v_lshlrev_b32 v28, 3, v20
    v_add_u32 v28, 1024, v28
    s_mov_b32 exec_lo, 0xffff0000
    v_lshlrev_b32 v28, 3, v20
    v_add_u32 v28, 2560, v28
    s_mov_b32 exec_lo, -1
    s_mov_b32 s49, 0
    """)
    a.label("M_k0")
    mini("M_kl", "R")
    a(f"s_mov_b32 s8, {f32(CSCALE)}\ns_nop 6")
    a("v_pk_mul_f32 v[12:13], v[12:13], s[8:9] op_sel_hi:[1,0]\nv_pk_mul_f32 v[14:15], v[14:15], s[8:9] op_sel_hi:[1,0]")
    a("v_cvt_pk_bf16_f32 v12, v12, v13\nv_cvt_pk_bf16_f32 v13, v14, v15")
    a("s_cmp_eq_u32 s3, 6\ns_cbranch_scc1 M_st")
    a("s_mov_b32 exec_lo, 0xffff0000")
    a("v_mov_b32 v12, 0x3f803f80\nv_mov_b32 v13, 0x3f803f80")
    a("s_mov_b32 exec_lo, 0xcccc0000\nv_mov_b32 v12, 0\nv_mov_b32 v13, 0")
    a("s_branch M_st")
    a.label("M_v")
    a(f"""
    s_mul_i32 s8, s13, 640
    s_add_u32 s12, s12, s8
    s_lshl_b32 s8, s38, 8
    s_add_u32 s12, s12, s8
    s_add_u32 s12, s12, 1280
    v_lshrrev_b32 v28, 2, v20
    v_add_u32 v28, 1, v28
    v_and_b32 v28, 2, v28
    v_mul_u32_u24 v28, 6, v28
    v_xor_b32 v28, v20, v28
    v_mul_u32_u24 v29, 320, v27
    v_lshl_add_u32 v29, v2, 3, v29
    v_lshl_add_u32 v28, v28, 4, v29
    s_cmp_eq_u32 s3, 6
    s_cselect_b32 s48, -1, 0x000f000f
    s_mov_b32 s49, s48
    """)
    mini("M_vl", "C")
    a("s_nop 7")
    a("v_cvt_pk_bf16_f32 v12, v12, v13\nv_cvt_pk_bf16_f32 v13, v14, v15")
    a.label("M_st")
    a("s_mov_b64 exec, s[48:49]")
    a("buffer_store_dwordx2 v[12:13], v28, s[40:43], s12 offen sc1")
    a("s_mov_b64 exec, -1")
    gs(a, 0, "v30", "v31")
    a("s_barrier")
    for i in range(32): a(f"v_mov_b32 v{BACC+i}, 0")
    a("s_barrier")
    a("s_mov_b32 s9, 0")
    a.label("A_np")
    a("s_add_u32 s9, s9, 1")
    a("s_waitcnt vmcnt(0)")
    a("v_cmp_eq_u32 vcc, 0, v11")
    a(f"s_cmp_gt_u32 s9, {SPIN_MAX}\ns_cbranch_scc1 A_nd\ns_cbranch_vccz A_nd\ns_sleep 1")
    a("buffer_load_dword v11, v10, s[44:47], 0 offen sc1")
    a("s_branch A_np")
    a.label("A_nd")
    a("s_mov_b64 exec, 1")
    a("buffer_store_dword v11, v10, s[40:43], s55 offen sc1")
    a("s_mov_b64 exec, -1")
    a(f"v_mov_b32 v5, {LMISC}\nds_write_b32 v5, v11\nds_write_b32 v5, v10 offset:8\nds_write_b32 v5, v10 offset:4\ns_waitcnt lgkmcnt(0)")
    gs(a, 1, "v30", "v31")
    a("s_branch A_bars8")
    a.label("A_kvpoll")
    a("v_lshrrev_b32 v20, 1, v0\nv_lshlrev_b32 v20, 7, v20\nv_and_b32 v21, 1, v0\nv_lshl_add_u32 v20, v21, 4, v20")
    a(f"v_mov_b32 v18, v{OAD1}")
    a("s_and_b32 s60, s7, 15")
    a(f"s_mov_b32 s61, {LKV}\ns_mov_b32 s12, {FL_KV}\ns_mov_b32 s9, 0")
    KP = int(OPT.get("kp", 6))
    for i in range(KP + 1): a("s_barrier")
    get_nonce(a, "v22", "v23")
    a("s_barrier\ns_sleep 3")
    def kvl():
        a("buffer_load_dwordx4 v[24:27], v20, s[40:43], s12 offen sc1")
        a("buffer_load_dwordx4 v[28:31], v20, s[40:43], s12 offen offset:32 sc1")
    kvl()
    a("s_barrier\ns_barrier\ns_barrier")
    a(f"s_mov_b32 s13, {6 - KP}")
    a.label("A_kq")
    a("s_add_u32 s9, s9, 1")
    a("s_waitcnt vmcnt(0)")
    for i in range(8): a(f"v_xor_b32 v{24+i}, s96, v{24+i}")
    a("v_or3_b32 v24, v24, v25, v26\nv_or3_b32 v27, v27, v28, v29\nv_or3_b32 v24, v24, v30, v31\nv_or_b32 v24, v24, v27\nv_cmp_ne_u32 vcc, 0, v24")
    a(f"s_cmp_gt_u32 s9, {SPIN_MAX}\ns_cbranch_scc1 A_kd\ns_cbranch_vccz A_kd\ns_sleep 1")
    kvl()
    a("s_cmp_eq_u32 s13, 0\ns_cbranch_scc1 A_kq\ns_barrier\ns_sub_u32 s13, s13, 1\ns_branch A_kq")
    a.label("A_kd")
    gs(a, 4, "v30", "v31")
    call(a, "L_issueKV", "s[62:63]")
    a.label("A_kr")
    a("s_cmp_eq_u32 s13, 0\ns_cbranch_scc1 A_ke\ns_barrier\ns_sub_u32 s13, s13, 1\ns_branch A_kr")
    a.label("A_ke")
    for i in range(3 if BS >= 2 else 2): call(a, "L_issueKV", "s[62:63]")
    a(f"s_waitcnt vmcnt({33 if BS >= 2 else 22})")
    a("s_branch A_done")
    a.label("A_bars")
    for i in range(3): a("s_barrier")
    a.label("A_bars8")
    for i in range(8): a("s_barrier")
    a("s_waitcnt vmcnt(0)")
    a("s_branch A_done")
    a.label("A_q")
    def ard(st, i):
        f = AFR[st]
        if i < 2: a(f"ds_read_b64_tr_b16 v[{f+2*i}:{f+2*i+1}], v{bW} offset:{(16*st+4*i)*160}")
        else: a(f"ds_read_b128 v[{f+4*(i-1)}:{f+4*(i-1)+3}], v{bX+st} offset:{4096*(i-2)}")
    def amf(st, blk):
        f = AFR[st]; ac = v(AACC + 16 * blk, 16)
        a(f"v_mfma_f32_32x32x16_bf16 {ac}, v[{f}:{f+3}], v[{f+4+4*blk}:{f+7+4*blk}], {ac}")
    a(f"s_mov_b32 s56, 0\ns_mov_b32 s70, {HS}\ns_mov_b32 s74, {-5*HS}\ns_mov_b32 s75, {-3*HS}")
    for i in range(32): a(f"v_mov_b32 v{AACC+i}, 0")
    a("s_barrier\ns_barrier")
    for st in (0, 1, 2):
        for i in range(4): ard(st, i)
    a("s_branch A_mid")
    a(".p2align 3")
    a.label("A_loop")
    a("s_waitcnt lgkmcnt(0)\ns_barrier")
    seq = [(st, i) for st in (0, 1, 2) for i in range(4)]
    for n, (st, blk) in enumerate(((2, 0), (2, 1), (3, 0), (3, 1))):
        amf(st, blk)
        for x in seq[3 * n:3 * n + 3]: ard(*x)
    a.label("A_mid")
    a("s_add_u32 s56, s56, 1\ns_cmp_eq_u32 s56, 6\ns_cselect_b32 s8, s74, s70")
    a("s_waitcnt lgkmcnt(8)")
    amf(0, 0); ard(3, 0); ard(3, 1)
    a("s_cmp_lt_u32 s56, 10\ns_cselect_b32 s8, s8, s75")
    amf(0, 1); ard(3, 2); ard(3, 3)
    a("s_waitcnt lgkmcnt(8)")
    a(f"v_add_u32 v{bW}, s8, v{bW}")
    amf(1, 0)
    for j in range(4): a(f"v_add_u32 v{bX+j}, s8, v{bX+j}")
    amf(1, 1)
    a("s_cbranch_scc1 A_loop")
    a("s_waitcnt lgkmcnt(4)")
    amf(2, 0)
    for i in range(6): a(f"v_mov_b32 v{BFR+i}, 0")
    a("s_waitcnt lgkmcnt(0)")
    amf(3, 0)
    for i in range(6, 12): a(f"v_mov_b32 v{BFR+i}, 0")
    amf(2, 1)
    for i in range(12, 18): a(f"v_mov_b32 v{BFR+i}, 0")
    amf(3, 1)
    for i in range(18, 24): a(f"v_mov_b32 v{BFR+i}, 0")
    for blk in range(2):
        for qq in range(4):
            r0 = AACC + 16 * blk + 4 * qq
            a(f"v_cvt_pk_bf16_f32 v{r0}, v{r0}, v{r0+1}\nv_cvt_pk_bf16_f32 v{r0+1}, v{r0+2}, v{r0+3}")
            a(f"ds_write_b64 v{TLQ[qq]}, v[{r0}:{r0+1}] offset:{5120*blk}")
    a.label("A_done")
    def rdKA(t): a(f"ds_read_b128 v[{KA}:{KA+3}], v{aKA} offset:{t*TILE}")
    def rdKB(t): a(f"ds_read_b64 v[{KB}:{KB+1}], v{aKB} offset:{t*TILE}")
    def rdV0(t): a(f"ds_read_b128 v[{V0}:{V0+3}], v{aV0} offset:{t*TILE}")
    def rdV1(t): a(f"ds_read_b128 v[{V1}:{V1+3}], v{aV1} offset:{t*TILE}")
    def qka(S): a(f"v_mfma_f32_32x32x16_bf16 v[{S}:{S+15}], v[{KA}:{KA+3}], v[{QA}:{QA+3}], 0")
    def qkb(S): a(f"v_mfma_f32_32x32x8_bf16 v[{S}:{S+15}], v[{KB}:{KB+1}], v[{QB}:{QB+1}], v[{S}:{S+15}]")
    def pv0(): a(f"v_mfma_f32_32x32x16_bf16 v[{OO}:{OO+15}], v[{V0}:{V0+3}], v[{PP}:{PP+3}], v[{OO}:{OO+15}]")
    def pv1(): a(f"v_mfma_f32_32x32x16_bf16 v[{OO}:{OO+15}], v[{V1}:{V1+3}], v[{PP+4}:{PP+7}], v[{OO}:{OO+15}]")
    def E(S, lo, hi, w=None):
        for i in range(lo, hi):
            if w is not None and i == hi - 1:
                a(w if isinstance(w, str) else f"s_waitcnt lgkmcnt({w})"); a(f"v_exp_f32_e64 v{S+i}, v{S+i}")
            else: a(f"v_exp_f32 v{S+i}, v{S+i}")
    def c1(k, S): a(f"v_cvt_pk_bf16_f32 v{PP+k}, v{S+2*k}, v{S+2*k+1}")
    def C(S, g): c1(2 * g, S); c1(2 * g + 1, S)
    ct(a, "a0")
    a("s_waitcnt lgkmcnt(0)\ns_barrier")
    ct(a, "p0")
    read_qfrag(a, QA, QB)
    rdKA(0); rdKB(0)
    a(f"ds_read_b128 v[{V1}:{V1+3}], v{aKA} offset:{TILE}")
    rdV0(0)
    a(f"v_mov_b32 v{PP}, {LMISC}\nds_read_b32 v{PP+3}, v{PP}")
    a("s_mov_b32 exec_lo, 0")
    a("s_waitcnt lgkmcnt(3)")
    a(f"v_mov_b32 v{QB}, 0\nv_mov_b32 v{QB+1}, 0")
    a("s_mov_b32 exec_lo, -1")
    ct(a, "p1")
    qka(S0); qkb(S0)
    rdKB(1); rdKA(2)
    a("s_waitcnt lgkmcnt(2)")
    a(f"v_mfma_f32_32x32x16_bf16 v[{S1}:{S1+15}], v[{V1}:{V1+3}], v[{QA}:{QA+3}], 0")
    rdV1(0)
    a(f"v_readfirstlane_b32 s96, v{PP+3}")
    a("s_nop 5")
    ct(a, "p2")
    rowmax(a, S0, PP)
    set_m(a, PP, PP + 1, PP + 2)
    ct(a, "p3")
    for i in range(0, 16, 2): a(f"v_pk_add_f32 v[{S0+i}:{S0+i+1}], v[{S0+i}:{S0+i+1}], v[{PP+2}:{PP+3}] op_sel_hi:[1,0] neg_lo:[0,1] neg_hi:[0,1]")
    a(".p2align 3")
    E(S0, 0, 4, 2)
    qkb(S1); rdKB(2); C(S0, 0); E(S0, 4, 8); a("s_nop 0\ns_nop 0"); C(S0, 1); E(S0, 8, 12)
    a(f"v_mfma_f32_32x32x16_bf16 v[{OO}:{OO+15}], v[{V0}:{V0+3}], v[{PP}:{PP+3}], 0")
    rdV0(1); C(S0, 2); E(S0, 12, 16, 3); C(S0, 3)
    def plain(n, t=0):
        Sc, Sn = (S0, S1) if n % 2 == 0 else (S1, S0)
        if t == 63:
            E(Sc, 0, 4, 1); pv1(); rdV1(15); C(Sc, 0); E(Sc, 4, 8); a("s_nop 0\ns_nop 0"); C(Sc, 1); E(Sc, 8, 12, 1)
            pv0(); C(Sc, 2); E(Sc, 12, 16); C(Sc, 3)
            return
        if t == 62:
            qka(Sn); E(Sc, 0, 4, 2)
            pv1(); rdV1(14); C(Sc, 0); E(Sc, 4, 8, 2)
            qkb(Sn); C(Sc, 1); E(Sc, 8, 12, 1)
            pv0(); rdV0(15); C(Sc, 2); E(Sc, 12, 16); C(Sc, 3)
            return
        qka(Sn); rdKA((n + 2) % 16); E(Sc, 0, 4, 3)
        pv1(); rdV1(n); C(Sc, 0); E(Sc, 4, 8, 3)
        qkb(Sn); rdKB((n + 2) % 16); C(Sc, 1); E(Sc, 8, 12, 3)
        pv0(); rdV0((n + 1) % 16); C(Sc, 2); E(Sc, 12, 16, 3); C(Sc, 3)
    for n in range(1, 12):
        if n == 1: ct(a, "p4")
        if n == 2:
            ct(a, "p5"); a("s_waitcnt vmcnt(0)"); ct(a, "p6"); a("s_barrier")
        if n == 5:
            a(f"s_mov_b64 exec, 1\nv_mov_b32 v3, 1\nv_mov_b32 v164, {LMISC}\nds_add_u32 v164, v3 offset:4\ns_mov_b64 exec, -1\ns_nop 0")
        plain(n)
    a(f"s_mov_b32 s8, {3*CH}")
    for r in (aKA, aKB, aV0, aV1): a(f"v_add_u32 v{r}, s8, v{r}")
    a(f"s_mov_b32 s56, 0\ns_mov_b32 s68, 0\ns_mov_b32 s70, {SLOT}\ns_mov_b32 s74, {-2*SLOT}\ns_mov_b32 s72, {CH}\ns_mov_b32 s73, {-3*CH}")
    a("s_waitcnt lgkmcnt(0)")
    a("s_cmp_ge_u32 s3, 3\ns_cbranch_scc1 FU_C")
    def G(orient, s_, blk):
        f = BFR + 12 * s_; w, x, ac = v(f, 4), v(f + 4 + 4 * blk, 4), v(BACC + 16 * blk, 16)
        a(f"v_mfma_f32_32x32x16_bf16 {ac}, {w}, {x}, {ac}" if orient == "R" else f"v_mfma_f32_32x32x16_bf16 {ac}, {x}, {w}, {ac}")
    def GR(orient, s_, st):
        f = BFR + 12 * s_; stride = 160 if orient == "R" else 320
        for hf in range(2): a(f"ds_read_b64_tr_b16 v[{f+2*hf}:{f+2*hf+1}], v{bW} offset:{(16*st+4*hf)*stride}")
        for blk in range(2): a(f"ds_read_b128 v[{f+4+4*blk}:{f+7+4*blk}], v{bX+st} offset:{4096*blk}")
    for orient in ("R", "C"):
        a(".p2align 3")
        a.label("FU_" + orient)
        a("s_and_b32 s9, s56, 3\ns_cselect_b32 s9, s72, s73")
        for n in range(4):
            Sc, Sn = (S0, S1) if n % 2 == 0 else (S1, S0)
            def slot(i, w=None):
                c1((i - 1) % 8, Sn if i == 0 else Sc)
                E(Sc, 2 * i, 2 * i + 2, w)
            def va(*regs, sg):
                for r in regs: a(f"v_add_u32 v{r}, {sg}, v{r}")
            G(orient, 0, 0)
            if n == 2: va(aKA, aKB, sg="s9")
            slot(0, 11)
            qka(Sn); rdKA((n + 2) % 4); slot(1)
            if n % 2 == 0:
                a("s_waitcnt lgkmcnt(1)\ns_barrier")
                a("s_add_u32 s68, s68, 1\ns_cmp_eq_u32 s68, 3\ns_cselect_b32 s8, s74, s70\ns_cselect_b32 s68, 0, s68")
            G(orient, 0, 1); GR(orient, 0, (2 * n) % 4); slot(2, 11)
            pv1(); rdV1(n); slot(3, 11)
            qkb(Sn); rdKB((n + 2) % 4); slot(4, 7)
            G(orient, 1, 0)
            if n == 3: va(aV0, aV1, sg="s9")
            slot(5)
            pv0(); rdV0((n + 1) % 4); slot(6)
            G(orient, 1, 1); GR(orient, 1, (2 * n + 1) % 4)
            if n % 2 == 0: va(bX, bX + 1, sg="s8")
            else:
                va(bX + 2, bX + 3, bW, sg="s8"); a("s_nop 0")
            slot(7, 7)
        a(f"s_add_u32 s56, s56, 1\ns_cmp_lt_u32 s56, 5\ns_cbranch_scc1 FU_{orient}")
        ct(a, "fe")
        c1(7, S1)
        G(orient, 0, 0)
        a("s_waitcnt lgkmcnt(0)")
        G(orient, 1, 0); G(orient, 0, 1); G(orient, 1, 1)
        a(f"s_mov_b32 s8, {f32(LOG2E)}\ns_mov_b32 s9, {f32(1e-6)}")
        def phi4(r0, X):
            for i in (0, 2): a(f"v_pk_mul_f32 v[{X+i}:{X+i+1}], v[{r0+i}:{r0+i+1}], s[8:9] op_sel_hi:[1,0]")
            for i in range(4): a(f"v_exp_f32_e64 v{X+i}, v{X+i} clamp")
            for i in range(4): a(f"v_max_f32 v{r0+i}, s9, v{r0+i}")
            for i in (0, 2): a(f"v_pk_add_f32 v[{r0+i}:{r0+i+1}], v[{r0+i}:{r0+i+1}], v[{X+i}:{X+i+1}]")
        if orient == "R":
            a("s_nop 7")
            for half in range(2):
                if half == 1: a("s_cmp_eq_u32 s3, 2\ns_cbranch_scc1 B_jobs")
                for blk in range(2):
                    for q in range(2):
                        r0 = BACC + 16 * blk + 8 * half + 4 * q
                        phi4(r0, BFR)
                        a(f"v_cvt_pk_bf16_f32 v{r0}, v{r0}, v{r0+1}\nv_cvt_pk_bf16_f32 v{r0+1}, v{r0+2}, v{r0+3}")
                        a(f"ds_write_b64 v{TLQ[2*half+q]}, v[{r0}:{r0+1}] offset:{5120*blk}")
            a("s_branch B_jobs")
    a("s_lshl_b32 s10, s78, 12")
    a(f"v_add_u32 v{TL0}, s10, v{OAD1}")
    a("s_cmp_eq_u32 s78, 2\ns_cselect_b32 s10, 0xffff, -1\ns_mov_b32 s11, s10")
    a("s_cmp_ge_u32 s78, 3")
    a("s_nop 1")
    for ks in range(4):
        r0 = BACC + 8 * ks
        l = a.newlabel("B_np")
        a(f"s_cbranch_scc1 {l}")
        a("s_mov_b64 exec, s[10:11]")
        phi4(r0, BFR); phi4(r0 + 4, BFR + 4)
        a("s_mov_b64 exec, -1")
        a.label(l)
        for i in range(4): a(f"v_cvt_pk_bf16_f32 v{r0+i}, v{r0+2*i}, v{r0+2*i+1}")
        a(f"ds_write_b128 v{TL0}, v[{r0}:{r0+3}] offset:{LFR+1024*ks}")
    a(".p2align 3")
    a.label("B_jobs")
    JAF, JBF, JD = BACC, BACC + 16, BFR
    ct(a, "ep")
    plain(0); plain(1)
    a("s_cmp_lt_u32 s3, 5")
    a("s_barrier")
    ct(a, "c10")
    qka(S1); rdKA(4)
    for ks in range(4): a(f"ds_read_b128 v[{JAF+4*ks}:{JAF+4*ks+3}], v{JA} offset:{LFR+1024*ks}")
    a("s_cbranch_scc0 B_z")
    for ks in range(4): a(f"ds_read_b128 v[{JBF+4*ks}:{JBF+4*ks+3}], v{JB} offset:{LFR+1024*ks}")
    a("s_branch B_nob")
    a.label("B_z")
    for i in range(16): a(f"v_mov_b32 v{JBF+i}, 0x3f803f80")
    a(".p2align 3")
    a.label("B_nob")
    read_qfrag(a, PQA, PQB)
    def J(ks):
        c = "0" if ks == 0 else v(JD, 16)
        a(f"v_mfma_f32_32x32x16_bf16 {v(JD,16)}, v[{JAF+4*ks}:{JAF+4*ks+3}], v[{JBF+4*ks}:{JBF+4*ks+3}], {c}")
    E(S0, 0, 4, 7)
    pv1(); rdV1(2); C(S0, 0); E(S0, 4, 8)
    qkb(S1); rdKB(4); C(S0, 1); E(S0, 8, 10, 4)
    J(0); E(S0, 10, 12)
    J(1); C(S0, 2)
    pv0(); rdV0(3); E(S0, 12, 14)
    J(2); E(S0, 14, 16)
    J(3); C(S0, 3)
    a("s_mov_b32 exec_lo, 0")
    a("s_waitcnt lgkmcnt(3)")
    a(f"v_mov_b32 v{PQB}, 0\nv_mov_b32 v{PQB+1}, 0")
    a("s_mov_b32 exec_lo, -1\ns_nop 0")
    def PW(q):
        a(f"s_mov_b64 exec, s[{MASKS[q]}:{MASKS[q]+1}]\ns_nop 0")
        a(f"ds_write_b128 v{PWR+q}, v[{JD+4*q}:{JD+4*q+3}] offset:{LPART}")
        a("s_mov_b64 exec, -1\ns_nop 0")
    qka(S0); rdKA(5); E(S1, 0, 4, 3)
    pv1(); rdV1(3); PW(0); C(S1, 0); E(S1, 4, 8, 4)
    qkb(S0); rdKB(5); PW(1); C(S1, 1); E(S1, 8, 12, 5)
    pv0(); rdV0(4); PW(2); C(S1, 2); E(S1, 12, 16, 6); C(S1, 3); PW(3)
    ct(a, "jw")
    for t in range(36, 54):
        if t % 4 == 2: a("s_barrier\ns_nop 0")
        plain(t % 16)
    a("s_barrier\ns_nop 0")
    AP = BACC
    a(f"ds_read2_b64 v[100:103], v{AP1} offset0:0 offset1:1\nds_read_b64 v[104:105], v{AP0} offset:32")
    qka(S1); rdKA(8); E(S0, 0, 4, 5)
    pv1(); rdV1(6); C(S0, 0); E(S0, 4, 8, 2)
    qkb(S1); rdKB(8); C(S0, 1)
    a(f"v_mfma_f32_32x32x16_bf16 v[{AP}:{AP+15}], v[100:103], v[{PQA}:{PQA+3}], 0")
    E(S0, 8, 12)
    pv0(); rdV0(7); C(S0, 2)
    a(f"v_mfma_f32_32x32x8_bf16 v[{AP}:{AP+15}], v[104:105], v[{PQB}:{PQB+1}], v[{AP}:{AP+15}]")
    E(S0, 12, 16, 3); C(S0, 3)
    qka(S0); rdKA(9); E(S1, 0, 4, 3)
    pv1(); rdV1(7)
    o_epilogue(a, AP, WS_OB, True)
    a(f"v_mov_b32 v100, {LCNT}\nv_mov_b32 v101, 1\ns_mov_b64 exec, 1\nds_add_rtn_u32 v102, v100, v101\ns_mov_b64 exec, -1")
    a(".p2align 3")
    C(S1, 0); E(S1, 4, 8, 4)
    qkb(S0); rdKB(9); C(S1, 1); E(S1, 8, 12, 4)
    pv0(); rdV0(8); C(S1, 2); E(S1, 12, 16, 2); C(S1, 3)
    a(f"v_readfirstlane_b32 s9, v102\ns_lshl_b32 s8, s4, 5\ns_add_u32 s8, s8, s5\ns_lshl_b32 s8, s8, 2\ns_add_u32 s8, s8, {FL_HB}")
    a("s_cmp_eq_u32 s9, 7\ns_cbranch_scc0 AT_n8")
    publish(a, "s8", "v100", "v101")
    a(".p2align 3")
    a.label("AT_n8")
    for t in range(56, 64):
        if t % 4 == 2: a("s_barrier\ns_nop 0")
        plain(t % 16, t)
    srd(a, 44, 32, 2048 * 2560)
    a("s_waitcnt lgkmcnt(0)")
    pv1()
    a("s_mov_b32 s56, 0\ns_mov_b32 s71, 0\ns_mov_b32 s72, 20480\ns_mov_b32 s73, -40960\ns_mov_b32 s74, 25600\ns_mov_b32 s75, -102400")
    a("s_nop 5")
    a(f"v_cmp_nge_f32 vcc, {f32(2.0**40)}, v{OO+12}")
    a("s_nop 1")
    a("s_cbranch_vccnz AT_fallback")
    a.label("AT_ok")
    F = [20 + 8 * i for i in range(10)]
    NANCHK = "v_cmp_u_f32 {}, v4, v4" if not FORCE_REDO else "v_cmp_o_f32 {}, v4, v4"
    OUT = 132
    SW, SR = TL0, TL1
    a("s_cmp_ge_u32 s3, 4\ns_cbranch_scc1 TLz_start")
    def tl_vm(pfx):
        a(f"s_cmp_lg_u32 s56, 2\ns_cbranch_scc1 {pfx}_nv\ns_waitcnt vmcnt(0)")
        a.label(pfx + "_nv")
    def tl_adv():
        a("s_add_u32 s71, s71, 1\ns_cmp_eq_u32 s71, 3\ns_cselect_b32 s8, s73, s72\ns_cselect_b32 s71, 0, s71")
        a(f"v_add_u32 v{tW1}, s74, v{tW1}\nv_add_u32 v{tW2}, s74, v{tW2}\nv_add_u32 v{tX1}, s8, v{tX1}\nv_add_u32 v{tX2}, s8, v{tX2}")
        a("s_add_u32 s56, s56, 1\ns_and_b32 s8, s56, 3")
    def wrd(d, st):
        t, H = divmod(st, 5)
        if H < 4: a(f"ds_read_b128 v[{d}:{d+3}], v{tW1} offset:{12800*t+3200*H}")
        else:
            for hf in range(2): a(f"ds_read_b64 v[{d+2*hf}:{d+2*hf+1}], v{tW2} offset:{12800*t+6400*hf}")
    def xrd(d, st):
        t, H = divmod(st, 5)
        if H < 4: a(f"ds_read_b128 v[{d}:{d+3}], v{tX1} offset:{t*10240+H*1024}")
        else:
            for hf in range(2): a(f"ds_read_b64 v[{d+2*hf}:{d+2*hf+1}], v{tX2} offset:{t*10240+4096+512*hf}")
    def mrd(st): wrd(F[st], st); xrd(F[st] + 4, st)
    def mmf(st): a(f"v_mfma_f32_32x32x16_bf16 v[4:19], v[{F[st]}:{F[st]+3}], v[{F[st]+4}:{F[st]+7}], v[4:19]")
    nrd = lambda st: 4 if st % 5 == 4 else 2
    def m_pack(O):
        for i in range(8): a(f"v_cvt_pk_bf16_f32 v{O+i}, v{4+2*i}, v{5+2*i}")
    def m_turn(O):
        for q in range(4): a(f"ds_write_b64 v{SW}, v[{O+2*q}:{O+2*q+1}] offset:{16*q}")
        for i in range(2): a(f"ds_read_b128 v[{O+4*i}:{O+4*i+3}], v{SR} offset:{1280*i}")
    def m_store(O, off):
        for i in range(2): a(f"buffer_store_dwordx4 v[{O+4*i}:{O+4*i+3}], v{tO}, s[44:47], s{80+i} offen offset:{off} {ONT}")
    WS_ = lambda h, st: 20 + 40 * h + 4 * st
    XS_ = lambda st: 100 + 4 * st
    n1 = lambda st: 2 if st % 5 == 4 else 1
    def mm2(h, st): a(f"v_mfma_f32_32x32x16_bf16 v[4:19], v[{WS_(h,st)}:{WS_(h,st)+3}], v[{XS_(st)}:{XS_(st)+3}], v[4:19]")
    def body(h, mid=None):
        pend = []
        def X(st): xrd(XS_(st), st); pend.extend([("x", st)] * n1(st))
        X(0); X(1); mm2(1 - h, 6); X(2); X(3); mm2(1 - h, 7); X(4); X(5); mm2(1 - h, 8); X(6); X(7); mm2(1 - h, 9)
        if mid: a.label(mid)
        X(8); X(9)
        nw = [(0, 1), (2, 3), (4,), (5, 6), (7, 8), (9,)]
        for st in range(6):
            last = max(i for i, p in enumerate(pend) if p == ("x", st))
            a(f"s_waitcnt lgkmcnt({min(15, len(pend) - 1 - last)})")
            mm2(h, st)
            for w in nw[st]:
                wrd(WS_(1 - h, w), 10 + w); pend.extend([("w", w)] * n1(w))
        tl_adv()
    for st in range(10): wrd(WS_(0, st), st)
    o_epilogue(a, OO, WS_OA, False)
    a.label("TLm_job")
    for i in range(4, 20): a(f"v_mov_b32 v{i}, 0")
    a("s_barrier")
    for st in range(8): xrd(XS_(st), st)
    a("s_branch TLm_mid")
    a(".p2align 3")
    a.label("TLm_loop")
    a("s_waitcnt vmcnt(0) lgkmcnt(12)\ns_barrier")
    body(0, "TLm_mid")
    a("s_waitcnt lgkmcnt(12)\ns_barrier")
    body(1)
    a("s_cbranch_scc1 TLm_loop")
    a("s_cmp_eq_u32 s56, 8\ns_cbranch_scc1 TLm_fin")
    a("s_waitcnt lgkmcnt(12)\ns_barrier")
    a(f"v_add_u32 v{tW1}, s75, v{tW1}\nv_add_u32 v{tW2}, s75, v{tW2}")
    for st in range(6, 10):
        mm2(1, st)
        for w in ((0, 1, 2), (3, 4), (5, 6, 7), (8, 9))[st - 6]: wrd(WS_(0, w), w)
    a(f"""
    v_lshrrev_b32 v{tO}, 2, v0
    v_and_b32 v3, 3, v0
    s_mul_i32 s8, s3, 2560
    s_add_u32 s8, s8, {LX + 40960}
    v_mul_u32_u24 v{SW}, 80, v1
    v_lshl_add_u32 v{SW}, v2, 3, v{SW}
    v_add_u32 v{SW}, s8, v{SW}
    v_lshlrev_b32 v3, 4, v3
    v_mul_u32_u24 v{SR}, 80, v{tO}
    v_add3_u32 v{SR}, v{SR}, v3, s8
    v_mul_u32_u24 v{tO}, 2560, v{tO}
    v_add_u32 v{tO}, v{tO}, v3
    s_add_u32 s81, s80, {16*2560}
    """)

    a(NANCHK.format("s[48:49]"))
    m_pack(OUT + 8)
    a("s_branch TLm_job")
    a.label("TLm_fin")
    a("s_waitcnt lgkmcnt(12)")
    mm2(1, 6)
    m_turn(OUT + 8)
    for st in range(7, 10): mm2(1, st)
    a("s_waitcnt lgkmcnt(0)")
    m_store(OUT + 8, 1280)
    a("s_nop 8")
    a(NANCHK.format("s[50:51]"))
    def m_out():
        m_pack(OUT); m_turn(OUT); a("s_waitcnt lgkmcnt(0)"); m_store(OUT, 0)
    m_out()
    a("s_or_b64 vcc, s[48:49], s[50:51]\ns_cbranch_scc1 TLm_redo")
    a.label("TLm_end")
    stamp_end(a)
    a("s_endpgm")
    def redo(pfx, nacc, loads, mfmas, out):
        a.label(pfx + "_redo")
        a(f"v_add_u32 v{tW1}, s75, v{tW1}\nv_add_u32 v{tW2}, s75, v{tW2}")
        a(f"s_mov_b32 s8, {-(LX + 40960)}\nv_add_u32 v{tX1}, s8, v{tX1}\nv_add_u32 v{tX2}, s8, v{tX2}")
        a(f"v_lshlrev_b32 v100, 2, v0\ns_lshl_b32 s52, s4, 7\ns_add_u32 s52, s52, {FL_OA}")
        a(f"s_mul_i32 s13, s4, 81920\ns_mul_i32 s53, s5, 102400\ns_add_u32 s53, s53, {WS_WPA}\ns_mov_b32 s54, 0")
        a.label(pfx + "_rj")
        poll(a, "s52", 8, "v101", "v100")
        for i in range(4, 4 + nacc): a(f"v_mov_b32 v{i}, 0")
        a("s_add_u32 s69, s5, s4\ns_mov_b32 s56, 0")
        a.label(pfx + "_rl")
        a(f"s_and_b32 s69, s69, 3\ns_mul_i32 s8, s69, 20480\ns_add_u32 s8, s8, s13\ns_add_u32 s9, s8, 4096\ns_add_u32 s10, s8, 10240\ns_add_u32 s11, s8, {10240+4096}")
        a("s_mul_i32 s12, s69, 25600\ns_add_u32 s12, s12, s53")
        loads()
        a("s_waitcnt vmcnt(0)")
        mfmas()
        a(f"s_add_u32 s69, s69, 1\ns_add_u32 s56, s56, 1\ns_cmp_lt_u32 s56, 4\ns_cbranch_scc1 {pfx}_rl")
        a("s_nop 11")
        out()
        a(f"s_add_u32 s80, s80, 1280\ns_add_u32 s81, s81, 1280\ns_add_u32 s13, s13, {WS_OB - WS_OA}")
        a(f"s_sub_u32 s52, s52, {FL_OA - FL_OB}\ns_sub_u32 s53, s53, {WS_WPA - WS_WPB}")
        a(f"s_add_u32 s54, s54, 1\ns_cmp_lt_u32 s54, 2\ns_cbranch_scc1 {pfx}_rj\ns_branch {pfx}_end")
    def gw(d, n, addr, off):
        a(f"s_add_u32 s14, s12, {off}")
        a(f"buffer_load_dwordx{n} v[{d}:{d+n-1}], v{addr}, s[40:43], s14 offen sc1")
    def m_loads():
        for st in range(10):
            t, H = divmod(st, 5); d = F[st] + 4
            if H < 4:
                a(f"buffer_load_dwordx4 v[{d}:{d+3}], v{tX1}, s[40:43], s{8+2*t} offen offset:{1024*H} sc1")
                gw(F[st], 4, tW1, 12800 * t + 3200 * H)
            else:
                for hf in range(2):
                    a(f"buffer_load_dwordx2 v[{d+2*hf}:{d+2*hf+1}], v{tX2}, s[40:43], s{9+2*t} offen offset:{512*hf} sc1")
                    gw(F[st] + 2 * hf, 2, tW2, 12800 * t + 6400 * hf)
    redo("TLm", 16, m_loads, lambda: [mmf(st) for st in range(10)], m_out)
    def zw(d, j):
        if j < 4: a(f"ds_read_b128 v[{d}:{d+3}], v{tW1} offset:{6400*j}")
        else:
            for t in range(2): a(f"ds_read_b64 v[{d+2*t}:{d+2*t+1}], v{tW2} offset:{12800*t}")
    def zx(d, j):
        if j < 4: a(f"ds_read_b128 v[{d}:{d+3}], v{tX1} offset:{(j>>1)*10240+(j&1)*2048}")
        else:
            for t in range(2): a(f"ds_read_b64 v[{d+2*t}:{d+2*t+1}], v{tX2} offset:{4096+10240*t}")
    def zmf(j): a(f"v_mfma_f32_16x16x32_bf16 v[4:7], v[{F[j]}:{F[j]+3}], v[{F[j]+4}:{F[j]+7}], v[4:7]")
    def z_pack(O):
        a(f"v_cvt_pk_bf16_f32 v{O}, v4, v5\nv_cvt_pk_bf16_f32 v{O+1}, v6, v7")
        a(f"ds_bpermute_b32 v{O}, v{SR}, v{O}\nds_bpermute_b32 v{O+1}, v{SR}, v{O+1}")
    def z_out():
        z_pack(OUT)
        a("s_waitcnt lgkmcnt(0)")
        a(f"buffer_store_dwordx2 v[{OUT}:{OUT+1}], v{tO}, s[44:47], s80 offen offset:128 {ONT}")
    a.label("TLz_start")
    o_epilogue(a, OO, WS_OA, False)
    a(f"""
    v_lshrrev_b32 v{tO}, 2, v0
    v_and_b32 v3, 3, v0
    v_lshl_add_u32 v{SR}, v3, 4, v{tO}
    v_lshlrev_b32 v{SR}, 2, v{SR}
    v_mul_u32_u24 v{tO}, 2560, v{tO}
    v_lshl_add_u32 v{tO}, v3, 3, v{tO}
    """)
    a.label("TLz_job")
    for j in range(5): zw(F[j], j)
    for i in range(4, 8): a(f"v_mov_b32 v{i}, 0")
    a.label("TLz_loop")
    tl_vm("TLz")
    a("s_barrier")
    for j in range(5): zx(F[j] + 4, j)
    tl_adv()
    for j in range(5):
        a(f"s_waitcnt lgkmcnt({5 if j < 4 else 4})"); zmf(j); zw(F[j], j)
    a("s_cbranch_scc1 TLz_loop")
    a("s_nop 4")
    a("s_cmp_eq_u32 s56, 8\ns_cbranch_scc1 TLz_fin")
    a("s_waitcnt lgkmcnt(0)\ns_barrier")
    a(f"v_add_u32 v{tW1}, s75, v{tW1}\nv_add_u32 v{tW2}, s75, v{tW2}")
    a(NANCHK.format("s[48:49]"))
    z_pack(OUT + 8)
    a("s_branch TLz_job")
    a.label("TLz_fin")
    a(f"buffer_store_dwordx2 v[{OUT+8}:{OUT+9}], v{tO}, s[44:47], s80 offen offset:{1280+128} {ONT}")
    a(NANCHK.format("s[50:51]"))
    z_out()
    a("s_or_b64 vcc, s[48:49], s[50:51]\ns_cbranch_scc1 TLz_redo")
    a.label("TLz_end")
    stamp_end(a)
    a("s_endpgm")
    def z_loads():
        for j in range(5):
            d = F[j] + 4
            if j < 4:
                a(f"buffer_load_dwordx4 v[{d}:{d+3}], v{tX1}, s[40:43], s{8+2*(j>>1)} offen offset:{2048*(j&1)} sc1")
                gw(F[j], 4, tW1, 6400 * j)
            else:
                for t in range(2):
                    a(f"buffer_load_dwordx2 v[{d+2*t}:{d+2*t+1}], v{tX2}, s[40:43], s{9+2*t} offen sc1")
                    gw(F[j] + 2 * t, 2, tW2, 12800 * t)
    redo("TLz", 4, z_loads, lambda: [zmf(j) for j in range(5)], z_out)
    a.label("AT_fallback")
    FM = BACC
    a("s_mov_b32 exec_lo, 0")
    a(f"v_mov_b32 v{QB}, 0\nv_mov_b32 v{QB+1}, 0")
    a("s_mov_b32 exec_lo, -1")
    a(f"v_mov_b32 v{FM}, 0xff800000")
    a(f"s_mov_b32 s70, {WS_KV - LKV}")
    a.label("AT_fb1")
    a(f"buffer_load_dwordx4 v[{KA}:{KA+3}], v{aKA}, s[40:43], s70 offen sc1")
    a(f"buffer_load_dwordx2 v[{KB}:{KB+1}], v{aKB}, s[40:43], s70 offen sc1")
    a("s_waitcnt vmcnt(0)")
    qka(S0); qkb(S0)
    a("s_nop 15")
    rowmax(a, S0, FM, first=False)
    a(f"s_add_u32 s70, s70, {TILE}\ns_cmp_lt_u32 s70, {WS_KV-LKV+64*TILE}\ns_cbranch_scc1 AT_fb1")
    set_m(a, FM, FM + 1, FM + 2)
    for i in range(16): a(f"v_mov_b32 v{OO+i}, 0")
    a(f"s_mov_b32 s70, {WS_KV - LKV}")
    a.label("AT_fb2")
    a(f"buffer_load_dwordx4 v[{KA}:{KA+3}], v{aKA}, s[40:43], s70 offen sc1")
    a(f"buffer_load_dwordx2 v[{KB}:{KB+1}], v{aKB}, s[40:43], s70 offen sc1")
    a(f"buffer_load_dwordx4 v[{V0}:{V0+3}], v{aV0}, s[40:43], s70 offen sc1")
    a(f"buffer_load_dwordx4 v[{V1}:{V1+3}], v{aV1}, s[40:43], s70 offen sc1")
    a("s_waitcnt vmcnt(0)")
    qka(S0); qkb(S0)
    a("s_nop 15")
    E(S0, 0, 16)
    a("s_nop 0")
    for g in range(4): C(S0, g)
    a("s_nop 1")
    pv0(); pv1()
    a(f"s_add_u32 s70, s70, {TILE}\ns_cmp_lt_u32 s70, {WS_KV-LKV+64*TILE}\ns_cbranch_scc1 AT_fb2")
    a("s_nop 15")
    a("s_branch AT_ok")

    LK = "s[62:63]"
    A_, B_, KV_, P_, WO_ = "L_issueA", "L_issueB", "L_issueKV", "L_issueP", "L_issueWo"
    a.label("L_md")
    tr_init(a); tr(a)
    p4, p8 = ("s4", "s5") if MAP48 else ("s5", "s4")
    a(f"""
    s_and_b32 s8, {p4}, 1
    s_mul_i32 s8, s8, 5
    s_and_b32 s9, {p4}, 2
    s_add_u32 s8, s8, s9
    s_and_b32 s9, {p8}, 7
    s_add_u32 s11, s8, s9
    s_cmp_ge_u32 s11, 10
    s_cselect_b32 s8, 10, 0
    s_sub_u32 s11, s11, s8
    s_mov_b32 s12, 0
    s_lshl_b32 s8, s10, 2
    s_lshl_b32 s9, s10, 3
    v_lshrrev_b32 v20, 4, v0
    v_add_u32 v20, s8, v20
    v_xor_b32 v20, v20, v0
    v_and_b32 v20, 7, v20
    v_lshlrev_b32 v20, 4, v20
    v_lshrrev_b32 v21, 3, v0
    v_add_u32 v21, s9, v21
    v_mul_u32_u24 v21, 1280, v21
    v_add_u32 v2, v20, v21
    s_mov_b32 s8, 1120
    """)
    for p in range(5):
        a(f"v_add_u32 v20, {64*p}, v0")
        a(f"v_mul_u32_u24 v{22+p}, 6554, v20")
        a(f"v_lshrrev_b32 v{22+p}, 16, v{22+p}")
        a(f"v_lshlrev_b32 v20, 4, v20")
        a(f"v_mad_u32_u24 v{3+p}, v{22+p}, s8, v20")
    a("s_mul_i32 s64, s5, 160")
    a(f"s_mul_i32 s65, s10, {32*1280}")
    a("s_add_u32 s65, s65, s64")
    srd(a, 48, 18, 640 * 1280)
    call(a, A_, LK)
    a("s_waitcnt vmcnt(9)"); bar(a)
    call(a, A_, LK); call(a, A_, LK)
    a("s_mov_b32 s70, 0")
    a.label("L_a")
    a("s_waitcnt vmcnt(18)"); bar(a); call(a, A_, LK)
    a("s_add_u32 s70, s70, 1\ns_cmp_lt_u32 s70, 7\ns_cbranch_scc1 L_a")
    srd(a, 40, 36, WS_SIZE)
    srd(a, 72, 26, XBYTES)
    srd(a, 76, 28, 640 * 3840)
    a("s_waitcnt vmcnt(18)"); bar(a)
    a("s_mov_b32 s8, 2560\ns_mov_b32 s9, 1280")
    for p in range(5):
        a(f"v_mad_u32_u24 v{8+p}, v{22+p}, s8, v{3+p}")
        a(f"v_lshrrev_b32 v20, 1, v{22+p}")
        a(f"v_mad_u32_u24 v{13+p}, v20, s9, v{3+p}")
    a(f"s_mul_i32 s66, s10, {32*3840}")
    a("s_add_u32 s66, s66, s64")
    a("s_add_u32 s67, s66, 1280")
    get_nonce(a, "v30", "v31")
    a("s_waitcnt vmcnt(9)"); bar(a)
    a("s_waitcnt vmcnt(0)"); bar(a)
    a("s_mov_b32 s12, 0")
    a("s_add_u32 s69, s5, s4\ns_and_b32 s69, s69, 3")
    a("s_cmp_eq_u32 s10, 1")
    a("s_cbranch_scc1 L1_path")
    a(f"s_add_u32 s60, s7, {4 if BS >= 2 else 3}\ns_and_b32 s60, s60, 15")
    a(f"s_mov_b32 s61, {LKV if BS >= 2 else LKV + 3*CH}")
    a("s_lshl_b32 s56, s4, 7\ns_lshl_b32 s57, s5, 2\ns_add_u32 s57, s57, s56")
    a("v_lshlrev_b32 v19, 2, v0")

    pad(a, "b0")
    B1_, B2_ = "L_issueB1", "L_issueB2"
    a(f"v_mov_b32 v33, {LMISC}")
    bar(a); gs(a, 8); call(a, B1_, LK)
    bar(a); call(a, B2_, LK)
    a("s_mov_b32 s9, 0")
    a.label("L0_c0")
    a("ds_read_b32 v32, v33 offset:4\ns_add_u32 s9, s9, 1\ns_waitcnt lgkmcnt(0)\nv_readfirstlane_b32 s8, v32")
    a(f"s_cmp_gt_u32 s9, {SPIN_MAX}\ns_cbranch_scc1 L0_c1\ns_cmp_ge_u32 s8, 8\ns_cbranch_scc1 L0_c1\ns_sleep 2\ns_branch L0_c0")
    a.label("L0_c1")
    tr(a)
    call(a, KV_, LK); call(a, B_, LK)
    tr(a)
    pad(a, "f0")
    a("s_waitcnt vmcnt(19)"); bar(a); call(a, B_, LK); call(a, KV_, LK)
    a("s_waitcnt vmcnt(30)"); bar(a); call(a, B_, LK); call(a, KV_, LK)
    a("s_waitcnt vmcnt(30)"); bar(a); call(a, B_, LK); call(a, KV_, LK)
    a("s_mov_b32 s70, 0")
    a.label("L0_f")
    a("s_waitcnt vmcnt(30)"); bar(a); call(a, B_, LK)
    a("s_waitcnt vmcnt(19)"); bar(a); call(a, B_, LK); call(a, KV_, LK)
    a("s_add_u32 s70, s70, 1\ns_cmp_lt_u32 s70, 2\ns_cbranch_scc1 L0_f")
    a("s_waitcnt vmcnt(30)"); bar(a); call(a, B_, LK)
    a("s_waitcnt vmcnt(19)"); bar(a); call(a, KV_, LK)
    pad(a, "f9")
    a("s_waitcnt vmcnt(11)"); bar(a)
    a(f"s_mov_b32 s12, 0\ns_mul_i32 s64, s5, 102400\ns_add_u32 s64, s64, {WS_WPB}")
    bar(a); call(a, KV_, LK)
    a("s_waitcnt vmcnt(11)"); bar(a); call(a, KV_, LK)
    a("s_waitcnt vmcnt(11)"); bar(a); call(a, KV_, LK); call(a, WO_, LK)
    a("s_waitcnt vmcnt(0)"); bar(a); call(a, KV_, LK); call(a, WO_, LK); call(a, WO_, LK)
    a("s_waitcnt vmcnt(50)"); bar(a); call(a, KV_, LK)
    a("s_waitcnt vmcnt(11)"); bar(a); call(a, WO_, LK)
    a("s_waitcnt vmcnt(25)"); bar(a)
    a(f"s_add_u32 s13, s13, {WS_OB}")
    a(f"s_mov_b32 s61, {LX}")
    a(f"s_add_u32 s8, s56, {FL_HB}")
    poll(a, "s8", 8)
    call(a, P_, LK)
    pad(a, "b16")
    bar(a)
    gs(a, 9)
    call(a, P_, LK)
    a(f"s_add_u32 s70, s57, {FL_H}\ns_add_u32 s71, s56, {FL_H}")
    pad(a, "t0")
    a("s_waitcnt vmcnt(20)"); bar(a)
    publish(a, "s70", "v30", "v31")
    call(a, P_, LK)
    a("s_waitcnt vmcnt(21)"); bar(a)
    call(a, P_, LK)
    a(f"s_sub_u32 s13, s13, {WS_OB - WS_OA}")
    a(f"s_add_u32 s8, s57, {FL_OA}")
    a("s_waitcnt vmcnt(20)"); bar(a)
    set_exec(a, 8)
    a("buffer_load_dword v32, v19, s[40:43], s71 offen sc1")
    publish(a, "s8", "v30", "v31")
    a(f"s_add_u32 s8, s57, {FL_OB}")
    publish(a, "s8", "v30", "v31")
    set_exec(a, 8)
    a("s_waitcnt vmcnt(2)\nv_cmp_ne_u32 vcc, s96, v32\ns_mov_b64 exec, -1")
    a("s_cbranch_vccnz L0_late")
    call(a, P_, LK)
    bar(a)
    a("s_branch L0_join")
    a.label("L0_late")
    bar(a)
    poll(a, "s71", 8)
    call(a, P_, LK)
    a.label("L0_join")
    gs(a, 7)
    bar(a)
    call(a, P_, LK)
    pad(a, "t4")
    a("s_waitcnt vmcnt(20)"); bar(a)
    call(a, P_, LK)
    a("s_waitcnt vmcnt(20)"); bar(a)
    call(a, P_, LK)
    a("s_waitcnt vmcnt(20)"); bar(a)
    pad(a, "t7")
    a("s_waitcnt vmcnt(0)"); bar(a)
    pad(a, "end")
    tr_dump(a)
    a("s_endpgm")
    a.label("L1_path")
    srd(a, 48, 24, 640 * 1280)
    srd(a, 52, 30, 640 * 1280)
    a("s_lshl_b32 s56, s5, 5\ns_add_u32 s57, s56, s4")
    a(f"s_mul_i32 s68, s57, {PST}\ns_add_u32 s68, s68, {WS_KVP}")
    a("s_lshl_b32 s56, s5, 9\ns_lshr_b32 s8, s4, 3\ns_lshl_b32 s8, s8, 7\ns_and_b32 s57, s4, 7\ns_lshl_b32 s57, s57, 2\ns_add_u32 s57, s57, s8\ns_add_u32 s57, s57, s56")
    a("v_lshrrev_b32 v19, 3, v0\nv_lshlrev_b32 v19, 7, v19\nv_and_b32 v28, 7, v0\nv_lshl_add_u32 v19, v28, 2, v19")
    a(f"""
    v_lshrrev_b32 v48, 4, v0
    v_mul_u32_u24 v48, {8*PST}, v48
    v_and_b32 v49, 15, v0
    v_min_u32 v47, 13, v49
    v_lshl_add_u32 v48, v47, 4, v48
    v_lshlrev_b32 v49, 3, v49
    v_lshlrev_b32 v46, 7, v0
    """)
    for i in range(4): a(f"v_mov_b32 v{52+i}, -1")
    a(f"""
    v_bfe_u32 v20, v0, 2, 2
    v_mul_u32_u24 v20, 160, v20
    v_and_b32 v21, 3, v0
    v_lshl_add_u32 v20, v21, 3, v20
    v_add_u32 v20, {LRP}, v20
    v_lshrrev_b32 v21, 5, v0
    v_bfe_u32 v28, v0, 4, 1
    v_mul_u32_u24 v41, 1280, v21
    v_lshl_add_u32 v41, v28, 5, v41
    v_add_u32 v41, v41, v20
    v_mul_u32_u24 v42, 1280, v28
    v_add_u32 v42, v42, v20
    v_lshrrev_b32 v21, 4, v0
    v_lshl_add_u32 v43, v21, 5, v20
    v_lshlrev_b32 v44, 3, v0
    """)
    bar(a); call(a, B1_, LK)
    bar(a); call(a, B2_, LK)
    a(f"s_mov_b32 m0, {LRP}\ns_mul_i32 s8, s4, {20*1280}\ns_add_u32 s8, s8, s64")
    for sr in (52, 48):
        for p in range(4):
            dma(a, f"v{3+p}", sr, "s8")
            a("s_add_u32 m0, m0, 1024\ns_nop 0")
    call(a, B_, LK)
    a("s_waitcnt vmcnt(19)")
    for m in range(2):
        d, o = 100 + 16 * m, 4096 * m
        for blk in range(2):
            for hf in range(2): a(f"ds_read_b64_tr_b16 v[{d+4*blk+2*hf}:{d+4*blk+2*hf+1}], v41 offset:{o+64*blk+640*hf}")
        for hf in range(2): a(f"ds_read_b64_tr_b16 v[{d+8+2*hf}:{d+9+2*hf}], v42 offset:{o+128+640*hf}")
        a(f"ds_read_b64_tr_b16 v[{d+12}:{d+13}], v43 offset:{o+2560}")
        a(f"ds_read_b64_tr_b16 v[{d+14}:{d+15}], v43 offset:{o+2560+128}")
    a("s_waitcnt lgkmcnt(0)")
    bar(a); call(a, B_, LK)
    a("s_waitcnt vmcnt(19)"); bar(a); call(a, B_, LK)
    a("s_waitcnt vmcnt(19)"); bar(a); call(a, B_, LK)
    a("s_waitcnt vmcnt(19)"); bar(a); call(a, B_, LK)
    a(f"s_mul_i32 s64, s5, 102400\ns_mul_i32 s8, s4, 3200\ns_add_u32 s8, s8, s64\ns_add_u32 s9, s8, {WS_WPA}\ns_add_u32 s8, s8, {WS_WPB}\ns_add_u32 s64, s64, {WS_WPA}")
    for m in range(2):
        d = 100 + 16 * m
        a(f"buffer_store_dwordx4 v[{d}:{d+3}], v18, s[40:43], s{8+m} offen sc1")
        a(f"buffer_store_dwordx4 v[{d+4}:{d+7}], v18, s[40:43], s{8+m} offen offset:1024 sc1")
        a(f"buffer_store_dwordx2 v[{d+12}:{d+13}], v44, s[40:43], s{8+m} offen offset:2560 sc1")
    set_exec(a, 32)
    for m in range(2): a(f"buffer_store_dwordx4 v[{108+16*m}:{111+16*m}], v18, s[40:43], s{8+m} offen offset:2048 sc1")
    set_exec(a, 16)
    for m in range(2): a(f"buffer_store_dwordx2 v[{114+16*m}:{115+16*m}], v44, s[40:43], s{8+m} offen offset:3072 sc1")
    a("s_mov_b64 exec, -1")
    a("s_waitcnt vmcnt(29)"); bar(a); call(a, B_, LK)
    a("s_waitcnt vmcnt(29)"); bar(a); call(a, B_, LK)
    a(f"s_lshl_b32 s60, s5, 12\ns_add_u32 s60, s60, {WS_KVZ}\ns_mul_i32 s61, s4, 112\ns_add_u32 s61, s61, s60")
    set_exec(a, 14)
    a("buffer_store_dwordx2 v[52:53], v49, s[40:43], s61 offen sc1")
    a("s_add_u32 s65, s68, 4096")
    set_exec(a, 40)
    a("buffer_store_dwordx4 v[52:55], v18, s[40:43], s65 offen offset:2048 sc1")
    a("s_mov_b64 exec, -1")
    for i in range(6):
        a(f"buffer_store_dwordx4 v[52:55], v18, s[40:43], {'s68' if i < 4 else 's65'} offen offset:{1024*(i%4)} sc1")
    a("s_waitcnt vmcnt(27)"); bar(a); call(a, B_, LK)
    a("s_waitcnt vmcnt(19)"); bar(a)
    a(f"s_add_u32 s8, s57, {FL_P}")
    publish(a, "s8", "v30", "v31")
    call(a, B_, LK)
    a("s_waitcnt vmcnt(19)"); bar(a)
    a("s_waitcnt vmcnt(0)"); bar(a)
    def nanfill():
        a(f"s_mul_i32 s8, s5, 10240\ns_add_u32 s8, s8, s13\ns_add_u32 s9, s8, {WS_OB}")
        for i in range(10):
            if i in (4, 8): a("s_add_u32 s8, s8, 4096\ns_add_u32 s9, s9, 4096")
            for r in ("s8", "s9"): a(f"buffer_store_dwordx4 v[52:55], v18, s[40:43], {r} offen offset:{1024*(i%4)} sc1")
    a(f"s_add_u32 s8, s56, {FL_P}")
    poll(a, "s8", 32)
    a("s_and_b32 s8, s4, 7\ns_mul_i32 s8, s8, 12800\ns_add_u32 s8, s8, s64\ns_mov_b32 exec_hi, 0x3ffff")
    for i, o in enumerate((0, 6400, WS_WPB - WS_WPA - 6400, 6400)):
        a(f"s_add_u32 s8, s8, {o}\nbuffer_load_dword v{32+i}, v46, s[40:43], s8 offen sc1")
    a("s_mov_b32 exec_hi, -1")
    nanfill()
    R = 60
    a(f"s_min_u32 s9, s4, 29\ns_mul_i32 s9, s9, 224\ns_mul_i32 s70, s5, {32*PST}\ns_add_u32 s70, s70, s9\ns_add_u32 s70, s70, {WS_KVP}")
    bar(a); bar(a)
    for i in range(7):
        a(f"ds_read_b128 v[{R+4*i}:{R+3+4*i}], v18 offset:{LPART+1024*i}")
    for i in range(7):
        a(f"s_waitcnt lgkmcnt({6-i})")
        if i == 6: a("s_mov_b32 exec_hi, 15")
        a(f"buffer_store_dwordx4 v[{R+4*i}:{R+3+4*i}], v18, s[40:43], {'s68' if i < 4 else 's65'} offen offset:{1024*(i%4)} sc1")
    a("s_mov_b32 exec_hi, -1")
    bar(a)
    a("s_sleep 8")
    a("s_mov_b32 s9, 0")
    Q = 100
    a.label("L1_p")
    a("s_mov_b32 s8, s70")
    for i in range(8):
        a(f"buffer_load_dwordx4 v[{Q+4*i}:{Q+3+4*i}], v48, s[40:43], s8 offen sc1")
        a(f"s_add_u32 s8, s8, {PST}")
    a("s_cmp_lg_u32 s9, 0\ns_cbranch_scc1 L1_p2")
    bar(a)
    a.label("L1_p2")
    a("s_add_u32 s9, s9, 1\ns_waitcnt vmcnt(0)")
    for i in range(4):
        for j in (0, 2): a(f"v_pk_add_f32 v[{R+4*i+j}:{R+1+4*i+j}], v[{Q+4*i+j}:{Q+1+4*i+j}], v[{Q+16+4*i+j}:{Q+17+4*i+j}]")
    for half in (2, 1):
        for i in range(half):
            for j in (0, 2): a(f"v_pk_add_f32 v[{R+4*i+j}:{R+1+4*i+j}], v[{R+4*i+j}:{R+1+4*i+j}], v[{R+4*(i+half)+j}:{R+1+4*(i+half)+j}]")
    a(f"v_pk_add_f32 v[30:31], v[{R}:{R+1}], v[{R+2}:{R+3}]\nv_cmp_u_f32 vcc, v30, v31\ns_nop 1\ns_cbranch_vccz L1_pd")
    a(f"v_max_u32 v30, v{Q}, v{Q+1}")
    for i in range(1, 16): a(f"v_max3_u32 v30, v30, v{Q+2*i}, v{Q+2*i+1}")
    a("v_cmp_eq_u32 vcc, -1, v30")
    a(f"s_cmp_gt_u32 s9, {SPIN_MAX}\ns_cbranch_scc1 L1_pd\ns_cbranch_vccz L1_pd\ns_sleep 1\ns_branch L1_p")
    a.label("L1_pd")
    for op in ("v_permlane32_swap_b32", "v_permlane16_swap_b32"):
        for j in range(4): a(f"v_mov_b32 v{R+4+j}, v{R+j}")
        a("s_nop 1")
        for j in range(4): a(f"{op} v{R+j}, v{R+4+j}")
        a("s_nop 1")
        for j in range(4): a(f"v_add_f32 v{R+j}, v{R+j}, v{R+4+j}")
    a(f"""
    v_cvt_pk_bf16_f32 v{R}, v{R}, v{R+1}
    v_cvt_pk_bf16_f32 v{R+1}, v{R+2}, v{R+3}
    v_min_u32 v{R}, -2, v{R}
    v_min_u32 v{R+1}, -2, v{R+1}
    s_mov_b32 exec_lo, 0x3fff
    s_mov_b32 exec_hi, 0
    buffer_store_dwordx2 v[{R}:{R+1}], v49, s[40:43], s61 offen sc1
    s_mov_b64 exec, -1
    """)
    for i in range(4): a(f"v_mov_b32 v{Q+12+i}, 0")
    a(f"v_add_u32 v50, {LKVZ}, v18")
    bar(a)
    a("s_mov_b32 s9, 0")
    a.label("L1_g")
    for i in range(4):
        if i == 3: set_exec(a, 18)
        a(f"buffer_load_dwordx4 v[{Q+4*i}:{Q+3+4*i}], v18, s[40:43], s60 offen offset:{1024*i} sc1")
    a("s_mov_b64 exec, -1")
    a("s_add_u32 s9, s9, 1\ns_waitcnt vmcnt(0)")
    a(f"v_max_u32 v30, v{Q}, v{Q+1}")
    for i in range(1, 8): a(f"v_max3_u32 v30, v30, v{Q+2*i}, v{Q+2*i+1}")
    a("v_cmp_eq_u32 vcc, -1, v30")
    a(f"s_cmp_gt_u32 s9, {SPIN_MAX}\ns_cbranch_scc1 L1_gd\ns_cbranch_vccz L1_gd\ns_sleep 1\ns_branch L1_g")
    a.label("L1_gd")
    for i in range(4): a(f"ds_write_b128 v50, v[{Q+4*i}:{Q+3+4*i}] offset:{1024*i}")
    a("s_waitcnt lgkmcnt(0)")
    bar(a)
    a("s_mov_b32 s12, 0")
    bar(a); bar(a)
    bar(a); bar(a)
    call(a, WO_, LK)
    bar(a)
    call(a, WO_, LK)
    bar(a)
    a("s_waitcnt vmcnt(25)")
    bar(a)
    call(a, WO_, LK)
    a("s_waitcnt vmcnt(25)"); bar(a)
    call(a, WO_, LK)
    a("s_waitcnt vmcnt(25)"); bar(a)
    a("s_waitcnt vmcnt(0)"); bar(a)
    bar(a)
    tr_dump(a)
    a.label("L_end")
    a("s_endpgm")
    a.label(A_)
    issue_x(a, 44, "s13", "s12")
    issue_w(a, 48, 3, 1280, "s65", "s12", IMG_W)
    wrap_inc(a, "s11", 1, 10); wrap_inc(a, "s12", HS, 6 * HS)
    a("s_setpc_b64 s[62:63]")
    a.label("L_issueB1")
    issue_x(a, 72, "s13", "s12")
    issue_w(a, 76, 8, 3840, "s66", "s12", IMG_W)
    a("s_setpc_b64 s[62:63]")
    a.label(B_)
    issue_x(a, 72, "s13", "s12")
    issue_w(a, 76, 8, 3840, "s66", "s12", IMG_W)
    a.label("L_issueB2")
    issue_w(a, 76, 13, 3840, "s67", "s12", IMG_KV, periods=2, rows_per_period=16)
    wrap_inc(a, "s11", 1, 10); wrap_inc(a, "s12", SLOT, 3 * SLOT)
    a("s_setpc_b64 s[62:63]")
    def lin(n):
        for i in range(n):
            if i % 4 == 0 and i > 0:
                a("s_add_u32 m0, m0, 4096")
                a("s_add_u32 s14, s14, 4096")
            a(f"buffer_load_dwordx4 v18, s[40:43], s14 offen offset:{1024*(i%4)} sc1 lds")
    a.label(KV_)
    a("s_mov_b32 m0, s61")
    a(f"s_mul_i32 s14, s60, {CH}")
    a(f"s_add_u32 s14, s14, {WS_KV}")
    lin(11)
    a("s_add_u32 s60, s60, 1\ns_and_b32 s60, s60, 15")
    wrap_inc(a, "s61", CH, LKV + 4 * CH, LKV)
    a("s_setpc_b64 s[62:63]")
    a.label(P_)
    a("s_mov_b32 m0, s61")
    a("s_mul_i32 s14, s69, 20480")
    a("s_add_u32 s14, s14, s13")
    lin(20)
    a("s_add_u32 s69, s69, 1\ns_and_b32 s69, s69, 3")
    wrap_inc(a, "s61", 20480, LX + 3 * 20480, LX)
    a("s_setpc_b64 s[62:63]")
    a.label(WO_)
    a("s_mov_b32 m0, s12")
    a("s_mul_i32 s14, s69, 25600")
    a("s_add_u32 s14, s14, s64")
    lin(25)
    a("s_add_u32 s69, s69, 1\ns_and_b32 s69, s69, 3")
    a("s_add_u32 s12, s12, 25600")
    a("s_setpc_b64 s[62:63]")
    a.label("L_codeend")

def main(out):
    a = Asm()
    a.lines.append(f"; @launch grid=(256,1,1) block=(640,1,1) lds={LDS_TOTAL}")
    a('.amdgcn_target "amdgcn-amd-amdhsa--gfx950"')
    a(".text")
    gen(a)
    a('.section .rodata,"a"')
    open(out, "w").write(a.text() + descriptor(NAME + "_kernel", NV, 102))

if __name__ == "__main__":
    main(sys.argv[1] if len(sys.argv) > 1 else f"cdna_kernels/{NAME}.s")
```

```python
import sys, struct, os
from asmlib import *

NAME = "concat_heads__grouped_kv_mqa__linear_attn_block__prompt"
STAMP = bool(os.environ.get("STAMP"))
OPT = dict(kv.split("=") for kv in os.environ.get("OPT", "").split(",") if kv)
PFB = int(OPT.get("pfb", 0))
ONT = OPT.get("ont", "nt")
MAP48 = int(OPT.get("map48", 0))
BS = 3
WS_OA, WS_OB, WS_KV, WS_KVP, WS_KVZ = 0x0, 0x280000, 0x500000, 0xA00000, 0x700000
PST = 6784
FL_KV, FL_P, FL_H, FL_OB, FL_OA = 0x718000, 0x720000, 0x728000, 0x730000, 0x738000
FL_HB = 0x72C000
LCNT = LMISC_ = 163840 - 8
FORCE_REDO = int(OPT.get('redo', 0))
WS_WPB, WS_WPA = 0x740000, 0x740000 + 8 * 102400
WS_ST = 0x900000
WS_SIZE = 0xE00000
TILE = 2816
CH = 4 * TILE
XBYTES = 2048 * 1280
SLOT = 38912
HS = SLOT // 2
IMG_W, IMG_KV = 8192, 18432
LKV = 3 * SLOT
LMISC = 163840 - 16
LKVZ = 112640
LMX = LKV
LWKV = LKV + 20480
LQ = 2 * SLOT
LFR, LPQ, LPART = SLOT, SLOT + 20480, 0
LX = 102400
LRP = 2 * SLOT + 28672
LDS_TOTAL = 163840
SPIN_MAX = 1 << 17
def f32(x): return "0x%08x" % struct.unpack("<I", struct.pack("<f", x))[0]
LOG2E = 1.4426950408889634
CSCALE = LOG2E / (20 ** 0.5)

S0, S1, PP, KA, KB, QB, V0, V1, QA, OO, BACC, BFR = 4, 20, 36, 44, 48, 50, 52, 56, 60, 64, 80, 112
aKA, aKB, aV0, aV1, bW, bX = 136, 137, 138, 139, 140, 141
OAD0, OAD1 = 145, 146
PWR = 147
JA, JB, QF0, QF1, AP0, AP1 = 151, 152, 153, 154, 155, 156
tW1, tW2, tX1, tX2, tO, TL0, TL1 = 157, 158, 159, 160, 161, 162, 163
TLQ = [162, 163, 165, 166]
NV = 167
CPF4 = int(OPT.get('cpf4', 1))
PQA, PQB = 128, 132
T = 4
AFR = [BFR, BFR + 12, 36, 48]
AACC = 4
MASKS = [92, 94, 98, 100]
POS = [[0, 1, 3, 4, 2], [1, 2, 0, 3, 4], [2, 3, 4, 0, 1], [3, 4, 0, 2, 1]]
INV = [[POS[r].index(p) for p in range(5)] for r in range(4)]
def pack3(tab):
    x = 0
    for r in range(4):
        for j in range(5): x |= tab[r][j] << (3 * (5 * r + j))
    return x

def tr(a):
    if not STAMP: return
    a("""
    s_waitcnt lgkmcnt(0)
    s_sub_u32 s90, s88, s84
    s_memtime s[88:89]
    s_mov_b32 m0, s85
    s_add_u32 s85, s85, 1
    v_writelane_b32 v40, s90, m0
    """)
def tr_init(a):
    if STAMP: a("s_mov_b32 s85, 0\nv_mov_b32 v40, 0\ns_mov_b32 s88, s84")
def tr_dump(a):
    if not STAMP: return
    tr(a)
    a(f"""
    s_lshl_b32 s8, s2, 1
    s_add_u32 s8, s8, s10
    s_lshl_b32 s8, s8, 8
    s_add_u32 s8, s8, {WS_ST + 0x40000}
    v_lshlrev_b32 v8, 2, v0
    buffer_store_dword v40, v8, s[40:43], s8 offen
    """)
def stamp_end(a):
    if not STAMP: return
    a(f"""
    s_memtime s[12:13]
    s_waitcnt vmcnt(0)
    s_memtime s[88:89]
    s_memrealtime s[90:91]
    s_waitcnt lgkmcnt(0)
    s_mov_b64 exec, -1
    s_sub_u32 s88, s88, s84
    s_sub_u32 s12, s12, s84
    v_mov_b32 v4, s86
    v_mov_b32 v5, s90
    v_mov_b32 v6, s88
    v_mov_b32 v7, s12
    s_lshl_b32 s8, s2, 4
    s_add_u32 s8, s8, s3
    s_lshl_b32 s8, s8, 4
    s_add_u32 s8, s8, {WS_ST}
    v_mov_b32 v8, 0
    buffer_store_dwordx4 v[4:7], v8, s[40:43], s8 offen
    """)
    for i in range(8): a(f"s_sub_u32 s{16+2*i}, s{16+2*i}, s84\nv_mov_b32 v{12+i}, s{16+2*i}")
    a(f"s_sub_u32 s8, s8, {WS_ST}\ns_lshl_b32 s8, s8, 1\ns_add_u32 s8, s8, {WS_ST + 0xC0000}")
    a("buffer_store_dwordx4 v[12:15], v8, s[40:43], s8 offen\nbuffer_store_dwordx4 v[16:19], v8, s[40:43], s8 offen offset:16")
CTP = OPT.get("ct", "").split("+")
def ct(a, name):
    if STAMP and name in CTP:
        i = CTP.index(name)
        a(f"s_memtime s[{16+2*i}:{17+2*i}]")
def gs(a, idx, t0="v36", t1="v37"):
    if not STAMP: return
    a(f"""
    s_memrealtime s[14:15]
    s_waitcnt lgkmcnt(0)
    v_mov_b32 {t0}, s14
    s_lshl_b32 s14, s2, 6
    s_add_u32 s14, s14, {WS_ST + 0x80000 + 4*idx}
    v_mov_b32 {t1}, 0
    buffer_store_dword {t0}, {t1}, s[40:43], s14 offen
    """)
def pad(a, where):
    p = OPT.get("pad", "")
    if not p.startswith(where + ":"): return
    l = a.newlabel("Lpad")
    a.label(l)
    a(f"s_memrealtime s[14:15]\ns_waitcnt lgkmcnt(0)\ns_sub_u32 s14, s14, s96\ns_cmp_lt_u32 s14, {p.split(':')[1]}\ns_cbranch_scc1 {l}")
def bar(a):
    a("s_barrier"); tr(a)

def dma(a, voff, srdi, soff, extra=""):
    a(f"buffer_load_dwordx4 {voff}, s[{srdi}:{srdi+3}], {soff} offen {extra} lds")
def issue_x(a, srdi, sbase, lds_sgpr):
    a(f"s_lshl_b32 s15, s10, 10")
    a(f"s_add_u32 m0, s15, {lds_sgpr}")
    a(f"s_lshl_b32 s14, s11, 7")
    a(f"s_add_u32 s14, s14, {sbase}")
    for jj in range(4):
        dma(a, "v2", srdi, "s14")
        if jj < 3:
            a("s_add_u32 m0, m0, 2048")
            a("s_add_u32 s14, s14, 20480")
def issue_w(a, srdi, voffs, ld, sbase, lds_sgpr, ldsoff, periods=1, rows_per_period=32):
    a(f"s_mul_i32 s15, s10, {5120*periods}")
    a(f"s_add_u32 s15, s15, {lds_sgpr}")
    a(f"s_add_u32 m0, s15, {ldsoff}")
    a(f"s_mul_i32 s14, s11, {64*ld}")
    a(f"s_add_u32 s14, s14, {sbase}")
    for per in range(periods):
        for p in range(5):
            dma(a, f"v{voffs+p}", srdi, "s14")
            if not (per == periods - 1 and p == 4):
                a("s_add_u32 m0, m0, 1024")
                a(f"s_add_u32 s14, s14, {rows_per_period*ld}" if p == 4 else "s_nop 0")
def wrap_inc(a, reg, step, limit, base=0):
    a(f"s_add_u32 {reg}, {reg}, {step}")
    a(f"s_cmp_eq_u32 {reg}, {limit}")
    a(f"s_cselect_b32 {reg}, {base}, {reg}")
def set_exec(a, n):
    m = (1 << n) - 1
    a(f"s_mov_b32 exec_lo, {m & 0xffffffff:#x}\ns_mov_b32 exec_hi, {m >> 32:#x}")
def poll(a, soff, nlanes, tmp="v30", addr="v19"):
    lp, dn = a.newlabel("Lpoll"), a.newlabel("Lpd")
    set_exec(a, nlanes)
    a("s_mov_b32 s9, 0")
    a.label(lp)
    a(f"buffer_load_dword {tmp}, {addr}, s[40:43], {soff} offen sc1")
    a("s_add_u32 s9, s9, 1")
    a("s_waitcnt vmcnt(0)")
    a(f"v_cmp_ne_u32 vcc, s96, {tmp}")
    a(f"s_cmp_gt_u32 s9, {SPIN_MAX}")
    a(f"s_cbranch_scc1 {dn}")
    a(f"s_cbranch_vccz {dn}")
    a("s_sleep 1")
    a(f"s_branch {lp}")
    a.label(dn)
    a("s_mov_b64 exec, -1")
def publish(a, soff, tmp, zero):
    a(f"v_mov_b32 {tmp}, s96")
    a(f"v_mov_b32 {zero}, 0")
    a("s_mov_b64 exec, 1")
    a(f"buffer_store_dword {tmp}, {zero}, s[40:43], {soff} offen sc1")
    a("s_mov_b64 exec, -1")
def get_nonce(a, tmp, addr):
    a(f"v_mov_b32 {addr}, {LMISC}")
    a(f"ds_read_b32 {tmp}, {addr}")
    a("s_waitcnt lgkmcnt(0)")
    a(f"v_readfirstlane_b32 s96, {tmp}")
def call(a, lbl, link="s[58:59]"):
    a(f"s_call_b64 {link}, {lbl}")
def pf_rows(a, vd, ld, s0, s1):
    a(f"""
    v_mul_u32_u24 v{vd}, 52429, v0
    v_lshrrev_b32 v{vd}, 18, v{vd}
    v_mul_u32_u24 v{vd+1}, 5, v{vd}
    v_sub_u32 v{vd+1}, v0, v{vd+1}
    v_mul_u32_u24 v{vd}, {ld}, v{vd}
    v_lshl_add_u32 v{vd}, v{vd+1}, 7, v{vd}
    s_mul_i32 {s0}, s7, {20*ld}
    s_and_b32 s8, s6, 1
    s_mul_i32 s8, s8, 640
    s_add_u32 {s0}, {s0}, s8
    s_add_u32 {s1}, {s0}, {10*ld}
    """)
def pf_x(a, srdi, vaddr, vd):
    a(f"""
    s_lshr_b32 s8, s6, 1
    s_mul_i32 s8, s8, {512*1280}
    s_mul_i32 s9, s7, 20480
    s_add_u32 s8, s8, s9
    s_add_u32 s9, s8, 8192
    buffer_load_dword v{vd}, {vaddr}, s[{srdi}:{srdi+3}], s8 offen
    buffer_load_dword v{vd+1}, {vaddr}, s[{srdi}:{srdi+3}], s9 offen
    s_add_u32 s9, s8, 16384
    s_mov_b32 exec_hi, 0
    buffer_load_dword v{vd+2}, {vaddr}, s[{srdi}:{srdi+3}], s9 offen
    s_mov_b32 exec_hi, -1
    """)

def phi_sub(a):
    a.label("g_pack")
    a("s_mov_b64 exec, -1")
    for i in range(16):
        a(f"v_cvt_pk_bf16_f32 v{BACC+i}, v{BACC+2*i}, v{BACC+2*i+1}")
    a("s_setpc_b64 s[58:59]")
def read_qfrag(a, qa, qb):
    a(f"ds_read_b128 v[{qa}:{qa+3}], v{QF1}")
    a(f"ds_read_b64 v[{qb}:{qb+1}], v{QF0}")
def o_epilogue(a, O, wsoff, eps):
    if eps:
        a(f"v_add_f32 v{O+12}, {f32(1e-6)}, v{O+12}")
    a(f"v_rcp_f32 v{O+12}, v{O+12}")
    a(f"s_add_u32 s8, s81, {wsoff}")
    a(f"s_add_u32 s9, s82, {wsoff}")
    for i in range(0, 12, 2):
        a(f"v_pk_mul_f32 v[{O+i}:{O+i+1}], v[{O+i}:{O+i+1}], v[{O+12}:{O+13}] op_sel_hi:[1,0]")
    for i in range(6):
        a(f"v_cvt_pk_bf16_f32 v{O+i}, v{O+2*i}, v{O+2*i+1}")
    a(f"buffer_store_dwordx4 v[{O}:{O+3}], v{OAD1}, s[40:43], s8 offen sc1")
    a("s_mov_b32 exec_hi, 0")
    a(f"buffer_store_dwordx2 v[{O+4}:{O+5}], v{OAD0}, s[40:43], s9 offen sc1")
    a("s_mov_b32 exec_hi, -1")
def rowmax(a, S, dst, first=True):
    regs = [f"v{S+i}" for i in range(16)]
    if first:
        a(f"v_max3_f32 v{dst}, {regs[0]}, {regs[1]}, {regs[2]}")
        rest = regs[3:]
    else:
        rest = regs
    while len(rest) >= 2:
        a(f"v_max3_f32 v{dst}, v{dst}, {rest[0]}, {rest[1]}")
        rest = rest[2:]
    if rest:
        a(f"v_max_f32 v{dst}, v{dst}, {rest[0]}")
def set_m(a, m, tmp, keep):
    a(f"""
    v_mov_b32 v{tmp}, v{m}
    s_nop 1
    v_permlane32_swap_b32 v{m}, v{tmp}
    s_nop 1
    v_max_f32 v{keep}, v{m}, v{tmp}
    s_mov_b32 exec_lo, 0
    v_sub_f32 v{m}, 0, v{keep}
    v_and_b32 v{tmp}, 0xffff0000, v{m}
    v_sub_f32 v{m}, v{m}, v{tmp}
    v_lshrrev_b32 v{QB}, 16, v{tmp}
    v_and_b32 v{tmp}, 0xffff0000, v{m}
    v_sub_f32 v{m}, v{m}, v{tmp}
    v_or_b32 v{QB}, v{QB}, v{tmp}
    v_lshrrev_b32 v{QB+1}, 16, v{m}
    s_mov_b32 exec_lo, -1
    """)

def precompute(a):
    t = 12
    a(f"""
    v_and_b32 v1, 31, v0
    v_lshrrev_b32 v2, 5, v0
    v_lshrrev_b32 v3, 2, v1
    v_add_u32 v3, 1, v3
    v_and_b32 v3, 2, v3
    v_mul_u32_u24 v3, 6, v3
    v_xor_b32 v3, v1, v3
    v_lshlrev_b32 v{OAD0}, 3, v0
    v_lshlrev_b32 v{OAD1}, 4, v0
    s_and_b32 s38, s3, 1
    s_lshr_b32 s39, s3, 1
    s_mov_b32 s76, 0
    s_mov_b32 s77, 128
    s_cmp_eq_u32 s3, 1
    s_cselect_b32 s76, 32, s76
    s_cselect_b32 s77, 64, s77
    s_cmp_eq_u32 s3, 2
    s_cselect_b32 s76, 96, s76
    s_cselect_b32 s77, 96, s77
    s_sub_u32 s78, s3, 3
    s_lshl_b32 s78, s78, 2
    s_lshr_b32 s78, 0x20431, s78
    s_and_b32 s78, s78, 15
    s_lshl_b32 s8, s78, 6
    s_add_u32 s8, s8, {IMG_KV}
    s_add_u32 s9, s76, {IMG_W}
    s_sub_u32 s64, s77, s76
    s_cmp_lt_u32 s3, 3
    s_cselect_b32 s60, s9, s8
    s_cselect_b32 s64, s64, 32
    s_mov_b32 s61, 320
    s_cselect_b32 s61, 160, s61
    v_bfe_u32 v{t}, v0, 2, 2
    v_lshl_add_u32 v{t+1}, v2, 3, v{t}
    v_mul_u32_u24 v{t+1}, s61, v{t+1}
    v_bfe_u32 v{t+3}, v0, 4, 1
    v_mul_u32_u24 v{t+2}, s64, v{t+3}
    v_and_b32 v{t+6}, 3, v0
    v_lshlrev_b32 v{t+6}, 3, v{t+6}
    v_add3_u32 v{t+1}, v{t+1}, v{t+2}, v{t+6}
    v_add_u32 v{bW}, s60, v{t+1}
    v_bfe_u32 v{t+2}, v0, 1, 3
    v_xor_b32 v{t+2}, v{t+2}, v2
    v_lshlrev_b32 v{t+2}, 4, v{t+2}
    v_lshl_or_b32 v{bX}, v1, 7, v{t+2}
    v_xor_b32 v{bX+1}, 32, v{bX}
    v_xor_b32 v{bX+2}, 64, v{bX}
    v_xor_b32 v{bX+3}, 96, v{bX}
    """)
    a(f"""
    s_mul_i32 s80, s4, {64*2560}
    s_mul_i32 s8, s5, 160
    s_add_u32 s80, s80, s8
    s_cmp_ge_u32 s3, 4
    s_cbranch_scc1 PC_tz
    s_lshl_b32 s9, s39, 6
    s_add_u32 s80, s80, s9
    s_mul_i32 s10, s38, {32*2560}
    s_add_u32 s80, s80, s10
    s_mul_i32 s8, s38, 5120
    s_add_u32 s8, s8, {LX}
    s_lshl_b32 s9, s39, 10
    v_add_u32 v{tW1}, s9, v{OAD1}
    s_lshl_b32 s9, s39, 8
    s_add_u32 s9, s9, 2560
    v_mul_u32_u24 v{tW2}, 3200, v2
    v_lshl_add_u32 v{tW2}, v1, 3, v{tW2}
    v_add_u32 v{tW2}, s9, v{tW2}
    v_add_u32 v{tX1}, s8, v{OAD1}
    v_add_u32 v{tX2}, s8, v{OAD0}
    s_branch PC_td
    """)
    a.label("PC_tz")
    a(f"""
    s_sub_u32 s8, s3, 4
    s_mul_i32 s10, s8, {16*2560}
    s_add_u32 s80, s80, s10
    s_lshl_b32 s9, s38, 4
    s_lshr_b32 s8, s8, 1
    s_mul_i32 s8, s8, 5120
    s_add_u32 s8, s8, {LX}
    v_lshrrev_b32 v{t}, 4, v0
    v_and_b32 v{t+2}, 15, v0
    v_mul_u32_u24 v{tW1}, 3200, v2
    v_lshl_add_u32 v{tW1}, v1, 4, v{tW1}
    v_add_u32 v{tW1}, 2048, v{tW1}
    v_mul_u32_u24 v{tW2}, 3200, v{t}
    v_lshl_add_u32 v{tW2}, v{t+2}, 3, v{tW2}
    v_add_u32 v{tW2}, {2560+512}, v{tW2}
    v_add_u32 v{t+2}, s9, v{t+2}
    v_lshl_add_u32 v{t+4}, v{t}, 5, v{t+2}
    v_lshlrev_b32 v{tX2}, 3, v{t+4}
    v_add_u32 v{tX2}, s8, v{tX2}
    v_lshlrev_b32 v{tX1}, 4, v{t+4}
    v_add_u32 v{tX1}, s8, v{tX1}
    """)
    a.label("PC_td")
    a(f"v_mov_b32 v{tO}, 0")
    a(f"""
    v_add_u32 v{aKA}, {LKV}, v{OAD1}
    v_lshlrev_b32 v{aKB}, 3, v1
    v_add_u32 v{aKB}, {LKV+1024}, v{aKB}
    v_mul_u32_u24 v{aV0}, 320, v2
    v_lshl_add_u32 v{aV0}, v1, 4, v{aV0}
    v_add_u32 v{aV0}, {LKV+1280}, v{aV0}
    v_add_u32 v{aV1}, 640, v{aV0}
    v_mov_b32 v{AP0}, v3
    s_mov_b32 exec_lo, 0x0ff00000
    s_mov_b32 exec_hi, 0
    v_mov_b32 v{aV0}, {LKV+2560+16*4}
    v_mov_b32 v{aV1}, {LKV+2560+16*12}
    s_mov_b32 exec_lo, 0xf0000000
    v_mov_b32 v{aV0}, {LKV+2560+16*12}
    v_mov_b32 v{aV1}, {LKV+2560+16*4}
    s_mov_b32 exec_lo, 0
    s_mov_b32 exec_hi, 0x0ff00000
    v_mov_b32 v{aV0}, {LKV+2560+16*8}
    v_mov_b32 v{aV1}, {LKV+2560}
    s_mov_b32 exec_hi, 0xf0000000
    v_mov_b32 v{aV0}, {LKV+2560}
    v_mov_b32 v{aV1}, {LKV+2560+16*8}
    s_mov_b32 exec_lo, 0xeef00000
    s_mov_b32 exec_hi, 0xeef00000
    v_add_u32 v{aV0}, 16, v{aV0}
    v_add_u32 v{aV1}, 16, v{aV1}
    s_mov_b32 exec_lo, 0xfff00000
    s_mov_b32 exec_hi, 0xfff00000
    v_mov_b32 v{AP0}, 20
    s_mov_b32 exec_lo, 0
    s_mov_b32 exec_hi, -1
    v_mov_b32 v{aKB}, {LKV+2560}
    s_mov_b64 exec, -1
    s_mul_i32 s8, s39, 840
    s_add_u32 s8, s8, {LKVZ}
    v_mul_u32_u24 v{AP0}, 40, v{AP0}
    v_add_u32 v{AP0}, s8, v{AP0}
    v_lshl_add_u32 v{AP1}, v2, 4, v{AP0}
    s_lshl_b32 s10, s4, 3
    s_add_u32 s10, s10, s5
    s_lshl_b32 s10, s10, 1
    s_add_u32 s10, s10, s38
    s_mul_i32 s10, s10, 5120
    s_lshl_b32 s81, s39, 10
    s_add_u32 s81, s81, s10
    s_lshl_b32 s82, s39, 8
    s_add_u32 s82, s82, s10
    s_add_u32 s82, s82, 4096
    s_mul_i32 s8, s38, 5120
    s_add_u32 s8, s8, {LQ}
    s_lshl_b32 s9, s39, 10
    s_add_u32 s9, s9, s8
    v_add_u32 v{QF1}, s9, v{OAD1}
    s_lshl_b32 s9, s39, 8
    s_add_u32 s9, s9, s8
    s_add_u32 s9, s9, 4096
    v_lshlrev_b32 v{QF0}, 3, v1
    v_add_u32 v{QF0}, s9, v{QF0}
    """)
    for qq in range(4):
        a(f"""
        s_lshr_b32 s8, s{76 + (qq >> 1)}, 3
        s_add_u32 s8, s8, {2 * (qq & 1)}
        v_add_u32 v{t}, s8, v2
        v_mul_u32_u24 v{t+1}, 52, v{t}
        v_lshrrev_b32 v{t+1}, 8, v{t+1}
        v_mul_u32_u24 v{t+2}, 5, v{t+1}
        v_sub_u32 v{t+2}, v{t}, v{t+2}
        v_lshlrev_b32 v{TLQ[qq]}, 10, v{t+1}
        v_lshl_add_u32 v{TLQ[qq]}, v1, 4, v{TLQ[qq]}
        v_lshrrev_b32 v{t+3}, 1, v{t+2}
        v_lshl_add_u32 v{TLQ[qq]}, v{t+3}, 9, v{TLQ[qq]}
        v_and_b32 v{t+3}, 1, v{t+2}
        v_lshl_add_u32 v{TLQ[qq]}, v{t+3}, 3, v{TLQ[qq]}
        v_cmp_eq_u32 vcc, 4, v{t+2}
        s_mov_b64 exec, vcc
        v_lshlrev_b32 v{TLQ[qq]}, 8, v{t+1}
        v_lshl_add_u32 v{TLQ[qq]}, v1, 3, v{TLQ[qq]}
        v_add_u32 v{TLQ[qq]}, 4096, v{TLQ[qq]}
        s_mov_b64 exec, -1
        v_add_u32 v{TLQ[qq]}, {LQ}, v{TLQ[qq]}
        """)
    a(f"""
    s_add_u32 s9, s3, 1
    s_lshr_b32 s9, s9, 1
    s_add_u32 s9, s9, 2
    s_sub_u32 s10, s3, 5
    s_cmp_ge_u32 s3, 5
    s_cselect_b32 s12, s10, s39
    s_cselect_b32 s13, 0, s9
    s_lshl_b32 s10, s12, 12
    s_lshl_b32 s9, s13, 12
    v_add_u32 v{JA}, s10, v{OAD1}
    v_add_u32 v{JB}, s9, v{OAD1}
    s_lshl_b32 s10, s12, 5
    s_lshl_b32 s9, s13, 5
    s_sub_u32 s9, s9, 80
    v_lshlrev_b32 v{t}, 2, v2
    v_add_u32 v{t}, s10, v{t}
    v_add_u32 v{t+1}, s9, v1
    v_and_b32 v{t+2}, 0xffff, v{t+1}
    v_mul_u32_u24 v{t+2}, 3277, v{t+2}
    v_lshrrev_b32 v{t+2}, 16, v{t+2}
    v_mul_u32_u24 v{t+3}, 80, v{t+1}
    s_cmp_ge_u32 s3, 5
    s_cbranch_scc1 PC_z
    """)
    for z in range(2):
        for q in range(4):
            m = MASKS[q]
            a(f"v_add_u32 v{t+4}, {8*q}, v{t}")
            a(f"v_mul_u32_u24 v{t+5}, 3277, v{t+4}")
            a(f"v_lshrrev_b32 v{t+5}, 16, v{t+5}")
            if z == 0:
                a(f"v_lshl_add_u32 v{PWR+q}, v{t+4}, 2, v{t+3}")
                a(f"v_cmp_eq_u32 s[{m}:{m+1}], v{t+5}, v{t+2}")
            else:
                a(f"v_add_u32 v{PWR+q}, 1, v{t+5}")
                a(f"v_mul_u32_u24 v{PWR+q}, 1600, v{PWR+q}")
                a(f"v_lshl_add_u32 v{PWR+q}, v{t+4}, 2, v{PWR+q}")
                a(f"v_cmp_gt_u32 s[{m}:{m+1}], 4, v{t+5}")
                a(f"s_and_b32 s{m}, s{m}, 1\ns_and_b32 s{m+1}, s{m+1}, 1")
        if z == 0:
            a("s_branch PC_zd")
            a.label("PC_z")
    a.label("PC_zd")
    for i in range(BACC, BFR + 24): a(f"v_mov_b32 v{i}, 0")

def gen(a):
    K = NAME + "_kernel"
    kernel_begin(a, K)
    if STAMP:
        a("s_memtime s[84:85]\ns_memrealtime s[86:87]")
    a("s_getpc_b64 s[44:45]")
    a.label("L_pc")
    a(f"""
    s_mov_b32 s46, L_codeend-L_pc
    s_mov_b32 s47, 0x20000
    v_lshlrev_b32 v4, {9 if CPF4 else 7}, v0
    s_lshl_b32 s8, s2, 4
    s_and_b32 s8, s8, {0x180 if CPF4 else 0}
    buffer_load_dword v164, v4, s[44:47], s8 offen
    s_cmp_ge_u32 s2, 256
    s_cbranch_scc1 L_end
    s_load_dwordx16 s[16:31], s[0:1], 0
    s_load_dwordx4 s[32:35], s[0:1], 64
    s_load_dwordx2 s[36:37], s[0:1], 80
    v_lshrrev_b32 v1, 6, v0
    v_and_b32 v0, 63, v0
    v_readfirstlane_b32 s3, v1
    s_and_b32 s6, s2, 7
    s_lshr_b32 s7, s2, 3
    """)
    if MAP48:
        a("s_lshl_b32 s4, s6, 2\ns_lshr_b32 s8, s7, 3\ns_add_u32 s4, s4, s8\ns_and_b32 s5, s7, 7")
    else:
        a("s_lshr_b32 s4, s6, 1\ns_lshl_b32 s4, s4, 3\ns_lshr_b32 s8, s7, 2\ns_add_u32 s4, s4, s8\ns_and_b32 s5, s6, 1\ns_lshl_b32 s5, s5, 2\ns_and_b32 s8, s7, 3\ns_add_u32 s5, s5, s8")
    a(f"""
    s_cmp_lt_u32 s3, 8
    s_cbranch_scc1 C_start
    """)
    a("s_setprio 2")
    a("s_sub_u32 s10, s3, 8")
    a("s_mul_i32 s13, s4, 81920")
    a("v_lshlrev_b32 v18, 4, v0")
    a("s_cmp_eq_u32 s10, 1\ns_cbranch_scc1 L_mw")
    a("""
    v_lshrrev_b32 v20, 4, v0
    v_xor_b32 v21, v20, v0
    v_and_b32 v21, 15, v21
    v_lshlrev_b32 v21, 4, v21
    v_mul_u32_u24 v20, 1280, v20
    """)
    for j in range(4):
        a(f"v_xor_b32 v{28+j}, {64*j}, v21")
        a(f"v_add_u32 v{28+j}, v{28+j}, v20")
        if j < 3: a("v_add_u32 v20, 5120, v20")
    a(f"""
    s_mov_b32 m0, {LMX}
    s_lshr_b32 s14, s5, 1
    s_mul_i32 s14, s14, 20480
    s_add_u32 s14, s14, s13
    s_mov_b32 s15, 0
    s_waitcnt lgkmcnt(0)
    """)
    srd(a, 44, 16, XBYTES)
    a.label("L_mx")
    for j in range(4):
        dma(a, f"v{28+j}", 44, "s14")
        a("s_add_u32 m0, m0, 1024")
        a("s_add_u32 s14, s14, 256" if j == 3 else "s_nop 0")
    a("s_add_u32 s15, s15, 1\ns_cmp_lt_u32 s15, 5\ns_cbranch_scc1 L_mx")
    a("s_branch L_md")
    a.label("L_mw")
    a(f"s_mov_b32 m0, {LWKV}\ns_mov_b32 s14, 0")
    a("s_waitcnt lgkmcnt(0)")
    a("s_bitcmp1_b32 s5, 0")
    a("s_cselect_b32 s52, s22, s20")
    a("s_cselect_b32 s53, s23, s21")
    a("s_mov_b32 s54, 25600\ns_mov_b32 s55, 0x20000")
    a.label("L_mwl")
    for i in range(4): a(f"buffer_load_dwordx4 v18, s[52:55], s14 offen offset:{1024*i} lds")
    a("s_add_u32 m0, m0, 4096\ns_add_u32 s14, s14, 4096\ns_cmp_lt_u32 s14, 24576\ns_cbranch_scc1 L_mwl")
    a("buffer_load_dwordx4 v18, s[52:55], s14 offen lds")
    srd(a, 44, 16, XBYTES)
    a("s_branch L_md")
    a.label("C_start")
    a("s_cmp_lg_u32 s3, 4\ns_cbranch_scc1 C_pre")
    a("s_cmp_ge_u32 s2, 8\ns_cbranch_scc1 C_pre")
    a("s_memrealtime s[8:9]\ns_waitcnt lgkmcnt(0)\ns_or_b32 s8, s8, 1")
    srd(a, 44, 34, 256)
    a("v_mov_b32 v8, s8\nv_mov_b32 v9, 0\nv_mov_b32 v10, 0\ns_mov_b64 exec, 1")
    a("buffer_atomic_cmpswap v[8:9], v10, s[44:47], 0 offen sc1")
    a("s_mov_b64 exec, -1")
    a.label("C_pre")
    precompute(a)
    a("s_waitcnt lgkmcnt(0)")
    srd(a, 40, 36, WS_SIZE)
    a("s_cmp_lt_u32 s3, 3\ns_cbranch_scc1 A_q")
    a("s_cmp_eq_u32 s3, 5\ns_cbranch_scc1 A_kvpoll")
    a("s_cmp_lt_u32 s3, 6\ns_cbranch_scc1 A_bars")
    srd(a, 44, 34, 256)
    a(f"""
    v_mov_b32 v10, 0
    v_and_b32 v20, 15, v0
    v_lshrrev_b32 v21, 4, v0
    v_xor_b32 v22, v20, v21
    v_lshlrev_b32 v22, 4, v22
    v_lshl_add_u32 v22, v20, 8, v22
    v_add_u32 v22, {LMX}, v22
    v_xor_b32 v23, 64, v22
    v_xor_b32 v24, 128, v22
    v_xor_b32 v25, 192, v22
    v_bfe_u32 v26, v0, 2, 2
    v_lshl_add_u32 v26, v21, 3, v26
    v_mul_u32_u24 v26, 40, v26
    v_and_b32 v27, 3, v0
    v_lshl_add_u32 v26, v27, 3, v26
    s_lshl_b32 s8, s38, 5
    s_add_u32 s8, s8, {LWKV}
    v_add_u32 v26, s8, v26
    s_lshl_b32 s12, s4, 1
    s_lshr_b32 s8, s5, 2
    s_add_u32 s12, s12, s8
    s_mul_i32 s12, s12, {TILE}
    s_add_u32 s12, s12, {WS_KV}
    s_bfe_u32 s13, s5, 0x10001
    s_lshl_b32 s55, s4, 4
    s_add_u32 s55, s55, s5
    s_lshl_b32 s55, s55, 1
    s_add_u32 s55, s55, s38
    s_lshl_b32 s55, s55, 2
    s_add_u32 s55, s55, {FL_KV}
    v_and_b32 v27, 1, v21
    s_mov_b32 s56, 0
    s_mov_b64 s[48:49], -1
    """)
    for i in range(12, 16): a(f"v_mov_b32 v{i}, 0")
    MF = [BACC + 8 * i for i in range(4)]
    def mini(lbl, orient):
        def mm(st):
            x, w, ac = v(MF[st], 4), v(MF[st] + 4, 4), v(12, 4)
            a(f"v_mfma_f32_16x16x32_bf16 {ac}, {w}, {x}, {ac}" if orient == "R" else f"v_mfma_f32_16x16x32_bf16 {ac}, {x}, {w}, {ac}")
        a("s_barrier")
        a("buffer_load_dword v11, v10, s[44:47], 0 offen sc1")
        a.label(lbl)
        for st in range(4):
            f = MF[st]
            a(f"ds_read_b128 v[{f}:{f+3}], v{22+st}")
            for hf in range(2):
                a(f"ds_read_b64_tr_b16 v[{f+4+2*hf}:{f+5+2*hf}], v26 offset:{(32*st+4*hf)*40}")
            a(f"v_add_u32 v{22+st}, 4096, v{22+st}")
            a("s_waitcnt lgkmcnt(9)")
            mm((st + 1) % 4)
        a("v_add_u32 v26, 5120, v26")
        a(f"s_add_u32 s56, s56, 1\ns_cmp_lt_u32 s56, 5\ns_cbranch_scc1 {lbl}")
        for st, w in ((1, 6), (2, 3), (3, 0)):
            a(f"s_waitcnt lgkmcnt({w})"); mm(st)
    a("s_bitcmp1_b32 s5, 0")
    a("s_cbranch_scc1 M_v")
    a(f"""
    s_lshl_b32 s8, s13, 4
    v_add_u32 v20, s8, v20
    v_lshlrev_b32 v28, 4, v20
    v_lshl_add_u32 v28, v2, 9, v28
    v_lshl_add_u32 v28, v27, 3, v28
    s_cmp_eq_u32 s3, 6
    s_cbranch_scc1 M_k0
    v_lshlrev_b32 v28, 3, v20
    v_add_u32 v28, 1024, v28
    s_mov_b32 exec_lo, 0xffff0000
    v_lshlrev_b32 v28, 3, v20
    v_add_u32 v28, 2560, v28
    s_mov_b32 exec_lo, -1
    s_mov_b32 s49, 0
    """)
    a.label("M_k0")
    mini("M_kl", "R")
    a(f"s_mov_b32 s8, {f32(CSCALE)}\ns_nop 6")
    a("v_pk_mul_f32 v[12:13], v[12:13], s[8:9] op_sel_hi:[1,0]\nv_pk_mul_f32 v[14:15], v[14:15], s[8:9] op_sel_hi:[1,0]")
    a("v_cvt_pk_bf16_f32 v12, v12, v13\nv_cvt_pk_bf16_f32 v13, v14, v15")
    a("s_cmp_eq_u32 s3, 6\ns_cbranch_scc1 M_st")
    a("s_mov_b32 exec_lo, 0xffff0000")
    a("v_mov_b32 v12, 0x3f803f80\nv_mov_b32 v13, 0x3f803f80")
    a("s_mov_b32 exec_lo, 0xcccc0000\nv_mov_b32 v12, 0\nv_mov_b32 v13, 0")
    a("s_branch M_st")
    a.label("M_v")
    a(f"""
    s_mul_i32 s8, s13, 640
    s_add_u32 s12, s12, s8
    s_lshl_b32 s8, s38, 8
    s_add_u32 s12, s12, s8
    s_add_u32 s12, s12, 1280
    v_lshrrev_b32 v28, 2, v20
    v_add_u32 v28, 1, v28
    v_and_b32 v28, 2, v28
    v_mul_u32_u24 v28, 6, v28
    v_xor_b32 v28, v20, v28
    v_mul_u32_u24 v29, 320, v27
    v_lshl_add_u32 v29, v2, 3, v29
    v_lshl_add_u32 v28, v28, 4, v29
    s_cmp_eq_u32 s3, 6
    s_cselect_b32 s48, -1, 0x000f000f
    s_mov_b32 s49, s48
    """)
    mini("M_vl", "C")
    a("s_nop 7")
    a("v_cvt_pk_bf16_f32 v12, v12, v13\nv_cvt_pk_bf16_f32 v13, v14, v15")
    a.label("M_st")
    a("s_mov_b64 exec, s[48:49]")
    a("buffer_store_dwordx2 v[12:13], v28, s[40:43], s12 offen sc1")
    a("s_mov_b64 exec, -1")
    gs(a, 0, "v30", "v31")
    a("s_barrier")
    for i in range(32): a(f"v_mov_b32 v{BACC+i}, 0")
    a("s_barrier")
    a("s_mov_b32 s9, 0")
    a.label("A_np")
    a("s_add_u32 s9, s9, 1")
    a("s_waitcnt vmcnt(0)")
    a("v_cmp_eq_u32 vcc, 0, v11")
    a(f"s_cmp_gt_u32 s9, {SPIN_MAX}\ns_cbranch_scc1 A_nd\ns_cbranch_vccz A_nd\ns_sleep 1")
    a("buffer_load_dword v11, v10, s[44:47], 0 offen sc1")
    a("s_branch A_np")
    a.label("A_nd")
    a("s_mov_b64 exec, 1")
    a("buffer_store_dword v11, v10, s[40:43], s55 offen sc1")
    a("s_mov_b64 exec, -1")
    a(f"v_mov_b32 v5, {LMISC}\nds_write_b32 v5, v11\nds_write_b32 v5, v10 offset:8\nds_write_b32 v5, v10 offset:4\ns_waitcnt lgkmcnt(0)")
    gs(a, 1, "v30", "v31")
    a("s_branch A_bars8")
    a.label("A_kvpoll")
    a("v_lshrrev_b32 v20, 1, v0\nv_lshlrev_b32 v20, 7, v20\nv_and_b32 v21, 1, v0\nv_lshl_add_u32 v20, v21, 4, v20")
    a(f"v_mov_b32 v18, v{OAD1}")
    a("s_and_b32 s60, s7, 15")
    a(f"s_mov_b32 s61, {LKV}\ns_mov_b32 s12, {FL_KV}\ns_mov_b32 s9, 0")
    KP = int(OPT.get("kp", 6))
    for i in range(KP + 1): a("s_barrier")
    get_nonce(a, "v22", "v23")
    a("s_barrier\ns_sleep 3")
    def kvl():
        a("buffer_load_dwordx4 v[24:27], v20, s[40:43], s12 offen sc1")
        a("buffer_load_dwordx4 v[28:31], v20, s[40:43], s12 offen offset:32 sc1")
    kvl()
    a("s_barrier\ns_barrier\ns_barrier")
    a(f"s_mov_b32 s13, {6 - KP}")
    a.label("A_kq")
    a("s_add_u32 s9, s9, 1")
    a("s_waitcnt vmcnt(0)")
    for i in range(8): a(f"v_xor_b32 v{24+i}, s96, v{24+i}")
    a("v_or3_b32 v24, v24, v25, v26\nv_or3_b32 v27, v27, v28, v29\nv_or3_b32 v24, v24, v30, v31\nv_or_b32 v24, v24, v27\nv_cmp_ne_u32 vcc, 0, v24")
    a(f"s_cmp_gt_u32 s9, {SPIN_MAX}\ns_cbranch_scc1 A_kd\ns_cbranch_vccz A_kd\ns_mov_b64 exec, vcc\ns_sleep {OPT.get('ksl', 8)}")
    kvl()
    a("s_cmp_eq_u32 s13, 0\ns_cbranch_scc1 A_kq\ns_barrier\ns_sub_u32 s13, s13, 1\ns_branch A_kq")
    a.label("A_kd")
    a("s_mov_b64 exec, -1")
    gs(a, 4, "v30", "v31")
    call(a, "L_issueKV", "s[62:63]")
    a.label("A_kr")
    a("s_cmp_eq_u32 s13, 0\ns_cbranch_scc1 A_ke\ns_barrier\ns_sub_u32 s13, s13, 1\ns_branch A_kr")
    a.label("A_ke")
    for i in range(3 if BS >= 2 else 2): call(a, "L_issueKV", "s[62:63]")
    a(f"s_waitcnt vmcnt({33 if BS >= 2 else 22})")
    a("s_branch A_done")
    a.label("A_bars")
    for i in range(3): a("s_barrier")
    a.label("A_bars8")
    for i in range(8): a("s_barrier")
    a("s_waitcnt vmcnt(0)")
    a("s_branch A_done")
    a.label("A_q")
    def ard(st, i):
        f = AFR[st]
        if i < 2: a(f"ds_read_b64_tr_b16 v[{f+2*i}:{f+2*i+1}], v{bW} offset:{(16*st+4*i)*160}")
        else: a(f"ds_read_b128 v[{f+4*(i-1)}:{f+4*(i-1)+3}], v{bX+st} offset:{4096*(i-2)}")
    def amf(st, blk):
        f = AFR[st]; ac = v(AACC + 16 * blk, 16)
        a(f"v_mfma_f32_32x32x16_bf16 {ac}, v[{f}:{f+3}], v[{f+4+4*blk}:{f+7+4*blk}], {ac}")
    a(f"s_mov_b32 s56, 0\ns_mov_b32 s70, {HS}\ns_mov_b32 s74, {-5*HS}\ns_mov_b32 s75, {-3*HS}")
    for i in range(32): a(f"v_mov_b32 v{AACC+i}, 0")
    a("s_barrier\ns_barrier")
    for st in (0, 1, 2):
        for i in range(4): ard(st, i)
    a("s_branch A_mid")
    a(".p2align 3")
    a.label("A_loop")
    a("s_waitcnt lgkmcnt(0)\ns_barrier")
    seq = [(st, i) for st in (0, 1, 2) for i in range(4)]
    for n, (st, blk) in enumerate(((2, 0), (2, 1), (3, 0), (3, 1))):
        amf(st, blk)
        for x in seq[3 * n:3 * n + 3]: ard(*x)
    a.label("A_mid")
    a("s_add_u32 s56, s56, 1\ns_cmp_eq_u32 s56, 6\ns_cselect_b32 s8, s74, s70")
    a("s_waitcnt lgkmcnt(8)")
    amf(0, 0); ard(3, 0); ard(3, 1)
    a("s_cmp_lt_u32 s56, 10\ns_cselect_b32 s8, s8, s75")
    amf(0, 1); ard(3, 2); ard(3, 3)
    a("s_waitcnt lgkmcnt(8)")
    a(f"v_add_u32 v{bW}, s8, v{bW}")
    amf(1, 0)
    for j in range(4): a(f"v_add_u32 v{bX+j}, s8, v{bX+j}")
    amf(1, 1)
    a("s_cbranch_scc1 A_loop")
    a("s_waitcnt lgkmcnt(4)")
    amf(2, 0)
    for i in range(6): a(f"v_mov_b32 v{BFR+i}, 0")
    a("s_waitcnt lgkmcnt(0)")
    amf(3, 0)
    for i in range(6, 12): a(f"v_mov_b32 v{BFR+i}, 0")
    amf(2, 1)
    for i in range(12, 18): a(f"v_mov_b32 v{BFR+i}, 0")
    amf(3, 1)
    for i in range(18, 24): a(f"v_mov_b32 v{BFR+i}, 0")
    for blk in range(2):
        for qq in range(4):
            r0 = AACC + 16 * blk + 4 * qq
            a(f"v_cvt_pk_bf16_f32 v{r0}, v{r0}, v{r0+1}\nv_cvt_pk_bf16_f32 v{r0+1}, v{r0+2}, v{r0+3}")
            a(f"ds_write_b64 v{TLQ[qq]}, v[{r0}:{r0+1}] offset:{5120*blk}")
    a.label("A_done")
    def rdKA(t): a(f"ds_read_b128 v[{KA}:{KA+3}], v{aKA} offset:{t*TILE}")
    def rdKB(t): a(f"ds_read_b64 v[{KB}:{KB+1}], v{aKB} offset:{t*TILE}")
    def rdV0(t): a(f"ds_read_b128 v[{V0}:{V0+3}], v{aV0} offset:{t*TILE}")
    def rdV1(t): a(f"ds_read_b128 v[{V1}:{V1+3}], v{aV1} offset:{t*TILE}")
    def qka(S): a(f"v_mfma_f32_32x32x16_bf16 v[{S}:{S+15}], v[{KA}:{KA+3}], v[{QA}:{QA+3}], 0")
    def qkb(S): a(f"v_mfma_f32_32x32x8_bf16 v[{S}:{S+15}], v[{KB}:{KB+1}], v[{QB}:{QB+1}], v[{S}:{S+15}]")
    def pv0(): a(f"v_mfma_f32_32x32x16_bf16 v[{OO}:{OO+15}], v[{V0}:{V0+3}], v[{PP}:{PP+3}], v[{OO}:{OO+15}]")
    def pv1(): a(f"v_mfma_f32_32x32x16_bf16 v[{OO}:{OO+15}], v[{V1}:{V1+3}], v[{PP+4}:{PP+7}], v[{OO}:{OO+15}]")
    def E(S, lo, hi, w=None):
        for i in range(lo, hi):
            if w is not None and i == hi - 1:
                a(w if isinstance(w, str) else f"s_waitcnt lgkmcnt({w})"); a(f"v_exp_f32_e64 v{S+i}, v{S+i}")
            else: a(f"v_exp_f32 v{S+i}, v{S+i}")
    def c1(k, S): a(f"v_cvt_pk_bf16_f32 v{PP+k}, v{S+2*k}, v{S+2*k+1}")
    def C(S, g): c1(2 * g, S); c1(2 * g + 1, S)
    ct(a, "a0")
    a("s_waitcnt lgkmcnt(0)\ns_barrier")
    ct(a, "p0")
    read_qfrag(a, QA, QB)
    rdKA(0); rdKB(0)
    a(f"ds_read_b128 v[{V1}:{V1+3}], v{aKA} offset:{TILE}")
    rdV0(0)
    a(f"v_mov_b32 v{PP}, {LMISC}\nds_read_b32 v{PP+3}, v{PP}")
    a("s_mov_b32 exec_lo, 0")
    a("s_waitcnt lgkmcnt(3)")
    a(f"v_mov_b32 v{QB}, 0\nv_mov_b32 v{QB+1}, 0")
    a("s_mov_b32 exec_lo, -1")
    ct(a, "p1")
    qka(S0); qkb(S0)
    rdKB(1); rdKA(2)
    a("s_waitcnt lgkmcnt(2)")
    a(f"v_mfma_f32_32x32x16_bf16 v[{S1}:{S1+15}], v[{V1}:{V1+3}], v[{QA}:{QA+3}], 0")
    rdV1(0)
    a(f"v_readfirstlane_b32 s96, v{PP+3}")
    a("s_nop 5")
    ct(a, "p2")
    rowmax(a, S0, PP)
    set_m(a, PP, PP + 1, PP + 2)
    ct(a, "p3")
    for i in range(0, 16, 2): a(f"v_pk_add_f32 v[{S0+i}:{S0+i+1}], v[{S0+i}:{S0+i+1}], v[{PP+2}:{PP+3}] op_sel_hi:[1,0] neg_lo:[0,1] neg_hi:[0,1]")
    a(".p2align 3")
    E(S0, 0, 4, 2)
    qkb(S1); rdKB(2); C(S0, 0); E(S0, 4, 8); a("s_nop 0\ns_nop 0"); C(S0, 1); E(S0, 8, 12)
    a(f"v_mfma_f32_32x32x16_bf16 v[{OO}:{OO+15}], v[{V0}:{V0+3}], v[{PP}:{PP+3}], 0")
    rdV0(1); C(S0, 2); E(S0, 12, 16, 3); C(S0, 3)
    def plain(n, t=0):
        Sc, Sn = (S0, S1) if n % 2 == 0 else (S1, S0)
        if t == 63:
            E(Sc, 0, 4, 1); pv1(); rdV1(15); C(Sc, 0); E(Sc, 4, 8); a("s_nop 0\ns_nop 0"); C(Sc, 1); E(Sc, 8, 12, 1)
            pv0(); C(Sc, 2); E(Sc, 12, 16); C(Sc, 3)
            return
        if t == 62:
            qka(Sn); E(Sc, 0, 4, 2)
            pv1(); rdV1(14); C(Sc, 0); E(Sc, 4, 8, 2)
            qkb(Sn); C(Sc, 1); E(Sc, 8, 12, 1)
            pv0(); rdV0(15); C(Sc, 2); E(Sc, 12, 16); C(Sc, 3)
            return
        qka(Sn); rdKA((n + 2) % 16); E(Sc, 0, 4, 3)
        pv1(); rdV1(n); C(Sc, 0); E(Sc, 4, 8, 3)
        qkb(Sn); rdKB((n + 2) % 16); C(Sc, 1); E(Sc, 8, 12, 3)
        pv0(); rdV0((n + 1) % 16); C(Sc, 2); E(Sc, 12, 16, 3); C(Sc, 3)
    for n in range(1, 12):
        if n == 1: ct(a, "p4")
        if n == 2:
            ct(a, "p5"); a("s_waitcnt vmcnt(0)"); ct(a, "p6"); a("s_barrier")
        if n == 5:
            a(f"s_mov_b64 exec, 1\nv_mov_b32 v3, 1\nv_mov_b32 v164, {LMISC}\nds_add_u32 v164, v3 offset:4\ns_mov_b64 exec, -1\ns_nop 0")
        plain(n)
    a(f"s_mov_b32 s8, {3*CH}")
    for r in (aKA, aKB, aV0, aV1): a(f"v_add_u32 v{r}, s8, v{r}")
    a(f"s_mov_b32 s56, 0\ns_mov_b32 s68, 0\ns_mov_b32 s70, {SLOT}\ns_mov_b32 s74, {-2*SLOT}\ns_mov_b32 s72, {CH}\ns_mov_b32 s73, {-3*CH}")
    a("s_waitcnt lgkmcnt(0)")
    a("s_cmp_ge_u32 s3, 3\ns_cbranch_scc1 FU_C")
    def G(orient, s_, blk):
        f = BFR + 12 * s_; w, x, ac = v(f, 4), v(f + 4 + 4 * blk, 4), v(BACC + 16 * blk, 16)
        a(f"v_mfma_f32_32x32x16_bf16 {ac}, {w}, {x}, {ac}" if orient == "R" else f"v_mfma_f32_32x32x16_bf16 {ac}, {x}, {w}, {ac}")
    def GR(orient, s_, st):
        f = BFR + 12 * s_; stride = 160 if orient == "R" else 320
        for hf in range(2): a(f"ds_read_b64_tr_b16 v[{f+2*hf}:{f+2*hf+1}], v{bW} offset:{(16*st+4*hf)*stride}")
        for blk in range(2): a(f"ds_read_b128 v[{f+4+4*blk}:{f+7+4*blk}], v{bX+st} offset:{4096*blk}")
    for orient in ("R", "C"):
        a(".p2align 3")
        a.label("FU_" + orient)
        a("s_and_b32 s9, s56, 3\ns_cselect_b32 s9, s72, s73")
        for n in range(4):
            Sc, Sn = (S0, S1) if n % 2 == 0 else (S1, S0)
            def slot(i, w=None):
                c1((i - 1) % 8, Sn if i == 0 else Sc)
                E(Sc, 2 * i, 2 * i + 2, w)
            def va(*regs, sg):
                for r in regs: a(f"v_add_u32 v{r}, {sg}, v{r}")
            G(orient, 0, 0)
            if n == 2: va(aKA, aKB, sg="s9")
            slot(0, 11)
            qka(Sn); rdKA((n + 2) % 4); slot(1)
            if n % 2 == 0:
                a("s_waitcnt lgkmcnt(1)\ns_barrier")
                a("s_add_u32 s68, s68, 1\ns_cmp_eq_u32 s68, 3\ns_cselect_b32 s8, s74, s70\ns_cselect_b32 s68, 0, s68")
            G(orient, 0, 1); GR(orient, 0, (2 * n) % 4); slot(2, 11)
            pv1(); rdV1(n); slot(3, 11)
            qkb(Sn); rdKB((n + 2) % 4); slot(4, 7)
            G(orient, 1, 0)
            if n == 3: va(aV0, aV1, sg="s9")
            slot(5)
            pv0(); rdV0((n + 1) % 4); slot(6)
            G(orient, 1, 1); GR(orient, 1, (2 * n + 1) % 4)
            if n % 2 == 0: va(bX, bX + 1, sg="s8")
            else:
                va(bX + 2, bX + 3, bW, sg="s8"); a("s_nop 0")
            slot(7, 7)
        a(f"s_add_u32 s56, s56, 1\ns_cmp_lt_u32 s56, 5\ns_cbranch_scc1 FU_{orient}")
        ct(a, "fe")
        c1(7, S1)
        G(orient, 0, 0)
        a("s_waitcnt lgkmcnt(0)")
        G(orient, 1, 0); G(orient, 0, 1); G(orient, 1, 1)
        a(f"s_mov_b32 s8, {f32(LOG2E)}\ns_mov_b32 s9, {f32(1e-6)}")
        def phi4(r0, X):
            for i in (0, 2): a(f"v_pk_mul_f32 v[{X+i}:{X+i+1}], v[{r0+i}:{r0+i+1}], s[8:9] op_sel_hi:[1,0]")
            for i in range(4): a(f"v_exp_f32_e64 v{X+i}, v{X+i} clamp")
            for i in range(4): a(f"v_max_f32 v{r0+i}, s9, v{r0+i}")
            for i in (0, 2): a(f"v_pk_add_f32 v[{r0+i}:{r0+i+1}], v[{r0+i}:{r0+i+1}], v[{X+i}:{X+i+1}]")
        if orient == "R":
            a("s_nop 7")
            for half in range(2):
                if half == 1: a("s_cmp_eq_u32 s3, 2\ns_cbranch_scc1 B_jobs")
                for blk in range(2):
                    for q in range(2):
                        r0 = BACC + 16 * blk + 8 * half + 4 * q
                        phi4(r0, BFR)
                        a(f"v_cvt_pk_bf16_f32 v{r0}, v{r0}, v{r0+1}\nv_cvt_pk_bf16_f32 v{r0+1}, v{r0+2}, v{r0+3}")
                        a(f"ds_write_b64 v{TLQ[2*half+q]}, v[{r0}:{r0+1}] offset:{5120*blk}")
            a("s_branch B_jobs")
    a("s_lshl_b32 s10, s78, 12")
    a(f"v_add_u32 v{TL0}, s10, v{OAD1}")
    a("s_cmp_eq_u32 s78, 2\ns_cselect_b32 s10, 0xffff, -1\ns_mov_b32 s11, s10")
    a("s_cmp_ge_u32 s78, 3")
    a("s_nop 1")
    for ks in range(4):
        r0 = BACC + 8 * ks
        l = a.newlabel("B_np")
        a(f"s_cbranch_scc1 {l}")
        a("s_mov_b64 exec, s[10:11]")
        phi4(r0, BFR); phi4(r0 + 4, BFR + 4)
        a("s_mov_b64 exec, -1")
        a.label(l)
        for i in range(4): a(f"v_cvt_pk_bf16_f32 v{r0+i}, v{r0+2*i}, v{r0+2*i+1}")
        a(f"ds_write_b128 v{TL0}, v[{r0}:{r0+3}] offset:{LFR+1024*ks}")
    a(".p2align 3")
    a.label("B_jobs")
    JAF, JBF, JD = BACC, BACC + 16, BFR
    ct(a, "ep")
    plain(0); plain(1)
    a("s_cmp_lt_u32 s3, 5")
    a("s_barrier")
    ct(a, "c10")
    qka(S1); rdKA(4)
    for ks in range(4): a(f"ds_read_b128 v[{JAF+4*ks}:{JAF+4*ks+3}], v{JA} offset:{LFR+1024*ks}")
    a("s_cbranch_scc0 B_z")
    for ks in range(4): a(f"ds_read_b128 v[{JBF+4*ks}:{JBF+4*ks+3}], v{JB} offset:{LFR+1024*ks}")
    a("s_branch B_nob")
    a.label("B_z")
    for i in range(16): a(f"v_mov_b32 v{JBF+i}, 0x3f803f80")
    a(".p2align 3")
    a.label("B_nob")
    read_qfrag(a, PQA, PQB)
    def J(ks):
        c = "0" if ks == 0 else v(JD, 16)
        a(f"v_mfma_f32_32x32x16_bf16 {v(JD,16)}, v[{JAF+4*ks}:{JAF+4*ks+3}], v[{JBF+4*ks}:{JBF+4*ks+3}], {c}")
    E(S0, 0, 4, 7)
    pv1(); rdV1(2); C(S0, 0); E(S0, 4, 8)
    qkb(S1); rdKB(4); C(S0, 1); E(S0, 8, 10, 4)
    J(0); E(S0, 10, 12)
    J(1); C(S0, 2)
    pv0(); rdV0(3); E(S0, 12, 14)
    J(2); E(S0, 14, 16)
    J(3); C(S0, 3)
    a("s_mov_b32 exec_lo, 0")
    a("s_waitcnt lgkmcnt(3)")
    a(f"v_mov_b32 v{PQB}, 0\nv_mov_b32 v{PQB+1}, 0")
    a("s_mov_b32 exec_lo, -1\ns_nop 0")
    def PW(q):
        a(f"s_mov_b64 exec, s[{MASKS[q]}:{MASKS[q]+1}]\ns_nop 0")
        a(f"ds_write_b128 v{PWR+q}, v[{JD+4*q}:{JD+4*q+3}] offset:{LPART}")
        a("s_mov_b64 exec, -1\ns_nop 0")
    qka(S0); rdKA(5); E(S1, 0, 4, 3)
    pv1(); rdV1(3); PW(0); C(S1, 0); E(S1, 4, 8, 4)
    qkb(S0); rdKB(5); PW(1); C(S1, 1); E(S1, 8, 12, 5)
    pv0(); rdV0(4); PW(2); C(S1, 2); E(S1, 12, 16, 6); C(S1, 3); PW(3)
    ct(a, "jw")
    for t in range(36, 54):
        if t % 4 == 2: a("s_barrier\ns_nop 0")
        plain(t % 16)
    a("s_barrier\ns_nop 0")
    AP = BACC
    a(f"ds_read2_b64 v[100:103], v{AP1} offset0:0 offset1:1\nds_read_b64 v[104:105], v{AP0} offset:32")
    qka(S1); rdKA(8); E(S0, 0, 4, 5)
    pv1(); rdV1(6); C(S0, 0); E(S0, 4, 8, 2)
    qkb(S1); rdKB(8); C(S0, 1)
    a(f"v_mfma_f32_32x32x16_bf16 v[{AP}:{AP+15}], v[100:103], v[{PQA}:{PQA+3}], 0")
    E(S0, 8, 12)
    pv0(); rdV0(7); C(S0, 2)
    a(f"v_mfma_f32_32x32x8_bf16 v[{AP}:{AP+15}], v[104:105], v[{PQB}:{PQB+1}], v[{AP}:{AP+15}]")
    E(S0, 12, 16, 3); C(S0, 3)
    qka(S0); rdKA(9); E(S1, 0, 4, 3)
    pv1(); rdV1(7)
    o_epilogue(a, AP, WS_OB, True)
    a(f"v_mov_b32 v100, {LCNT}\nv_mov_b32 v101, 1\ns_mov_b64 exec, 1\nds_add_rtn_u32 v102, v100, v101\ns_mov_b64 exec, -1")
    a(".p2align 3")
    C(S1, 0); E(S1, 4, 8, 4)
    qkb(S0); rdKB(9); C(S1, 1); E(S1, 8, 12, 4)
    pv0(); rdV0(8); C(S1, 2); E(S1, 12, 16, 2); C(S1, 3)
    a(f"v_readfirstlane_b32 s9, v102\ns_lshl_b32 s8, s4, 5\ns_add_u32 s8, s8, s5\ns_lshl_b32 s8, s8, 2\ns_add_u32 s8, s8, {FL_HB}")
    a("s_cmp_eq_u32 s9, 7\ns_cbranch_scc0 AT_n8")
    publish(a, "s8", "v100", "v101")
    a(".p2align 3")
    a.label("AT_n8")
    for t in range(56, 64):
        if t % 4 == 2: a("s_barrier\ns_nop 0")
        plain(t % 16, t)
    srd(a, 44, 32, 2048 * 2560)
    a("s_waitcnt lgkmcnt(0)")
    pv1()
    a("s_mov_b32 s56, 0\ns_mov_b32 s71, 0\ns_mov_b32 s72, 20480\ns_mov_b32 s73, -40960\ns_mov_b32 s74, 25600\ns_mov_b32 s75, -102400")
    a("s_nop 5")
    a(f"v_cmp_nge_f32 vcc, {f32(2.0**40)}, v{OO+12}")
    a("s_nop 1")
    a("s_cbranch_vccnz AT_fallback")
    a.label("AT_ok")
    F = [20 + 8 * i for i in range(10)]
    NANCHK = "v_cmp_u_f32 {}, v4, v4" if not FORCE_REDO else "v_cmp_o_f32 {}, v4, v4"
    OUT = 132
    SW, SR = TL0, TL1
    a("s_cmp_ge_u32 s3, 4\ns_cbranch_scc1 TLz_start")
    def tl_vm(pfx):
        a(f"s_cmp_lg_u32 s56, 2\ns_cbranch_scc1 {pfx}_nv\ns_waitcnt vmcnt(0)")
        a.label(pfx + "_nv")
    def tl_adv():
        a("s_add_u32 s71, s71, 1\ns_cmp_eq_u32 s71, 3\ns_cselect_b32 s8, s73, s72\ns_cselect_b32 s71, 0, s71")
        a(f"v_add_u32 v{tW1}, s74, v{tW1}\nv_add_u32 v{tW2}, s74, v{tW2}\nv_add_u32 v{tX1}, s8, v{tX1}\nv_add_u32 v{tX2}, s8, v{tX2}")
        a("s_add_u32 s56, s56, 1\ns_and_b32 s8, s56, 3")
    def wrd(d, st):
        t, H = divmod(st, 5)
        if H < 4: a(f"ds_read_b128 v[{d}:{d+3}], v{tW1} offset:{12800*t+3200*H}")
        else:
            for hf in range(2): a(f"ds_read_b64 v[{d+2*hf}:{d+2*hf+1}], v{tW2} offset:{12800*t+6400*hf}")
    def xrd(d, st):
        t, H = divmod(st, 5)
        if H < 4: a(f"ds_read_b128 v[{d}:{d+3}], v{tX1} offset:{t*10240+H*1024}")
        else:
            for hf in range(2): a(f"ds_read_b64 v[{d+2*hf}:{d+2*hf+1}], v{tX2} offset:{t*10240+4096+512*hf}")
    def mrd(st): wrd(F[st], st); xrd(F[st] + 4, st)
    def mmf(st): a(f"v_mfma_f32_32x32x16_bf16 v[4:19], v[{F[st]}:{F[st]+3}], v[{F[st]+4}:{F[st]+7}], v[4:19]")
    nrd = lambda st: 4 if st % 5 == 4 else 2
    def m_pack(O):
        for i in range(8): a(f"v_cvt_pk_bf16_f32 v{O+i}, v{4+2*i}, v{5+2*i}")
    def m_turn(O):
        for q in range(4): a(f"ds_write_b64 v{SW}, v[{O+2*q}:{O+2*q+1}] offset:{16*q}")
        for i in range(2): a(f"ds_read_b128 v[{O+4*i}:{O+4*i+3}], v{SR} offset:{1280*i}")
    def m_store(O, off):
        for i in range(2): a(f"buffer_store_dwordx4 v[{O+4*i}:{O+4*i+3}], v{tO}, s[44:47], s{80+i} offen offset:{off} {ONT}")
    WS_ = lambda h, st: 20 + 40 * h + 4 * st
    XS_ = lambda st: 100 + 4 * st
    n1 = lambda st: 2 if st % 5 == 4 else 1
    def mm2(h, st): a(f"v_mfma_f32_32x32x16_bf16 v[4:19], v[{WS_(h,st)}:{WS_(h,st)+3}], v[{XS_(st)}:{XS_(st)+3}], v[4:19]")
    def body(h, mid=None):
        pend = []
        def X(st): xrd(XS_(st), st); pend.extend([("x", st)] * n1(st))
        X(0); X(1); mm2(1 - h, 6); X(2); X(3); mm2(1 - h, 7); X(4); X(5); mm2(1 - h, 8); X(6); X(7); mm2(1 - h, 9)
        if mid: a.label(mid)
        X(8); X(9)
        nw = [(0, 1), (2, 3), (4,), (5, 6), (7, 8), (9,)]
        for st in range(6):
            last = max(i for i, p in enumerate(pend) if p == ("x", st))
            a(f"s_waitcnt lgkmcnt({min(15, len(pend) - 1 - last)})")
            mm2(h, st)
            for w in nw[st]:
                wrd(WS_(1 - h, w), 10 + w); pend.extend([("w", w)] * n1(w))
        tl_adv()
    for st in range(10): wrd(WS_(0, st), st)
    o_epilogue(a, OO, WS_OA, False)
    a.label("TLm_job")
    for i in range(4, 20): a(f"v_mov_b32 v{i}, 0")
    a("s_barrier")
    for st in range(8): xrd(XS_(st), st)
    a("s_branch TLm_mid")
    a(".p2align 3")
    a.label("TLm_loop")
    a("s_waitcnt vmcnt(0) lgkmcnt(12)\ns_barrier")
    body(0, "TLm_mid")
    a("s_waitcnt lgkmcnt(12)\ns_barrier")
    body(1)
    a("s_cbranch_scc1 TLm_loop")
    a("s_cmp_eq_u32 s56, 8\ns_cbranch_scc1 TLm_fin")
    a("s_waitcnt lgkmcnt(12)\ns_barrier")
    a(f"v_add_u32 v{tW1}, s75, v{tW1}\nv_add_u32 v{tW2}, s75, v{tW2}")
    for st in range(6, 10):
        mm2(1, st)
        for w in ((0, 1, 2), (3, 4), (5, 6, 7), (8, 9))[st - 6]: wrd(WS_(0, w), w)
    a(f"""
    v_lshrrev_b32 v{tO}, 2, v0
    v_and_b32 v3, 3, v0
    s_mul_i32 s8, s3, 2560
    s_add_u32 s8, s8, {LX + 40960}
    v_mul_u32_u24 v{SW}, 80, v1
    v_lshl_add_u32 v{SW}, v2, 3, v{SW}
    v_add_u32 v{SW}, s8, v{SW}
    v_lshlrev_b32 v3, 4, v3
    v_mul_u32_u24 v{SR}, 80, v{tO}
    v_add3_u32 v{SR}, v{SR}, v3, s8
    v_mul_u32_u24 v{tO}, 2560, v{tO}
    v_add_u32 v{tO}, v{tO}, v3
    s_add_u32 s81, s80, {16*2560}
    """)

    a(NANCHK.format("s[48:49]"))
    m_pack(OUT + 8)
    a("s_branch TLm_job")
    a.label("TLm_fin")
    a("s_waitcnt lgkmcnt(12)")
    mm2(1, 6)
    m_turn(OUT + 8)
    for st in range(7, 10): mm2(1, st)
    a("s_waitcnt lgkmcnt(0)")
    m_store(OUT + 8, 1280)
    a("s_nop 8")
    a(NANCHK.format("s[50:51]"))
    def m_out():
        m_pack(OUT); m_turn(OUT); a("s_waitcnt lgkmcnt(0)"); m_store(OUT, 0)
    m_out()
    a("s_or_b64 vcc, s[48:49], s[50:51]\ns_cbranch_scc1 TLm_redo")
    a.label("TLm_end")
    stamp_end(a)
    a("s_endpgm")
    def redo(pfx, nacc, loads, mfmas, out):
        a.label(pfx + "_redo")
        a(f"v_add_u32 v{tW1}, s75, v{tW1}\nv_add_u32 v{tW2}, s75, v{tW2}")
        a(f"s_mov_b32 s8, {-(LX + 40960)}\nv_add_u32 v{tX1}, s8, v{tX1}\nv_add_u32 v{tX2}, s8, v{tX2}")
        a(f"v_lshlrev_b32 v100, 2, v0\ns_lshl_b32 s52, s4, 7\ns_add_u32 s52, s52, {FL_OA}")
        a(f"s_mul_i32 s13, s4, 81920\ns_mul_i32 s53, s5, 102400\ns_add_u32 s53, s53, {WS_WPA}\ns_mov_b32 s54, 0")
        a.label(pfx + "_rj")
        poll(a, "s52", 8, "v101", "v100")
        for i in range(4, 4 + nacc): a(f"v_mov_b32 v{i}, 0")
        a("s_add_u32 s69, s5, s4\ns_mov_b32 s56, 0")
        a.label(pfx + "_rl")
        a(f"s_and_b32 s69, s69, 3\ns_mul_i32 s8, s69, 20480\ns_add_u32 s8, s8, s13\ns_add_u32 s9, s8, 4096\ns_add_u32 s10, s8, 10240\ns_add_u32 s11, s8, {10240+4096}")
        a("s_mul_i32 s12, s69, 25600\ns_add_u32 s12, s12, s53")
        loads()
        a("s_waitcnt vmcnt(0)")
        mfmas()
        a(f"s_add_u32 s69, s69, 1\ns_add_u32 s56, s56, 1\ns_cmp_lt_u32 s56, 4\ns_cbranch_scc1 {pfx}_rl")
        a("s_nop 11")
        out()
        a(f"s_add_u32 s80, s80, 1280\ns_add_u32 s81, s81, 1280\ns_add_u32 s13, s13, {WS_OB - WS_OA}")
        a(f"s_sub_u32 s52, s52, {FL_OA - FL_OB}\ns_sub_u32 s53, s53, {WS_WPA - WS_WPB}")
        a(f"s_add_u32 s54, s54, 1\ns_cmp_lt_u32 s54, 2\ns_cbranch_scc1 {pfx}_rj\ns_branch {pfx}_end")
    def gw(d, n, addr, off):
        a(f"s_add_u32 s14, s12, {off}")
        a(f"buffer_load_dwordx{n} v[{d}:{d+n-1}], v{addr}, s[40:43], s14 offen sc1")
    def m_loads():
        for st in range(10):
            t, H = divmod(st, 5); d = F[st] + 4
            if H < 4:
                a(f"buffer_load_dwordx4 v[{d}:{d+3}], v{tX1}, s[40:43], s{8+2*t} offen offset:{1024*H} sc1")
                gw(F[st], 4, tW1, 12800 * t + 3200 * H)
            else:
                for hf in range(2):
                    a(f"buffer_load_dwordx2 v[{d+2*hf}:{d+2*hf+1}], v{tX2}, s[40:43], s{9+2*t} offen offset:{512*hf} sc1")
                    gw(F[st] + 2 * hf, 2, tW2, 12800 * t + 6400 * hf)
    redo("TLm", 16, m_loads, lambda: [mmf(st) for st in range(10)], m_out)
    def zw(d, j):
        if j < 4: a(f"ds_read_b128 v[{d}:{d+3}], v{tW1} offset:{6400*j}")
        else:
            for t in range(2): a(f"ds_read_b64 v[{d+2*t}:{d+2*t+1}], v{tW2} offset:{12800*t}")
    def zx(d, j):
        if j < 4: a(f"ds_read_b128 v[{d}:{d+3}], v{tX1} offset:{(j>>1)*10240+(j&1)*2048}")
        else:
            for t in range(2): a(f"ds_read_b64 v[{d+2*t}:{d+2*t+1}], v{tX2} offset:{4096+10240*t}")
    def zmf(j): a(f"v_mfma_f32_16x16x32_bf16 v[4:7], v[{F[j]}:{F[j]+3}], v[{F[j]+4}:{F[j]+7}], v[4:7]")
    def z_pack(O):
        a(f"v_cvt_pk_bf16_f32 v{O}, v4, v5\nv_cvt_pk_bf16_f32 v{O+1}, v6, v7")
        a(f"ds_bpermute_b32 v{O}, v{SR}, v{O}\nds_bpermute_b32 v{O+1}, v{SR}, v{O+1}")
    def z_out():
        z_pack(OUT)
        a("s_waitcnt lgkmcnt(0)")
        a(f"buffer_store_dwordx2 v[{OUT}:{OUT+1}], v{tO}, s[44:47], s80 offen offset:128 {ONT}")
    a.label("TLz_start")
    o_epilogue(a, OO, WS_OA, False)
    a(f"""
    v_lshrrev_b32 v{tO}, 2, v0
    v_and_b32 v3, 3, v0
    v_lshl_add_u32 v{SR}, v3, 4, v{tO}
    v_lshlrev_b32 v{SR}, 2, v{SR}
    v_mul_u32_u24 v{tO}, 2560, v{tO}
    v_lshl_add_u32 v{tO}, v3, 3, v{tO}
    """)
    a.label("TLz_job")
    for j in range(5): zw(F[j], j)
    for i in range(4, 8): a(f"v_mov_b32 v{i}, 0")
    a.label("TLz_loop")
    tl_vm("TLz")
    a("s_barrier")
    for j in range(5): zx(F[j] + 4, j)
    tl_adv()
    for j in range(5):
        a(f"s_waitcnt lgkmcnt({5 if j < 4 else 4})"); zmf(j); zw(F[j], j)
    a("s_cbranch_scc1 TLz_loop")
    a("s_nop 4")
    a("s_cmp_eq_u32 s56, 8\ns_cbranch_scc1 TLz_fin")
    a("s_waitcnt lgkmcnt(0)\ns_barrier")
    a(f"v_add_u32 v{tW1}, s75, v{tW1}\nv_add_u32 v{tW2}, s75, v{tW2}")
    a(NANCHK.format("s[48:49]"))
    z_pack(OUT + 8)
    a("s_branch TLz_job")
    a.label("TLz_fin")
    a(f"buffer_store_dwordx2 v[{OUT+8}:{OUT+9}], v{tO}, s[44:47], s80 offen offset:{1280+128} {ONT}")
    a(NANCHK.format("s[50:51]"))
    z_out()
    a("s_or_b64 vcc, s[48:49], s[50:51]\ns_cbranch_scc1 TLz_redo")
    a.label("TLz_end")
    stamp_end(a)
    a("s_endpgm")
    def z_loads():
        for j in range(5):
            d = F[j] + 4
            if j < 4:
                a(f"buffer_load_dwordx4 v[{d}:{d+3}], v{tX1}, s[40:43], s{8+2*(j>>1)} offen offset:{2048*(j&1)} sc1")
                gw(F[j], 4, tW1, 6400 * j)
            else:
                for t in range(2):
                    a(f"buffer_load_dwordx2 v[{d+2*t}:{d+2*t+1}], v{tX2}, s[40:43], s{9+2*t} offen sc1")
                    gw(F[j] + 2 * t, 2, tW2, 12800 * t)
    redo("TLz", 4, z_loads, lambda: [zmf(j) for j in range(5)], z_out)
    a.label("AT_fallback")
    FM = BACC
    a("s_mov_b32 exec_lo, 0")
    a(f"v_mov_b32 v{QB}, 0\nv_mov_b32 v{QB+1}, 0")
    a("s_mov_b32 exec_lo, -1")
    a(f"v_mov_b32 v{FM}, 0xff800000")
    a(f"s_mov_b32 s70, {WS_KV - LKV}")
    a.label("AT_fb1")
    a(f"buffer_load_dwordx4 v[{KA}:{KA+3}], v{aKA}, s[40:43], s70 offen sc1")
    a(f"buffer_load_dwordx2 v[{KB}:{KB+1}], v{aKB}, s[40:43], s70 offen sc1")
    a("s_waitcnt vmcnt(0)")
    qka(S0); qkb(S0)
    a("s_nop 15")
    rowmax(a, S0, FM, first=False)
    a(f"s_add_u32 s70, s70, {TILE}\ns_cmp_lt_u32 s70, {WS_KV-LKV+64*TILE}\ns_cbranch_scc1 AT_fb1")
    set_m(a, FM, FM + 1, FM + 2)
    for i in range(16): a(f"v_mov_b32 v{OO+i}, 0")
    a(f"s_mov_b32 s70, {WS_KV - LKV}")
    a.label("AT_fb2")
    a(f"buffer_load_dwordx4 v[{KA}:{KA+3}], v{aKA}, s[40:43], s70 offen sc1")
    a(f"buffer_load_dwordx2 v[{KB}:{KB+1}], v{aKB}, s[40:43], s70 offen sc1")
    a(f"buffer_load_dwordx4 v[{V0}:{V0+3}], v{aV0}, s[40:43], s70 offen sc1")
    a(f"buffer_load_dwordx4 v[{V1}:{V1+3}], v{aV1}, s[40:43], s70 offen sc1")
    a("s_waitcnt vmcnt(0)")
    qka(S0); qkb(S0)
    a("s_nop 15")
    E(S0, 0, 16)
    a("s_nop 0")
    for g in range(4): C(S0, g)
    a("s_nop 1")
    pv0(); pv1()
    a(f"s_add_u32 s70, s70, {TILE}\ns_cmp_lt_u32 s70, {WS_KV-LKV+64*TILE}\ns_cbranch_scc1 AT_fb2")
    a("s_nop 15")
    a("s_branch AT_ok")

    LK = "s[62:63]"
    A_, B_, KV_, P_, WO_ = "L_issueA", "L_issueB", "L_issueKV", "L_issueP", "L_issueWo"
    a.label("L_md")
    tr_init(a); tr(a)
    p4, p8 = ("s4", "s5") if MAP48 else ("s5", "s4")
    a(f"""
    s_and_b32 s8, {p4}, 1
    s_mul_i32 s8, s8, 5
    s_and_b32 s9, {p4}, 2
    s_add_u32 s8, s8, s9
    s_and_b32 s9, {p8}, 7
    s_add_u32 s11, s8, s9
    s_cmp_ge_u32 s11, 10
    s_cselect_b32 s8, 10, 0
    s_sub_u32 s11, s11, s8
    s_mov_b32 s12, 0
    s_lshl_b32 s8, s10, 2
    s_lshl_b32 s9, s10, 3
    v_lshrrev_b32 v20, 4, v0
    v_add_u32 v20, s8, v20
    v_xor_b32 v20, v20, v0
    v_and_b32 v20, 7, v20
    v_lshlrev_b32 v20, 4, v20
    v_lshrrev_b32 v21, 3, v0
    v_add_u32 v21, s9, v21
    v_mul_u32_u24 v21, 1280, v21
    v_add_u32 v2, v20, v21
    s_mov_b32 s8, 1120
    """)
    for p in range(5):
        a(f"v_add_u32 v20, {64*p}, v0")
        a(f"v_mul_u32_u24 v{22+p}, 6554, v20")
        a(f"v_lshrrev_b32 v{22+p}, 16, v{22+p}")
        a(f"v_lshlrev_b32 v20, 4, v20")
        a(f"v_mad_u32_u24 v{3+p}, v{22+p}, s8, v20")
    a("s_mul_i32 s64, s5, 160")
    a(f"s_mul_i32 s65, s10, {32*1280}")
    a("s_add_u32 s65, s65, s64")
    srd(a, 48, 18, 640 * 1280)
    call(a, A_, LK)
    a("s_waitcnt vmcnt(9)"); bar(a)
    call(a, A_, LK); call(a, A_, LK)
    a("s_mov_b32 s70, 0")
    a.label("L_a")
    a("s_waitcnt vmcnt(18)"); bar(a); call(a, A_, LK)
    a("s_add_u32 s70, s70, 1\ns_cmp_lt_u32 s70, 7\ns_cbranch_scc1 L_a")
    srd(a, 40, 36, WS_SIZE)
    srd(a, 72, 26, XBYTES)
    srd(a, 76, 28, 640 * 3840)
    a("s_waitcnt vmcnt(18)"); bar(a)
    a("s_mov_b32 s8, 2560\ns_mov_b32 s9, 1280")
    for p in range(5):
        a(f"v_mad_u32_u24 v{8+p}, v{22+p}, s8, v{3+p}")
        a(f"v_lshrrev_b32 v20, 1, v{22+p}")
        a(f"v_mad_u32_u24 v{13+p}, v20, s9, v{3+p}")
    a(f"s_mul_i32 s66, s10, {32*3840}")
    a("s_add_u32 s66, s66, s64")
    a("s_add_u32 s67, s66, 1280")
    get_nonce(a, "v30", "v31")
    a("s_waitcnt vmcnt(9)"); bar(a)
    a("s_waitcnt vmcnt(0)"); bar(a)
    a("s_mov_b32 s12, 0")
    a("s_add_u32 s69, s5, s4\ns_and_b32 s69, s69, 3")
    a("s_cmp_eq_u32 s10, 1")
    a("s_cbranch_scc1 L1_path")
    a(f"s_add_u32 s60, s7, {4 if BS >= 2 else 3}\ns_and_b32 s60, s60, 15")
    a(f"s_mov_b32 s61, {LKV if BS >= 2 else LKV + 3*CH}")
    a("s_lshl_b32 s56, s4, 7\ns_lshl_b32 s57, s5, 2\ns_add_u32 s57, s57, s56")
    a("v_lshlrev_b32 v19, 2, v0")

    pad(a, "b0")
    B1_, B2_ = "L_issueB1", "L_issueB2"
    a(f"v_mov_b32 v33, {LMISC}")
    bar(a); gs(a, 8); call(a, B1_, LK)
    bar(a); call(a, B2_, LK)
    a("s_mov_b32 s9, 0")
    a.label("L0_c0")
    a("ds_read_b32 v32, v33 offset:4\ns_add_u32 s9, s9, 1\ns_waitcnt lgkmcnt(0)\nv_readfirstlane_b32 s8, v32")
    a(f"s_cmp_gt_u32 s9, {SPIN_MAX}\ns_cbranch_scc1 L0_c1\ns_cmp_ge_u32 s8, 8\ns_cbranch_scc1 L0_c1\ns_sleep 2\ns_branch L0_c0")
    a.label("L0_c1")
    tr(a)
    call(a, KV_, LK); call(a, B_, LK)
    tr(a)
    pad(a, "f0")
    a("s_waitcnt vmcnt(19)"); bar(a); call(a, B_, LK); call(a, KV_, LK)
    a("s_waitcnt vmcnt(30)"); bar(a); call(a, B_, LK); call(a, KV_, LK)
    a("s_waitcnt vmcnt(30)"); bar(a); call(a, B_, LK); call(a, KV_, LK)
    a("s_mov_b32 s70, 0")
    a.label("L0_f")
    a("s_waitcnt vmcnt(30)"); bar(a); call(a, B_, LK)
    a("s_waitcnt vmcnt(19)"); bar(a); call(a, B_, LK); call(a, KV_, LK)
    a("s_add_u32 s70, s70, 1\ns_cmp_lt_u32 s70, 2\ns_cbranch_scc1 L0_f")
    a("s_waitcnt vmcnt(30)"); bar(a); call(a, B_, LK)
    a("s_waitcnt vmcnt(19)"); bar(a); call(a, KV_, LK)
    pad(a, "f9")
    a("s_waitcnt vmcnt(11)"); bar(a)
    a(f"s_mov_b32 s12, 0\ns_mul_i32 s64, s5, 102400\ns_add_u32 s64, s64, {WS_WPB}")
    bar(a); call(a, KV_, LK)
    a("s_waitcnt vmcnt(11)"); bar(a); call(a, KV_, LK)
    a("s_waitcnt vmcnt(11)"); bar(a); call(a, KV_, LK); call(a, WO_, LK)
    a("s_waitcnt vmcnt(0)"); bar(a); call(a, KV_, LK); call(a, WO_, LK); call(a, WO_, LK)
    a("s_waitcnt vmcnt(50)"); bar(a); call(a, KV_, LK)
    a("s_waitcnt vmcnt(11)"); bar(a); call(a, WO_, LK)
    a("s_waitcnt vmcnt(25)"); bar(a)
    a(f"s_add_u32 s13, s13, {WS_OB}")
    a(f"s_mov_b32 s61, {LX}")
    a(f"s_add_u32 s8, s56, {FL_HB}")
    poll(a, "s8", 8)
    call(a, P_, LK)
    pad(a, "b16")
    bar(a)
    gs(a, 9)
    call(a, P_, LK)
    a(f"s_add_u32 s70, s57, {FL_H}\ns_add_u32 s71, s56, {FL_H}")
    pad(a, "t0")
    a("s_waitcnt vmcnt(20)"); bar(a)
    publish(a, "s70", "v30", "v31")
    call(a, P_, LK)
    a("s_waitcnt vmcnt(21)"); bar(a)
    call(a, P_, LK)
    a(f"s_sub_u32 s13, s13, {WS_OB - WS_OA}")
    a(f"s_add_u32 s8, s57, {FL_OA}")
    a("s_waitcnt vmcnt(20)"); bar(a)
    set_exec(a, 8)
    a("buffer_load_dword v32, v19, s[40:43], s71 offen sc1")
    publish(a, "s8", "v30", "v31")
    a(f"s_add_u32 s8, s57, {FL_OB}")
    publish(a, "s8", "v30", "v31")
    set_exec(a, 8)
    a("s_waitcnt vmcnt(2)\nv_cmp_ne_u32 vcc, s96, v32\ns_mov_b64 exec, -1")
    a("s_cbranch_vccnz L0_late")
    call(a, P_, LK)
    bar(a)
    a("s_branch L0_join")
    a.label("L0_late")
    bar(a)
    poll(a, "s71", 8)
    call(a, P_, LK)
    a.label("L0_join")
    gs(a, 7)
    bar(a)
    call(a, P_, LK)
    pad(a, "t4")
    a("s_waitcnt vmcnt(20)"); bar(a)
    call(a, P_, LK)
    a("s_waitcnt vmcnt(20)"); bar(a)
    call(a, P_, LK)
    a("s_waitcnt vmcnt(20)"); bar(a)
    pad(a, "t7")
    a("s_waitcnt vmcnt(0)"); bar(a)
    pad(a, "end")
    tr_dump(a)
    a("s_endpgm")
    a.label("L1_path")
    srd(a, 48, 24, 640 * 1280)
    srd(a, 52, 30, 640 * 1280)
    a("s_lshl_b32 s56, s5, 5\ns_add_u32 s57, s56, s4")
    a(f"s_mul_i32 s68, s57, {PST}\ns_add_u32 s68, s68, {WS_KVP}")
    a("s_lshl_b32 s56, s5, 9\ns_lshr_b32 s8, s4, 3\ns_lshl_b32 s8, s8, 7\ns_and_b32 s57, s4, 7\ns_lshl_b32 s57, s57, 2\ns_add_u32 s57, s57, s8\ns_add_u32 s57, s57, s56")
    a("v_lshrrev_b32 v19, 3, v0\nv_lshlrev_b32 v19, 7, v19\nv_and_b32 v28, 7, v0\nv_lshl_add_u32 v19, v28, 2, v19")
    a(f"""
    v_lshrrev_b32 v48, 4, v0
    v_mul_u32_u24 v48, {8*PST}, v48
    v_and_b32 v49, 15, v0
    v_min_u32 v47, 13, v49
    v_lshl_add_u32 v48, v47, 4, v48
    v_lshlrev_b32 v49, 3, v49
    v_lshlrev_b32 v46, 7, v0
    """)
    for i in range(4): a(f"v_mov_b32 v{52+i}, -1")
    a(f"""
    v_bfe_u32 v20, v0, 2, 2
    v_mul_u32_u24 v20, 160, v20
    v_and_b32 v21, 3, v0
    v_lshl_add_u32 v20, v21, 3, v20
    v_add_u32 v20, {LRP}, v20
    v_lshrrev_b32 v21, 5, v0
    v_bfe_u32 v28, v0, 4, 1
    v_mul_u32_u24 v41, 1280, v21
    v_lshl_add_u32 v41, v28, 5, v41
    v_add_u32 v41, v41, v20
    v_mul_u32_u24 v42, 1280, v28
    v_add_u32 v42, v42, v20
    v_lshrrev_b32 v21, 4, v0
    v_lshl_add_u32 v43, v21, 5, v20
    v_lshlrev_b32 v44, 3, v0
    """)
    bar(a); call(a, B1_, LK)
    bar(a); call(a, B2_, LK)
    a(f"s_mov_b32 m0, {LRP}\ns_mul_i32 s8, s4, {20*1280}\ns_add_u32 s8, s8, s64")
    for sr in (52, 48):
        for p in range(4):
            dma(a, f"v{3+p}", sr, "s8")
            a("s_add_u32 m0, m0, 1024\ns_nop 0")
    call(a, B_, LK)
    a("s_waitcnt vmcnt(19)")
    for m in range(2):
        d, o = 100 + 16 * m, 4096 * m
        for blk in range(2):
            for hf in range(2): a(f"ds_read_b64_tr_b16 v[{d+4*blk+2*hf}:{d+4*blk+2*hf+1}], v41 offset:{o+64*blk+640*hf}")
        for hf in range(2): a(f"ds_read_b64_tr_b16 v[{d+8+2*hf}:{d+9+2*hf}], v42 offset:{o+128+640*hf}")
        a(f"ds_read_b64_tr_b16 v[{d+12}:{d+13}], v43 offset:{o+2560}")
        a(f"ds_read_b64_tr_b16 v[{d+14}:{d+15}], v43 offset:{o+2560+128}")
    a("s_waitcnt lgkmcnt(0)")
    bar(a); call(a, B_, LK)
    a("s_waitcnt vmcnt(19)"); bar(a); call(a, B_, LK)
    a("s_waitcnt vmcnt(19)"); bar(a); call(a, B_, LK)
    a("s_waitcnt vmcnt(19)"); bar(a); call(a, B_, LK)
    a(f"s_mul_i32 s64, s5, 102400\ns_mul_i32 s8, s4, 3200\ns_add_u32 s8, s8, s64\ns_add_u32 s9, s8, {WS_WPA}\ns_add_u32 s8, s8, {WS_WPB}\ns_add_u32 s64, s64, {WS_WPA}")
    for m in range(2):
        d = 100 + 16 * m
        a(f"buffer_store_dwordx4 v[{d}:{d+3}], v18, s[40:43], s{8+m} offen sc1")
        a(f"buffer_store_dwordx4 v[{d+4}:{d+7}], v18, s[40:43], s{8+m} offen offset:1024 sc1")
        a(f"buffer_store_dwordx2 v[{d+12}:{d+13}], v44, s[40:43], s{8+m} offen offset:2560 sc1")
    set_exec(a, 32)
    for m in range(2): a(f"buffer_store_dwordx4 v[{108+16*m}:{111+16*m}], v18, s[40:43], s{8+m} offen offset:2048 sc1")
    set_exec(a, 16)
    for m in range(2): a(f"buffer_store_dwordx2 v[{114+16*m}:{115+16*m}], v44, s[40:43], s{8+m} offen offset:3072 sc1")
    a("s_mov_b64 exec, -1")
    a("s_waitcnt vmcnt(29)"); bar(a); call(a, B_, LK)
    a("s_waitcnt vmcnt(29)"); bar(a); call(a, B_, LK)
    a(f"s_lshl_b32 s60, s5, 12\ns_add_u32 s60, s60, {WS_KVZ}\ns_mul_i32 s61, s4, 112\ns_add_u32 s61, s61, s60")
    set_exec(a, 14)
    a("buffer_store_dwordx2 v[52:53], v49, s[40:43], s61 offen sc1")
    a("s_add_u32 s65, s68, 4096")
    set_exec(a, 40)
    a("buffer_store_dwordx4 v[52:55], v18, s[40:43], s65 offen offset:2048 sc1")
    a("s_mov_b64 exec, -1")
    for i in range(6):
        a(f"buffer_store_dwordx4 v[52:55], v18, s[40:43], {'s68' if i < 4 else 's65'} offen offset:{1024*(i%4)} sc1")
    a("s_waitcnt vmcnt(27)"); bar(a); call(a, B_, LK)
    a("s_waitcnt vmcnt(19)"); bar(a)
    a(f"s_add_u32 s8, s57, {FL_P}")
    publish(a, "s8", "v30", "v31")
    call(a, B_, LK)
    a("s_waitcnt vmcnt(19)"); bar(a)
    a("s_waitcnt vmcnt(0)"); bar(a)
    def nanfill():
        a(f"s_mul_i32 s8, s5, 10240\ns_add_u32 s8, s8, s13\ns_add_u32 s9, s8, {WS_OB}")
        for i in range(10):
            if i in (4, 8): a("s_add_u32 s8, s8, 4096\ns_add_u32 s9, s9, 4096")
            for r in ("s8", "s9"): a(f"buffer_store_dwordx4 v[52:55], v18, s[40:43], {r} offen offset:{1024*(i%4)} sc1")
    a(f"s_add_u32 s8, s56, {FL_P}")
    poll(a, "s8", 32)
    a("s_and_b32 s8, s4, 7\ns_mul_i32 s8, s8, 12800\ns_add_u32 s8, s8, s64\ns_mov_b32 exec_hi, 0x3ffff")
    for i, o in enumerate((0, 6400, WS_WPB - WS_WPA - 6400, 6400)):
        a(f"s_add_u32 s8, s8, {o}\nbuffer_load_dword v{32+i}, v46, s[40:43], s8 offen sc1")
    a("s_mov_b32 exec_hi, -1")
    nanfill()
    R = 60
    a(f"s_min_u32 s9, s4, 29\ns_mul_i32 s9, s9, 224\ns_mul_i32 s70, s5, {32*PST}\ns_add_u32 s70, s70, s9\ns_add_u32 s70, s70, {WS_KVP}")
    bar(a); bar(a)
    for i in range(7):
        a(f"ds_read_b128 v[{R+4*i}:{R+3+4*i}], v18 offset:{LPART+1024*i}")
    for i in range(7):
        a(f"s_waitcnt lgkmcnt({6-i})")
        if i == 6: a("s_mov_b32 exec_hi, 15")
        a(f"buffer_store_dwordx4 v[{R+4*i}:{R+3+4*i}], v18, s[40:43], {'s68' if i < 4 else 's65'} offen offset:{1024*(i%4)} sc1")
    a("s_mov_b32 exec_hi, -1")
    bar(a)
    a("s_sleep 8")
    a("s_mov_b32 s9, 0")
    Q = 100
    a.label("L1_p")
    a("s_mov_b32 s8, s70")
    for i in range(8):
        a(f"buffer_load_dwordx4 v[{Q+4*i}:{Q+3+4*i}], v48, s[40:43], s8 offen sc1")
        a(f"s_add_u32 s8, s8, {PST}")
    a("s_cmp_lg_u32 s9, 0\ns_cbranch_scc1 L1_p2")
    bar(a)
    a.label("L1_p2")
    a("s_add_u32 s9, s9, 1\ns_waitcnt vmcnt(0)")
    for i in range(4):
        for j in (0, 2): a(f"v_pk_add_f32 v[{R+4*i+j}:{R+1+4*i+j}], v[{Q+4*i+j}:{Q+1+4*i+j}], v[{Q+16+4*i+j}:{Q+17+4*i+j}]")
    for half in (2, 1):
        for i in range(half):
            for j in (0, 2): a(f"v_pk_add_f32 v[{R+4*i+j}:{R+1+4*i+j}], v[{R+4*i+j}:{R+1+4*i+j}], v[{R+4*(i+half)+j}:{R+1+4*(i+half)+j}]")
    a(f"v_pk_add_f32 v[30:31], v[{R}:{R+1}], v[{R+2}:{R+3}]\nv_cmp_u_f32 vcc, v30, v31\ns_nop 1\ns_cbranch_vccz L1_pd")
    a(f"v_max_u32 v30, v{Q}, v{Q+1}")
    for i in range(1, 16): a(f"v_max3_u32 v30, v30, v{Q+2*i}, v{Q+2*i+1}")
    a("v_cmp_eq_u32 vcc, -1, v30")
    a(f"s_cmp_gt_u32 s9, {SPIN_MAX}\ns_cbranch_scc1 L1_pd\ns_cbranch_vccz L1_pd\ns_sleep 1\ns_branch L1_p")
    a.label("L1_pd")
    for op in ("v_permlane32_swap_b32", "v_permlane16_swap_b32"):
        for j in range(4): a(f"v_mov_b32 v{R+4+j}, v{R+j}")
        a("s_nop 1")
        for j in range(4): a(f"{op} v{R+j}, v{R+4+j}")
        a("s_nop 1")
        for j in range(4): a(f"v_add_f32 v{R+j}, v{R+j}, v{R+4+j}")
    a(f"""
    v_cvt_pk_bf16_f32 v{R}, v{R}, v{R+1}
    v_cvt_pk_bf16_f32 v{R+1}, v{R+2}, v{R+3}
    v_min_u32 v{R}, -2, v{R}
    v_min_u32 v{R+1}, -2, v{R+1}
    s_mov_b32 exec_lo, 0x3fff
    s_mov_b32 exec_hi, 0
    buffer_store_dwordx2 v[{R}:{R+1}], v49, s[40:43], s61 offen sc1
    s_mov_b64 exec, -1
    """)
    for i in range(4): a(f"v_mov_b32 v{Q+12+i}, 0")
    a(f"v_add_u32 v50, {LKVZ}, v18")
    bar(a)
    a("s_mov_b32 s9, 0")
    a.label("L1_g")
    for i in range(4):
        if i == 3: set_exec(a, 18)
        a(f"buffer_load_dwordx4 v[{Q+4*i}:{Q+3+4*i}], v18, s[40:43], s60 offen offset:{1024*i} sc1")
    a("s_mov_b64 exec, -1")
    a("s_add_u32 s9, s9, 1\ns_waitcnt vmcnt(0)")
    a(f"v_max_u32 v30, v{Q}, v{Q+1}")
    for i in range(1, 8): a(f"v_max3_u32 v30, v30, v{Q+2*i}, v{Q+2*i+1}")
    a("v_cmp_eq_u32 vcc, -1, v30")
    a(f"s_cmp_gt_u32 s9, {SPIN_MAX}\ns_cbranch_scc1 L1_gd\ns_cbranch_vccz L1_gd\ns_sleep 1\ns_branch L1_g")
    a.label("L1_gd")
    for i in range(4): a(f"ds_write_b128 v50, v[{Q+4*i}:{Q+3+4*i}] offset:{1024*i}")
    a("s_waitcnt lgkmcnt(0)")
    bar(a)
    a("s_mov_b32 s12, 0")
    bar(a); bar(a)
    bar(a); bar(a)
    call(a, WO_, LK)
    bar(a)
    call(a, WO_, LK)
    bar(a)
    a("s_waitcnt vmcnt(25)")
    bar(a)
    call(a, WO_, LK)
    a("s_waitcnt vmcnt(25)"); bar(a)
    call(a, WO_, LK)
    a("s_waitcnt vmcnt(25)"); bar(a)
    a("s_waitcnt vmcnt(0)"); bar(a)
    bar(a)
    tr_dump(a)
    a.label("L_end")
    a("s_endpgm")
    a.label(A_)
    issue_x(a, 44, "s13", "s12")
    issue_w(a, 48, 3, 1280, "s65", "s12", IMG_W)
    wrap_inc(a, "s11", 1, 10); wrap_inc(a, "s12", HS, 6 * HS)
    a("s_setpc_b64 s[62:63]")
    a.label("L_issueB1")
    issue_x(a, 72, "s13", "s12")
    issue_w(a, 76, 8, 3840, "s66", "s12", IMG_W)
    a("s_setpc_b64 s[62:63]")
    a.label(B_)
    issue_x(a, 72, "s13", "s12")
    issue_w(a, 76, 8, 3840, "s66", "s12", IMG_W)
    a.label("L_issueB2")
    issue_w(a, 76, 13, 3840, "s67", "s12", IMG_KV, periods=2, rows_per_period=16)
    wrap_inc(a, "s11", 1, 10); wrap_inc(a, "s12", SLOT, 3 * SLOT)
    a("s_setpc_b64 s[62:63]")
    def lin(n):
        for i in range(n):
            if i % 4 == 0 and i > 0:
                a("s_add_u32 m0, m0, 4096")
                a("s_add_u32 s14, s14, 4096")
            a(f"buffer_load_dwordx4 v18, s[40:43], s14 offen offset:{1024*(i%4)} sc1 lds")
    a.label(KV_)
    a("s_mov_b32 m0, s61")
    a(f"s_mul_i32 s14, s60, {CH}")
    a(f"s_add_u32 s14, s14, {WS_KV}")
    lin(11)
    a("s_add_u32 s60, s60, 1\ns_and_b32 s60, s60, 15")
    wrap_inc(a, "s61", CH, LKV + 4 * CH, LKV)
    a("s_setpc_b64 s[62:63]")
    a.label(P_)
    a("s_mov_b32 m0, s61")
    a("s_mul_i32 s14, s69, 20480")
    a("s_add_u32 s14, s14, s13")
    lin(20)
    a("s_add_u32 s69, s69, 1\ns_and_b32 s69, s69, 3")
    wrap_inc(a, "s61", 20480, LX + 3 * 20480, LX)
    a("s_setpc_b64 s[62:63]")
    a.label(WO_)
    a("s_mov_b32 m0, s12")
    a("s_mul_i32 s14, s69, 25600")
    a("s_add_u32 s14, s14, s64")
    lin(25)
    a("s_add_u32 s69, s69, 1\ns_and_b32 s69, s69, 3")
    a("s_add_u32 s12, s12, 25600")
    a("s_setpc_b64 s[62:63]")
    a.label("L_codeend")

def main(out):
    a = Asm()
    a.lines.append(f"; @launch grid=(256,1,1) block=(640,1,1) lds={LDS_TOTAL}")
    a('.amdgcn_target "amdgcn-amd-amdhsa--gfx950"')
    a(".text")
    gen(a)
    a('.section .rodata,"a"')
    open(out, "w").write(a.text() + descriptor(NAME + "_kernel", NV, 102))

if __name__ == "__main__":
    main(sys.argv[1] if len(sys.argv) > 1 else f"cdna_kernels/{NAME}.s")
```

```python
import sys, struct, os
from asmlib import *

NAME = "concat_heads__grouped_kv_mqa__linear_attn_block__prompt"
STAMP = bool(os.environ.get("STAMP"))
OPT = dict(kv.split("=") for kv in os.environ.get("OPT", "").split(",") if kv)
PFB = int(OPT.get("pfb", 0))
ONT = OPT.get("ont", "nt")
MAP48 = int(OPT.get("map48", 0))
BS = 3
WS_OA, WS_OB, WS_KV, WS_KVP, WS_KVZ = 0x0, 0x280000, 0x500000, 0xA00000, 0x700000
PST = 6784
FL_KV, FL_P, FL_H, FL_OB, FL_OA = 0x718000, 0x720000, 0x728000, 0x730000, 0x738000
FL_HB = 0x72C000
LCNT = LMISC_ = 163840 - 8
FORCE_REDO = int(OPT.get('redo', 0))
WS_WPB, WS_WPA = 0x740000, 0x740000 + 8 * 102400
WS_ST = 0x900000
WS_SIZE = 0xE00000
TILE = 2816
CH = 4 * TILE
XBYTES = 2048 * 1280
SLOT = 38912
HS = SLOT // 2
IMG_W, IMG_KV = 8192, 18432
LKV = 3 * SLOT
LMISC = 163840 - 16
LKVZ = 112640
LMX = LKV
LWKV = LKV + 20480
LQ = 2 * SLOT
LFR, LPQ, LPART = SLOT, SLOT + 20480, 0
LX = 102400
LRP = 2 * SLOT + 28672
LDS_TOTAL = 163840
SPIN_MAX = 1 << 17
def f32(x): return "0x%08x" % struct.unpack("<I", struct.pack("<f", x))[0]
LOG2E = 1.4426950408889634
CSCALE = LOG2E / (20 ** 0.5)

S0, S1, PP, KA, KB, QB, V0, V1, QA, OO, BACC, BFR = 4, 20, 36, 44, 48, 50, 52, 56, 60, 64, 80, 112
aKA, aKB, aV0, aV1, bW, bX = 136, 137, 138, 139, 140, 141
OAD0, OAD1 = 145, 146
PWR = 147
JA, JB, QF0, QF1, AP0, AP1 = 151, 152, 153, 154, 155, 156
tW1, tW2, tX1, tX2, tO, TL0, TL1 = 157, 158, 159, 160, 161, 162, 163
TLQ = [162, 163, 165, 166]
NV = 167
CPF4 = int(OPT.get('cpf4', 1))
PQA, PQB = 128, 132
T = 4
AFR = [BFR, BFR + 12, 36, 48]
AACC = 4
MASKS = [92, 94, 98, 100]
POS = [[0, 1, 3, 4, 2], [1, 2, 0, 3, 4], [2, 3, 4, 0, 1], [3, 4, 0, 2, 1]]
INV = [[POS[r].index(p) for p in range(5)] for r in range(4)]
def pack3(tab):
    x = 0
    for r in range(4):
        for j in range(5): x |= tab[r][j] << (3 * (5 * r + j))
    return x

def tr(a):
    if not STAMP: return
    a("""
    s_waitcnt lgkmcnt(0)
    s_sub_u32 s90, s88, s84
    s_memtime s[88:89]
    s_mov_b32 m0, s85
    s_add_u32 s85, s85, 1
    v_writelane_b32 v40, s90, m0
    """)
def tr_init(a):
    if STAMP: a("s_mov_b32 s85, 0\nv_mov_b32 v40, 0\ns_mov_b32 s88, s84")
def tr_dump(a):
    if not STAMP: return
    tr(a)
    a(f"""
    s_lshl_b32 s8, s2, 1
    s_add_u32 s8, s8, s10
    s_lshl_b32 s8, s8, 8
    s_add_u32 s8, s8, {WS_ST + 0x40000}
    v_lshlrev_b32 v8, 2, v0
    buffer_store_dword v40, v8, s[40:43], s8 offen
    """)
def stamp_end(a):
    if not STAMP: return
    a(f"""
    s_memtime s[12:13]
    s_waitcnt vmcnt(0)
    s_memtime s[88:89]
    s_memrealtime s[90:91]
    s_waitcnt lgkmcnt(0)
    s_mov_b64 exec, -1
    s_sub_u32 s88, s88, s84
    s_sub_u32 s12, s12, s84
    v_mov_b32 v4, s86
    v_mov_b32 v5, s90
    v_mov_b32 v6, s88
    v_mov_b32 v7, s12
    s_lshl_b32 s8, s2, 4
    s_add_u32 s8, s8, s3
    s_lshl_b32 s8, s8, 4
    s_add_u32 s8, s8, {WS_ST}
    v_mov_b32 v8, 0
    buffer_store_dwordx4 v[4:7], v8, s[40:43], s8 offen
    """)
    for i in range(8): a(f"s_sub_u32 s{16+2*i}, s{16+2*i}, s84\nv_mov_b32 v{12+i}, s{16+2*i}")
    a(f"s_sub_u32 s8, s8, {WS_ST}\ns_lshl_b32 s8, s8, 1\ns_add_u32 s8, s8, {WS_ST + 0xC0000}")
    a("buffer_store_dwordx4 v[12:15], v8, s[40:43], s8 offen\nbuffer_store_dwordx4 v[16:19], v8, s[40:43], s8 offen offset:16")
CTP = OPT.get("ct", "").split("+")
def ct(a, name):
    if STAMP and name in CTP:
        i = CTP.index(name)
        a(f"s_memtime s[{16+2*i}:{17+2*i}]")
def gs(a, idx, t0="v36", t1="v37"):
    if not STAMP: return
    a(f"""
    s_memrealtime s[14:15]
    s_waitcnt lgkmcnt(0)
    v_mov_b32 {t0}, s14
    s_lshl_b32 s14, s2, 6
    s_add_u32 s14, s14, {WS_ST + 0x80000 + 4*idx}
    v_mov_b32 {t1}, 0
    buffer_store_dword {t0}, {t1}, s[40:43], s14 offen
    """)
def pad(a, where):
    p = OPT.get("pad", "")
    if not p.startswith(where + ":"): return
    l = a.newlabel("Lpad")
    a.label(l)
    a(f"s_memrealtime s[14:15]\ns_waitcnt lgkmcnt(0)\ns_sub_u32 s14, s14, s96\ns_cmp_lt_u32 s14, {p.split(':')[1]}\ns_cbranch_scc1 {l}")
def bar(a):
    a("s_barrier"); tr(a)

def dma(a, voff, srdi, soff, extra=""):
    a(f"buffer_load_dwordx4 {voff}, s[{srdi}:{srdi+3}], {soff} offen {extra} lds")
def issue_x(a, srdi, sbase, lds_sgpr):
    a(f"s_lshl_b32 s15, s10, 10")
    a(f"s_add_u32 m0, s15, {lds_sgpr}")
    a(f"s_lshl_b32 s14, s11, 7")
    a(f"s_add_u32 s14, s14, {sbase}")
    for jj in range(4):
        dma(a, "v2", srdi, "s14")
        if jj < 3:
            a("s_add_u32 m0, m0, 2048")
            a("s_add_u32 s14, s14, 20480")
def issue_w(a, srdi, voffs, ld, sbase, lds_sgpr, ldsoff, periods=1, rows_per_period=32):
    a(f"s_mul_i32 s15, s10, {5120*periods}")
    a(f"s_add_u32 s15, s15, {lds_sgpr}")
    a(f"s_add_u32 m0, s15, {ldsoff}")
    a(f"s_mul_i32 s14, s11, {64*ld}")
    a(f"s_add_u32 s14, s14, {sbase}")
    for per in range(periods):
        for p in range(5):
            dma(a, f"v{voffs+p}", srdi, "s14")
            if not (per == periods - 1 and p == 4):
                a("s_add_u32 m0, m0, 1024")
                a(f"s_add_u32 s14, s14, {rows_per_period*ld}" if p == 4 else "s_nop 0")
def wrap_inc(a, reg, step, limit, base=0):
    a(f"s_add_u32 {reg}, {reg}, {step}")
    a(f"s_cmp_eq_u32 {reg}, {limit}")
    a(f"s_cselect_b32 {reg}, {base}, {reg}")
def set_exec(a, n):
    m = (1 << n) - 1
    a(f"s_mov_b32 exec_lo, {m & 0xffffffff:#x}\ns_mov_b32 exec_hi, {m >> 32:#x}")
def poll(a, soff, nlanes, tmp="v30", addr="v19"):
    lp, dn = a.newlabel("Lpoll"), a.newlabel("Lpd")
    set_exec(a, nlanes)
    a("s_mov_b32 s9, 0")
    a.label(lp)
    a(f"buffer_load_dword {tmp}, {addr}, s[40:43], {soff} offen sc1")
    a("s_add_u32 s9, s9, 1")
    a("s_waitcnt vmcnt(0)")
    a(f"v_cmp_ne_u32 vcc, s96, {tmp}")
    a(f"s_cmp_gt_u32 s9, {SPIN_MAX}")
    a(f"s_cbranch_scc1 {dn}")
    a(f"s_cbranch_vccz {dn}")
    a("s_sleep 1")
    a(f"s_branch {lp}")
    a.label(dn)
    a("s_mov_b64 exec, -1")
def publish(a, soff, tmp, zero):
    a(f"v_mov_b32 {tmp}, s96")
    a(f"v_mov_b32 {zero}, 0")
    a("s_mov_b64 exec, 1")
    a(f"buffer_store_dword {tmp}, {zero}, s[40:43], {soff} offen sc1")
    a("s_mov_b64 exec, -1")
def get_nonce(a, tmp, addr):
    a(f"v_mov_b32 {addr}, {LMISC}")
    a(f"ds_read_b32 {tmp}, {addr}")
    a("s_waitcnt lgkmcnt(0)")
    a(f"v_readfirstlane_b32 s96, {tmp}")
def call(a, lbl, link="s[58:59]"):
    a(f"s_call_b64 {link}, {lbl}")
def pf_rows(a, vd, ld, s0, s1):
    a(f"""
    v_mul_u32_u24 v{vd}, 52429, v0
    v_lshrrev_b32 v{vd}, 18, v{vd}
    v_mul_u32_u24 v{vd+1}, 5, v{vd}
    v_sub_u32 v{vd+1}, v0, v{vd+1}
    v_mul_u32_u24 v{vd}, {ld}, v{vd}
    v_lshl_add_u32 v{vd}, v{vd+1}, 7, v{vd}
    s_mul_i32 {s0}, s7, {20*ld}
    s_and_b32 s8, s6, 1
    s_mul_i32 s8, s8, 640
    s_add_u32 {s0}, {s0}, s8
    s_add_u32 {s1}, {s0}, {10*ld}
    """)
def pf_x(a, srdi, vaddr, vd):
    a(f"""
    s_lshr_b32 s8, s6, 1
    s_mul_i32 s8, s8, {512*1280}
    s_mul_i32 s9, s7, 20480
    s_add_u32 s8, s8, s9
    s_add_u32 s9, s8, 8192
    buffer_load_dword v{vd}, {vaddr}, s[{srdi}:{srdi+3}], s8 offen
    buffer_load_dword v{vd+1}, {vaddr}, s[{srdi}:{srdi+3}], s9 offen
    s_add_u32 s9, s8, 16384
    s_mov_b32 exec_hi, 0
    buffer_load_dword v{vd+2}, {vaddr}, s[{srdi}:{srdi+3}], s9 offen
    s_mov_b32 exec_hi, -1
    """)

def phi_sub(a):
    a.label("g_pack")
    a("s_mov_b64 exec, -1")
    for i in range(16):
        a(f"v_cvt_pk_bf16_f32 v{BACC+i}, v{BACC+2*i}, v{BACC+2*i+1}")
    a("s_setpc_b64 s[58:59]")
def read_qfrag(a, qa, qb):
    a(f"ds_read_b128 v[{qa}:{qa+3}], v{QF1}")
    a(f"ds_read_b64 v[{qb}:{qb+1}], v{QF0}")
def o_epilogue(a, O, wsoff, eps):
    if eps:
        a(f"v_add_f32 v{O+12}, {f32(1e-6)}, v{O+12}")
    a(f"v_rcp_f32 v{O+12}, v{O+12}")
    a(f"s_add_u32 s8, s81, {wsoff}")
    a(f"s_add_u32 s9, s82, {wsoff}")
    for i in range(0, 12, 2):
        a(f"v_pk_mul_f32 v[{O+i}:{O+i+1}], v[{O+i}:{O+i+1}], v[{O+12}:{O+13}] op_sel_hi:[1,0]")
    for i in range(6):
        a(f"v_cvt_pk_bf16_f32 v{O+i}, v{O+2*i}, v{O+2*i+1}")
    a(f"buffer_store_dwordx4 v[{O}:{O+3}], v{OAD1}, s[40:43], s8 offen sc1")
    a("s_mov_b32 exec_hi, 0")
    a(f"buffer_store_dwordx2 v[{O+4}:{O+5}], v{OAD0}, s[40:43], s9 offen sc1")
    a("s_mov_b32 exec_hi, -1")
def rowmax(a, S, dst, first=True):
    regs = [f"v{S+i}" for i in range(16)]
    if first:
        a(f"v_max3_f32 v{dst}, {regs[0]}, {regs[1]}, {regs[2]}")
        rest = regs[3:]
    else:
        rest = regs
    while len(rest) >= 2:
        a(f"v_max3_f32 v{dst}, v{dst}, {rest[0]}, {rest[1]}")
        rest = rest[2:]
    if rest:
        a(f"v_max_f32 v{dst}, v{dst}, {rest[0]}")
def set_m(a, m, tmp, keep):
    a(f"""
    v_mov_b32 v{tmp}, v{m}
    s_nop 1
    v_permlane32_swap_b32 v{m}, v{tmp}
    s_nop 1
    v_max_f32 v{keep}, v{m}, v{tmp}
    s_mov_b32 exec_lo, 0
    v_sub_f32 v{m}, 0, v{keep}
    v_and_b32 v{tmp}, 0xffff0000, v{m}
    v_sub_f32 v{m}, v{m}, v{tmp}
    v_lshrrev_b32 v{QB}, 16, v{tmp}
    v_and_b32 v{tmp}, 0xffff0000, v{m}
    v_sub_f32 v{m}, v{m}, v{tmp}
    v_or_b32 v{QB}, v{QB}, v{tmp}
    v_lshrrev_b32 v{QB+1}, 16, v{m}
    s_mov_b32 exec_lo, -1
    """)

def precompute(a):
    t = 12
    a(f"""
    v_and_b32 v1, 31, v0
    v_lshrrev_b32 v2, 5, v0
    v_lshrrev_b32 v3, 2, v1
    v_add_u32 v3, 1, v3
    v_and_b32 v3, 2, v3
    v_mul_u32_u24 v3, 6, v3
    v_xor_b32 v3, v1, v3
    v_lshlrev_b32 v{OAD0}, 3, v0
    v_lshlrev_b32 v{OAD1}, 4, v0
    s_and_b32 s38, s3, 1
    s_lshr_b32 s39, s3, 1
    s_mov_b32 s76, 0
    s_mov_b32 s77, 128
    s_cmp_eq_u32 s3, 1
    s_cselect_b32 s76, 32, s76
    s_cselect_b32 s77, 64, s77
    s_cmp_eq_u32 s3, 2
    s_cselect_b32 s76, 96, s76
    s_cselect_b32 s77, 96, s77
    s_sub_u32 s78, s3, 3
    s_lshl_b32 s78, s78, 2
    s_lshr_b32 s78, 0x20431, s78
    s_and_b32 s78, s78, 15
    s_lshl_b32 s8, s78, 6
    s_add_u32 s8, s8, {IMG_KV}
    s_add_u32 s9, s76, {IMG_W}
    s_sub_u32 s64, s77, s76
    s_cmp_lt_u32 s3, 3
    s_cselect_b32 s60, s9, s8
    s_cselect_b32 s64, s64, 32
    s_mov_b32 s61, 320
    s_cselect_b32 s61, 160, s61
    v_bfe_u32 v{t}, v0, 2, 2
    v_lshl_add_u32 v{t+1}, v2, 3, v{t}
    v_mul_u32_u24 v{t+1}, s61, v{t+1}
    v_bfe_u32 v{t+3}, v0, 4, 1
    v_mul_u32_u24 v{t+2}, s64, v{t+3}
    v_and_b32 v{t+6}, 3, v0
    v_lshlrev_b32 v{t+6}, 3, v{t+6}
    v_add3_u32 v{t+1}, v{t+1}, v{t+2}, v{t+6}
    v_add_u32 v{bW}, s60, v{t+1}
    v_bfe_u32 v{t+2}, v0, 1, 3
    v_xor_b32 v{t+2}, v{t+2}, v2
    v_lshlrev_b32 v{t+2}, 4, v{t+2}
    v_lshl_or_b32 v{bX}, v1, 7, v{t+2}
    v_xor_b32 v{bX+1}, 32, v{bX}
    v_xor_b32 v{bX+2}, 64, v{bX}
    v_xor_b32 v{bX+3}, 96, v{bX}
    """)
    a(f"""
    s_mul_i32 s80, s4, {64*2560}
    s_mul_i32 s8, s5, 160
    s_add_u32 s80, s80, s8
    s_cmp_ge_u32 s3, 4
    s_cbranch_scc1 PC_tz
    s_lshl_b32 s9, s39, 6
    s_add_u32 s80, s80, s9
    s_mul_i32 s10, s38, {32*2560}
    s_add_u32 s80, s80, s10
    s_mul_i32 s8, s38, 5120
    s_add_u32 s8, s8, {LX}
    s_lshl_b32 s9, s39, 10
    v_add_u32 v{tW1}, s9, v{OAD1}
    s_lshl_b32 s9, s39, 8
    s_add_u32 s9, s9, 2560
    v_mul_u32_u24 v{tW2}, 3200, v2
    v_lshl_add_u32 v{tW2}, v1, 3, v{tW2}
    v_add_u32 v{tW2}, s9, v{tW2}
    v_add_u32 v{tX1}, s8, v{OAD1}
    v_add_u32 v{tX2}, s8, v{OAD0}
    s_branch PC_td
    """)
    a.label("PC_tz")
    a(f"""
    s_sub_u32 s8, s3, 4
    s_mul_i32 s10, s8, {16*2560}
    s_add_u32 s80, s80, s10
    s_lshl_b32 s9, s38, 4
    s_lshr_b32 s8, s8, 1
    s_mul_i32 s8, s8, 5120
    s_add_u32 s8, s8, {LX}
    v_lshrrev_b32 v{t}, 4, v0
    v_and_b32 v{t+2}, 15, v0
    v_mul_u32_u24 v{tW1}, 3200, v2
    v_lshl_add_u32 v{tW1}, v1, 4, v{tW1}
    v_add_u32 v{tW1}, 2048, v{tW1}
    v_mul_u32_u24 v{tW2}, 3200, v{t}
    v_lshl_add_u32 v{tW2}, v{t+2}, 3, v{tW2}
    v_add_u32 v{tW2}, {2560+512}, v{tW2}
    v_add_u32 v{t+2}, s9, v{t+2}
    v_lshl_add_u32 v{t+4}, v{t}, 5, v{t+2}
    v_lshlrev_b32 v{tX2}, 3, v{t+4}
    v_add_u32 v{tX2}, s8, v{tX2}
    v_lshlrev_b32 v{tX1}, 4, v{t+4}
    v_add_u32 v{tX1}, s8, v{tX1}
    """)
    a.label("PC_td")
    a(f"v_mov_b32 v{tO}, 0")
    a(f"""
    v_add_u32 v{aKA}, {LKV}, v{OAD1}
    v_lshlrev_b32 v{aKB}, 3, v1
    v_add_u32 v{aKB}, {LKV+1024}, v{aKB}
    v_mul_u32_u24 v{aV0}, 320, v2
    v_lshl_add_u32 v{aV0}, v1, 4, v{aV0}
    v_add_u32 v{aV0}, {LKV+1280}, v{aV0}
    v_add_u32 v{aV1}, 640, v{aV0}
    v_mov_b32 v{AP0}, v3
    s_mov_b32 exec_lo, 0x0ff00000
    s_mov_b32 exec_hi, 0
    v_mov_b32 v{aV0}, {LKV+2560+16*4}
    v_mov_b32 v{aV1}, {LKV+2560+16*12}
    s_mov_b32 exec_lo, 0xf0000000
    v_mov_b32 v{aV0}, {LKV+2560+16*12}
    v_mov_b32 v{aV1}, {LKV+2560+16*4}
    s_mov_b32 exec_lo, 0
    s_mov_b32 exec_hi, 0x0ff00000
    v_mov_b32 v{aV0}, {LKV+2560+16*8}
    v_mov_b32 v{aV1}, {LKV+2560}
    s_mov_b32 exec_hi, 0xf0000000
    v_mov_b32 v{aV0}, {LKV+2560}
    v_mov_b32 v{aV1}, {LKV+2560+16*8}
    s_mov_b32 exec_lo, 0xeef00000
    s_mov_b32 exec_hi, 0xeef00000
    v_add_u32 v{aV0}, 16, v{aV0}
    v_add_u32 v{aV1}, 16, v{aV1}
    s_mov_b32 exec_lo, 0xfff00000
    s_mov_b32 exec_hi, 0xfff00000
    v_mov_b32 v{AP0}, 20
    s_mov_b32 exec_lo, 0
    s_mov_b32 exec_hi, -1
    v_mov_b32 v{aKB}, {LKV+2560}
    s_mov_b64 exec, -1
    s_mul_i32 s8, s39, 840
    s_add_u32 s8, s8, {LKVZ}
    v_mul_u32_u24 v{AP0}, 40, v{AP0}
    v_add_u32 v{AP0}, s8, v{AP0}
    v_lshl_add_u32 v{AP1}, v2, 4, v{AP0}
    s_lshl_b32 s10, s4, 3
    s_add_u32 s10, s10, s5
    s_lshl_b32 s10, s10, 1
    s_add_u32 s10, s10, s38
    s_mul_i32 s10, s10, 5120
    s_lshl_b32 s81, s39, 10
    s_add_u32 s81, s81, s10
    s_lshl_b32 s82, s39, 8
    s_add_u32 s82, s82, s10
    s_add_u32 s82, s82, 4096
    s_mul_i32 s8, s38, 5120
    s_add_u32 s8, s8, {LQ}
    s_lshl_b32 s9, s39, 10
    s_add_u32 s9, s9, s8
    v_add_u32 v{QF1}, s9, v{OAD1}
    s_lshl_b32 s9, s39, 8
    s_add_u32 s9, s9, s8
    s_add_u32 s9, s9, 4096
    v_lshlrev_b32 v{QF0}, 3, v1
    v_add_u32 v{QF0}, s9, v{QF0}
    """)
    for qq in range(4):
        a(f"""
        s_lshr_b32 s8, s{76 + (qq >> 1)}, 3
        s_add_u32 s8, s8, {2 * (qq & 1)}
        v_add_u32 v{t}, s8, v2
        v_mul_u32_u24 v{t+1}, 52, v{t}
        v_lshrrev_b32 v{t+1}, 8, v{t+1}
        v_mul_u32_u24 v{t+2}, 5, v{t+1}
        v_sub_u32 v{t+2}, v{t}, v{t+2}
        v_lshlrev_b32 v{TLQ[qq]}, 10, v{t+1}
        v_lshl_add_u32 v{TLQ[qq]}, v1, 4, v{TLQ[qq]}
        v_lshrrev_b32 v{t+3}, 1, v{t+2}
        v_lshl_add_u32 v{TLQ[qq]}, v{t+3}, 9, v{TLQ[qq]}
        v_and_b32 v{t+3}, 1, v{t+2}
        v_lshl_add_u32 v{TLQ[qq]}, v{t+3}, 3, v{TLQ[qq]}
        v_cmp_eq_u32 vcc, 4, v{t+2}
        s_mov_b64 exec, vcc
        v_lshlrev_b32 v{TLQ[qq]}, 8, v{t+1}
        v_lshl_add_u32 v{TLQ[qq]}, v1, 3, v{TLQ[qq]}
        v_add_u32 v{TLQ[qq]}, 4096, v{TLQ[qq]}
        s_mov_b64 exec, -1
        v_add_u32 v{TLQ[qq]}, {LQ}, v{TLQ[qq]}
        """)
    a(f"""
    s_add_u32 s9, s3, 1
    s_lshr_b32 s9, s9, 1
    s_add_u32 s9, s9, 2
    s_sub_u32 s10, s3, 5
    s_cmp_ge_u32 s3, 5
    s_cselect_b32 s12, s10, s39
    s_cselect_b32 s13, 0, s9
    s_lshl_b32 s10, s12, 12
    s_lshl_b32 s9, s13, 12
    v_add_u32 v{JA}, s10, v{OAD1}
    v_add_u32 v{JB}, s9, v{OAD1}
    s_lshl_b32 s10, s12, 5
    s_lshl_b32 s9, s13, 5
    s_sub_u32 s9, s9, 80
    v_lshlrev_b32 v{t}, 2, v2
    v_add_u32 v{t}, s10, v{t}
    v_add_u32 v{t+1}, s9, v1
    v_and_b32 v{t+2}, 0xffff, v{t+1}
    v_mul_u32_u24 v{t+2}, 3277, v{t+2}
    v_lshrrev_b32 v{t+2}, 16, v{t+2}
    v_mul_u32_u24 v{t+3}, 80, v{t+1}
    s_cmp_ge_u32 s3, 5
    s_cbranch_scc1 PC_z
    """)
    for z in range(2):
        for q in range(4):
            m = MASKS[q]
            a(f"v_add_u32 v{t+4}, {8*q}, v{t}")
            a(f"v_mul_u32_u24 v{t+5}, 3277, v{t+4}")
            a(f"v_lshrrev_b32 v{t+5}, 16, v{t+5}")
            if z == 0:
                a(f"v_lshl_add_u32 v{PWR+q}, v{t+4}, 2, v{t+3}")
                a(f"v_cmp_eq_u32 s[{m}:{m+1}], v{t+5}, v{t+2}")
            else:
                a(f"v_add_u32 v{PWR+q}, 1, v{t+5}")
                a(f"v_mul_u32_u24 v{PWR+q}, 1600, v{PWR+q}")
                a(f"v_lshl_add_u32 v{PWR+q}, v{t+4}, 2, v{PWR+q}")
                a(f"v_cmp_gt_u32 s[{m}:{m+1}], 4, v{t+5}")
                a(f"s_and_b32 s{m}, s{m}, 1\ns_and_b32 s{m+1}, s{m+1}, 1")
        if z == 0:
            a("s_branch PC_zd")
            a.label("PC_z")
    a.label("PC_zd")
    for i in range(BACC, BFR + 24): a(f"v_mov_b32 v{i}, 0")

def gen(a):
    K = NAME + "_kernel"
    kernel_begin(a, K)
    if STAMP:
        a("s_memtime s[84:85]\ns_memrealtime s[86:87]")
    a("s_getpc_b64 s[44:45]")
    a.label("L_pc")
    a(f"""
    s_mov_b32 s46, L_codeend-L_pc
    s_mov_b32 s47, 0x20000
    v_lshlrev_b32 v4, {9 if CPF4 else 7}, v0
    s_lshl_b32 s8, s2, 4
    s_and_b32 s8, s8, {0x180 if CPF4 else 0}
    buffer_load_dword v164, v4, s[44:47], s8 offen
    s_cmp_ge_u32 s2, 256
    s_cbranch_scc1 L_end
    s_load_dwordx16 s[16:31], s[0:1], 0
    s_load_dwordx4 s[32:35], s[0:1], 64
    s_load_dwordx2 s[36:37], s[0:1], 80
    v_lshrrev_b32 v1, 6, v0
    v_and_b32 v0, 63, v0
    v_readfirstlane_b32 s3, v1
    s_and_b32 s6, s2, 7
    s_lshr_b32 s7, s2, 3
    """)
    if MAP48:
        a("s_lshl_b32 s4, s6, 2\ns_lshr_b32 s8, s7, 3\ns_add_u32 s4, s4, s8\ns_and_b32 s5, s7, 7")
    else:
        a("s_lshr_b32 s4, s6, 1\ns_lshl_b32 s4, s4, 3\ns_lshr_b32 s8, s7, 2\ns_add_u32 s4, s4, s8\ns_and_b32 s5, s6, 1\ns_lshl_b32 s5, s5, 2\ns_and_b32 s8, s7, 3\ns_add_u32 s5, s5, s8")
    a(f"""
    s_cmp_lt_u32 s3, 8
    s_cbranch_scc1 C_start
    """)
    a("s_setprio 2")
    a("s_sub_u32 s10, s3, 8")
    a("s_mul_i32 s13, s4, 81920")
    a("v_lshlrev_b32 v18, 4, v0")
    a("s_cmp_eq_u32 s10, 1\ns_cbranch_scc1 L_mw")
    a("""
    v_lshrrev_b32 v20, 4, v0
    v_xor_b32 v21, v20, v0
    v_and_b32 v21, 15, v21
    v_lshlrev_b32 v21, 4, v21
    v_mul_u32_u24 v20, 1280, v20
    """)
    for j in range(4):
        a(f"v_xor_b32 v{28+j}, {64*j}, v21")
        a(f"v_add_u32 v{28+j}, v{28+j}, v20")
        if j < 3: a("v_add_u32 v20, 5120, v20")
    a(f"""
    s_mov_b32 m0, {LMX}
    s_lshr_b32 s14, s5, 1
    s_mul_i32 s14, s14, 20480
    s_add_u32 s14, s14, s13
    s_mov_b32 s15, 0
    s_waitcnt lgkmcnt(0)
    """)
    srd(a, 44, 16, XBYTES)
    a.label("L_mx")
    for j in range(4):
        dma(a, f"v{28+j}", 44, "s14")
        a("s_add_u32 m0, m0, 1024")
        a("s_add_u32 s14, s14, 256" if j == 3 else "s_nop 0")
    a("s_add_u32 s15, s15, 1\ns_cmp_lt_u32 s15, 5\ns_cbranch_scc1 L_mx")
    a("s_branch L_md")
    a.label("L_mw")
    a(f"s_mov_b32 m0, {LWKV}\ns_mov_b32 s14, 0")
    a("s_waitcnt lgkmcnt(0)")
    a("s_bitcmp1_b32 s5, 0")
    a("s_cselect_b32 s52, s22, s20")
    a("s_cselect_b32 s53, s23, s21")
    a("s_mov_b32 s54, 25600\ns_mov_b32 s55, 0x20000")
    a.label("L_mwl")
    for i in range(4): a(f"buffer_load_dwordx4 v18, s[52:55], s14 offen offset:{1024*i} lds")
    a("s_add_u32 m0, m0, 4096\ns_add_u32 s14, s14, 4096\ns_cmp_lt_u32 s14, 24576\ns_cbranch_scc1 L_mwl")
    a("buffer_load_dwordx4 v18, s[52:55], s14 offen lds")
    srd(a, 44, 16, XBYTES)
    a("s_branch L_md")
    a.label("C_start")
    a("s_cmp_lg_u32 s3, 4\ns_cbranch_scc1 C_pre")
    a("s_cmp_ge_u32 s2, 8\ns_cbranch_scc1 C_pre")
    a("s_memrealtime s[8:9]\ns_waitcnt lgkmcnt(0)\ns_or_b32 s8, s8, 1")
    srd(a, 44, 34, 256)
    a("v_mov_b32 v8, s8\nv_mov_b32 v9, 0\nv_mov_b32 v10, 0\ns_mov_b64 exec, 1")
    a("buffer_atomic_cmpswap v[8:9], v10, s[44:47], 0 offen sc1")
    a("s_mov_b64 exec, -1")
    a.label("C_pre")
    precompute(a)
    a("s_waitcnt lgkmcnt(0)")
    srd(a, 40, 36, WS_SIZE)
    a("s_cmp_lt_u32 s3, 3\ns_cbranch_scc1 A_q")
    a("s_cmp_eq_u32 s3, 5\ns_cbranch_scc1 A_kvpoll")
    a("s_cmp_lt_u32 s3, 6\ns_cbranch_scc1 A_bars")
    srd(a, 44, 34, 256)
    a(f"""
    v_mov_b32 v10, 0
    v_and_b32 v20, 15, v0
    v_lshrrev_b32 v21, 4, v0
    v_xor_b32 v22, v20, v21
    v_lshlrev_b32 v22, 4, v22
    v_lshl_add_u32 v22, v20, 8, v22
    v_add_u32 v22, {LMX}, v22
    v_xor_b32 v23, 64, v22
    v_xor_b32 v24, 128, v22
    v_xor_b32 v25, 192, v22
    v_bfe_u32 v26, v0, 2, 2
    v_lshl_add_u32 v26, v21, 3, v26
    v_mul_u32_u24 v26, 40, v26
    v_and_b32 v27, 3, v0
    v_lshl_add_u32 v26, v27, 3, v26
    s_lshl_b32 s8, s38, 5
    s_add_u32 s8, s8, {LWKV}
    v_add_u32 v26, s8, v26
    s_lshl_b32 s12, s4, 1
    s_lshr_b32 s8, s5, 2
    s_add_u32 s12, s12, s8
    s_mul_i32 s12, s12, {TILE}
    s_add_u32 s12, s12, {WS_KV}
    s_bfe_u32 s13, s5, 0x10001
    s_lshl_b32 s55, s4, 4
    s_add_u32 s55, s55, s5
    s_lshl_b32 s55, s55, 1
    s_add_u32 s55, s55, s38
    s_lshl_b32 s55, s55, 2
    s_add_u32 s55, s55, {FL_KV}
    v_and_b32 v27, 1, v21
    s_mov_b32 s56, 0
    s_mov_b64 s[48:49], -1
    """)
    for i in range(12, 16): a(f"v_mov_b32 v{i}, 0")
    MF = [BACC + 8 * i for i in range(4)]
    def mini(lbl, orient):
        def mm(st):
            x, w, ac = v(MF[st], 4), v(MF[st] + 4, 4), v(12, 4)
            a(f"v_mfma_f32_16x16x32_bf16 {ac}, {w}, {x}, {ac}" if orient == "R" else f"v_mfma_f32_16x16x32_bf16 {ac}, {x}, {w}, {ac}")
        a("s_barrier")
        a("buffer_load_dword v11, v10, s[44:47], 0 offen sc1")
        a.label(lbl)
        for st in range(4):
            f = MF[st]
            a(f"ds_read_b128 v[{f}:{f+3}], v{22+st}")
            for hf in range(2):
                a(f"ds_read_b64_tr_b16 v[{f+4+2*hf}:{f+5+2*hf}], v26 offset:{(32*st+4*hf)*40}")
            a(f"v_add_u32 v{22+st}, 4096, v{22+st}")
            a("s_waitcnt lgkmcnt(9)")
            mm((st + 1) % 4)
        a("v_add_u32 v26, 5120, v26")
        a(f"s_add_u32 s56, s56, 1\ns_cmp_lt_u32 s56, 5\ns_cbranch_scc1 {lbl}")
        for st, w in ((1, 6), (2, 3), (3, 0)):
            a(f"s_waitcnt lgkmcnt({w})"); mm(st)
    a("s_bitcmp1_b32 s5, 0")
    a("s_cbranch_scc1 M_v")
    a(f"""
    s_lshl_b32 s8, s13, 4
    v_add_u32 v20, s8, v20
    v_lshlrev_b32 v28, 4, v20
    v_lshl_add_u32 v28, v2, 9, v28
    v_lshl_add_u32 v28, v27, 3, v28
    s_cmp_eq_u32 s3, 6
    s_cbranch_scc1 M_k0
    v_lshlrev_b32 v28, 3, v20
    v_add_u32 v28, 1024, v28
    s_mov_b32 exec_lo, 0xffff0000
    v_lshlrev_b32 v28, 3, v20
    v_add_u32 v28, 2560, v28
    s_mov_b32 exec_lo, -1
    s_mov_b32 s49, 0
    """)
    a.label("M_k0")
    mini("M_kl", "R")
    a(f"s_mov_b32 s8, {f32(CSCALE)}\ns_nop 6")
    a("v_pk_mul_f32 v[12:13], v[12:13], s[8:9] op_sel_hi:[1,0]\nv_pk_mul_f32 v[14:15], v[14:15], s[8:9] op_sel_hi:[1,0]")
    a("v_cvt_pk_bf16_f32 v12, v12, v13\nv_cvt_pk_bf16_f32 v13, v14, v15")
    a("s_cmp_eq_u32 s3, 6\ns_cbranch_scc1 M_st")
    a("s_mov_b32 exec_lo, 0xffff0000")
    a("v_mov_b32 v12, 0x3f803f80\nv_mov_b32 v13, 0x3f803f80")
    a("s_mov_b32 exec_lo, 0xcccc0000\nv_mov_b32 v12, 0\nv_mov_b32 v13, 0")
    a("s_branch M_st")
    a.label("M_v")
    a(f"""
    s_mul_i32 s8, s13, 640
    s_add_u32 s12, s12, s8
    s_lshl_b32 s8, s38, 8
    s_add_u32 s12, s12, s8
    s_add_u32 s12, s12, 1280
    v_lshrrev_b32 v28, 2, v20
    v_add_u32 v28, 1, v28
    v_and_b32 v28, 2, v28
    v_mul_u32_u24 v28, 6, v28
    v_xor_b32 v28, v20, v28
    v_mul_u32_u24 v29, 320, v27
    v_lshl_add_u32 v29, v2, 3, v29
    v_lshl_add_u32 v28, v28, 4, v29
    s_cmp_eq_u32 s3, 6
    s_cselect_b32 s48, -1, 0x000f000f
    s_mov_b32 s49, s48
    """)
    mini("M_vl", "C")
    a("s_nop 7")
    a("v_cvt_pk_bf16_f32 v12, v12, v13\nv_cvt_pk_bf16_f32 v13, v14, v15")
    a.label("M_st")
    a("s_mov_b64 exec, s[48:49]")
    a("buffer_store_dwordx2 v[12:13], v28, s[40:43], s12 offen sc1")
    a("s_mov_b64 exec, -1")
    gs(a, 0, "v30", "v31")
    a("s_barrier")
    for i in range(32): a(f"v_mov_b32 v{BACC+i}, 0")
    a("s_barrier")
    a("s_mov_b32 s9, 0")
    a.label("A_np")
    a("s_add_u32 s9, s9, 1")
    a("s_waitcnt vmcnt(0)")
    a("v_cmp_eq_u32 vcc, 0, v11")
    a(f"s_cmp_gt_u32 s9, {SPIN_MAX}\ns_cbranch_scc1 A_nd\ns_cbranch_vccz A_nd\ns_sleep 1")
    a("buffer_load_dword v11, v10, s[44:47], 0 offen sc1")
    a("s_branch A_np")
    a.label("A_nd")
    a("s_mov_b64 exec, 1")
    a("buffer_store_dword v11, v10, s[40:43], s55 offen sc1")
    a("s_mov_b64 exec, -1")
    a(f"v_mov_b32 v5, {LMISC}\nds_write_b32 v5, v11\nds_write_b32 v5, v10 offset:8\nds_write_b32 v5, v10 offset:4\ns_waitcnt lgkmcnt(0)")
    gs(a, 1, "v30", "v31")
    a("s_branch A_bars8")
    a.label("A_kvpoll")
    a("v_lshrrev_b32 v20, 1, v0\nv_lshlrev_b32 v20, 7, v20\nv_and_b32 v21, 1, v0\nv_lshl_add_u32 v20, v21, 4, v20")
    a(f"v_mov_b32 v18, v{OAD1}")
    a("s_and_b32 s60, s7, 15")
    a(f"s_mov_b32 s61, {LKV}\ns_mov_b32 s12, {FL_KV}\ns_mov_b32 s9, 0")
    KP = int(OPT.get("kp", 6))
    for i in range(KP + 1): a("s_barrier")
    get_nonce(a, "v22", "v23")
    a("s_barrier\ns_sleep 3")
    def kvl():
        a("buffer_load_dwordx4 v[24:27], v20, s[40:43], s12 offen sc1")
        a("buffer_load_dwordx4 v[28:31], v20, s[40:43], s12 offen offset:32 sc1")
    kvl()
    a("s_barrier\ns_barrier\ns_barrier")
    a(f"s_mov_b32 s13, {6 - KP}")
    a.label("A_kq")
    a("s_add_u32 s9, s9, 1")
    a("s_waitcnt vmcnt(0)")
    for i in range(8): a(f"v_xor_b32 v{24+i}, s96, v{24+i}")
    a("v_or3_b32 v24, v24, v25, v26\nv_or3_b32 v27, v27, v28, v29\nv_or3_b32 v24, v24, v30, v31\nv_or_b32 v24, v24, v27\nv_cmp_ne_u32 vcc, 0, v24")
    a(f"s_cmp_gt_u32 s9, {SPIN_MAX}\ns_cbranch_scc1 A_kd\ns_cbranch_vccz A_kd\ns_mov_b64 exec, vcc\ns_sleep {OPT.get('ksl', 8)}")
    kvl()
    a("s_cmp_eq_u32 s13, 0\ns_cbranch_scc1 A_kq\ns_barrier\ns_sub_u32 s13, s13, 1\ns_branch A_kq")
    a.label("A_kd")
    a("s_mov_b64 exec, -1")
    gs(a, 4, "v30", "v31")
    call(a, "L_issueKV", "s[62:63]")
    a.label("A_kr")
    a("s_cmp_eq_u32 s13, 0\ns_cbranch_scc1 A_ke\ns_barrier\ns_sub_u32 s13, s13, 1\ns_branch A_kr")
    a.label("A_ke")
    for i in range(3 if BS >= 2 else 2): call(a, "L_issueKV", "s[62:63]")
    a(f"s_waitcnt vmcnt({33 if BS >= 2 else 22})")
    a("s_branch A_done")
    a.label("A_bars")
    for i in range(3): a("s_barrier")
    a.label("A_bars8")
    for i in range(8): a("s_barrier")
    a("s_waitcnt vmcnt(0)")
    a("s_branch A_done")
    a.label("A_q")
    def ard(st, i):
        f = AFR[st]
        if i < 2: a(f"ds_read_b64_tr_b16 v[{f+2*i}:{f+2*i+1}], v{bW} offset:{(16*st+4*i)*160}")
        else: a(f"ds_read_b128 v[{f+4*(i-1)}:{f+4*(i-1)+3}], v{bX+st} offset:{4096*(i-2)}")
    def amf(st, blk):
        f = AFR[st]; ac = v(AACC + 16 * blk, 16)
        a(f"v_mfma_f32_32x32x16_bf16 {ac}, v[{f}:{f+3}], v[{f+4+4*blk}:{f+7+4*blk}], {ac}")
    a(f"s_mov_b32 s56, 0\ns_mov_b32 s70, {HS}\ns_mov_b32 s74, {-5*HS}\ns_mov_b32 s75, {-3*HS}")
    for i in range(32): a(f"v_mov_b32 v{AACC+i}, 0")
    a("s_barrier\ns_barrier")
    for st in (0, 1, 2):
        for i in range(4): ard(st, i)
    a("s_branch A_mid")
    a(".p2align 3")
    a.label("A_loop")
    a("s_waitcnt lgkmcnt(0)\ns_barrier")
    seq = [(st, i) for st in (0, 1, 2) for i in range(4)]
    for n, (st, blk) in enumerate(((2, 0), (2, 1), (3, 0), (3, 1))):
        amf(st, blk)
        for x in seq[3 * n:3 * n + 3]: ard(*x)
    a.label("A_mid")
    a("s_add_u32 s56, s56, 1\ns_cmp_eq_u32 s56, 6\ns_cselect_b32 s8, s74, s70")
    a("s_waitcnt lgkmcnt(8)")
    amf(0, 0); ard(3, 0); ard(3, 1)
    a("s_cmp_lt_u32 s56, 10\ns_cselect_b32 s8, s8, s75")
    amf(0, 1); ard(3, 2); ard(3, 3)
    a("s_waitcnt lgkmcnt(8)")
    a(f"v_add_u32 v{bW}, s8, v{bW}")
    amf(1, 0)
    for j in range(4): a(f"v_add_u32 v{bX+j}, s8, v{bX+j}")
    amf(1, 1)
    a("s_cbranch_scc1 A_loop")
    a("s_waitcnt lgkmcnt(4)")
    amf(2, 0)
    for i in range(6): a(f"v_mov_b32 v{BFR+i}, 0")
    a("s_waitcnt lgkmcnt(0)")
    amf(3, 0)
    for i in range(6, 12): a(f"v_mov_b32 v{BFR+i}, 0")
    amf(2, 1)
    for i in range(12, 18): a(f"v_mov_b32 v{BFR+i}, 0")
    amf(3, 1)
    for i in range(18, 24): a(f"v_mov_b32 v{BFR+i}, 0")
    for blk in range(2):
        for qq in range(4):
            r0 = AACC + 16 * blk + 4 * qq
            a(f"v_cvt_pk_bf16_f32 v{r0}, v{r0}, v{r0+1}\nv_cvt_pk_bf16_f32 v{r0+1}, v{r0+2}, v{r0+3}")
            a(f"ds_write_b64 v{TLQ[qq]}, v[{r0}:{r0+1}] offset:{5120*blk}")
    a.label("A_done")
    def rdKA(t): a(f"ds_read_b128 v[{KA}:{KA+3}], v{aKA} offset:{t*TILE}")
    def rdKB(t): a(f"ds_read_b64 v[{KB}:{KB+1}], v{aKB} offset:{t*TILE}")
    def rdV0(t): a(f"ds_read_b128 v[{V0}:{V0+3}], v{aV0} offset:{t*TILE}")
    def rdV1(t): a(f"ds_read_b128 v[{V1}:{V1+3}], v{aV1} offset:{t*TILE}")
    def qka(S): a(f"v_mfma_f32_32x32x16_bf16 v[{S}:{S+15}], v[{KA}:{KA+3}], v[{QA}:{QA+3}], 0")
    def qkb(S): a(f"v_mfma_f32_32x32x8_bf16 v[{S}:{S+15}], v[{KB}:{KB+1}], v[{QB}:{QB+1}], v[{S}:{S+15}]")
    def pv0(): a(f"v_mfma_f32_32x32x16_bf16 v[{OO}:{OO+15}], v[{V0}:{V0+3}], v[{PP}:{PP+3}], v[{OO}:{OO+15}]")
    def pv1(): a(f"v_mfma_f32_32x32x16_bf16 v[{OO}:{OO+15}], v[{V1}:{V1+3}], v[{PP+4}:{PP+7}], v[{OO}:{OO+15}]")
    def E(S, lo, hi, w=None):
        for i in range(lo, hi):
            if w is not None and i == hi - 1:
                a(w if isinstance(w, str) else f"s_waitcnt lgkmcnt({w})"); a(f"v_exp_f32_e64 v{S+i}, v{S+i}")
            else: a(f"v_exp_f32 v{S+i}, v{S+i}")
    def c1(k, S): a(f"v_cvt_pk_bf16_f32 v{PP+k}, v{S+2*k}, v{S+2*k+1}")
    def C(S, g): c1(2 * g, S); c1(2 * g + 1, S)
    ct(a, "a0")
    a("s_waitcnt lgkmcnt(0)\ns_barrier")
    ct(a, "p0")
    read_qfrag(a, QA, QB)
    rdKA(0); rdKB(0)
    a(f"ds_read_b128 v[{V1}:{V1+3}], v{aKA} offset:{TILE}")
    rdV0(0)
    a(f"v_mov_b32 v{PP}, {LMISC}\nds_read_b32 v{PP+3}, v{PP}")
    a("s_mov_b32 exec_lo, 0")
    a("s_waitcnt lgkmcnt(3)")
    a(f"v_mov_b32 v{QB}, 0\nv_mov_b32 v{QB+1}, 0")
    a("s_mov_b32 exec_lo, -1")
    ct(a, "p1")
    qka(S0); qkb(S0)
    rdKB(1); rdKA(2)
    a("s_waitcnt lgkmcnt(2)")
    a(f"v_mfma_f32_32x32x16_bf16 v[{S1}:{S1+15}], v[{V1}:{V1+3}], v[{QA}:{QA+3}], 0")
    rdV1(0)
    a(f"v_readfirstlane_b32 s96, v{PP+3}")
    a("s_nop 5")
    ct(a, "p2")
    rowmax(a, S0, PP)
    set_m(a, PP, PP + 1, PP + 2)
    ct(a, "p3")
    for i in range(0, 16, 2): a(f"v_pk_add_f32 v[{S0+i}:{S0+i+1}], v[{S0+i}:{S0+i+1}], v[{PP+2}:{PP+3}] op_sel_hi:[1,0] neg_lo:[0,1] neg_hi:[0,1]")
    a(".p2align 3")
    E(S0, 0, 4, 2)
    qkb(S1); rdKB(2); C(S0, 0); E(S0, 4, 8); a("s_nop 0\ns_nop 0"); C(S0, 1); E(S0, 8, 12)
    a(f"v_mfma_f32_32x32x16_bf16 v[{OO}:{OO+15}], v[{V0}:{V0+3}], v[{PP}:{PP+3}], 0")
    rdV0(1); C(S0, 2); E(S0, 12, 16, 3); C(S0, 3)
    def plain(n, t=0):
        Sc, Sn = (S0, S1) if n % 2 == 0 else (S1, S0)
        if t == 63:
            E(Sc, 0, 4, 1); pv1(); rdV1(15); C(Sc, 0); E(Sc, 4, 8); a("s_nop 0\ns_nop 0"); C(Sc, 1); E(Sc, 8, 12, 1)
            pv0(); C(Sc, 2); E(Sc, 12, 16); C(Sc, 3)
            return
        if t == 62:
            qka(Sn); E(Sc, 0, 4, 2)
            pv1(); rdV1(14); C(Sc, 0); E(Sc, 4, 8, 2)
            qkb(Sn); C(Sc, 1); E(Sc, 8, 12, 1)
            pv0(); rdV0(15); C(Sc, 2); E(Sc, 12, 16); C(Sc, 3)
            return
        qka(Sn); rdKA((n + 2) % 16); E(Sc, 0, 4, 3)
        pv1(); rdV1(n); C(Sc, 0); E(Sc, 4, 8, 3)
        qkb(Sn); rdKB((n + 2) % 16); C(Sc, 1); E(Sc, 8, 12, 3)
        pv0(); rdV0((n + 1) % 16); C(Sc, 2); E(Sc, 12, 16, 3); C(Sc, 3)
    for n in range(1, 12):
        if n == 1: ct(a, "p4")
        if n == 2:
            ct(a, "p5"); a("s_waitcnt vmcnt(0)"); ct(a, "p6"); a("s_barrier")
        if n == 5:
            a(f"s_mov_b64 exec, 1\nv_mov_b32 v3, 1\nv_mov_b32 v164, {LMISC}\nds_add_u32 v164, v3 offset:4\ns_mov_b64 exec, -1\ns_nop 0")
        plain(n)
    a(f"s_mov_b32 s8, {3*CH}")
    for r in (aKA, aKB, aV0, aV1): a(f"v_add_u32 v{r}, s8, v{r}")
    a(f"s_mov_b32 s56, 0\ns_mov_b32 s68, 0\ns_mov_b32 s70, {SLOT}\ns_mov_b32 s74, {-2*SLOT}\ns_mov_b32 s72, {CH}\ns_mov_b32 s73, {-3*CH}")
    a("s_waitcnt lgkmcnt(0)")
    a("s_cmp_ge_u32 s3, 3\ns_cbranch_scc1 FU_C")
    def G(orient, s_, blk):
        f = BFR + 12 * s_; w, x, ac = v(f, 4), v(f + 4 + 4 * blk, 4), v(BACC + 16 * blk, 16)
        a(f"v_mfma_f32_32x32x16_bf16 {ac}, {w}, {x}, {ac}" if orient == "R" else f"v_mfma_f32_32x32x16_bf16 {ac}, {x}, {w}, {ac}")
    def GR(orient, s_, st):
        f = BFR + 12 * s_; stride = 160 if orient == "R" else 320
        for hf in range(2): a(f"ds_read_b64_tr_b16 v[{f+2*hf}:{f+2*hf+1}], v{bW} offset:{(16*st+4*hf)*stride}")
        for blk in range(2): a(f"ds_read_b128 v[{f+4+4*blk}:{f+7+4*blk}], v{bX+st} offset:{4096*blk}")
    for orient in ("R", "C"):
        a(".p2align 3")
        a.label("FU_" + orient)
        a("s_and_b32 s9, s56, 3\ns_cselect_b32 s9, s72, s73")
        for n in range(4):
            Sc, Sn = (S0, S1) if n % 2 == 0 else (S1, S0)
            def slot(i, w=None):
                c1((i - 1) % 8, Sn if i == 0 else Sc)
                E(Sc, 2 * i, 2 * i + 2, w)
            def va(*regs, sg):
                for r in regs: a(f"v_add_u32 v{r}, {sg}, v{r}")
            G(orient, 0, 0)
            if n == 2: va(aKA, aKB, sg="s9")
            slot(0, 11)
            qka(Sn); rdKA((n + 2) % 4); slot(1)
            if n % 2 == 0:
                a("s_waitcnt lgkmcnt(1)\ns_barrier")
                a("s_add_u32 s68, s68, 1\ns_cmp_eq_u32 s68, 3\ns_cselect_b32 s8, s74, s70\ns_cselect_b32 s68, 0, s68")
            G(orient, 0, 1); GR(orient, 0, (2 * n) % 4); slot(2, 11)
            pv1(); rdV1(n); slot(3, 11)
            qkb(Sn); rdKB((n + 2) % 4); slot(4, 7)
            G(orient, 1, 0)
            if n == 3: va(aV0, aV1, sg="s9")
            slot(5)
            pv0(); rdV0((n + 1) % 4); slot(6)
            G(orient, 1, 1); GR(orient, 1, (2 * n + 1) % 4)
            if n % 2 == 0: va(bX, bX + 1, sg="s8")
            else:
                va(bX + 2, bX + 3, bW, sg="s8"); a("s_nop 0")
            slot(7, 7)
        a(f"s_add_u32 s56, s56, 1\ns_cmp_lt_u32 s56, 5\ns_cbranch_scc1 FU_{orient}")
        ct(a, "fe")
        c1(7, S1)
        G(orient, 0, 0)
        a("s_waitcnt lgkmcnt(0)")
        G(orient, 1, 0); G(orient, 0, 1); G(orient, 1, 1)
        a(f"s_mov_b32 s8, {f32(LOG2E)}\ns_mov_b32 s9, {f32(1e-6)}")
        def phi4(r0, X):
            for i in (0, 2): a(f"v_pk_mul_f32 v[{X+i}:{X+i+1}], v[{r0+i}:{r0+i+1}], s[8:9] op_sel_hi:[1,0]")
            for i in range(4): a(f"v_exp_f32_e64 v{X+i}, v{X+i} clamp")
            for i in range(4): a(f"v_max_f32 v{r0+i}, s9, v{r0+i}")
            for i in (0, 2): a(f"v_pk_add_f32 v[{r0+i}:{r0+i+1}], v[{r0+i}:{r0+i+1}], v[{X+i}:{X+i+1}]")
        if orient == "R":
            a("s_nop 7")
            for half in range(2):
                if half == 1: a("s_cmp_eq_u32 s3, 2\ns_cbranch_scc1 B_jobs")
                for blk in range(2):
                    for q in range(2):
                        r0 = BACC + 16 * blk + 8 * half + 4 * q
                        phi4(r0, BFR)
                        a(f"v_cvt_pk_bf16_f32 v{r0}, v{r0}, v{r0+1}\nv_cvt_pk_bf16_f32 v{r0+1}, v{r0+2}, v{r0+3}")
                        a(f"ds_write_b64 v{TLQ[2*half+q]}, v[{r0}:{r0+1}] offset:{5120*blk}")
            a("s_branch B_jobs")
    a("s_lshl_b32 s10, s78, 12")
    a(f"v_add_u32 v{TL0}, s10, v{OAD1}")
    a("s_cmp_eq_u32 s78, 2\ns_cselect_b32 s10, 0xffff, -1\ns_mov_b32 s11, s10")
    a("s_cmp_ge_u32 s78, 3")
    a("s_nop 1")
    for ks in range(4):
        r0 = BACC + 8 * ks
        l = a.newlabel("B_np")
        a(f"s_cbranch_scc1 {l}")
        a("s_mov_b64 exec, s[10:11]")
        phi4(r0, BFR); phi4(r0 + 4, BFR + 4)
        a("s_mov_b64 exec, -1")
        a.label(l)
        for i in range(4): a(f"v_cvt_pk_bf16_f32 v{r0+i}, v{r0+2*i}, v{r0+2*i+1}")
        a(f"ds_write_b128 v{TL0}, v[{r0}:{r0+3}] offset:{LFR+1024*ks}")
    a(".p2align 3")
    a.label("B_jobs")
    JAF, JBF, JD = BACC, BACC + 16, BFR
    ct(a, "ep")
    plain(0); plain(1)
    a("s_cmp_lt_u32 s3, 5")
    a("s_barrier")
    ct(a, "c10")
    qka(S1); rdKA(4)
    for ks in range(4): a(f"ds_read_b128 v[{JAF+4*ks}:{JAF+4*ks+3}], v{JA} offset:{LFR+1024*ks}")
    a("s_cbranch_scc0 B_z")
    for ks in range(4): a(f"ds_read_b128 v[{JBF+4*ks}:{JBF+4*ks+3}], v{JB} offset:{LFR+1024*ks}")
    a("s_branch B_nob")
    a.label("B_z")
    for i in range(16): a(f"v_mov_b32 v{JBF+i}, 0x3f803f80")
    a(".p2align 3")
    a.label("B_nob")
    read_qfrag(a, PQA, PQB)
    def J(ks):
        c = "0" if ks == 0 else v(JD, 16)
        a(f"v_mfma_f32_32x32x16_bf16 {v(JD,16)}, v[{JAF+4*ks}:{JAF+4*ks+3}], v[{JBF+4*ks}:{JBF+4*ks+3}], {c}")
    E(S0, 0, 4, 7)
    pv1(); rdV1(2); C(S0, 0); E(S0, 4, 8)
    qkb(S1); rdKB(4); C(S0, 1); E(S0, 8, 10, 4)
    J(0); E(S0, 10, 12)
    J(1); C(S0, 2)
    pv0(); rdV0(3); E(S0, 12, 14)
    J(2); E(S0, 14, 16)
    J(3); C(S0, 3)
    a("s_mov_b32 exec_lo, 0")
    a("s_waitcnt lgkmcnt(3)")
    a(f"v_mov_b32 v{PQB}, 0\nv_mov_b32 v{PQB+1}, 0")
    a("s_mov_b32 exec_lo, -1\ns_nop 0")
    def PW(q):
        a(f"s_mov_b64 exec, s[{MASKS[q]}:{MASKS[q]+1}]\ns_nop 0")
        a(f"ds_write_b128 v{PWR+q}, v[{JD+4*q}:{JD+4*q+3}] offset:{LPART}")
        a("s_mov_b64 exec, -1\ns_nop 0")
    qka(S0); rdKA(5); E(S1, 0, 4, 3)
    pv1(); rdV1(3); PW(0); C(S1, 0); E(S1, 4, 8, 4)
    qkb(S0); rdKB(5); PW(1); C(S1, 1); E(S1, 8, 12, 5)
    pv0(); rdV0(4); PW(2); C(S1, 2); E(S1, 12, 16, 6); C(S1, 3); PW(3)
    ct(a, "jw")
    for t in range(36, 54):
        if t % 4 == 2: a("s_barrier\ns_nop 0")
        plain(t % 16)
    a("s_barrier\ns_nop 0")
    AP = BACC
    a(f"ds_read2_b64 v[100:103], v{AP1} offset0:0 offset1:1\nds_read_b64 v[104:105], v{AP0} offset:32")
    qka(S1); rdKA(8); E(S0, 0, 4, 5)
    pv1(); rdV1(6); C(S0, 0); E(S0, 4, 8, 2)
    qkb(S1); rdKB(8); C(S0, 1)
    a(f"v_mfma_f32_32x32x16_bf16 v[{AP}:{AP+15}], v[100:103], v[{PQA}:{PQA+3}], 0")
    E(S0, 8, 12)
    pv0(); rdV0(7); C(S0, 2)
    a(f"v_mfma_f32_32x32x8_bf16 v[{AP}:{AP+15}], v[104:105], v[{PQB}:{PQB+1}], v[{AP}:{AP+15}]")
    E(S0, 12, 16, 3); C(S0, 3)
    qka(S0); rdKA(9); E(S1, 0, 4, 3)
    pv1(); rdV1(7)
    o_epilogue(a, AP, WS_OB, True)
    a(f"v_mov_b32 v100, {LCNT}\nv_mov_b32 v101, 1\ns_mov_b64 exec, 1\nds_add_rtn_u32 v102, v100, v101\ns_mov_b64 exec, -1")
    a(".p2align 3")
    C(S1, 0); E(S1, 4, 8, 4)
    qkb(S0); rdKB(9); C(S1, 1); E(S1, 8, 12, 4)
    pv0(); rdV0(8); C(S1, 2); E(S1, 12, 16, 2); C(S1, 3)
    a(f"v_readfirstlane_b32 s9, v102\ns_lshl_b32 s8, s4, 5\ns_add_u32 s8, s8, s5\ns_lshl_b32 s8, s8, 2\ns_add_u32 s8, s8, {FL_HB}")
    a("s_cmp_eq_u32 s9, 7\ns_cbranch_scc0 AT_n8")
    publish(a, "s8", "v100", "v101")
    a(".p2align 3")
    a.label("AT_n8")
    for t in range(56, 64):
        if t % 4 == 2: a("s_barrier\ns_nop 0")
        plain(t % 16, t)
    srd(a, 44, 32, 2048 * 2560)
    a("s_waitcnt lgkmcnt(0)")
    pv1()
    a("s_mov_b32 s74, 51200\ns_mov_b32 s75, -51200")
    a("s_nop 9")
    a(f"v_cmp_nge_f32 vcc, {f32(2.0**40)}, v{OO+12}")
    a("s_nop 1")
    a("s_cbranch_vccnz AT_fallback")
    a.label("AT_ok")
    F = [20 + 8 * i for i in range(10)]
    NANCHK = "v_cmp_u_f32 {0}, v{1}, v{1}" if not FORCE_REDO else "v_cmp_o_f32 {0}, v{1}, v{1}"
    AC2 = 140
    OUT = 132
    SW, SR = TL0, TL1
    a("s_cmp_ge_u32 s3, 4\ns_cbranch_scc1 TLz_start")
    def tl_vm(pfx):
        a(f"s_cmp_lg_u32 s56, 2\ns_cbranch_scc1 {pfx}_nv\ns_waitcnt vmcnt(0)")
        a.label(pfx + "_nv")
    def tl_adv():
        a("s_add_u32 s71, s71, 1\ns_cmp_eq_u32 s71, 3\ns_cselect_b32 s8, s73, s72\ns_cselect_b32 s71, 0, s71")
        a(f"v_add_u32 v{tW1}, s74, v{tW1}\nv_add_u32 v{tW2}, s74, v{tW2}\nv_add_u32 v{tX1}, s8, v{tX1}\nv_add_u32 v{tX2}, s8, v{tX2}")
        a("s_add_u32 s56, s56, 1\ns_and_b32 s8, s56, 3")
    def wrd(d, st, o=0):
        t, H = divmod(st, 5)
        if H < 4: a(f"ds_read_b128 v[{d}:{d+3}], v{tW1} offset:{o+12800*t+3200*H}")
        else:
            for hf in range(2): a(f"ds_read_b64 v[{d+2*hf}:{d+2*hf+1}], v{tW2} offset:{o+12800*t+6400*hf}")
    def xrd(d, st, o=0):
        t, H = divmod(st, 5)
        if H < 4: a(f"ds_read_b128 v[{d}:{d+3}], v{tX1} offset:{o+t*10240+H*1024}")
        else:
            for hf in range(2): a(f"ds_read_b64 v[{d+2*hf}:{d+2*hf+1}], v{tX2} offset:{o+t*10240+4096+512*hf}")
    def wshift(p):
        if p % 2 == 1 and p < 7:
            sg = "s74" if p % 4 == 1 else "s75"
            a(f"v_add_u32 v{tW1}, {sg}, v{tW1}\nv_add_u32 v{tW2}, {sg}, v{tW2}")
    def mrd(st): wrd(F[st], st); xrd(F[st] + 4, st)
    def mmf(st): a(f"v_mfma_f32_32x32x16_bf16 v[4:19], v[{F[st]}:{F[st]+3}], v[{F[st]+4}:{F[st]+7}], v[4:19]")
    nrd = lambda st: 4 if st % 5 == 4 else 2
    def m_pack(O, A=4):
        for i in range(8): a(f"v_cvt_pk_bf16_f32 v{O+i}, v{A+2*i}, v{A+1+2*i}")
    def m_turn(O):
        for q in range(4): a(f"ds_write_b64 v{SW}, v[{O+2*q}:{O+2*q+1}] offset:{16*q}")
        for i in range(2): a(f"ds_read_b128 v[{O+4*i}:{O+4*i+3}], v{SR} offset:{1280*i}")
    def m_store(O, off):
        for i in range(2): a(f"buffer_store_dwordx4 v[{O+4*i}:{O+4*i+3}], v{tO}, s[44:47], s{80+i} offen offset:{off} {ONT}")
    WS_ = lambda h, st: 20 + 40 * h + 4 * st
    XS_ = lambda st: 100 + 4 * st
    n1 = lambda st: 2 if st % 5 == 4 else 1
    def mm2(p, st):
        ac = v(4 if p < 4 else AC2, 16); h = p % 2
        c = "0" if (p % 4 == 0 and st == 0) else ac
        a(f"v_mfma_f32_32x32x16_bf16 {ac}, v[{WS_(h,st)}:{WS_(h,st)+3}], v[{XS_(st)}:{XS_(st)+3}], {c}")
    for st in range(10): wrd(WS_(0, st), st)
    o_epilogue(a, OO, WS_OA, False)
    a(".p2align 3")
    nout = 0
    for p in range(8):
        a(f"s_waitcnt {'vmcnt(0) ' if p == 4 else ''}lgkmcnt({min(15, nout) if p > 4 else 0})\ns_barrier")
        if p == 7: a(f"s_mov_b32 s8, {-LX}\nv_add_u32 v{tX1}, s8, v{tX1}\nv_add_u32 v{tX2}, s8, v{tX2}")
        ct(a, f"k{p}")
        pend = []
        def X(st): xrd(XS_(st), st, 20480 * (p % 3) if p < 7 else 0); pend.extend([("x", st)] * n1(st))
        for k in range(4):
            X(2 * k); X(2 * k + 1)
            if p: mm2(p - 1, 6 + k)
        X(8); X(9)
        nx = len(pend)
        wshift(p)
        nw = [(0, 1), (2, 3), (4,), (5, 6), (7, 8), (9,)]
        for st in range(6 if p < 7 else 10):
            last = max(i for i, q in enumerate(pend) if q == ("x", st))
            a(f"s_waitcnt lgkmcnt({min(15, len(pend) - 1 - last)})\ns_nop 0")
            mm2(p, st)
            if p < 7:
                for w in nw[st]:
                    wrd(WS_(1 - p % 2, w), w, 25600 * ((p + 1) % 2)); pend.extend([("w", w)] * n1(w))
            if p == 7 and st == 0:
                m_turn(4); pend.extend([("o", 0)] * 6)
            if p == 7 and st == 6:
                a("s_waitcnt lgkmcnt(0)\ns_nop 0"); m_store(4, 1280)
        nout = len(pend) - nx
        if p == 1:
            a(f"""
            v_lshrrev_b32 v{tO}, 2, v0
            v_and_b32 v3, 3, v0
            s_mul_i32 s8, s3, 2560
            s_add_u32 s8, s8, {LX + 40960}
            v_mul_u32_u24 v{SW}, 80, v1
            v_lshl_add_u32 v{SW}, v2, 3, v{SW}
            v_add_u32 v{SW}, s8, v{SW}
            v_lshlrev_b32 v3, 4, v3
            v_mul_u32_u24 v{SR}, 80, v{tO}
            v_add3_u32 v{SR}, v{SR}, v3, s8
            v_mul_u32_u24 v{tO}, 2560, v{tO}
            v_add_u32 v{tO}, v{tO}, v3
            s_add_u32 s81, s80, {16*2560}
            .p2align 3
            """)
        if p == 4:
            a(NANCHK.format("s[48:49]", 4)); m_pack(4)
    a("s_nop 11")
    a(NANCHK.format("s[50:51]", AC2))
    m_pack(AC2, AC2); m_turn(AC2); a("s_waitcnt lgkmcnt(0)"); m_store(AC2, 0)
    def m_out():
        m_pack(OUT); m_turn(OUT); a("s_waitcnt lgkmcnt(0)"); m_store(OUT, 0)
    a("s_or_b64 vcc, s[48:49], s[50:51]\ns_cbranch_scc1 TLm_redo")
    a.label("TLm_end")
    stamp_end(a)
    a("s_endpgm")
    def redo(pfx, nacc, loads, mfmas, out):
        a.label(pfx + "_redo")
        if OPT.get("cntredo"):
            srd(a, 64, 34, 256)
            a("s_or_b32 s8, s48, s49\ns_cmp_lg_u32 s8, 0\ns_cselect_b32 s8, 8, 4\nv_mov_b32 v100, s8\nv_mov_b32 v101, 1\ns_mov_b64 exec, 1\nbuffer_atomic_add v101, v100, s[64:67], 0 offen\ns_mov_b64 exec, -1")
        a(f"v_add_u32 v{tW1}, s75, v{tW1}\nv_add_u32 v{tW2}, s75, v{tW2}")
        a(f"v_lshlrev_b32 v100, 2, v0\ns_lshl_b32 s52, s4, 7\ns_add_u32 s52, s52, {FL_OA}")
        a(f"s_mul_i32 s13, s4, 81920\ns_mul_i32 s53, s5, 102400\ns_add_u32 s53, s53, {WS_WPA}\ns_mov_b32 s54, 0")
        a.label(pfx + "_rj")
        poll(a, "s52", 8, "v101", "v100")
        for i in range(4, 4 + nacc): a(f"v_mov_b32 v{i}, 0")
        a("s_add_u32 s69, s5, s4\ns_mov_b32 s56, 0")
        a.label(pfx + "_rl")
        a(f"s_and_b32 s69, s69, 3\ns_mul_i32 s8, s69, 20480\ns_add_u32 s8, s8, s13\ns_add_u32 s9, s8, 4096\ns_add_u32 s10, s8, 10240\ns_add_u32 s11, s8, {10240+4096}")
        a("s_mul_i32 s12, s69, 25600\ns_add_u32 s12, s12, s53")
        loads()
        a("s_waitcnt vmcnt(0)")
        mfmas()
        a(f"s_add_u32 s69, s69, 1\ns_add_u32 s56, s56, 1\ns_cmp_lt_u32 s56, 4\ns_cbranch_scc1 {pfx}_rl")
        a("s_nop 11")
        out()
        a(f"s_add_u32 s80, s80, 1280\ns_add_u32 s81, s81, 1280\ns_add_u32 s13, s13, {WS_OB - WS_OA}")
        a(f"s_sub_u32 s52, s52, {FL_OA - FL_OB}\ns_sub_u32 s53, s53, {WS_WPA - WS_WPB}")
        a(f"s_add_u32 s54, s54, 1\ns_cmp_lt_u32 s54, 2\ns_cbranch_scc1 {pfx}_rj\ns_branch {pfx}_end")
    def gw(d, n, addr, off):
        a(f"s_add_u32 s14, s12, {off}")
        a(f"buffer_load_dwordx{n} v[{d}:{d+n-1}], v{addr}, s[40:43], s14 offen sc1")
    def m_loads():
        for st in range(10):
            t, H = divmod(st, 5); d = F[st] + 4
            if H < 4:
                a(f"buffer_load_dwordx4 v[{d}:{d+3}], v{tX1}, s[40:43], s{8+2*t} offen offset:{1024*H} sc1")
                gw(F[st], 4, tW1, 12800 * t + 3200 * H)
            else:
                for hf in range(2):
                    a(f"buffer_load_dwordx2 v[{d+2*hf}:{d+2*hf+1}], v{tX2}, s[40:43], s{9+2*t} offen offset:{512*hf} sc1")
                    gw(F[st] + 2 * hf, 2, tW2, 12800 * t + 6400 * hf)
    redo("TLm", 16, m_loads, lambda: [mmf(st) for st in range(10)], m_out)
    def zw(d, j, o=0):
        if j < 4: a(f"ds_read_b128 v[{d}:{d+3}], v{tW1} offset:{o+6400*j}")
        else:
            for t in range(2): a(f"ds_read_b64 v[{d+2*t}:{d+2*t+1}], v{tW2} offset:{o+12800*t}")
    def zx(d, j, o=0):
        if j < 4: a(f"ds_read_b128 v[{d}:{d+3}], v{tX1} offset:{o+(j>>1)*10240+(j&1)*2048}")
        else:
            for t in range(2): a(f"ds_read_b64 v[{d+2*t}:{d+2*t+1}], v{tX2} offset:{o+4096+10240*t}")
    def zmf(j): a(f"v_mfma_f32_16x16x32_bf16 v[4:7], v[{F[j]}:{F[j]+3}], v[{F[j]+4}:{F[j]+7}], v[4:7]")
    def z_pack(O, A=4):
        a(f"v_cvt_pk_bf16_f32 v{O}, v{A}, v{A+1}\nv_cvt_pk_bf16_f32 v{O+1}, v{A+2}, v{A+3}")
        a(f"ds_bpermute_b32 v{O}, v{SR}, v{O}\nds_bpermute_b32 v{O+1}, v{SR}, v{O+1}")
    def z_out():
        z_pack(OUT)
        a("s_waitcnt lgkmcnt(0)")
        a(f"buffer_store_dwordx2 v[{OUT}:{OUT+1}], v{tO}, s[44:47], s80 offen offset:128 {ONT}")
    a.label("TLz_start")
    for j in range(5): zw(F[j], j)
    o_epilogue(a, OO, WS_OA, False)
    for p in range(8):
        if p <= 4: a(f"s_waitcnt {'vmcnt(0) ' if p == 4 else ''}lgkmcnt(0)")
        a("s_barrier")
        if p == 7: a(f"s_mov_b32 s8, {-LX}\nv_add_u32 v{tX1}, s8, v{tX1}\nv_add_u32 v{tX2}, s8, v{tX2}")
        for j in range(5): zx(F[j] + 4, j, 20480 * (p % 3) if p < 7 else 0)
        wshift(p)
        if p == 1:
            a(f"""
            v_lshrrev_b32 v{tO}, 2, v0
            v_and_b32 v3, 3, v0
            v_lshl_add_u32 v{SR}, v3, 4, v{tO}
            v_lshlrev_b32 v{SR}, 2, v{SR}
            v_mul_u32_u24 v{tO}, 2560, v{tO}
            v_lshl_add_u32 v{tO}, v3, 3, v{tO}
            """)
        if p == 7: a(f"buffer_store_dwordx2 v[12:13], v{tO}, s[44:47], s80 offen offset:{1280+128} {ONT}")
        ac = v(4 if p < 4 else 8, 4)
        for j in range(5):
            w = (5 if j < 4 else 4) if p < 7 else (5 - j if j < 4 else 0)
            c = "0" if (p % 4 == 0 and j == 0) else ac
            a(f"s_waitcnt lgkmcnt({w})\nv_mfma_f32_16x16x32_bf16 {ac}, v[{F[j]}:{F[j]+3}], v[{F[j]+4}:{F[j]+7}], {c}")
            if p < 7: zw(F[j], j, 25600 * ((p + 1) % 2))
        if p == 4:
            a(NANCHK.format("s[48:49]", 4)); z_pack(12)
    a("s_nop 7")
    a(NANCHK.format("s[50:51]", 8))
    z_pack(14, 8)
    a("s_waitcnt lgkmcnt(0)")
    a(f"buffer_store_dwordx2 v[14:15], v{tO}, s[44:47], s80 offen offset:128 {ONT}")
    a("s_or_b64 vcc, s[48:49], s[50:51]\ns_cbranch_scc1 TLz_redo")
    a.label("TLz_end")
    stamp_end(a)
    a("s_endpgm")
    def z_loads():
        for j in range(5):
            d = F[j] + 4
            if j < 4:
                a(f"buffer_load_dwordx4 v[{d}:{d+3}], v{tX1}, s[40:43], s{8+2*(j>>1)} offen offset:{2048*(j&1)} sc1")
                gw(F[j], 4, tW1, 6400 * j)
            else:
                for t in range(2):
                    a(f"buffer_load_dwordx2 v[{d+2*t}:{d+2*t+1}], v{tX2}, s[40:43], s{9+2*t} offen sc1")
                    gw(F[j] + 2 * t, 2, tW2, 12800 * t)
    redo("TLz", 4, z_loads, lambda: [zmf(j) for j in range(5)], z_out)
    a.label("AT_fallback")
    FM = BACC
    a("s_mov_b32 exec_lo, 0")
    a(f"v_mov_b32 v{QB}, 0\nv_mov_b32 v{QB+1}, 0")
    a("s_mov_b32 exec_lo, -1")
    a(f"v_mov_b32 v{FM}, 0xff800000")
    a(f"s_mov_b32 s70, {WS_KV - LKV}")
    a.label("AT_fb1")
    a(f"buffer_load_dwordx4 v[{KA}:{KA+3}], v{aKA}, s[40:43], s70 offen sc1")
    a(f"buffer_load_dwordx2 v[{KB}:{KB+1}], v{aKB}, s[40:43], s70 offen sc1")
    a("s_waitcnt vmcnt(0)")
    qka(S0); qkb(S0)
    a("s_nop 15")
    rowmax(a, S0, FM, first=False)
    a(f"s_add_u32 s70, s70, {TILE}\ns_cmp_lt_u32 s70, {WS_KV-LKV+64*TILE}\ns_cbranch_scc1 AT_fb1")
    set_m(a, FM, FM + 1, FM + 2)
    for i in range(16): a(f"v_mov_b32 v{OO+i}, 0")
    a(f"s_mov_b32 s70, {WS_KV - LKV}")
    a.label("AT_fb2")
    a(f"buffer_load_dwordx4 v[{KA}:{KA+3}], v{aKA}, s[40:43], s70 offen sc1")
    a(f"buffer_load_dwordx2 v[{KB}:{KB+1}], v{aKB}, s[40:43], s70 offen sc1")
    a(f"buffer_load_dwordx4 v[{V0}:{V0+3}], v{aV0}, s[40:43], s70 offen sc1")
    a(f"buffer_load_dwordx4 v[{V1}:{V1+3}], v{aV1}, s[40:43], s70 offen sc1")
    a("s_waitcnt vmcnt(0)")
    qka(S0); qkb(S0)
    a("s_nop 15")
    E(S0, 0, 16)
    a("s_nop 0")
    for g in range(4): C(S0, g)
    a("s_nop 1")
    pv0(); pv1()
    a(f"s_add_u32 s70, s70, {TILE}\ns_cmp_lt_u32 s70, {WS_KV-LKV+64*TILE}\ns_cbranch_scc1 AT_fb2")
    a("s_nop 15")
    a("s_branch AT_ok")

    LK = "s[62:63]"
    A_, B_, KV_, P_, WO_ = "L_issueA", "L_issueB", "L_issueKV", "L_issueP", "L_issueWo"
    a.label("L_md")
    tr_init(a); tr(a)
    p4, p8 = ("s4", "s5") if MAP48 else ("s5", "s4")
    a(f"""
    s_and_b32 s8, {p4}, 1
    s_mul_i32 s8, s8, 5
    s_and_b32 s9, {p4}, 2
    s_add_u32 s8, s8, s9
    s_and_b32 s9, {p8}, 7
    s_add_u32 s11, s8, s9
    s_cmp_ge_u32 s11, 10
    s_cselect_b32 s8, 10, 0
    s_sub_u32 s11, s11, s8
    s_mov_b32 s12, 0
    s_lshl_b32 s8, s10, 2
    s_lshl_b32 s9, s10, 3
    v_lshrrev_b32 v20, 4, v0
    v_add_u32 v20, s8, v20
    v_xor_b32 v20, v20, v0
    v_and_b32 v20, 7, v20
    v_lshlrev_b32 v20, 4, v20
    v_lshrrev_b32 v21, 3, v0
    v_add_u32 v21, s9, v21
    v_mul_u32_u24 v21, 1280, v21
    v_add_u32 v2, v20, v21
    s_mov_b32 s8, 1120
    """)
    for p in range(5):
        a(f"v_add_u32 v20, {64*p}, v0")
        a(f"v_mul_u32_u24 v{22+p}, 6554, v20")
        a(f"v_lshrrev_b32 v{22+p}, 16, v{22+p}")
        a(f"v_lshlrev_b32 v20, 4, v20")
        a(f"v_mad_u32_u24 v{3+p}, v{22+p}, s8, v20")
    a("s_mul_i32 s64, s5, 160")
    a(f"s_mul_i32 s65, s10, {32*1280}")
    a("s_add_u32 s65, s65, s64")
    srd(a, 48, 18, 640 * 1280)
    call(a, A_, LK)
    a("s_waitcnt vmcnt(9)"); bar(a)
    call(a, A_, LK); call(a, A_, LK)
    a("s_mov_b32 s70, 0")
    a.label("L_a")
    a("s_waitcnt vmcnt(18)"); bar(a); call(a, A_, LK)
    a("s_add_u32 s70, s70, 1\ns_cmp_lt_u32 s70, 7\ns_cbranch_scc1 L_a")
    srd(a, 40, 36, WS_SIZE)
    srd(a, 72, 26, XBYTES)
    srd(a, 76, 28, 640 * 3840)
    a("s_waitcnt vmcnt(18)"); bar(a)
    a("s_mov_b32 s8, 2560\ns_mov_b32 s9, 1280")
    for p in range(5):
        a(f"v_mad_u32_u24 v{8+p}, v{22+p}, s8, v{3+p}")
        a(f"v_lshrrev_b32 v20, 1, v{22+p}")
        a(f"v_mad_u32_u24 v{13+p}, v20, s9, v{3+p}")
    a(f"s_mul_i32 s66, s10, {32*3840}")
    a("s_add_u32 s66, s66, s64")
    a("s_add_u32 s67, s66, 1280")
    get_nonce(a, "v30", "v31")
    a("s_waitcnt vmcnt(9)"); bar(a)
    a("s_waitcnt vmcnt(0)"); bar(a)
    a("s_mov_b32 s12, 0")
    a("s_add_u32 s69, s5, s4\ns_and_b32 s69, s69, 3")
    a("s_cmp_eq_u32 s10, 1")
    a("s_cbranch_scc1 L1_path")
    a(f"s_add_u32 s60, s7, {4 if BS >= 2 else 3}\ns_and_b32 s60, s60, 15")
    a(f"s_mov_b32 s61, {LKV if BS >= 2 else LKV + 3*CH}")
    a("s_lshl_b32 s56, s4, 7\ns_lshl_b32 s57, s5, 2\ns_add_u32 s57, s57, s56")
    a("v_lshlrev_b32 v19, 2, v0")

    pad(a, "b0")
    B1_, B2_ = "L_issueB1", "L_issueB2"
    a(f"v_mov_b32 v33, {LMISC}")
    bar(a); gs(a, 8); call(a, B1_, LK)
    bar(a); call(a, B2_, LK)
    a("s_mov_b32 s9, 0")
    a.label("L0_c0")
    a("ds_read_b32 v32, v33 offset:4\ns_add_u32 s9, s9, 1\ns_waitcnt lgkmcnt(0)\nv_readfirstlane_b32 s8, v32")
    a(f"s_cmp_gt_u32 s9, {SPIN_MAX}\ns_cbranch_scc1 L0_c1\ns_cmp_ge_u32 s8, 8\ns_cbranch_scc1 L0_c1\ns_sleep 2\ns_branch L0_c0")
    a.label("L0_c1")
    tr(a)
    call(a, KV_, LK); call(a, B_, LK)
    tr(a)
    pad(a, "f0")
    a("s_waitcnt vmcnt(19)"); bar(a); call(a, B_, LK); call(a, KV_, LK)
    a("s_waitcnt vmcnt(30)"); bar(a); call(a, B_, LK); call(a, KV_, LK)
    a("s_waitcnt vmcnt(30)"); bar(a); call(a, B_, LK); call(a, KV_, LK)
    a("s_mov_b32 s70, 0")
    a.label("L0_f")
    a("s_waitcnt vmcnt(30)"); bar(a); call(a, B_, LK)
    a("s_waitcnt vmcnt(19)"); bar(a); call(a, B_, LK); call(a, KV_, LK)
    a("s_add_u32 s70, s70, 1\ns_cmp_lt_u32 s70, 2\ns_cbranch_scc1 L0_f")
    a("s_waitcnt vmcnt(30)"); bar(a); call(a, B_, LK)
    a("s_waitcnt vmcnt(19)"); bar(a); call(a, KV_, LK)
    pad(a, "f9")
    a("s_waitcnt vmcnt(11)"); bar(a)
    a(f"s_mov_b32 s12, 0\ns_mul_i32 s64, s5, 102400\ns_add_u32 s64, s64, {WS_WPB}")
    bar(a); call(a, KV_, LK)
    a("s_waitcnt vmcnt(11)"); bar(a); call(a, KV_, LK)
    a("s_waitcnt vmcnt(11)"); bar(a); call(a, KV_, LK); call(a, WO_, LK)
    a("s_waitcnt vmcnt(0)"); bar(a); call(a, KV_, LK); call(a, WO_, LK); call(a, WO_, LK)
    a("s_waitcnt vmcnt(50)"); bar(a); call(a, KV_, LK)
    a("s_waitcnt vmcnt(11)"); bar(a); call(a, WO_, LK)
    a("s_waitcnt vmcnt(25)"); bar(a)
    a(f"s_add_u32 s13, s13, {WS_OB}")
    a(f"s_mov_b32 s61, {LX}")
    a(f"s_add_u32 s8, s56, {FL_HB}")
    poll(a, "s8", 8)
    call(a, P_, LK)
    pad(a, "b16")
    bar(a)
    gs(a, 9)
    call(a, P_, LK)
    a(f"s_add_u32 s70, s57, {FL_H}\ns_add_u32 s71, s56, {FL_H}")
    pad(a, "t0")
    a("s_waitcnt vmcnt(20)"); bar(a)
    publish(a, "s70", "v30", "v31")
    call(a, P_, LK)
    a("s_waitcnt vmcnt(21)"); bar(a)
    call(a, P_, LK)
    a(f"s_sub_u32 s13, s13, {WS_OB - WS_OA}")
    set_exec(a, 8)
    a("buffer_load_dword v32, v19, s[40:43], s71 offen sc1\ns_mov_b64 exec, -1")
    a("s_waitcnt vmcnt(21)"); bar(a)
    set_exec(a, 8)
    a("s_waitcnt vmcnt(0)\nv_cmp_ne_u32 vcc, s96, v32\ns_nop 1\ns_cbranch_vccz L0_go")
    a("buffer_load_dword v32, v19, s[40:43], s71 offen sc1\ns_waitcnt vmcnt(0)\nv_cmp_ne_u32 vcc, s96, v32\ns_mov_b64 exec, -1")
    a("s_cbranch_vccnz L0_late")
    a.label("L0_go")
    a("s_mov_b64 exec, -1")
    call(a, P_, LK)
    bar(a)
    a("s_branch L0_join")
    a.label("L0_late")
    bar(a)
    poll(a, "s71", 8)
    call(a, P_, LK)
    a.label("L0_join")
    gs(a, 7)
    call(a, P_, LK)
    pad(a, "t4")
    a("s_waitcnt vmcnt(20)"); bar(a)
    call(a, P_, LK)
    a("s_waitcnt vmcnt(20)"); bar(a)
    a("s_waitcnt vmcnt(0)"); bar(a)
    pad(a, "t7")
    a("s_waitcnt vmcnt(0)"); bar(a)
    pad(a, "end")
    tr_dump(a)
    a("s_endpgm")
    a.label("L1_path")
    srd(a, 48, 24, 640 * 1280)
    srd(a, 52, 30, 640 * 1280)
    a("s_lshl_b32 s56, s5, 5\ns_add_u32 s57, s56, s4")
    a(f"s_mul_i32 s68, s57, {PST}\ns_add_u32 s68, s68, {WS_KVP}")
    a("s_lshl_b32 s56, s5, 9\ns_lshr_b32 s8, s4, 3\ns_lshl_b32 s8, s8, 7\ns_and_b32 s57, s4, 7\ns_lshl_b32 s57, s57, 2\ns_add_u32 s57, s57, s8\ns_add_u32 s57, s57, s56")
    a("v_lshrrev_b32 v19, 3, v0\nv_lshlrev_b32 v19, 7, v19\nv_and_b32 v28, 7, v0\nv_lshl_add_u32 v19, v28, 2, v19")
    a(f"""
    v_lshrrev_b32 v48, 4, v0
    v_mul_u32_u24 v48, {8*PST}, v48
    v_and_b32 v49, 15, v0
    v_min_u32 v47, 13, v49
    v_lshl_add_u32 v48, v47, 4, v48
    v_lshlrev_b32 v49, 3, v49
    v_lshlrev_b32 v46, 7, v0
    """)
    for i in range(4): a(f"v_mov_b32 v{52+i}, -1")
    a(f"""
    v_bfe_u32 v20, v0, 2, 2
    v_mul_u32_u24 v20, 160, v20
    v_and_b32 v21, 3, v0
    v_lshl_add_u32 v20, v21, 3, v20
    v_add_u32 v20, {LRP}, v20
    v_lshrrev_b32 v21, 5, v0
    v_bfe_u32 v28, v0, 4, 1
    v_mul_u32_u24 v41, 1280, v21
    v_lshl_add_u32 v41, v28, 5, v41
    v_add_u32 v41, v41, v20
    v_mul_u32_u24 v42, 1280, v28
    v_add_u32 v42, v42, v20
    v_lshrrev_b32 v21, 4, v0
    v_lshl_add_u32 v43, v21, 5, v20
    v_lshlrev_b32 v44, 3, v0
    """)
    bar(a); call(a, B1_, LK)
    bar(a); call(a, B2_, LK)
    a(f"s_mov_b32 m0, {LRP}\ns_mul_i32 s8, s4, {20*1280}\ns_add_u32 s8, s8, s64")
    for sr in (52, 48):
        for p in range(4):
            dma(a, f"v{3+p}", sr, "s8")
            a("s_add_u32 m0, m0, 1024\ns_nop 0")
    call(a, B_, LK)
    a("s_waitcnt vmcnt(19)")
    for m in range(2):
        d, o = 100 + 16 * m, 4096 * m
        for blk in range(2):
            for hf in range(2): a(f"ds_read_b64_tr_b16 v[{d+4*blk+2*hf}:{d+4*blk+2*hf+1}], v41 offset:{o+64*blk+640*hf}")
        for hf in range(2): a(f"ds_read_b64_tr_b16 v[{d+8+2*hf}:{d+9+2*hf}], v42 offset:{o+128+640*hf}")
        a(f"ds_read_b64_tr_b16 v[{d+12}:{d+13}], v43 offset:{o+2560}")
        a(f"ds_read_b64_tr_b16 v[{d+14}:{d+15}], v43 offset:{o+2560+128}")
    a("s_waitcnt lgkmcnt(0)")
    bar(a); call(a, B_, LK)
    a("s_waitcnt vmcnt(19)"); bar(a); call(a, B_, LK)
    a("s_waitcnt vmcnt(19)"); bar(a); call(a, B_, LK)
    a("s_waitcnt vmcnt(19)"); bar(a); call(a, B_, LK)
    a(f"s_mul_i32 s64, s5, 102400\ns_mul_i32 s8, s4, 3200\ns_add_u32 s8, s8, s64\ns_add_u32 s9, s8, {WS_WPA}\ns_add_u32 s8, s8, {WS_WPB}\ns_add_u32 s64, s64, {WS_WPA}")
    for m in range(2):
        d = 100 + 16 * m
        a(f"buffer_store_dwordx4 v[{d}:{d+3}], v18, s[40:43], s{8+m} offen sc1")
        a(f"buffer_store_dwordx4 v[{d+4}:{d+7}], v18, s[40:43], s{8+m} offen offset:1024 sc1")
        a(f"buffer_store_dwordx2 v[{d+12}:{d+13}], v44, s[40:43], s{8+m} offen offset:2560 sc1")
    set_exec(a, 32)
    for m in range(2): a(f"buffer_store_dwordx4 v[{108+16*m}:{111+16*m}], v18, s[40:43], s{8+m} offen offset:2048 sc1")
    set_exec(a, 16)
    for m in range(2): a(f"buffer_store_dwordx2 v[{114+16*m}:{115+16*m}], v44, s[40:43], s{8+m} offen offset:3072 sc1")
    a("s_mov_b64 exec, -1")
    a("s_waitcnt vmcnt(29)"); bar(a); call(a, B_, LK)
    a("s_waitcnt vmcnt(29)"); bar(a); call(a, B_, LK)
    a(f"s_lshl_b32 s60, s5, 12\ns_add_u32 s60, s60, {WS_KVZ}\ns_mul_i32 s61, s4, 112\ns_add_u32 s61, s61, s60")
    set_exec(a, 14)
    a("buffer_store_dwordx2 v[52:53], v49, s[40:43], s61 offen sc1")
    a("s_add_u32 s65, s68, 4096")
    set_exec(a, 40)
    a("buffer_store_dwordx4 v[52:55], v18, s[40:43], s65 offen offset:2048 sc1")
    a("s_mov_b64 exec, -1")
    for i in range(6):
        a(f"buffer_store_dwordx4 v[52:55], v18, s[40:43], {'s68' if i < 4 else 's65'} offen offset:{1024*(i%4)} sc1")
    a("s_waitcnt vmcnt(27)"); bar(a); call(a, B_, LK)
    a("s_waitcnt vmcnt(19)"); bar(a)
    a(f"s_add_u32 s8, s57, {FL_P}")
    publish(a, "s8", "v30", "v31")
    call(a, B_, LK)
    a("s_waitcnt vmcnt(19)"); bar(a)
    a("s_waitcnt vmcnt(0)"); bar(a)
    def nanfill():
        a(f"s_mul_i32 s8, s5, 10240\ns_add_u32 s8, s8, s13\ns_add_u32 s9, s8, {WS_OB}")
        for i in range(10):
            if i in (4, 8): a("s_add_u32 s8, s8, 4096\ns_add_u32 s9, s9, 4096")
            for r in ("s8", "s9"): a(f"buffer_store_dwordx4 v[52:55], v18, s[40:43], {r} offen offset:{1024*(i%4)} sc1")
    a(f"s_add_u32 s8, s56, {FL_P}")
    poll(a, "s8", 32)
    a(f"s_and_b32 s8, s4, {3 if MAP48 else 7}\ns_mul_i32 s8, s8, {25600 if MAP48 else 12800}\ns_add_u32 s8, s8, s64\ns_mov_b32 exec_hi, 0x3ffff")
    for i, o in enumerate((0, 6400, 6400, 6400, WS_WPB - WS_WPA - 19200, 6400, 6400, 6400) if MAP48 else (0, 6400, WS_WPB - WS_WPA - 6400, 6400)):
        a(f"s_add_u32 s8, s8, {o}\nbuffer_load_dword v{140+i}, v46, s[40:43], s8 offen sc1")
    a("s_mov_b32 exec_hi, -1")
    nanfill()
    R = 60
    a(f"s_min_u32 s9, s4, 29\ns_mul_i32 s9, s9, 224\ns_mul_i32 s70, s5, {32*PST}\ns_add_u32 s70, s70, s9\ns_add_u32 s70, s70, {WS_KVP}")
    bar(a); bar(a)
    for i in range(7):
        a(f"ds_read_b128 v[{R+4*i}:{R+3+4*i}], v18 offset:{LPART+1024*i}")
    for i in range(7):
        a(f"s_waitcnt lgkmcnt({6-i})")
        if i == 6: a("s_mov_b32 exec_hi, 15")
        a(f"buffer_store_dwordx4 v[{R+4*i}:{R+3+4*i}], v18, s[40:43], {'s68' if i < 4 else 's65'} offen offset:{1024*(i%4)} sc1")
    a("s_mov_b32 exec_hi, -1")
    bar(a)
    a("s_sleep 8")
    a("s_mov_b32 s9, 0")
    Q = 100
    a.label("L1_p")
    a("s_mov_b32 s8, s70")
    for i in range(8):
        a(f"buffer_load_dwordx4 v[{Q+4*i}:{Q+3+4*i}], v48, s[40:43], s8 offen sc1")
        a(f"s_add_u32 s8, s8, {PST}")
    a("s_cmp_lg_u32 s9, 0\ns_cbranch_scc1 L1_p2")
    bar(a)
    a.label("L1_p2")
    a("s_add_u32 s9, s9, 1\ns_waitcnt vmcnt(0)")
    for i in range(4):
        for j in (0, 2): a(f"v_pk_add_f32 v[{R+4*i+j}:{R+1+4*i+j}], v[{Q+4*i+j}:{Q+1+4*i+j}], v[{Q+16+4*i+j}:{Q+17+4*i+j}]")
    for half in (2, 1):
        for i in range(half):
            for j in (0, 2): a(f"v_pk_add_f32 v[{R+4*i+j}:{R+1+4*i+j}], v[{R+4*i+j}:{R+1+4*i+j}], v[{R+4*(i+half)+j}:{R+1+4*(i+half)+j}]")
    a(f"v_pk_add_f32 v[30:31], v[{R}:{R+1}], v[{R+2}:{R+3}]\nv_cmp_u_f32 vcc, v30, v31\ns_nop 1\ns_cbranch_vccz L1_pd")
    a(f"v_max_u32 v30, v{Q}, v{Q+1}")
    for i in range(1, 16): a(f"v_max3_u32 v30, v30, v{Q+2*i}, v{Q+2*i+1}")
    a("v_cmp_eq_u32 vcc, -1, v30")
    a(f"s_cmp_gt_u32 s9, {SPIN_MAX}\ns_cbranch_scc1 L1_pd\ns_cbranch_vccz L1_pd\ns_sleep 1\ns_branch L1_p")
    a.label("L1_pd")
    for op in ("v_permlane32_swap_b32", "v_permlane16_swap_b32"):
        for j in range(4): a(f"v_mov_b32 v{R+4+j}, v{R+j}")
        a("s_nop 1")
        for j in range(4): a(f"{op} v{R+j}, v{R+4+j}")
        a("s_nop 1")
        for j in range(4): a(f"v_add_f32 v{R+j}, v{R+j}, v{R+4+j}")
    a(f"""
    v_cvt_pk_bf16_f32 v{R}, v{R}, v{R+1}
    v_cvt_pk_bf16_f32 v{R+1}, v{R+2}, v{R+3}
    v_min_u32 v{R}, -2, v{R}
    v_min_u32 v{R+1}, -2, v{R+1}
    s_mov_b32 exec_lo, 0x3fff
    s_mov_b32 exec_hi, 0
    buffer_store_dwordx2 v[{R}:{R+1}], v49, s[40:43], s61 offen sc1
    s_mov_b64 exec, -1
    """)
    for i in range(4): a(f"v_mov_b32 v{Q+12+i}, 0")
    a(f"v_add_u32 v50, {LKVZ}, v18")
    bar(a)
    a("s_mov_b32 s9, 0")
    a.label("L1_g")
    for i in range(4):
        if i == 3: set_exec(a, 18)
        a(f"buffer_load_dwordx4 v[{Q+4*i}:{Q+3+4*i}], v18, s[40:43], s60 offen offset:{1024*i} sc1")
    a("s_mov_b64 exec, -1")
    a("s_add_u32 s9, s9, 1\ns_waitcnt vmcnt(0)")
    a(f"v_max_u32 v30, v{Q}, v{Q+1}")
    for i in range(1, 8): a(f"v_max3_u32 v30, v30, v{Q+2*i}, v{Q+2*i+1}")
    a("v_cmp_eq_u32 vcc, -1, v30")
    a(f"s_cmp_gt_u32 s9, {SPIN_MAX}\ns_cbranch_scc1 L1_gd\ns_cbranch_vccz L1_gd\ns_sleep 1\ns_branch L1_g")
    a.label("L1_gd")
    for i in range(4): a(f"ds_write_b128 v50, v[{Q+4*i}:{Q+3+4*i}] offset:{1024*i}")
    a("s_waitcnt lgkmcnt(0)")
    bar(a)
    a("s_mov_b32 s12, 0")
    bar(a); bar(a)
    a(f"s_lshl_b32 s70, s4, 7\ns_lshl_b32 s8, s5, 2\ns_add_u32 s70, s70, s8\ns_add_u32 s71, s70, {FL_OB}\ns_add_u32 s70, s70, {FL_OA}")
    bar(a); call(a, WO_, LK)
    bar(a); call(a, WO_, LK)
    a("s_waitcnt vmcnt(38)"); bar(a); call(a, WO_, LK)
    a("s_waitcnt vmcnt(38)"); bar(a); call(a, WO_, LK)
    a("s_add_u32 s69, s69, 3\ns_and_b32 s69, s69, 3\ns_mov_b32 s61, 0")
    a("s_waitcnt vmcnt(40)"); bar(a)
    call(a, P_, LK)
    publish(a, "s70", "v30", "v31"); publish(a, "s71", "v30", "v31")
    a("s_waitcnt vmcnt(47)"); bar(a)
    a("s_waitcnt vmcnt(22)"); bar(a)
    a("s_waitcnt vmcnt(2)"); bar(a)
    tr_dump(a)
    a.label("L_end")
    a("s_endpgm")
    a.label(A_)
    issue_x(a, 44, "s13", "s12")
    issue_w(a, 48, 3, 1280, "s65", "s12", IMG_W)
    wrap_inc(a, "s11", 1, 10); wrap_inc(a, "s12", HS, 6 * HS)
    a("s_setpc_b64 s[62:63]")
    a.label("L_issueB1")
    issue_x(a, 72, "s13", "s12")
    issue_w(a, 76, 8, 3840, "s66", "s12", IMG_W)
    a("s_setpc_b64 s[62:63]")
    a.label(B_)
    issue_x(a, 72, "s13", "s12")
    issue_w(a, 76, 8, 3840, "s66", "s12", IMG_W)
    a.label("L_issueB2")
    issue_w(a, 76, 13, 3840, "s67", "s12", IMG_KV, periods=2, rows_per_period=16)
    wrap_inc(a, "s11", 1, 10); wrap_inc(a, "s12", SLOT, 3 * SLOT)
    a("s_setpc_b64 s[62:63]")
    def lin(n):
        for i in range(n):
            if i % 4 == 0 and i > 0:
                a("s_add_u32 m0, m0, 4096")
                a("s_add_u32 s14, s14, 4096")
            a(f"buffer_load_dwordx4 v18, s[40:43], s14 offen offset:{1024*(i%4)} sc1 lds")
    a.label(KV_)
    a("s_mov_b32 m0, s61")
    a(f"s_mul_i32 s14, s60, {CH}")
    a(f"s_add_u32 s14, s14, {WS_KV}")
    lin(11)
    a("s_add_u32 s60, s60, 1\ns_and_b32 s60, s60, 15")
    wrap_inc(a, "s61", CH, LKV + 4 * CH, LKV)
    a("s_setpc_b64 s[62:63]")
    a.label(P_)
    a("s_mov_b32 m0, s61")
    a("s_mul_i32 s14, s69, 20480")
    a("s_add_u32 s14, s14, s13")
    lin(20)
    a("s_add_u32 s69, s69, 1\ns_and_b32 s69, s69, 3")
    wrap_inc(a, "s61", 20480, LX + 3 * 20480, LX)
    a("s_setpc_b64 s[62:63]")
    a.label(WO_)
    a("s_mov_b32 m0, s12")
    a("s_mul_i32 s14, s69, 25600")
    a("s_add_u32 s14, s14, s64")
    lin(25)
    a("s_add_u32 s69, s69, 1\ns_and_b32 s69, s69, 3")
    a("s_add_u32 s12, s12, 25600")
    a("s_setpc_b64 s[62:63]")
    a.label("L_codeend")

def main(out):
    a = Asm()
    a.lines.append(f"; @launch grid=(256,1,1) block=(640,1,1) lds={LDS_TOTAL}")
    a('.amdgcn_target "amdgcn-amd-amdhsa--gfx950"')
    a(".text")
    gen(a)
    a('.section .rodata,"a"')
    open(out, "w").write(a.text() + descriptor(NAME + "_kernel", NV, 102))

if __name__ == "__main__":
    main(sys.argv[1] if len(sys.argv) > 1 else f"cdna_kernels/{NAME}.s")
```

```python
import sys, struct, os
from asmlib import *

NAME = "concat_heads__grouped_kv_mqa__linear_attn_block__prompt"
STAMP = bool(os.environ.get("STAMP"))
OPT = dict(kv.split("=") for kv in os.environ.get("OPT", "").split(",") if kv)
PFB = int(OPT.get("pfb", 0))
ONT = OPT.get("ont", "nt")
MAP48 = int(OPT.get("map48", 0))
BS = 3
WS_OA, WS_OB, WS_KV, WS_KVP, WS_KVZ = 0x0, 0x280000, 0x500000, 0xA00000, 0x700000
PST = 6784
FL_KV, FL_P, FL_H, FL_OB, FL_OA = 0x718000, 0x720000, 0x728000, 0x730000, 0x738000
FL_HB = 0x72C000
LCNT = LMISC_ = 163840 - 8
FORCE_REDO = int(OPT.get('redo', 0))
WS_WPB, WS_WPA = 0x740000, 0x740000 + 8 * 102400
WS_ST = 0x900000
WS_SIZE = 0xE00000
TILE = 2816
CH = 4 * TILE
XBYTES = 2048 * 1280
SLOT = 38912
HS = SLOT // 2
IMG_W, IMG_KV = 8192, 18432
LKV = 3 * SLOT
LMISC = 163840 - 16
LKVZ = 112640
LMX = LKV
LWKV = LKV + 20480
LQ = 2 * SLOT
LFR, LPQ, LPART = SLOT, SLOT + 20480, 0
LX = 102400
LRP = 2 * SLOT + 28672
LDS_TOTAL = 163840
SPIN_MAX = 1 << 17
def f32(x): return "0x%08x" % struct.unpack("<I", struct.pack("<f", x))[0]
LOG2E = 1.4426950408889634
CSCALE = LOG2E / (20 ** 0.5)

S0, S1, PP, KA, KB, QB, V0, V1, QA, OO, BACC, BFR = 4, 20, 36, 44, 48, 50, 52, 56, 60, 64, 80, 112
aKA, aKB, aV0, aV1, bW, bX = 136, 137, 138, 139, 140, 141
OAD0, OAD1 = 145, 146
PWR = 147
JA, JB, QF0, QF1, AP0, AP1 = 151, 152, 153, 154, 155, 156
tW1, tW2, tX1, tX2, tO, TL0, TL1 = 157, 158, 159, 160, 161, 162, 163
TLQ = [162, 163, 165, 166]
NV = 167
CPF4 = int(OPT.get('cpf4', 1))
PQA, PQB = 128, 132
T = 4
AFR = [BFR, BFR + 12, 36, 48]
AACC = 4
MASKS = [92, 94, 98, 100]
POS = [[0, 1, 3, 4, 2], [1, 2, 0, 3, 4], [2, 3, 4, 0, 1], [3, 4, 0, 2, 1]]
INV = [[POS[r].index(p) for p in range(5)] for r in range(4)]
def pack3(tab):
    x = 0
    for r in range(4):
        for j in range(5): x |= tab[r][j] << (3 * (5 * r + j))
    return x

def tr(a):
    if not STAMP: return
    a("""
    s_waitcnt lgkmcnt(0)
    s_sub_u32 s90, s88, s84
    s_memtime s[88:89]
    s_mov_b32 m0, s85
    s_add_u32 s85, s85, 1
    v_writelane_b32 v40, s90, m0
    """)
def tr_init(a):
    if STAMP: a("s_mov_b32 s85, 0\nv_mov_b32 v40, 0\ns_mov_b32 s88, s84")
def tr_dump(a):
    if not STAMP: return
    tr(a)
    a(f"""
    s_lshl_b32 s8, s2, 1
    s_add_u32 s8, s8, s10
    s_lshl_b32 s8, s8, 8
    s_add_u32 s8, s8, {WS_ST + 0x40000}
    v_lshlrev_b32 v8, 2, v0
    buffer_store_dword v40, v8, s[40:43], s8 offen
    """)
def stamp_end(a):
    if not STAMP: return
    a(f"""
    s_memtime s[12:13]
    s_waitcnt vmcnt(0)
    s_memtime s[88:89]
    s_memrealtime s[90:91]
    s_waitcnt lgkmcnt(0)
    s_mov_b64 exec, -1
    s_sub_u32 s88, s88, s84
    s_sub_u32 s12, s12, s84
    v_mov_b32 v4, s86
    v_mov_b32 v5, s90
    v_mov_b32 v6, s88
    v_mov_b32 v7, s12
    s_lshl_b32 s8, s2, 4
    s_add_u32 s8, s8, s3
    s_lshl_b32 s8, s8, 4
    s_add_u32 s8, s8, {WS_ST}
    v_mov_b32 v8, 0
    buffer_store_dwordx4 v[4:7], v8, s[40:43], s8 offen
    """)
    for i in range(8): a(f"s_sub_u32 s{16+2*i}, s{16+2*i}, s84\nv_mov_b32 v{12+i}, s{16+2*i}")
    a(f"s_sub_u32 s8, s8, {WS_ST}\ns_lshl_b32 s8, s8, 1\ns_add_u32 s8, s8, {WS_ST + 0xC0000}")
    a("buffer_store_dwordx4 v[12:15], v8, s[40:43], s8 offen\nbuffer_store_dwordx4 v[16:19], v8, s[40:43], s8 offen offset:16")
CTP = OPT.get("ct", "").split("+")
def ct(a, name):
    if STAMP and name in CTP:
        i = CTP.index(name)
        a(f"s_memtime s[{16+2*i}:{17+2*i}]")
def gs(a, idx, t0="v36", t1="v37"):
    if not STAMP: return
    a(f"""
    s_memrealtime s[14:15]
    s_waitcnt lgkmcnt(0)
    v_mov_b32 {t0}, s14
    s_lshl_b32 s14, s2, 6
    s_add_u32 s14, s14, {WS_ST + 0x80000 + 4*idx}
    v_mov_b32 {t1}, 0
    buffer_store_dword {t0}, {t1}, s[40:43], s14 offen
    """)
def pad(a, where):
    p = OPT.get("pad", "")
    if not p.startswith(where + ":"): return
    l = a.newlabel("Lpad")
    a.label(l)
    a(f"s_memrealtime s[14:15]\ns_waitcnt lgkmcnt(0)\ns_sub_u32 s14, s14, s96\ns_cmp_lt_u32 s14, {p.split(':')[1]}\ns_cbranch_scc1 {l}")
def bar(a):
    a("s_barrier"); tr(a)

def dma(a, voff, srdi, soff, extra=""):
    a(f"buffer_load_dwordx4 {voff}, s[{srdi}:{srdi+3}], {soff} offen {extra} lds")
def issue_x(a, srdi, sbase, lds_sgpr):
    a(f"s_lshl_b32 s15, s10, 10")
    a(f"s_add_u32 m0, s15, {lds_sgpr}")
    a(f"s_lshl_b32 s14, s11, 7")
    a(f"s_add_u32 s14, s14, {sbase}")
    for jj in range(4):
        dma(a, "v2", srdi, "s14")
        if jj < 3:
            a("s_add_u32 m0, m0, 2048")
            a("s_add_u32 s14, s14, 20480")
def issue_w(a, srdi, voffs, ld, sbase, lds_sgpr, ldsoff, periods=1, rows_per_period=32):
    a(f"s_mul_i32 s15, s10, {5120*periods}")
    a(f"s_add_u32 s15, s15, {lds_sgpr}")
    a(f"s_add_u32 m0, s15, {ldsoff}")
    a(f"s_mul_i32 s14, s11, {64*ld}")
    a(f"s_add_u32 s14, s14, {sbase}")
    for per in range(periods):
        for p in range(5):
            dma(a, f"v{voffs+p}", srdi, "s14")
            if not (per == periods - 1 and p == 4):
                a("s_add_u32 m0, m0, 1024")
                a(f"s_add_u32 s14, s14, {rows_per_period*ld}" if p == 4 else "s_nop 0")
def wrap_inc(a, reg, step, limit, base=0):
    a(f"s_add_u32 {reg}, {reg}, {step}")
    a(f"s_cmp_eq_u32 {reg}, {limit}")
    a(f"s_cselect_b32 {reg}, {base}, {reg}")
def set_exec(a, n):
    m = (1 << n) - 1
    a(f"s_mov_b32 exec_lo, {m & 0xffffffff:#x}\ns_mov_b32 exec_hi, {m >> 32:#x}")
def poll(a, soff, nlanes, tmp="v30", addr="v19"):
    lp, dn = a.newlabel("Lpoll"), a.newlabel("Lpd")
    set_exec(a, nlanes)
    a("s_mov_b32 s9, 0")
    a.label(lp)
    a(f"buffer_load_dword {tmp}, {addr}, s[40:43], {soff} offen sc1")
    a("s_add_u32 s9, s9, 1")
    a("s_waitcnt vmcnt(0)")
    a(f"v_cmp_ne_u32 vcc, s96, {tmp}")
    a(f"s_cmp_gt_u32 s9, {SPIN_MAX}")
    a(f"s_cbranch_scc1 {dn}")
    a(f"s_cbranch_vccz {dn}")
    a("s_sleep 1")
    a(f"s_branch {lp}")
    a.label(dn)
    a("s_mov_b64 exec, -1")
def publish(a, soff, tmp, zero):
    a(f"v_mov_b32 {tmp}, s96")
    a(f"v_mov_b32 {zero}, 0")
    a("s_mov_b64 exec, 1")
    a(f"buffer_store_dword {tmp}, {zero}, s[40:43], {soff} offen sc1")
    a("s_mov_b64 exec, -1")
def get_nonce(a, tmp, addr):
    a(f"v_mov_b32 {addr}, {LMISC}")
    a(f"ds_read_b32 {tmp}, {addr}")
    a("s_waitcnt lgkmcnt(0)")
    a(f"v_readfirstlane_b32 s96, {tmp}")
def call(a, lbl, link="s[58:59]"):
    a(f"s_call_b64 {link}, {lbl}")
def pf_rows(a, vd, ld, s0, s1):
    a(f"""
    v_mul_u32_u24 v{vd}, 52429, v0
    v_lshrrev_b32 v{vd}, 18, v{vd}
    v_mul_u32_u24 v{vd+1}, 5, v{vd}
    v_sub_u32 v{vd+1}, v0, v{vd+1}
    v_mul_u32_u24 v{vd}, {ld}, v{vd}
    v_lshl_add_u32 v{vd}, v{vd+1}, 7, v{vd}
    s_mul_i32 {s0}, s7, {20*ld}
    s_and_b32 s8, s6, 1
    s_mul_i32 s8, s8, 640
    s_add_u32 {s0}, {s0}, s8
    s_add_u32 {s1}, {s0}, {10*ld}
    """)
def pf_x(a, srdi, vaddr, vd):
    a(f"""
    s_lshr_b32 s8, s6, 1
    s_mul_i32 s8, s8, {512*1280}
    s_mul_i32 s9, s7, 20480
    s_add_u32 s8, s8, s9
    s_add_u32 s9, s8, 8192
    buffer_load_dword v{vd}, {vaddr}, s[{srdi}:{srdi+3}], s8 offen
    buffer_load_dword v{vd+1}, {vaddr}, s[{srdi}:{srdi+3}], s9 offen
    s_add_u32 s9, s8, 16384
    s_mov_b32 exec_hi, 0
    buffer_load_dword v{vd+2}, {vaddr}, s[{srdi}:{srdi+3}], s9 offen
    s_mov_b32 exec_hi, -1
    """)

def phi_sub(a):
    a.label("g_pack")
    a("s_mov_b64 exec, -1")
    for i in range(16):
        a(f"v_cvt_pk_bf16_f32 v{BACC+i}, v{BACC+2*i}, v{BACC+2*i+1}")
    a("s_setpc_b64 s[58:59]")
def read_qfrag(a, qa, qb):
    a(f"ds_read_b128 v[{qa}:{qa+3}], v{QF1}")
    a(f"ds_read_b64 v[{qb}:{qb+1}], v{QF0}")
def o_epilogue(a, O, wsoff, eps):
    if eps:
        a(f"v_add_f32 v{O+12}, {f32(1e-6)}, v{O+12}")
    a(f"v_rcp_f32 v{O+12}, v{O+12}")
    a(f"s_add_u32 s8, s81, {wsoff}")
    a(f"s_add_u32 s9, s82, {wsoff}")
    for i in range(0, 12, 2):
        a(f"v_pk_mul_f32 v[{O+i}:{O+i+1}], v[{O+i}:{O+i+1}], v[{O+12}:{O+13}] op_sel_hi:[1,0]")
    for i in range(6):
        a(f"v_cvt_pk_bf16_f32 v{O+i}, v{O+2*i}, v{O+2*i+1}")
    a(f"buffer_store_dwordx4 v[{O}:{O+3}], v{OAD1}, s[40:43], s8 offen sc1")
    a("s_mov_b32 exec_hi, 0")
    a(f"buffer_store_dwordx2 v[{O+4}:{O+5}], v{OAD0}, s[40:43], s9 offen sc1")
    a("s_mov_b32 exec_hi, -1")
def rowmax(a, S, dst, first=True):
    regs = [f"v{S+i}" for i in range(16)]
    if first:
        a(f"v_max3_f32 v{dst}, {regs[0]}, {regs[1]}, {regs[2]}")
        rest = regs[3:]
    else:
        rest = regs
    while len(rest) >= 2:
        a(f"v_max3_f32 v{dst}, v{dst}, {rest[0]}, {rest[1]}")
        rest = rest[2:]
    if rest:
        a(f"v_max_f32 v{dst}, v{dst}, {rest[0]}")
def set_m(a, m, tmp, keep):
    a(f"""
    v_mov_b32 v{tmp}, v{m}
    s_nop 1
    v_permlane32_swap_b32 v{m}, v{tmp}
    s_nop 1
    v_max_f32 v{keep}, v{m}, v{tmp}
    s_mov_b32 exec_lo, 0
    v_sub_f32 v{m}, 0, v{keep}
    v_and_b32 v{tmp}, 0xffff0000, v{m}
    v_sub_f32 v{m}, v{m}, v{tmp}
    v_lshrrev_b32 v{QB}, 16, v{tmp}
    v_and_b32 v{tmp}, 0xffff0000, v{m}
    v_sub_f32 v{m}, v{m}, v{tmp}
    v_or_b32 v{QB}, v{QB}, v{tmp}
    v_lshrrev_b32 v{QB+1}, 16, v{m}
    s_mov_b32 exec_lo, -1
    """)

def precompute(a):
    t = 12
    a(f"""
    v_and_b32 v1, 31, v0
    v_lshrrev_b32 v2, 5, v0
    v_lshrrev_b32 v3, 2, v1
    v_add_u32 v3, 1, v3
    v_and_b32 v3, 2, v3
    v_mul_u32_u24 v3, 6, v3
    v_xor_b32 v3, v1, v3
    v_lshlrev_b32 v{OAD0}, 3, v0
    v_lshlrev_b32 v{OAD1}, 4, v0
    s_and_b32 s38, s3, 1
    s_lshr_b32 s39, s3, 1
    s_mov_b32 s76, 0
    s_mov_b32 s77, 128
    s_cmp_eq_u32 s3, 1
    s_cselect_b32 s76, 32, s76
    s_cselect_b32 s77, 64, s77
    s_cmp_eq_u32 s3, 2
    s_cselect_b32 s76, 96, s76
    s_cselect_b32 s77, 96, s77
    s_sub_u32 s78, s3, 3
    s_lshl_b32 s78, s78, 2
    s_lshr_b32 s78, 0x20431, s78
    s_and_b32 s78, s78, 15
    s_lshl_b32 s8, s78, 6
    s_add_u32 s8, s8, {IMG_KV}
    s_add_u32 s9, s76, {IMG_W}
    s_sub_u32 s64, s77, s76
    s_cmp_lt_u32 s3, 3
    s_cselect_b32 s60, s9, s8
    s_cselect_b32 s64, s64, 32
    s_mov_b32 s61, 320
    s_cselect_b32 s61, 160, s61
    v_bfe_u32 v{t}, v0, 2, 2
    v_lshl_add_u32 v{t+1}, v2, 3, v{t}
    v_mul_u32_u24 v{t+1}, s61, v{t+1}
    v_bfe_u32 v{t+3}, v0, 4, 1
    v_mul_u32_u24 v{t+2}, s64, v{t+3}
    v_and_b32 v{t+6}, 3, v0
    v_lshlrev_b32 v{t+6}, 3, v{t+6}
    v_add3_u32 v{t+1}, v{t+1}, v{t+2}, v{t+6}
    v_add_u32 v{bW}, s60, v{t+1}
    v_bfe_u32 v{t+2}, v0, 1, 3
    v_xor_b32 v{t+2}, v{t+2}, v2
    v_lshlrev_b32 v{t+2}, 4, v{t+2}
    v_lshl_or_b32 v{bX}, v1, 7, v{t+2}
    v_xor_b32 v{bX+1}, 32, v{bX}
    v_xor_b32 v{bX+2}, 64, v{bX}
    v_xor_b32 v{bX+3}, 96, v{bX}
    """)
    a(f"""
    s_mul_i32 s80, s4, {64*2560}
    s_mul_i32 s8, s5, 160
    s_add_u32 s80, s80, s8
    s_cmp_ge_u32 s3, 4
    s_cbranch_scc1 PC_tz
    s_lshl_b32 s9, s39, 6
    s_add_u32 s80, s80, s9
    s_mul_i32 s10, s38, {32*2560}
    s_add_u32 s80, s80, s10
    s_mul_i32 s8, s38, 5120
    s_add_u32 s8, s8, {LX}
    s_lshl_b32 s9, s39, 10
    v_add_u32 v{tW1}, s9, v{OAD1}
    s_lshl_b32 s9, s39, 8
    s_add_u32 s9, s9, 2560
    v_mul_u32_u24 v{tW2}, 3200, v2
    v_lshl_add_u32 v{tW2}, v1, 3, v{tW2}
    v_add_u32 v{tW2}, s9, v{tW2}
    v_add_u32 v{tX1}, s8, v{OAD1}
    v_add_u32 v{tX2}, s8, v{OAD0}
    s_branch PC_td
    """)
    a.label("PC_tz")
    a(f"""
    s_sub_u32 s8, s3, 4
    s_mul_i32 s10, s8, {16*2560}
    s_add_u32 s80, s80, s10
    s_lshl_b32 s9, s38, 4
    s_lshr_b32 s8, s8, 1
    s_mul_i32 s8, s8, 5120
    s_add_u32 s8, s8, {LX}
    v_lshrrev_b32 v{t}, 4, v0
    v_and_b32 v{t+2}, 15, v0
    v_mul_u32_u24 v{tW1}, 3200, v2
    v_lshl_add_u32 v{tW1}, v1, 4, v{tW1}
    v_add_u32 v{tW1}, 2048, v{tW1}
    v_mul_u32_u24 v{tW2}, 3200, v{t}
    v_lshl_add_u32 v{tW2}, v{t+2}, 3, v{tW2}
    v_add_u32 v{tW2}, {2560+512}, v{tW2}
    v_add_u32 v{t+2}, s9, v{t+2}
    v_lshl_add_u32 v{t+4}, v{t}, 5, v{t+2}
    v_lshlrev_b32 v{tX2}, 3, v{t+4}
    v_add_u32 v{tX2}, s8, v{tX2}
    v_lshlrev_b32 v{tX1}, 4, v{t+4}
    v_add_u32 v{tX1}, s8, v{tX1}
    """)
    a.label("PC_td")
    a(f"v_mov_b32 v{tO}, 0")
    a(f"""
    v_add_u32 v{aKA}, {LKV}, v{OAD1}
    v_lshlrev_b32 v{aKB}, 3, v1
    v_add_u32 v{aKB}, {LKV+1024}, v{aKB}
    v_mul_u32_u24 v{aV0}, 320, v2
    v_lshl_add_u32 v{aV0}, v1, 4, v{aV0}
    v_add_u32 v{aV0}, {LKV+1280}, v{aV0}
    v_add_u32 v{aV1}, 640, v{aV0}
    v_mov_b32 v{AP0}, v3
    s_mov_b32 exec_lo, 0x0ff00000
    s_mov_b32 exec_hi, 0
    v_mov_b32 v{aV0}, {LKV+2560+16*4}
    v_mov_b32 v{aV1}, {LKV+2560+16*12}
    s_mov_b32 exec_lo, 0xf0000000
    v_mov_b32 v{aV0}, {LKV+2560+16*12}
    v_mov_b32 v{aV1}, {LKV+2560+16*4}
    s_mov_b32 exec_lo, 0
    s_mov_b32 exec_hi, 0x0ff00000
    v_mov_b32 v{aV0}, {LKV+2560+16*8}
    v_mov_b32 v{aV1}, {LKV+2560}
    s_mov_b32 exec_hi, 0xf0000000
    v_mov_b32 v{aV0}, {LKV+2560}
    v_mov_b32 v{aV1}, {LKV+2560+16*8}
    s_mov_b32 exec_lo, 0xeef00000
    s_mov_b32 exec_hi, 0xeef00000
    v_add_u32 v{aV0}, 16, v{aV0}
    v_add_u32 v{aV1}, 16, v{aV1}
    s_mov_b32 exec_lo, 0xfff00000
    s_mov_b32 exec_hi, 0xfff00000
    v_mov_b32 v{AP0}, 20
    s_mov_b32 exec_lo, 0
    s_mov_b32 exec_hi, -1
    v_mov_b32 v{aKB}, {LKV+2560}
    s_mov_b64 exec, -1
    s_mul_i32 s8, s39, 840
    s_add_u32 s8, s8, {LKVZ}
    v_mul_u32_u24 v{AP0}, 40, v{AP0}
    v_add_u32 v{AP0}, s8, v{AP0}
    v_lshl_add_u32 v{AP1}, v2, 4, v{AP0}
    s_lshl_b32 s10, s4, 3
    s_add_u32 s10, s10, s5
    s_lshl_b32 s10, s10, 1
    s_add_u32 s10, s10, s38
    s_mul_i32 s10, s10, 5120
    s_lshl_b32 s81, s39, 10
    s_add_u32 s81, s81, s10
    s_lshl_b32 s82, s39, 8
    s_add_u32 s82, s82, s10
    s_add_u32 s82, s82, 4096
    s_mul_i32 s8, s38, 5120
    s_add_u32 s8, s8, {LQ}
    s_lshl_b32 s9, s39, 10
    s_add_u32 s9, s9, s8
    v_add_u32 v{QF1}, s9, v{OAD1}
    s_lshl_b32 s9, s39, 8
    s_add_u32 s9, s9, s8
    s_add_u32 s9, s9, 4096
    v_lshlrev_b32 v{QF0}, 3, v1
    v_add_u32 v{QF0}, s9, v{QF0}
    """)
    for qq in range(4):
        a(f"""
        s_lshr_b32 s8, s{76 + (qq >> 1)}, 3
        s_add_u32 s8, s8, {2 * (qq & 1)}
        v_add_u32 v{t}, s8, v2
        v_mul_u32_u24 v{t+1}, 52, v{t}
        v_lshrrev_b32 v{t+1}, 8, v{t+1}
        v_mul_u32_u24 v{t+2}, 5, v{t+1}
        v_sub_u32 v{t+2}, v{t}, v{t+2}
        v_lshlrev_b32 v{TLQ[qq]}, 10, v{t+1}
        v_lshl_add_u32 v{TLQ[qq]}, v1, 4, v{TLQ[qq]}
        v_lshrrev_b32 v{t+3}, 1, v{t+2}
        v_lshl_add_u32 v{TLQ[qq]}, v{t+3}, 9, v{TLQ[qq]}
        v_and_b32 v{t+3}, 1, v{t+2}
        v_lshl_add_u32 v{TLQ[qq]}, v{t+3}, 3, v{TLQ[qq]}
        v_cmp_eq_u32 vcc, 4, v{t+2}
        s_mov_b64 exec, vcc
        v_lshlrev_b32 v{TLQ[qq]}, 8, v{t+1}
        v_lshl_add_u32 v{TLQ[qq]}, v1, 3, v{TLQ[qq]}
        v_add_u32 v{TLQ[qq]}, 4096, v{TLQ[qq]}
        s_mov_b64 exec, -1
        v_add_u32 v{TLQ[qq]}, {LQ}, v{TLQ[qq]}
        """)
    a(f"""
    s_add_u32 s9, s3, 1
    s_lshr_b32 s9, s9, 1
    s_add_u32 s9, s9, 2
    s_sub_u32 s10, s3, 5
    s_cmp_ge_u32 s3, 5
    s_cselect_b32 s12, s10, s39
    s_cselect_b32 s13, 0, s9
    s_lshl_b32 s10, s12, 12
    s_lshl_b32 s9, s13, 12
    v_add_u32 v{JA}, s10, v{OAD1}
    v_add_u32 v{JB}, s9, v{OAD1}
    s_lshl_b32 s10, s12, 5
    s_lshl_b32 s9, s13, 5
    s_sub_u32 s9, s9, 80
    v_lshlrev_b32 v{t}, 2, v2
    v_add_u32 v{t}, s10, v{t}
    v_add_u32 v{t+1}, s9, v1
    v_and_b32 v{t+2}, 0xffff, v{t+1}
    v_mul_u32_u24 v{t+2}, 3277, v{t+2}
    v_lshrrev_b32 v{t+2}, 16, v{t+2}
    v_mul_u32_u24 v{t+3}, 80, v{t+1}
    s_cmp_ge_u32 s3, 5
    s_cbranch_scc1 PC_z
    """)
    for z in range(2):
        for q in range(4):
            m = MASKS[q]
            a(f"v_add_u32 v{t+4}, {8*q}, v{t}")
            a(f"v_mul_u32_u24 v{t+5}, 3277, v{t+4}")
            a(f"v_lshrrev_b32 v{t+5}, 16, v{t+5}")
            if z == 0:
                a(f"v_lshl_add_u32 v{PWR+q}, v{t+4}, 2, v{t+3}")
                a(f"v_cmp_eq_u32 s[{m}:{m+1}], v{t+5}, v{t+2}")
            else:
                a(f"v_add_u32 v{PWR+q}, 1, v{t+5}")
                a(f"v_mul_u32_u24 v{PWR+q}, 1600, v{PWR+q}")
                a(f"v_lshl_add_u32 v{PWR+q}, v{t+4}, 2, v{PWR+q}")
                a(f"v_cmp_gt_u32 s[{m}:{m+1}], 4, v{t+5}")
                a(f"s_and_b32 s{m}, s{m}, 1\ns_and_b32 s{m+1}, s{m+1}, 1")
        if z == 0:
            a("s_branch PC_zd")
            a.label("PC_z")
    a.label("PC_zd")
    for i in range(BACC, BFR + 24): a(f"v_mov_b32 v{i}, 0")

def gen(a):
    K = NAME + "_kernel"
    kernel_begin(a, K)
    if STAMP:
        a("s_memtime s[84:85]\ns_memrealtime s[86:87]")
    a("s_load_dwordx16 s[16:31], s[0:1], 0\ns_load_dwordx4 s[32:35], s[0:1], 64\ns_load_dwordx2 s[36:37], s[0:1], 80")
    a("s_getpc_b64 s[44:45]")
    a.label("L_pc")
    a(f"""
    s_mov_b32 s46, L_codeend-L_pc
    s_mov_b32 s47, 0x20000
    v_lshlrev_b32 v4, {9 if CPF4 else 7}, v0
    s_lshl_b32 s8, s2, 4
    s_and_b32 s8, s8, {0x180 if CPF4 else 0}
    buffer_load_dword v164, v4, s[44:47], s8 offen
    s_cmp_ge_u32 s2, 256
    s_cbranch_scc1 L_end
    v_lshrrev_b32 v1, 6, v0
    v_and_b32 v0, 63, v0
    v_readfirstlane_b32 s3, v1
    s_and_b32 s6, s2, 7
    s_lshr_b32 s7, s2, 3
    """)
    if MAP48:
        a("s_lshl_b32 s4, s6, 2\ns_lshr_b32 s8, s7, 3\ns_add_u32 s4, s4, s8\ns_and_b32 s5, s7, 7")
    else:
        a("s_lshr_b32 s4, s6, 1\ns_lshl_b32 s4, s4, 3\ns_lshr_b32 s8, s7, 2\ns_add_u32 s4, s4, s8\ns_and_b32 s5, s6, 1\ns_lshl_b32 s5, s5, 2\ns_and_b32 s8, s7, 3\ns_add_u32 s5, s5, s8")
    a(f"""
    s_cmp_lt_u32 s3, 8
    s_cbranch_scc1 C_start
    """)
    a("s_setprio 2")
    a("s_sub_u32 s10, s3, 8")
    a("s_mul_i32 s13, s4, 81920")
    a("v_lshlrev_b32 v18, 4, v0")
    a("s_cmp_eq_u32 s10, 1\ns_cbranch_scc1 L_mw")
    a("""
    v_lshrrev_b32 v20, 4, v0
    v_xor_b32 v21, v20, v0
    v_and_b32 v21, 15, v21
    v_lshlrev_b32 v21, 4, v21
    v_mul_u32_u24 v20, 1280, v20
    """)
    for j in range(4):
        a(f"v_xor_b32 v{28+j}, {64*j}, v21")
        a(f"v_add_u32 v{28+j}, v{28+j}, v20")
        if j < 3: a("v_add_u32 v20, 5120, v20")
    a(f"""
    s_mov_b32 m0, {LMX}
    s_lshr_b32 s14, s5, 1
    s_mul_i32 s14, s14, 20480
    s_add_u32 s14, s14, s13
    s_mov_b32 s15, 0
    s_waitcnt lgkmcnt(0)
    """)
    srd(a, 44, 16, XBYTES)
    a.label("L_mx")
    for j in range(4):
        dma(a, f"v{28+j}", 44, "s14")
        a("s_add_u32 m0, m0, 1024")
        a("s_add_u32 s14, s14, 256" if j == 3 else "s_nop 0")
    a("s_add_u32 s15, s15, 1\ns_cmp_lt_u32 s15, 5\ns_cbranch_scc1 L_mx")
    a("s_branch L_md")
    a.label("L_mw")
    a(f"s_mov_b32 m0, {LWKV}\ns_mov_b32 s14, 0")
    a("s_waitcnt lgkmcnt(0)")
    a("s_bitcmp1_b32 s5, 0")
    a("s_cselect_b32 s52, s22, s20")
    a("s_cselect_b32 s53, s23, s21")
    a("s_mov_b32 s54, 25600\ns_mov_b32 s55, 0x20000")
    a.label("L_mwl")
    for i in range(4): a(f"buffer_load_dwordx4 v18, s[52:55], s14 offen offset:{1024*i} lds")
    a("s_add_u32 m0, m0, 4096\ns_add_u32 s14, s14, 4096\ns_cmp_lt_u32 s14, 24576\ns_cbranch_scc1 L_mwl")
    a("buffer_load_dwordx4 v18, s[52:55], s14 offen lds")
    srd(a, 44, 16, XBYTES)
    a("s_branch L_md")
    a.label("C_start")
    a("s_cmp_lg_u32 s3, 4\ns_cbranch_scc1 C_pre")
    a("s_cmp_ge_u32 s2, 8\ns_cbranch_scc1 C_pre")
    a("s_memrealtime s[8:9]\ns_waitcnt lgkmcnt(0)\ns_or_b32 s8, s8, 1")
    srd(a, 44, 34, 256)
    a("v_mov_b32 v8, s8\nv_mov_b32 v9, 0\nv_mov_b32 v10, 0\ns_mov_b64 exec, 1")
    a("buffer_atomic_cmpswap v[8:9], v10, s[44:47], 0 offen sc1")
    a("s_mov_b64 exec, -1")
    a.label("C_pre")
    precompute(a)
    a("s_waitcnt lgkmcnt(0)")
    srd(a, 40, 36, WS_SIZE)
    a("s_cmp_lt_u32 s3, 3\ns_cbranch_scc1 A_q")
    a("s_cmp_eq_u32 s3, 5\ns_cbranch_scc1 A_kvpoll")
    a("s_cmp_lt_u32 s3, 6\ns_cbranch_scc1 A_bars")
    srd(a, 44, 34, 256)
    a(f"""
    v_mov_b32 v10, 0
    v_and_b32 v20, 15, v0
    v_lshrrev_b32 v21, 4, v0
    v_xor_b32 v22, v20, v21
    v_lshlrev_b32 v22, 4, v22
    v_lshl_add_u32 v22, v20, 8, v22
    v_add_u32 v22, {LMX}, v22
    v_xor_b32 v23, 64, v22
    v_xor_b32 v24, 128, v22
    v_xor_b32 v25, 192, v22
    v_bfe_u32 v26, v0, 2, 2
    v_lshl_add_u32 v26, v21, 3, v26
    v_mul_u32_u24 v26, 40, v26
    v_and_b32 v27, 3, v0
    v_lshl_add_u32 v26, v27, 3, v26
    s_lshl_b32 s8, s38, 5
    s_add_u32 s8, s8, {LWKV}
    v_add_u32 v26, s8, v26
    s_lshl_b32 s12, s4, 1
    s_lshr_b32 s8, s5, 2
    s_add_u32 s12, s12, s8
    s_mul_i32 s12, s12, {TILE}
    s_add_u32 s12, s12, {WS_KV}
    s_bfe_u32 s13, s5, 0x10001
    s_lshl_b32 s55, s4, 4
    s_add_u32 s55, s55, s5
    s_lshl_b32 s55, s55, 1
    s_add_u32 s55, s55, s38
    s_lshl_b32 s55, s55, 2
    s_add_u32 s55, s55, {FL_KV}
    v_and_b32 v27, 1, v21
    s_mov_b32 s56, 0
    s_mov_b64 s[48:49], -1
    """)
    for i in range(12, 16): a(f"v_mov_b32 v{i}, 0")
    MF = [BACC + 8 * i for i in range(4)]
    def mini(lbl, orient):
        def mm(st):
            x, w, ac = v(MF[st], 4), v(MF[st] + 4, 4), v(12, 4)
            a(f"v_mfma_f32_16x16x32_bf16 {ac}, {w}, {x}, {ac}" if orient == "R" else f"v_mfma_f32_16x16x32_bf16 {ac}, {x}, {w}, {ac}")
        a("s_barrier")
        a("buffer_load_dword v11, v10, s[44:47], 0 offen sc1")
        a.label(lbl)
        for st in range(4):
            f = MF[st]
            a(f"ds_read_b128 v[{f}:{f+3}], v{22+st}")
            for hf in range(2):
                a(f"ds_read_b64_tr_b16 v[{f+4+2*hf}:{f+5+2*hf}], v26 offset:{(32*st+4*hf)*40}")
            a(f"v_add_u32 v{22+st}, 4096, v{22+st}")
            a("s_waitcnt lgkmcnt(9)")
            mm((st + 1) % 4)
        a("v_add_u32 v26, 5120, v26")
        a(f"s_add_u32 s56, s56, 1\ns_cmp_lt_u32 s56, 5\ns_cbranch_scc1 {lbl}")
        for st, w in ((1, 6), (2, 3), (3, 0)):
            a(f"s_waitcnt lgkmcnt({w})"); mm(st)
    a("s_bitcmp1_b32 s5, 0")
    a("s_cbranch_scc1 M_v")
    a(f"""
    s_lshl_b32 s8, s13, 4
    v_add_u32 v20, s8, v20
    v_lshlrev_b32 v28, 4, v20
    v_lshl_add_u32 v28, v2, 9, v28
    v_lshl_add_u32 v28, v27, 3, v28
    s_cmp_eq_u32 s3, 6
    s_cbranch_scc1 M_k0
    v_lshlrev_b32 v28, 3, v20
    v_add_u32 v28, 1024, v28
    s_mov_b32 exec_lo, 0xffff0000
    v_lshlrev_b32 v28, 3, v20
    v_add_u32 v28, 2560, v28
    s_mov_b32 exec_lo, -1
    s_mov_b32 s49, 0
    """)
    a.label("M_k0")
    mini("M_kl", "R")
    a(f"s_mov_b32 s8, {f32(CSCALE)}\ns_nop 6")
    a("v_pk_mul_f32 v[12:13], v[12:13], s[8:9] op_sel_hi:[1,0]\nv_pk_mul_f32 v[14:15], v[14:15], s[8:9] op_sel_hi:[1,0]")
    a("v_cvt_pk_bf16_f32 v12, v12, v13\nv_cvt_pk_bf16_f32 v13, v14, v15")
    a("s_cmp_eq_u32 s3, 6\ns_cbranch_scc1 M_st")
    a("s_mov_b32 exec_lo, 0xffff0000")
    a("v_mov_b32 v12, 0x3f803f80\nv_mov_b32 v13, 0x3f803f80")
    a("s_mov_b32 exec_lo, 0xcccc0000\nv_mov_b32 v12, 0\nv_mov_b32 v13, 0")
    a("s_branch M_st")
    a.label("M_v")
    a(f"""
    s_mul_i32 s8, s13, 640
    s_add_u32 s12, s12, s8
    s_lshl_b32 s8, s38, 8
    s_add_u32 s12, s12, s8
    s_add_u32 s12, s12, 1280
    v_lshrrev_b32 v28, 2, v20
    v_add_u32 v28, 1, v28
    v_and_b32 v28, 2, v28
    v_mul_u32_u24 v28, 6, v28
    v_xor_b32 v28, v20, v28
    v_mul_u32_u24 v29, 320, v27
    v_lshl_add_u32 v29, v2, 3, v29
    v_lshl_add_u32 v28, v28, 4, v29
    s_cmp_eq_u32 s3, 6
    s_cselect_b32 s48, -1, 0x000f000f
    s_mov_b32 s49, s48
    """)
    mini("M_vl", "C")
    a("s_nop 7")
    a("v_cvt_pk_bf16_f32 v12, v12, v13\nv_cvt_pk_bf16_f32 v13, v14, v15")
    a.label("M_st")
    a("s_mov_b64 exec, s[48:49]")
    a("buffer_store_dwordx2 v[12:13], v28, s[40:43], s12 offen sc1")
    a("s_mov_b64 exec, -1")
    gs(a, 0, "v30", "v31")
    a("s_barrier")
    for i in range(32): a(f"v_mov_b32 v{BACC+i}, 0")
    a("s_barrier")
    a("s_mov_b32 s9, 0")
    a.label("A_np")
    a("s_add_u32 s9, s9, 1")
    a("s_waitcnt vmcnt(0)")
    a("v_cmp_eq_u32 vcc, 0, v11")
    a(f"s_cmp_gt_u32 s9, {SPIN_MAX}\ns_cbranch_scc1 A_nd\ns_cbranch_vccz A_nd\ns_sleep 1")
    a("buffer_load_dword v11, v10, s[44:47], 0 offen sc1")
    a("s_branch A_np")
    a.label("A_nd")
    a("s_mov_b64 exec, 1")
    a("buffer_store_dword v11, v10, s[40:43], s55 offen sc1")
    a("s_mov_b64 exec, -1")
    a(f"v_mov_b32 v5, {LMISC}\nds_write_b32 v5, v11\nds_write_b32 v5, v10 offset:8\nds_write_b32 v5, v10 offset:4\ns_waitcnt lgkmcnt(0)")
    gs(a, 1, "v30", "v31")
    a("s_branch A_bars8")
    a.label("A_kvpoll")
    a("v_lshrrev_b32 v20, 1, v0\nv_lshlrev_b32 v20, 7, v20\nv_and_b32 v21, 1, v0\nv_lshl_add_u32 v20, v21, 4, v20")
    a(f"v_mov_b32 v18, v{OAD1}")
    a("s_and_b32 s60, s7, 15")
    a(f"s_mov_b32 s61, {LKV}\ns_mov_b32 s12, {FL_KV}\ns_mov_b32 s9, 0")
    KP = int(OPT.get("kp", 6))
    for i in range(KP + 1): a("s_barrier")
    get_nonce(a, "v22", "v23")
    a("s_barrier\ns_sleep 3")
    def kvl():
        a("buffer_load_dwordx4 v[24:27], v20, s[40:43], s12 offen sc1")
        a("buffer_load_dwordx4 v[28:31], v20, s[40:43], s12 offen offset:32 sc1")
    kvl()
    a("s_barrier\ns_barrier\ns_barrier")
    a(f"s_mov_b32 s13, {6 - KP}")
    a.label("A_kq")
    a("s_add_u32 s9, s9, 1")
    a("s_waitcnt vmcnt(0)")
    for i in range(8): a(f"v_xor_b32 v{24+i}, s96, v{24+i}")
    a("v_or3_b32 v24, v24, v25, v26\nv_or3_b32 v27, v27, v28, v29\nv_or3_b32 v24, v24, v30, v31\nv_or_b32 v24, v24, v27\nv_cmp_ne_u32 vcc, 0, v24")
    a(f"s_cmp_gt_u32 s9, {SPIN_MAX}\ns_cbranch_scc1 A_kd\ns_cbranch_vccz A_kd\ns_mov_b64 exec, vcc\ns_sleep {OPT.get('ksl', 8)}")
    kvl()
    a("s_cmp_eq_u32 s13, 0\ns_cbranch_scc1 A_kq\ns_barrier\ns_sub_u32 s13, s13, 1\ns_branch A_kq")
    a.label("A_kd")
    a("s_mov_b64 exec, -1")
    gs(a, 4, "v30", "v31")
    call(a, "L_issueKV", "s[62:63]")
    a.label("A_kr")
    a("s_cmp_eq_u32 s13, 0\ns_cbranch_scc1 A_ke\ns_barrier\ns_sub_u32 s13, s13, 1\ns_branch A_kr")
    a.label("A_ke")
    for i in range(3 if BS >= 2 else 2): call(a, "L_issueKV", "s[62:63]")
    a(f"s_waitcnt vmcnt({33 if BS >= 2 else 22})")
    a("s_branch A_done")
    a.label("A_bars")
    for i in range(3): a("s_barrier")
    a.label("A_bars8")
    for i in range(8): a("s_barrier")
    a("s_waitcnt vmcnt(0)")
    a("s_branch A_done")
    a.label("A_q")
    def ard(st, i):
        f = AFR[st]
        if i < 2: a(f"ds_read_b64_tr_b16 v[{f+2*i}:{f+2*i+1}], v{bW} offset:{(16*st+4*i)*160}")
        else: a(f"ds_read_b128 v[{f+4*(i-1)}:{f+4*(i-1)+3}], v{bX+st} offset:{4096*(i-2)}")
    def amf(st, blk):
        f = AFR[st]; ac = v(AACC + 16 * blk, 16)
        a(f"v_mfma_f32_32x32x16_bf16 {ac}, v[{f}:{f+3}], v[{f+4+4*blk}:{f+7+4*blk}], {ac}")
    a(f"s_mov_b32 s56, 0\ns_mov_b32 s70, {HS}\ns_mov_b32 s74, {-5*HS}\ns_mov_b32 s75, {-3*HS}")
    for i in range(32): a(f"v_mov_b32 v{AACC+i}, 0")
    a("s_barrier\ns_barrier")
    for st in (0, 1, 2):
        for i in range(4): ard(st, i)
    a("s_branch A_mid")
    a(".p2align 3")
    a.label("A_loop")
    a("s_waitcnt lgkmcnt(0)\ns_barrier")
    seq = [(st, i) for st in (0, 1, 2) for i in range(4)]
    for n, (st, blk) in enumerate(((2, 0), (2, 1), (3, 0), (3, 1))):
        amf(st, blk)
        for x in seq[3 * n:3 * n + 3]: ard(*x)
    a.label("A_mid")
    a("s_add_u32 s56, s56, 1\ns_cmp_eq_u32 s56, 6\ns_cselect_b32 s8, s74, s70")
    a("s_waitcnt lgkmcnt(8)")
    amf(0, 0); ard(3, 0); ard(3, 1)
    a("s_cmp_lt_u32 s56, 10\ns_cselect_b32 s8, s8, s75")
    amf(0, 1); ard(3, 2); ard(3, 3)
    a("s_waitcnt lgkmcnt(8)")
    a(f"v_add_u32 v{bW}, s8, v{bW}")
    amf(1, 0)
    for j in range(4): a(f"v_add_u32 v{bX+j}, s8, v{bX+j}")
    amf(1, 1)
    a("s_cbranch_scc1 A_loop")
    a("s_waitcnt lgkmcnt(4)")
    amf(2, 0)
    for i in range(6): a(f"v_mov_b32 v{BFR+i}, 0")
    a("s_waitcnt lgkmcnt(0)")
    amf(3, 0)
    for i in range(6, 12): a(f"v_mov_b32 v{BFR+i}, 0")
    amf(2, 1)
    for i in range(12, 18): a(f"v_mov_b32 v{BFR+i}, 0")
    amf(3, 1)
    for i in range(18, 24): a(f"v_mov_b32 v{BFR+i}, 0")
    for blk in range(2):
        for qq in range(4):
            r0 = AACC + 16 * blk + 4 * qq
            a(f"v_cvt_pk_bf16_f32 v{r0}, v{r0}, v{r0+1}\nv_cvt_pk_bf16_f32 v{r0+1}, v{r0+2}, v{r0+3}")
            a(f"ds_write_b64 v{TLQ[qq]}, v[{r0}:{r0+1}] offset:{5120*blk}")
    a.label("A_done")
    def rdKA(t): a(f"ds_read_b128 v[{KA}:{KA+3}], v{aKA} offset:{t*TILE}")
    def rdKB(t): a(f"ds_read_b64 v[{KB}:{KB+1}], v{aKB} offset:{t*TILE}")
    def rdV0(t): a(f"ds_read_b128 v[{V0}:{V0+3}], v{aV0} offset:{t*TILE}")
    def rdV1(t): a(f"ds_read_b128 v[{V1}:{V1+3}], v{aV1} offset:{t*TILE}")
    def qka(S): a(f"v_mfma_f32_32x32x16_bf16 v[{S}:{S+15}], v[{KA}:{KA+3}], v[{QA}:{QA+3}], 0")
    def qkb(S): a(f"v_mfma_f32_32x32x8_bf16 v[{S}:{S+15}], v[{KB}:{KB+1}], v[{QB}:{QB+1}], v[{S}:{S+15}]")
    def pv0(): a(f"v_mfma_f32_32x32x16_bf16 v[{OO}:{OO+15}], v[{V0}:{V0+3}], v[{PP}:{PP+3}], v[{OO}:{OO+15}]")
    def pv1(): a(f"v_mfma_f32_32x32x16_bf16 v[{OO}:{OO+15}], v[{V1}:{V1+3}], v[{PP+4}:{PP+7}], v[{OO}:{OO+15}]")
    def E(S, lo, hi, w=None):
        for i in range(lo, hi):
            if w is not None and i == hi - 1:
                a(w if isinstance(w, str) else f"s_waitcnt lgkmcnt({w})"); a(f"v_exp_f32_e64 v{S+i}, v{S+i}")
            else: a(f"v_exp_f32 v{S+i}, v{S+i}")
    def c1(k, S): a(f"v_cvt_pk_bf16_f32 v{PP+k}, v{S+2*k}, v{S+2*k+1}")
    def C(S, g): c1(2 * g, S); c1(2 * g + 1, S)
    if OPT.get("yprio"): a("s_cmp_lt_u32 s3, 4\ns_cbranch_scc1 A_yp\ns_setprio 1\nA_yp:")
    ct(a, "a0")
    a("s_waitcnt lgkmcnt(0)\ns_barrier")
    ct(a, "p0")
    read_qfrag(a, QA, QB)
    rdKA(0); rdKB(0)
    a(f"ds_read_b128 v[{V1}:{V1+3}], v{aKA} offset:{TILE}")
    rdV0(0)
    a(f"v_mov_b32 v{PP}, {LMISC}\nds_read_b32 v{PP+3}, v{PP}")
    a("s_mov_b32 exec_lo, 0")
    a("s_waitcnt lgkmcnt(3)")
    a(f"v_mov_b32 v{QB}, 0\nv_mov_b32 v{QB+1}, 0")
    a("s_mov_b32 exec_lo, -1")
    ct(a, "p1")
    qka(S0); qkb(S0)
    rdKB(1); rdKA(2)
    a("s_waitcnt lgkmcnt(2)")
    a(f"v_mfma_f32_32x32x16_bf16 v[{S1}:{S1+15}], v[{V1}:{V1+3}], v[{QA}:{QA+3}], 0")
    rdV1(0)
    a(f"v_readfirstlane_b32 s96, v{PP+3}")
    a("s_nop 5")
    ct(a, "p2")
    rowmax(a, S0, PP)
    set_m(a, PP, PP + 1, PP + 2)
    ct(a, "p3")
    for i in range(0, 16, 2): a(f"v_pk_add_f32 v[{S0+i}:{S0+i+1}], v[{S0+i}:{S0+i+1}], v[{PP+2}:{PP+3}] op_sel_hi:[1,0] neg_lo:[0,1] neg_hi:[0,1]")
    a(".p2align 3")
    E(S0, 0, 4, 2)
    qkb(S1); rdKB(2); C(S0, 0); E(S0, 4, 8); a("s_nop 0\ns_nop 0"); C(S0, 1); E(S0, 8, 12)
    a(f"v_mfma_f32_32x32x16_bf16 v[{OO}:{OO+15}], v[{V0}:{V0+3}], v[{PP}:{PP+3}], 0")
    rdV0(1); C(S0, 2); E(S0, 12, 16, 3); C(S0, 3)
    def plain(n, t=0):
        Sc, Sn = (S0, S1) if n % 2 == 0 else (S1, S0)
        if t == 63:
            E(Sc, 0, 4, 1); pv1(); rdV1(15); C(Sc, 0); E(Sc, 4, 8); a("s_nop 0\ns_nop 0"); C(Sc, 1); E(Sc, 8, 12, 1)
            pv0(); C(Sc, 2); E(Sc, 12, 16); C(Sc, 3)
            return
        if t == 62:
            qka(Sn); E(Sc, 0, 4, 2)
            pv1(); rdV1(14); C(Sc, 0); E(Sc, 4, 8, 2)
            qkb(Sn); C(Sc, 1); E(Sc, 8, 12, 1)
            pv0(); rdV0(15); C(Sc, 2); E(Sc, 12, 16); C(Sc, 3)
            return
        qka(Sn); rdKA((n + 2) % 16); E(Sc, 0, 4, 3)
        pv1(); rdV1(n); C(Sc, 0); E(Sc, 4, 8, 3)
        qkb(Sn); rdKB((n + 2) % 16); C(Sc, 1); E(Sc, 8, 12, 3)
        pv0(); rdV0((n + 1) % 16); C(Sc, 2); E(Sc, 12, 16, 3); C(Sc, 3)
    for n in range(1, 12):
        if n == 1: ct(a, "p4")
        if n == 2:
            ct(a, "p5"); a("s_waitcnt vmcnt(0)"); ct(a, "p6"); a("s_barrier")
        if n == 5:
            a(f"s_mov_b64 exec, 1\nv_mov_b32 v3, 1\nv_mov_b32 v164, {LMISC}\nds_add_u32 v164, v3 offset:4\ns_mov_b64 exec, -1\ns_nop 0")
        plain(n)
    a(f"s_mov_b32 s8, {3*CH}")
    for r in (aKA, aKB, aV0, aV1): a(f"v_add_u32 v{r}, s8, v{r}")
    a(f"s_mov_b32 s56, 0\ns_mov_b32 s68, 0\ns_mov_b32 s70, {SLOT}\ns_mov_b32 s74, {-2*SLOT}\ns_mov_b32 s72, {CH}\ns_mov_b32 s73, {-3*CH}")
    a("s_waitcnt lgkmcnt(0)")
    a("s_cmp_ge_u32 s3, 3\ns_cbranch_scc1 FU_C")
    def G(orient, s_, blk):
        f = BFR + 12 * s_; w, x, ac = v(f, 4), v(f + 4 + 4 * blk, 4), v(BACC + 16 * blk, 16)
        a(f"v_mfma_f32_32x32x16_bf16 {ac}, {w}, {x}, {ac}" if orient == "R" else f"v_mfma_f32_32x32x16_bf16 {ac}, {x}, {w}, {ac}")
    def GR(orient, s_, st):
        f = BFR + 12 * s_; stride = 160 if orient == "R" else 320
        for hf in range(2): a(f"ds_read_b64_tr_b16 v[{f+2*hf}:{f+2*hf+1}], v{bW} offset:{(16*st+4*hf)*stride}")
        for blk in range(2): a(f"ds_read_b128 v[{f+4+4*blk}:{f+7+4*blk}], v{bX+st} offset:{4096*blk}")
    for orient in ("R", "C"):
        a(".p2align 3")
        a.label("FU_" + orient)
        a("s_and_b32 s9, s56, 3\ns_cselect_b32 s9, s72, s73")
        PLAN = OPT.get("plan", "g11 e0 e1 e2 pv1 e3 e4 e5 qka e6 e7 qkb e8 e9 e10 g01 e11 c0 c1 c2 g00 c3 e12 e13 g10 e14 e15 pv0 c5 c7 c4 c6").split()
        stride = 160 if orient == "R" else 320
        def ftile(out, n, st):
            Sc, Sn = (S0, S1) if n % 2 == 0 else (S1, S0)
            pos = {w: i for i, w in enumerate(PLAN)}
            def mf(m):
                if m == "qka": return f"v_mfma_f32_32x32x16_bf16 v[{Sn}:{Sn+15}], v[{KA}:{KA+3}], v[{QA}:{QA+3}], 0", ["KA"]
                if m == "qkb": return f"v_mfma_f32_32x32x8_bf16 v[{Sn}:{Sn+15}], v[{KB}:{KB+1}], v[{QB}:{QB+1}], v[{Sn}:{Sn+15}]", ["KB"]
                if m == "pv0": return f"v_mfma_f32_32x32x16_bf16 v[{OO}:{OO+15}], v[{V0}:{V0+3}], v[{PP}:{PP+3}], v[{OO}:{OO+15}]", ["V0"]
                if m == "pv1": return f"v_mfma_f32_32x32x16_bf16 v[{OO}:{OO+15}], v[{V1}:{V1+3}], v[{PP+4}:{PP+7}], v[{OO}:{OO+15}]", ["V1"]
                s_, b = int(m[1]), int(m[2]); f = BFR + 12 * s_; w, x, ac = v(f, 4), v(f + 4 + 4 * b, 4), v(BACC + 16 * b, 16)
                return (f"v_mfma_f32_32x32x16_bf16 {ac}, {w}, {x}, {ac}" if orient == "R" else f"v_mfma_f32_32x32x16_bf16 {ac}, {x}, {w}, {ac}"), [f"W{s_}", f"X{s_}{b}"]
            def rds(m):
                if m == "qka": return [("KA", f"ds_read_b128 v[{KA}:{KA+3}], v{aKA} offset:{((n+2)%4)*TILE}")]
                if m == "qkb": return [("KB", f"ds_read_b64 v[{KB}:{KB+1}], v{aKB} offset:{((n+2)%4)*TILE}")]
                if m == "pv0": return [("V0", f"ds_read_b128 v[{V0}:{V0+3}], v{aV0} offset:{((n+1)%4)*TILE}")]
                if m == "pv1": return [("V1", f"ds_read_b128 v[{V1}:{V1+3}], v{aV1} offset:{n*TILE}")]
                s_, b = int(m[1]), int(m[2]); f = BFR + 12 * s_; k = (2 * n + s_) % 4
                r = [(f"X{s_}{b}", f"ds_read_b128 v[{f+4+4*b}:{f+7+4*b}], v{bX+k} offset:{4096*b}")]
                if pos[m] > pos[f"g{s_}{1-b}"]:
                    r += [(f"W{s_}", f"ds_read_b64_tr_b16 v[{f+2*h}:{f+2*h+1}], v{bW} offset:{(16*k+4*h)*stride}") for h in range(2)]
                return r
            va = lambda regs, sg: [("w", f"v_add_u32 v{r}, {sg}, v{r}") for r in regs]
            lines, later = [], []
            def flush():
                for nm, tx in later: st.append(nm); lines.append(("r", tx))
                later.clear()
            assert PLAN[0][0] == "g" and pos["pv1"] < pos["qkb"] < pos["pv0"]
            for i, w in enumerate(PLAN):
                if w[0] in "gqp":
                    flush()
                    t, need = mf(w)
                    last = max(max([j for j, q in enumerate(st) if q == nm], default=-1) for nm in need)
                    if last >= 0:
                        cnt = min(15, len(st) - 1 - last)
                        lines.insert(len(lines) - 1 if lines and lines[-1][0] in "ec" else len(lines), ("w", f"s_waitcnt lgkmcnt({cnt})"))
                        del st[:len(st) - cnt]
                    lines.append(("m", t))
                    if i == 0 and n % 2 == 0:
                        g = [j for j, q in enumerate(st) if q[0] in "WX" or q == "V1"]
                        if g:
                            cnt = len(st) - 1 - max(g); lines.append(("w", f"s_waitcnt lgkmcnt({cnt})")); del st[:len(st) - cnt]
                        for x in ("s_barrier", "s_add_u32 s68, s68, 1", "s_cmp_eq_u32 s68, 3", "s_cselect_b32 s8, s74, s70", "s_cselect_b32 s68, 0, s68"): lines.append(("w", x))
                    if i == 0 and n == 2: lines += va((aKA, aKB), "s9")
                    if w == "qkb" and n == 3: lines += va((aV0, aV1), "s9")
                    later.extend(rds(w))
                else:
                    k = int(w[1:])
                    lines.append(("e", Sc + k) if w[0] == "e" else ("c", f"v_cvt_pk_bf16_f32 v{PP+k}, v{Sc+2*k}, v{Sc+2*k+1}"))
                    flush()
            flush()
            lines += va((bX, bX + 1) if n % 2 == 0 else (bX + 2, bX + 3, bW), "s8")
            off, res = 0, []
            def fix():
                if res[-1].startswith("v_exp_f32 "): res[-1] = res[-1].replace("v_exp_f32 ", "v_exp_f32_e64 ")
                else: res.append("s_nop 0")
            for l in lines:
                if l[0] in "mrc" and off % 8: fix(); off += 4
                res.append(f"v_exp_f32 v{l[1]}, v{l[1]}" if l[0] == "e" else l[1]); off += 8 if l[0] in "mrc" else 4
            if off % 8: fix()
            for r in res: out(r)
        st = []
        for n in range(4): ftile(lambda x: None, n, st)
        for n in range(4): ftile(a, n, st)
        a(f"s_add_u32 s56, s56, 1\ns_cmp_lt_u32 s56, 5\ns_cbranch_scc1 FU_{orient}")
        ct(a, "fe")
        a("s_waitcnt lgkmcnt(0)")
        G(orient, 0, 0); G(orient, 1, 0); G(orient, 0, 1); G(orient, 1, 1)
        a(f"s_mov_b32 s8, {f32(LOG2E)}\ns_mov_b32 s9, {f32(1e-6)}")
        def phi4(r0, X):
            for i in (0, 2): a(f"v_pk_mul_f32 v[{X+i}:{X+i+1}], v[{r0+i}:{r0+i+1}], s[8:9] op_sel_hi:[1,0]")
            for i in range(4): a(f"v_exp_f32_e64 v{X+i}, v{X+i} clamp")
            for i in range(4): a(f"v_max_f32 v{r0+i}, s9, v{r0+i}")
            for i in (0, 2): a(f"v_pk_add_f32 v[{r0+i}:{r0+i+1}], v[{r0+i}:{r0+i+1}], v[{X+i}:{X+i+1}]")
        if orient == "R":
            a("s_nop 7")
            for half in range(2):
                if half == 1: a("s_cmp_eq_u32 s3, 2\ns_cbranch_scc1 B_jobs")
                for blk in range(2):
                    for q in range(2):
                        r0 = BACC + 16 * blk + 8 * half + 4 * q
                        phi4(r0, BFR)
                        a(f"v_cvt_pk_bf16_f32 v{r0}, v{r0}, v{r0+1}\nv_cvt_pk_bf16_f32 v{r0+1}, v{r0+2}, v{r0+3}")
                        a(f"ds_write_b64 v{TLQ[2*half+q]}, v[{r0}:{r0+1}] offset:{5120*blk}")
            a("s_branch B_jobs")
    a("s_lshl_b32 s10, s78, 12")
    a(f"v_add_u32 v{TL0}, s10, v{OAD1}")
    a("s_cmp_eq_u32 s78, 2\ns_cselect_b32 s10, 0xffff, -1\ns_mov_b32 s11, s10")
    a("s_cmp_ge_u32 s78, 3")
    a("s_nop 1")
    for ks in range(4):
        r0 = BACC + 8 * ks
        l = a.newlabel("B_np")
        a(f"s_cbranch_scc1 {l}")
        a("s_mov_b64 exec, s[10:11]")
        phi4(r0, BFR); phi4(r0 + 4, BFR + 4)
        a("s_mov_b64 exec, -1")
        a.label(l)
        for i in range(4): a(f"v_cvt_pk_bf16_f32 v{r0+i}, v{r0+2*i}, v{r0+2*i+1}")
        a(f"ds_write_b128 v{TL0}, v[{r0}:{r0+3}] offset:{LFR+1024*ks}")
    a(".p2align 3")
    a.label("B_jobs")
    JAF, JBF, JD = BACC, BACC + 16, BFR
    ct(a, "ep")
    plain(0); plain(1)
    a("s_cmp_lt_u32 s3, 5")
    a("s_barrier")
    ct(a, "c10")
    qka(S1); rdKA(4)
    for ks in range(4): a(f"ds_read_b128 v[{JAF+4*ks}:{JAF+4*ks+3}], v{JA} offset:{LFR+1024*ks}")
    a("s_cbranch_scc0 B_z")
    for ks in range(4): a(f"ds_read_b128 v[{JBF+4*ks}:{JBF+4*ks+3}], v{JB} offset:{LFR+1024*ks}")
    a("s_branch B_nob")
    a.label("B_z")
    for i in range(16): a(f"v_mov_b32 v{JBF+i}, 0x3f803f80")
    a(".p2align 3")
    a.label("B_nob")
    read_qfrag(a, PQA, PQB)
    def J(ks):
        c = "0" if ks == 0 else v(JD, 16)
        a(f"v_mfma_f32_32x32x16_bf16 {v(JD,16)}, v[{JAF+4*ks}:{JAF+4*ks+3}], v[{JBF+4*ks}:{JBF+4*ks+3}], {c}")
    E(S0, 0, 4, 7)
    pv1(); rdV1(2); C(S0, 0); E(S0, 4, 8)
    qkb(S1); rdKB(4); C(S0, 1); E(S0, 8, 10, 4)
    J(0); E(S0, 10, 12)
    J(1); C(S0, 2)
    pv0(); rdV0(3); E(S0, 12, 14)
    J(2); E(S0, 14, 16)
    J(3); C(S0, 3)
    a("s_mov_b32 exec_lo, 0")
    a("s_waitcnt lgkmcnt(3)")
    a(f"v_mov_b32 v{PQB}, 0\nv_mov_b32 v{PQB+1}, 0")
    a("s_mov_b32 exec_lo, -1\ns_nop 0")
    def PW(q):
        a(f"s_mov_b64 exec, s[{MASKS[q]}:{MASKS[q]+1}]\ns_nop 0")
        a(f"ds_write_b128 v{PWR+q}, v[{JD+4*q}:{JD+4*q+3}] offset:{LPART}")
        a("s_mov_b64 exec, -1\ns_nop 0")
    qka(S0); rdKA(5); E(S1, 0, 4, 3)
    pv1(); rdV1(3); PW(0); C(S1, 0); E(S1, 4, 8, 4)
    qkb(S0); rdKB(5); PW(1); C(S1, 1); E(S1, 8, 12, 5)
    pv0(); rdV0(4); PW(2); C(S1, 2); E(S1, 12, 16, 6); C(S1, 3); PW(3)
    ct(a, "jw")
    for t in range(36, 54):
        if t % 4 == 2: a("s_barrier\ns_nop 0")
        plain(t % 16)
    a("s_barrier\ns_nop 0")
    AP = BACC
    a(f"ds_read2_b64 v[100:103], v{AP1} offset0:0 offset1:1\nds_read_b64 v[104:105], v{AP0} offset:32")
    qka(S1); rdKA(8); E(S0, 0, 4, 5)
    pv1(); rdV1(6); C(S0, 0); E(S0, 4, 8, 2)
    qkb(S1); rdKB(8); C(S0, 1)
    a(f"v_mfma_f32_32x32x16_bf16 v[{AP}:{AP+15}], v[100:103], v[{PQA}:{PQA+3}], 0")
    E(S0, 8, 12)
    pv0(); rdV0(7); C(S0, 2)
    a(f"v_mfma_f32_32x32x8_bf16 v[{AP}:{AP+15}], v[104:105], v[{PQB}:{PQB+1}], v[{AP}:{AP+15}]")
    E(S0, 12, 16, 3); C(S0, 3)
    qka(S0); rdKA(9); E(S1, 0, 4, 3)
    pv1(); rdV1(7)
    o_epilogue(a, AP, WS_OB, True)
    a(f"v_mov_b32 v100, {LCNT}\nv_mov_b32 v101, 1\ns_mov_b64 exec, 1\nds_add_rtn_u32 v102, v100, v101\ns_mov_b64 exec, -1")
    a(".p2align 3")
    C(S1, 0); E(S1, 4, 8, 4)
    qkb(S0); rdKB(9); C(S1, 1); E(S1, 8, 12, 4)
    pv0(); rdV0(8); C(S1, 2); E(S1, 12, 16, 2); C(S1, 3)
    a(f"v_readfirstlane_b32 s9, v102\ns_lshl_b32 s8, s4, 5\ns_add_u32 s8, s8, s5\ns_lshl_b32 s8, s8, 2\ns_add_u32 s8, s8, {FL_HB}")
    a("s_cmp_eq_u32 s9, 7\ns_cbranch_scc0 AT_n8")
    publish(a, "s8", "v100", "v101")
    a(".p2align 3")
    a.label("AT_n8")
    for t in range(56, 64):
        if t % 4 == 2: a("s_barrier\ns_nop 0")
        plain(t % 16, t)
    srd(a, 44, 32, 2048 * 2560)
    a("s_waitcnt lgkmcnt(0)")
    pv1()
    a("s_mov_b32 s74, 51200\ns_mov_b32 s75, -51200")
    a("s_nop 9")
    a(f"v_cmp_nge_f32 vcc, {f32(2.0**40)}, v{OO+12}")
    a("s_nop 1")
    a("s_cbranch_vccnz AT_fallback")
    a.label("AT_ok")
    F = [20 + 8 * i for i in range(10)]
    NANCHK = "v_cmp_u_f32 {0}, v{1}, v{1}" if not FORCE_REDO else "v_cmp_o_f32 {0}, v{1}, v{1}"
    AC2 = 140
    OUT = 132
    SW, SR = TL0, TL1
    a("s_cmp_ge_u32 s3, 4\ns_cbranch_scc1 TLz_start")
    def tl_vm(pfx):
        a(f"s_cmp_lg_u32 s56, 2\ns_cbranch_scc1 {pfx}_nv\ns_waitcnt vmcnt(0)")
        a.label(pfx + "_nv")
    def tl_adv():
        a("s_add_u32 s71, s71, 1\ns_cmp_eq_u32 s71, 3\ns_cselect_b32 s8, s73, s72\ns_cselect_b32 s71, 0, s71")
        a(f"v_add_u32 v{tW1}, s74, v{tW1}\nv_add_u32 v{tW2}, s74, v{tW2}\nv_add_u32 v{tX1}, s8, v{tX1}\nv_add_u32 v{tX2}, s8, v{tX2}")
        a("s_add_u32 s56, s56, 1\ns_and_b32 s8, s56, 3")
    def wrd(d, st, o=0):
        t, H = divmod(st, 5)
        if H < 4: a(f"ds_read_b128 v[{d}:{d+3}], v{tW1} offset:{o+12800*t+3200*H}")
        else:
            for hf in range(2): a(f"ds_read_b64 v[{d+2*hf}:{d+2*hf+1}], v{tW2} offset:{o+12800*t+6400*hf}")
    def xrd(d, st, o=0):
        t, H = divmod(st, 5)
        if H < 4: a(f"ds_read_b128 v[{d}:{d+3}], v{tX1} offset:{o+t*10240+H*1024}")
        else:
            for hf in range(2): a(f"ds_read_b64 v[{d+2*hf}:{d+2*hf+1}], v{tX2} offset:{o+t*10240+4096+512*hf}")
    def wshift(p):
        if p % 2 == 1 and p < 7:
            sg = "s74" if p % 4 == 1 else "s75"
            a(f"v_add_u32 v{tW1}, {sg}, v{tW1}\nv_add_u32 v{tW2}, {sg}, v{tW2}")
    def mrd(st): wrd(F[st], st); xrd(F[st] + 4, st)
    def mmf(st): a(f"v_mfma_f32_32x32x16_bf16 v[4:19], v[{F[st]}:{F[st]+3}], v[{F[st]+4}:{F[st]+7}], v[4:19]")
    nrd = lambda st: 4 if st % 5 == 4 else 2
    def m_pack(O, A=4):
        for i in range(8): a(f"v_cvt_pk_bf16_f32 v{O+i}, v{A+2*i}, v{A+1+2*i}")
    def m_turn(O):
        for q in range(4): a(f"ds_write_b64 v{SW}, v[{O+2*q}:{O+2*q+1}] offset:{16*q}")
        for i in range(2): a(f"ds_read_b128 v[{O+4*i}:{O+4*i+3}], v{SR} offset:{1280*i}")
    def m_store(O, off):
        for i in range(2): a(f"buffer_store_dwordx4 v[{O+4*i}:{O+4*i+3}], v{tO}, s[44:47], s{80+i} offen offset:{off} {ONT}")
    WS_ = lambda h, st: 20 + 40 * h + 4 * st
    XS_ = lambda st: 100 + 4 * st
    n1 = lambda st: 2 if st % 5 == 4 else 1
    def mm2(p, st):
        ac = v(4 if p < 4 else AC2, 16); h = p % 2
        c = "0" if (p % 4 == 0 and st == 0) else ac
        a(f"v_mfma_f32_32x32x16_bf16 {ac}, v[{WS_(h,st)}:{WS_(h,st)+3}], v[{XS_(st)}:{XS_(st)+3}], {c}")
    for st in range(10): wrd(WS_(0, st), st)
    o_epilogue(a, OO, WS_OA, False)
    a(".p2align 3")
    nout = 0
    for p in range(8):
        a(f"s_waitcnt {'vmcnt(0) ' if p == 4 else ''}lgkmcnt({min(15, nout) if p > 4 else 0})\ns_barrier")
        if p == 7: a(f"s_mov_b32 s8, {-LX}\nv_add_u32 v{tX1}, s8, v{tX1}\nv_add_u32 v{tX2}, s8, v{tX2}")
        ct(a, f"k{p}")
        pend = []
        def X(st): xrd(XS_(st), st, 20480 * (p % 3) if p < 7 else 0); pend.extend([("x", st)] * n1(st))
        for k in range(4):
            X(2 * k); X(2 * k + 1)
            if p: mm2(p - 1, 6 + k)
        X(8); X(9)
        nx = len(pend)
        wshift(p)
        nw = [(0, 1), (2, 3), (4,), (5, 6), (7, 8), (9,)]
        for st in range(6 if p < 7 else 10):
            last = max(i for i, q in enumerate(pend) if q == ("x", st))
            a(f"s_waitcnt lgkmcnt({min(15, len(pend) - 1 - last)})\ns_nop 0")
            mm2(p, st)
            if p < 7:
                for w in nw[st]:
                    wrd(WS_(1 - p % 2, w), w, 25600 * ((p + 1) % 2)); pend.extend([("w", w)] * n1(w))
            if p == 7 and st == 0:
                m_turn(4); pend.extend([("o", 0)] * 6)
            if p == 7 and st == 6:
                a("s_waitcnt lgkmcnt(0)\ns_nop 0"); m_store(4, 1280)
        nout = len(pend) - nx
        if p == 1:
            a(f"""
            v_lshrrev_b32 v{tO}, 2, v0
            v_and_b32 v3, 3, v0
            s_mul_i32 s8, s3, 2560
            s_add_u32 s8, s8, {LX + 40960}
            v_mul_u32_u24 v{SW}, 80, v1
            v_lshl_add_u32 v{SW}, v2, 3, v{SW}
            v_add_u32 v{SW}, s8, v{SW}
            v_lshlrev_b32 v3, 4, v3
            v_mul_u32_u24 v{SR}, 80, v{tO}
            v_add3_u32 v{SR}, v{SR}, v3, s8
            v_mul_u32_u24 v{tO}, 2560, v{tO}
            v_add_u32 v{tO}, v{tO}, v3
            s_add_u32 s81, s80, {16*2560}
            .p2align 3
            """)
        if p == 4:
            a(NANCHK.format("s[48:49]", 4)); m_pack(4)
    a("s_nop 11")
    a(NANCHK.format("s[50:51]", AC2))
    m_pack(AC2, AC2); m_turn(AC2); a("s_waitcnt lgkmcnt(0)"); m_store(AC2, 0)
    def m_out():
        m_pack(OUT); m_turn(OUT); a("s_waitcnt lgkmcnt(0)"); m_store(OUT, 0)
    a("s_or_b64 vcc, s[48:49], s[50:51]\ns_cbranch_scc1 TLm_redo")
    a.label("TLm_end")
    stamp_end(a)
    a("s_endpgm")
    def redo(pfx, nacc, loads, mfmas, out):
        a.label(pfx + "_redo")
        if OPT.get("cntredo"):
            srd(a, 64, 34, 256)
            a("s_or_b32 s8, s48, s49\ns_cmp_lg_u32 s8, 0\ns_cselect_b32 s8, 8, 4\nv_mov_b32 v100, s8\nv_mov_b32 v101, 1\ns_mov_b64 exec, 1\nbuffer_atomic_add v101, v100, s[64:67], 0 offen\ns_mov_b64 exec, -1")
        a(f"v_add_u32 v{tW1}, s75, v{tW1}\nv_add_u32 v{tW2}, s75, v{tW2}")
        a(f"v_lshlrev_b32 v100, 2, v0\ns_lshl_b32 s52, s4, 7\ns_add_u32 s52, s52, {FL_OA}")
        a(f"s_mul_i32 s13, s4, 81920\ns_mul_i32 s53, s5, 102400\ns_add_u32 s53, s53, {WS_WPA}\ns_mov_b32 s54, 0")
        a.label(pfx + "_rj")
        poll(a, "s52", 8, "v101", "v100")
        for i in range(4, 4 + nacc): a(f"v_mov_b32 v{i}, 0")
        a("s_add_u32 s69, s5, s4\ns_mov_b32 s56, 0")
        a.label(pfx + "_rl")
        a(f"s_and_b32 s69, s69, 3\ns_mul_i32 s8, s69, 20480\ns_add_u32 s8, s8, s13\ns_add_u32 s9, s8, 4096\ns_add_u32 s10, s8, 10240\ns_add_u32 s11, s8, {10240+4096}")
        a("s_mul_i32 s12, s69, 25600\ns_add_u32 s12, s12, s53")
        loads()
        a("s_waitcnt vmcnt(0)")
        mfmas()
        a(f"s_add_u32 s69, s69, 1\ns_add_u32 s56, s56, 1\ns_cmp_lt_u32 s56, 4\ns_cbranch_scc1 {pfx}_rl")
        a("s_nop 11")
        out()
        a(f"s_add_u32 s80, s80, 1280\ns_add_u32 s81, s81, 1280\ns_add_u32 s13, s13, {WS_OB - WS_OA}")
        a(f"s_sub_u32 s52, s52, {FL_OA - FL_OB}\ns_sub_u32 s53, s53, {WS_WPA - WS_WPB}")
        a(f"s_add_u32 s54, s54, 1\ns_cmp_lt_u32 s54, 2\ns_cbranch_scc1 {pfx}_rj\ns_branch {pfx}_end")
    def gw(d, n, addr, off):
        a(f"s_add_u32 s14, s12, {off}")
        a(f"buffer_load_dwordx{n} v[{d}:{d+n-1}], v{addr}, s[40:43], s14 offen sc1")
    def m_loads():
        for st in range(10):
            t, H = divmod(st, 5); d = F[st] + 4
            if H < 4:
                a(f"buffer_load_dwordx4 v[{d}:{d+3}], v{tX1}, s[40:43], s{8+2*t} offen offset:{1024*H} sc1")
                gw(F[st], 4, tW1, 12800 * t + 3200 * H)
            else:
                for hf in range(2):
                    a(f"buffer_load_dwordx2 v[{d+2*hf}:{d+2*hf+1}], v{tX2}, s[40:43], s{9+2*t} offen offset:{512*hf} sc1")
                    gw(F[st] + 2 * hf, 2, tW2, 12800 * t + 6400 * hf)
    redo("TLm", 16, m_loads, lambda: [mmf(st) for st in range(10)], m_out)
    def zw(d, j, o=0):
        if j < 4: a(f"ds_read_b128 v[{d}:{d+3}], v{tW1} offset:{o+6400*j}")
        else:
            for t in range(2): a(f"ds_read_b64 v[{d+2*t}:{d+2*t+1}], v{tW2} offset:{o+12800*t}")
    def zx(d, j, o=0):
        if j < 4: a(f"ds_read_b128 v[{d}:{d+3}], v{tX1} offset:{o+(j>>1)*10240+(j&1)*2048}")
        else:
            for t in range(2): a(f"ds_read_b64 v[{d+2*t}:{d+2*t+1}], v{tX2} offset:{o+4096+10240*t}")
    def zmf(j): a(f"v_mfma_f32_16x16x32_bf16 v[4:7], v[{F[j]}:{F[j]+3}], v[{F[j]+4}:{F[j]+7}], v[4:7]")
    def z_pack(O, A=4):
        a(f"v_cvt_pk_bf16_f32 v{O}, v{A}, v{A+1}\nv_cvt_pk_bf16_f32 v{O+1}, v{A+2}, v{A+3}")
        a(f"ds_bpermute_b32 v{O}, v{SR}, v{O}\nds_bpermute_b32 v{O+1}, v{SR}, v{O+1}")
    def z_out():
        z_pack(OUT)
        a("s_waitcnt lgkmcnt(0)")
        a(f"buffer_store_dwordx2 v[{OUT}:{OUT+1}], v{tO}, s[44:47], s80 offen offset:128 {ONT}")
    a.label("TLz_start")
    for j in range(5): zw(F[j], j)
    o_epilogue(a, OO, WS_OA, False)
    for p in range(8):
        if p <= 4: a(f"s_waitcnt {'vmcnt(0) ' if p == 4 else ''}lgkmcnt(0)")
        a("s_barrier")
        if p == 7: a(f"s_mov_b32 s8, {-LX}\nv_add_u32 v{tX1}, s8, v{tX1}\nv_add_u32 v{tX2}, s8, v{tX2}")
        for j in range(5): zx(F[j] + 4, j, 20480 * (p % 3) if p < 7 else 0)
        wshift(p)
        if p == 1:
            a(f"""
            v_lshrrev_b32 v{tO}, 2, v0
            v_and_b32 v3, 3, v0
            v_lshl_add_u32 v{SR}, v3, 4, v{tO}
            v_lshlrev_b32 v{SR}, 2, v{SR}
            v_mul_u32_u24 v{tO}, 2560, v{tO}
            v_lshl_add_u32 v{tO}, v3, 3, v{tO}
            """)
        if p == 7: a(f"buffer_store_dwordx2 v[12:13], v{tO}, s[44:47], s80 offen offset:{1280+128} {ONT}")
        ac = v(4 if p < 4 else 8, 4)
        for j in range(5):
            w = (5 if j < 4 else 4) if p < 7 else (5 - j if j < 4 else 0)
            c = "0" if (p % 4 == 0 and j == 0) else ac
            a(f"s_waitcnt lgkmcnt({w})\nv_mfma_f32_16x16x32_bf16 {ac}, v[{F[j]}:{F[j]+3}], v[{F[j]+4}:{F[j]+7}], {c}")
            if p < 7: zw(F[j], j, 25600 * ((p + 1) % 2))
        if p == 4:
            a(NANCHK.format("s[48:49]", 4)); z_pack(12)
    a("s_nop 7")
    a(NANCHK.format("s[50:51]", 8))
    z_pack(14, 8)
    a("s_waitcnt lgkmcnt(0)")
    a(f"buffer_store_dwordx2 v[14:15], v{tO}, s[44:47], s80 offen offset:128 {ONT}")
    a("s_or_b64 vcc, s[48:49], s[50:51]\ns_cbranch_scc1 TLz_redo")
    a.label("TLz_end")
    stamp_end(a)
    a("s_endpgm")
    def z_loads():
        for j in range(5):
            d = F[j] + 4
            if j < 4:
                a(f"buffer_load_dwordx4 v[{d}:{d+3}], v{tX1}, s[40:43], s{8+2*(j>>1)} offen offset:{2048*(j&1)} sc1")
                gw(F[j], 4, tW1, 6400 * j)
            else:
                for t in range(2):
                    a(f"buffer_load_dwordx2 v[{d+2*t}:{d+2*t+1}], v{tX2}, s[40:43], s{9+2*t} offen sc1")
                    gw(F[j] + 2 * t, 2, tW2, 12800 * t)
    redo("TLz", 4, z_loads, lambda: [zmf(j) for j in range(5)], z_out)
    a.label("AT_fallback")
    FM = BACC
    a("s_mov_b32 exec_lo, 0")
    a(f"v_mov_b32 v{QB}, 0\nv_mov_b32 v{QB+1}, 0")
    a("s_mov_b32 exec_lo, -1")
    a(f"v_mov_b32 v{FM}, 0xff800000")
    a(f"s_mov_b32 s70, {WS_KV - LKV}")
    a.label("AT_fb1")
    a(f"buffer_load_dwordx4 v[{KA}:{KA+3}], v{aKA}, s[40:43], s70 offen sc1")
    a(f"buffer_load_dwordx2 v[{KB}:{KB+1}], v{aKB}, s[40:43], s70 offen sc1")
    a("s_waitcnt vmcnt(0)")
    qka(S0); qkb(S0)
    a("s_nop 15")
    rowmax(a, S0, FM, first=False)
    a(f"s_add_u32 s70, s70, {TILE}\ns_cmp_lt_u32 s70, {WS_KV-LKV+64*TILE}\ns_cbranch_scc1 AT_fb1")
    set_m(a, FM, FM + 1, FM + 2)
    for i in range(16): a(f"v_mov_b32 v{OO+i}, 0")
    a(f"s_mov_b32 s70, {WS_KV - LKV}")
    a.label("AT_fb2")
    a(f"buffer_load_dwordx4 v[{KA}:{KA+3}], v{aKA}, s[40:43], s70 offen sc1")
    a(f"buffer_load_dwordx2 v[{KB}:{KB+1}], v{aKB}, s[40:43], s70 offen sc1")
    a(f"buffer_load_dwordx4 v[{V0}:{V0+3}], v{aV0}, s[40:43], s70 offen sc1")
    a(f"buffer_load_dwordx4 v[{V1}:{V1+3}], v{aV1}, s[40:43], s70 offen sc1")
    a("s_waitcnt vmcnt(0)")
    qka(S0); qkb(S0)
    a("s_nop 15")
    E(S0, 0, 16)
    a("s_nop 0")
    for g in range(4): C(S0, g)
    a("s_nop 1")
    pv0(); pv1()
    a(f"s_add_u32 s70, s70, {TILE}\ns_cmp_lt_u32 s70, {WS_KV-LKV+64*TILE}\ns_cbranch_scc1 AT_fb2")
    a("s_nop 15")
    a("s_branch AT_ok")

    LK = "s[62:63]"
    A_, B_, KV_, P_, WO_ = "L_issueA", "L_issueB", "L_issueKV", "L_issueP", "L_issueWo"
    a.label("L_md")
    tr_init(a); tr(a)
    p4, p8 = ("s4", "s5") if MAP48 else ("s5", "s4")
    a(f"""
    s_and_b32 s8, {p4}, 1
    s_mul_i32 s8, s8, 5
    s_and_b32 s9, {p4}, 2
    s_add_u32 s8, s8, s9
    s_and_b32 s9, {p8}, 7
    s_add_u32 s11, s8, s9
    s_cmp_ge_u32 s11, 10
    s_cselect_b32 s8, 10, 0
    s_sub_u32 s11, s11, s8
    s_mov_b32 s12, 0
    s_lshl_b32 s8, s10, 2
    s_lshl_b32 s9, s10, 3
    v_lshrrev_b32 v20, 4, v0
    v_add_u32 v20, s8, v20
    v_xor_b32 v20, v20, v0
    v_and_b32 v20, 7, v20
    v_lshlrev_b32 v20, 4, v20
    v_lshrrev_b32 v21, 3, v0
    v_add_u32 v21, s9, v21
    v_mul_u32_u24 v21, 1280, v21
    v_add_u32 v2, v20, v21
    s_mov_b32 s8, 1120
    """)
    for p in range(5):
        a(f"v_add_u32 v20, {64*p}, v0")
        a(f"v_mul_u32_u24 v{22+p}, 6554, v20")
        a(f"v_lshrrev_b32 v{22+p}, 16, v{22+p}")
        a(f"v_lshlrev_b32 v20, 4, v20")
        a(f"v_mad_u32_u24 v{3+p}, v{22+p}, s8, v20")
    a("s_mul_i32 s64, s5, 160")
    a(f"s_mul_i32 s65, s10, {32*1280}")
    a("s_add_u32 s65, s65, s64")
    srd(a, 48, 18, 640 * 1280)
    call(a, A_, LK)
    a("s_waitcnt vmcnt(9)"); bar(a)
    call(a, A_, LK); call(a, A_, LK)
    a("s_mov_b32 s70, 0")
    a.label("L_a")
    a("s_waitcnt vmcnt(18)"); bar(a); call(a, A_, LK)
    a("s_add_u32 s70, s70, 1\ns_cmp_lt_u32 s70, 7\ns_cbranch_scc1 L_a")
    srd(a, 40, 36, WS_SIZE)
    srd(a, 72, 26, XBYTES)
    srd(a, 76, 28, 640 * 3840)
    a("s_waitcnt vmcnt(18)"); bar(a)
    a("s_mov_b32 s8, 2560\ns_mov_b32 s9, 1280")
    for p in range(5):
        a(f"v_mad_u32_u24 v{8+p}, v{22+p}, s8, v{3+p}")
        a(f"v_lshrrev_b32 v20, 1, v{22+p}")
        a(f"v_mad_u32_u24 v{13+p}, v20, s9, v{3+p}")
    a(f"s_mul_i32 s66, s10, {32*3840}")
    a("s_add_u32 s66, s66, s64")
    a("s_add_u32 s67, s66, 1280")
    get_nonce(a, "v30", "v31")
    a("s_waitcnt vmcnt(9)"); bar(a)
    a("s_waitcnt vmcnt(0)"); bar(a)
    a("s_mov_b32 s12, 0")
    a("s_add_u32 s69, s5, s4\ns_and_b32 s69, s69, 3")
    a("s_cmp_eq_u32 s10, 1")
    a("s_cbranch_scc1 L1_path")
    a(f"s_add_u32 s60, s7, {4 if BS >= 2 else 3}\ns_and_b32 s60, s60, 15")
    a(f"s_mov_b32 s61, {LKV if BS >= 2 else LKV + 3*CH}")
    a("s_lshl_b32 s56, s4, 7\ns_lshl_b32 s57, s5, 2\ns_add_u32 s57, s57, s56")
    a("v_lshlrev_b32 v19, 2, v0")

    pad(a, "b0")
    B1_, B2_ = "L_issueB1", "L_issueB2"
    a(f"v_mov_b32 v33, {LMISC}")
    bar(a); gs(a, 8); call(a, B1_, LK)
    bar(a); call(a, B2_, LK)
    a("s_mov_b32 s9, 0")
    a.label("L0_c0")
    a("ds_read_b32 v32, v33 offset:4\ns_add_u32 s9, s9, 1\ns_waitcnt lgkmcnt(0)\nv_readfirstlane_b32 s8, v32")
    a(f"s_cmp_gt_u32 s9, {SPIN_MAX}\ns_cbranch_scc1 L0_c1\ns_cmp_ge_u32 s8, 8\ns_cbranch_scc1 L0_c1\ns_sleep 2\ns_branch L0_c0")
    a.label("L0_c1")
    tr(a)
    call(a, KV_, LK); call(a, B_, LK)
    tr(a)
    pad(a, "f0")
    a("s_waitcnt vmcnt(19)"); bar(a); call(a, B_, LK); call(a, KV_, LK)
    a("s_waitcnt vmcnt(30)"); bar(a); call(a, B_, LK); call(a, KV_, LK)
    a("s_waitcnt vmcnt(30)"); bar(a); call(a, B_, LK); call(a, KV_, LK)
    a("s_mov_b32 s70, 0")
    a.label("L0_f")
    a("s_waitcnt vmcnt(30)"); bar(a); call(a, B_, LK)
    a("s_waitcnt vmcnt(19)"); bar(a); call(a, B_, LK); call(a, KV_, LK)
    a("s_add_u32 s70, s70, 1\ns_cmp_lt_u32 s70, 2\ns_cbranch_scc1 L0_f")
    a("s_waitcnt vmcnt(30)"); bar(a); call(a, B_, LK)
    a("s_waitcnt vmcnt(19)"); bar(a); call(a, KV_, LK)
    pad(a, "f9")
    a("s_waitcnt vmcnt(11)"); bar(a)
    a(f"s_mov_b32 s12, 0\ns_mul_i32 s64, s5, 102400\ns_add_u32 s64, s64, {WS_WPB}")
    bar(a); call(a, KV_, LK)
    a("s_waitcnt vmcnt(11)"); bar(a); call(a, KV_, LK)
    a("s_waitcnt vmcnt(11)"); bar(a); call(a, KV_, LK); call(a, WO_, LK)
    a("s_waitcnt vmcnt(0)"); bar(a); call(a, KV_, LK); call(a, WO_, LK); call(a, WO_, LK)
    a("s_waitcnt vmcnt(50)"); bar(a); call(a, KV_, LK)
    a("s_waitcnt vmcnt(11)"); bar(a); call(a, WO_, LK)
    a("s_waitcnt vmcnt(25)"); bar(a)
    a(f"s_add_u32 s13, s13, {WS_OB}")
    a(f"s_mov_b32 s61, {LX}")
    a(f"s_add_u32 s8, s56, {FL_HB}")
    poll(a, "s8", 8)
    call(a, P_, LK)
    pad(a, "b16")
    bar(a)
    gs(a, 9)
    call(a, P_, LK)
    a(f"s_add_u32 s70, s57, {FL_H}\ns_add_u32 s71, s56, {FL_H}")
    pad(a, "t0")
    a("s_waitcnt vmcnt(20)"); bar(a)
    publish(a, "s70", "v30", "v31")
    call(a, P_, LK)
    a("s_waitcnt vmcnt(21)"); bar(a)
    call(a, P_, LK)
    a(f"s_sub_u32 s13, s13, {WS_OB - WS_OA}")
    set_exec(a, 8)
    a("buffer_load_dword v32, v19, s[40:43], s71 offen sc1\ns_mov_b64 exec, -1")
    a("s_waitcnt vmcnt(21)"); bar(a)
    set_exec(a, 8)
    a("s_waitcnt vmcnt(0)\nv_cmp_ne_u32 vcc, s96, v32\ns_nop 1\ns_cbranch_vccz L0_go")
    a("buffer_load_dword v32, v19, s[40:43], s71 offen sc1\ns_waitcnt vmcnt(0)\nv_cmp_ne_u32 vcc, s96, v32\ns_mov_b64 exec, -1")
    a("s_cbranch_vccnz L0_late")
    a.label("L0_go")
    a("s_mov_b64 exec, -1")
    call(a, P_, LK)
    bar(a)
    a("s_branch L0_join")
    a.label("L0_late")
    bar(a)
    poll(a, "s71", 8)
    call(a, P_, LK)
    a.label("L0_join")
    gs(a, 7)
    call(a, P_, LK)
    pad(a, "t4")
    a("s_waitcnt vmcnt(20)"); bar(a)
    call(a, P_, LK)
    a("s_waitcnt vmcnt(20)"); bar(a)
    a("s_waitcnt vmcnt(0)"); bar(a)
    pad(a, "t7")
    a("s_waitcnt vmcnt(0)"); bar(a)
    pad(a, "end")
    tr_dump(a)
    a("s_endpgm")
    a.label("L1_path")
    srd(a, 48, 24, 640 * 1280)
    srd(a, 52, 30, 640 * 1280)
    a("s_lshl_b32 s56, s5, 5\ns_add_u32 s57, s56, s4")
    a(f"s_mul_i32 s68, s57, {PST}\ns_add_u32 s68, s68, {WS_KVP}")
    a("s_lshl_b32 s56, s5, 9\ns_lshr_b32 s8, s4, 3\ns_lshl_b32 s8, s8, 7\ns_and_b32 s57, s4, 7\ns_lshl_b32 s57, s57, 2\ns_add_u32 s57, s57, s8\ns_add_u32 s57, s57, s56")
    a("v_lshrrev_b32 v19, 3, v0\nv_lshlrev_b32 v19, 7, v19\nv_and_b32 v28, 7, v0\nv_lshl_add_u32 v19, v28, 2, v19")
    a(f"""
    v_lshrrev_b32 v48, 4, v0
    v_mul_u32_u24 v48, {8*PST}, v48
    v_and_b32 v49, 15, v0
    v_min_u32 v47, 13, v49
    v_lshl_add_u32 v48, v47, 4, v48
    v_lshlrev_b32 v49, 3, v49
    v_lshlrev_b32 v46, 7, v0
    """)
    for i in range(4): a(f"v_mov_b32 v{52+i}, -1")
    a(f"""
    v_bfe_u32 v20, v0, 2, 2
    v_mul_u32_u24 v20, 160, v20
    v_and_b32 v21, 3, v0
    v_lshl_add_u32 v20, v21, 3, v20
    v_add_u32 v20, {LRP}, v20
    v_lshrrev_b32 v21, 5, v0
    v_bfe_u32 v28, v0, 4, 1
    v_mul_u32_u24 v41, 1280, v21
    v_lshl_add_u32 v41, v28, 5, v41
    v_add_u32 v41, v41, v20
    v_mul_u32_u24 v42, 1280, v28
    v_add_u32 v42, v42, v20
    v_lshrrev_b32 v21, 4, v0
    v_lshl_add_u32 v43, v21, 5, v20
    v_lshlrev_b32 v44, 3, v0
    """)
    bar(a); call(a, B1_, LK)
    bar(a); call(a, B2_, LK)
    a(f"s_mov_b32 m0, {LRP}\ns_mul_i32 s8, s4, {20*1280}\ns_add_u32 s8, s8, s64")
    for sr in (52, 48):
        for p in range(4):
            dma(a, f"v{3+p}", sr, "s8")
            a("s_add_u32 m0, m0, 1024\ns_nop 0")
    call(a, B_, LK)
    a("s_waitcnt vmcnt(19)")
    for m in range(2):
        d, o = 100 + 16 * m, 4096 * m
        for blk in range(2):
            for hf in range(2): a(f"ds_read_b64_tr_b16 v[{d+4*blk+2*hf}:{d+4*blk+2*hf+1}], v41 offset:{o+64*blk+640*hf}")
        for hf in range(2): a(f"ds_read_b64_tr_b16 v[{d+8+2*hf}:{d+9+2*hf}], v42 offset:{o+128+640*hf}")
        a(f"ds_read_b64_tr_b16 v[{d+12}:{d+13}], v43 offset:{o+2560}")
        a(f"ds_read_b64_tr_b16 v[{d+14}:{d+15}], v43 offset:{o+2560+128}")
    a("s_waitcnt lgkmcnt(0)")
    bar(a); call(a, B_, LK)
    a("s_waitcnt vmcnt(19)"); bar(a); call(a, B_, LK)
    a("s_waitcnt vmcnt(19)"); bar(a); call(a, B_, LK)
    a("s_waitcnt vmcnt(19)"); bar(a); call(a, B_, LK)
    a(f"s_mul_i32 s64, s5, 102400\ns_mul_i32 s8, s4, 3200\ns_add_u32 s8, s8, s64\ns_add_u32 s9, s8, {WS_WPA}\ns_add_u32 s8, s8, {WS_WPB}\ns_add_u32 s64, s64, {WS_WPA}")
    for m in range(2):
        d = 100 + 16 * m
        a(f"buffer_store_dwordx4 v[{d}:{d+3}], v18, s[40:43], s{8+m} offen sc1")
        a(f"buffer_store_dwordx4 v[{d+4}:{d+7}], v18, s[40:43], s{8+m} offen offset:1024 sc1")
        a(f"buffer_store_dwordx2 v[{d+12}:{d+13}], v44, s[40:43], s{8+m} offen offset:2560 sc1")
    set_exec(a, 32)
    for m in range(2): a(f"buffer_store_dwordx4 v[{108+16*m}:{111+16*m}], v18, s[40:43], s{8+m} offen offset:2048 sc1")
    set_exec(a, 16)
    for m in range(2): a(f"buffer_store_dwordx2 v[{114+16*m}:{115+16*m}], v44, s[40:43], s{8+m} offen offset:3072 sc1")
    a("s_mov_b64 exec, -1")
    a("s_waitcnt vmcnt(29)"); bar(a); call(a, B_, LK)
    a("s_waitcnt vmcnt(29)"); bar(a); call(a, B_, LK)
    a(f"s_lshl_b32 s60, s5, 12\ns_add_u32 s60, s60, {WS_KVZ}\ns_mul_i32 s61, s4, 112\ns_add_u32 s61, s61, s60")
    set_exec(a, 14)
    a("buffer_store_dwordx2 v[52:53], v49, s[40:43], s61 offen sc1")
    a("s_add_u32 s65, s68, 4096")
    set_exec(a, 40)
    a("buffer_store_dwordx4 v[52:55], v18, s[40:43], s65 offen offset:2048 sc1")
    a("s_mov_b64 exec, -1")
    for i in range(6):
        a(f"buffer_store_dwordx4 v[52:55], v18, s[40:43], {'s68' if i < 4 else 's65'} offen offset:{1024*(i%4)} sc1")
    a("s_waitcnt vmcnt(27)"); bar(a); call(a, B_, LK)
    a("s_waitcnt vmcnt(19)"); bar(a)
    a(f"s_add_u32 s8, s57, {FL_P}")
    publish(a, "s8", "v30", "v31")
    call(a, B_, LK)
    a("s_waitcnt vmcnt(19)"); bar(a)
    a("s_waitcnt vmcnt(0)"); bar(a)
    def nanfill():
        a(f"s_mul_i32 s8, s5, 10240\ns_add_u32 s8, s8, s13\ns_add_u32 s9, s8, {WS_OB}")
        for i in range(10):
            if i in (4, 8): a("s_add_u32 s8, s8, 4096\ns_add_u32 s9, s9, 4096")
            for r in ("s8", "s9"): a(f"buffer_store_dwordx4 v[52:55], v18, s[40:43], {r} offen offset:{1024*(i%4)} sc1")
    a(f"s_add_u32 s8, s56, {FL_P}")
    poll(a, "s8", 32)
    a(f"s_and_b32 s8, s4, {3 if MAP48 else 7}\ns_mul_i32 s8, s8, {25600 if MAP48 else 12800}\ns_add_u32 s8, s8, s64\ns_mov_b32 exec_hi, 0x3ffff")
    for i, o in enumerate((0, 6400, 6400, 6400, WS_WPB - WS_WPA - 19200, 6400, 6400, 6400) if MAP48 else (0, 6400, WS_WPB - WS_WPA - 6400, 6400)):
        a(f"s_add_u32 s8, s8, {o}\nbuffer_load_dword v{140+i}, v46, s[40:43], s8 offen sc1")
    a("s_mov_b32 exec_hi, -1")
    nanfill()
    R = 60
    a(f"s_min_u32 s9, s4, 29\ns_mul_i32 s9, s9, 224\ns_mul_i32 s70, s5, {32*PST}\ns_add_u32 s70, s70, s9\ns_add_u32 s70, s70, {WS_KVP}")
    bar(a); bar(a)
    for i in range(7):
        a(f"ds_read_b128 v[{R+4*i}:{R+3+4*i}], v18 offset:{LPART+1024*i}")
    for i in range(7):
        a(f"s_waitcnt lgkmcnt({6-i})")
        if i == 6: a("s_mov_b32 exec_hi, 15")
        a(f"buffer_store_dwordx4 v[{R+4*i}:{R+3+4*i}], v18, s[40:43], {'s68' if i < 4 else 's65'} offen offset:{1024*(i%4)} sc1")
    a("s_mov_b32 exec_hi, -1")
    bar(a)
    a("s_sleep 8")
    a("s_mov_b32 s9, 0")
    Q = 100
    a.label("L1_p")
    a("s_mov_b32 s8, s70")
    for i in range(8):
        a(f"buffer_load_dwordx4 v[{Q+4*i}:{Q+3+4*i}], v48, s[40:43], s8 offen sc1")
        a(f"s_add_u32 s8, s8, {PST}")
    a("s_cmp_lg_u32 s9, 0\ns_cbranch_scc1 L1_p2")
    bar(a)
    a.label("L1_p2")
    a("s_add_u32 s9, s9, 1\ns_waitcnt vmcnt(0)")
    for i in range(4):
        for j in (0, 2): a(f"v_pk_add_f32 v[{R+4*i+j}:{R+1+4*i+j}], v[{Q+4*i+j}:{Q+1+4*i+j}], v[{Q+16+4*i+j}:{Q+17+4*i+j}]")
    for half in (2, 1):
        for i in range(half):
            for j in (0, 2): a(f"v_pk_add_f32 v[{R+4*i+j}:{R+1+4*i+j}], v[{R+4*i+j}:{R+1+4*i+j}], v[{R+4*(i+half)+j}:{R+1+4*(i+half)+j}]")
    a(f"v_pk_add_f32 v[30:31], v[{R}:{R+1}], v[{R+2}:{R+3}]\nv_cmp_u_f32 vcc, v30, v31\ns_nop 1\ns_cbranch_vccz L1_pd")
    a(f"v_max_u32 v30, v{Q}, v{Q+1}")
    for i in range(1, 16): a(f"v_max3_u32 v30, v30, v{Q+2*i}, v{Q+2*i+1}")
    a("v_cmp_eq_u32 vcc, -1, v30")
    a(f"s_cmp_gt_u32 s9, {SPIN_MAX}\ns_cbranch_scc1 L1_pd\ns_cbranch_vccz L1_pd\ns_sleep 1\ns_branch L1_p")
    a.label("L1_pd")
    for op in ("v_permlane32_swap_b32", "v_permlane16_swap_b32"):
        for j in range(4): a(f"v_mov_b32 v{R+4+j}, v{R+j}")
        a("s_nop 1")
        for j in range(4): a(f"{op} v{R+j}, v{R+4+j}")
        a("s_nop 1")
        for j in range(4): a(f"v_add_f32 v{R+j}, v{R+j}, v{R+4+j}")
    a(f"""
    v_cvt_pk_bf16_f32 v{R}, v{R}, v{R+1}
    v_cvt_pk_bf16_f32 v{R+1}, v{R+2}, v{R+3}
    v_min_u32 v{R}, -2, v{R}
    v_min_u32 v{R+1}, -2, v{R+1}
    s_mov_b32 exec_lo, 0x3fff
    s_mov_b32 exec_hi, 0
    buffer_store_dwordx2 v[{R}:{R+1}], v49, s[40:43], s61 offen sc1
    s_mov_b64 exec, -1
    """)
    for i in range(4): a(f"v_mov_b32 v{Q+12+i}, 0")
    a(f"v_add_u32 v50, {LKVZ}, v18")
    bar(a)
    a("s_mov_b32 s9, 0")
    a.label("L1_g")
    for i in range(4):
        if i == 3: set_exec(a, 18)
        a(f"buffer_load_dwordx4 v[{Q+4*i}:{Q+3+4*i}], v18, s[40:43], s60 offen offset:{1024*i} sc1")
    a("s_mov_b64 exec, -1")
    a("s_add_u32 s9, s9, 1\ns_waitcnt vmcnt(0)")
    a(f"v_max_u32 v30, v{Q}, v{Q+1}")
    for i in range(1, 8): a(f"v_max3_u32 v30, v30, v{Q+2*i}, v{Q+2*i+1}")
    a("v_cmp_eq_u32 vcc, -1, v30")
    a(f"s_cmp_gt_u32 s9, {SPIN_MAX}\ns_cbranch_scc1 L1_gd\ns_cbranch_vccz L1_gd\ns_sleep 1\ns_branch L1_g")
    a.label("L1_gd")
    for i in range(4): a(f"ds_write_b128 v50, v[{Q+4*i}:{Q+3+4*i}] offset:{1024*i}")
    a("s_waitcnt lgkmcnt(0)")
    bar(a)
    a("s_mov_b32 s12, 0")
    bar(a); bar(a)
    a(f"s_lshl_b32 s70, s4, 7\ns_lshl_b32 s8, s5, 2\ns_add_u32 s70, s70, s8\ns_add_u32 s71, s70, {FL_OB}\ns_add_u32 s70, s70, {FL_OA}")
    bar(a); call(a, WO_, LK)
    bar(a); call(a, WO_, LK)
    a("s_waitcnt vmcnt(38)"); bar(a); call(a, WO_, LK)
    a("s_waitcnt vmcnt(38)"); bar(a); call(a, WO_, LK)
    a("s_add_u32 s69, s69, 3\ns_and_b32 s69, s69, 3\ns_mov_b32 s61, 0")
    a("s_waitcnt vmcnt(40)"); bar(a)
    call(a, P_, LK)
    publish(a, "s70", "v30", "v31"); publish(a, "s71", "v30", "v31")
    a("s_waitcnt vmcnt(47)"); bar(a)
    a("s_waitcnt vmcnt(22)"); bar(a)
    a("s_waitcnt vmcnt(2)"); bar(a)
    tr_dump(a)
    a.label("L_end")
    a("s_endpgm")
    a.label(A_)
    issue_x(a, 44, "s13", "s12")
    issue_w(a, 48, 3, 1280, "s65", "s12", IMG_W)
    wrap_inc(a, "s11", 1, 10); wrap_inc(a, "s12", HS, 6 * HS)
    a("s_setpc_b64 s[62:63]")
    a.label("L_issueB1")
    issue_x(a, 72, "s13", "s12")
    issue_w(a, 76, 8, 3840, "s66", "s12", IMG_W)
    a("s_setpc_b64 s[62:63]")
    a.label(B_)
    if OPT.get("lprio"): a("s_setprio " + OPT["lprio"])
    issue_x(a, 72, "s13", "s12")
    issue_w(a, 76, 8, 3840, "s66", "s12", IMG_W)
    a.label("L_issueB2")
    issue_w(a, 76, 13, 3840, "s67", "s12", IMG_KV, periods=2, rows_per_period=16)
    wrap_inc(a, "s11", 1, 10); wrap_inc(a, "s12", SLOT, 3 * SLOT)
    if OPT.get("lprio"): a("s_setprio 2")
    a("s_setpc_b64 s[62:63]")
    def lin(n):
        for i in range(n):
            if i % 4 == 0 and i > 0:
                a("s_add_u32 m0, m0, 4096")
                a("s_add_u32 s14, s14, 4096")
            a(f"buffer_load_dwordx4 v18, s[40:43], s14 offen offset:{1024*(i%4)} sc1 lds")
    a.label(KV_)
    a("s_mov_b32 m0, s61")
    a(f"s_mul_i32 s14, s60, {CH}")
    a(f"s_add_u32 s14, s14, {WS_KV}")
    lin(11)
    a("s_add_u32 s60, s60, 1\ns_and_b32 s60, s60, 15")
    wrap_inc(a, "s61", CH, LKV + 4 * CH, LKV)
    a("s_setpc_b64 s[62:63]")
    a.label(P_)
    a("s_mov_b32 m0, s61")
    a("s_mul_i32 s14, s69, 20480")
    a("s_add_u32 s14, s14, s13")
    lin(20)
    a("s_add_u32 s69, s69, 1\ns_and_b32 s69, s69, 3")
    wrap_inc(a, "s61", 20480, LX + 3 * 20480, LX)
    a("s_setpc_b64 s[62:63]")
    a.label(WO_)
    a("s_mov_b32 m0, s12")
    a("s_mul_i32 s14, s69, 25600")
    a("s_add_u32 s14, s14, s64")
    lin(25)
    a("s_add_u32 s69, s69, 1\ns_and_b32 s69, s69, 3")
    a("s_add_u32 s12, s12, 25600")
    a("s_setpc_b64 s[62:63]")
    a.label("L_codeend")

def main(out):
    a = Asm()
    a.lines.append(f"; @launch grid=(256,1,1) block=(640,1,1) lds={LDS_TOTAL}")
    a('.amdgcn_target "amdgcn-amd-amdhsa--gfx950"')
    a(".text")
    gen(a)
    a('.section .rodata,"a"')
    open(out, "w").write(a.text() + descriptor(NAME + "_kernel", NV, 102))

if __name__ == "__main__":
    main(sys.argv[1] if len(sys.argv) > 1 else f"cdna_kernels/{NAME}.s")
```

```python
import sys, struct, os
from asmlib import *

NAME = "concat_heads__grouped_kv_mqa__linear_attn_block__prompt"
STAMP = bool(os.environ.get("STAMP"))
OPT = dict(kv.split("=") for kv in os.environ.get("OPT", "").split(",") if kv)
PFB = int(OPT.get("pfb", 0))
ONT = OPT.get("ont", "nt")
MAP48 = int(OPT.get("map48", 0))
BS = 3
WS_OA, WS_OB, WS_KV, WS_KVP, WS_KVZ = 0x0, 0x280000, 0x500000, 0xA00000, 0x700000
PST = 6784
FL_KV, FL_P, FL_H, FL_OB, FL_OA = 0x718000, 0x720000, 0x728000, 0x730000, 0x738000
FL_HB = 0x72C000
LCNT = LMISC_ = 163840 - 8
FORCE_REDO = int(OPT.get('redo', 0))
WS_WPB, WS_WPA = 0x740000, 0x740000 + 8 * 102400
WS_ST = 0x900000
WS_SIZE = 0xE00000
TILE = 2816
CH = 4 * TILE
XBYTES = 2048 * 1280
SLOT = 38912
HS = SLOT // 2
IMG_W, IMG_KV = 8192, 18432
LKV = 3 * SLOT
LMISC = 163840 - 16
LKVZ = 112640
LMX = LKV
LWKV = LKV + 20480
LQ = 2 * SLOT
LFR, LPART = SLOT, 102400
LX = 102400
LRP = 2 * SLOT + 28672
LDS_TOTAL = 163840
SPIN_MAX = 1 << 17
def f32(x): return "0x%08x" % struct.unpack("<I", struct.pack("<f", x))[0]
LOG2E = 1.4426950408889634
CSCALE = LOG2E / (20 ** 0.5)

S0, S1, PP, KA, KB, QB, V0, V1, QA, OO, BACC, BFR = 4, 20, 36, 44, 48, 50, 52, 56, 60, 64, 80, 112
aKA, aKB, aV0, aV1, bW, bX = 136, 137, 138, 139, 140, 141
OAD0, OAD1 = 145, 146
PWR = 147
JA, JB, QF0, QF1, AP0, AP1 = 151, 152, 153, 154, 155, 156
tW1, tW2, tX1, tX2, tO, TL0, TL1 = 157, 158, 159, 160, 161, 162, 163
TLQ = [162, 163, 165, 166]
IDX = 167
NV = 168
CPF4 = int(OPT.get('cpf4', 1))
PQA, PQB = 128, 132
T = 4
AFR = [BFR, BFR + 12, 36, 48]
AACC = 4
MASKS = [92, 94, 98, 100]
POS = [[0, 1, 3, 4, 2], [1, 2, 0, 3, 4], [2, 3, 4, 0, 1], [3, 4, 0, 2, 1]]
INV = [[POS[r].index(p) for p in range(5)] for r in range(4)]
PAT = [int(c) for c in OPT.get("pat", "4333222222")]
FT = [int(OPT.get("f0", 10))]
for _n in PAT: FT.append(FT[-1] + _n)
TE = FT.pop()
C1 = TE + 1 + int(OPT.get("ept", 0)); C2 = C1 + 2
K1 = int(OPT.get("k1", 43)); C3 = int(OPT.get("c3", 53)); K3 = int(OPT.get("k3", 58)); K4 = int(OPT.get("k4", 61))
K2 = int(OPT.get("k2", 48)); KX = int(OPT.get("kx", 0))
BARS = [(f"f{p}", t) for p, t in enumerate(FT)] + [("c1", C1), ("c2", C2), ("k1", K1)] + ([("k2", K2)] if K2 else []) + [("c3", C3), ("k3", K3)] + ([("kx", KX)] if KX else []) + [("k4", K4)]
assert K3 >= 57 and K3 >= C3 + 2 and K4 >= 61
assert all(BARS[i][1] < BARS[i + 1][1] for i in range(len(BARS) - 1)), BARS
KV_ISSUE, KV_NEED = {}, {}
for _c in range(4, 16):
    _need = max(i for i, b in enumerate(BARS) if b[1] <= 4 * _c - 2)
    KV_NEED.setdefault(BARS[_need][0], []).append(_c)
    if _c > 4:
        _iss = min(i for i, b in enumerate(BARS) if b[1] >= 4 * _c - 11)
        assert _iss < _need, (_c, BARS)
        KV_ISSUE.setdefault(BARS[_iss][0], []).append(_c)
PLANS = {0: "qka e0 e1 e2 e3 qkb e4 e5 e6 e7 pv1 e8 e9 e10 e11 pv0 e12 e13 e14 e15",
         1: OPT.get("p1", "qka e0 e1 g01 e2 e3 e4 qkb e5 e6 e7 pv1 e8 e9 e10 g00 e11 e12 e13 pv0 e14 e15"),
         2: OPT.get("p2", "qka e0 e1 pv1 e2 qkb e3 e4 g10 e5 e6 g01 e7 e8 e9 g11 e10 g00 e11 e12 e13 pv0 e14 e15")}

class Stream:
    def __init__(s, a, st=()): s.a, s.lines, s.st = a, [], list(st)
    def need(s, tags):
        last = max([j for j, q in enumerate(s.st) if q in tags], default=-1)
        if last < 0: return
        cnt = min(15, len(s.st) - 1 - last)
        s.lines.insert(len(s.lines) - 1 if s.lines and s.lines[-1][0] == "e" else len(s.lines), ("4", f"s_waitcnt lgkmcnt({cnt})"))
        del s.st[:len(s.st) - cnt]
    def m(s, text, tags=()): s.need(tags); s.lines.append(("8", text))
    def r(s, tag, text): s.st.append(tag); s.lines.append(("8", text))
    def e(s, d, x): s.lines.append(("e", f"v_exp_f32 v{d}, v{x}"))
    def x4(s, *texts):
        for t in texts: s.lines.append(("4", t))
    def x8(s, *texts):
        for t in texts: s.lines.append(("8", t))
    def flush(s):
        off, res = 0, []
        def fix():
            if res[-1].startswith("v_exp_f32 "): res[-1] = res[-1].replace("v_exp_f32 ", "v_exp_f32_e64 ")
            else: res.append("s_nop 0")
        for k, t in s.lines:
            if k == "8" and off % 8: fix(); off += 4
            res.append(t); off += 8 if k == "8" else 4
        if off % 8: fix()
        for t in res: s.a(t)
        s.lines = []

class Loader:
    def __init__(s, a): s.a, s.q = a, []
    def ops(s, tag, n):
        if len(s.q) + n > 63: s.wait(63 - n)
        s.q += [tag] * n
    def wait(s, cnt): s.a(f"s_waitcnt vmcnt({cnt})"); del s.q[:len(s.q) - cnt]
    def need(s, tags):
        last = max([j for j, q in enumerate(s.q) if q in tags], default=-1)
        if last >= 0: s.wait(len(s.q) - 1 - last)
    def call(s, lbl, tag, n): s.ops(tag, n); s.a(f"s_call_b64 s[62:63], {lbl}")

def pack3(tab):
    x = 0
    for r in range(4):
        for j in range(5): x |= tab[r][j] << (3 * (5 * r + j))
    return x

def tr(a):
    if not STAMP: return
    a("""
    s_waitcnt lgkmcnt(0)
    s_sub_u32 s90, s88, s84
    s_memtime s[88:89]
    s_mov_b32 m0, s85
    s_add_u32 s85, s85, 1
    v_writelane_b32 v40, s90, m0
    """)
def tr_init(a):
    if STAMP: a("s_mov_b32 s85, 0\nv_mov_b32 v40, 0\ns_mov_b32 s88, s84")
def tr_dump(a):
    if not STAMP: return
    tr(a)
    a(f"""
    s_lshl_b32 s8, s2, 1
    s_add_u32 s8, s8, s10
    s_lshl_b32 s8, s8, 8
    s_add_u32 s8, s8, {WS_ST + 0x40000}
    v_lshlrev_b32 v8, 2, v0
    buffer_store_dword v40, v8, s[40:43], s8 offen
    """)
def stamp_end(a):
    if not STAMP: return
    a(f"""
    s_memtime s[12:13]
    s_waitcnt vmcnt(0)
    s_memtime s[88:89]
    s_memrealtime s[90:91]
    s_waitcnt lgkmcnt(0)
    s_mov_b64 exec, -1
    s_sub_u32 s88, s88, s84
    s_sub_u32 s12, s12, s84
    v_mov_b32 v4, s86
    v_mov_b32 v5, s90
    v_mov_b32 v6, s88
    v_mov_b32 v7, s12
    s_lshl_b32 s8, s2, 4
    s_add_u32 s8, s8, s3
    s_lshl_b32 s8, s8, 4
    s_add_u32 s8, s8, {WS_ST}
    v_mov_b32 v8, 0
    buffer_store_dwordx4 v[4:7], v8, s[40:43], s8 offen
    """)
    for i in range(8): a(f"s_sub_u32 s{16+2*i}, s{16+2*i}, s84\nv_mov_b32 v{12+i}, s{16+2*i}")
    a(f"s_sub_u32 s8, s8, {WS_ST}\ns_lshl_b32 s8, s8, 1\ns_add_u32 s8, s8, {WS_ST + 0xC0000}")
    a("buffer_store_dwordx4 v[12:15], v8, s[40:43], s8 offen\nbuffer_store_dwordx4 v[16:19], v8, s[40:43], s8 offen offset:16")
CTP = OPT.get("ct", "").split("+")
def ct(a, name):
    if STAMP and name in CTP:
        i = CTP.index(name)
        a(f"s_memtime s[{16+2*i}:{17+2*i}]")
def gs(a, idx, t0="v36", t1="v37"):
    if not STAMP: return
    a(f"""
    s_memrealtime s[14:15]
    s_waitcnt lgkmcnt(0)
    v_mov_b32 {t0}, s14
    s_lshl_b32 s14, s2, 6
    s_add_u32 s14, s14, {WS_ST + 0x80000 + 4*idx}
    v_mov_b32 {t1}, 0
    buffer_store_dword {t0}, {t1}, s[40:43], s14 offen
    """)
def pad(a, where):
    p = OPT.get("pad", "")
    if not p.startswith(where + ":"): return
    l = a.newlabel("Lpad")
    a.label(l)
    a(f"s_memrealtime s[14:15]\ns_waitcnt lgkmcnt(0)\ns_sub_u32 s14, s14, s96\ns_cmp_lt_u32 s14, {p.split(':')[1]}\ns_cbranch_scc1 {l}")
def bar(a):
    a("s_barrier"); tr(a)

def dma(a, voff, srdi, soff, extra=""):
    a(f"buffer_load_dwordx4 {voff}, s[{srdi}:{srdi+3}], {soff} offen {extra} lds")
def issue_x(a, srdi, sbase, lds_sgpr):
    a(f"s_lshl_b32 s15, s10, 10")
    a(f"s_add_u32 m0, s15, {lds_sgpr}")
    a(f"s_lshl_b32 s14, s11, 7")
    a(f"s_add_u32 s14, s14, {sbase}")
    for jj in range(4):
        dma(a, "v2", srdi, "s14")
        if jj < 3:
            a("s_add_u32 m0, m0, 2048")
            a("s_add_u32 s14, s14, 20480")
def issue_w(a, srdi, voffs, ld, sbase, lds_sgpr, ldsoff, periods=1, rows_per_period=32):
    a(f"s_mul_i32 s15, s10, {5120*periods}")
    a(f"s_add_u32 s15, s15, {lds_sgpr}")
    a(f"s_add_u32 m0, s15, {ldsoff}")
    a(f"s_mul_i32 s14, s11, {64*ld}")
    a(f"s_add_u32 s14, s14, {sbase}")
    for per in range(periods):
        for p in range(5):
            dma(a, f"v{voffs+p}", srdi, "s14")
            if not (per == periods - 1 and p == 4):
                a("s_add_u32 m0, m0, 1024")
                a(f"s_add_u32 s14, s14, {rows_per_period*ld}" if p == 4 else "s_nop 0")
def wrap_inc(a, reg, step, limit, base=0):
    a(f"s_add_u32 {reg}, {reg}, {step}")
    a(f"s_cmp_eq_u32 {reg}, {limit}")
    a(f"s_cselect_b32 {reg}, {base}, {reg}")
def set_exec(a, n):
    m = (1 << n) - 1
    a(f"s_mov_b32 exec_lo, {m & 0xffffffff:#x}\ns_mov_b32 exec_hi, {m >> 32:#x}")
def poll(a, soff, nlanes, tmp="v30", addr="v19"):
    lp, dn = a.newlabel("Lpoll"), a.newlabel("Lpd")
    set_exec(a, nlanes)
    a("s_mov_b32 s9, 0")
    a.label(lp)
    a(f"buffer_load_dword {tmp}, {addr}, s[40:43], {soff} offen sc1")
    a("s_add_u32 s9, s9, 1")
    a("s_waitcnt vmcnt(0)")
    a(f"v_cmp_ne_u32 vcc, s96, {tmp}")
    a(f"s_cmp_gt_u32 s9, {SPIN_MAX}")
    a(f"s_cbranch_scc1 {dn}")
    a(f"s_cbranch_vccz {dn}")
    a("s_sleep 1")
    a(f"s_branch {lp}")
    a.label(dn)
    a("s_mov_b64 exec, -1")
def publish(a, soff, tmp, zero):
    a(f"v_mov_b32 {tmp}, s96")
    a(f"v_mov_b32 {zero}, 0")
    a("s_mov_b64 exec, 1")
    a(f"buffer_store_dword {tmp}, {zero}, s[40:43], {soff} offen sc1")
    a("s_mov_b64 exec, -1")
def get_nonce(a, tmp, addr):
    a(f"v_mov_b32 {addr}, {LMISC}")
    a(f"ds_read_b32 {tmp}, {addr}")
    a("s_waitcnt lgkmcnt(0)")
    a(f"v_readfirstlane_b32 s96, {tmp}")
def call(a, lbl, link="s[58:59]"):
    a(f"s_call_b64 {link}, {lbl}")
def pf_rows(a, vd, ld, s0, s1):
    a(f"""
    v_mul_u32_u24 v{vd}, 52429, v0
    v_lshrrev_b32 v{vd}, 18, v{vd}
    v_mul_u32_u24 v{vd+1}, 5, v{vd}
    v_sub_u32 v{vd+1}, v0, v{vd+1}
    v_mul_u32_u24 v{vd}, {ld}, v{vd}
    v_lshl_add_u32 v{vd}, v{vd+1}, 7, v{vd}
    s_mul_i32 {s0}, s7, {20*ld}
    s_and_b32 s8, s6, 1
    s_mul_i32 s8, s8, 640
    s_add_u32 {s0}, {s0}, s8
    s_add_u32 {s1}, {s0}, {10*ld}
    """)
def pf_x(a, srdi, vaddr, vd):
    a(f"""
    s_lshr_b32 s8, s6, 1
    s_mul_i32 s8, s8, {512*1280}
    s_mul_i32 s9, s7, 20480
    s_add_u32 s8, s8, s9
    s_add_u32 s9, s8, 8192
    buffer_load_dword v{vd}, {vaddr}, s[{srdi}:{srdi+3}], s8 offen
    buffer_load_dword v{vd+1}, {vaddr}, s[{srdi}:{srdi+3}], s9 offen
    s_add_u32 s9, s8, 16384
    s_mov_b32 exec_hi, 0
    buffer_load_dword v{vd+2}, {vaddr}, s[{srdi}:{srdi+3}], s9 offen
    s_mov_b32 exec_hi, -1
    """)

def phi_sub(a):
    a.label("g_pack")
    a("s_mov_b64 exec, -1")
    for i in range(16):
        a(f"v_cvt_pk_bf16_f32 v{BACC+i}, v{BACC+2*i}, v{BACC+2*i+1}")
    a("s_setpc_b64 s[58:59]")
def read_qfrag(a, qa, qb):
    a(f"ds_read_b128 v[{qa}:{qa+3}], v{QF1}")
    a(f"ds_read_b64 v[{qb}:{qb+1}], v{QF0}")
def o_epilogue(a, O, wsoff, eps):
    if eps:
        a(f"v_add_f32 v{O+12}, {f32(1e-6)}, v{O+12}")
    a(f"v_rcp_f32 v{O+12}, v{O+12}")
    a(f"s_add_u32 s8, s81, {wsoff}")
    a(f"s_add_u32 s9, s82, {wsoff}")
    for i in range(0, 12, 2):
        a(f"v_pk_mul_f32 v[{O+i}:{O+i+1}], v[{O+i}:{O+i+1}], v[{O+12}:{O+13}] op_sel_hi:[1,0]")
    for i in range(6):
        a(f"v_cvt_pk_bf16_f32 v{O+i}, v{O+2*i}, v{O+2*i+1}")
    a(f"buffer_store_dwordx4 v[{O}:{O+3}], v{OAD1}, s[40:43], s8 offen sc1")
    a("s_mov_b32 exec_hi, 0")
    a(f"buffer_store_dwordx2 v[{O+4}:{O+5}], v{OAD0}, s[40:43], s9 offen sc1")
    a("s_mov_b32 exec_hi, -1")
def rowmax(a, S, dst, first=True):
    regs = [f"v{S+i}" for i in range(16)]
    if first:
        a(f"v_max3_f32 v{dst}, {regs[0]}, {regs[1]}, {regs[2]}")
        rest = regs[3:]
    else:
        rest = regs
    while len(rest) >= 2:
        a(f"v_max3_f32 v{dst}, v{dst}, {rest[0]}, {rest[1]}")
        rest = rest[2:]
    if rest:
        a(f"v_max_f32 v{dst}, v{dst}, {rest[0]}")
def set_m(a, m, tmp, keep):
    a(f"""
    v_mov_b32 v{tmp}, v{m}
    s_nop 1
    v_permlane32_swap_b32 v{m}, v{tmp}
    s_nop 1
    v_max_f32 v{keep}, v{m}, v{tmp}
    s_mov_b32 exec_lo, 0
    v_sub_f32 v{m}, 0, v{keep}
    v_and_b32 v{tmp}, 0xffff0000, v{m}
    v_sub_f32 v{m}, v{m}, v{tmp}
    v_lshrrev_b32 v{QB}, 16, v{tmp}
    v_and_b32 v{tmp}, 0xffff0000, v{m}
    v_sub_f32 v{m}, v{m}, v{tmp}
    v_or_b32 v{QB}, v{QB}, v{tmp}
    v_lshrrev_b32 v{QB+1}, 16, v{m}
    s_mov_b32 exec_lo, -1
    """)

def precompute(a):
    t = 12
    a(f"""
    v_and_b32 v1, 31, v0
    v_lshrrev_b32 v2, 5, v0
    v_lshrrev_b32 v3, 2, v1
    v_add_u32 v3, 1, v3
    v_and_b32 v3, 2, v3
    v_mul_u32_u24 v3, 6, v3
    v_xor_b32 v3, v1, v3
    v_lshlrev_b32 v{OAD0}, 3, v0
    v_lshlrev_b32 v{OAD1}, 4, v0
    s_and_b32 s38, s3, 1
    s_lshr_b32 s39, s3, 1
    s_mov_b32 s76, 0
    s_mov_b32 s77, 128
    s_cmp_eq_u32 s3, 1
    s_cselect_b32 s76, 32, s76
    s_cselect_b32 s77, 64, s77
    s_cmp_eq_u32 s3, 2
    s_cselect_b32 s76, 96, s76
    s_cselect_b32 s77, 96, s77
    s_sub_u32 s78, s3, 3
    s_lshl_b32 s78, s78, 2
    s_lshr_b32 s78, 0x20431, s78
    s_and_b32 s78, s78, 15
    s_lshl_b32 s8, s78, 6
    s_add_u32 s8, s8, {IMG_KV}
    s_add_u32 s9, s76, {IMG_W}
    s_sub_u32 s64, s77, s76
    s_cmp_lt_u32 s3, 3
    s_cselect_b32 s60, s9, s8
    s_cselect_b32 s64, s64, 32
    s_mov_b32 s61, 320
    s_cselect_b32 s61, 160, s61
    v_bfe_u32 v{t}, v0, 2, 2
    v_lshl_add_u32 v{t+1}, v2, 3, v{t}
    v_mul_u32_u24 v{t+1}, s61, v{t+1}
    v_bfe_u32 v{t+3}, v0, 4, 1
    v_mul_u32_u24 v{t+2}, s64, v{t+3}
    v_and_b32 v{t+6}, 3, v0
    v_lshlrev_b32 v{t+6}, 3, v{t+6}
    v_add3_u32 v{t+1}, v{t+1}, v{t+2}, v{t+6}
    v_add_u32 v{bW}, s60, v{t+1}
    v_bfe_u32 v{t+2}, v0, 1, 3
    v_xor_b32 v{t+2}, v{t+2}, v2
    v_lshlrev_b32 v{t+2}, 4, v{t+2}
    v_lshl_or_b32 v{bX}, v1, 7, v{t+2}
    v_xor_b32 v{bX+1}, 32, v{bX}
    v_xor_b32 v{bX+2}, 64, v{bX}
    v_xor_b32 v{bX+3}, 96, v{bX}
    """)
    a(f"""
    s_mul_i32 s80, s4, {64*2560}
    s_mul_i32 s8, s5, 160
    s_add_u32 s80, s80, s8
    s_cmp_ge_u32 s3, 4
    s_cbranch_scc1 PC_tz
    s_lshl_b32 s9, s39, 6
    s_add_u32 s80, s80, s9
    s_mul_i32 s10, s38, {32*2560}
    s_add_u32 s80, s80, s10
    s_mul_i32 s8, s38, 5120
    s_add_u32 s8, s8, {LX}
    s_lshl_b32 s9, s39, 10
    v_add_u32 v{tW1}, s9, v{OAD1}
    s_lshl_b32 s9, s39, 8
    s_add_u32 s9, s9, 2560
    v_mul_u32_u24 v{tW2}, 3200, v2
    v_lshl_add_u32 v{tW2}, v1, 3, v{tW2}
    v_add_u32 v{tW2}, s9, v{tW2}
    v_add_u32 v{tX1}, s8, v{OAD1}
    v_add_u32 v{tX2}, s8, v{OAD0}
    s_branch PC_td
    """)
    a.label("PC_tz")
    a(f"""
    s_sub_u32 s8, s3, 4
    s_mul_i32 s10, s8, {16*2560}
    s_add_u32 s80, s80, s10
    s_lshl_b32 s9, s38, 4
    s_lshr_b32 s8, s8, 1
    s_mul_i32 s8, s8, 5120
    s_add_u32 s8, s8, {LX}
    v_lshrrev_b32 v{t}, 4, v0
    v_and_b32 v{t+2}, 15, v0
    v_mul_u32_u24 v{tW1}, 3200, v2
    v_lshl_add_u32 v{tW1}, v1, 4, v{tW1}
    v_add_u32 v{tW1}, 2048, v{tW1}
    v_mul_u32_u24 v{tW2}, 3200, v{t}
    v_lshl_add_u32 v{tW2}, v{t+2}, 3, v{tW2}
    v_add_u32 v{tW2}, {2560+512}, v{tW2}
    v_add_u32 v{t+2}, s9, v{t+2}
    v_lshl_add_u32 v{t+4}, v{t}, 5, v{t+2}
    v_lshlrev_b32 v{tX2}, 3, v{t+4}
    v_add_u32 v{tX2}, s8, v{tX2}
    v_lshlrev_b32 v{tX1}, 4, v{t+4}
    v_add_u32 v{tX1}, s8, v{tX1}
    """)
    a.label("PC_td")
    a(f"v_mov_b32 v{tO}, 0")
    a(f"""
    v_add_u32 v{aKA}, {LKV}, v{OAD1}
    v_lshlrev_b32 v{aKB}, 3, v1
    v_add_u32 v{aKB}, {LKV+1024}, v{aKB}
    v_mul_u32_u24 v{aV0}, 320, v2
    v_lshl_add_u32 v{aV0}, v1, 4, v{aV0}
    v_add_u32 v{aV0}, {LKV+1280}, v{aV0}
    v_add_u32 v{aV1}, 640, v{aV0}
    v_mov_b32 v{AP0}, v3
    s_mov_b32 exec_lo, 0x0ff00000
    s_mov_b32 exec_hi, 0
    v_mov_b32 v{aV0}, {LKV+2560+16*4}
    v_mov_b32 v{aV1}, {LKV+2560+16*12}
    s_mov_b32 exec_lo, 0xf0000000
    v_mov_b32 v{aV0}, {LKV+2560+16*12}
    v_mov_b32 v{aV1}, {LKV+2560+16*4}
    s_mov_b32 exec_lo, 0
    s_mov_b32 exec_hi, 0x0ff00000
    v_mov_b32 v{aV0}, {LKV+2560+16*8}
    v_mov_b32 v{aV1}, {LKV+2560}
    s_mov_b32 exec_hi, 0xf0000000
    v_mov_b32 v{aV0}, {LKV+2560}
    v_mov_b32 v{aV1}, {LKV+2560+16*8}
    s_mov_b32 exec_lo, 0xeef00000
    s_mov_b32 exec_hi, 0xeef00000
    v_add_u32 v{aV0}, 16, v{aV0}
    v_add_u32 v{aV1}, 16, v{aV1}
    s_mov_b32 exec_lo, 0xfff00000
    s_mov_b32 exec_hi, 0xfff00000
    v_mov_b32 v{AP0}, 20
    s_mov_b32 exec_lo, 0
    s_mov_b32 exec_hi, -1
    v_mov_b32 v{aKB}, {LKV+2560}
    s_mov_b64 exec, -1
    s_mul_i32 s8, s39, 840
    s_add_u32 s8, s8, {LKVZ}
    v_mul_u32_u24 v{AP0}, 40, v{AP0}
    v_add_u32 v{AP0}, s8, v{AP0}
    v_lshl_add_u32 v{AP1}, v2, 4, v{AP0}
    s_lshl_b32 s10, s4, 3
    s_add_u32 s10, s10, s5
    s_lshl_b32 s10, s10, 1
    s_add_u32 s10, s10, s38
    s_mul_i32 s10, s10, 5120
    s_lshl_b32 s81, s39, 10
    s_add_u32 s81, s81, s10
    s_lshl_b32 s82, s39, 8
    s_add_u32 s82, s82, s10
    s_add_u32 s82, s82, 4096
    s_mul_i32 s8, s38, 5120
    s_add_u32 s8, s8, {LQ}
    s_lshl_b32 s9, s39, 10
    s_add_u32 s9, s9, s8
    v_add_u32 v{QF1}, s9, v{OAD1}
    s_lshl_b32 s9, s39, 8
    s_add_u32 s9, s9, s8
    s_add_u32 s9, s9, 4096
    v_lshlrev_b32 v{QF0}, 3, v1
    v_add_u32 v{QF0}, s9, v{QF0}
    """)
    for qq in range(4):
        a(f"""
        s_lshr_b32 s8, s{76 + (qq >> 1)}, 3
        s_add_u32 s8, s8, {2 * (qq & 1)}
        v_add_u32 v{t}, s8, v2
        v_mul_u32_u24 v{t+1}, 52, v{t}
        v_lshrrev_b32 v{t+1}, 8, v{t+1}
        v_mul_u32_u24 v{t+2}, 5, v{t+1}
        v_sub_u32 v{t+2}, v{t}, v{t+2}
        v_lshlrev_b32 v{TLQ[qq]}, 10, v{t+1}
        v_lshl_add_u32 v{TLQ[qq]}, v1, 4, v{TLQ[qq]}
        v_lshrrev_b32 v{t+3}, 1, v{t+2}
        v_lshl_add_u32 v{TLQ[qq]}, v{t+3}, 9, v{TLQ[qq]}
        v_and_b32 v{t+3}, 1, v{t+2}
        v_lshl_add_u32 v{TLQ[qq]}, v{t+3}, 3, v{TLQ[qq]}
        v_cmp_eq_u32 vcc, 4, v{t+2}
        s_mov_b64 exec, vcc
        v_lshlrev_b32 v{TLQ[qq]}, 8, v{t+1}
        v_lshl_add_u32 v{TLQ[qq]}, v1, 3, v{TLQ[qq]}
        v_add_u32 v{TLQ[qq]}, 4096, v{TLQ[qq]}
        s_mov_b64 exec, -1
        v_add_u32 v{TLQ[qq]}, {LQ}, v{TLQ[qq]}
        """)
    a(f"""
    s_lshl_b32 s9, s3, 2
    s_lshr_b32 s12, 0x21211000, s9
    s_and_b32 s12, s12, 15
    s_lshr_b32 s13, 0x44003032, s9
    s_and_b32 s13, s13, 15
    s_cselect_b32 s52, -1, 0
    s_mov_b32 s53, s52
    s_lshl_b32 s10, s12, 12
    s_lshl_b32 s9, s13, 12
    v_add_u32 v{JA}, s10, v{OAD1}
    v_add_u32 v{JB}, s9, v{OAD1}
    s_lshl_b32 s10, s12, 5
    s_lshl_b32 s9, s13, 5
    s_sub_u32 s9, s9, 80
    v_lshlrev_b32 v{t}, 2, v2
    v_add_u32 v{t}, s10, v{t}
    v_add_u32 v{t+1}, s9, v1
    v_and_b32 v{t+2}, 0xffff, v{t+1}
    v_mul_u32_u24 v{t+2}, 3277, v{t+2}
    v_lshrrev_b32 v{t+2}, 16, v{t+2}
    v_mul_u32_u24 v{t+3}, 80, v{t+1}
    s_cmp_eq_u32 s13, 0
    s_cbranch_scc1 PC_z
    """)
    for z in range(2):
        for q in range(4):
            m = MASKS[q]
            a(f"v_add_u32 v{t+4}, {8*q}, v{t}")
            a(f"v_mul_u32_u24 v{t+5}, 3277, v{t+4}")
            a(f"v_lshrrev_b32 v{t+5}, 16, v{t+5}")
            if z == 0:
                a(f"v_lshl_add_u32 v{PWR+q}, v{t+4}, 2, v{t+3}")
                a(f"v_cmp_eq_u32 s[{m}:{m+1}], v{t+5}, v{t+2}")
            else:
                a(f"v_add_u32 v{PWR+q}, 1, v{t+5}")
                a(f"v_mul_u32_u24 v{PWR+q}, 1600, v{PWR+q}")
                a(f"v_lshl_add_u32 v{PWR+q}, v{t+4}, 2, v{PWR+q}")
                a(f"v_cmp_gt_u32 s[{m}:{m+1}], 4, v{t+5}")
                a(f"s_and_b32 s{m}, s{m}, 1\ns_and_b32 s{m+1}, s{m+1}, 1")
        if z == 0:
            a("s_branch PC_zd")
            a.label("PC_z")
    a.label("PC_zd")
    for q in range(4): a(f"v_add_u32 v{PWR+q}, {LPART}, v{PWR+q}")
    for i in range(OO, BFR): a(f"v_mov_b32 v{i}, 0")
    a(f"v_mov_b32 v{IDX}, 0xdddddddd")

def gen(a):
    K = NAME + "_kernel"
    kernel_begin(a, K)
    if STAMP:
        a("s_memtime s[84:85]\ns_memrealtime s[86:87]")
    a("s_load_dwordx16 s[16:31], s[0:1], 0\ns_load_dwordx4 s[32:35], s[0:1], 64\ns_load_dwordx2 s[36:37], s[0:1], 80")
    a("s_getpc_b64 s[44:45]")
    a.label("L_pc")
    a(f"""
    s_mov_b32 s46, L_codeend-L_pc
    s_mov_b32 s47, 0x20000
    v_lshlrev_b32 v4, {9 if CPF4 else 7}, v0
    s_lshl_b32 s8, s2, 4
    s_and_b32 s8, s8, {0x180 if CPF4 else 0}
    buffer_load_dword v164, v4, s[44:47], s8 offen
    s_cmp_ge_u32 s2, 256
    s_cbranch_scc1 L_end
    v_lshrrev_b32 v1, 6, v0
    v_and_b32 v0, 63, v0
    v_readfirstlane_b32 s3, v1
    s_and_b32 s6, s2, 7
    s_lshr_b32 s7, s2, 3
    """)
    if MAP48:
        a("s_lshl_b32 s4, s6, 2\ns_lshr_b32 s8, s7, 3\ns_add_u32 s4, s4, s8\ns_and_b32 s5, s7, 7")
    else:
        a("s_lshr_b32 s4, s6, 1\ns_lshl_b32 s4, s4, 3\ns_lshr_b32 s8, s7, 2\ns_add_u32 s4, s4, s8\ns_and_b32 s5, s6, 1\ns_lshl_b32 s5, s5, 2\ns_and_b32 s8, s7, 3\ns_add_u32 s5, s5, s8")
    a(f"""
    s_cmp_lt_u32 s3, 8
    s_cbranch_scc1 C_start
    """)
    a("s_setprio 2")
    a("s_sub_u32 s10, s3, 8")
    a("s_mul_i32 s13, s4, 81920")
    a("v_lshlrev_b32 v18, 4, v0")
    a("s_cmp_eq_u32 s10, 1\ns_cbranch_scc1 L_mw")
    a("""
    v_lshrrev_b32 v20, 4, v0
    v_xor_b32 v21, v20, v0
    v_and_b32 v21, 15, v21
    v_lshlrev_b32 v21, 4, v21
    v_mul_u32_u24 v20, 1280, v20
    """)
    for j in range(4):
        a(f"v_xor_b32 v{28+j}, {64*j}, v21")
        a(f"v_add_u32 v{28+j}, v{28+j}, v20")
        if j < 3: a("v_add_u32 v20, 5120, v20")
    a(f"""
    s_mov_b32 m0, {LMX}
    s_lshr_b32 s14, s5, 1
    s_mul_i32 s14, s14, 20480
    s_add_u32 s14, s14, s13
    s_mov_b32 s15, 0
    s_waitcnt lgkmcnt(0)
    """)
    srd(a, 44, 16, XBYTES)
    a.label("L_mx")
    for j in range(4):
        dma(a, f"v{28+j}", 44, "s14")
        a("s_add_u32 m0, m0, 1024")
        a("s_add_u32 s14, s14, 256" if j == 3 else "s_nop 0")
    a("s_add_u32 s15, s15, 1\ns_cmp_lt_u32 s15, 5\ns_cbranch_scc1 L_mx")
    a("s_branch L_md")
    a.label("L_mw")
    a(f"s_mov_b32 m0, {LWKV}\ns_mov_b32 s14, 0")
    a("s_waitcnt lgkmcnt(0)")
    a("s_bitcmp1_b32 s5, 0")
    a("s_cselect_b32 s52, s22, s20")
    a("s_cselect_b32 s53, s23, s21")
    a("s_mov_b32 s54, 25600\ns_mov_b32 s55, 0x20000")
    a.label("L_mwl")
    for i in range(4): a(f"buffer_load_dwordx4 v18, s[52:55], s14 offen offset:{1024*i} lds")
    a("s_add_u32 m0, m0, 4096\ns_add_u32 s14, s14, 4096\ns_cmp_lt_u32 s14, 24576\ns_cbranch_scc1 L_mwl")
    a("buffer_load_dwordx4 v18, s[52:55], s14 offen lds")
    srd(a, 44, 16, XBYTES)
    a("s_branch L_md")
    a.label("C_start")
    a("s_cmp_lg_u32 s3, 4\ns_cbranch_scc1 C_pre")
    a("s_cmp_ge_u32 s2, 8\ns_cbranch_scc1 C_pre")
    a("s_memrealtime s[8:9]\ns_waitcnt lgkmcnt(0)\ns_or_b32 s8, s8, 1")
    srd(a, 44, 34, 256)
    a("v_mov_b32 v8, s8\nv_mov_b32 v9, 0\nv_mov_b32 v10, 0\ns_mov_b64 exec, 1")
    a("buffer_atomic_cmpswap v[8:9], v10, s[44:47], 0 offen sc1")
    a("s_mov_b64 exec, -1")
    a.label("C_pre")
    precompute(a)
    a("s_waitcnt lgkmcnt(0)")
    srd(a, 40, 36, WS_SIZE)
    a("s_cmp_lt_u32 s3, 3\ns_cbranch_scc1 A_q")
    a("s_cmp_eq_u32 s3, 5\ns_cbranch_scc1 A_kvpoll")
    a("s_cmp_lt_u32 s3, 6\ns_cbranch_scc1 A_bars")
    srd(a, 44, 34, 256)
    a(f"""
    v_mov_b32 v10, 0
    v_and_b32 v20, 15, v0
    v_lshrrev_b32 v21, 4, v0
    v_xor_b32 v22, v20, v21
    v_lshlrev_b32 v22, 4, v22
    v_lshl_add_u32 v22, v20, 8, v22
    v_add_u32 v22, {LMX}, v22
    v_xor_b32 v23, 64, v22
    v_xor_b32 v24, 128, v22
    v_xor_b32 v25, 192, v22
    v_bfe_u32 v26, v0, 2, 2
    v_lshl_add_u32 v26, v21, 3, v26
    v_mul_u32_u24 v26, 40, v26
    v_and_b32 v27, 3, v0
    v_lshl_add_u32 v26, v27, 3, v26
    s_lshl_b32 s8, s38, 5
    s_add_u32 s8, s8, {LWKV}
    v_add_u32 v26, s8, v26
    s_lshl_b32 s12, s4, 1
    s_lshr_b32 s8, s5, 2
    s_add_u32 s12, s12, s8
    s_mul_i32 s12, s12, {TILE}
    s_add_u32 s12, s12, {WS_KV}
    s_bfe_u32 s13, s5, 0x10001
    s_lshl_b32 s55, s4, 4
    s_add_u32 s55, s55, s5
    s_lshl_b32 s55, s55, 1
    s_add_u32 s55, s55, s38
    s_lshl_b32 s55, s55, 2
    s_add_u32 s55, s55, {FL_KV}
    v_and_b32 v27, 1, v21
    s_mov_b32 s56, 0
    s_mov_b64 s[48:49], -1
    """)
    for i in range(12, 16): a(f"v_mov_b32 v{i}, 0")
    MF = [BACC + 8 * i for i in range(4)]
    def mini(lbl, orient):
        def mm(st):
            x, w, ac = v(MF[st], 4), v(MF[st] + 4, 4), v(12, 4)
            a(f"v_mfma_f32_16x16x32_bf16 {ac}, {w}, {x}, {ac}" if orient == "R" else f"v_mfma_f32_16x16x32_bf16 {ac}, {x}, {w}, {ac}")
        a("s_barrier")
        a("buffer_load_dword v11, v10, s[44:47], 0 offen sc1")
        a.label(lbl)
        for st in range(4):
            f = MF[st]
            a(f"ds_read_b128 v[{f}:{f+3}], v{22+st}")
            for hf in range(2):
                a(f"ds_read_b64_tr_b16 v[{f+4+2*hf}:{f+5+2*hf}], v26 offset:{(32*st+4*hf)*40}")
            a(f"v_add_u32 v{22+st}, 4096, v{22+st}")
            a("s_waitcnt lgkmcnt(9)")
            mm((st + 1) % 4)
        a("v_add_u32 v26, 5120, v26")
        a(f"s_add_u32 s56, s56, 1\ns_cmp_lt_u32 s56, 5\ns_cbranch_scc1 {lbl}")
        for st, w in ((1, 6), (2, 3), (3, 0)):
            a(f"s_waitcnt lgkmcnt({w})"); mm(st)
    a("s_bitcmp1_b32 s5, 0")
    a("s_cbranch_scc1 M_v")
    a(f"""
    s_lshl_b32 s8, s13, 4
    v_add_u32 v20, s8, v20
    v_lshlrev_b32 v28, 4, v20
    v_lshl_add_u32 v28, v2, 9, v28
    v_lshl_add_u32 v28, v27, 3, v28
    s_cmp_eq_u32 s3, 6
    s_cbranch_scc1 M_k0
    v_lshlrev_b32 v28, 3, v20
    v_add_u32 v28, 1024, v28
    s_mov_b32 exec_lo, 0xffff0000
    v_lshlrev_b32 v28, 3, v20
    v_add_u32 v28, 2560, v28
    s_mov_b32 exec_lo, -1
    s_mov_b32 s49, 0
    """)
    a.label("M_k0")
    mini("M_kl", "R")
    a(f"s_mov_b32 s8, {f32(CSCALE)}\ns_nop 6")
    a("v_pk_mul_f32 v[12:13], v[12:13], s[8:9] op_sel_hi:[1,0]\nv_pk_mul_f32 v[14:15], v[14:15], s[8:9] op_sel_hi:[1,0]")
    a("v_cvt_pk_bf16_f32 v12, v12, v13\nv_cvt_pk_bf16_f32 v13, v14, v15")
    a("s_cmp_eq_u32 s3, 6\ns_cbranch_scc1 M_st")
    a("s_mov_b32 exec_lo, 0xffff0000")
    a("v_mov_b32 v12, 0x3f803f80\nv_mov_b32 v13, 0x3f803f80")
    a("s_mov_b32 exec_lo, 0xcccc0000\nv_mov_b32 v12, 0\nv_mov_b32 v13, 0")
    a("s_branch M_st")
    a.label("M_v")
    a(f"""
    s_mul_i32 s8, s13, 640
    s_add_u32 s12, s12, s8
    s_lshl_b32 s8, s38, 8
    s_add_u32 s12, s12, s8
    s_add_u32 s12, s12, 1280
    v_lshrrev_b32 v28, 2, v20
    v_add_u32 v28, 1, v28
    v_and_b32 v28, 2, v28
    v_mul_u32_u24 v28, 6, v28
    v_xor_b32 v28, v20, v28
    v_mul_u32_u24 v29, 320, v2
    v_lshl_add_u32 v29, v27, 3, v29
    v_lshl_add_u32 v28, v28, 4, v29
    s_cmp_eq_u32 s3, 6
    s_cselect_b32 s48, -1, 0x000f000f
    s_mov_b32 s49, s48
    """)
    mini("M_vl", "C")
    a("s_nop 7")
    a("v_cvt_pk_bf16_f32 v12, v12, v13\nv_cvt_pk_bf16_f32 v13, v14, v15")
    a.label("M_st")
    a("s_mov_b64 exec, s[48:49]")
    a("buffer_store_dwordx2 v[12:13], v28, s[40:43], s12 offen sc1")
    a("s_mov_b64 exec, -1")
    gs(a, 0, "v30", "v31")
    a("s_barrier")
    a("s_barrier")
    a("s_mov_b32 s9, 0")
    a.label("A_np")
    a("s_add_u32 s9, s9, 1")
    a("s_waitcnt vmcnt(0)")
    a("v_cmp_eq_u32 vcc, 0, v11")
    a(f"s_cmp_gt_u32 s9, {SPIN_MAX}\ns_cbranch_scc1 A_nd\ns_cbranch_vccz A_nd\ns_sleep 1")
    a("buffer_load_dword v11, v10, s[44:47], 0 offen sc1")
    a("s_branch A_np")
    a.label("A_nd")
    a("s_mov_b64 exec, 1")
    a("buffer_store_dword v11, v10, s[40:43], s55 offen sc1")
    a("s_mov_b64 exec, -1")
    a(f"v_mov_b32 v5, {LMISC}\nds_write_b32 v5, v11\nds_write_b32 v5, v10 offset:8\nds_write_b32 v5, v10 offset:4\ns_waitcnt lgkmcnt(0)")
    gs(a, 1, "v30", "v31")
    a("s_branch A_bars8")
    a.label("A_kvpoll")
    a("v_lshrrev_b32 v20, 1, v0\nv_lshlrev_b32 v20, 7, v20\nv_and_b32 v21, 1, v0\nv_lshl_add_u32 v20, v21, 4, v20")
    a(f"v_mov_b32 v18, v{OAD1}")
    a("s_and_b32 s60, s7, 15")
    a(f"s_mov_b32 s61, {LKV}\ns_mov_b32 s12, {FL_KV}\ns_mov_b32 s9, 0")
    KP = int(OPT.get("kp", 6))
    for i in range(KP + 1): a("s_barrier")
    get_nonce(a, "v22", "v23")
    a("s_barrier\ns_sleep 3")
    def kvl():
        a("buffer_load_dwordx4 v[24:27], v20, s[40:43], s12 offen sc1")
        a("buffer_load_dwordx4 v[28:31], v20, s[40:43], s12 offen offset:32 sc1")
    kvl()
    a("s_barrier\ns_barrier\ns_barrier")
    a(f"s_mov_b32 s13, {6 - KP}")
    a.label("A_kq")
    a("s_add_u32 s9, s9, 1")
    a("s_waitcnt vmcnt(0)")
    for i in range(8): a(f"v_xor_b32 v{24+i}, s96, v{24+i}")
    a("v_or3_b32 v24, v24, v25, v26\nv_or3_b32 v27, v27, v28, v29\nv_or3_b32 v24, v24, v30, v31\nv_or_b32 v24, v24, v27\nv_cmp_ne_u32 vcc, 0, v24")
    a(f"s_cmp_gt_u32 s9, {SPIN_MAX}\ns_cbranch_scc1 A_kd\ns_cbranch_vccz A_kd\ns_mov_b64 exec, vcc\ns_sleep {OPT.get('ksl', 8)}")
    kvl()
    a("s_cmp_eq_u32 s13, 0\ns_cbranch_scc1 A_kq\ns_barrier\ns_sub_u32 s13, s13, 1\ns_branch A_kq")
    a.label("A_kd")
    a("s_mov_b64 exec, -1")
    gs(a, 4, "v30", "v31")
    call(a, "L_issueKV", "s[62:63]")
    a.label("A_kr")
    a("s_cmp_eq_u32 s13, 0\ns_cbranch_scc1 A_ke\ns_barrier\ns_sub_u32 s13, s13, 1\ns_branch A_kr")
    a.label("A_ke")
    for i in range(3 if BS >= 2 else 2): call(a, "L_issueKV", "s[62:63]")
    a(f"s_waitcnt vmcnt({33 if BS >= 2 else 22})")
    a("s_branch A_done")
    a.label("A_bars")
    for i in range(3): a("s_barrier")
    a.label("A_bars8")
    for i in range(8): a("s_barrier")
    a("s_waitcnt vmcnt(0)")
    a("s_branch A_done")
    a.label("A_q")
    def ard(st, i):
        f = AFR[st]
        if i < 2: a(f"ds_read_b64_tr_b16 v[{f+2*i}:{f+2*i+1}], v{bW} offset:{(16*st+4*i)*160}")
        else: a(f"ds_read_b128 v[{f+4*(i-1)}:{f+4*(i-1)+3}], v{bX+st} offset:{4096*(i-2)}")
    def amf(st, blk):
        f = AFR[st]; ac = v(AACC + 16 * blk, 16)
        a(f"v_mfma_f32_32x32x16_bf16 {ac}, v[{f}:{f+3}], v[{f+4+4*blk}:{f+7+4*blk}], {ac}")
    a(f"s_mov_b32 s56, 0\ns_mov_b32 s70, {HS}\ns_mov_b32 s74, {-5*HS}\ns_mov_b32 s75, {-3*HS}")
    for i in range(32): a(f"v_mov_b32 v{AACC+i}, 0")
    a("s_barrier\ns_barrier")
    for st in (0, 1, 2):
        for i in range(4): ard(st, i)
    a("s_branch A_mid")
    a(".p2align 3")
    a.label("A_loop")
    a("s_waitcnt lgkmcnt(0)\ns_barrier")
    seq = [(st, i) for st in (0, 1, 2) for i in range(4)]
    for n, (st, blk) in enumerate(((2, 0), (2, 1), (3, 0), (3, 1))):
        amf(st, blk)
        for x in seq[3 * n:3 * n + 3]: ard(*x)
    a.label("A_mid")
    a("s_add_u32 s56, s56, 1\ns_cmp_eq_u32 s56, 6\ns_cselect_b32 s8, s74, s70")
    a("s_waitcnt lgkmcnt(8)")
    amf(0, 0); ard(3, 0); ard(3, 1)
    a("s_cmp_lt_u32 s56, 10\ns_cselect_b32 s8, s8, s75")
    amf(0, 1); ard(3, 2); ard(3, 3)
    a("s_waitcnt lgkmcnt(8)")
    a(f"v_add_u32 v{bW}, s8, v{bW}")
    amf(1, 0)
    for j in range(4): a(f"v_add_u32 v{bX+j}, s8, v{bX+j}")
    amf(1, 1)
    a("s_cbranch_scc1 A_loop")
    a("s_waitcnt lgkmcnt(4)")
    amf(2, 0)
    a("s_waitcnt lgkmcnt(0)")
    amf(3, 0); amf(2, 1); amf(3, 1)
    a("s_nop 9")
    for blk in range(2):
        for qq in range(4):
            r0 = AACC + 16 * blk + 4 * qq
            a(f"v_cvt_pk_bf16_f32 v{r0}, v{r0}, v{r0+1}\nv_cvt_pk_bf16_f32 v{r0+1}, v{r0+2}, v{r0+3}")
            a(f"ds_write_b64 v{TLQ[qq]}, v[{r0}:{r0+1}] offset:{5120*blk}")
    a.label("A_done")
    def rdKA(t): a(f"ds_read_b128 v[{KA}:{KA+3}], v{aKA} offset:{t*TILE}")
    def rdKB(t): a(f"ds_read_b64 v[{KB}:{KB+1}], v{aKB} offset:{t*TILE}")
    def rdV0(t): a(f"ds_read_b128 v[{V0}:{V0+3}], v{aV0} offset:{t*TILE}")
    def rdV1(t): a(f"ds_read_b128 v[{V1}:{V1+3}], v{aV1} offset:{t*TILE}")
    def qka(S): a(f"v_mfma_f32_32x32x16_bf16 v[{S}:{S+15}], v[{KA}:{KA+3}], v[{QA}:{QA+3}], 0")
    def qkb(S): a(f"v_mfma_f32_32x32x8_bf16 v[{S}:{S+15}], v[{KB}:{KB+1}], v[{QB}:{QB+1}], v[{S}:{S+15}]")
    def pv0(S): a(f"v_smfmac_f32_32x32x32_bf16 v[{OO}:{OO+15}], v[{V0}:{V0+3}], v[{S}:{S+7}], v{IDX}")
    def pv1(): a(f"v_smfmac_f32_32x32x32_bf16 v[{OO}:{OO+15}], v[{V1}:{V1+3}], v[{PP}:{PP+7}], v{IDX}")
    def E(S, lo, hi, w=None):
        for i in range(lo, hi):
            if w is not None and i == hi - 1:
                a(w if isinstance(w, str) else f"s_waitcnt lgkmcnt({w})"); a(f"v_exp_f32_e64 v{S+i if i < 8 else PP+i-8}, v{S+i}")
            else: a(f"v_exp_f32 v{S+i if i < 8 else PP+i-8}, v{S+i}")
    def c1(k, S): a(f"v_cvt_pk_bf16_f32 v{PP+k}, v{S+2*k}, v{S+2*k+1}")
    def C(S, g): c1(2 * g, S); c1(2 * g + 1, S)
    if OPT.get("yprio"): a("s_cmp_lt_u32 s3, 4\ns_cbranch_scc1 A_yp\ns_setprio 1\nA_yp:")
    ct(a, "a0")
    a("s_waitcnt lgkmcnt(0)\ns_barrier")
    ct(a, "p0")
    read_qfrag(a, QA, QB)
    rdKA(0); rdKB(0)
    a(f"ds_read_b128 v[{V1}:{V1+3}], v{aKA} offset:{TILE}")
    rdV0(0)
    a(f"v_mov_b32 v{PP}, {LMISC}\nds_read_b32 v{PP+3}, v{PP}")
    a("s_mov_b32 exec_lo, 0")
    a("s_waitcnt lgkmcnt(3)")
    a(f"v_mov_b32 v{QB}, 0\nv_mov_b32 v{QB+1}, 0")
    a("s_mov_b32 exec_lo, -1")
    ct(a, "p1")
    qka(S0); qkb(S0)
    rdKB(1); rdKA(2)
    a("s_waitcnt lgkmcnt(2)")
    a(f"v_mfma_f32_32x32x16_bf16 v[{S1}:{S1+15}], v[{V1}:{V1+3}], v[{QA}:{QA+3}], 0")
    a(f"v_readfirstlane_b32 s96, v{PP+3}")
    a("s_nop 6")
    ct(a, "p2")
    rowmax(a, S0, PP)
    set_m(a, PP, PP + 1, PP + 2)
    ct(a, "p3")
    for i in range(0, 16, 2): a(f"v_pk_add_f32 v[{S0+i}:{S0+i+1}], v[{S0+i}:{S0+i+1}], v[{PP+2}:{PP+3}] op_sel_hi:[1,0] neg_lo:[0,1] neg_hi:[0,1]")
    a(".p2align 3")
    E(S0, 0, 4, 1)
    qkb(S1); rdKB(2); E(S0, 4, 8); rdV1(0); E(S0, 8, 12)
    pv0(S0); rdV0(1); E(S0, 12, 16, 3)
    BARAT = {t: nm for nm, t in BARS}
    def tile(S, t, orient=None, gm=(), gr=(), ins=None):
        ins = ins or {}
        Sc, Sn = (S0, S1) if t % 2 == 0 else (S1, S0)
        plan = PLANS[len(gm)].split()
        pos = {w: i for i, w in enumerate(plan)}
        T = lambda x: (x % 16) * TILE
        stride = 160 if orient == "R" else 320
        def step_done(st):
            sg = "s74" if (st // 4) % 3 == 2 else "s70"
            if st < 36: S.x4(f"v_add_u32 v{bX+st%4}, {sg}, v{bX+st%4}")
            if st % 4 == 3 and st < 36: S.x4(f"v_add_u32 v{bW}, {sg}, v{bW}")
        def rx(st, b):
            f = BFR + 12 * (st % 2); S.r(f"X{st%2}{b}", f"ds_read_b128 v[{f+4+4*b}:{f+7+4*b}], v{bX+st%4} offset:{4096*b}")
        def rw(st):
            f = BFR + 12 * (st % 2)
            for h in range(2): S.r(f"W{st%2}", f"ds_read_b64_tr_b16 v[{f+2*h}:{f+2*h+1}], v{bW} offset:{(16*(st%4)+4*h)*stride}")
        if t in BARAT:
            S.need(["KA", "W0", "W1", "X00", "X01", "X10", "X11", "wr"])
            S.x4("s_barrier")
        done = []
        for w in plan:
            if w == "qka":
                if t < 63: S.m(f"v_mfma_f32_32x32x16_bf16 v[{Sn}:{Sn+15}], v[{KA}:{KA+3}], v[{QA}:{QA+3}], 0", ["KA"])
                if t < 62: S.r("KA", f"ds_read_b128 v[{KA}:{KA+3}], v{aKA} offset:{T(t+2)}")
            elif w == "qkb":
                if t < 63: S.m(f"v_mfma_f32_32x32x8_bf16 v[{Sn}:{Sn+15}], v[{KB}:{KB+1}], v[{QB}:{QB+1}], v[{Sn}:{Sn+15}]", ["KB"])
                if t < 62: S.r("KB", f"ds_read_b64 v[{KB}:{KB+1}], v{aKB} offset:{T(t+2)}")
            elif w == "pv1":
                S.m(f"v_smfmac_f32_32x32x32_bf16 v[{OO}:{OO+15}], v[{V1}:{V1+3}], v[{PP}:{PP+7}], v{IDX}", ["V1"])
                S.r("V1", f"ds_read_b128 v[{V1}:{V1+3}], v{aV1} offset:{T(t)}")
            elif w == "pv0":
                S.m(f"v_smfmac_f32_32x32x32_bf16 v[{OO}:{OO+15}], v[{V0}:{V0+3}], v[{Sc}:{Sc+7}], v{IDX}", ["V0"])
                if t < 63: S.r("V0", f"ds_read_b128 v[{V0}:{V0+3}], v{aV0} offset:{T(t+1)}")
            elif w[0] == "g":
                st, b = gm[int(w[1])], int(w[2]); f = BFR + 12 * (st % 2)
                wv, xv, ac = v(f, 4), v(f + 4 + 4 * b, 4), v(BACC + 16 * b, 16)
                first = b not in tile.started[orient]; tile.started[orient].add(b)
                c = "0" if first else ac
                S.m(f"v_mfma_f32_32x32x16_bf16 {ac}, {wv}, {xv}, {c}" if orient == "R" else f"v_mfma_f32_32x32x16_bf16 {ac}, {xv}, {wv}, {c}", [f"W{st%2}", f"X{st%2}{b}"])
                if st + 2 in gr:
                    rx(st + 2, b)
                    if pos[w] > pos[w[:2] + str(1 - b)]: rw(st + 2); done.append(st + 2)
            else:
                k = int(w[1:]); S.e(Sc + k if k < 8 else PP + k - 8, Sc + k)
            if not gm and gr and w in ("qka", "qkb"):
                st = gr[0 if w == "qka" else 1]; rw(st); rx(st, 0); rx(st, 1); done.append(st)
            if w in ins: ins[w]()
        for st in sorted(done): step_done(st)
    tile.started = {"R": set(), "C": set()}
    S = Stream(a, ["KB", "V1", "V0"])
    for t in range(1, FT[0]):
        if t == 2: S.x4("s_waitcnt vmcnt(0)", "s_barrier")
        if t == 5:
            S.x4("s_mov_b64 exec, 1", "v_mov_b32 v3, 1"); S.x8(f"v_mov_b32 v164, {LMISC}"); S.r("sig", "ds_add_u32 v164, v3 offset:4"); S.x4("s_mov_b64 exec, -1")
        tile(S, t)
    S.x8(f"s_mov_b32 s70, {SLOT}", f"s_mov_b32 s74, {-2*SLOT}"); S.x4("s_cmp_ge_u32 s3, 3", "s_cbranch_scc1 FU_C")
    S.flush()
    reads = {}
    for p, n in enumerate(PAT):
        cnt = {2: (2, 2), 3: (2, 1, 1), 4: (2, 0, 1, 1) if p == 0 else (1, 1, 1, 1)}[n]
        st = 4 * p
        for k, c in enumerate(cnt): reads[FT[p] + k] = list(range(st, st + c)); st += c
    st0 = list(S.st)
    def phi4(r0, X):
        for i in (0, 2): a(f"v_pk_mul_f32 v[{X+i}:{X+i+1}], v[{r0+i}:{r0+i+1}], s[8:9] op_sel_hi:[1,0]")
        for i in range(4): a(f"v_exp_f32_e64 v{X+i}, v{X+i} clamp")
        for i in range(4): a(f"v_max_f32 v{r0+i}, s9, v{r0+i}")
        for i in (0, 2): a(f"v_pk_add_f32 v[{r0+i}:{r0+i+1}], v[{r0+i}:{r0+i+1}], v[{X+i}:{X+i+1}]")
    for orient in ("R", "C"):
        a(".p2align 3")
        a.label("FU_" + orient)
        S = Stream(a, st0)
        for t in range(FT[0], TE + 1):
            gr = reads.get(t, [])
            gm = [38, 39] if t == TE else [x - 2 for x in gr if x >= 2]
            tile(S, t, orient, gm, gr)
        S.flush()
        ct(a, "fe")
        a(f"s_mov_b32 s8, {f32(LOG2E)}\ns_mov_b32 s9, {f32(1e-6)}")
        if orient == "R":
            a("s_nop 3")
            for half in range(2):
                if half == 1: a("s_cmp_eq_u32 s3, 2\ns_cbranch_scc1 B_jobs")
                for blk in range(2):
                    for q in range(2):
                        r0 = BACC + 16 * blk + 8 * half + 4 * q
                        phi4(r0, BFR)
                        a(f"v_cvt_pk_bf16_f32 v{r0}, v{r0}, v{r0+1}\nv_cvt_pk_bf16_f32 v{r0+1}, v{r0+2}, v{r0+3}")
                        a(f"ds_write_b64 v{TLQ[2*half+q]}, v[{r0}:{r0+1}] offset:{5120*blk}")
            a("s_branch B_jobs")
    a("s_lshl_b32 s10, s78, 12")
    a(f"v_add_u32 v{TL0}, s10, v{OAD1}")
    a("s_cmp_eq_u32 s78, 2\ns_cselect_b32 s10, 0xffff, -1\ns_mov_b32 s11, s10")
    a("s_cmp_ge_u32 s78, 3")
    for ks in range(4):
        r0 = BACC + 8 * ks
        l = a.newlabel("B_np")
        a(f"s_cbranch_scc1 {l}")
        a("s_mov_b64 exec, s[10:11]")
        phi4(r0, BFR); phi4(r0 + 4, BFR + 4)
        a("s_mov_b64 exec, -1")
        a.label(l)
        for i in range(4): a(f"v_cvt_pk_bf16_f32 v{r0+i}, v{r0+2*i}, v{r0+2*i+1}")
        a(f"ds_write_b128 v{TL0}, v[{r0}:{r0+3}] offset:{LFR+1024*ks}")
    a.label("B_jobs")
    JAF, JBF, JD, AP = BACC, BACC + 16, BFR, BACC
    ct(a, "ep")
    a("s_waitcnt lgkmcnt(0)\ns_cmp_lg_u32 s52, 0\ns_cbranch_scc1 B_noz")
    for i in range(16): a(f"v_mov_b32 v{JBF+i}, 0x3f803f80")
    a(".p2align 3")
    a.label("B_noz")
    S = Stream(a)
    def jreads():
        for ks in range(4): S.r("J", f"ds_read_b128 v[{JAF+4*ks}:{JAF+4*ks+3}], v{JA} offset:{LFR+1024*ks}")
        S.x4("s_mov_b64 exec, s[52:53]")
        for ks in range(4): S.r("J", f"ds_read_b128 v[{JBF+4*ks}:{JBF+4*ks+3}], v{JB} offset:{LFR+1024*ks}")
        S.x4("s_mov_b64 exec, -1")
        S.r("PQ", f"ds_read_b128 v[{PQA}:{PQA+3}], v{QF1}"); S.r("PQ", f"ds_read_b64 v[{PQB}:{PQB+1}], v{QF0}")
    def J(ks):
        c = "0" if ks == 0 else v(JD, 16)
        return lambda: S.m(f"v_mfma_f32_32x32x16_bf16 {v(JD,16)}, v[{JAF+4*ks}:{JAF+4*ks+3}], v[{JBF+4*ks}:{JBF+4*ks+3}], {c}", ["J"])
    def PW(*qs):
        def f():
            for q in qs:
                S.x4(f"s_mov_b64 exec, s[{MASKS[q]}:{MASKS[q]+1}]")
                S.r("wr", f"ds_write_b128 v{PWR+q}, v[{JD+4*q}:{JD+4*q+3}]")
            S.x4("s_mov_b64 exec, -1")
        return f
    def pqz():
        S.need(["PQ"]); S.x4("s_mov_b32 exec_lo, 0", f"v_mov_b32 v{PQB}, 0", f"v_mov_b32 v{PQB+1}, 0", "s_mov_b32 exec_lo, -1")
    def ap_rd():
        S.r("AP", f"ds_read2_b64 v[100:103], v{AP1} offset0:0 offset1:1"); S.r("AP", f"ds_read_b64 v[104:105], v{AP0} offset:32")
    ap_a = lambda: S.m(f"v_mfma_f32_32x32x16_bf16 v[{AP}:{AP+15}], v[100:103], v[{PQA}:{PQA+3}], 0", ["AP"])
    ap_b = lambda: S.m(f"v_mfma_f32_32x32x8_bf16 v[{AP}:{AP+15}], v[104:105], v[{PQB}:{PQB+1}], v[{AP}:{AP+15}]", ["AP"])
    def ap_out():
        S.flush()
        o_epilogue(a, AP, WS_OB, True)
        a(f"v_mov_b32 v100, {LCNT}\nv_mov_b32 v101, 1\ns_mov_b64 exec, 1\n.p2align 3")
        S.r("cnt", "ds_add_u32 v100, v101"); S.x4("s_mov_b64 exec, -1")
    def ap_flag():
        S.need(["cnt", "KA"]); S.flush()
        a(f"v_readfirstlane_b32 s9, v102\ns_lshl_b32 s8, s4, 5\ns_add_u32 s8, s8, s5\ns_lshl_b32 s8, s8, 2\ns_add_u32 s8, s8, {FL_HB}")
        a("s_cmp_eq_u32 s9, 7\ns_cbranch_scc0 AT_nf")
        publish(a, "s8", "v100", "v101")
        a(".p2align 3")
        a.label("AT_nf")
    for t in range(TE + 1, 64):
        ins = {}
        if t == C1: ins = {"qka": jreads, "e9": J(0), "e11": J(1), "e13": J(2), "e15": J(3)}
        if t == C1 + 1: ins = {"qka": pqz, "e5": PW(0, 1), "pv1": PW(2, 3)}
        if t == C3: ins = {"qka": ap_rd, "e9": ap_a, "e13": ap_b}
        if t == C3 + 1: ins = {"e5": ap_out}
        tile(S, t, ins=ins)
    S.flush()
    srd(a, 44, 32, 2048 * 2560)
    a("s_waitcnt lgkmcnt(0)")
    pv1()
    a("s_mov_b32 s74, 51200\ns_mov_b32 s75, -51200")
    a("s_nop 9")
    a(f"v_cmp_nge_f32 vcc, {f32(2.0**40)}, v{OO+12}")
    a("s_nop 1")
    a("s_cbranch_vccnz AT_fallback")
    a.label("AT_ok")
    F = [20 + 8 * i for i in range(10)]
    NANCHK = "v_cmp_u_f32 {0}, v{1}, v{1}" if not FORCE_REDO else "v_cmp_o_f32 {0}, v{1}, v{1}"
    AC2 = 140
    OUT = 132
    SW, SR = TL0, TL1
    a("s_cmp_ge_u32 s3, 4\ns_cbranch_scc1 TLz_start")
    def tl_vm(pfx):
        a(f"s_cmp_lg_u32 s56, 2\ns_cbranch_scc1 {pfx}_nv\ns_waitcnt vmcnt(0)")
        a.label(pfx + "_nv")
    def tl_adv():
        a("s_add_u32 s71, s71, 1\ns_cmp_eq_u32 s71, 3\ns_cselect_b32 s8, s73, s72\ns_cselect_b32 s71, 0, s71")
        a(f"v_add_u32 v{tW1}, s74, v{tW1}\nv_add_u32 v{tW2}, s74, v{tW2}\nv_add_u32 v{tX1}, s8, v{tX1}\nv_add_u32 v{tX2}, s8, v{tX2}")
        a("s_add_u32 s56, s56, 1\ns_and_b32 s8, s56, 3")
    def wrd(d, st, o=0):
        t, H = divmod(st, 5)
        if H < 4: a(f"ds_read_b128 v[{d}:{d+3}], v{tW1} offset:{o+12800*t+3200*H}")
        else:
            for hf in range(2): a(f"ds_read_b64 v[{d+2*hf}:{d+2*hf+1}], v{tW2} offset:{o+12800*t+6400*hf}")
    def xrd(d, st, o=0):
        t, H = divmod(st, 5)
        if H < 4: a(f"ds_read_b128 v[{d}:{d+3}], v{tX1} offset:{o+t*10240+H*1024}")
        else:
            for hf in range(2): a(f"ds_read_b64 v[{d+2*hf}:{d+2*hf+1}], v{tX2} offset:{o+t*10240+4096+512*hf}")
    def wshift(p):
        if p % 2 == 1 and p < 7:
            sg = "s74" if p % 4 == 1 else "s75"
            a(f"v_add_u32 v{tW1}, {sg}, v{tW1}\nv_add_u32 v{tW2}, {sg}, v{tW2}")
    def mrd(st): wrd(F[st], st); xrd(F[st] + 4, st)
    def mmf(st): a(f"v_mfma_f32_32x32x16_bf16 v[4:19], v[{F[st]}:{F[st]+3}], v[{F[st]+4}:{F[st]+7}], v[4:19]")
    nrd = lambda st: 4 if st % 5 == 4 else 2
    def m_pack(O, A=4):
        for i in range(8): a(f"v_cvt_pk_bf16_f32 v{O+i}, v{A+2*i}, v{A+1+2*i}")
    def m_turn(O):
        for q in range(4): a(f"ds_write_b64 v{SW}, v[{O+2*q}:{O+2*q+1}] offset:{16*q}")
        for i in range(2): a(f"ds_read_b128 v[{O+4*i}:{O+4*i+3}], v{SR} offset:{1280*i}")
    def m_store(O, off):
        for i in range(2): a(f"buffer_store_dwordx4 v[{O+4*i}:{O+4*i+3}], v{tO}, s[44:47], s{80+i} offen offset:{off} {ONT}")
    WS_ = lambda h, st: 20 + 40 * h + 4 * st
    XS_ = lambda st: 100 + 4 * st
    n1 = lambda st: 2 if st % 5 == 4 else 1
    def mm2(p, st):
        ac = v(4 if p < 4 else AC2, 16); h = p % 2
        c = "0" if (p % 4 == 0 and st == 0) else ac
        a(f"v_mfma_f32_32x32x16_bf16 {ac}, v[{WS_(h,st)}:{WS_(h,st)+3}], v[{XS_(st)}:{XS_(st)+3}], {c}")
    for st in range(10): wrd(WS_(0, st), st)
    o_epilogue(a, OO, WS_OA, False)
    a(".p2align 3")
    nout = 0
    for p in range(8):
        a(f"s_waitcnt {'vmcnt(0) ' if p == 4 else ''}lgkmcnt({min(15, nout) if p > 4 else 0})\ns_barrier")
        if p == 7: a(f"s_mov_b32 s8, {-LX}\nv_add_u32 v{tX1}, s8, v{tX1}\nv_add_u32 v{tX2}, s8, v{tX2}")
        ct(a, f"k{p}")
        pend = []
        def X(st): xrd(XS_(st), st, 20480 * (p % 3) if p < 7 else 0); pend.extend([("x", st)] * n1(st))
        for k in range(4):
            X(2 * k); X(2 * k + 1)
            if p: mm2(p - 1, 6 + k)
        X(8); X(9)
        nx = len(pend)
        wshift(p)
        nw = [(0, 1), (2, 3), (4,), (5, 6), (7, 8), (9,)]
        for st in range(6 if p < 7 else 10):
            last = max(i for i, q in enumerate(pend) if q == ("x", st))
            a(f"s_waitcnt lgkmcnt({min(15, len(pend) - 1 - last)})\ns_nop 0")
            mm2(p, st)
            if p < 7:
                for w in nw[st]:
                    wrd(WS_(1 - p % 2, w), w, 25600 * ((p + 1) % 2)); pend.extend([("w", w)] * n1(w))
            if p == 7 and st == 0:
                m_turn(4); pend.extend([("o", 0)] * 6)
            if p == 7 and st == 6:
                a("s_waitcnt lgkmcnt(0)\ns_nop 0"); m_store(4, 1280)
        nout = len(pend) - nx
        if p == 1:
            a(f"""
            v_lshrrev_b32 v{tO}, 2, v0
            v_and_b32 v3, 3, v0
            s_mul_i32 s8, s3, 2560
            s_add_u32 s8, s8, {LX + 40960}
            v_mul_u32_u24 v{SW}, 80, v1
            v_lshl_add_u32 v{SW}, v2, 3, v{SW}
            v_add_u32 v{SW}, s8, v{SW}
            v_lshlrev_b32 v3, 4, v3
            v_mul_u32_u24 v{SR}, 80, v{tO}
            v_add3_u32 v{SR}, v{SR}, v3, s8
            v_mul_u32_u24 v{tO}, 2560, v{tO}
            v_add_u32 v{tO}, v{tO}, v3
            s_add_u32 s81, s80, {16*2560}
            .p2align 3
            """)
        if p == 4:
            a(NANCHK.format("s[48:49]", 4)); m_pack(4)
    a("s_nop 11")
    a(NANCHK.format("s[50:51]", AC2))
    m_pack(AC2, AC2); m_turn(AC2); a("s_waitcnt lgkmcnt(0)"); m_store(AC2, 0)
    def m_out():
        m_pack(OUT); m_turn(OUT); a("s_waitcnt lgkmcnt(0)"); m_store(OUT, 0)
    a("s_or_b64 vcc, s[48:49], s[50:51]\ns_cbranch_scc1 TLm_redo")
    a.label("TLm_end")
    stamp_end(a)
    a("s_endpgm")
    def redo(pfx, nacc, loads, mfmas, out):
        a.label(pfx + "_redo")
        if OPT.get("cntredo"):
            srd(a, 64, 34, 256)
            a("s_or_b32 s8, s48, s49\ns_cmp_lg_u32 s8, 0\ns_cselect_b32 s8, 8, 4\nv_mov_b32 v100, s8\nv_mov_b32 v101, 1\ns_mov_b64 exec, 1\nbuffer_atomic_add v101, v100, s[64:67], 0 offen\ns_mov_b64 exec, -1")
        a(f"v_add_u32 v{tW1}, s75, v{tW1}\nv_add_u32 v{tW2}, s75, v{tW2}")
        a(f"v_lshlrev_b32 v100, 2, v0\ns_lshl_b32 s52, s4, 7\ns_add_u32 s52, s52, {FL_OA}")
        a(f"s_mul_i32 s13, s4, 81920\ns_mul_i32 s53, s5, 102400\ns_add_u32 s53, s53, {WS_WPA}\ns_mov_b32 s54, 0")
        a.label(pfx + "_rj")
        poll(a, "s52", 8, "v101", "v100")
        for i in range(4, 4 + nacc): a(f"v_mov_b32 v{i}, 0")
        a("s_add_u32 s69, s5, s4\ns_mov_b32 s56, 0")
        a.label(pfx + "_rl")
        a(f"s_and_b32 s69, s69, 3\ns_mul_i32 s8, s69, 20480\ns_add_u32 s8, s8, s13\ns_add_u32 s9, s8, 4096\ns_add_u32 s10, s8, 10240\ns_add_u32 s11, s8, {10240+4096}")
        a("s_mul_i32 s12, s69, 25600\ns_add_u32 s12, s12, s53")
        loads()
        a("s_waitcnt vmcnt(0)")
        mfmas()
        a(f"s_add_u32 s69, s69, 1\ns_add_u32 s56, s56, 1\ns_cmp_lt_u32 s56, 4\ns_cbranch_scc1 {pfx}_rl")
        a("s_nop 11")
        out()
        a(f"s_add_u32 s80, s80, 1280\ns_add_u32 s81, s81, 1280\ns_add_u32 s13, s13, {WS_OB - WS_OA}")
        a(f"s_sub_u32 s52, s52, {FL_OA - FL_OB}\ns_sub_u32 s53, s53, {WS_WPA - WS_WPB}")
        a(f"s_add_u32 s54, s54, 1\ns_cmp_lt_u32 s54, 2\ns_cbranch_scc1 {pfx}_rj\ns_branch {pfx}_end")
    def gw(d, n, addr, off):
        a(f"s_add_u32 s14, s12, {off}")
        a(f"buffer_load_dwordx{n} v[{d}:{d+n-1}], v{addr}, s[40:43], s14 offen sc1")
    def m_loads():
        for st in range(10):
            t, H = divmod(st, 5); d = F[st] + 4
            if H < 4:
                a(f"buffer_load_dwordx4 v[{d}:{d+3}], v{tX1}, s[40:43], s{8+2*t} offen offset:{1024*H} sc1")
                gw(F[st], 4, tW1, 12800 * t + 3200 * H)
            else:
                for hf in range(2):
                    a(f"buffer_load_dwordx2 v[{d+2*hf}:{d+2*hf+1}], v{tX2}, s[40:43], s{9+2*t} offen offset:{512*hf} sc1")
                    gw(F[st] + 2 * hf, 2, tW2, 12800 * t + 6400 * hf)
    redo("TLm", 16, m_loads, lambda: [mmf(st) for st in range(10)], m_out)
    def zw(d, j, o=0):
        if j < 4: a(f"ds_read_b128 v[{d}:{d+3}], v{tW1} offset:{o+6400*j}")
        else:
            for t in range(2): a(f"ds_read_b64 v[{d+2*t}:{d+2*t+1}], v{tW2} offset:{o+12800*t}")
    def zx(d, j, o=0):
        if j < 4: a(f"ds_read_b128 v[{d}:{d+3}], v{tX1} offset:{o+(j>>1)*10240+(j&1)*2048}")
        else:
            for t in range(2): a(f"ds_read_b64 v[{d+2*t}:{d+2*t+1}], v{tX2} offset:{o+4096+10240*t}")
    def zmf(j): a(f"v_mfma_f32_16x16x32_bf16 v[4:7], v[{F[j]}:{F[j]+3}], v[{F[j]+4}:{F[j]+7}], v[4:7]")
    def z_pack(O, A=4):
        a(f"v_cvt_pk_bf16_f32 v{O}, v{A}, v{A+1}\nv_cvt_pk_bf16_f32 v{O+1}, v{A+2}, v{A+3}")
        a(f"ds_bpermute_b32 v{O}, v{SR}, v{O}\nds_bpermute_b32 v{O+1}, v{SR}, v{O+1}")
    def z_out():
        z_pack(OUT)
        a("s_waitcnt lgkmcnt(0)")
        a(f"buffer_store_dwordx2 v[{OUT}:{OUT+1}], v{tO}, s[44:47], s80 offen offset:128 {ONT}")
    a.label("TLz_start")
    for j in range(5): zw(F[j], j)
    o_epilogue(a, OO, WS_OA, False)
    for p in range(8):
        if p <= 4: a(f"s_waitcnt {'vmcnt(0) ' if p == 4 else ''}lgkmcnt(0)")
        a("s_barrier")
        if p == 7: a(f"s_mov_b32 s8, {-LX}\nv_add_u32 v{tX1}, s8, v{tX1}\nv_add_u32 v{tX2}, s8, v{tX2}")
        for j in range(5): zx(F[j] + 4, j, 20480 * (p % 3) if p < 7 else 0)
        wshift(p)
        if p == 1:
            a(f"""
            v_lshrrev_b32 v{tO}, 2, v0
            v_and_b32 v3, 3, v0
            v_lshl_add_u32 v{SR}, v3, 4, v{tO}
            v_lshlrev_b32 v{SR}, 2, v{SR}
            v_mul_u32_u24 v{tO}, 2560, v{tO}
            v_lshl_add_u32 v{tO}, v3, 3, v{tO}
            """)
        if p == 7: a(f"buffer_store_dwordx2 v[12:13], v{tO}, s[44:47], s80 offen offset:{1280+128} {ONT}")
        ac = v(4 if p < 4 else 8, 4)
        for j in range(5):
            w = (5 if j < 4 else 4) if p < 7 else (5 - j if j < 4 else 0)
            c = "0" if (p % 4 == 0 and j == 0) else ac
            a(f"s_waitcnt lgkmcnt({w})\nv_mfma_f32_16x16x32_bf16 {ac}, v[{F[j]}:{F[j]+3}], v[{F[j]+4}:{F[j]+7}], {c}")
            if p < 7: zw(F[j], j, 25600 * ((p + 1) % 2))
        if p == 4:
            a(NANCHK.format("s[48:49]", 4)); z_pack(12)
    a("s_nop 7")
    a(NANCHK.format("s[50:51]", 8))
    z_pack(14, 8)
    a("s_waitcnt lgkmcnt(0)")
    a(f"buffer_store_dwordx2 v[14:15], v{tO}, s[44:47], s80 offen offset:128 {ONT}")
    a("s_or_b64 vcc, s[48:49], s[50:51]\ns_cbranch_scc1 TLz_redo")
    a.label("TLz_end")
    stamp_end(a)
    a("s_endpgm")
    def z_loads():
        for j in range(5):
            d = F[j] + 4
            if j < 4:
                a(f"buffer_load_dwordx4 v[{d}:{d+3}], v{tX1}, s[40:43], s{8+2*(j>>1)} offen offset:{2048*(j&1)} sc1")
                gw(F[j], 4, tW1, 6400 * j)
            else:
                for t in range(2):
                    a(f"buffer_load_dwordx2 v[{d+2*t}:{d+2*t+1}], v{tX2}, s[40:43], s{9+2*t} offen sc1")
                    gw(F[j] + 2 * t, 2, tW2, 12800 * t)
    redo("TLz", 4, z_loads, lambda: [zmf(j) for j in range(5)], z_out)
    a.label("AT_fallback")
    FM = BACC
    a("s_mov_b32 exec_lo, 0")
    a(f"v_mov_b32 v{QB}, 0\nv_mov_b32 v{QB+1}, 0")
    a("s_mov_b32 exec_lo, -1")
    a(f"v_mov_b32 v{FM}, 0xff800000")
    a(f"s_mov_b32 s70, {WS_KV - LKV}")
    a.label("AT_fb1")
    a(f"buffer_load_dwordx4 v[{KA}:{KA+3}], v{aKA}, s[40:43], s70 offen sc1")
    a(f"buffer_load_dwordx2 v[{KB}:{KB+1}], v{aKB}, s[40:43], s70 offen sc1")
    a("s_waitcnt vmcnt(0)")
    qka(S0); qkb(S0)
    a("s_nop 15")
    rowmax(a, S0, FM, first=False)
    a(f"s_add_u32 s70, s70, {TILE}\ns_cmp_lt_u32 s70, {WS_KV-LKV+64*TILE}\ns_cbranch_scc1 AT_fb1")
    set_m(a, FM, FM + 1, FM + 2)
    for i in range(16): a(f"v_mov_b32 v{OO+i}, 0")
    a(f"s_mov_b32 s70, {WS_KV - LKV}")
    a.label("AT_fb2")
    a(f"buffer_load_dwordx4 v[{KA}:{KA+3}], v{aKA}, s[40:43], s70 offen sc1")
    a(f"buffer_load_dwordx2 v[{KB}:{KB+1}], v{aKB}, s[40:43], s70 offen sc1")
    a(f"buffer_load_dwordx4 v[{V0}:{V0+3}], v{aV0}, s[40:43], s70 offen sc1")
    a(f"buffer_load_dwordx4 v[{V1}:{V1+3}], v{aV1}, s[40:43], s70 offen sc1")
    a("s_waitcnt vmcnt(0)")
    qka(S0); qkb(S0)
    a("s_nop 15")
    E(S0, 0, 16)
    a("s_nop 1")
    pv0(S0); pv1()
    a(f"s_add_u32 s70, s70, {TILE}\ns_cmp_lt_u32 s70, {WS_KV-LKV+64*TILE}\ns_cbranch_scc1 AT_fb2")
    a("s_nop 15")
    a("s_branch AT_ok")

    LK = "s[62:63]"
    A_, B_, KV_, P_, WO_ = "L_issueA", "L_issueB", "L_issueKV", "L_issueP", "L_issueWo"
    a.label("L_md")
    tr_init(a); tr(a)
    p4, p8 = ("s4", "s5") if MAP48 else ("s5", "s4")
    a(f"""
    s_and_b32 s8, {p4}, 1
    s_mul_i32 s8, s8, 5
    s_and_b32 s9, {p4}, 2
    s_add_u32 s8, s8, s9
    s_and_b32 s9, {p8}, 7
    s_add_u32 s11, s8, s9
    s_cmp_ge_u32 s11, 10
    s_cselect_b32 s8, 10, 0
    s_sub_u32 s11, s11, s8
    s_mov_b32 s12, 0
    s_lshl_b32 s8, s10, 2
    s_lshl_b32 s9, s10, 3
    v_lshrrev_b32 v20, 4, v0
    v_add_u32 v20, s8, v20
    v_xor_b32 v20, v20, v0
    v_and_b32 v20, 7, v20
    v_lshlrev_b32 v20, 4, v20
    v_lshrrev_b32 v21, 3, v0
    v_add_u32 v21, s9, v21
    v_mul_u32_u24 v21, 1280, v21
    v_add_u32 v2, v20, v21
    s_mov_b32 s8, 1120
    """)
    for p in range(5):
        a(f"v_add_u32 v20, {64*p}, v0")
        a(f"v_mul_u32_u24 v{22+p}, 6554, v20")
        a(f"v_lshrrev_b32 v{22+p}, 16, v{22+p}")
        a(f"v_lshlrev_b32 v20, 4, v20")
        a(f"v_mad_u32_u24 v{3+p}, v{22+p}, s8, v20")
    a("s_mul_i32 s64, s5, 160")
    a(f"s_mul_i32 s65, s10, {32*1280}")
    a("s_add_u32 s65, s65, s64")
    srd(a, 48, 18, 640 * 1280)
    call(a, A_, LK)
    a("s_waitcnt vmcnt(9)"); bar(a)
    call(a, A_, LK); call(a, A_, LK)
    a("s_mov_b32 s70, 0")
    a.label("L_a")
    a("s_waitcnt vmcnt(18)"); bar(a); call(a, A_, LK)
    a("s_add_u32 s70, s70, 1\ns_cmp_lt_u32 s70, 7\ns_cbranch_scc1 L_a")
    srd(a, 40, 36, WS_SIZE)
    srd(a, 72, 26, XBYTES)
    srd(a, 76, 28, 640 * 3840)
    a("s_waitcnt vmcnt(18)"); bar(a)
    a("s_mov_b32 s8, 2560\ns_mov_b32 s9, 1280")
    for p in range(5):
        a(f"v_mad_u32_u24 v{8+p}, v{22+p}, s8, v{3+p}")
        a(f"v_lshrrev_b32 v20, 1, v{22+p}")
        a(f"v_mad_u32_u24 v{13+p}, v20, s9, v{3+p}")
    a(f"s_mul_i32 s66, s10, {32*3840}")
    a("s_add_u32 s66, s66, s64")
    a("s_add_u32 s67, s66, 1280")
    get_nonce(a, "v30", "v31")
    a("s_waitcnt vmcnt(9)"); bar(a)
    a("s_waitcnt vmcnt(0)"); bar(a)
    a("s_mov_b32 s12, 0")
    a("s_add_u32 s69, s5, s4\ns_and_b32 s69, s69, 3")
    a("s_cmp_eq_u32 s10, 1")
    a("s_cbranch_scc1 L1_path")
    a(f"s_add_u32 s60, s7, {4 if BS >= 2 else 3}\ns_and_b32 s60, s60, 15")
    a(f"s_mov_b32 s61, {LKV if BS >= 2 else LKV + 3*CH}")
    a("s_lshl_b32 s56, s4, 7\ns_lshl_b32 s57, s5, 2\ns_add_u32 s57, s57, s56")
    a("v_lshlrev_b32 v19, 2, v0")

    pad(a, "b0")
    B1_, B2_ = "L_issueB1", "L_issueB2"
    a(f"v_mov_b32 v33, {LMISC}")
    L = Loader(a)
    PFL = int(OPT.get("pfl", 0))
    if PFL:
        a(f"""
        v_mul_u32_u24 v60, 1280, v0
        s_add_u32 s70, s11, 9
        s_cmp_ge_u32 s70, 10
        s_cselect_b32 s8, 10, 0
        s_sub_u32 s70, s70, s8
        s_lshl_b32 s70, s70, 7
        s_add_u32 s70, s70, s13
        v_mul_u32_u24 v61, 43, v0
        v_lshrrev_b32 v61, 8, v61
        v_mul_u32_u24 v62, 6, v61
        v_sub_u32 v62, v0, v62
        v_mul_u32_u24 v61, 3840, v61
        v_lshrrev_b32 v63, 1, v62
        v_mul_u32_u24 v63, 1280, v63
        v_and_b32 v62, 1, v62
        v_mul_u32_u24 v62, 156, v62
        v_add3_u32 v61, v61, v62, v63
        s_and_b32 s9, s4, 7
        s_sub_u32 s71, s11, s9
        s_add_u32 s71, s71, 18
        s_cmp_ge_u32 s71, 20
        s_cselect_b32 s8, 20, 10
        s_sub_u32 s71, s71, s8
        s_add_u32 s65, s71, 1
        s_cmp_eq_u32 s65, 10
        s_cselect_b32 s65, 0, s65
        s_mul_i32 s9, s9, {8*3840}
        s_add_u32 s9, s9, s64
        s_mul_i32 s71, s71, {64*3840}
        s_add_u32 s71, s71, s9
        s_mul_i32 s65, s65, {64*3840}
        s_add_u32 s65, s65, s9
        """)
    bar(a); gs(a, 8); L.call(B1_, "B0", 9)
    if PFL:
        L.ops("pf", 3)
        a("buffer_load_dword v64, v60, s[72:75], s70 offen\ns_mov_b32 exec_hi, 0xffff")
        a("buffer_load_dword v65, v61, s[76:79], s71 offen\nbuffer_load_dword v66, v61, s[76:79], s65 offen\ns_mov_b32 exec_hi, -1")
    bar(a); L.call(B2_, "B0", 10)
    a("s_mov_b32 s9, 0")
    a.label("L0_c0")
    a("ds_read_b32 v32, v33 offset:4\ns_add_u32 s9, s9, 1\ns_waitcnt lgkmcnt(0)\nv_readfirstlane_b32 s8, v32")
    a(f"s_cmp_gt_u32 s9, {SPIN_MAX}\ns_cbranch_scc1 L0_c1\ns_cmp_ge_u32 s8, 8\ns_cbranch_scc1 L0_c1\ns_sleep 2\ns_branch L0_c0")
    a.label("L0_c1")
    L.call(KV_, "KV4", 11); L.call(B1_, "B1", 9)
    for nm, t in BARS:
        pad(a, nm)
        L.need([f"KV{c}" for c in KV_NEED.get(nm, [])] + ([f"B{nm[1]}"] if nm[0] == "f" else []))
        bar(a)
        if nm == "f0": L.call(B2_, "B1", 10)
        SPL = int(OPT.get("sp", 1))
        if nm == "f0" and SPL: L.call(B1_, "B2", 9)
        elif nm[0] == "f" and int(nm[1]) + 2 < 10:
            if nm == "f1" and SPL: L.call(B2_, "B2", 10)
            L.call(B_, f"B{int(nm[1])+2}", 19)
        for c in KV_ISSUE.get(nm, []): L.call(KV_, f"KV{c}", 11)
        if nm == "f9": a(f"s_mov_b32 s12, 0\ns_mul_i32 s64, s5, 102400\ns_add_u32 s64, s64, {WS_WPB}")
        if nm in ("c1", "k1"): L.call(WO_, "W", 25)
        if nm == "c3":
            a("s_mov_b32 s9, 0")
            a.label("L0_d0")
            a("ds_read_b32 v32, v33 offset:8\ns_add_u32 s9, s9, 1\ns_waitcnt lgkmcnt(0)\nv_readfirstlane_b32 s8, v32")
            a(f"s_cmp_gt_u32 s9, {SPIN_MAX}\ns_cbranch_scc1 L0_d1\ns_cmp_ge_u32 s8, 8\ns_cbranch_scc1 L0_d1\ns_sleep 2\ns_branch L0_d0")
            a.label("L0_d1")
            a(f"s_add_u32 s8, s57, {FL_HB}"); L.ops("fl", 1); publish(a, "s8", "v30", "v31")
            L.call(WO_, "W", 25); L.call(WO_, "W", 25)
        if nm == "k3":
            a(f"s_add_u32 s13, s13, {WS_OB}\ns_mov_b32 s61, {LX}\ns_add_u32 s8, s56, {FL_HB}")
            poll(a, "s8", 8); L.q.clear()
            call(a, P_, LK); call(a, "L_issuePa", LK)
        if nm == "k4":
            gs(a, 9); call(a, "L_issuePb", LK)
    a(f"s_add_u32 s70, s57, {FL_H}\ns_add_u32 s71, s56, {FL_H}")
    pad(a, "t0")
    a("s_waitcnt vmcnt(20)"); bar(a)
    publish(a, "s70", "v30", "v31")
    call(a, P_, LK)
    a("s_waitcnt vmcnt(21)"); bar(a)
    call(a, P_, LK)
    a(f"s_sub_u32 s13, s13, {WS_OB - WS_OA}")
    set_exec(a, 8)
    a("buffer_load_dword v32, v19, s[40:43], s71 offen sc1\ns_mov_b64 exec, -1")
    a("s_waitcnt vmcnt(21)"); bar(a)
    set_exec(a, 8)
    a("s_waitcnt vmcnt(0)\nv_cmp_ne_u32 vcc, s96, v32\ns_nop 1\ns_cbranch_vccz L0_go")
    a("buffer_load_dword v32, v19, s[40:43], s71 offen sc1\ns_waitcnt vmcnt(0)\nv_cmp_ne_u32 vcc, s96, v32\ns_mov_b64 exec, -1")
    a("s_cbranch_vccnz L0_late")
    a.label("L0_go")
    a("s_mov_b64 exec, -1")
    call(a, P_, LK)
    bar(a)
    a("s_branch L0_join")
    a.label("L0_late")
    bar(a)
    poll(a, "s71", 8)
    call(a, P_, LK)
    a.label("L0_join")
    gs(a, 7)
    call(a, P_, LK)
    pad(a, "t4")
    a("s_waitcnt vmcnt(20)"); bar(a)
    call(a, P_, LK)
    a("s_waitcnt vmcnt(20)"); bar(a)
    a("s_waitcnt vmcnt(0)"); bar(a)
    pad(a, "t7")
    a("s_waitcnt vmcnt(0)"); bar(a)
    pad(a, "end")
    tr_dump(a)
    a("s_endpgm")
    a.label("L1_path")
    srd(a, 48, 24, 640 * 1280)
    srd(a, 52, 30, 640 * 1280)
    a("s_lshl_b32 s56, s5, 5\ns_add_u32 s57, s56, s4")
    a(f"s_mul_i32 s68, s57, {PST}\ns_add_u32 s68, s68, {WS_KVP}")
    a("s_lshl_b32 s56, s5, 9\ns_lshr_b32 s8, s4, 3\ns_lshl_b32 s8, s8, 7\ns_and_b32 s57, s4, 7\ns_lshl_b32 s57, s57, 2\ns_add_u32 s57, s57, s8\ns_add_u32 s57, s57, s56")
    a("v_lshrrev_b32 v19, 3, v0\nv_lshlrev_b32 v19, 7, v19\nv_and_b32 v28, 7, v0\nv_lshl_add_u32 v19, v28, 2, v19")
    a(f"""
    v_lshrrev_b32 v48, 4, v0
    v_mul_u32_u24 v48, {8*PST}, v48
    v_and_b32 v49, 15, v0
    v_min_u32 v47, 13, v49
    v_lshl_add_u32 v48, v47, 4, v48
    v_lshlrev_b32 v49, 3, v49
    v_lshlrev_b32 v46, 7, v0
    """)
    for i in range(4): a(f"v_mov_b32 v{52+i}, -1")
    a(f"""
    v_bfe_u32 v20, v0, 2, 2
    v_mul_u32_u24 v20, 160, v20
    v_and_b32 v21, 3, v0
    v_lshl_add_u32 v20, v21, 3, v20
    v_add_u32 v20, {LRP}, v20
    v_lshrrev_b32 v21, 5, v0
    v_bfe_u32 v28, v0, 4, 1
    v_mul_u32_u24 v41, 1280, v21
    v_lshl_add_u32 v41, v28, 5, v41
    v_add_u32 v41, v41, v20
    v_mul_u32_u24 v42, 1280, v28
    v_add_u32 v42, v42, v20
    v_lshrrev_b32 v21, 4, v0
    v_lshl_add_u32 v43, v21, 5, v20
    v_lshlrev_b32 v44, 3, v0
    """)
    L = Loader(a)
    bar(a); L.call(B1_, "B0", 9)
    bar(a); L.call(B2_, "B0", 10)
    a(f"s_mov_b32 m0, {LRP}\ns_mul_i32 s8, s4, {20*1280}\ns_add_u32 s8, s8, s64")
    L.ops("rp", 8)
    for sr in (52, 48):
        for p in range(4):
            dma(a, f"v{3+p}", sr, "s8")
            a("s_add_u32 m0, m0, 1024\ns_nop 0")
    L.call(B1_, "B1", 9)
    def rp_read():
        L.need(["rp"])
        for m in range(2):
            d, o = 100 + 16 * m, 4096 * m
            for blk in range(2):
                for hf in range(2): a(f"ds_read_b64_tr_b16 v[{d+4*blk+2*hf}:{d+4*blk+2*hf+1}], v41 offset:{o+64*blk+640*hf}")
            for hf in range(2): a(f"ds_read_b64_tr_b16 v[{d+8+2*hf}:{d+9+2*hf}], v42 offset:{o+128+640*hf}")
            a(f"ds_read_b64_tr_b16 v[{d+12}:{d+13}], v43 offset:{o+2560}")
            a(f"ds_read_b64_tr_b16 v[{d+14}:{d+15}], v43 offset:{o+2560+128}")
        a("s_waitcnt lgkmcnt(0)")
    def rp_store():
        L.ops("st", 10)
        a(f"s_mul_i32 s64, s5, 102400\ns_mul_i32 s8, s4, 3200\ns_add_u32 s8, s8, s64\ns_add_u32 s9, s8, {WS_WPA}\ns_add_u32 s8, s8, {WS_WPB}\ns_add_u32 s64, s64, {WS_WPA}")
        for m in range(2):
            d = 100 + 16 * m
            a(f"buffer_store_dwordx4 v[{d}:{d+3}], v18, s[40:43], s{8+m} offen sc1")
            a(f"buffer_store_dwordx4 v[{d+4}:{d+7}], v18, s[40:43], s{8+m} offen offset:1024 sc1")
            a(f"buffer_store_dwordx2 v[{d+12}:{d+13}], v44, s[40:43], s{8+m} offen offset:2560 sc1")
        set_exec(a, 32)
        for m in range(2): a(f"buffer_store_dwordx4 v[{108+16*m}:{111+16*m}], v18, s[40:43], s{8+m} offen offset:2048 sc1")
        set_exec(a, 16)
        for m in range(2): a(f"buffer_store_dwordx2 v[{114+16*m}:{115+16*m}], v44, s[40:43], s{8+m} offen offset:3072 sc1")
        a("s_mov_b64 exec, -1")
    def fill_kv():
        L.ops("st", 8)
        a(f"s_lshl_b32 s60, s5, 12\ns_add_u32 s60, s60, {WS_KVZ}\ns_mul_i32 s61, s4, 112\ns_add_u32 s61, s61, s60")
        set_exec(a, 14)
        a("buffer_store_dwordx2 v[52:53], v49, s[40:43], s61 offen sc1")
        a("s_add_u32 s65, s68, 4096")
        set_exec(a, 40)
        a("buffer_store_dwordx4 v[52:55], v18, s[40:43], s65 offen offset:2048 sc1")
        a("s_mov_b64 exec, -1")
        for i in range(6):
            a(f"buffer_store_dwordx4 v[52:55], v18, s[40:43], {'s68' if i < 4 else 's65'} offen offset:{1024*(i%4)} sc1")
    def fill_tile(off):
        L.ops("nf", 10)
        a(f"s_mul_i32 s8, s5, 10240\ns_add_u32 s8, s8, s13\ns_add_u32 s8, s8, {off}")
        for i in range(10):
            if i in (4, 8): a("s_add_u32 s8, s8, 4096")
            a(f"buffer_store_dwordx4 v[52:55], v18, s[40:43], s8 offen offset:{1024*(i%4)} sc1")
    for p in range(10):
        L.need([f"B{p}"] + (["st"] if p == 5 else []))
        bar(a)
        if p == 0: L.call(B2_, "B1", 10); rp_read()
        if p == 5:
            a(f"s_add_u32 s8, s57, {FL_P}"); L.ops("fl", 1); publish(a, "s8", "v30", "v31")
        if p == 0 and SPL: L.call(B1_, "B2", 9)
        elif p + 2 < 10:
            if p == 1 and SPL: L.call(B2_, "B2", 10)
            L.call(B_, f"B{p+2}", 19)
        if p == 2: rp_store()
        if p == 3: fill_kv()
        if p == int(OPT.get("nf", 8)): fill_tile(WS_OA)
        if p == min(8, int(OPT.get("nf", 8)) + 1): fill_tile(WS_OB)
    a(f"s_add_u32 s8, s56, {FL_P}")
    poll(a, "s8", 32)
    a(f"s_and_b32 s8, s4, 7\ns_mul_i32 s8, s8, 12800\ns_add_u32 s8, s8, s64\ns_mov_b32 exec_hi, 0x3ffff")
    for i, o in enumerate((0, 6400, WS_WPB - WS_WPA - 6400, 6400)):
        a(f"s_add_u32 s8, s8, {o}\nbuffer_load_dword v{140+i}, v46, s[40:43], s8 offen sc1")
    a("s_mov_b32 exec_hi, -1")
    R = 60
    a(f"s_min_u32 s9, s4, 29\ns_mul_i32 s9, s9, 224\ns_mul_i32 s70, s5, {32*PST}\ns_add_u32 s70, s70, s9\ns_add_u32 s70, s70, {WS_KVP}")
    a(f"v_add_u32 v51, {LPART}, v18")
    bar(a); bar(a)
    for i in range(7):
        a(f"ds_read_b128 v[{R+4*i}:{R+3+4*i}], v51 offset:{1024*i}")
    for i in range(7):
        a(f"s_waitcnt lgkmcnt({6-i})")
        if i == 6: a("s_mov_b32 exec_hi, 15")
        a(f"buffer_store_dwordx4 v[{R+4*i}:{R+3+4*i}], v18, s[40:43], {'s68' if i < 4 else 's65'} offen offset:{1024*(i%4)} sc1")
    a("s_mov_b32 exec_hi, -1")
    gs(a, 10)
    a("s_waitcnt vmcnt(0)")
    gs(a, 11)
    a("s_mov_b32 s9, 0")
    Q = 100
    a.label("L1_p")
    a("s_mov_b32 s8, s70")
    for i in range(8):
        a(f"buffer_load_dwordx4 v[{Q+4*i}:{Q+3+4*i}], v48, s[40:43], s8 offen sc1")
        a(f"s_add_u32 s8, s8, {PST}")
    a("s_cmp_lg_u32 s9, 0\ns_cbranch_scc1 L1_p2")
    bar(a)
    a.label("L1_p2")
    a("s_add_u32 s9, s9, 1\ns_waitcnt vmcnt(0)")
    for i in range(4):
        for j in (0, 2): a(f"v_pk_add_f32 v[{R+4*i+j}:{R+1+4*i+j}], v[{Q+4*i+j}:{Q+1+4*i+j}], v[{Q+16+4*i+j}:{Q+17+4*i+j}]")
    for half in (2, 1):
        for i in range(half):
            for j in (0, 2): a(f"v_pk_add_f32 v[{R+4*i+j}:{R+1+4*i+j}], v[{R+4*i+j}:{R+1+4*i+j}], v[{R+4*(i+half)+j}:{R+1+4*(i+half)+j}]")
    a(f"v_pk_add_f32 v[30:31], v[{R}:{R+1}], v[{R+2}:{R+3}]\nv_cmp_u_f32 vcc, v30, v31\ns_nop 1\ns_cbranch_vccz L1_pd")
    a(f"v_max_u32 v30, v{Q}, v{Q+1}")
    for i in range(1, 16): a(f"v_max3_u32 v30, v30, v{Q+2*i}, v{Q+2*i+1}")
    a("v_cmp_eq_u32 vcc, -1, v30")
    a(f"s_cmp_gt_u32 s9, {SPIN_MAX}\ns_cbranch_scc1 L1_pd\ns_cbranch_vccz L1_pd\ns_mov_b64 exec, vcc\ns_sleep {OPT.get('rs', 4)}\ns_branch L1_p")
    a.label("L1_pd")
    a("s_mov_b64 exec, -1")
    gs(a, 12)
    if STAMP: a(f"v_mov_b32 v36, s9\ns_sub_u32 s14, s14, 40\nbuffer_store_dword v36, v37, s[40:43], s14 offen")
    for op in ("v_permlane32_swap_b32", "v_permlane16_swap_b32"):
        for j in range(4): a(f"v_mov_b32 v{R+4+j}, v{R+j}")
        a("s_nop 1")
        for j in range(4): a(f"{op} v{R+j}, v{R+4+j}")
        a("s_nop 1")
        for j in range(4): a(f"v_add_f32 v{R+j}, v{R+j}, v{R+4+j}")
    a(f"""
    v_cvt_pk_bf16_f32 v{R}, v{R}, v{R+1}
    v_cvt_pk_bf16_f32 v{R+1}, v{R+2}, v{R+3}
    v_min_u32 v{R}, -2, v{R}
    v_min_u32 v{R+1}, -2, v{R+1}
    s_mov_b32 exec_lo, 0x3fff
    s_mov_b32 exec_hi, 0
    buffer_store_dwordx2 v[{R}:{R+1}], v49, s[40:43], s61 offen sc1
    s_mov_b64 exec, -1
    """)
    for i in range(4): a(f"v_mov_b32 v{Q+12+i}, 0")
    a(f"v_add_u32 v50, {LKVZ}, v18")
    if K2: bar(a)
    a("s_waitcnt vmcnt(0)")
    gs(a, 13)
    a("s_mov_b32 s9, 0")
    a.label("L1_g")
    a("s_mov_b64 s[70:71], exec")
    for i in range(4):
        if i == 3: a("s_and_b32 exec_lo, exec_lo, 0x3ffff\ns_mov_b32 exec_hi, 0")
        a(f"buffer_load_dwordx4 v[{Q+4*i}:{Q+3+4*i}], v18, s[40:43], s60 offen offset:{1024*i} sc1")
    a("s_mov_b64 exec, s[70:71]")
    a("s_add_u32 s9, s9, 1\ns_waitcnt vmcnt(0)")
    a(f"v_max_u32 v30, v{Q}, v{Q+1}")
    for i in range(1, 8): a(f"v_max3_u32 v30, v30, v{Q+2*i}, v{Q+2*i+1}")
    a("v_cmp_eq_u32 vcc, -1, v30")
    a(f"s_cmp_gt_u32 s9, {SPIN_MAX}\ns_cbranch_scc1 L1_gd\ns_cbranch_vccz L1_gd\ns_mov_b64 exec, vcc\ns_sleep {OPT.get('rs', 4)}\ns_branch L1_g")
    a.label("L1_gd")
    a("s_mov_b64 exec, -1")
    gs(a, 14)
    if STAMP: a(f"v_mov_b32 v36, s9\ns_sub_u32 s14, s14, 44\nbuffer_store_dword v36, v37, s[40:43], s14 offen")
    for i in range(4): a(f"ds_write_b128 v50, v[{Q+4*i}:{Q+3+4*i}] offset:{1024*i}")
    a("s_waitcnt lgkmcnt(0)")
    bar(a)
    a("s_mov_b32 s12, 0")
    bar(a); bar(a)
    if KX: bar(a)
    a(f"s_lshl_b32 s70, s4, 7\ns_lshl_b32 s8, s5, 2\ns_add_u32 s70, s70, s8\ns_add_u32 s71, s70, {FL_OB}\ns_add_u32 s70, s70, {FL_OA}")
    bar(a); call(a, WO_, LK)
    bar(a); call(a, WO_, LK)
    a("s_waitcnt vmcnt(38)"); bar(a); call(a, WO_, LK)
    a("s_waitcnt vmcnt(38)"); bar(a); call(a, WO_, LK)
    a("s_add_u32 s69, s69, 3\ns_and_b32 s69, s69, 3\ns_mov_b32 s61, 0")
    a("s_waitcnt vmcnt(40)"); bar(a)
    call(a, P_, LK)
    publish(a, "s70", "v30", "v31"); publish(a, "s71", "v30", "v31")
    a("s_waitcnt vmcnt(47)"); bar(a)
    a("s_waitcnt vmcnt(22)"); bar(a)
    a("s_waitcnt vmcnt(2)"); bar(a)
    tr_dump(a)
    a.label("L_end")
    a("s_endpgm")
    a.label(A_)
    issue_x(a, 44, "s13", "s12")
    issue_w(a, 48, 3, 1280, "s65", "s12", IMG_W)
    wrap_inc(a, "s11", 1, 10); wrap_inc(a, "s12", HS, 6 * HS)
    a("s_setpc_b64 s[62:63]")
    a.label("L_issueB1")
    issue_x(a, 72, "s13", "s12")
    issue_w(a, 76, 8, 3840, "s66", "s12", IMG_W)
    a("s_setpc_b64 s[62:63]")
    a.label(B_)
    if OPT.get("lprio"): a("s_setprio " + OPT["lprio"])
    issue_x(a, 72, "s13", "s12")
    issue_w(a, 76, 8, 3840, "s66", "s12", IMG_W)
    a.label("L_issueB2")
    issue_w(a, 76, 13, 3840, "s67", "s12", IMG_KV, periods=2, rows_per_period=16)
    wrap_inc(a, "s11", 1, 10); wrap_inc(a, "s12", SLOT, 3 * SLOT)
    if OPT.get("lprio"): a("s_setprio 2")
    a("s_setpc_b64 s[62:63]")
    def lin(n):
        for i in range(n):
            if i % 4 == 0 and i > 0:
                a("s_add_u32 m0, m0, 4096")
                a("s_add_u32 s14, s14, 4096")
            a(f"buffer_load_dwordx4 v18, s[40:43], s14 offen offset:{1024*(i%4)} sc1 lds")
    a.label(KV_)
    a("s_mov_b32 m0, s61")
    a(f"s_mul_i32 s14, s60, {CH}")
    a(f"s_add_u32 s14, s14, {WS_KV}")
    lin(11)
    a("s_add_u32 s60, s60, 1\ns_and_b32 s60, s60, 15")
    wrap_inc(a, "s61", CH, LKV + 4 * CH, LKV)
    a("s_setpc_b64 s[62:63]")
    a.label("L_issuePa")
    a("s_mov_b32 m0, s61\ns_mul_i32 s14, s69, 20480\ns_add_u32 s14, s14, s13")
    lin(10)
    a("s_setpc_b64 s[62:63]")
    a.label("L_issuePb")
    a("s_add_u32 m0, s61, 10240\ns_mul_i32 s14, s69, 20480\ns_add_u32 s14, s14, s13\ns_add_u32 s14, s14, 10240")
    lin(10)
    a("s_branch L_issuePe")
    a.label(P_)
    a("s_mov_b32 m0, s61")
    a("s_mul_i32 s14, s69, 20480")
    a("s_add_u32 s14, s14, s13")
    lin(20)
    a.label("L_issuePe")
    a("s_add_u32 s69, s69, 1\ns_and_b32 s69, s69, 3")
    wrap_inc(a, "s61", 20480, LX + 3 * 20480, LX)
    a("s_setpc_b64 s[62:63]")
    a.label(WO_)
    a("s_mov_b32 m0, s12")
    a("s_mul_i32 s14, s69, 25600")
    a("s_add_u32 s14, s14, s64")
    lin(25)
    a("s_add_u32 s69, s69, 1\ns_and_b32 s69, s69, 3")
    a("s_add_u32 s12, s12, 25600")
    a("s_setpc_b64 s[62:63]")
    a.label("L_codeend")

def main(out):
    a = Asm()
    a.lines.append(f"; @launch grid=(256,1,1) block=(640,1,1) lds={LDS_TOTAL}")
    a('.amdgcn_target "amdgcn-amd-amdhsa--gfx950"')
    a(".text")
    gen(a)
    a('.section .rodata,"a"')
    open(out, "w").write(a.text() + descriptor(NAME + "_kernel", NV, 102))

if __name__ == "__main__":
    main(sys.argv[1] if len(sys.argv) > 1 else f"cdna_kernels/{NAME}.s")
```

```python
import sys, struct, os
from asmlib import *

NAME = "concat_heads__grouped_kv_mqa__linear_attn_block__prompt"
STAMP = bool(os.environ.get("STAMP"))
OPT = dict(kv.split("=") for kv in os.environ.get("OPT", "").split(",") if kv)
PFB = int(OPT.get("pfb", 0))
ONT = OPT.get("ont", "nt")
MAP48 = int(OPT.get("map48", 0))
BS = 3
WS_OA, WS_OB, WS_KV, WS_KVP, WS_KVZ = 0x0, 0x280000, 0x500000, 0xA00000, 0x700000
PST = 6784
FL_KV, FL_P, FL_H, FL_OB, FL_OA = 0x718000, 0x720000, 0x728000, 0x730000, 0x738000
FL_HB = 0x72C000
LCNT = LMISC_ = 163840 - 8
FORCE_REDO = int(OPT.get('redo', 0))
WS_WPB, WS_WPA = 0x740000, 0x740000 + 8 * 102400
WS_ST = 0x900000
WS_SIZE = 0xE00000
TILE = 2816
CH = 4 * TILE
XBYTES = 2048 * 1280
SLOT = 38912
HS = SLOT // 2
IMG_W, IMG_KV = 8192, 18432
LKV = 3 * SLOT
LMISC = 163840 - 16
LKVZ = 112640
LMX = LKV
LWKV = LKV + 20480
LQ = 2 * SLOT
LFR, LPART = SLOT, 102400
LX = 102400
LRP = 2 * SLOT + 28672
LDS_TOTAL = 163840
SPIN_MAX = 1 << 17
def f32(x): return "0x%08x" % struct.unpack("<I", struct.pack("<f", x))[0]
LOG2E = 1.4426950408889634
CSCALE = LOG2E / (20 ** 0.5)

S0, S1, PP, KA, KB, QB, V0, V1, QA, OO, BACC, BFR = 4, 20, 36, 44, 48, 50, 52, 56, 60, 64, 80, 112
aKA, aKB, aV0, aV1, bW, bX = 136, 137, 138, 139, 140, 141
OAD0, OAD1 = 145, 146
PWR = 147
JA, JB, QF0, QF1, AP0, AP1 = 151, 152, 153, 154, 155, 156
tW1, tW2, tX1, tX2, tO, TL0, TL1 = 157, 158, 159, 160, 161, 162, 163
TLQ = [162, 163, 165, 166]
IDX = 167
NV = 168
CPF4 = int(OPT.get('cpf4', 1))
PQA, PQB = 128, 132
T = 4
AFR = [BFR, BFR + 12, 36, 48]
AACC = 4
MASKS = [92, 94, 98, 100]
POS = [[0, 1, 3, 4, 2], [1, 2, 0, 3, 4], [2, 3, 4, 0, 1], [3, 4, 0, 2, 1]]
INV = [[POS[r].index(p) for p in range(5)] for r in range(4)]
PAT = [int(c) for c in OPT.get("pat", "4333222222")]
FT = [int(OPT.get("f0", 10))]
for _n in PAT: FT.append(FT[-1] + _n)
TE = FT.pop()
C1 = TE + 1 + int(OPT.get("ept", 0)); C2 = C1 + 2
K1 = int(OPT.get("k1", 43)); C3 = int(OPT.get("c3", 53)); K3 = int(OPT.get("k3", 58)); K4 = int(OPT.get("k4", 61))
K2 = int(OPT.get("k2", 48)); KX = int(OPT.get("kx", 0))
BARS = [(f"f{p}", t) for p, t in enumerate(FT)] + [("c1", C1), ("c2", C2), ("k1", K1)] + ([("k2", K2)] if K2 else []) + [("c3", C3), ("k3", K3)] + ([("kx", KX)] if KX else []) + [("k4", K4)]
assert K3 >= 57 and K3 >= C3 + 2 and K4 >= 61
assert all(BARS[i][1] < BARS[i + 1][1] for i in range(len(BARS) - 1)), BARS
KV_ISSUE, KV_NEED = {}, {}
for _c in range(4, 16):
    _need = max(i for i, b in enumerate(BARS) if b[1] <= 4 * _c - 2)
    KV_NEED.setdefault(BARS[_need][0], []).append(_c)
    if _c > 4:
        _iss = min(i for i, b in enumerate(BARS) if b[1] >= 4 * _c - 11)
        assert _iss < _need, (_c, BARS)
        KV_ISSUE.setdefault(BARS[_iss][0], []).append(_c)
PLANS = {0: "qka e0 e1 e2 e3 qkb e4 e5 e6 e7 pv1 e8 e9 e10 e11 pv0 e12 e13 e14 e15",
         1: OPT.get("p1", "qka e0 e1 g01 e2 e3 e4 qkb e5 e6 e7 pv1 e8 e9 e10 g00 e11 e12 e13 pv0 e14 e15"),
         2: OPT.get("p2", "qka e0 e1 pv1 e2 qkb e3 e4 g10 e5 e6 g01 e7 e8 e9 g11 e10 g00 e11 e12 e13 pv0 e14 e15")}

class Stream:
    def __init__(s, a, st=()): s.a, s.lines, s.st = a, [], list(st)
    def need(s, tags):
        last = max([j for j, q in enumerate(s.st) if q in tags], default=-1)
        if last < 0: return
        cnt = min(15, len(s.st) - 1 - last)
        s.lines.insert(len(s.lines) - 1 if s.lines and s.lines[-1][0] == "e" else len(s.lines), ("4", f"s_waitcnt lgkmcnt({cnt})"))
        del s.st[:len(s.st) - cnt]
    def m(s, text, tags=()): s.need(tags); s.lines.append(("8", text))
    def r(s, tag, text): s.st.append(tag); s.lines.append(("8", text))
    def e(s, d, x): s.lines.append(("e", f"v_exp_f32 v{d}, v{x}"))
    def x4(s, *texts):
        for t in texts: s.lines.append(("4", t))
    def x8(s, *texts):
        for t in texts: s.lines.append(("8", t))
    def flush(s):
        off, res = 0, []
        def fix():
            if res[-1].startswith("v_exp_f32 "): res[-1] = res[-1].replace("v_exp_f32 ", "v_exp_f32_e64 ")
            else: res.append("s_nop 0")
        for k, t in s.lines:
            if k == "8" and off % 8: fix(); off += 4
            res.append(t); off += 8 if k == "8" else 4
        if off % 8: fix()
        for t in res: s.a(t)
        s.lines = []

class Loader:
    def __init__(s, a): s.a, s.q = a, []
    def ops(s, tag, n):
        if len(s.q) + n > 63: s.wait(63 - n)
        s.q += [tag] * n
    def wait(s, cnt): s.a(f"s_waitcnt vmcnt({cnt})"); del s.q[:len(s.q) - cnt]
    def need(s, tags):
        last = max([j for j, q in enumerate(s.q) if q in tags], default=-1)
        if last >= 0: s.wait(len(s.q) - 1 - last)
    def call(s, lbl, tag, n): s.ops(tag, n); s.a(f"s_call_b64 s[62:63], {lbl}")

def pack3(tab):
    x = 0
    for r in range(4):
        for j in range(5): x |= tab[r][j] << (3 * (5 * r + j))
    return x

def tr(a):
    if not STAMP: return
    a("""
    s_waitcnt lgkmcnt(0)
    s_sub_u32 s90, s88, s84
    s_memtime s[88:89]
    s_mov_b32 m0, s85
    s_add_u32 s85, s85, 1
    v_writelane_b32 v40, s90, m0
    """)
def tr_init(a):
    if STAMP: a("s_mov_b32 s85, 0\nv_mov_b32 v40, 0\ns_mov_b32 s88, s84")
def tr_dump(a):
    if not STAMP: return
    tr(a)
    a(f"""
    s_lshl_b32 s8, s2, 1
    s_add_u32 s8, s8, s10
    s_lshl_b32 s8, s8, 8
    s_add_u32 s8, s8, {WS_ST + 0x40000}
    v_lshlrev_b32 v8, 2, v0
    buffer_store_dword v40, v8, s[40:43], s8 offen
    """)
def stamp_end(a):
    if not STAMP: return
    a(f"""
    s_memtime s[12:13]
    s_waitcnt vmcnt(0)
    s_memtime s[88:89]
    s_memrealtime s[90:91]
    s_waitcnt lgkmcnt(0)
    s_mov_b64 exec, -1
    s_sub_u32 s88, s88, s84
    s_sub_u32 s12, s12, s84
    v_mov_b32 v4, s86
    v_mov_b32 v5, s90
    v_mov_b32 v6, s88
    v_mov_b32 v7, s12
    s_lshl_b32 s8, s2, 4
    s_add_u32 s8, s8, s3
    s_lshl_b32 s8, s8, 4
    s_add_u32 s8, s8, {WS_ST}
    v_mov_b32 v8, 0
    buffer_store_dwordx4 v[4:7], v8, s[40:43], s8 offen
    """)
    for i in range(8): a(f"s_sub_u32 s{16+2*i}, s{16+2*i}, s84\nv_mov_b32 v{12+i}, s{16+2*i}")
    a(f"s_sub_u32 s8, s8, {WS_ST}\ns_lshl_b32 s8, s8, 1\ns_add_u32 s8, s8, {WS_ST + 0xC0000}")
    a("buffer_store_dwordx4 v[12:15], v8, s[40:43], s8 offen\nbuffer_store_dwordx4 v[16:19], v8, s[40:43], s8 offen offset:16")
CTP = OPT.get("ct", "").split("+")
def ct(a, name):
    if STAMP and name in CTP:
        i = CTP.index(name)
        a(f"s_memtime s[{16+2*i}:{17+2*i}]")
def gs(a, idx, t0="v36", t1="v37"):
    if not STAMP: return
    a(f"""
    s_memrealtime s[14:15]
    s_waitcnt lgkmcnt(0)
    v_mov_b32 {t0}, s14
    s_lshl_b32 s14, s2, 6
    s_add_u32 s14, s14, {WS_ST + 0x80000 + 4*idx}
    v_mov_b32 {t1}, 0
    buffer_store_dword {t0}, {t1}, s[40:43], s14 offen
    """)
def pad(a, where):
    p = OPT.get("pad", "")
    if not p.startswith(where + ":"): return
    l = a.newlabel("Lpad")
    a.label(l)
    a(f"s_memrealtime s[14:15]\ns_waitcnt lgkmcnt(0)\ns_sub_u32 s14, s14, s96\ns_cmp_lt_u32 s14, {p.split(':')[1]}\ns_cbranch_scc1 {l}")
def bar(a):
    a("s_barrier"); tr(a)

def dma(a, voff, srdi, soff, extra=""):
    a(f"buffer_load_dwordx4 {voff}, s[{srdi}:{srdi+3}], {soff} offen {extra} lds")
def issue_x(a, srdi, sbase, lds_sgpr):
    a(f"s_lshl_b32 s15, s10, 10")
    a(f"s_add_u32 m0, s15, {lds_sgpr}")
    a(f"s_lshl_b32 s14, s11, 7")
    a(f"s_add_u32 s14, s14, {sbase}")
    for jj in range(4):
        dma(a, "v2", srdi, "s14")
        if jj < 3:
            a("s_add_u32 m0, m0, 2048")
            a("s_add_u32 s14, s14, 20480")
def issue_w(a, srdi, voffs, ld, sbase, lds_sgpr, ldsoff, periods=1, rows_per_period=32):
    a(f"s_mul_i32 s15, s10, {5120*periods}")
    a(f"s_add_u32 s15, s15, {lds_sgpr}")
    a(f"s_add_u32 m0, s15, {ldsoff}")
    a(f"s_mul_i32 s14, s11, {64*ld}")
    a(f"s_add_u32 s14, s14, {sbase}")
    for per in range(periods):
        for p in range(5):
            dma(a, f"v{voffs+p}", srdi, "s14")
            if not (per == periods - 1 and p == 4):
                a("s_add_u32 m0, m0, 1024")
                a(f"s_add_u32 s14, s14, {rows_per_period*ld}" if p == 4 else "s_nop 0")
def wrap_inc(a, reg, step, limit, base=0):
    a(f"s_add_u32 {reg}, {reg}, {step}")
    a(f"s_cmp_eq_u32 {reg}, {limit}")
    a(f"s_cselect_b32 {reg}, {base}, {reg}")
def set_exec(a, n):
    m = (1 << n) - 1
    a(f"s_mov_b32 exec_lo, {m & 0xffffffff:#x}\ns_mov_b32 exec_hi, {m >> 32:#x}")
def poll(a, soff, nlanes, tmp="v30", addr="v19"):
    lp, dn = a.newlabel("Lpoll"), a.newlabel("Lpd")
    set_exec(a, nlanes)
    a("s_mov_b32 s9, 0")
    a.label(lp)
    a(f"buffer_load_dword {tmp}, {addr}, s[40:43], {soff} offen sc1")
    a("s_add_u32 s9, s9, 1")
    a("s_waitcnt vmcnt(0)")
    a(f"v_cmp_ne_u32 vcc, s96, {tmp}")
    a(f"s_cmp_gt_u32 s9, {SPIN_MAX}")
    a(f"s_cbranch_scc1 {dn}")
    a(f"s_cbranch_vccz {dn}")
    a("s_sleep 1")
    a(f"s_branch {lp}")
    a.label(dn)
    a("s_mov_b64 exec, -1")
def publish(a, soff, tmp, zero):
    a(f"v_mov_b32 {tmp}, s96")
    a(f"v_mov_b32 {zero}, 0")
    a("s_mov_b64 exec, 1")
    a(f"buffer_store_dword {tmp}, {zero}, s[40:43], {soff} offen sc1")
    a("s_mov_b64 exec, -1")
def get_nonce(a, tmp, addr):
    a(f"v_mov_b32 {addr}, {LMISC}")
    a(f"ds_read_b32 {tmp}, {addr}")
    a("s_waitcnt lgkmcnt(0)")
    a(f"v_readfirstlane_b32 s96, {tmp}")
def call(a, lbl, link="s[58:59]"):
    a(f"s_call_b64 {link}, {lbl}")
def pf_rows(a, vd, ld, s0, s1):
    a(f"""
    v_mul_u32_u24 v{vd}, 52429, v0
    v_lshrrev_b32 v{vd}, 18, v{vd}
    v_mul_u32_u24 v{vd+1}, 5, v{vd}
    v_sub_u32 v{vd+1}, v0, v{vd+1}
    v_mul_u32_u24 v{vd}, {ld}, v{vd}
    v_lshl_add_u32 v{vd}, v{vd+1}, 7, v{vd}
    s_mul_i32 {s0}, s7, {20*ld}
    s_and_b32 s8, s6, 1
    s_mul_i32 s8, s8, 640
    s_add_u32 {s0}, {s0}, s8
    s_add_u32 {s1}, {s0}, {10*ld}
    """)
def pf_x(a, srdi, vaddr, vd):
    a(f"""
    s_lshr_b32 s8, s6, 1
    s_mul_i32 s8, s8, {512*1280}
    s_mul_i32 s9, s7, 20480
    s_add_u32 s8, s8, s9
    s_add_u32 s9, s8, 8192
    buffer_load_dword v{vd}, {vaddr}, s[{srdi}:{srdi+3}], s8 offen
    buffer_load_dword v{vd+1}, {vaddr}, s[{srdi}:{srdi+3}], s9 offen
    s_add_u32 s9, s8, 16384
    s_mov_b32 exec_hi, 0
    buffer_load_dword v{vd+2}, {vaddr}, s[{srdi}:{srdi+3}], s9 offen
    s_mov_b32 exec_hi, -1
    """)

def phi_sub(a):
    a.label("g_pack")
    a("s_mov_b64 exec, -1")
    for i in range(16):
        a(f"v_cvt_pk_bf16_f32 v{BACC+i}, v{BACC+2*i}, v{BACC+2*i+1}")
    a("s_setpc_b64 s[58:59]")
def read_qfrag(a, qa, qb):
    a(f"ds_read_b128 v[{qa}:{qa+3}], v{QF1}")
    a(f"ds_read_b64 v[{qb}:{qb+1}], v{QF0}")
def o_epilogue(a, O, wsoff, eps):
    if eps:
        a(f"v_add_f32 v{O+12}, {f32(1e-6)}, v{O+12}")
    a(f"v_rcp_f32 v{O+12}, v{O+12}")
    a(f"s_add_u32 s8, s81, {wsoff}")
    a(f"s_add_u32 s9, s82, {wsoff}")
    for i in range(0, 12, 2):
        a(f"v_pk_mul_f32 v[{O+i}:{O+i+1}], v[{O+i}:{O+i+1}], v[{O+12}:{O+13}] op_sel_hi:[1,0]")
    for i in range(6):
        a(f"v_cvt_pk_bf16_f32 v{O+i}, v{O+2*i}, v{O+2*i+1}")
    a(f"buffer_store_dwordx4 v[{O}:{O+3}], v{OAD1}, s[40:43], s8 offen sc1")
    a("s_mov_b32 exec_hi, 0")
    a(f"buffer_store_dwordx2 v[{O+4}:{O+5}], v{OAD0}, s[40:43], s9 offen sc1")
    a("s_mov_b32 exec_hi, -1")
def rowmax(a, S, dst, first=True):
    regs = [f"v{S+i}" for i in range(16)]
    if first:
        a(f"v_max3_f32 v{dst}, {regs[0]}, {regs[1]}, {regs[2]}")
        rest = regs[3:]
    else:
        rest = regs
    while len(rest) >= 2:
        a(f"v_max3_f32 v{dst}, v{dst}, {rest[0]}, {rest[1]}")
        rest = rest[2:]
    if rest:
        a(f"v_max_f32 v{dst}, v{dst}, {rest[0]}")
def set_m(a, m, tmp, keep):
    a(f"""
    v_mov_b32 v{tmp}, v{m}
    s_nop 1
    v_permlane32_swap_b32 v{m}, v{tmp}
    s_nop 1
    v_max_f32 v{keep}, v{m}, v{tmp}
    s_mov_b32 exec_lo, 0
    v_sub_f32 v{m}, 0, v{keep}
    v_and_b32 v{tmp}, 0xffff0000, v{m}
    v_sub_f32 v{m}, v{m}, v{tmp}
    v_lshrrev_b32 v{QB}, 16, v{tmp}
    v_and_b32 v{tmp}, 0xffff0000, v{m}
    v_sub_f32 v{m}, v{m}, v{tmp}
    v_or_b32 v{QB}, v{QB}, v{tmp}
    v_lshrrev_b32 v{QB+1}, 16, v{m}
    s_mov_b32 exec_lo, -1
    """)

def precompute(a):
    t = 12
    a(f"""
    v_and_b32 v1, 31, v0
    v_lshrrev_b32 v2, 5, v0
    v_lshrrev_b32 v3, 2, v1
    v_add_u32 v3, 1, v3
    v_and_b32 v3, 2, v3
    v_mul_u32_u24 v3, 6, v3
    v_xor_b32 v3, v1, v3
    v_lshlrev_b32 v{OAD0}, 3, v0
    v_lshlrev_b32 v{OAD1}, 4, v0
    s_and_b32 s38, s3, 1
    s_lshr_b32 s39, s3, 1
    s_mov_b32 s76, 0
    s_mov_b32 s77, 128
    s_cmp_eq_u32 s3, 1
    s_cselect_b32 s76, 32, s76
    s_cselect_b32 s77, 64, s77
    s_cmp_eq_u32 s3, 2
    s_cselect_b32 s76, 96, s76
    s_cselect_b32 s77, 96, s77
    s_sub_u32 s78, s3, 3
    s_lshl_b32 s78, s78, 2
    s_lshr_b32 s78, 0x20431, s78
    s_and_b32 s78, s78, 15
    s_lshl_b32 s8, s78, 6
    s_add_u32 s8, s8, {IMG_KV}
    s_add_u32 s9, s76, {IMG_W}
    s_sub_u32 s64, s77, s76
    s_cmp_lt_u32 s3, 3
    s_cselect_b32 s60, s9, s8
    s_cselect_b32 s64, s64, 32
    s_mov_b32 s61, 320
    s_cselect_b32 s61, 160, s61
    v_bfe_u32 v{t}, v0, 2, 2
    v_lshl_add_u32 v{t+1}, v2, 3, v{t}
    v_mul_u32_u24 v{t+1}, s61, v{t+1}
    v_bfe_u32 v{t+3}, v0, 4, 1
    v_mul_u32_u24 v{t+2}, s64, v{t+3}
    v_and_b32 v{t+6}, 3, v0
    v_lshlrev_b32 v{t+6}, 3, v{t+6}
    v_add3_u32 v{t+1}, v{t+1}, v{t+2}, v{t+6}
    v_add_u32 v{bW}, s60, v{t+1}
    v_bfe_u32 v{t+2}, v0, 1, 3
    v_xor_b32 v{t+2}, v{t+2}, v2
    v_lshlrev_b32 v{t+2}, 4, v{t+2}
    v_lshl_or_b32 v{bX}, v1, 7, v{t+2}
    v_xor_b32 v{bX+1}, 32, v{bX}
    v_xor_b32 v{bX+2}, 64, v{bX}
    v_xor_b32 v{bX+3}, 96, v{bX}
    """)
    a(f"""
    s_mul_i32 s80, s4, {64*2560}
    s_mul_i32 s8, s5, 160
    s_add_u32 s80, s80, s8
    s_cmp_ge_u32 s3, 4
    s_cbranch_scc1 PC_tz
    s_lshl_b32 s9, s39, 6
    s_add_u32 s80, s80, s9
    s_mul_i32 s10, s38, {32*2560}
    s_add_u32 s80, s80, s10
    s_mul_i32 s8, s38, 5120
    s_add_u32 s8, s8, {LX}
    s_lshl_b32 s9, s39, 10
    v_add_u32 v{tW1}, s9, v{OAD1}
    s_lshl_b32 s9, s39, 8
    s_add_u32 s9, s9, 2560
    v_mul_u32_u24 v{tW2}, 3200, v2
    v_lshl_add_u32 v{tW2}, v1, 3, v{tW2}
    v_add_u32 v{tW2}, s9, v{tW2}
    v_add_u32 v{tX1}, s8, v{OAD1}
    v_add_u32 v{tX2}, s8, v{OAD0}
    s_branch PC_td
    """)
    a.label("PC_tz")
    a(f"""
    s_sub_u32 s8, s3, 4
    s_mul_i32 s10, s8, {16*2560}
    s_add_u32 s80, s80, s10
    s_lshl_b32 s9, s38, 4
    s_lshr_b32 s8, s8, 1
    s_mul_i32 s8, s8, 5120
    s_add_u32 s8, s8, {LX}
    v_lshrrev_b32 v{t}, 4, v0
    v_and_b32 v{t+2}, 15, v0
    v_mul_u32_u24 v{tW1}, 3200, v2
    v_lshl_add_u32 v{tW1}, v1, 4, v{tW1}
    v_add_u32 v{tW1}, 2048, v{tW1}
    v_mul_u32_u24 v{tW2}, 3200, v{t}
    v_lshl_add_u32 v{tW2}, v{t+2}, 3, v{tW2}
    v_add_u32 v{tW2}, {2560+512}, v{tW2}
    v_add_u32 v{t+2}, s9, v{t+2}
    v_lshl_add_u32 v{t+4}, v{t}, 5, v{t+2}
    v_lshlrev_b32 v{tX2}, 3, v{t+4}
    v_add_u32 v{tX2}, s8, v{tX2}
    v_lshlrev_b32 v{tX1}, 4, v{t+4}
    v_add_u32 v{tX1}, s8, v{tX1}
    """)
    a.label("PC_td")
    a(f"v_mov_b32 v{tO}, 0")
    a(f"""
    v_add_u32 v{aKA}, {LKV}, v{OAD1}
    v_lshlrev_b32 v{aKB}, 3, v1
    v_add_u32 v{aKB}, {LKV+1024}, v{aKB}
    v_mul_u32_u24 v{aV0}, 320, v2
    v_lshl_add_u32 v{aV0}, v1, 4, v{aV0}
    v_add_u32 v{aV0}, {LKV+1280}, v{aV0}
    v_add_u32 v{aV1}, 640, v{aV0}
    v_mov_b32 v{AP0}, v3
    s_mov_b32 exec_lo, 0x0ff00000
    s_mov_b32 exec_hi, 0
    v_mov_b32 v{aV0}, {LKV+2560+16*4}
    v_mov_b32 v{aV1}, {LKV+2560+16*12}
    s_mov_b32 exec_lo, 0xf0000000
    v_mov_b32 v{aV0}, {LKV+2560+16*12}
    v_mov_b32 v{aV1}, {LKV+2560+16*4}
    s_mov_b32 exec_lo, 0
    s_mov_b32 exec_hi, 0x0ff00000
    v_mov_b32 v{aV0}, {LKV+2560+16*8}
    v_mov_b32 v{aV1}, {LKV+2560}
    s_mov_b32 exec_hi, 0xf0000000
    v_mov_b32 v{aV0}, {LKV+2560}
    v_mov_b32 v{aV1}, {LKV+2560+16*8}
    s_mov_b32 exec_lo, 0xeef00000
    s_mov_b32 exec_hi, 0xeef00000
    v_add_u32 v{aV0}, 16, v{aV0}
    v_add_u32 v{aV1}, 16, v{aV1}
    s_mov_b32 exec_lo, 0xfff00000
    s_mov_b32 exec_hi, 0xfff00000
    v_mov_b32 v{AP0}, 20
    s_mov_b32 exec_lo, 0
    s_mov_b32 exec_hi, -1
    v_mov_b32 v{aKB}, {LKV+2560}
    s_mov_b64 exec, -1
    s_mul_i32 s8, s39, 840
    s_add_u32 s8, s8, {LKVZ}
    v_mul_u32_u24 v{AP0}, 40, v{AP0}
    v_add_u32 v{AP0}, s8, v{AP0}
    v_lshl_add_u32 v{AP1}, v2, 4, v{AP0}
    s_lshl_b32 s10, s4, 3
    s_add_u32 s10, s10, s5
    s_lshl_b32 s10, s10, 1
    s_add_u32 s10, s10, s38
    s_mul_i32 s10, s10, 5120
    s_lshl_b32 s81, s39, 10
    s_add_u32 s81, s81, s10
    s_lshl_b32 s82, s39, 8
    s_add_u32 s82, s82, s10
    s_add_u32 s82, s82, 4096
    s_mul_i32 s8, s38, 5120
    s_add_u32 s8, s8, {LQ}
    s_lshl_b32 s9, s39, 10
    s_add_u32 s9, s9, s8
    v_add_u32 v{QF1}, s9, v{OAD1}
    s_lshl_b32 s9, s39, 8
    s_add_u32 s9, s9, s8
    s_add_u32 s9, s9, 4096
    v_lshlrev_b32 v{QF0}, 3, v1
    v_add_u32 v{QF0}, s9, v{QF0}
    """)
    for qq in range(4):
        a(f"""
        s_lshr_b32 s8, s{76 + (qq >> 1)}, 3
        s_add_u32 s8, s8, {2 * (qq & 1)}
        v_add_u32 v{t}, s8, v2
        v_mul_u32_u24 v{t+1}, 52, v{t}
        v_lshrrev_b32 v{t+1}, 8, v{t+1}
        v_mul_u32_u24 v{t+2}, 5, v{t+1}
        v_sub_u32 v{t+2}, v{t}, v{t+2}
        v_lshlrev_b32 v{TLQ[qq]}, 10, v{t+1}
        v_lshl_add_u32 v{TLQ[qq]}, v1, 4, v{TLQ[qq]}
        v_lshrrev_b32 v{t+3}, 1, v{t+2}
        v_lshl_add_u32 v{TLQ[qq]}, v{t+3}, 9, v{TLQ[qq]}
        v_and_b32 v{t+3}, 1, v{t+2}
        v_lshl_add_u32 v{TLQ[qq]}, v{t+3}, 3, v{TLQ[qq]}
        v_cmp_eq_u32 vcc, 4, v{t+2}
        s_mov_b64 exec, vcc
        v_lshlrev_b32 v{TLQ[qq]}, 8, v{t+1}
        v_lshl_add_u32 v{TLQ[qq]}, v1, 3, v{TLQ[qq]}
        v_add_u32 v{TLQ[qq]}, 4096, v{TLQ[qq]}
        s_mov_b64 exec, -1
        v_add_u32 v{TLQ[qq]}, {LQ}, v{TLQ[qq]}
        """)
    a(f"""
    s_lshl_b32 s9, s3, 2
    s_lshr_b32 s12, 0x21211000, s9
    s_and_b32 s12, s12, 15
    s_lshr_b32 s13, 0x44003032, s9
    s_and_b32 s13, s13, 15
    s_cselect_b32 s52, -1, 0
    s_mov_b32 s53, s52
    s_lshl_b32 s10, s12, 12
    s_lshl_b32 s9, s13, 12
    v_add_u32 v{JA}, s10, v{OAD1}
    v_add_u32 v{JB}, s9, v{OAD1}
    s_lshl_b32 s10, s12, 5
    s_lshl_b32 s9, s13, 5
    s_sub_u32 s9, s9, 80
    v_lshlrev_b32 v{t}, 2, v2
    v_add_u32 v{t}, s10, v{t}
    v_add_u32 v{t+1}, s9, v1
    v_and_b32 v{t+2}, 0xffff, v{t+1}
    v_mul_u32_u24 v{t+2}, 3277, v{t+2}
    v_lshrrev_b32 v{t+2}, 16, v{t+2}
    v_mul_u32_u24 v{t+3}, 80, v{t+1}
    s_cmp_eq_u32 s13, 0
    s_cbranch_scc1 PC_z
    """)
    for z in range(2):
        for q in range(4):
            m = MASKS[q]
            a(f"v_add_u32 v{t+4}, {8*q}, v{t}")
            a(f"v_mul_u32_u24 v{t+5}, 3277, v{t+4}")
            a(f"v_lshrrev_b32 v{t+5}, 16, v{t+5}")
            if z == 0:
                a(f"v_lshl_add_u32 v{PWR+q}, v{t+4}, 2, v{t+3}")
                a(f"v_cmp_eq_u32 s[{m}:{m+1}], v{t+5}, v{t+2}")
            else:
                a(f"v_add_u32 v{PWR+q}, 1, v{t+5}")
                a(f"v_mul_u32_u24 v{PWR+q}, 1600, v{PWR+q}")
                a(f"v_lshl_add_u32 v{PWR+q}, v{t+4}, 2, v{PWR+q}")
                a(f"v_cmp_gt_u32 s[{m}:{m+1}], 4, v{t+5}")
                a(f"s_and_b32 s{m}, s{m}, 1\ns_and_b32 s{m+1}, s{m+1}, 1")
        if z == 0:
            a("s_branch PC_zd")
            a.label("PC_z")
    a.label("PC_zd")
    for q in range(4): a(f"v_add_u32 v{PWR+q}, {LPART}, v{PWR+q}")
    for i in range(OO, BFR): a(f"v_mov_b32 v{i}, 0")
    a(f"v_mov_b32 v{IDX}, 0xdddddddd")

def gen(a):
    K = NAME + "_kernel"
    kernel_begin(a, K)
    if STAMP:
        a("s_memtime s[84:85]\ns_memrealtime s[86:87]")
    a("s_load_dwordx16 s[16:31], s[0:1], 0\ns_load_dwordx4 s[32:35], s[0:1], 64\ns_load_dwordx2 s[36:37], s[0:1], 80")
    a("s_getpc_b64 s[44:45]")
    a.label("L_pc")
    a(f"""
    s_mov_b32 s46, L_codeend-L_pc
    s_mov_b32 s47, 0x20000
    v_lshlrev_b32 v4, {9 if CPF4 else 7}, v0
    s_lshl_b32 s8, s2, 4
    s_and_b32 s8, s8, {0x180 if CPF4 else 0}
    buffer_load_dword v164, v4, s[44:47], s8 offen
    s_cmp_ge_u32 s2, 256
    s_cbranch_scc1 L_end
    v_lshrrev_b32 v1, 6, v0
    v_and_b32 v0, 63, v0
    v_readfirstlane_b32 s3, v1
    s_and_b32 s6, s2, 7
    s_lshr_b32 s7, s2, 3
    """)
    if MAP48:
        a("s_lshl_b32 s4, s6, 2\ns_lshr_b32 s8, s7, 3\ns_add_u32 s4, s4, s8\ns_and_b32 s5, s7, 7")
    else:
        a("s_lshr_b32 s4, s6, 1\ns_lshl_b32 s4, s4, 3\ns_lshr_b32 s8, s7, 2\ns_add_u32 s4, s4, s8\ns_and_b32 s5, s6, 1\ns_lshl_b32 s5, s5, 2\ns_and_b32 s8, s7, 3\ns_add_u32 s5, s5, s8")
    a(f"""
    s_cmp_lt_u32 s3, 8
    s_cbranch_scc1 C_start
    """)
    a("s_setprio 2")
    a("s_sub_u32 s10, s3, 8")
    a("s_mul_i32 s13, s4, 81920")
    a("v_lshlrev_b32 v18, 4, v0")
    a("s_cmp_eq_u32 s10, 1\ns_cbranch_scc1 L_mw")
    a("""
    v_lshrrev_b32 v20, 4, v0
    v_xor_b32 v21, v20, v0
    v_and_b32 v21, 15, v21
    v_lshlrev_b32 v21, 4, v21
    v_mul_u32_u24 v20, 1280, v20
    """)
    for j in range(4):
        a(f"v_xor_b32 v{28+j}, {64*j}, v21")
        a(f"v_add_u32 v{28+j}, v{28+j}, v20")
        if j < 3: a("v_add_u32 v20, 5120, v20")
    a(f"""
    s_mov_b32 m0, {LMX}
    s_lshr_b32 s14, s5, 1
    s_mul_i32 s14, s14, 20480
    s_add_u32 s14, s14, s13
    s_mov_b32 s15, 0
    s_waitcnt lgkmcnt(0)
    """)
    srd(a, 44, 16, XBYTES)
    a.label("L_mx")
    for j in range(4):
        dma(a, f"v{28+j}", 44, "s14")
        a("s_add_u32 m0, m0, 1024")
        a("s_add_u32 s14, s14, 256" if j == 3 else "s_nop 0")
    a("s_add_u32 s15, s15, 1\ns_cmp_lt_u32 s15, 5\ns_cbranch_scc1 L_mx")
    a("s_branch L_md")
    a.label("L_mw")
    a(f"s_mov_b32 m0, {LWKV}\ns_mov_b32 s14, 0")
    a("s_waitcnt lgkmcnt(0)")
    a("s_bitcmp1_b32 s5, 0")
    a("s_cselect_b32 s52, s22, s20")
    a("s_cselect_b32 s53, s23, s21")
    a("s_mov_b32 s54, 25600\ns_mov_b32 s55, 0x20000")
    a.label("L_mwl")
    for i in range(4): a(f"buffer_load_dwordx4 v18, s[52:55], s14 offen offset:{1024*i} lds")
    a("s_add_u32 m0, m0, 4096\ns_add_u32 s14, s14, 4096\ns_cmp_lt_u32 s14, 24576\ns_cbranch_scc1 L_mwl")
    a("buffer_load_dwordx4 v18, s[52:55], s14 offen lds")
    srd(a, 44, 16, XBYTES)
    a("s_branch L_md")
    a.label("C_start")
    a("s_cmp_lg_u32 s3, 4\ns_cbranch_scc1 C_pre")
    a("s_cmp_ge_u32 s2, 8\ns_cbranch_scc1 C_pre")
    a("s_memrealtime s[8:9]\ns_waitcnt lgkmcnt(0)\ns_or_b32 s8, s8, 1")
    srd(a, 44, 34, 256)
    a("v_mov_b32 v8, s8\nv_mov_b32 v9, 0\nv_mov_b32 v10, 0\ns_mov_b64 exec, 1")
    a("buffer_atomic_cmpswap v[8:9], v10, s[44:47], 0 offen sc1")
    a("s_mov_b64 exec, -1")
    a.label("C_pre")
    precompute(a)
    a("s_waitcnt lgkmcnt(0)")
    srd(a, 40, 36, WS_SIZE)
    a("s_cmp_lt_u32 s3, 3\ns_cbranch_scc1 A_q")
    a("s_cmp_eq_u32 s3, 5\ns_cbranch_scc1 A_kvpoll")
    a("s_cmp_lt_u32 s3, 6\ns_cbranch_scc1 A_bars")
    srd(a, 44, 34, 256)
    a(f"""
    v_mov_b32 v10, 0
    v_and_b32 v20, 15, v0
    v_lshrrev_b32 v21, 4, v0
    v_xor_b32 v22, v20, v21
    v_lshlrev_b32 v22, 4, v22
    v_lshl_add_u32 v22, v20, 8, v22
    v_add_u32 v22, {LMX}, v22
    v_xor_b32 v23, 64, v22
    v_xor_b32 v24, 128, v22
    v_xor_b32 v25, 192, v22
    v_bfe_u32 v26, v0, 2, 2
    v_lshl_add_u32 v26, v21, 3, v26
    v_mul_u32_u24 v26, 40, v26
    v_and_b32 v27, 3, v0
    v_lshl_add_u32 v26, v27, 3, v26
    s_lshl_b32 s8, s38, 5
    s_add_u32 s8, s8, {LWKV}
    v_add_u32 v26, s8, v26
    s_lshl_b32 s12, s4, 1
    s_lshr_b32 s8, s5, 2
    s_add_u32 s12, s12, s8
    s_mul_i32 s12, s12, {TILE}
    s_add_u32 s12, s12, {WS_KV}
    s_bfe_u32 s13, s5, 0x10001
    s_lshl_b32 s55, s4, 4
    s_add_u32 s55, s55, s5
    s_lshl_b32 s55, s55, 1
    s_add_u32 s55, s55, s38
    s_lshl_b32 s55, s55, 2
    s_add_u32 s55, s55, {FL_KV}
    v_and_b32 v27, 1, v21
    s_mov_b32 s56, 0
    s_mov_b64 s[48:49], -1
    """)
    for i in range(12, 16): a(f"v_mov_b32 v{i}, 0")
    MF = [BACC + 8 * i for i in range(4)]
    def mini(lbl, orient):
        def mm(st):
            x, w, ac = v(MF[st], 4), v(MF[st] + 4, 4), v(12, 4)
            a(f"v_mfma_f32_16x16x32_bf16 {ac}, {w}, {x}, {ac}" if orient == "R" else f"v_mfma_f32_16x16x32_bf16 {ac}, {x}, {w}, {ac}")
        a("s_barrier")
        a("buffer_load_dword v11, v10, s[44:47], 0 offen sc1")
        a.label(lbl)
        for st in range(4):
            f = MF[st]
            a(f"ds_read_b128 v[{f}:{f+3}], v{22+st}")
            for hf in range(2):
                a(f"ds_read_b64_tr_b16 v[{f+4+2*hf}:{f+5+2*hf}], v26 offset:{(32*st+4*hf)*40}")
            a(f"v_add_u32 v{22+st}, 4096, v{22+st}")
            a("s_waitcnt lgkmcnt(9)")
            mm((st + 1) % 4)
        a("v_add_u32 v26, 5120, v26")
        a(f"s_add_u32 s56, s56, 1\ns_cmp_lt_u32 s56, 5\ns_cbranch_scc1 {lbl}")
        for st, w in ((1, 6), (2, 3), (3, 0)):
            a(f"s_waitcnt lgkmcnt({w})"); mm(st)
    a("s_bitcmp1_b32 s5, 0")
    a("s_cbranch_scc1 M_v")
    a(f"""
    s_lshl_b32 s8, s13, 4
    v_add_u32 v20, s8, v20
    v_lshlrev_b32 v28, 4, v20
    v_lshl_add_u32 v28, v2, 9, v28
    v_lshl_add_u32 v28, v27, 3, v28
    s_cmp_eq_u32 s3, 6
    s_cbranch_scc1 M_k0
    v_lshlrev_b32 v28, 3, v20
    v_add_u32 v28, 1024, v28
    s_mov_b32 exec_lo, 0xffff0000
    v_lshlrev_b32 v28, 3, v20
    v_add_u32 v28, 2560, v28
    s_mov_b32 exec_lo, -1
    s_mov_b32 s49, 0
    """)
    a.label("M_k0")
    mini("M_kl", "R")
    a(f"s_mov_b32 s8, {f32(CSCALE)}\ns_nop 6")
    a("v_pk_mul_f32 v[12:13], v[12:13], s[8:9] op_sel_hi:[1,0]\nv_pk_mul_f32 v[14:15], v[14:15], s[8:9] op_sel_hi:[1,0]")
    a("v_cvt_pk_bf16_f32 v12, v12, v13\nv_cvt_pk_bf16_f32 v13, v14, v15")
    a("s_cmp_eq_u32 s3, 6\ns_cbranch_scc1 M_st")
    a("s_mov_b32 exec_lo, 0xffff0000")
    a("v_mov_b32 v12, 0x3f803f80\nv_mov_b32 v13, 0x3f803f80")
    a("s_mov_b32 exec_lo, 0xcccc0000\nv_mov_b32 v12, 0\nv_mov_b32 v13, 0")
    a("s_branch M_st")
    a.label("M_v")
    a(f"""
    s_mul_i32 s8, s13, 640
    s_add_u32 s12, s12, s8
    s_lshl_b32 s8, s38, 8
    s_add_u32 s12, s12, s8
    s_add_u32 s12, s12, 1280
    v_lshrrev_b32 v28, 2, v20
    v_add_u32 v28, 1, v28
    v_and_b32 v28, 2, v28
    v_mul_u32_u24 v28, 6, v28
    v_xor_b32 v28, v20, v28
    v_mul_u32_u24 v29, 320, v2
    v_lshl_add_u32 v29, v27, 3, v29
    v_lshl_add_u32 v28, v28, 4, v29
    s_cmp_eq_u32 s3, 6
    s_cselect_b32 s48, -1, 0x000f000f
    s_mov_b32 s49, s48
    """)
    mini("M_vl", "C")
    a("s_nop 7")
    a("v_cvt_pk_bf16_f32 v12, v12, v13\nv_cvt_pk_bf16_f32 v13, v14, v15")
    a.label("M_st")
    a("s_mov_b64 exec, s[48:49]")
    a("buffer_store_dwordx2 v[12:13], v28, s[40:43], s12 offen sc1")
    a("s_mov_b64 exec, -1")
    gs(a, 0, "v30", "v31")
    a("s_barrier")
    a("s_barrier")
    a("s_mov_b32 s9, 0")
    a.label("A_np")
    a("s_add_u32 s9, s9, 1")
    a("s_waitcnt vmcnt(0)")
    a("v_cmp_eq_u32 vcc, 0, v11")
    a(f"s_cmp_gt_u32 s9, {SPIN_MAX}\ns_cbranch_scc1 A_nd\ns_cbranch_vccz A_nd\ns_sleep 1")
    a("buffer_load_dword v11, v10, s[44:47], 0 offen sc1")
    a("s_branch A_np")
    a.label("A_nd")
    a("s_mov_b64 exec, 1")
    a("buffer_store_dword v11, v10, s[40:43], s55 offen sc1")
    a("s_mov_b64 exec, -1")
    a(f"v_mov_b32 v5, {LMISC}\nds_write_b32 v5, v11\nds_write_b32 v5, v10 offset:8\nds_write_b32 v5, v10 offset:4\ns_waitcnt lgkmcnt(0)")
    gs(a, 1, "v30", "v31")
    a("s_branch A_bars8")
    a.label("A_kvpoll")
    a("v_lshrrev_b32 v20, 1, v0\nv_lshlrev_b32 v20, 7, v20\nv_and_b32 v21, 1, v0\nv_lshl_add_u32 v20, v21, 4, v20")
    a(f"v_mov_b32 v18, v{OAD1}")
    a("s_and_b32 s60, s7, 15")
    a(f"s_mov_b32 s61, {LKV}\ns_mov_b32 s12, {FL_KV}\ns_mov_b32 s9, 0")
    KP = int(OPT.get("kp", 6))
    for i in range(KP + 1): a("s_barrier")
    get_nonce(a, "v22", "v23")
    a("s_barrier\ns_sleep 3")
    def kvl():
        a("buffer_load_dwordx4 v[24:27], v20, s[40:43], s12 offen sc1")
        a("buffer_load_dwordx4 v[28:31], v20, s[40:43], s12 offen offset:32 sc1")
    kvl()
    a("s_barrier\ns_barrier\ns_barrier")
    a(f"s_mov_b32 s13, {6 - KP}")
    a.label("A_kq")
    a("s_add_u32 s9, s9, 1")
    a("s_waitcnt vmcnt(0)")
    for i in range(8): a(f"v_xor_b32 v{24+i}, s96, v{24+i}")
    a("v_or3_b32 v24, v24, v25, v26\nv_or3_b32 v27, v27, v28, v29\nv_or3_b32 v24, v24, v30, v31\nv_or_b32 v24, v24, v27\nv_cmp_ne_u32 vcc, 0, v24")
    a(f"s_cmp_gt_u32 s9, {SPIN_MAX}\ns_cbranch_scc1 A_kd\ns_cbranch_vccz A_kd\ns_mov_b64 exec, vcc\ns_sleep {OPT.get('ksl', 8)}")
    kvl()
    a("s_cmp_eq_u32 s13, 0\ns_cbranch_scc1 A_kq\ns_barrier\ns_sub_u32 s13, s13, 1\ns_branch A_kq")
    a.label("A_kd")
    a("s_mov_b64 exec, -1")
    gs(a, 4, "v30", "v31")
    call(a, "L_issueKV", "s[62:63]")
    a.label("A_kr")
    a("s_cmp_eq_u32 s13, 0\ns_cbranch_scc1 A_ke\ns_barrier\ns_sub_u32 s13, s13, 1\ns_branch A_kr")
    a.label("A_ke")
    for i in range(3 if BS >= 2 else 2): call(a, "L_issueKV", "s[62:63]")
    a(f"s_waitcnt vmcnt({33 if BS >= 2 else 22})")
    a("s_branch A_done")
    a.label("A_bars")
    for i in range(3): a("s_barrier")
    a.label("A_bars8")
    for i in range(8): a("s_barrier")
    a("s_waitcnt vmcnt(0)")
    a("s_branch A_done")
    a.label("A_q")
    def ard(st, i):
        f = AFR[st]
        if i < 2: a(f"ds_read_b64_tr_b16 v[{f+2*i}:{f+2*i+1}], v{bW} offset:{(16*st+4*i)*160}")
        else: a(f"ds_read_b128 v[{f+4*(i-1)}:{f+4*(i-1)+3}], v{bX+st} offset:{4096*(i-2)}")
    def amf(st, blk):
        f = AFR[st]; ac = v(AACC + 16 * blk, 16)
        a(f"v_mfma_f32_32x32x16_bf16 {ac}, v[{f}:{f+3}], v[{f+4+4*blk}:{f+7+4*blk}], {ac}")
    a(f"s_mov_b32 s56, 0\ns_mov_b32 s70, {HS}\ns_mov_b32 s74, {-5*HS}\ns_mov_b32 s75, {-3*HS}")
    for i in range(32): a(f"v_mov_b32 v{AACC+i}, 0")
    a("s_barrier\ns_barrier")
    for st in (0, 1, 2):
        for i in range(4): ard(st, i)
    a("s_branch A_mid")
    a(".p2align 3")
    a.label("A_loop")
    a("s_waitcnt lgkmcnt(0)\ns_barrier")
    seq = [(st, i) for st in (0, 1, 2) for i in range(4)]
    for n, (st, blk) in enumerate(((2, 0), (2, 1), (3, 0), (3, 1))):
        amf(st, blk)
        for x in seq[3 * n:3 * n + 3]: ard(*x)
    a.label("A_mid")
    a("s_add_u32 s56, s56, 1\ns_cmp_eq_u32 s56, 6\ns_cselect_b32 s8, s74, s70")
    a("s_waitcnt lgkmcnt(8)")
    amf(0, 0); ard(3, 0); ard(3, 1)
    a("s_cmp_lt_u32 s56, 10\ns_cselect_b32 s8, s8, s75")
    amf(0, 1); ard(3, 2); ard(3, 3)
    a("s_waitcnt lgkmcnt(8)")
    a(f"v_add_u32 v{bW}, s8, v{bW}")
    amf(1, 0)
    for j in range(4): a(f"v_add_u32 v{bX+j}, s8, v{bX+j}")
    amf(1, 1)
    a("s_cbranch_scc1 A_loop")
    a("s_waitcnt lgkmcnt(4)")
    amf(2, 0)
    a("s_waitcnt lgkmcnt(0)")
    amf(3, 0); amf(2, 1); amf(3, 1)
    a("s_nop 9")
    for blk in range(2):
        for qq in range(4):
            r0 = AACC + 16 * blk + 4 * qq
            a(f"v_cvt_pk_bf16_f32 v{r0}, v{r0}, v{r0+1}\nv_cvt_pk_bf16_f32 v{r0+1}, v{r0+2}, v{r0+3}")
            a(f"ds_write_b64 v{TLQ[qq]}, v[{r0}:{r0+1}] offset:{5120*blk}")
    a.label("A_done")
    def rdKA(t): a(f"ds_read_b128 v[{KA}:{KA+3}], v{aKA} offset:{t*TILE}")
    def rdKB(t): a(f"ds_read_b64 v[{KB}:{KB+1}], v{aKB} offset:{t*TILE}")
    def rdV0(t): a(f"ds_read_b128 v[{V0}:{V0+3}], v{aV0} offset:{t*TILE}")
    def rdV1(t): a(f"ds_read_b128 v[{V1}:{V1+3}], v{aV1} offset:{t*TILE}")
    def qka(S): a(f"v_mfma_f32_32x32x16_bf16 v[{S}:{S+15}], v[{KA}:{KA+3}], v[{QA}:{QA+3}], 0")
    def qkb(S): a(f"v_mfma_f32_32x32x8_bf16 v[{S}:{S+15}], v[{KB}:{KB+1}], v[{QB}:{QB+1}], v[{S}:{S+15}]")
    def pv0(S): a(f"v_smfmac_f32_32x32x32_bf16 v[{OO}:{OO+15}], v[{V0}:{V0+3}], v[{S}:{S+7}], v{IDX}")
    def pv1(): a(f"v_smfmac_f32_32x32x32_bf16 v[{OO}:{OO+15}], v[{V1}:{V1+3}], v[{PP}:{PP+7}], v{IDX}")
    def E(S, lo, hi, w=None):
        for i in range(lo, hi):
            if w is not None and i == hi - 1:
                a(w if isinstance(w, str) else f"s_waitcnt lgkmcnt({w})"); a(f"v_exp_f32_e64 v{S+i if i < 8 else PP+i-8}, v{S+i}")
            else: a(f"v_exp_f32 v{S+i if i < 8 else PP+i-8}, v{S+i}")
    def c1(k, S): a(f"v_cvt_pk_bf16_f32 v{PP+k}, v{S+2*k}, v{S+2*k+1}")
    def C(S, g): c1(2 * g, S); c1(2 * g + 1, S)
    if OPT.get("yprio"): a("s_cmp_lt_u32 s3, 4\ns_cbranch_scc1 A_yp\ns_setprio 1\nA_yp:")
    ct(a, "a0")
    a("s_waitcnt lgkmcnt(0)\ns_barrier")
    ct(a, "p0")
    read_qfrag(a, QA, QB)
    rdKA(0); rdKB(0)
    a(f"ds_read_b128 v[{V1}:{V1+3}], v{aKA} offset:{TILE}")
    rdV0(0)
    a(f"v_mov_b32 v{PP}, {LMISC}\nds_read_b32 v{PP+3}, v{PP}")
    a("s_mov_b32 exec_lo, 0")
    a("s_waitcnt lgkmcnt(3)")
    a(f"v_mov_b32 v{QB}, 0\nv_mov_b32 v{QB+1}, 0")
    a("s_mov_b32 exec_lo, -1")
    ct(a, "p1")
    qka(S0); qkb(S0)
    rdKB(1); rdKA(2)
    a("s_waitcnt lgkmcnt(2)")
    a(f"v_mfma_f32_32x32x16_bf16 v[{S1}:{S1+15}], v[{V1}:{V1+3}], v[{QA}:{QA+3}], 0")
    a(f"v_readfirstlane_b32 s96, v{PP+3}")
    a("s_nop 6")
    ct(a, "p2")
    rowmax(a, S0, PP)
    set_m(a, PP, PP + 1, PP + 2)
    ct(a, "p3")
    for i in range(0, 16, 2): a(f"v_pk_add_f32 v[{S0+i}:{S0+i+1}], v[{S0+i}:{S0+i+1}], v[{PP+2}:{PP+3}] op_sel_hi:[1,0] neg_lo:[0,1] neg_hi:[0,1]")
    a(".p2align 3")
    E(S0, 0, 4, 1)
    qkb(S1); rdKB(2); E(S0, 4, 8); rdV1(0); E(S0, 8, 12)
    pv0(S0); rdV0(1); E(S0, 12, 16, 3)
    BARAT = {t: nm for nm, t in BARS}
    def tile(S, t, orient=None, gm=(), gr=(), ins=None):
        ins = ins or {}
        Sc, Sn = (S0, S1) if t % 2 == 0 else (S1, S0)
        plan = PLANS[len(gm)].split()
        pos = {w: i for i, w in enumerate(plan)}
        T = lambda x: (x % 16) * TILE
        stride = 160 if orient == "R" else 320
        def step_done(st):
            sg = "s74" if (st // 4) % 3 == 2 else "s70"
            if st < 36: S.x4(f"v_add_u32 v{bX+st%4}, {sg}, v{bX+st%4}")
            if st % 4 == 3 and st < 36: S.x4(f"v_add_u32 v{bW}, {sg}, v{bW}")
        def rx(st, b):
            f = BFR + 12 * (st % 2); S.r(f"X{st%2}{b}", f"ds_read_b128 v[{f+4+4*b}:{f+7+4*b}], v{bX+st%4} offset:{4096*b}")
        def rw(st):
            f = BFR + 12 * (st % 2)
            for h in range(2): S.r(f"W{st%2}", f"ds_read_b64_tr_b16 v[{f+2*h}:{f+2*h+1}], v{bW} offset:{(16*(st%4)+4*h)*stride}")
        if t in BARAT:
            S.need(["KA", "W0", "W1", "X00", "X01", "X10", "X11", "wr"])
            S.x4("s_barrier")
        done = []
        for w in plan:
            if w == "qka":
                if t < 63: S.m(f"v_mfma_f32_32x32x16_bf16 v[{Sn}:{Sn+15}], v[{KA}:{KA+3}], v[{QA}:{QA+3}], 0", ["KA"])
                if t < 62: S.r("KA", f"ds_read_b128 v[{KA}:{KA+3}], v{aKA} offset:{T(t+2)}")
            elif w == "qkb":
                if t < 63: S.m(f"v_mfma_f32_32x32x8_bf16 v[{Sn}:{Sn+15}], v[{KB}:{KB+1}], v[{QB}:{QB+1}], v[{Sn}:{Sn+15}]", ["KB"])
                if t < 62: S.r("KB", f"ds_read_b64 v[{KB}:{KB+1}], v{aKB} offset:{T(t+2)}")
            elif w == "pv1":
                S.m(f"v_smfmac_f32_32x32x32_bf16 v[{OO}:{OO+15}], v[{V1}:{V1+3}], v[{PP}:{PP+7}], v{IDX}", ["V1"])
                S.r("V1", f"ds_read_b128 v[{V1}:{V1+3}], v{aV1} offset:{T(t)}")
            elif w == "pv0":
                S.m(f"v_smfmac_f32_32x32x32_bf16 v[{OO}:{OO+15}], v[{V0}:{V0+3}], v[{Sc}:{Sc+7}], v{IDX}", ["V0"])
                if t < 63: S.r("V0", f"ds_read_b128 v[{V0}:{V0+3}], v{aV0} offset:{T(t+1)}")
            elif w[0] == "g":
                st, b = gm[int(w[1])], int(w[2]); f = BFR + 12 * (st % 2)
                wv, xv, ac = v(f, 4), v(f + 4 + 4 * b, 4), v(BACC + 16 * b, 16)
                first = b not in tile.started[orient]; tile.started[orient].add(b)
                c = "0" if first else ac
                S.m(f"v_mfma_f32_32x32x16_bf16 {ac}, {wv}, {xv}, {c}" if orient == "R" else f"v_mfma_f32_32x32x16_bf16 {ac}, {xv}, {wv}, {c}", [f"W{st%2}", f"X{st%2}{b}"])
                if st + 2 in gr:
                    rx(st + 2, b)
                    if pos[w] > pos[w[:2] + str(1 - b)]: rw(st + 2); done.append(st + 2)
            else:
                k = int(w[1:]); S.e(Sc + k if k < 8 else PP + k - 8, Sc + k)
            if not gm and gr and w in ("qka", "qkb"):
                st = gr[0 if w == "qka" else 1]; rw(st); rx(st, 0); rx(st, 1); done.append(st)
            if w in ins: ins[w]()
        for st in sorted(done): step_done(st)
    tile.started = {"R": set(), "C": set()}
    S = Stream(a, ["KB", "V1", "V0"])
    for t in range(1, FT[0]):
        if t == 2: S.x4("s_waitcnt vmcnt(0)", "s_barrier")
        if t == 5:
            S.x4("s_mov_b64 exec, 1", "v_mov_b32 v3, 1"); S.x8(f"v_mov_b32 v164, {LMISC}"); S.r("sig", "ds_add_u32 v164, v3 offset:4"); S.x4("s_mov_b64 exec, -1")
        tile(S, t)
    S.x8(f"s_mov_b32 s70, {SLOT}", f"s_mov_b32 s74, {-2*SLOT}"); S.x4("s_cmp_ge_u32 s3, 3", "s_cbranch_scc1 FU_C")
    S.flush()
    reads = {}
    for p, n in enumerate(PAT):
        cnt = {2: (2, 2), 3: (2, 1, 1), 4: (2, 0, 1, 1) if p == 0 else (1, 1, 1, 1)}[n]
        st = 4 * p
        for k, c in enumerate(cnt): reads[FT[p] + k] = list(range(st, st + c)); st += c
    st0 = list(S.st)
    def phi4(r0, X):
        for i in (0, 2): a(f"v_pk_mul_f32 v[{X+i}:{X+i+1}], v[{r0+i}:{r0+i+1}], s[8:9] op_sel_hi:[1,0]")
        for i in range(4): a(f"v_exp_f32_e64 v{X+i}, v{X+i} clamp")
        for i in range(4): a(f"v_max_f32 v{r0+i}, s9, v{r0+i}")
        for i in (0, 2): a(f"v_pk_add_f32 v[{r0+i}:{r0+i+1}], v[{r0+i}:{r0+i+1}], v[{X+i}:{X+i+1}]")
    for orient in ("R", "C"):
        a(".p2align 3")
        a.label("FU_" + orient)
        S = Stream(a, st0)
        for t in range(FT[0], TE + 1):
            gr = reads.get(t, [])
            gm = [38, 39] if t == TE else [x - 2 for x in gr if x >= 2]
            tile(S, t, orient, gm, gr)
        S.flush()
        ct(a, "fe")
        a(f"s_mov_b32 s8, {f32(LOG2E)}\ns_mov_b32 s9, {f32(1e-6)}")
        if orient == "R":
            a("s_nop 3")
            for half in range(2):
                if half == 1: a("s_cmp_eq_u32 s3, 2\ns_cbranch_scc1 B_jobs")
                for blk in range(2):
                    for q in range(2):
                        r0 = BACC + 16 * blk + 8 * half + 4 * q
                        phi4(r0, BFR)
                        a(f"v_cvt_pk_bf16_f32 v{r0}, v{r0}, v{r0+1}\nv_cvt_pk_bf16_f32 v{r0+1}, v{r0+2}, v{r0+3}")
                        a(f"ds_write_b64 v{TLQ[2*half+q]}, v[{r0}:{r0+1}] offset:{5120*blk}")
            a("s_branch B_jobs")
    a("s_lshl_b32 s10, s78, 12")
    a(f"v_add_u32 v{TL0}, s10, v{OAD1}")
    a("s_cmp_eq_u32 s78, 2\ns_cselect_b32 s10, 0xffff, -1\ns_mov_b32 s11, s10")
    a("s_cmp_ge_u32 s78, 3")
    for ks in range(4):
        r0 = BACC + 8 * ks
        l = a.newlabel("B_np")
        a(f"s_cbranch_scc1 {l}")
        a("s_mov_b64 exec, s[10:11]")
        phi4(r0, BFR); phi4(r0 + 4, BFR + 4)
        a("s_mov_b64 exec, -1")
        a.label(l)
        for i in range(4): a(f"v_cvt_pk_bf16_f32 v{r0+i}, v{r0+2*i}, v{r0+2*i+1}")
        a(f"ds_write_b128 v{TL0}, v[{r0}:{r0+3}] offset:{LFR+1024*ks}")
    a.label("B_jobs")
    JAF, JBF, JD, AP = BACC, BACC + 16, BFR, BACC
    ct(a, "ep")
    a("s_waitcnt lgkmcnt(0)\ns_cmp_lg_u32 s52, 0\ns_cbranch_scc1 B_noz")
    for i in range(16): a(f"v_mov_b32 v{JBF+i}, 0x3f803f80")
    a(".p2align 3")
    a.label("B_noz")
    S = Stream(a)
    def jreads():
        for ks in range(4): S.r("J", f"ds_read_b128 v[{JAF+4*ks}:{JAF+4*ks+3}], v{JA} offset:{LFR+1024*ks}")
        S.x4("s_mov_b64 exec, s[52:53]")
        for ks in range(4): S.r("J", f"ds_read_b128 v[{JBF+4*ks}:{JBF+4*ks+3}], v{JB} offset:{LFR+1024*ks}")
        S.x4("s_mov_b64 exec, -1")
        S.r("PQ", f"ds_read_b128 v[{PQA}:{PQA+3}], v{QF1}"); S.r("PQ", f"ds_read_b64 v[{PQB}:{PQB+1}], v{QF0}")
    def J(ks):
        c = "0" if ks == 0 else v(JD, 16)
        return lambda: S.m(f"v_mfma_f32_32x32x16_bf16 {v(JD,16)}, v[{JAF+4*ks}:{JAF+4*ks+3}], v[{JBF+4*ks}:{JBF+4*ks+3}], {c}", ["J"])
    def PW(*qs):
        def f():
            for q in qs:
                S.x4(f"s_mov_b64 exec, s[{MASKS[q]}:{MASKS[q]+1}]")
                S.r("wr", f"ds_write_b128 v{PWR+q}, v[{JD+4*q}:{JD+4*q+3}]")
            S.x4("s_mov_b64 exec, -1")
        return f
    def pqz():
        S.need(["PQ"]); S.x4("s_mov_b32 exec_lo, 0", f"v_mov_b32 v{PQB}, 0", f"v_mov_b32 v{PQB+1}, 0", "s_mov_b32 exec_lo, -1")
    def ap_rd():
        S.r("AP", f"ds_read2_b64 v[100:103], v{AP1} offset0:0 offset1:1"); S.r("AP", f"ds_read_b64 v[104:105], v{AP0} offset:32")
    ap_a = lambda: S.m(f"v_mfma_f32_32x32x16_bf16 v[{AP}:{AP+15}], v[100:103], v[{PQA}:{PQA+3}], 0", ["AP"])
    ap_b = lambda: S.m(f"v_mfma_f32_32x32x8_bf16 v[{AP}:{AP+15}], v[104:105], v[{PQB}:{PQB+1}], v[{AP}:{AP+15}]", ["AP"])
    def ap_out():
        S.flush()
        o_epilogue(a, AP, WS_OB, True)
        a(f"v_mov_b32 v100, {LCNT}\nv_mov_b32 v101, 1\ns_mov_b64 exec, 1\n.p2align 3")
        S.r("cnt", "ds_add_u32 v100, v101"); S.x4("s_mov_b64 exec, -1")
    def ap_flag():
        S.need(["cnt", "KA"]); S.flush()
        a(f"v_readfirstlane_b32 s9, v102\ns_lshl_b32 s8, s4, 5\ns_add_u32 s8, s8, s5\ns_lshl_b32 s8, s8, 2\ns_add_u32 s8, s8, {FL_HB}")
        a("s_cmp_eq_u32 s9, 7\ns_cbranch_scc0 AT_nf")
        publish(a, "s8", "v100", "v101")
        a(".p2align 3")
        a.label("AT_nf")
    for t in range(TE + 1, 64):
        ins = {}
        if t == C1: ins = {"qka": jreads, "e9": J(0), "e11": J(1), "e13": J(2), "e15": J(3)}
        if t == C1 + 1: ins = {"qka": pqz, "e5": PW(0, 1), "pv1": PW(2, 3)}
        if t == C3: ins = {"qka": ap_rd, "e9": ap_a, "e13": ap_b}
        if t == C3 + 1: ins = {"e5": ap_out}
        tile(S, t, ins=ins)
    S.flush()
    srd(a, 44, 32, 2048 * 2560)
    a("s_waitcnt lgkmcnt(0)")
    pv1()
    a("s_mov_b32 s74, 51200\ns_mov_b32 s75, -51200")
    a("s_nop 9")
    a(f"v_cmp_nge_f32 vcc, {f32(2.0**40)}, v{OO+12}")
    a("s_nop 1")
    a("s_cbranch_vccnz AT_fallback")
    a.label("AT_ok")
    F = [20 + 8 * i for i in range(10)]
    NANCHK = "v_cmp_u_f32 {0}, v{1}, v{1}" if not FORCE_REDO else "v_cmp_o_f32 {0}, v{1}, v{1}"
    AC2 = 140
    OUT = 132
    SW, SR = TL0, TL1
    a("s_cmp_ge_u32 s3, 4\ns_cbranch_scc1 TLz_start")
    def tl_vm(pfx):
        a(f"s_cmp_lg_u32 s56, 2\ns_cbranch_scc1 {pfx}_nv\ns_waitcnt vmcnt(0)")
        a.label(pfx + "_nv")
    def tl_adv():
        a("s_add_u32 s71, s71, 1\ns_cmp_eq_u32 s71, 3\ns_cselect_b32 s8, s73, s72\ns_cselect_b32 s71, 0, s71")
        a(f"v_add_u32 v{tW1}, s74, v{tW1}\nv_add_u32 v{tW2}, s74, v{tW2}\nv_add_u32 v{tX1}, s8, v{tX1}\nv_add_u32 v{tX2}, s8, v{tX2}")
        a("s_add_u32 s56, s56, 1\ns_and_b32 s8, s56, 3")
    def wrd(d, st, o=0):
        t, H = divmod(st, 5)
        if H < 4: a(f"ds_read_b128 v[{d}:{d+3}], v{tW1} offset:{o+12800*t+3200*H}")
        else:
            for hf in range(2): a(f"ds_read_b64 v[{d+2*hf}:{d+2*hf+1}], v{tW2} offset:{o+12800*t+6400*hf}")
    def xrd(d, st, o=0):
        t, H = divmod(st, 5)
        if H < 4: a(f"ds_read_b128 v[{d}:{d+3}], v{tX1} offset:{o+t*10240+H*1024}")
        else:
            for hf in range(2): a(f"ds_read_b64 v[{d+2*hf}:{d+2*hf+1}], v{tX2} offset:{o+t*10240+4096+512*hf}")
    def wshift(p):
        if p % 2 == 1 and p < 7:
            sg = "s74" if p % 4 == 1 else "s75"
            a(f"v_add_u32 v{tW1}, {sg}, v{tW1}\nv_add_u32 v{tW2}, {sg}, v{tW2}")
    def mrd(st): wrd(F[st], st); xrd(F[st] + 4, st)
    def mmf(st): a(f"v_mfma_f32_32x32x16_bf16 v[4:19], v[{F[st]}:{F[st]+3}], v[{F[st]+4}:{F[st]+7}], v[4:19]")
    nrd = lambda st: 4 if st % 5 == 4 else 2
    def m_pack(O, A=4):
        for i in range(8): a(f"v_cvt_pk_bf16_f32 v{O+i}, v{A+2*i}, v{A+1+2*i}")
    def m_turn(O):
        for q in range(4): a(f"ds_write_b64 v{SW}, v[{O+2*q}:{O+2*q+1}] offset:{16*q}")
        for i in range(2): a(f"ds_read_b128 v[{O+4*i}:{O+4*i+3}], v{SR} offset:{1280*i}")
    def m_store(O, off):
        for i in range(2): a(f"buffer_store_dwordx4 v[{O+4*i}:{O+4*i+3}], v{tO}, s[44:47], s{80+i} offen offset:{off} {ONT}")
    WS_ = lambda h, st: 20 + 40 * h + 4 * st
    XS_ = lambda st: 100 + 4 * st
    n1 = lambda st: 2 if st % 5 == 4 else 1
    def mm2(p, st):
        ac = v(4 if p < 4 else AC2, 16); h = p % 2
        c = "0" if (p % 4 == 0 and st == 0) else ac
        a(f"v_mfma_f32_32x32x16_bf16 {ac}, v[{WS_(h,st)}:{WS_(h,st)+3}], v[{XS_(st)}:{XS_(st)+3}], {c}")
    for st in range(10): wrd(WS_(0, st), st)
    o_epilogue(a, OO, WS_OA, False)
    a(".p2align 3")
    nout = 0
    for p in range(8):
        a(f"s_waitcnt {'vmcnt(0) ' if p == 4 else ''}lgkmcnt({min(15, nout) if p > 4 else 0})\ns_barrier")
        if p == 7: a(f"s_mov_b32 s8, {-LX}\nv_add_u32 v{tX1}, s8, v{tX1}\nv_add_u32 v{tX2}, s8, v{tX2}")
        ct(a, f"k{p}")
        pend = []
        def X(st): xrd(XS_(st), st, 20480 * (p % 3) if p < 7 else 0); pend.extend([("x", st)] * n1(st))
        for k in range(4):
            X(2 * k); X(2 * k + 1)
            if p: mm2(p - 1, 6 + k)
        X(8); X(9)
        nx = len(pend)
        wshift(p)
        nw = [(0, 1), (2, 3), (4,), (5, 6), (7, 8), (9,)]
        for st in range(6 if p < 7 else 10):
            last = max(i for i, q in enumerate(pend) if q == ("x", st))
            a(f"s_waitcnt lgkmcnt({min(15, len(pend) - 1 - last)})\ns_nop 0")
            mm2(p, st)
            if p < 7:
                for w in nw[st]:
                    wrd(WS_(1 - p % 2, w), w, 25600 * ((p + 1) % 2)); pend.extend([("w", w)] * n1(w))
            if p == 7 and st == 0:
                m_turn(4); pend.extend([("o", 0)] * 6)
            if p == 7 and st == 6:
                a("s_waitcnt lgkmcnt(0)\ns_nop 0"); m_store(4, 1280)
        nout = len(pend) - nx
        if p == 1:
            a(f"""
            v_lshrrev_b32 v{tO}, 2, v0
            v_and_b32 v3, 3, v0
            s_mul_i32 s8, s3, 2560
            s_add_u32 s8, s8, {LX + 40960}
            v_mul_u32_u24 v{SW}, 80, v1
            v_lshl_add_u32 v{SW}, v2, 3, v{SW}
            v_add_u32 v{SW}, s8, v{SW}
            v_lshlrev_b32 v3, 4, v3
            v_mul_u32_u24 v{SR}, 80, v{tO}
            v_add3_u32 v{SR}, v{SR}, v3, s8
            v_mul_u32_u24 v{tO}, 2560, v{tO}
            v_add_u32 v{tO}, v{tO}, v3
            s_add_u32 s81, s80, {16*2560}
            .p2align 3
            """)
        if p == 4:
            a(NANCHK.format("s[48:49]", 4)); m_pack(4)
    a("s_nop 11")
    a(NANCHK.format("s[50:51]", AC2))
    m_pack(AC2, AC2); m_turn(AC2); a("s_waitcnt lgkmcnt(0)"); m_store(AC2, 0)
    def m_out():
        m_pack(OUT); m_turn(OUT); a("s_waitcnt lgkmcnt(0)"); m_store(OUT, 0)
    a("s_or_b64 vcc, s[48:49], s[50:51]\ns_cbranch_scc1 TLm_redo")
    a.label("TLm_end")
    stamp_end(a)
    a("s_endpgm")
    def redo(pfx, nacc, loads, mfmas, out):
        a.label(pfx + "_redo")
        if OPT.get("cntredo"):
            srd(a, 64, 34, 256)
            a("s_or_b32 s8, s48, s49\ns_cmp_lg_u32 s8, 0\ns_cselect_b32 s8, 8, 4\nv_mov_b32 v100, s8\nv_mov_b32 v101, 1\ns_mov_b64 exec, 1\nbuffer_atomic_add v101, v100, s[64:67], 0 offen\ns_mov_b64 exec, -1")
        a(f"v_add_u32 v{tW1}, s75, v{tW1}\nv_add_u32 v{tW2}, s75, v{tW2}")
        a(f"v_lshlrev_b32 v100, 2, v0\ns_lshl_b32 s52, s4, 7\ns_add_u32 s52, s52, {FL_OA}")
        a(f"s_mul_i32 s13, s4, 81920\ns_mul_i32 s53, s5, 102400\ns_add_u32 s53, s53, {WS_WPA}\ns_mov_b32 s54, 0")
        a.label(pfx + "_rj")
        poll(a, "s52", 8, "v101", "v100")
        for i in range(4, 4 + nacc): a(f"v_mov_b32 v{i}, 0")
        a("s_add_u32 s69, s5, s4\ns_mov_b32 s56, 0")
        a.label(pfx + "_rl")
        a(f"s_and_b32 s69, s69, 3\ns_mul_i32 s8, s69, 20480\ns_add_u32 s8, s8, s13\ns_add_u32 s9, s8, 4096\ns_add_u32 s10, s8, 10240\ns_add_u32 s11, s8, {10240+4096}")
        a("s_mul_i32 s12, s69, 25600\ns_add_u32 s12, s12, s53")
        loads()
        a("s_waitcnt vmcnt(0)")
        mfmas()
        a(f"s_add_u32 s69, s69, 1\ns_add_u32 s56, s56, 1\ns_cmp_lt_u32 s56, 4\ns_cbranch_scc1 {pfx}_rl")
        a("s_nop 11")
        out()
        a(f"s_add_u32 s80, s80, 1280\ns_add_u32 s81, s81, 1280\ns_add_u32 s13, s13, {WS_OB - WS_OA}")
        a(f"s_sub_u32 s52, s52, {FL_OA - FL_OB}\ns_sub_u32 s53, s53, {WS_WPA - WS_WPB}")
        a(f"s_add_u32 s54, s54, 1\ns_cmp_lt_u32 s54, 2\ns_cbranch_scc1 {pfx}_rj\ns_branch {pfx}_end")
    def gw(d, n, addr, off):
        a(f"s_add_u32 s14, s12, {off}")
        a(f"buffer_load_dwordx{n} v[{d}:{d+n-1}], v{addr}, s[40:43], s14 offen sc1")
    def m_loads():
        for st in range(10):
            t, H = divmod(st, 5); d = F[st] + 4
            if H < 4:
                a(f"buffer_load_dwordx4 v[{d}:{d+3}], v{tX1}, s[40:43], s{8+2*t} offen offset:{1024*H} sc1")
                gw(F[st], 4, tW1, 12800 * t + 3200 * H)
            else:
                for hf in range(2):
                    a(f"buffer_load_dwordx2 v[{d+2*hf}:{d+2*hf+1}], v{tX2}, s[40:43], s{9+2*t} offen offset:{512*hf} sc1")
                    gw(F[st] + 2 * hf, 2, tW2, 12800 * t + 6400 * hf)
    redo("TLm", 16, m_loads, lambda: [mmf(st) for st in range(10)], m_out)
    def zw(d, j, o=0):
        if j < 4: a(f"ds_read_b128 v[{d}:{d+3}], v{tW1} offset:{o+6400*j}")
        else:
            for t in range(2): a(f"ds_read_b64 v[{d+2*t}:{d+2*t+1}], v{tW2} offset:{o+12800*t}")
    def zx(d, j, o=0):
        if j < 4: a(f"ds_read_b128 v[{d}:{d+3}], v{tX1} offset:{o+(j>>1)*10240+(j&1)*2048}")
        else:
            for t in range(2): a(f"ds_read_b64 v[{d+2*t}:{d+2*t+1}], v{tX2} offset:{o+4096+10240*t}")
    def zmf(j): a(f"v_mfma_f32_16x16x32_bf16 v[4:7], v[{F[j]}:{F[j]+3}], v[{F[j]+4}:{F[j]+7}], v[4:7]")
    def z_pack(O, A=4):
        a(f"v_cvt_pk_bf16_f32 v{O}, v{A}, v{A+1}\nv_cvt_pk_bf16_f32 v{O+1}, v{A+2}, v{A+3}")
        a(f"ds_bpermute_b32 v{O}, v{SR}, v{O}\nds_bpermute_b32 v{O+1}, v{SR}, v{O+1}")
    def z_out():
        z_pack(OUT)
        a("s_waitcnt lgkmcnt(0)")
        a(f"buffer_store_dwordx2 v[{OUT}:{OUT+1}], v{tO}, s[44:47], s80 offen offset:128 {ONT}")
    a.label("TLz_start")
    for j in range(5): zw(F[j], j)
    o_epilogue(a, OO, WS_OA, False)
    for p in range(8):
        if p <= 4: a(f"s_waitcnt {'vmcnt(0) ' if p == 4 else ''}lgkmcnt(0)")
        a("s_barrier")
        if p == 7: a(f"s_mov_b32 s8, {-LX}\nv_add_u32 v{tX1}, s8, v{tX1}\nv_add_u32 v{tX2}, s8, v{tX2}")
        for j in range(5): zx(F[j] + 4, j, 20480 * (p % 3) if p < 7 else 0)
        wshift(p)
        if p == 1:
            a(f"""
            v_lshrrev_b32 v{tO}, 2, v0
            v_and_b32 v3, 3, v0
            v_lshl_add_u32 v{SR}, v3, 4, v{tO}
            v_lshlrev_b32 v{SR}, 2, v{SR}
            v_mul_u32_u24 v{tO}, 2560, v{tO}
            v_lshl_add_u32 v{tO}, v3, 3, v{tO}
            """)
        if p == 7: a(f"buffer_store_dwordx2 v[12:13], v{tO}, s[44:47], s80 offen offset:{1280+128} {ONT}")
        ac = v(4 if p < 4 else 8, 4)
        for j in range(5):
            w = (5 if j < 4 else 4) if p < 7 else (5 - j if j < 4 else 0)
            c = "0" if (p % 4 == 0 and j == 0) else ac
            a(f"s_waitcnt lgkmcnt({w})\nv_mfma_f32_16x16x32_bf16 {ac}, v[{F[j]}:{F[j]+3}], v[{F[j]+4}:{F[j]+7}], {c}")
            if p < 7: zw(F[j], j, 25600 * ((p + 1) % 2))
        if p == 4:
            a(NANCHK.format("s[48:49]", 4)); z_pack(12)
    a("s_nop 7")
    a(NANCHK.format("s[50:51]", 8))
    z_pack(14, 8)
    a("s_waitcnt lgkmcnt(0)")
    a(f"buffer_store_dwordx2 v[14:15], v{tO}, s[44:47], s80 offen offset:128 {ONT}")
    a("s_or_b64 vcc, s[48:49], s[50:51]\ns_cbranch_scc1 TLz_redo")
    a.label("TLz_end")
    stamp_end(a)
    a("s_endpgm")
    def z_loads():
        for j in range(5):
            d = F[j] + 4
            if j < 4:
                a(f"buffer_load_dwordx4 v[{d}:{d+3}], v{tX1}, s[40:43], s{8+2*(j>>1)} offen offset:{2048*(j&1)} sc1")
                gw(F[j], 4, tW1, 6400 * j)
            else:
                for t in range(2):
                    a(f"buffer_load_dwordx2 v[{d+2*t}:{d+2*t+1}], v{tX2}, s[40:43], s{9+2*t} offen sc1")
                    gw(F[j] + 2 * t, 2, tW2, 12800 * t)
    redo("TLz", 4, z_loads, lambda: [zmf(j) for j in range(5)], z_out)
    a.label("AT_fallback")
    FM = BACC
    a("s_mov_b32 exec_lo, 0")
    a(f"v_mov_b32 v{QB}, 0\nv_mov_b32 v{QB+1}, 0")
    a("s_mov_b32 exec_lo, -1")
    a(f"v_mov_b32 v{FM}, 0xff800000")
    a(f"s_mov_b32 s70, {WS_KV - LKV}")
    a.label("AT_fb1")
    a(f"buffer_load_dwordx4 v[{KA}:{KA+3}], v{aKA}, s[40:43], s70 offen sc1")
    a(f"buffer_load_dwordx2 v[{KB}:{KB+1}], v{aKB}, s[40:43], s70 offen sc1")
    a("s_waitcnt vmcnt(0)")
    qka(S0); qkb(S0)
    a("s_nop 15")
    rowmax(a, S0, FM, first=False)
    a(f"s_add_u32 s70, s70, {TILE}\ns_cmp_lt_u32 s70, {WS_KV-LKV+64*TILE}\ns_cbranch_scc1 AT_fb1")
    set_m(a, FM, FM + 1, FM + 2)
    for i in range(16): a(f"v_mov_b32 v{OO+i}, 0")
    a(f"s_mov_b32 s70, {WS_KV - LKV}")
    a.label("AT_fb2")
    a(f"buffer_load_dwordx4 v[{KA}:{KA+3}], v{aKA}, s[40:43], s70 offen sc1")
    a(f"buffer_load_dwordx2 v[{KB}:{KB+1}], v{aKB}, s[40:43], s70 offen sc1")
    a(f"buffer_load_dwordx4 v[{V0}:{V0+3}], v{aV0}, s[40:43], s70 offen sc1")
    a(f"buffer_load_dwordx4 v[{V1}:{V1+3}], v{aV1}, s[40:43], s70 offen sc1")
    a("s_waitcnt vmcnt(0)")
    qka(S0); qkb(S0)
    a("s_nop 15")
    E(S0, 0, 16)
    a("s_nop 1")
    pv0(S0); pv1()
    a(f"s_add_u32 s70, s70, {TILE}\ns_cmp_lt_u32 s70, {WS_KV-LKV+64*TILE}\ns_cbranch_scc1 AT_fb2")
    a("s_nop 15")
    a("s_branch AT_ok")

    LK = "s[62:63]"
    A_, B_, KV_, P_, WO_ = "L_issueA", "L_issueB", "L_issueKV", "L_issueP", "L_issueWo"
    a.label("L_md")
    tr_init(a); tr(a)
    p4, p8 = ("s4", "s5") if MAP48 else ("s5", "s4")
    a(f"""
    s_and_b32 s8, {p4}, 1
    s_mul_i32 s8, s8, 5
    s_and_b32 s9, {p4}, 2
    s_add_u32 s8, s8, s9
    s_and_b32 s9, {p8}, 7
    s_add_u32 s11, s8, s9
    s_cmp_ge_u32 s11, 10
    s_cselect_b32 s8, 10, 0
    s_sub_u32 s11, s11, s8
    s_mov_b32 s12, 0
    s_lshl_b32 s8, s10, 2
    s_lshl_b32 s9, s10, 3
    v_lshrrev_b32 v20, 4, v0
    v_add_u32 v20, s8, v20
    v_xor_b32 v20, v20, v0
    v_and_b32 v20, 7, v20
    v_lshlrev_b32 v20, 4, v20
    v_lshrrev_b32 v21, 3, v0
    v_add_u32 v21, s9, v21
    v_mul_u32_u24 v21, 1280, v21
    v_add_u32 v2, v20, v21
    s_mov_b32 s8, 1120
    """)
    for p in range(5):
        a(f"v_add_u32 v20, {64*p}, v0")
        a(f"v_mul_u32_u24 v{22+p}, 6554, v20")
        a(f"v_lshrrev_b32 v{22+p}, 16, v{22+p}")
        a(f"v_lshlrev_b32 v20, 4, v20")
        a(f"v_mad_u32_u24 v{3+p}, v{22+p}, s8, v20")
    a("s_mul_i32 s64, s5, 160")
    a(f"s_mul_i32 s65, s10, {32*1280}")
    a("s_add_u32 s65, s65, s64")
    srd(a, 48, 18, 640 * 1280)
    call(a, A_, LK)
    a("s_waitcnt vmcnt(9)"); bar(a)
    call(a, A_, LK); call(a, A_, LK)
    a("s_mov_b32 s70, 0")
    a.label("L_a")
    a("s_waitcnt vmcnt(18)"); bar(a); call(a, A_, LK)
    a("s_add_u32 s70, s70, 1\ns_cmp_lt_u32 s70, 7\ns_cbranch_scc1 L_a")
    srd(a, 40, 36, WS_SIZE)
    srd(a, 72, 26, XBYTES)
    srd(a, 76, 28, 640 * 3840)
    a("s_waitcnt vmcnt(18)"); bar(a)
    a("s_mov_b32 s8, 2560\ns_mov_b32 s9, 1280")
    for p in range(5):
        a(f"v_mad_u32_u24 v{8+p}, v{22+p}, s8, v{3+p}")
        a(f"v_lshrrev_b32 v20, 1, v{22+p}")
        a(f"v_mad_u32_u24 v{13+p}, v20, s9, v{3+p}")
    a(f"s_mul_i32 s66, s10, {32*3840}")
    a("s_add_u32 s66, s66, s64")
    a("s_add_u32 s67, s66, 1280")
    get_nonce(a, "v30", "v31")
    a("s_waitcnt vmcnt(9)"); bar(a)
    a("s_waitcnt vmcnt(0)"); bar(a)
    a("s_mov_b32 s12, 0")
    a("s_add_u32 s69, s5, s4\ns_and_b32 s69, s69, 3")
    a("s_cmp_eq_u32 s10, 1")
    a("s_cbranch_scc1 L1_path")
    a(f"s_add_u32 s60, s7, {4 if BS >= 2 else 3}\ns_and_b32 s60, s60, 15")
    a(f"s_mov_b32 s61, {LKV if BS >= 2 else LKV + 3*CH}")
    a("s_lshl_b32 s56, s4, 7\ns_lshl_b32 s57, s5, 2\ns_add_u32 s57, s57, s56")
    a("v_lshlrev_b32 v19, 2, v0")

    pad(a, "b0")
    B1_, B2_ = "L_issueB1", "L_issueB2"
    a(f"v_mov_b32 v33, {LMISC}")
    L = Loader(a)
    PFL = int(OPT.get("pfl", 0))
    if PFL:
        a(f"""
        v_mul_u32_u24 v60, 1280, v0
        s_add_u32 s70, s11, 9
        s_cmp_ge_u32 s70, 10
        s_cselect_b32 s8, 10, 0
        s_sub_u32 s70, s70, s8
        s_lshl_b32 s70, s70, 7
        s_add_u32 s70, s70, s13
        v_mul_u32_u24 v61, 43, v0
        v_lshrrev_b32 v61, 8, v61
        v_mul_u32_u24 v62, 6, v61
        v_sub_u32 v62, v0, v62
        v_mul_u32_u24 v61, 3840, v61
        v_lshrrev_b32 v63, 1, v62
        v_mul_u32_u24 v63, 1280, v63
        v_and_b32 v62, 1, v62
        v_mul_u32_u24 v62, 156, v62
        v_add3_u32 v61, v61, v62, v63
        s_and_b32 s9, s4, 7
        s_sub_u32 s71, s11, s9
        s_add_u32 s71, s71, 18
        s_cmp_ge_u32 s71, 20
        s_cselect_b32 s8, 20, 10
        s_sub_u32 s71, s71, s8
        s_add_u32 s65, s71, 1
        s_cmp_eq_u32 s65, 10
        s_cselect_b32 s65, 0, s65
        s_mul_i32 s9, s9, {8*3840}
        s_add_u32 s9, s9, s64
        s_mul_i32 s71, s71, {64*3840}
        s_add_u32 s71, s71, s9
        s_mul_i32 s65, s65, {64*3840}
        s_add_u32 s65, s65, s9
        """)
    bar(a); gs(a, 8); L.call(B1_, "B0", 9)
    if PFL:
        L.ops("pf", 3)
        a("buffer_load_dword v64, v60, s[72:75], s70 offen\ns_mov_b32 exec_hi, 0xffff")
        a("buffer_load_dword v65, v61, s[76:79], s71 offen\nbuffer_load_dword v66, v61, s[76:79], s65 offen\ns_mov_b32 exec_hi, -1")
    bar(a); L.call(B2_, "B0", 10)
    a("s_mov_b32 s9, 0")
    a.label("L0_c0")
    a("ds_read_b32 v32, v33 offset:4\ns_add_u32 s9, s9, 1\ns_waitcnt lgkmcnt(0)\nv_readfirstlane_b32 s8, v32")
    a(f"s_cmp_gt_u32 s9, {SPIN_MAX}\ns_cbranch_scc1 L0_c1\ns_cmp_ge_u32 s8, 8\ns_cbranch_scc1 L0_c1\ns_sleep 2\ns_branch L0_c0")
    a.label("L0_c1")
    L.call(KV_, "KV4", 11); L.call(B1_, "B1", 9)
    for nm, t in BARS:
        pad(a, nm)
        L.need([f"KV{c}" for c in KV_NEED.get(nm, [])] + ([f"B{nm[1]}"] if nm[0] == "f" else []))
        bar(a)
        if nm == "f0": L.call(B2_, "B1", 10)
        SPL = int(OPT.get("sp", 1))
        if nm == "f0" and SPL: L.call(B1_, "B2", 9)
        elif nm[0] == "f" and int(nm[1]) + 2 < 10:
            if nm == "f1" and SPL: L.call(B2_, "B2", 10)
            L.call(B_, f"B{int(nm[1])+2}", 19)
        for c in KV_ISSUE.get(nm, []): L.call(KV_, f"KV{c}", 11)
        if nm == "f9": a(f"s_mov_b32 s12, 0\ns_mul_i32 s64, s5, 102400\ns_add_u32 s64, s64, {WS_WPB}")
        if nm in ("c1", "k1"): L.call(WO_, "W", 25)
        if nm == "c3":
            a("s_mov_b32 s9, 0")
            a.label("L0_d0")
            a("ds_read_b32 v32, v33 offset:8\ns_add_u32 s9, s9, 1\ns_waitcnt lgkmcnt(0)\nv_readfirstlane_b32 s8, v32")
            a(f"s_cmp_gt_u32 s9, {SPIN_MAX}\ns_cbranch_scc1 L0_d1\ns_cmp_ge_u32 s8, 8\ns_cbranch_scc1 L0_d1\ns_sleep 2\ns_branch L0_d0")
            a.label("L0_d1")
            a(f"s_add_u32 s8, s57, {FL_HB}"); L.ops("fl", 1); publish(a, "s8", "v30", "v31")
            L.call(WO_, "W", 25); L.call(WO_, "W", 25)
        if nm == "k3":
            a(f"s_add_u32 s13, s13, {WS_OB}\ns_mov_b32 s61, {LX}\ns_add_u32 s8, s56, {FL_HB}")
            poll(a, "s8", 8); L.q.clear()
            call(a, P_, LK); call(a, "L_issuePa", LK)
        if nm == "k4":
            gs(a, 9); call(a, "L_issuePb", LK)
    a(f"s_add_u32 s70, s57, {FL_H}\ns_add_u32 s71, s56, {FL_H}")
    pad(a, "t0")
    a("s_waitcnt vmcnt(20)"); bar(a)
    publish(a, "s70", "v30", "v31")
    call(a, P_, LK)
    a("s_waitcnt vmcnt(21)"); bar(a)
    call(a, P_, LK)
    a(f"s_sub_u32 s13, s13, {WS_OB - WS_OA}")
    set_exec(a, 8)
    a("buffer_load_dword v32, v19, s[40:43], s71 offen sc1\ns_mov_b64 exec, -1")
    a("s_waitcnt vmcnt(21)"); bar(a)
    set_exec(a, 8)
    a("s_waitcnt vmcnt(0)\nv_cmp_ne_u32 vcc, s96, v32\ns_nop 1\ns_cbranch_vccz L0_go")
    a("buffer_load_dword v32, v19, s[40:43], s71 offen sc1\ns_waitcnt vmcnt(0)\nv_cmp_ne_u32 vcc, s96, v32\ns_mov_b64 exec, -1")
    a("s_cbranch_vccnz L0_late")
    a.label("L0_go")
    a("s_mov_b64 exec, -1")
    call(a, P_, LK)
    bar(a)
    a("s_branch L0_join")
    a.label("L0_late")
    bar(a)
    poll(a, "s71", 8)
    call(a, P_, LK)
    a.label("L0_join")
    gs(a, 7)
    call(a, P_, LK)
    pad(a, "t4")
    a("s_waitcnt vmcnt(20)"); bar(a)
    call(a, P_, LK)
    a("s_waitcnt vmcnt(20)"); bar(a)
    a("s_waitcnt vmcnt(0)"); bar(a)
    pad(a, "t7")
    a("s_waitcnt vmcnt(0)"); bar(a)
    pad(a, "end")
    tr_dump(a)
    a("s_endpgm")
    a.label("L1_path")
    srd(a, 48, 24, 640 * 1280)
    srd(a, 52, 30, 640 * 1280)
    a("s_lshl_b32 s56, s5, 5\ns_add_u32 s57, s56, s4")
    a(f"s_mul_i32 s68, s57, {PST}\ns_add_u32 s68, s68, {WS_KVP}")
    a("s_lshl_b32 s56, s5, 9\ns_lshr_b32 s8, s4, 3\ns_lshl_b32 s8, s8, 7\ns_and_b32 s57, s4, 7\ns_lshl_b32 s57, s57, 2\ns_add_u32 s57, s57, s8\ns_add_u32 s57, s57, s56")
    a("v_lshrrev_b32 v19, 3, v0\nv_lshlrev_b32 v19, 7, v19\nv_and_b32 v28, 7, v0\nv_lshl_add_u32 v19, v28, 2, v19")
    a(f"""
    v_lshrrev_b32 v48, 4, v0
    v_mul_u32_u24 v48, {8*PST}, v48
    v_and_b32 v49, 15, v0
    v_min_u32 v47, 13, v49
    v_lshl_add_u32 v48, v47, 4, v48
    v_lshlrev_b32 v49, 3, v49
    v_lshlrev_b32 v46, 7, v0
    """)
    for i in range(4): a(f"v_mov_b32 v{52+i}, -1")
    a(f"""
    v_bfe_u32 v20, v0, 2, 2
    v_mul_u32_u24 v20, 160, v20
    v_and_b32 v21, 3, v0
    v_lshl_add_u32 v20, v21, 3, v20
    v_add_u32 v20, {LRP}, v20
    v_lshrrev_b32 v21, 5, v0
    v_bfe_u32 v28, v0, 4, 1
    v_mul_u32_u24 v41, 1280, v21
    v_lshl_add_u32 v41, v28, 5, v41
    v_add_u32 v41, v41, v20
    v_mul_u32_u24 v42, 1280, v28
    v_add_u32 v42, v42, v20
    v_lshrrev_b32 v21, 4, v0
    v_lshl_add_u32 v43, v21, 5, v20
    v_lshlrev_b32 v44, 3, v0
    """)
    L = Loader(a)
    bar(a); L.call(B1_, "B0", 9)
    bar(a); L.call(B2_, "B0", 10)
    a(f"s_mov_b32 m0, {LRP}\ns_mul_i32 s8, s4, {20*1280}\ns_add_u32 s8, s8, s64")
    L.ops("rp", 8)
    for sr in (52, 48):
        for p in range(4):
            dma(a, f"v{3+p}", sr, "s8")
            a("s_add_u32 m0, m0, 1024\ns_nop 0")
    L.call(B1_, "B1", 9)
    def rp_read():
        L.need(["rp"])
        for m in range(2):
            d, o = 100 + 16 * m, 4096 * m
            for blk in range(2):
                for hf in range(2): a(f"ds_read_b64_tr_b16 v[{d+4*blk+2*hf}:{d+4*blk+2*hf+1}], v41 offset:{o+64*blk+640*hf}")
            for hf in range(2): a(f"ds_read_b64_tr_b16 v[{d+8+2*hf}:{d+9+2*hf}], v42 offset:{o+128+640*hf}")
            a(f"ds_read_b64_tr_b16 v[{d+12}:{d+13}], v43 offset:{o+2560}")
            a(f"ds_read_b64_tr_b16 v[{d+14}:{d+15}], v43 offset:{o+2560+128}")
        a("s_waitcnt lgkmcnt(0)")
    def rp_store():
        L.ops("st", 10)
        a(f"s_mul_i32 s64, s5, 102400\ns_mul_i32 s8, s4, 3200\ns_add_u32 s8, s8, s64\ns_add_u32 s9, s8, {WS_WPA}\ns_add_u32 s8, s8, {WS_WPB}\ns_add_u32 s64, s64, {WS_WPA}")
        for m in range(2):
            d = 100 + 16 * m
            a(f"buffer_store_dwordx4 v[{d}:{d+3}], v18, s[40:43], s{8+m} offen sc1")
            a(f"buffer_store_dwordx4 v[{d+4}:{d+7}], v18, s[40:43], s{8+m} offen offset:1024 sc1")
            a(f"buffer_store_dwordx2 v[{d+12}:{d+13}], v44, s[40:43], s{8+m} offen offset:2560 sc1")
        set_exec(a, 32)
        for m in range(2): a(f"buffer_store_dwordx4 v[{108+16*m}:{111+16*m}], v18, s[40:43], s{8+m} offen offset:2048 sc1")
        set_exec(a, 16)
        for m in range(2): a(f"buffer_store_dwordx2 v[{114+16*m}:{115+16*m}], v44, s[40:43], s{8+m} offen offset:3072 sc1")
        a("s_mov_b64 exec, -1")
    def fill_kv():
        L.ops("st", 8)
        a(f"s_lshl_b32 s60, s5, 12\ns_add_u32 s60, s60, {WS_KVZ}\ns_mul_i32 s61, s4, 112\ns_add_u32 s61, s61, s60")
        set_exec(a, 14)
        a("buffer_store_dwordx2 v[52:53], v49, s[40:43], s61 offen sc1")
        a("s_add_u32 s65, s68, 4096")
        set_exec(a, 40)
        a("buffer_store_dwordx4 v[52:55], v18, s[40:43], s65 offen offset:2048 sc1")
        a("s_mov_b64 exec, -1")
        for i in range(6):
            a(f"buffer_store_dwordx4 v[52:55], v18, s[40:43], {'s68' if i < 4 else 's65'} offen offset:{1024*(i%4)} sc1")
    def fill_tile(off):
        L.ops("nf", 10)
        a(f"s_mul_i32 s8, s5, 10240\ns_add_u32 s8, s8, s13\ns_add_u32 s8, s8, {off}")
        for i in range(10):
            if i in (4, 8): a("s_add_u32 s8, s8, 4096")
            a(f"buffer_store_dwordx4 v[52:55], v18, s[40:43], s8 offen offset:{1024*(i%4)} sc1")
    for p in range(10):
        L.need([f"B{p}"] + (["st"] if p == 5 else []))
        bar(a)
        if p == 0: L.call(B2_, "B1", 10); rp_read()
        if p == 5:
            a(f"s_add_u32 s8, s57, {FL_P}"); L.ops("fl", 1); publish(a, "s8", "v30", "v31")
        if p == 0 and SPL: L.call(B1_, "B2", 9)
        elif p + 2 < 10:
            if p == 1 and SPL: L.call(B2_, "B2", 10)
            L.call(B_, f"B{p+2}", 19)
        if p == 2: rp_store()
        if p == 3: fill_kv()
        if p == int(OPT.get("nf", 8)): fill_tile(WS_OA)
        if p == min(8, int(OPT.get("nf", 8)) + 1): fill_tile(WS_OB)
    a(f"s_add_u32 s8, s56, {FL_P}")
    poll(a, "s8", 32)
    a(f"s_and_b32 s8, s4, 7\ns_mul_i32 s8, s8, 12800\ns_add_u32 s8, s8, s64\ns_mov_b32 exec_hi, 0x3ffff")
    for i, o in enumerate((0, 6400, WS_WPB - WS_WPA - 6400, 6400)):
        a(f"s_add_u32 s8, s8, {o}\nbuffer_load_dword v{140+i}, v46, s[40:43], s8 offen sc1")
    a("s_mov_b32 exec_hi, -1")
    R = 60
    a(f"s_min_u32 s9, s4, 29\ns_mul_i32 s9, s9, 224\ns_mul_i32 s70, s5, {32*PST}\ns_add_u32 s70, s70, s9\ns_add_u32 s70, s70, {WS_KVP}")
    a(f"v_add_u32 v51, {LPART}, v18")
    bar(a); bar(a)
    for i in range(7):
        a(f"ds_read_b128 v[{R+4*i}:{R+3+4*i}], v51 offset:{1024*i}")
    for i in range(7):
        a(f"s_waitcnt lgkmcnt({6-i})")
        if i == 6: a("s_mov_b32 exec_hi, 15")
        a(f"buffer_store_dwordx4 v[{R+4*i}:{R+3+4*i}], v18, s[40:43], {'s68' if i < 4 else 's65'} offen offset:{1024*(i%4)} sc1")
    a("s_mov_b32 exec_hi, -1")
    gs(a, 10)
    a("s_waitcnt vmcnt(0)")
    gs(a, 11)
    a("s_mov_b32 s9, 0")
    Q = 100
    a.label("L1_p")
    a("s_mov_b32 s8, s70")
    for i in range(8):
        a(f"buffer_load_dwordx4 v[{Q+4*i}:{Q+3+4*i}], v48, s[40:43], s8 offen sc1")
        a(f"s_add_u32 s8, s8, {PST}")
    a("s_cmp_lg_u32 s9, 0\ns_cbranch_scc1 L1_p2")
    bar(a)
    a.label("L1_p2")
    a("s_add_u32 s9, s9, 1\ns_waitcnt vmcnt(0)")
    for i in range(4):
        for j in (0, 2): a(f"v_pk_add_f32 v[{R+4*i+j}:{R+1+4*i+j}], v[{Q+4*i+j}:{Q+1+4*i+j}], v[{Q+16+4*i+j}:{Q+17+4*i+j}]")
    for half in (2, 1):
        for i in range(half):
            for j in (0, 2): a(f"v_pk_add_f32 v[{R+4*i+j}:{R+1+4*i+j}], v[{R+4*i+j}:{R+1+4*i+j}], v[{R+4*(i+half)+j}:{R+1+4*(i+half)+j}]")
    a(f"v_pk_add_f32 v[30:31], v[{R}:{R+1}], v[{R+2}:{R+3}]\nv_cmp_u_f32 vcc, v30, v31\ns_nop 1\ns_cbranch_vccz L1_pd")
    a(f"v_max_u32 v30, v{Q}, v{Q+1}")
    for i in range(1, 16): a(f"v_max3_u32 v30, v30, v{Q+2*i}, v{Q+2*i+1}")
    a("v_cmp_eq_u32 vcc, -1, v30")
    a(f"s_cmp_gt_u32 s9, {SPIN_MAX}\ns_cbranch_scc1 L1_pd\ns_cbranch_vccz L1_pd\ns_mov_b64 exec, vcc\ns_sleep {OPT.get('rs', 4)}\ns_branch L1_p")
    a.label("L1_pd")
    a("s_mov_b64 exec, -1")
    gs(a, 12)
    if STAMP: a(f"v_mov_b32 v36, s9\ns_sub_u32 s14, s14, 40\nbuffer_store_dword v36, v37, s[40:43], s14 offen")
    for op in ("v_permlane32_swap_b32", "v_permlane16_swap_b32"):
        for j in range(4): a(f"v_mov_b32 v{R+4+j}, v{R+j}")
        a("s_nop 1")
        for j in range(4): a(f"{op} v{R+j}, v{R+4+j}")
        a("s_nop 1")
        for j in range(4): a(f"v_add_f32 v{R+j}, v{R+j}, v{R+4+j}")
    a(f"""
    v_cvt_pk_bf16_f32 v{R}, v{R}, v{R+1}
    v_cvt_pk_bf16_f32 v{R+1}, v{R+2}, v{R+3}
    v_min_u32 v{R}, -2, v{R}
    v_min_u32 v{R+1}, -2, v{R+1}
    s_mov_b32 exec_lo, 0x3fff
    s_mov_b32 exec_hi, 0
    buffer_store_dwordx2 v[{R}:{R+1}], v49, s[40:43], s61 offen sc1
    s_mov_b64 exec, -1
    """)
    for i in range(4): a(f"v_mov_b32 v{Q+12+i}, 0")
    a(f"v_add_u32 v50, {LKVZ}, v18")
    if K2: bar(a)
    a("s_waitcnt vmcnt(0)")
    gs(a, 13)
    a("s_mov_b32 s9, 0")
    a.label("L1_g")
    a("s_mov_b64 s[70:71], exec")
    for i in range(4):
        if i == 3: a("s_and_b32 exec_lo, exec_lo, 0x3ffff\ns_mov_b32 exec_hi, 0")
        a(f"buffer_load_dwordx4 v[{Q+4*i}:{Q+3+4*i}], v18, s[40:43], s60 offen offset:{1024*i} sc1")
    a("s_mov_b64 exec, s[70:71]")
    a("s_add_u32 s9, s9, 1\ns_waitcnt vmcnt(0)")
    a(f"v_max_u32 v30, v{Q}, v{Q+1}")
    for i in range(1, 8): a(f"v_max3_u32 v30, v30, v{Q+2*i}, v{Q+2*i+1}")
    a("v_cmp_eq_u32 vcc, -1, v30")
    a(f"s_cmp_gt_u32 s9, {SPIN_MAX}\ns_cbranch_scc1 L1_gd\ns_cbranch_vccz L1_gd\ns_mov_b64 exec, vcc\ns_sleep {OPT.get('rs', 4)}\ns_branch L1_g")
    a.label("L1_gd")
    a("s_mov_b64 exec, -1")
    gs(a, 14)
    if STAMP: a(f"v_mov_b32 v36, s9\ns_sub_u32 s14, s14, 44\nbuffer_store_dword v36, v37, s[40:43], s14 offen")
    for i in range(4): a(f"ds_write_b128 v50, v[{Q+4*i}:{Q+3+4*i}] offset:{1024*i}")
    a("s_waitcnt lgkmcnt(0)")
    bar(a)
    a("s_mov_b32 s12, 0")
    bar(a); bar(a)
    if KX: bar(a)
    a(f"s_lshl_b32 s70, s4, 7\ns_lshl_b32 s8, s5, 2\ns_add_u32 s70, s70, s8\ns_add_u32 s71, s70, {FL_OB}\ns_add_u32 s70, s70, {FL_OA}")
    bar(a); call(a, WO_, LK)
    bar(a); call(a, WO_, LK)
    a("s_waitcnt vmcnt(38)"); bar(a); call(a, WO_, LK)
    a("s_waitcnt vmcnt(38)"); bar(a); call(a, WO_, LK)
    a("s_add_u32 s69, s69, 3\ns_and_b32 s69, s69, 3\ns_mov_b32 s61, 0")
    a("s_waitcnt vmcnt(40)"); bar(a)
    call(a, P_, LK)
    publish(a, "s70", "v30", "v31"); publish(a, "s71", "v30", "v31")
    a("s_waitcnt vmcnt(47)"); bar(a)
    a("s_waitcnt vmcnt(22)"); bar(a)
    a("s_waitcnt vmcnt(2)"); bar(a)
    tr_dump(a)
    a.label("L_end")
    a("s_endpgm")
    a.label(A_)
    issue_x(a, 44, "s13", "s12")
    issue_w(a, 48, 3, 1280, "s65", "s12", IMG_W)
    wrap_inc(a, "s11", 1, 10); wrap_inc(a, "s12", HS, 6 * HS)
    a("s_setpc_b64 s[62:63]")
    a.label("L_issueB1")
    issue_x(a, 72, "s13", "s12")
    issue_w(a, 76, 8, 3840, "s66", "s12", IMG_W)
    a("s_setpc_b64 s[62:63]")
    a.label(B_)
    if OPT.get("lprio"): a("s_setprio " + OPT["lprio"])
    issue_x(a, 72, "s13", "s12")
    issue_w(a, 76, 8, 3840, "s66", "s12", IMG_W)
    a.label("L_issueB2")
    issue_w(a, 76, 13, 3840, "s67", "s12", IMG_KV, periods=2, rows_per_period=16)
    wrap_inc(a, "s11", 1, 10); wrap_inc(a, "s12", SLOT, 3 * SLOT)
    if OPT.get("lprio"): a("s_setprio 2")
    a("s_setpc_b64 s[62:63]")
    def lin(n):
        for i in range(n):
            if i % 4 == 0 and i > 0:
                a("s_add_u32 m0, m0, 4096")
                a("s_add_u32 s14, s14, 4096")
            a(f"buffer_load_dwordx4 v18, s[40:43], s14 offen offset:{1024*(i%4)} sc1 lds")
    a.label(KV_)
    a("s_mov_b32 m0, s61")
    a(f"s_mul_i32 s14, s60, {CH}")
    a(f"s_add_u32 s14, s14, {WS_KV}")
    lin(11)
    a("s_add_u32 s60, s60, 1\ns_and_b32 s60, s60, 15")
    wrap_inc(a, "s61", CH, LKV + 4 * CH, LKV)
    a("s_setpc_b64 s[62:63]")
    a.label("L_issuePa")
    a("s_mov_b32 m0, s61\ns_mul_i32 s14, s69, 20480\ns_add_u32 s14, s14, s13")
    lin(10)
    a("s_setpc_b64 s[62:63]")
    a.label("L_issuePb")
    a("s_add_u32 m0, s61, 10240\ns_mul_i32 s14, s69, 20480\ns_add_u32 s14, s14, s13\ns_add_u32 s14, s14, 10240")
    lin(10)
    a("s_branch L_issuePe")
    a.label(P_)
    a("s_mov_b32 m0, s61")
    a("s_mul_i32 s14, s69, 20480")
    a("s_add_u32 s14, s14, s13")
    lin(20)
    a.label("L_issuePe")
    a("s_add_u32 s69, s69, 1\ns_and_b32 s69, s69, 3")
    wrap_inc(a, "s61", 20480, LX + 3 * 20480, LX)
    a("s_setpc_b64 s[62:63]")
    a.label(WO_)
    a("s_mov_b32 m0, s12")
    a("s_mul_i32 s14, s69, 25600")
    a("s_add_u32 s14, s14, s64")
    lin(25)
    a("s_add_u32 s69, s69, 1\ns_and_b32 s69, s69, 3")
    a("s_add_u32 s12, s12, 25600")
    a("s_setpc_b64 s[62:63]")
    a.label("L_codeend")

HEADER = """
One persistent launch, 256 workgroups (one per CU), written with a generator script (straight-line schedule).
Workgroup (rb, cb) owns 64 rows x 4 heads. Waves 0-7 compute, waves 8-9 move data (LDS-DMA) and run the hand-offs.
  1. K/V pieces (16 rows each) -> d_ws, Q = x.wq for the own tile.
  2. Softmax attention over 64 key tiles. S^T = K.Q^T with the scale folded into K and the row offset folded into
     spare k-slots; P.V and the row sum through the sparse MFMA, which reads the high (bf16) half of the fp32 exps.
     Row offset = max of the first key tile (so the sum is >= 1); if the sum leaves [.., 2^40] or is NaN the wave
     falls back to the true row max and recomputes (AT_fallback).
  3. Branch B's projection runs inside those tiles; phi, kv/z partial sums, two-level reduction through d_ws, apply.
  4. Both output projections from tiles exchanged inside each group of 8 workgroups.
Hand-offs: a per-launch tag elected through d_debug; write-through stores, flags after the acknowledgement; where an
earlier flag is used the buffer was first filled with NaN / all-ones and the reader checks and repeats (TL*_redo).
"""
def main(out):
    a = Asm()
    a.lines.append(f"; @launch grid=(256,1,1) block=(640,1,1) lds={LDS_TOTAL}")
    for l in HEADER.strip().split("\n"): a.lines.append("; " + l)
    a('.amdgcn_target "amdgcn-amd-amdhsa--gfx950"')
    a(".text")
    gen(a)
    a('.section .rodata,"a"')
    open(out, "w").write(a.text() + descriptor(NAME + "_kernel", NV, 102))

if __name__ == "__main__":
    main(sys.argv[1] if len(sys.argv) > 1 else f"cdna_kernels/{NAME}.s")
```
